```python
import torch

def _softmax(x, axis=-1):
    return torch.softmax(x, dim=axis)
def _gelu(x):
    return torch.nn.functional.gelu(x, approximate="tanh")
def _silu(x):
    return torch.nn.functional.silu(x)
def _sigmoid(x):
    return torch.sigmoid(x)
def _layernorm(x, axis=-1, eps=1e-5):
    m = x.mean(dim=axis, keepdim=True)
    v = x.var(dim=axis, keepdim=True, unbiased=False)
    return (x - m) / torch.sqrt(v + eps)
def _scatter_add(tgt, idx, src, axis=0):
    return tgt.clone().index_add_(axis, idx, src)
def _segment_sum(src, seg, n):
    out = torch.zeros((n,) + src.shape[1:], dtype=src.dtype)
    return out.index_add_(0, seg, src)
def _pad(x, pw):
    flat = tuple(v for pair in reversed(pw) for v in pair)
    return torch.nn.functional.pad(x, flat)

kernel_name = 'gated_mix__softmax_full_mha__spectral_fnet__prompt'

def setup_inputs():

    _w = (lambda a: (lambda t: t.to(torch.bfloat16) if t.is_floating_point() else t)(torch.as_tensor(a)))
    def _A_setup():
        B, S, D = 1, 2048, 512
        return {
            "x": _w((lambda *s: torch.randn(*s, dtype=torch.bfloat16) * 0.05)(B, S, D)),
            "wqkv": _w((lambda *s: torch.randn(*s, dtype=torch.bfloat16) * 1.6)(D, 3 * D)),
            "wo": _w((lambda *s: torch.randn(*s, dtype=torch.bfloat16) * 1.6)(D, D)),
        }
    _A_in = _A_setup()

    def _B_setup():
        B, S, D = 1, 2048, 512
        ns = torch.arange(S)[:, None] * torch.arange(S)[None, :]
        nd = torch.arange(D)[:, None] * torch.arange(D)[None, :]
        Ws_re = torch.cos(-2.0 * torch.pi * ns / S).to(float)
        Ws_im = torch.sin(-2.0 * torch.pi * ns / S).to(float)
        Wd_re = torch.cos(-2.0 * torch.pi * nd / D).to(float)
        Wd_im = torch.sin(-2.0 * torch.pi * nd / D).to(float)
        return {
            "x": _w((lambda *s: torch.randn(*s, dtype=torch.bfloat16) * 0.05)(B, S, D)),
            "dft_seq_re": _w(Ws_re),
            "dft_seq_im": _w(Ws_im),
            "dft_hid_re": _w(Wd_re),
            "dft_hid_im": _w(Wd_im),
        }
    _B_in = _B_setup()

    return {
        "A_x": _A_in["x"],
        "A_wqkv": _A_in["wqkv"],
        "A_wo": _A_in["wo"],
        "B_x": _B_in["x"],
        "B_dft_seq_re": _B_in["dft_seq_re"],
        "B_dft_seq_im": _B_in["dft_seq_im"],
        "B_dft_hid_re": _B_in["dft_hid_re"],
        "B_dft_hid_im": _B_in["dft_hid_im"],
        "gate_w": _w((lambda *s: torch.randn(*s, dtype=torch.bfloat16) * 0.05)(512) * 16.0),
    }

def reference(A_x, A_wqkv, A_wo, B_x, B_dft_seq_re, B_dft_seq_im, B_dft_hid_re, B_dft_hid_im, gate_w):
    def _A_ref(x, wqkv, wo):
        B, S, D = x.shape
        H = 32; Dh = D // H
        qkv = (lambda x, *d: x.permute(*d))((x @ wqkv).reshape(B, S, 3, H, Dh), 2, 0, 3, 1, 4)
        q, k, v = qkv[0], qkv[1], qkv[2]
        scale = Dh ** -0.5
        scores = torch.einsum("bhqd,bhkd->bhqk", q, k) * scale
        p = _softmax(scores, axis=-1)
        o = torch.einsum("bhqk,bhkd->bhqd", p, v)
        return (lambda x, *d: x.permute(*d))(o, 0, 2, 1, 3).reshape(B, S, D) @ wo

    def _B_ref(x, dft_seq_re, dft_seq_im, dft_hid_re, dft_hid_im):
        a = torch.einsum("bsd,ed->bse", x, dft_hid_re)
        b = torch.einsum("bsd,ed->bse", x, dft_hid_im)
        y = torch.einsum("ts,bse->bte", dft_seq_re, a) - torch.einsum("ts,bse->bte", dft_seq_im, b)
        return y

    x = A_x
    g = _sigmoid((x * gate_w).sum(-1, keepdims=True))
    a = _A_ref(x, A_wqkv, A_wo)
    b = _B_ref(x, B_dft_seq_re, B_dft_seq_im, B_dft_hid_re, B_dft_hid_im)
    return g * a + (1 - g) * b
```

```python
class Asm:
    def __init__(self):
        self.lines = []
        self.nlabel = 0
    def __call__(self, s=""):
        for ln in s.split("\n"):
            self.lines.append("    " + ln.strip() if ln.strip() and not ln.strip().endswith(":") else ln.strip())
    def raw(self, s):
        self.lines.append(s)
    def label(self, name):
        self.lines.append(f"{name}:")
    def newlabel(self, base="L"):
        self.nlabel += 1
        return f"{base}_{self.nlabel}"
    def comment(self, s):
        self.lines.append(f"    ; {s}")
    def text(self):
        return "\n".join(self.lines) + "\n"

def vr(base, n=1):
    if n == 1:
        return f"v{base}"
    return f"v[{base}:{base+n-1}]"
def ar(base, n=1):
    if n == 1:
        return f"a{base}"
    return f"a[{base}:{base+n-1}]"
def sr(base, n=1):
    if n == 1:
        return f"s{base}"
    return f"s[{base}:{base+n-1}]"

class RegAlloc:
    def __init__(self, start=0, limit=256, kind="v"):
        self.next = start
        self.limit = limit
        self.kind = kind
        self.names = {}
    def alloc(self, name, n=1, align=None):
        if align is None:
            align = 1 if n == 1 else (2 if n < 4 else 4)
        b = (self.next + align - 1) // align * align
        self.next = b + n
        assert self.next <= self.limit, f"out of {self.kind} regs at {name}"
        self.names[name] = (b, n)
        return b

def kernel_header(name):
    return f""".globl {name}
.p2align 8
.type {name},@function
{name}:
"""

def kernel_desc(name, vgpr, sgpr=102, accum=None, agpr=0, wgy=False):
    acc = (vgpr + 3) // 4 * 4
    if acc < 4: acc = 4
    nfv = acc + agpr if agpr else vgpr
    s = f""".p2align 6
.amdhsa_kernel {name}
  .amdhsa_next_free_vgpr {nfv}
  .amdhsa_next_free_sgpr {sgpr}
  .amdhsa_accum_offset {acc}
  .amdhsa_group_segment_fixed_size 0
  .amdhsa_kernarg_size 96
  .amdhsa_user_sgpr_count 2
  .amdhsa_user_sgpr_kernarg_segment_ptr 1
  .amdhsa_system_sgpr_workgroup_id_x 1
"""
    if wgy:
        s += "  .amdhsa_system_sgpr_workgroup_id_y 1\n"
    s += ".end_amdhsa_kernel\n"
    return s
```

```python
WS_Q = 0
WS_K = 2 << 20
WS_V = 4 << 20
WS_O = 6 << 20
WS_A = 8 << 20
WS_B = 9 << 20
WS_D = 10 << 20
WS_E = 12 << 20
WS_G = 14 << 20
WS_T = 15 << 20
WS_SIZE_USED = 16 << 20
A_KSTEPS = 72
B_KSTEPS = 64
Y_STRIDE = 288 * 4
ARG = dict(x=0, wqkv=8, wo=16, bx=24, sre=32, sim=40, hre=48, him=56, gate=64, out=72, dbg=80, ws=88)

def srd(a, d, lo, size):
    a(f"s_mov_b32 s{d}, s{lo}")
    a(f"s_and_b32 s{d+1}, s{lo+1}, 0xffff")
    a(f"s_mov_b32 s{d+2}, {size}")
    a(f"s_mov_b32 s{d+3}, 0x00020000")
```

```python
from asmlib import *
from common import *

def gen_f2(a, name):
    R = RegAlloc(0, 256)
    R.alloc("tid")
    vLane = R.alloc("lane"); vT0 = R.alloc("t0"); vT1 = R.alloc("t1")
    vL16 = R.alloc("l16"); vB = R.alloc("boff")
    accP = R.alloc("accP", 16); accQ = R.alloc("accQ", 16)
    buf = R.alloc("buf", 64)
    nv = R.next
    sWS, sRe, sIm = 4, 6, 8
    srdWS, srdRe, srdIm = 12, 16, 20
    sW, sTt, sEt, sHasQ = 24, 25, 26, 27
    sT0, sT1, sA, sBq, sK = 28, 29, 30, 31, 32
    a.raw(kernel_header(name))
    a("s_cmp_ge_u32 s2, 297")
    a(f"s_cbranch_scc1 {name}_end")
    tl_entry(a)
    a(f"s_load_dwordx2 s[{sWS}:{sWS+1}], s[0:1], {ARG['ws']}")
    a(f"s_load_dwordx2 s[{sRe}:{sRe+1}], s[0:1], {ARG['sre']}")
    a(f"s_load_dwordx2 s[{sIm}:{sIm+1}], s[0:1], {ARG['sim']}")
    a(f"v_lshrrev_b32 v{vT0}, 6, v0")
    a(f"v_and_b32 v{vLane}, 63, v0")
    a(f"v_readfirstlane_b32 s{sW}, v{vT0}")
    a(f"v_lshlrev_b32 v{vL16}, 4, v{vLane}")
    a(f"s_mov_b32 s{sHasQ}, 1")
    a(f"s_lshr_b32 s{sTt}, s2, 3")
    a(f"s_and_b32 s{sEt}, s2, 7")
    a("s_cmp_lt_u32 s2, 256")
    a(f"s_cbranch_scc1 {name}_dec")
    a(f"s_mov_b32 s{sHasQ}, 0")
    a(f"s_sub_u32 s{sTt}, s2, 256")
    a(f"s_mov_b32 s{sEt}, 8")
    a("s_cmp_lt_u32 s2, 289")
    a(f"s_cbranch_scc1 {name}_dec")
    a(f"s_mov_b32 s{sTt}, 32")
    a(f"s_sub_u32 s{sEt}, s2, 289")
    a.label(f"{name}_dec")
    a("s_waitcnt lgkmcnt(0)")
    srd(a, srdWS, sWS, WS_SIZE_USED)
    srd(a, srdRe, sRe, 2048*4096)
    srd(a, srdIm, sIm, 2048*4096)
    a(f"v_and_b32 v{vT0}, 31, v{vLane}")
    a(f"s_lshl_b32 s{sT0}, s{sTt}, 5")
    a(f"v_add_u32 v{vT0}, s{sT0}, v{vT0}")
    a(f"v_lshlrev_b32 v{vT0}, 12, v{vT0}")
    a(f"v_lshrrev_b32 v{vT1}, 5, v{vLane}")
    a(f"v_lshlrev_b32 v{vT1}, 4, v{vT1}")
    a(f"v_add_u32 v{vB}, v{vT0}, v{vT1}")
    for i in range(16):
        a(f"v_mov_b32 v{accP+i}, 0")
        a(f"v_mov_b32 v{accQ+i}, 0")
    a(f"s_lshl_b32 s{sK}, s{sW}, 4")
    a(f"s_mul_i32 s{sA}, s{sEt}, {A_KSTEPS}")
    a(f"s_add_u32 s{sA}, s{sA}, s{sK}")
    a(f"s_lshl_b32 s{sA}, s{sA}, 10")
    a(f"s_add_u32 s{sA}, s{sA}, {WS_A}")
    a(f"s_mul_i32 s{sBq}, s{sEt}, {B_KSTEPS}")
    a(f"s_add_u32 s{sBq}, s{sBq}, s{sK}")
    a(f"s_lshl_b32 s{sBq}, s{sBq}, 10")
    a(f"s_add_u32 s{sBq}, s{sBq}, {WS_B}")
    a(f"s_lshl_b32 s{sK}, s{sK}, 5")
    for b in range(4):
        for q in range(4):
            k = b*4 + q
            a(f"s_add_u32 s{sT0}, s{sA}, {k*1024}")
            a(f"buffer_load_dwordx4 {vr(buf+8*q,4)}, v{vL16}, s[{srdWS}:{srdWS+3}], s{sT0} offen")
            a(f"s_add_u32 s{sT0}, s{sK}, {k*32}")
            a(f"buffer_load_dwordx4 {vr(buf+8*q+4,4)}, v{vB}, s[{srdRe}:{srdRe+3}], s{sT0} offen")
        a(f"s_cmp_eq_u32 s{sHasQ}, 0")
        a(f"s_cbranch_scc1 {name}_noq{b}")
        for q in range(4):
            k = b*4 + q
            a(f"s_add_u32 s{sT0}, s{sBq}, {k*1024}")
            a(f"buffer_load_dwordx4 {vr(buf+32+8*q,4)}, v{vL16}, s[{srdWS}:{srdWS+3}], s{sT0} offen")
            a(f"s_add_u32 s{sT0}, s{sK}, {k*32}")
            a(f"buffer_load_dwordx4 {vr(buf+32+8*q+4,4)}, v{vB}, s[{srdIm}:{srdIm+3}], s{sT0} offen")
        a("s_waitcnt vmcnt(0)")
        for q in range(4):
            a(f"v_mfma_f32_32x32x16_bf16 {vr(accQ,16)}, {vr(buf+32+8*q,4)}, {vr(buf+32+8*q+4,4)}, {vr(accQ,16)}")
        a.label(f"{name}_noq{b}")
        a("s_waitcnt vmcnt(0)")
        for q in range(4):
            a(f"v_mfma_f32_32x32x16_bf16 {vr(accP,16)}, {vr(buf+8*q,4)}, {vr(buf+8*q+4,4)}, {vr(accP,16)}")
        a("s_nop 7")
    a(f"s_cmp_lg_u32 s{sW}, 0")
    a(f"s_cbranch_scc1 {name}_nox")
    a(f"s_add_u32 s{sT0}, s{sA}, {64*1024}")
    a(f"buffer_load_dwordx4 {vr(buf,4)}, v{vL16}, s[{srdWS}:{srdWS+3}], s{sT0} offen")
    a(f"s_mov_b32 s{sT0}, {64*32}")
    a(f"buffer_load_dwordx4 {vr(buf+4,4)}, v{vB}, s[{srdRe}:{srdRe+3}], s{sT0} offen")
    a("s_waitcnt vmcnt(0)")
    a(f"v_mfma_f32_32x32x16_bf16 {vr(accP,16)}, {vr(buf,4)}, {vr(buf+4,4)}, {vr(accP,16)}")
    a.label(f"{name}_nox")
    a("s_nop 15")
    a("s_nop 3")
    for i in range(16):
        a(f"v_sub_f32 v{buf+i}, v{accP+i}, v{accQ+i}")
        a(f"v_add_f32 v{buf+16+i}, v{accP+i}, v{accQ+i}")
    a(f"s_lshl_b32 s{sT0}, s{sW}, 13")
    a(f"v_add_u32 v{vT0}, s{sT0}, v{vL16}")
    for q in range(8):
        a(f"ds_write_b128 v{vT0}, {vr(buf+4*q,4)} offset:{q*1024}")
    a("s_waitcnt lgkmcnt(0)")
    a("s_barrier")
    a(f"s_lshl_b32 s{sT0}, s{sW}, 10")
    a(f"v_add_u32 v{vT0}, s{sT0}, v{vL16}")
    for src in range(4):
        a(f"ds_read_b128 {vr(buf+8*src,4)}, v{vT0} offset:{src*8192}")
        a(f"ds_read_b128 {vr(buf+8*src+4,4)}, v{vT0} offset:{src*8192+4096}")
    a("s_waitcnt lgkmcnt(0)")
    for src in range(1, 4):
        for i in range(8):
            a(f"v_add_f32 v{buf+i}, v{buf+i}, v{buf+8*src+i}")
    a(f"v_and_b32 v{vT0}, 31, v{vLane}")
    a(f"s_lshl_b32 s{sT0}, s{sTt}, 5")
    a(f"v_add_u32 v{vT0}, s{sT0}, v{vT0}")
    a(f"v_mul_u32_u24 v{vT0}, {Y_STRIDE}, v{vT0}")
    a(f"v_lshrrev_b32 v{vT1}, 5, v{vLane}")
    a(f"v_lshlrev_b32 v{vT1}, 4, v{vT1}")
    a(f"v_add_u32 v{vT0}, v{vT0}, v{vT1}")
    a(f"s_lshl_b32 s{sT0}, s{sEt}, 7")
    a(f"s_lshl_b32 s{sT1}, s{sW}, 5")
    a(f"s_add_u32 s{sT0}, s{sT0}, s{sT1}")
    a(f"s_add_u32 s{sT1}, s{sT0}, {WS_D}")
    a(f"buffer_store_dwordx4 {vr(buf,4)}, v{vT0}, s[{srdWS}:{srdWS+3}], s{sT1} offen")
    a(f"s_add_u32 s{sT1}, s{sT0}, {WS_E}")
    a(f"buffer_store_dwordx4 {vr(buf+4,4)}, v{vT0}, s[{srdWS}:{srdWS+3}], s{sT1} offen")
    tl_exit(a, 2, sWS)
    a.label(f"{name}_end")
    a("s_endpgm")
    return nv
```

```python
from asmlib import *
from common import *

QSCALE = 0.25 * 1.4426950408889634
import struct
def f2u(f): return struct.unpack("<I", struct.pack("<f", f))[0]

def gen_k1(a, name):
    R = RegAlloc(0, 256)
    R.alloc("tid")
    vLane = R.alloc("lane")
    vT0 = R.alloc("t0"); vT1 = R.alloc("t1"); vT2 = R.alloc("t2"); vT3 = R.alloc("t3")
    vOffX = [R.alloc("offX0"), R.alloc("offX1")]
    vOffW = R.alloc("offW")
    vX = [[R.alloc(f"X{s}{j}") for j in range(4)] for s in range(2)]
    vW = [[R.alloc(f"W{s}{f}") for f in range(2)] for s in range(2)]
    vH = [[R.alloc(f"H{s}{j}") for j in range(4)] for s in range(2)]
    fX = [[R.alloc(f"fX{s}{t}", 4) for t in range(2)] for s in range(2)]
    fW = [[R.alloc(f"fW{s}{f}", 4) for f in range(2)] for s in range(2)]
    acc = [[R.alloc(f"acc{f}{t}", 16) for t in range(2)] for f in range(2)]
    vSt = R.alloc("stage", 64)
    vFo = R.alloc("fold", 8)
    vOffM = [R.alloc("offM0"), R.alloc("offM1")]
    vRowMain = R.alloc("rowmain", 4)
    vRowMir = R.alloc("rowmir", 4)
    nv = R.next

    sX, sWq, sWS = 4, 6, 8
    srdX, srdW, srdWS = 12, 16, 20
    sW = 24; sWm = 25; sWn = 26
    sTok0 = 27; sN0 = 28; sNb = 29
    sT0, sT1, sT2 = 30, 31, 32
    sXoff = 33; sWoff = 34
    sLdsX = 35; sLdsW = 36
    sSign = 37
    sH = 38
    sK1 = 40
    a.raw(kernel_header(name))
    a("s_cmp_ge_u32 s2, 251")
    a(f"s_cbranch_scc1 {name}_end")
    a(f"s_load_dwordx2 s[{sX}:{sX+1}], s[0:1], {ARG['x']}")
    a(f"s_load_dwordx2 s[{sWq}:{sWq+1}], s[0:1], {ARG['wqkv']}")
    a(f"s_load_dwordx2 s[{sWS}:{sWS+1}], s[0:1], {ARG['ws']}")
    a(f"v_lshrrev_b32 v{vT0}, 6, v0")
    a(f"v_and_b32 v{vLane}, 63, v0")
    a(f"v_readfirstlane_b32 s{sW}, v{vT0}")
    a(f"s_cmp_ge_u32 s2, 235")
    a(f"s_cbranch_scc1 {name}_gate")
    a(f"s_lshr_b32 s{sWm}, s{sW}, 1")
    a(f"s_and_b32 s{sWn}, s{sW}, 1")
    a(f"v_lshrrev_b32 v{vT0}, 3, v{vLane}")
    a(f"v_lshlrev_b32 v{vT0}, 10, v{vT0}")
    a(f"v_lshrrev_b32 v{vT1}, 4, v{vLane}")
    a(f"v_and_b32 v{vT2}, 7, v{vLane}")
    for p in range(2):
        a(f"v_add_u32 v{vT3}, {4*p}, v{vT1}")
        a(f"v_xor_b32 v{vT3}, v{vT3}, v{vT2}")
        a(f"v_lshlrev_b32 v{vT3}, 4, v{vT3}")
        a(f"v_add_u32 v{vOffX[p]}, v{vT0}, v{vT3}")
    a(f"v_and_b32 v{vT0}, 31, v{vLane}")
    a(f"v_lshrrev_b32 v{vT1}, 5, v{vLane}")
    a(f"v_lshrrev_b32 v{vT2}, 1, v{vT0}")
    a(f"v_and_b32 v{vT2}, 7, v{vT2}")
    a(f"v_xor_b32 v{vT2}, v{vT2}, v{vT1}")
    a(f"v_lshlrev_b32 v{vT2}, 4, v{vT2}")
    a(f"v_lshlrev_b32 v{vT0}, 7, v{vT0}")
    a(f"v_add_u32 v{vT0}, v{vT0}, v{vT2}")
    a(f"s_lshl_b32 s{sT0}, s{sWn}, 13")
    for j in range(4):
        a(f"v_xor_b32 v{vT3}, {j*32}, v{vT0}")
        a(f"v_add_u32 v{vX[0][j]}, s{sT0}, v{vT3}")
        a(f"v_add_u32 v{vX[1][j]}, 65536, v{vX[0][j]}")
    a(f"s_lshl_b32 s{sT1}, s{sWm}, 13")
    a(f"s_add_u32 s{sT1}, s{sT1}, 16384")
    for j in range(4):
        a(f"v_xor_b32 v{vT3}, {j*32}, v{vT0}")
        a(f"v_add_u32 v{vH[0][j]}, s{sT1}, v{vT3}")
        a(f"v_add_u32 v{vH[1][j]}, 65536, v{vH[0][j]}")
    a("s_waitcnt lgkmcnt(0)")
    srd(a, srdX, sX, 2048*1024)
    srd(a, srdWS, sWS, WS_SIZE_USED)
    for f in range(2):
        for t in range(2):
            for i in range(16):
                a(f"v_mov_b32 v{acc[f][t]+i}, 0")
    a("s_cmp_ge_u32 s2, 192")
    a(f"s_cbranch_scc1 {name}_ftype")

    srd(a, srdW, sWq, 512*3072)
    a(f"s_and_b32 s{sT0}, s2, 7")
    a(f"s_lshr_b32 s{sT1}, s2, 3")
    a(f"s_lshr_b32 s{sT2}, s{sT0}, 1")
    a(f"s_lshl_b32 s{sT2}, s{sT2}, 2")
    a(f"s_and_b32 s{sTok0}, s{sT1}, 3")
    a(f"s_add_u32 s{sTok0}, s{sTok0}, s{sT2}")
    a(f"s_lshl_b32 s{sTok0}, s{sTok0}, 7")
    a(f"s_and_b32 s{sT0}, s{sT0}, 1")
    a(f"s_mul_i32 s{sT0}, s{sT0}, 6")
    a(f"s_lshr_b32 s{sNb}, s{sT1}, 2")
    a(f"s_add_u32 s{sNb}, s{sNb}, s{sT0}")
    a(f"s_lshl_b32 s{sN0}, s{sNb}, 7")
    a(f"v_lshrrev_b32 v{vT0}, 4, v{vLane}")
    a(f"v_mul_u32_u24 v{vT1}, 3072, v{vT0}")
    a(f"v_bfe_u32 v{vT2}, v{vLane}, 2, 2")
    a(f"v_xor_b32 v{vT2}, v{vT2}, v{vT0}")
    a(f"v_lshlrev_b32 v{vT2}, 6, v{vT2}")
    a(f"v_add_u32 v{vT1}, v{vT1}, v{vT2}")
    a(f"v_and_b32 v{vT2}, 3, v{vLane}")
    a(f"v_lshlrev_b32 v{vT2}, 4, v{vT2}")
    a(f"v_add_u32 v{vOffW}, v{vT1}, v{vT2}")
    a(f"v_bfe_u32 v{vT0}, v{vLane}, 2, 2")
    a(f"v_lshrrev_b32 v{vT1}, 5, v{vLane}")
    a(f"v_lshlrev_b32 v{vT1}, 3, v{vT1}")
    a(f"v_add_u32 v{vT1}, v{vT1}, v{vT0}")
    a(f"v_lshlrev_b32 v{vT1}, 8, v{vT1}")
    a(f"v_bfe_u32 v{vT2}, v{vLane}, 4, 1")
    a(f"v_lshlrev_b32 v{vT2}, 5, v{vT2}")
    a(f"v_add_u32 v{vT1}, v{vT1}, v{vT2}")
    a(f"v_and_b32 v{vT2}, 3, v{vLane}")
    a(f"v_lshlrev_b32 v{vT2}, 3, v{vT2}")
    a(f"v_add_u32 v{vT1}, v{vT1}, v{vT2}")
    a(f"v_add_u32 v{vT1}, 16384, v{vT1}")
    a(f"s_lshl_b32 s{sT0}, s{sWm}, 1")
    for f in range(2):
        a(f"s_add_u32 s{sT1}, s{sT0}, {f}")
        a(f"v_xor_b32 v{vT2}, s{sT1}, v{vT0}")
        a(f"v_lshlrev_b32 v{vT2}, 6, v{vT2}")
        a(f"v_add_u32 v{vW[0][f]}, v{vT1}, v{vT2}")
        a(f"v_add_u32 v{vW[1][f]}, 65536, v{vW[0][f]}")
    a(f"s_lshl_b32 s{sT0}, s{sW}, 5")
    a(f"s_add_u32 s{sT0}, s{sT0}, s{sTok0}")
    a(f"s_lshl_b32 s{sXoff}, s{sT0}, 10")
    a(f"s_mul_i32 s{sWoff}, s{sW}, {16*3072}")
    a(f"s_lshl_b32 s{sT0}, s{sN0}, 1")
    a(f"s_add_u32 s{sWoff}, s{sWoff}, s{sT0}")
    a(f"s_lshl_b32 s{sLdsX}, s{sW}, 12")
    a(f"s_lshl_b32 s{sLdsW}, s{sW}, 12")
    a(f"s_add_u32 s{sLdsW}, s{sLdsW}, 16384")

    def dma_stage_qkv(st):
        buf = (st & 3) * 32768
        for m in range(4):
            a(f"s_add_u32 m0, s{sLdsX}, {buf + m*1024}")
            a(f"s_add_u32 s{sT0}, s{sXoff}, {m*8192 + st*128}")
            a(f"buffer_load_dwordx4 v{vOffX[m&1]}, s[{srdX}:{srdX+3}], s{sT0} offen lds")
        for m in range(4):
            a(f"s_add_u32 m0, s{sLdsW}, {buf + m*1024}")
            a(f"s_add_u32 s{sT0}, s{sWoff}, {(st*64 + 4*m)*3072}")
            a(f"buffer_load_dwordx4 v{vOffW}, s[{srdW}:{srdW+3}], s{sT0} offen lds")

    def reads_qkv(st, j, s):
        buf = st & 3; hi = buf >> 1; boff = (buf & 1) * 32768
        for t in range(2):
            a(f"ds_read_b128 {vr(fX[s][t],4)}, v{vX[hi][j]} offset:{boff + t*4096}")
        for f in range(2):
            for u in range(2):
                a(f"ds_read_b64_tr_b16 {vr(fW[s][f]+2*u,2)}, v{vW[hi][f]} offset:{boff + (16*j+4*u)*256}")

    def mfmas(s, vtype):
        for f in range(2):
            for t in range(2):
                if vtype:
                    a(f"v_mfma_f32_32x32x16_bf16 {vr(acc[f][t],16)}, {vr(fX[s][t],4)}, {vr(fW[s][f],4)}, {vr(acc[f][t],16)}")
                else:
                    a(f"v_mfma_f32_32x32x16_bf16 {vr(acc[f][t],16)}, {vr(fW[s][f],4)}, {vr(fX[s][t],4)}, {vr(acc[f][t],16)}")

    def gemm_loop(vtype, reads, dma, nreads, ndma, pre_sync=None):
        a(f"s_waitcnt vmcnt({3*ndma})")
        a("s_barrier")
        reads(0, 0, 0)
        s = 0
        for st in range(8):
            for j in range(4):
                nxt = (st, j+1) if j < 3 else (st+1, 0)
                if j == 3 and st < 7:
                    i = st + 1
                    n = {1: 2*ndma}.get(i, ndma if i < 7 else 0)
                    a(f"s_waitcnt vmcnt({n})")
                    a("s_barrier")
                    if 2 <= i <= 5:
                        dma(i + 2)
                if nxt[0] < 8:
                    reads(nxt[0], nxt[1], s ^ 1)
                    a(f"s_waitcnt lgkmcnt({nreads})")
                else:
                    a("s_waitcnt lgkmcnt(0)")
                mfmas(s, vtype)
                s ^= 1

    for st in range(4):
        dma_stage_qkv(st)
    a(f"s_cmp_ge_u32 s{sNb}, 8")
    a(f"s_cbranch_scc1 {name}_vtype")
    gemm_loop(False, reads_qkv, dma_stage_qkv, 6, 8)
    a("s_nop 15")
    a(f"s_cmp_lt_u32 s{sNb}, 4")
    a(f"s_cselect_b32 s{sT2}, {f2u(QSCALE)}, 1.0")
    a(f"s_cselect_b32 s{sT0}, {WS_Q}, {WS_K}")
    a(f"s_and_b32 s{sT1}, s{sNb}, 3")
    a(f"s_lshl_b32 s{sT1}, s{sT1}, 3")
    a(f"s_lshl_b32 s44, s{sWm}, 2")
    a(f"s_add_u32 s{sT1}, s{sT1}, s44")
    a(f"s_lshl_b32 s{sT1}, s{sT1}, 16")
    a(f"s_add_u32 s{sT0}, s{sT0}, s{sT1}")
    a(f"s_lshr_b32 s{sT1}, s{sTok0}, 5")
    a(f"s_lshl_b32 s44, s{sWn}, 1")
    a(f"s_add_u32 s{sT1}, s{sT1}, s44")
    a(f"s_lshl_b32 s{sT1}, s{sT1}, 10")
    a(f"s_add_u32 s{sT0}, s{sT0}, s{sT1}")
    a(f"v_lshlrev_b32 v{vT0}, 4, v{vLane}")
    for f in range(2):
        for t in range(2):
            A = acc[f][t]
            for i in range(16):
                a(f"v_mul_f32 v{A+i}, s{sT2}, v{A+i}")
            P = fX[0][0] if (f*2+t) % 2 == 0 else fX[1][0]
            for i in range(8):
                a(f"v_cvt_pk_bf16_f32 v{P+i}, v{A+2*i}, v{A+2*i+1}")
            for hh in range(2):
                a(f"s_add_u32 s{sT1}, s{sT0}, {(f*2+hh)*65536 + t*1024}")
                a(f"buffer_store_dwordx4 {vr(P+4*hh,4)}, v{vT0}, s[{srdWS}:{srdWS+3}], s{sT1} offen")
    a("s_endpgm")
    a.label(f"{name}_vtype")
    gemm_loop(True, reads_qkv, dma_stage_qkv, 6, 8)
    a("s_nop 15")
    a(f"s_sub_u32 s{sT1}, s{sNb}, 8")
    a(f"s_lshl_b32 s{sT1}, s{sT1}, 3")
    a(f"s_lshl_b32 s44, s{sWm}, 2")
    a(f"s_add_u32 s{sT1}, s{sT1}, s44")
    a(f"s_lshl_b32 s{sT1}, s{sT1}, 16")
    a(f"s_add_u32 s{sT0}, s{sT1}, {WS_V}")
    a(f"s_lshr_b32 s{sT1}, s{sTok0}, 4")
    a(f"s_lshl_b32 s44, s{sWn}, 2")
    a(f"s_add_u32 s{sT1}, s{sT1}, s44")
    a(f"s_lshl_b32 s{sT1}, s{sT1}, 9")
    a(f"s_add_u32 s{sT0}, s{sT0}, s{sT1}")
    a(f"v_bfe_u32 v{vT0}, v{vLane}, 4, 1")
    a(f"v_lshlrev_b32 v{vT0}, 16, v{vT0}")
    a(f"v_lshrrev_b32 v{vT1}, 5, v{vLane}")
    a(f"v_lshlrev_b32 v{vT1}, 8, v{vT1}")
    a(f"v_add_u32 v{vT0}, v{vT0}, v{vT1}")
    a(f"v_and_b32 v{vT1}, 15, v{vLane}")
    a(f"v_lshlrev_b32 v{vT1}, 4, v{vT1}")
    a(f"v_add_u32 v{vT0}, v{vT0}, v{vT1}")
    for f in range(2):
        for t in range(2):
            A = acc[f][t]
            P = fX[0][0] if (f*2+t) % 2 == 0 else fX[1][0]
            for i in range(8):
                a(f"v_cvt_pk_bf16_f32 v{P+i}, v{A+2*i}, v{A+2*i+1}")
            for g in range(2):
                a(f"s_add_u32 s{sT1}, s{sT0}, {f*2*65536 + (t*2+g)*512}")
                a(f"buffer_store_dwordx4 {vr(P+4*g,4)}, v{vT0}, s[{srdWS}:{srdWS+3}], s{sT1} offen")
    a("s_endpgm")

    a.label(f"{name}_ftype")
    a(f"s_sub_u32 s{sT0}, s2, 192")
    a(f"s_cmp_ge_u32 s{sT0}, 27")
    a(f"s_cbranch_scc1 {name}_fb")
    a(f"s_mul_i32 s{sT1}, s{sT0}, 43691")
    a(f"s_lshr_b32 s{sT1}, s{sT1}, 17")
    a(f"s_mul_i32 s{sT2}, s{sT1}, 3")
    a(f"s_sub_u32 s{sNb}, s{sT0}, s{sT2}")
    a(f"s_lshl_b32 s{sTok0}, s{sT1}, 7")
    a(f"s_load_dwordx2 s[{sH}:{sH+1}], s[0:1], {ARG['hre']}")
    a(f"s_mov_b32 s40, 0x00003f80")
    a(f"s_mov_b32 s41, 0x3f800000")
    a(f"s_mov_b32 s{sSign}, 0")
    a(f"s_branch {name}_fgo")
    a.label(f"{name}_fb")
    a(f"s_sub_u32 s{sT0}, s{sT0}, 27")
    a(f"s_and_b32 s{sNb}, s{sT0}, 1")
    a(f"s_lshr_b32 s{sT1}, s{sT0}, 1")
    a(f"s_lshl_b32 s{sTok0}, s{sT1}, 7")
    a(f"s_load_dwordx2 s[{sH}:{sH+1}], s[0:1], {ARG['him']}")
    a(f"s_mov_b32 s40, 0x0000bf80")
    a(f"s_mov_b32 s41, 0xbf800000")
    a(f"s_mov_b32 s{sSign}, 1")
    a.label(f"{name}_fgo")
    a(f"s_mov_b32 s42, 0x00003f80")
    a(f"s_mov_b32 s43, 0x3f800000")
    a(f"s_lshl_b32 s{sN0}, s{sNb}, 7")
    a("s_waitcnt lgkmcnt(0)")
    srd(a, srdW, sH, 512*1024)
    a(f"s_lshl_b32 s{sT0}, s{sW}, 5")
    a(f"s_add_u32 s{sT0}, s{sT0}, s{sTok0}")
    a(f"v_lshrrev_b32 v{vT0}, 3, v{vLane}")
    a(f"v_add_u32 v{vT0}, s{sT0}, v{vT0}")
    a(f"v_mov_b32 v{vT3}, 0x40000000")
    for m in range(4):
        a(f"v_add_u32 v{vT1}, {8*m}, v{vT0}")
        a(f"v_and_b32 v{vT2}, 1023, v{vOffX[m&1]}")
        a(f"v_lshl_add_u32 v{vRowMain+m}, v{vT1}, 10, v{vT2}")
        a(f"v_cmp_lt_u32 vcc, 1024, v{vT1}")
        a("s_nop 1")
        a(f"v_cndmask_b32 v{vRowMain+m}, v{vRowMain+m}, v{vT3}, vcc")
        a(f"v_sub_u32 v{vT1}, 2048, v{vT1}")
        a(f"v_lshl_add_u32 v{vRowMir+m}, v{vT1}, 10, v{vT2}")
        a(f"v_cmp_ge_u32 vcc, 1024, v{vT1}")
        a("s_nop 1")
        a(f"v_cndmask_b32 v{vRowMir+m}, v{vRowMir+m}, v{vT3}, vcc")
    a(f"s_lshl_b32 s{sT0}, s{sW}, 5")
    a(f"s_add_u32 s{sT0}, s{sT0}, s{sN0}")
    a(f"s_lshl_b32 s{sWoff}, s{sT0}, 10")
    a(f"s_lshl_b32 s{sLdsW}, s{sW}, 12")
    a(f"s_add_u32 s{sLdsW}, s{sLdsW}, 16384")
    a(f"s_lshl_b32 s{sT0}, s{sW}, 12")
    a(f"v_lshlrev_b32 v{vOffM[0]}, 4, v{vLane}")
    a(f"v_add_u32 v{vOffM[0]}, s{sT0}, v{vOffM[0]}")
    a(f"v_add_u32 v{vOffM[1]}, 65536, v{vOffM[0]}")

    def f_loadA(st):
        base = vSt + (st & 1) * 32
        a(f"s_mov_b32 s{sT0}, {st*128}")
        for m in range(4):
            a(f"buffer_load_dwordx4 {vr(base+8*m,4)}, v{vRowMain+m}, s[{srdX}:{srdX+3}], s{sT0} offen")
            a(f"buffer_load_dwordx4 {vr(base+8*m+4,4)}, v{vRowMir+m}, s[{srdX}:{srdX+3}], s{sT0} offen")
    def f_dmaB(st):
        buf = (st & 3) * 32768
        for m in range(4):
            a(f"s_add_u32 m0, s{sLdsW}, {buf + m*1024}")
            a(f"s_add_u32 s{sT0}, s{sWoff}, {m*8192 + st*128}")
            a(f"buffer_load_dwordx4 v{vOffX[m&1]}, s[{srdW}:{srdW+3}], s{sT0} offen lds")
    def f_fold(st):
        base = vSt + (st & 1) * 32
        buf = st & 3; hi = buf >> 1; boff = (buf & 1) * 32768
        for m in range(4):
            M = base + 8*m; Mi = M + 4
            for q in range(4):
                a(f"v_dot2_f32_bf16 v{vFo+2*q}, v{M+q}, s42, 0")
                a(f"v_dot2_f32_bf16 v{vFo+2*q+1}, v{M+q}, s43, 0")
            for q in range(4):
                a(f"v_dot2c_f32_bf16 v{vFo+2*q}, s40, v{Mi+q}")
                a(f"v_dot2c_f32_bf16 v{vFo+2*q+1}, s41, v{Mi+q}")
            for q in range(4):
                a(f"v_cvt_pk_bf16_f32 v{M+q}, v{vFo+2*q}, v{vFo+2*q+1}")
            a(f"ds_write_b128 v{vOffM[hi]}, {vr(M,4)} offset:{boff + m*1024}")

    def f_reads(st, j, s):
        buf = st & 3; hi = buf >> 1; boff = (buf & 1) * 32768
        for t in range(2):
            a(f"ds_read_b128 {vr(fX[s][t],4)}, v{vX[hi][j]} offset:{boff + t*4096}")
        for f in range(2):
            a(f"ds_read_b128 {vr(fW[s][f],4)}, v{vH[hi][j]} offset:{boff + f*4096}")

    f_loadA(0); f_dmaB(0); f_loadA(1); f_dmaB(1)
    s = 0
    a("s_waitcnt vmcnt(12)")
    f_fold(0)
    for st in range(8):
        if st + 2 < 8:
            f_loadA(st + 2) if False else None
        a("s_waitcnt lgkmcnt(0)")
        a("s_barrier")
        if st + 2 < 8:
            f_loadA(st + 2); f_dmaB(st + 2)
        f_reads(st, 0, s)
        for j in range(4):
            if j < 3:
                f_reads(st, j + 1, s ^ 1)
                a("s_waitcnt lgkmcnt(4)")
            else:
                a("s_waitcnt lgkmcnt(0)")
            mfmas(s, True)
            s ^= 1
            if j == 1 and st + 1 < 8:
                a(f"s_waitcnt vmcnt({12 if st + 2 < 8 else 0})")
                f_fold(st + 1)
                if j < 3: pass
    a("s_nop 15")
    a(f"s_cmp_eq_u32 s{sSign}, 0")
    a(f"s_mov_b32 s45, {WS_B}")
    a(f"s_cselect_b32 s{sT0}, {WS_A}, s45")
    a(f"s_cselect_b32 s44, {A_KSTEPS}, 64")
    a(f"s_lshl_b32 s{sT1}, s{sNb}, 2")
    a(f"s_lshl_b32 s45, s{sWm}, 1")
    a(f"s_add_u32 s{sT1}, s{sT1}, s45")
    a(f"s_mul_i32 s{sT1}, s{sT1}, s44")
    a(f"s_lshr_b32 s45, s{sTok0}, 4")
    a(f"s_add_u32 s{sT1}, s{sT1}, s45")
    a(f"s_lshl_b32 s45, s{sWn}, 2")
    a(f"s_add_u32 s{sT1}, s{sT1}, s45")
    a(f"s_lshl_b32 s{sT1}, s{sT1}, 10")
    a(f"s_add_u32 s{sT0}, s{sT0}, s{sT1}")
    a(f"s_lshl_b32 s44, s44, 10")
    a(f"v_lshlrev_b32 v{vT0}, 4, v{vLane}")
    for f in range(2):
        for t in range(2):
            A = acc[f][t]
            P = fX[0][0] if (f*2+t) % 2 == 0 else fX[1][0]
            for i in range(8):
                a(f"v_cvt_pk_bf16_f32 v{P+i}, v{A+2*i}, v{A+2*i+1}")
            a("s_nop 1")
            for g in range(2):
                a(f"v_permlane32_swap_b32 v{P+4*g}, v{P+4*g+2}")
                a(f"v_permlane32_swap_b32 v{P+4*g+1}, v{P+4*g+3}")
            if f == 1 and t == 0:
                a(f"s_add_u32 s{sT0}, s{sT0}, s44")
            for g in range(2):
                a(f"s_add_u32 s{sT1}, s{sT0}, {(t*2+g)*1024}")
                a(f"buffer_store_dwordx4 {vr(P+4*g,4)}, v{vT0}, s[{srdWS}:{srdWS+3}], s{sT1} offen")
    a("s_endpgm")

    a.label(f"{name}_gate")
    a(f"s_load_dwordx2 s[{sH}:{sH+1}], s[0:1], {ARG['gate']}")
    a("s_waitcnt lgkmcnt(0)")
    srd(a, srdX, sX, 2048*1024)
    srd(a, srdWS, sWS, WS_SIZE_USED)
    srd(a, srdW, sH, 1024)
    a(f"v_lshlrev_b32 v{vT0}, 4, v{vLane}")
    G = fW[0][0]
    a(f"buffer_load_dwordx4 {vr(G,4)}, v{vT0}, s[{srdW}:{srdW+3}], 0 offen")
    a(f"s_sub_u32 s{sT0}, s2, 235")
    a(f"s_lshl_b32 s{sT0}, s{sT0}, 7")
    a(f"s_lshl_b32 s{sT1}, s{sW}, 5")
    a(f"s_add_u32 s{sTok0}, s{sT0}, s{sT1}")
    a(f"s_lshl_b32 s{sT2}, s{sTok0}, 10")
    X = acc[0][0]
    for half in range(2):
        for r in range(16):
            a(f"s_add_u32 s{sT0}, s{sT2}, {(half*16 + r)*1024}")
            a(f"buffer_load_dwordx4 {vr(X+4*r,4)}, v{vT0}, s[{srdX}:{srdX+3}], s{sT0} offen")
        a("s_waitcnt vmcnt(0)")
        Pp = vSt + half*16
        for r in range(16):
            a(f"v_dot2_f32_bf16 v{Pp+r}, v{X+4*r}, v{G}, 0")
        for q in range(1, 4):
            for r in range(16):
                a(f"v_dot2c_f32_bf16 v{Pp+r}, v{X+4*r+q}, v{G+q}")
    Pp = vSt
    for ctrl in ["row_shr:1", "row_shr:2", "row_shr:4", "row_shr:8"]:
        for r in range(32):
            a(f"v_add_f32_dpp v{Pp+r}, v{Pp+r}, v{Pp+r} {ctrl} row_mask:0xf bank_mask:0xf bound_ctrl:0")
    for r in range(32):
        a(f"v_add_f32_dpp v{Pp+r}, v{Pp+r}, v{Pp+r} row_bcast:15 row_mask:0xa bank_mask:0xf")
    for r in range(32):
        a(f"v_add_f32_dpp v{Pp+r}, v{Pp+r}, v{Pp+r} row_bcast:31 row_mask:0xc bank_mask:0xf")
    a(f"v_mov_b32 v{vT1}, 0")
    for r in range(32):
        a(f"v_readlane_b32 s{sT0}, v{Pp+r}, 63")
        a("s_nop 3")
        a(f"v_writelane_b32 v{vT1}, s{sT0}, {r}")
    a(f"v_mul_f32 v{vT1}, {f2u(-1.4426950408889634)}, v{vT1}")
    a(f"v_exp_f32 v{vT1}, v{vT1}")
    a("s_nop 0")
    a(f"v_add_f32 v{vT1}, 1.0, v{vT1}")
    a(f"v_rcp_f32 v{vT1}, v{vT1}")
    a(f"v_lshlrev_b32 v{vT2}, 2, v{vLane}")
    a(f"s_lshl_b32 s{sT0}, s{sTok0}, 2")
    a(f"s_add_u32 s{sT0}, s{sT0}, {WS_G}")
    a(f"v_cmp_gt_u32 vcc, 32, v{vLane}")
    a("s_and_saveexec_b64 s[46:47], vcc")
    a(f"buffer_store_dword v{vT1}, v{vT2}, s[{srdWS}:{srdWS+3}], s{sT0} offen")
    a.label(f"{name}_end")
    a("s_endpgm")
    return nv
```

```python
from asmlib import *
from common import *

def gen_k3(a, name):
    R = RegAlloc(0, 256)
    R.alloc("tid")
    vLane = R.alloc("lane"); vT0 = R.alloc("t0"); vT1 = R.alloc("t1"); vT2 = R.alloc("t2")
    vL16 = R.alloc("l16"); vOffW = R.alloc("offw"); vWa = [R.alloc("wa0"), R.alloc("wa1")]
    vG = R.alloc("g"); vYa = R.alloc("ya")
    vY = R.alloc("y", 16)
    fO = R.alloc("fO", 64)
    fW = [R.alloc("fW0", 8), R.alloc("fW1", 8)]
    acc = [[R.alloc(f"acc{e}{t}", 16) for t in range(2)] for e in range(2)]
    nv = R.next
    sWS, sWo, sOut = 4, 6, 8
    srdWS, srdWo, srdOut = 12, 16, 20
    sW, sTb, sEb = 24, 25, 26
    sT0, sT1, sT2 = 28, 29, 30
    sT0row, sE0 = 31, 32
    sMirE = 33
    a.raw(kernel_header(name))
    a("s_cmp_ge_u32 s2, 256")
    a(f"s_cbranch_scc1 {name}_end")
    tl_entry(a)
    a(f"s_load_dwordx2 s[{sWS}:{sWS+1}], s[0:1], {ARG['ws']}")
    a(f"s_load_dwordx2 s[{sWo}:{sWo+1}], s[0:1], {ARG['wo']}")
    a(f"s_load_dwordx2 s[{sOut}:{sOut+1}], s[0:1], {ARG['out']}")
    a(f"v_lshrrev_b32 v{vT0}, 6, v0")
    a(f"v_and_b32 v{vLane}, 63, v0")
    a(f"v_readfirstlane_b32 s{sW}, v{vT0}")
    a(f"v_lshlrev_b32 v{vL16}, 4, v{vLane}")
    a(f"s_and_b32 s{sT0}, s2, 7")
    a(f"s_lshr_b32 s{sT1}, s2, 3")
    a(f"s_lshl_b32 s{sTb}, s{sT0}, 2")
    a(f"s_and_b32 s{sT0}, s{sT1}, 3")
    a(f"s_add_u32 s{sTb}, s{sTb}, s{sT0}")
    a(f"s_lshr_b32 s{sEb}, s{sT1}, 2")
    a(f"v_lshrrev_b32 v{vT0}, 3, v{vLane}")
    a(f"v_lshlrev_b32 v{vOffW}, 10, v{vT0}")
    a(f"v_bfe_u32 v{vT1}, v{vLane}, 4, 1")
    a(f"v_bfe_u32 v{vT2}, v{vLane}, 2, 1")
    a(f"v_xor_b32 v{vT1}, v{vT1}, v{vT2}")
    a(f"v_lshlrev_b32 v{vT1}, 6, v{vT1}")
    a(f"v_add_u32 v{vOffW}, v{vOffW}, v{vT1}")
    a(f"v_and_b32 v{vT1}, 3, v{vLane}")
    a(f"v_lshlrev_b32 v{vT1}, 4, v{vT1}")
    a(f"v_add_u32 v{vOffW}, v{vOffW}, v{vT1}")
    a("s_waitcnt lgkmcnt(0)")
    srd(a, srdWS, sWS, WS_SIZE_USED)
    srd(a, srdWo, sWo, 512*1024)
    srd(a, srdOut, sOut, 2048*1024)
    a(f"s_lshl_b32 s{sT0}, s{sTb}, 6")
    a(f"s_lshl_b32 s{sT1}, s{sW}, 3")
    a(f"s_add_u32 s{sT0}, s{sT0}, s{sT1}")
    a(f"s_lshl_b32 s{sT0}, s{sT0}, 10")
    a(f"s_add_u32 s{sT0}, s{sT0}, {WS_O}")
    a(f"s_lshl_b32 s{sT2}, s{sW}, 17")
    a(f"s_lshl_b32 s{sT1}, s{sEb}, 7")
    a(f"s_add_u32 s{sT2}, s{sT2}, s{sT1}")
    a(f"s_lshl_b32 s34, s{sW}, 14")
    for hd in range(8):
        for mm in range(2):
            m = hd*2 + mm
            a(f"s_add_u32 m0, s34, {m*1024}")
            a(f"s_add_u32 s{sT1}, s{sT2}, {m*8192}")
            a(f"buffer_load_dwordx4 v{vOffW}, s[{srdWo}:{srdWo+3}], s{sT1} offen lds")
        for tt in range(2):
            a(f"s_add_u32 s{sT1}, s{sT0}, {tt*32768 + hd*1024}")
            a(f"buffer_load_dwordx4 {vr(fO+(hd*2+tt)*4,4)}, v{vL16}, s[{srdWS}:{srdWS+3}], s{sT1} offen")
    a(f"s_and_b32 s{sT0}, s{sW}, 1")
    a(f"s_lshl_b32 s{sT0}, s{sT0}, 5")
    a(f"s_lshl_b32 s{sT0row}, s{sTb}, 6")
    a(f"s_add_u32 s{sT0row}, s{sT0row}, s{sT0}")
    a(f"s_lshr_b32 s{sT0}, s{sW}, 1")
    a(f"s_lshl_b32 s{sT0}, s{sT0}, 5")
    a(f"s_lshl_b32 s{sE0}, s{sEb}, 6")
    a(f"s_add_u32 s{sE0}, s{sE0}, s{sT0}")
    a(f"v_and_b32 v{vT0}, 31, v{vLane}")
    a(f"v_add_u32 v{vT0}, s{sT0row}, v{vT0}")
    a(f"v_lshlrev_b32 v{vT1}, 2, v{vT0}")
    a(f"s_mov_b32 s{sT1}, {WS_G}")
    a(f"buffer_load_dword v{vG}, v{vT1}, s[{srdWS}:{srdWS+3}], s{sT1} offen")
    a(f"v_sub_u32 v{vT1}, 2048, v{vT0}")
    a(f"s_cmp_lt_u32 s{sT0row}, 1024")
    a("s_cselect_b64 vcc, -1, 0")
    a(f"s_cselect_b32 s35, 1, 0")
    a(f"v_cndmask_b32 v{vT1}, v{vT1}, v{vT0}, vcc")
    a(f"v_mul_u32_u24 v{vYa}, {Y_STRIDE}, v{vT1}")
    a(f"v_lshrrev_b32 v{vT1}, 5, v{vLane}")
    a(f"v_lshlrev_b32 v{vT1}, 4, v{vT1}")
    a(f"s_cmp_lt_u32 s{sE0}, 256")
    a(f"s_cselect_b32 s{sMirE}, 0, 1")
    a(f"s_cselect_b32 s36, 1, 0")
    a(f"s_cbranch_scc0 {name}_mir")
    a(f"v_add_u32 v{vYa}, v{vYa}, v{vT1}")
    a(f"s_lshl_b32 s{sT1}, s{sE0}, 2")
    a(f"s_branch {name}_ya")
    a.label(f"{name}_mir")
    a(f"s_sub_u32 s{sT1}, 485, s{sE0}")
    a(f"s_lshl_b32 s{sT1}, s{sT1}, 2")
    a(f"v_add_u32 v{vYa}, s{sT1}, v{vYa}")
    a(f"v_sub_u32 v{vYa}, v{vYa}, v{vT1}")
    a(f"s_mov_b32 s{sT1}, 0")
    a.label(f"{name}_ya")
    a(f"s_cmp_eq_u32 s35, s36")
    a(f"s_mov_b32 s37, {WS_E}")
    a(f"s_cselect_b32 s{sT2}, {WS_D}, s37")
    a(f"s_add_u32 s{sT1}, s{sT1}, s{sT2}")
    for c in range(4):
        a(f"buffer_load_dwordx4 {vr(vY+4*c,4)}, v{vYa}, s[{srdWS}:{srdWS+3}], s{sT1} offen offset:{c*32}")
    a(f"v_bfe_u32 v{vT0}, v{vLane}, 2, 2")
    a(f"v_lshrrev_b32 v{vT1}, 5, v{vLane}")
    a(f"v_lshlrev_b32 v{vT1}, 2, v{vT1}")
    a(f"v_add_u32 v{vT0}, v{vT0}, v{vT1}")
    a(f"v_lshlrev_b32 v{vT0}, 7, v{vT0}")
    a(f"v_bfe_u32 v{vT1}, v{vLane}, 4, 1")
    a(f"v_lshlrev_b32 v{vT1}, 5, v{vT1}")
    a(f"v_add_u32 v{vT0}, v{vT0}, v{vT1}")
    a(f"v_and_b32 v{vT1}, 3, v{vLane}")
    a(f"v_lshlrev_b32 v{vT1}, 3, v{vT1}")
    a(f"v_add_u32 v{vT0}, v{vT0}, v{vT1}")
    a(f"v_add_u32 v{vT0}, s34, v{vT0}")
    a(f"v_bfe_u32 v{vT1}, v{vLane}, 3, 1")
    for et in range(2):
        a(f"v_xor_b32 v{vT2}, {et}, v{vT1}")
        a(f"v_lshlrev_b32 v{vT2}, 6, v{vT2}")
        a(f"v_add_u32 v{vWa[et]}, v{vT0}, v{vT2}")
    for e in range(2):
        for t in range(2):
            for i in range(16):
                a(f"v_mov_b32 v{acc[e][t]+i}, 0")
    def wreads(hd, s):
        for et in range(2):
            for u in range(2):
                a(f"ds_read_b64_tr_b16 {vr(fW[s]+4*et+2*u,2)}, v{vWa[et]} offset:{(16*hd+8*u)*128}")
    for hd in range(8):
        rem = (7 - hd) * 4 + 5
        a(f"s_waitcnt vmcnt({rem})")
        wreads(hd, hd & 1)
        a("s_waitcnt lgkmcnt(0)")
        for et in range(2):
            for tt in range(2):
                a(f"v_mfma_f32_32x32x16_bf16 {vr(acc[et][tt],16)}, {vr(fW[hd&1]+4*et,4)}, {vr(fO+(hd*2+tt)*4,4)}, {vr(acc[et][tt],16)}")
    a("s_nop 15")
    a("s_nop 3")
    a(f"s_lshl_b32 s{sT0}, s{sW}, 12")
    a(f"v_add_u32 v{vT0}, s{sT0}, v{vL16}")
    a(f"v_add_u32 v{vT0}, 65536, v{vT0}")
    for et in range(2):
        for tt in range(2):
            ti = et*2 + tt
            for q in range(4):
                a(f"ds_write_b128 v{vT0}, {vr(acc[et][tt]+4*q,4)} offset:{ti*16384 + q*1024}")
    a("s_waitcnt lgkmcnt(0)")
    a("s_barrier")
    a(f"s_lshl_b32 s{sT0}, s{sW}, 14")
    a(f"v_add_u32 v{vT0}, s{sT0}, v{vL16}")
    a(f"v_add_u32 v{vT0}, 65536, v{vT0}")
    S = fO
    for src in range(4):
        for q in range(4):
            a(f"ds_read_b128 {vr(S+16*src+4*q,4)}, v{vT0} offset:{src*4096 + q*1024}")
    a("s_waitcnt lgkmcnt(0)")
    for src in range(1, 4):
        for i in range(16):
            a(f"v_add_f32 v{S+i}, v{S+i}, v{S+16*src+i}")
    a("s_waitcnt vmcnt(0)")
    a(f"s_cmp_eq_u32 s{sMirE}, 0")
    a(f"s_cbranch_scc0 {name}_cm")
    for i in range(16):
        a(f"v_sub_f32 v{S+i}, v{S+i}, v{vY+i}")
        a(f"v_fma_f32 v{S+i}, v{vG}, v{S+i}, v{vY+i}")
    a(f"s_branch {name}_st")
    a.label(f"{name}_cm")
    for g in range(4):
        for r in range(4):
            y = vY + 4*(3-g) + (3-r)
            a(f"v_sub_f32 v{S+4*g+r}, v{S+4*g+r}, v{y}")
            a(f"v_fma_f32 v{S+4*g+r}, v{vG}, v{S+4*g+r}, v{y}")
    a.label(f"{name}_st")
    P = S + 16
    for i in range(8):
        a(f"v_cvt_pk_bf16_f32 v{P+i}, v{S+2*i}, v{S+2*i+1}")
    a("s_nop 1")
    for pr in range(2):
        a(f"v_permlane32_swap_b32 v{P+4*pr}, v{P+4*pr+2}")
        a(f"v_permlane32_swap_b32 v{P+4*pr+1}, v{P+4*pr+3}")
    a(f"v_and_b32 v{vT0}, 31, v{vLane}")
    a(f"v_add_u32 v{vT0}, s{sT0row}, v{vT0}")
    a(f"v_lshlrev_b32 v{vT0}, 10, v{vT0}")
    a(f"v_lshrrev_b32 v{vT1}, 5, v{vLane}")
    a(f"v_lshlrev_b32 v{vT1}, 4, v{vT1}")
    a(f"v_add_u32 v{vT0}, v{vT0}, v{vT1}")
    a(f"s_lshl_b32 s{sT0}, s{sE0}, 1")
    for pr in range(2):
        a(f"buffer_store_dwordx4 {vr(P+4*pr,4)}, v{vT0}, s[{srdOut}:{srdOut+3}], s{sT0} offen offset:{32*pr}")
    tl_exit(a, 3, sWS)
    a.label(f"{name}_end")
    a("s_endpgm")
    return nv
```

```python
import sys
from asmlib import *

NAME = "gated_mix__softmax_full_mha__spectral_fnet__prompt"
from common import *
from gen_k1 import gen_k1
from gen_f2 import gen_f2
from gen_k3 import gen_k3

TIMING = False
OPT = {}
def stamp(a, sreg):
    if TIMING:
        a(f"s_memtime s[{sreg}:{sreg+1}]")
def stamp_store(a, regs, vtmp, vaddr, srd_base, wave_index_sreg, stmp):
    if not TIMING: return
    a("s_waitcnt lgkmcnt(0)")
    a(f"s_lshl_b32 s{stmp}, s{wave_index_sreg}, 6")
    a(f"s_add_u32 s{stmp}, s{stmp}, {WS_T}")
    a(f"v_mov_b32 v{vaddr}, 0")
    for i, r in enumerate(regs):
        a(f"v_mov_b32 v{vtmp}, s{r}")
        a(f"buffer_store_dword v{vtmp}, v{vaddr}, s[{srd_base}:{srd_base+3}], s{stmp} offen offset:{4*i}")

def gen_attn(a, name):
    R = RegAlloc(0, 168)
    v_tid = R.alloc("tid")
    vLane16 = R.alloc("lane16")
    vAK = R.alloc("addrK")
    vAV = R.alloc("addrV")
    vT0 = R.alloc("tmp0")
    vT1 = R.alloc("tmp1")
    vM = R.alloc("m")
    vQ = R.alloc("Q", 4)
    vK = R.alloc("K", 4)
    vV0 = R.alloc("V0", 4)
    vV1 = R.alloc("V1", 4)
    vP = R.alloc("P", 8)
    vS = [R.alloc("S0", 16), R.alloc("S1", 16)]
    vT = R.alloc("T", 16)
    vO = R.alloc("O", 16)
    vC = R.alloc("C", 16)
    nv = R.next
    sWS = 4
    sSRD = 8
    sW, sHead, sQb = 12, 13, 14
    sKoff, sVoff = 15, 16
    sCh = 17
    sIt = 18
    sTmp, sTmp2 = 19, 20
    sMask = 22
    sRetry = 24

    a.raw(kernel_header(name))
    a("s_cmp_ge_u32 s2, 256")
    a(f"s_cbranch_scc1 {name}_end")
    stamp(a, 40)
    if TIMING: a("s_memrealtime s[54:55]")
    a(f"s_load_dwordx2 s[{sWS}:{sWS+1}], s[0:1], {ARG['ws']}")
    a(f"v_lshrrev_b32 v{vT0}, 6, v0")
    a(f"v_and_b32 v{vT1}, 63, v0")
    a(f"v_readfirstlane_b32 s{sW}, v{vT0}")
    a(f"v_lshlrev_b32 v{vLane16}, 4, v{vT1}")
    a(f"s_and_b32 s{sTmp}, s2, 7")
    a(f"s_lshr_b32 s{sTmp2}, s2, 3")
    a(f"s_lshl_b32 s{sHead}, s{sTmp}, 2")
    a(f"s_and_b32 s{sTmp}, s{sTmp2}, 3")
    a(f"s_add_u32 s{sHead}, s{sHead}, s{sTmp}")
    a(f"s_lshr_b32 s{sQb}, s{sTmp2}, 2")
    a(f"s_mov_b32 s{sMask}, 0x0000ffff")
    a(f"s_mov_b32 s{sMask+1}, 0x0000ffff")
    a(f"s_mov_b32 s{sRetry}, 0")
    a("s_waitcnt lgkmcnt(0)")
    srd(a, sSRD, sWS, WS_SIZE_USED)
    a(f"s_lshl_b32 s{sTmp}, s{sHead}, 6")
    a(f"s_add_u32 s{sTmp}, s{sTmp}, s{sW}")
    a(f"s_lshl_b32 s{sTmp}, s{sTmp}, 10")
    a(f"s_add_u32 s{sKoff}, s{sTmp}, {WS_K}")
    a(f"s_add_u32 s{sVoff}, s{sTmp}, {WS_V}")
    a(f"s_lshl_b32 s{sTmp2}, s{sQb}, 13")
    a(f"s_add_u32 s{sTmp2}, s{sTmp2}, s{sTmp}")
    a(f"buffer_load_dwordx4 {vr(vQ,4)}, v{vLane16}, s[{sSRD}:{sSRD+3}], s{sTmp2} offen")

    def dma_chunk(chunk_sreg=None, const=None):
        if const is not None:
            a(f"s_lshl_b32 s{sTmp}, s{sW}, 10")
            a(f"s_add_u32 s{sTmp}, s{sTmp}, {const*8192}")
            a(f"s_add_u32 s{sTmp2}, s{sKoff}, {const*8192}")
            a(f"s_mov_b32 m0, s{sTmp}")
            a(f"s_add_u32 s{sTmp}, s{sTmp}, 65536")
            a(f"buffer_load_dwordx4 v{vLane16}, s[{sSRD}:{sSRD+3}], s{sTmp2} offen lds")
            a(f"s_add_u32 s{sTmp2}, s{sVoff}, {const*8192}")
            a(f"s_mov_b32 m0, s{sTmp}")
            a("s_nop 0")
            a(f"buffer_load_dwordx4 v{vLane16}, s[{sSRD}:{sSRD+3}], s{sTmp2} offen lds")
        else:
            c = chunk_sreg
            a(f"s_lshl_b32 s{sTmp}, s{sW}, 10")
            a(f"s_lshl_b32 s21, s{c}, 13")
            a(f"s_add_u32 s{sTmp}, s{sTmp}, s21")
            a(f"s_add_u32 s{sTmp2}, s{sKoff}, s21")
            a(f"s_mov_b32 m0, s{sTmp}")
            a(f"s_add_u32 s{sTmp}, s{sTmp}, 65536")
            a(f"buffer_load_dwordx4 v{vLane16}, s[{sSRD}:{sSRD+3}], s{sTmp2} offen lds")
            a(f"s_add_u32 s{sTmp2}, s{sVoff}, s21")
            a(f"s_mov_b32 m0, s{sTmp}")
            a("s_nop 0")
            a(f"buffer_load_dwordx4 v{vLane16}, s[{sSRD}:{sSRD+3}], s{sTmp2} offen lds")

    for c in range(3):
        dma_chunk(const=c)
    a(f"v_lshrrev_b32 v{vT0}, 5, v{vT1}")
    a(f"v_lshlrev_b32 v{vT0}, 8, v{vT0}")
    a(f"v_and_b32 v{vAV}, 15, v{vT1}")
    a(f"v_lshlrev_b32 v{vAV}, 4, v{vAV}")
    a(f"v_add_u32 v{vAV}, v{vAV}, v{vT0}")
    a(f"v_add_u32 v{vAV}, 65536, v{vAV}")
    a(f"v_mov_b32 v{vM}, 0x3f803f80")
    a(f"v_and_b32 v{vAK}, 31, v{vT1}")
    a(f"v_cmp_eq_u32 vcc, 16, v{vAK}")
    a(f"v_cmp_eq_u32 s[26:27], 20, v{vAK}")
    a("s_nop 1")
    a("s_or_b64 vcc, vcc, s[26:27]")
    a("s_nop 1")
    a(f"v_cndmask_b32 v{vT0}, 0, v{vM}, vcc")
    for i in range(4):
        a(f"v_mov_b32 v{vV0+i}, v{vT0}")
        a(f"v_mov_b32 v{vV1+i}, v{vT0}")
    stamp(a, 42)
    a("s_waitcnt vmcnt(2)")
    a("s_barrier")
    stamp(a, 44)
    dma_chunk(const=3)
    a(f"s_mov_b32 s{sCh}, 4")

    def first_max_and_C():
        a(f"ds_read_b128 {vr(vK,4)}, v{vLane16}")
        a("s_waitcnt lgkmcnt(0)")
        a(f"v_mfma_f32_32x32x16_bf16 {vr(vS[0],16)}, {vr(vK,4)}, {vr(vQ,4)}, 0")
        a("s_nop 15")
        a("s_nop 3")
        S = vS[0]
        a(f"v_max3_f32 v{vM}, v{S}, v{S+1}, v{S+2}")
        for i in range(3, 15, 2):
            a(f"v_max3_f32 v{vM}, v{vM}, v{S+i}, v{S+i+1}")
        a(f"v_max_f32 v{vM}, v{vM}, v{S+15}")

    def bcast_negmax():
        a(f"v_mov_b32 v{vT0}, v{vM}")
        a("s_nop 1")
        a(f"v_permlane32_swap_b32 v{vT0}, v{vM}")
        a("s_nop 1")
        a(f"v_max_f32 v{vM}, v{vM}, v{vT0}")
        for i in range(16):
            a(f"v_sub_f32 v{vC+i}, 0, v{vM}")

    def pipeline_init():
        for i in range(16):
            a(f"v_mov_b32 v{vO+i}, 0")
        for i in range(4, 8):
            a(f"v_mov_b32 v{vP+i}, 0")
        a(f"v_mov_b32 v{vAK}, v{vLane16}")
        a(f"ds_read_b128 {vr(vK,4)}, v{vAK}")
        a(f"ds_read_b128 {vr(vT,4)}, v{vAK} offset:1024")
        a("s_waitcnt lgkmcnt(0)")
        a(f"v_mfma_f32_32x32x16_bf16 {vr(vS[0],16)}, {vr(vK,4)}, {vr(vQ,4)}, {vr(vC,16)}")
        a(f"v_mfma_f32_32x32x16_bf16 {vr(vS[1],16)}, {vr(vT,4)}, {vr(vQ,4)}, {vr(vC,16)}")
        a(f"s_mov_b64 exec, s[{sMask}:{sMask+1}]")
        a(f"ds_read_b128 {vr(vV0,4)}, v{vAV}")
        a("s_mov_b64 exec, -1")
        a(f"ds_read_b128 {vr(vK,4)}, v{vAK} offset:2048")
        a("s_nop 15")

    def step(u):
        S = vS[u & 1]
        e = lambda i: a(f"v_exp_f32 v{vT+i}, v{S+i}")
        c = lambda i: a(f"v_cvt_pk_bf16_f32 v{vP+i}, v{vT+2*i}, v{vT+2*i+1}")
        e(0); e(1); e(2); c(0); e(3); e(4)
        a("s_waitcnt lgkmcnt(2)")
        a(f"v_mfma_f32_32x32x16_bf16 {vr(vO,16)}, {vr(vV1,4)}, {vr(vP+4,4)}, {vr(vO,16)}")
        if not OPT.get("noexec"): a(f"s_mov_b64 exec, s[{sMask}:{sMask+1}]")
        if not OPT.get("nolds"): a(f"ds_read_b128 {vr(vV1,4)}, v{vAV} offset:{(2*u+1)*512}")
        if not OPT.get("noexec"): a("s_mov_b64 exec, -1")
        c(1); e(5); e(6); c(2); e(7); e(8); c(3); e(9); e(10)
        a("s_waitcnt lgkmcnt(2)")
        a(f"v_mfma_f32_32x32x16_bf16 {vr(vO,16)}, {vr(vV0,4)}, {vr(vP,4)}, {vr(vO,16)}")
        if not OPT.get("noexec"): a(f"s_mov_b64 exec, s[{sMask}:{sMask+1}]")
        if not OPT.get("nolds"): a(f"ds_read_b128 {vr(vV0,4)}, v{vAV} offset:{(2*u+2)*512}")
        if not OPT.get("noexec"): a("s_mov_b64 exec, -1")
        e(11); c(4); e(12); c(5); e(13); e(14); c(6); e(15)
        a("s_waitcnt lgkmcnt(2)")
        a(f"v_mfma_f32_32x32x16_bf16 {vr(S,16)}, {vr(vK,4)}, {vr(vQ,4)}, {vr(vC,16)}")
        if not OPT.get("nolds"): a(f"ds_read_b128 {vr(vK,4)}, v{vAK} offset:{(u+3)*1024}")
        c(7)

    def main_loop(sync, lbl):
        a(f"s_mov_b32 s{sIt}, 8")
        a.label(lbl)
        for u in range(8):
            step(u)
        a(f"v_add_u32 v{vAK}, 8192, v{vAK}")
        a(f"v_add_u32 v{vAV}, 8192, v{vAV}")
        if sync and not OPT.get("nosync"):
            a("s_waitcnt vmcnt(2)")
            a("s_barrier")
            a(f"s_min_u32 s25, s{sCh}, 7")
            dma_chunk(chunk_sreg=25)
            a(f"s_add_u32 s{sCh}, s{sCh}, 1")
        a(f"s_sub_u32 s{sIt}, s{sIt}, 1")
        a(f"s_cmp_lg_u32 s{sIt}, 0")
        a(f"s_cbranch_scc1 {lbl}")
        a("s_waitcnt lgkmcnt(0)")
        a(f"v_mfma_f32_32x32x16_bf16 {vr(vO,16)}, {vr(vV1,4)}, {vr(vP+4,4)}, {vr(vO,16)}")

    first_max_and_C()
    bcast_negmax()
    pipeline_init()
    stamp(a, 46)
    main_loop(True, f"{name}_loop")
    stamp(a, 48)
    a.label(f"{name}_epi")
    a("s_nop 15")
    a("s_nop 3")
    a(f"s_cmp_lg_u32 s{sRetry}, 0")
    a(f"s_cbranch_scc1 {name}_fin")
    a(f"v_mov_b32 v{vT0}, 0x5d800000")
    a(f"v_cmp_nle_f32 vcc, v{vO+8}, v{vT0}")
    a("s_nop 4")
    a(f"s_cbranch_vccnz {name}_fallback")
    a.label(f"{name}_fin")
    a(f"v_rcp_f32 v{vT0}, v{vO+8}")
    a("s_nop 0")
    for i in range(8):
        a(f"v_mul_f32 v{vO+i}, v{vO+i}, v{vT0}")
    for i in range(4):
        a(f"v_cvt_pk_bf16_f32 v{vP+i}, v{vO+2*i}, v{vO+2*i+1}")
    a(f"s_lshl_b32 s{sTmp}, s{sQb}, 3")
    a(f"s_add_u32 s{sTmp}, s{sTmp}, s{sW}")
    a(f"s_lshl_b32 s{sTmp}, s{sTmp}, 5")
    a(f"s_add_u32 s{sTmp}, s{sTmp}, s{sHead}")
    a(f"s_lshl_b32 s{sTmp}, s{sTmp}, 10")
    a(f"s_add_u32 s{sTmp}, s{sTmp}, {WS_O}")
    a(f"buffer_store_dwordx4 {vr(vP,4)}, v{vLane16}, s[{sSRD}:{sSRD+3}], s{sTmp} offen")
    if TIMING:
        stamp(a, 50)
        a("s_memrealtime s[56:57]")
        a(f"s_lshl_b32 s52, s2, 3")
        a(f"s_add_u32 s52, s52, s{sW}")
        stamp_store(a, [40, 42, 44, 46, 48, 50, 54, 56], vT0, vT1, sSRD, 52, 53)
    a("s_endpgm")
    a.label(f"{name}_fallback")
    a(f"s_mov_b32 s{sRetry}, 1")
    a(f"v_mov_b32 v{vAK}, v{vLane16}")
    a(f"v_mov_b32 v{vM}, 0xff800000")
    a(f"s_mov_b32 s{sIt}, 64")
    a.label(f"{name}_maxloop")
    a(f"ds_read_b128 {vr(vK,4)}, v{vAK}")
    a("s_waitcnt lgkmcnt(0)")
    a(f"v_mfma_f32_32x32x16_bf16 {vr(vS[0],16)}, {vr(vK,4)}, {vr(vQ,4)}, 0")
    a(f"v_add_u32 v{vAK}, 1024, v{vAK}")
    a("s_nop 15")
    a("s_nop 3")
    S = vS[0]
    for i in range(0, 16, 2):
        a(f"v_max3_f32 v{vM}, v{vM}, v{S+i}, v{S+i+1}")
    a(f"s_sub_u32 s{sIt}, s{sIt}, 1")
    a(f"s_cmp_lg_u32 s{sIt}, 0")
    a(f"s_cbranch_scc1 {name}_maxloop")
    bcast_negmax()
    a(f"v_subrev_u32 v{vAV}, 65536, v{vAV}")
    a(f"s_mov_b64 exec, s[{sMask}:{sMask+1}]")
    for i in range(4):
        a(f"v_mov_b32 v{vV1+i}, 0")
    a("s_mov_b64 exec, -1")
    pipeline_init()
    main_loop(False, f"{name}_loop2")
    a(f"s_branch {name}_epi")
    a.label(f"{name}_end")
    a("s_endpgm")
    return nv

HEADER = """; Kernarg layout for this problem (96 bytes, ptrs only, base s[0:1]):
"""

def build(kernels, launches, path):
    a = Asm()
    descs = []
    for (name, fn, kw) in kernels:
        nv = fn(a, name)
        descs.append(kernel_desc(name, nv, **kw))
    txt = HEADER
    for (k, g, b, lds) in launches:
        txt += f"; @launch kernel={k} grid=({g},1,1) block=({b},1,1) lds={lds}\n"
    txt += '.amdgcn_target "amdgcn-amd-amdhsa--gfx950"\n.text\n'
    txt += a.text()
    txt += '.section .rodata,"a"\n' + "".join(descs)
    open(path, "w").write(txt)

if __name__ == "__main__":
    mode = sys.argv[1]; path = sys.argv[2]
    TIMING = "t" in sys.argv[3:]
    for o in sys.argv[3:]:
        OPT[o] = True
    K = dict(k1=("k1_kernel", gen_k1, dict(sgpr=64), ("k1_kernel", 251, 256, 131072)),
             attn=("attn_kernel", gen_attn, dict(sgpr=64), ("attn_kernel", 256, 512, 131072)),
             f2=("f2_kernel", gen_f2, dict(sgpr=64), ("f2_kernel", 297, 256, 32768)),
             k3=("k3_kernel", gen_k3, dict(sgpr=64), ("k3_kernel", 256, 256, 131072)))
    sel = dict(all=["k1", "attn", "f2", "k3"]).get(mode, mode.split(","))
    build([K[k][:3] for k in sel], [K[k][3] for k in sel], path)
```

```python
WS_Q = 0
WS_K = 2 << 20
WS_V = 4 << 20
WS_O = 6 << 20
WS_A = 8 << 20
WS_B = 9 << 20
WS_D = 10 << 20
WS_E = 12 << 20
WS_G = 14 << 20
WS_T = 15 << 20
WS_T2 = 16 << 20
WS_SIZE_USED = 20 << 20
A_KSTEPS = 72
B_KSTEPS = 64
Y_STRIDE = 288 * 4
ARG = dict(x=0, wqkv=8, wo=16, bx=24, sre=32, sim=40, hre=48, him=56, gate=64, out=72, dbg=80, ws=88)

def srd(a, d, lo, size):
    a(f"s_mov_b32 s{d}, s{lo}")
    a(f"s_and_b32 s{d+1}, s{lo+1}, 0xffff")
    a(f"s_mov_b32 s{d+2}, {size}")
    a(f"s_mov_b32 s{d+3}, 0x00020000")

TL = {"on": False}
def tl_entry(a):
    if TL["on"]:
        for i in range(12):
            a(f"s_mov_b32 s{64+2*i}, 0")
        a("s_memrealtime s[90:91]")
        a("s_memtime s[92:93]")
def tl_stamp(a, i):
    if TL["on"]:
        a(f"s_memrealtime s[{64+2*i}:{65+2*i}]" if TL.get("rt") else f"s_memtime s[{64+2*i}:{65+2*i}]")
        TL.setdefault("n", 0)
def tl_exit(a, kidx, wsptr_lo):
    if not TL["on"]:
        return
    a("s_waitcnt vmcnt(0)")
    a("s_memrealtime s[94:95]")
    a("s_memtime s[96:97]")
    a("s_mov_b64 exec, -1")
    a("v_lshrrev_b32 v1, 6, v0")
    a("s_nop 1")
    a("v_readfirstlane_b32 s98, v1")
    a("s_lshl_b32 s99, s2, 4")
    a("s_add_u32 s99, s99, s98")
    a("s_lshl_b32 s99, s99, 4")
    a(f"s_add_u32 s99, s99, {WS_T + kidx*131072}")
    a("s_waitcnt lgkmcnt(0)")
    a(f"s_add_u32 s100, s{wsptr_lo}, s99")
    a(f"s_addc_u32 s101, s{wsptr_lo+1}, 0")
    a("v_mov_b32 v2, s90")
    a("v_mov_b32 v3, s94")
    a("v_mov_b32 v4, s92")
    a("v_mov_b32 v5, s96")
    a("v_mov_b32 v1, 0")
    a("global_store_dwordx4 v1, v[2:5], s[100:101]")
    a(f"s_lshl_b32 s99, s2, 4")
    a("s_add_u32 s99, s99, s98")
    a("s_lshl_b32 s99, s99, 6")
    a(f"s_add_u32 s99, s99, {WS_T2 + kidx*524288}")
    a(f"s_add_u32 s100, s{wsptr_lo}, s99")
    a(f"s_addc_u32 s101, s{wsptr_lo+1}, 0")
    for q in range(3):
        for i in range(4):
            a(f"v_mov_b32 v{2+i}, s{64+2*(4*q+i)}")
        a(f"global_store_dwordx4 v1, v[2:5], s[100:101] offset:{16*q}")
        a("s_nop 2")

class Vm:
    def __init__(self, a):
        self.a = a
        self.q = []
    def issue(self, tag, n=1):
        for _ in range(n):
            self.q.append(tag)
    def wait(self, *tags):
        last = -1
        for i, t in enumerate(self.q):
            if t in tags:
                last = i
        if last < 0:
            return
        n = len(self.q) - 1 - last
        assert n <= 63
        self.a(f"s_waitcnt vmcnt({n})")
        self.q = self.q[last+1:]
    def wait_all(self):
        self.a("s_waitcnt vmcnt(0)")
        self.q = []

def lds_signal(a, vaddr, vtmp, off):
    a(f"v_mov_b32 v{vaddr}, {off}")
    a(f"v_mov_b32 v{vtmp}, 1")
    a("s_mov_b64 exec, 1")
    a(f"ds_add_u32 v{vaddr}, v{vtmp}")
    a("s_mov_b64 exec, -1")

def lds_wait(a, vaddr, vtmp, stmp, off, target, label, sleep=1):
    a(f"v_mov_b32 v{vaddr}, {off}")
    a.label(label)
    a(f"ds_read_b32 v{vtmp}, v{vaddr}")
    a("s_waitcnt lgkmcnt(0)")
    a(f"v_readfirstlane_b32 s{stmp}, v{vtmp}")
    a("s_nop 3")
    a(f"s_cmp_ge_u32 s{stmp}, {target}")
    a(f"s_cbranch_scc1 {label}_ok")
    if sleep: a(f"s_sleep {sleep}")
    a(f"s_branch {label}")
    a.label(f"{label}_ok")
```

```python
from asmlib import *
from common import *

OPT = {}

def gen_attn2(a, name):
    R = RegAlloc(0, 168)
    R.alloc("tid")
    vLane16 = R.alloc("lane16")
    vAK = R.alloc("addrK")
    vAV = R.alloc("addrV")
    vT0 = R.alloc("tmp0")
    vT1 = R.alloc("tmp1")
    vM = R.alloc("m")
    vQ = [R.alloc("Q0", 4), R.alloc("Q1", 4)]
    vK = R.alloc("K", 4)
    vV0 = R.alloc("V0", 4)
    vV1 = R.alloc("V1", 4)
    vP = R.alloc("P", 8)
    vS = [R.alloc("S0", 16), R.alloc("S1", 16)]
    vT = R.alloc("T", 16)
    vO = [R.alloc("O0", 16), R.alloc("O1", 16)]
    vC = [R.alloc("C0", 16), R.alloc("C1", 16)]
    nv = R.next
    sWS = 4; sSRD = 8
    sW, sHead, sQb = 12, 13, 14
    sKoff, sVoff = 15, 16
    sKh, sQp = 17, 18
    sIt = 19
    sTmp, sTmp2 = 20, 21
    sMask = 22
    sRetry = 24
    LDS_X = 131072

    a.raw(kernel_header(name))
    a("s_cmp_ge_u32 s2, 256")
    a(f"s_cbranch_scc1 {name}_end")
    tl_entry(a)
    a(f"s_load_dwordx2 s[{sWS}:{sWS+1}], s[0:1], {ARG['ws']}")
    a(f"v_lshrrev_b32 v{vT0}, 6, v0")
    a(f"v_and_b32 v{vT1}, 63, v0")
    a(f"v_readfirstlane_b32 s{sW}, v{vT0}")
    a(f"v_lshlrev_b32 v{vLane16}, 4, v{vT1}")
    a(f"s_and_b32 s{sTmp}, s2, 7")
    a(f"s_lshr_b32 s{sTmp2}, s2, 3")
    a(f"s_lshl_b32 s{sHead}, s{sTmp}, 2")
    a(f"s_and_b32 s{sTmp}, s{sTmp2}, 3")
    a(f"s_add_u32 s{sHead}, s{sHead}, s{sTmp}")
    a(f"s_lshr_b32 s{sQb}, s{sTmp2}, 2")
    a(f"s_mov_b32 s{sMask}, 0x0000ffff")
    a(f"s_mov_b32 s{sMask+1}, 0x0000ffff")
    a(f"s_mov_b32 s{sRetry}, 0")
    a(f"s_and_b32 s{sQp}, s{sW}, 3")
    a(f"s_lshr_b32 s{sKh}, s{sW}, 2")
    a("s_waitcnt lgkmcnt(0)")
    srd(a, sSRD, sWS, WS_SIZE_USED)
    a(f"s_lshl_b32 s{sTmp}, s{sHead}, 6")
    a(f"s_add_u32 s{sTmp}, s{sTmp}, s{sW}")
    a(f"s_lshl_b32 s{sTmp}, s{sTmp}, 10")
    a(f"s_add_u32 s{sKoff}, s{sTmp}, {WS_K}")
    a(f"s_add_u32 s{sVoff}, s{sTmp}, {WS_V}")
    a(f"s_lshl_b32 s25, s{sW}, 10")
    def dma(c):
        for half in range(2):
            t = (8*c + 32*half) * 1024
            a(f"s_add_u32 m0, s25, {t}")
            a(f"s_add_u32 s{sTmp2}, s{sKoff}, {t}")
            a(f"buffer_load_dwordx4 v{vLane16}, s[{sSRD}:{sSRD+3}], s{sTmp2} offen lds")
            a(f"s_add_u32 m0, s25, {t + 65536}")
            a(f"s_add_u32 s{sTmp2}, s{sVoff}, {t}")
            a(f"buffer_load_dwordx4 v{vLane16}, s[{sSRD}:{sSRD+3}], s{sTmp2} offen lds")
    a(f"s_lshl_b32 s{sTmp}, s{sHead}, 6")
    a(f"s_lshl_b32 s{sTmp2}, s{sQb}, 3")
    a(f"s_add_u32 s{sTmp}, s{sTmp}, s{sTmp2}")
    a(f"s_lshl_b32 s{sTmp2}, s{sQp}, 1")
    a(f"s_add_u32 s{sTmp}, s{sTmp}, s{sTmp2}")
    a(f"s_lshl_b32 s{sTmp}, s{sTmp}, 10")
    a(f"buffer_load_dwordx4 {vr(vQ[0],4)}, v{vLane16}, s[{sSRD}:{sSRD+3}], s{sTmp} offen")
    a(f"buffer_load_dwordx4 {vr(vQ[1],4)}, v{vLane16}, s[{sSRD}:{sSRD+3}], s{sTmp} offen offset:1024")
    for c in range(4):
        dma(c)
    tl_stamp(a, 0)
    a(f"s_lshl_b32 s26, s{sKh}, 15")
    a(f"v_lshrrev_b32 v{vT0}, 5, v{vT1}")
    a(f"v_lshlrev_b32 v{vT0}, 8, v{vT0}")
    a(f"v_and_b32 v{vAV}, 15, v{vT1}")
    a(f"v_lshlrev_b32 v{vAV}, 4, v{vAV}")
    a(f"v_add_u32 v{vAV}, v{vAV}, v{vT0}")
    a(f"v_add_u32 v{vAV}, 65536, v{vAV}")
    a(f"v_add_u32 v{vAV}, s26, v{vAV}")
    a(f"v_and_b32 v{vAK}, 31, v{vT1}")
    a(f"v_mov_b32 v{vM}, 0x3f803f80")
    a(f"v_cmp_eq_u32 vcc, 16, v{vAK}")
    a(f"v_cmp_eq_u32 s[28:29], 20, v{vAK}")
    a("s_nop 1")
    a("s_or_b64 vcc, vcc, s[28:29]")
    a("s_nop 1")
    a(f"v_cndmask_b32 v{vT0}, 0, v{vM}, vcc")
    for i in range(4):
        a(f"v_mov_b32 v{vV0+i}, v{vT0}")
        a(f"v_mov_b32 v{vV1+i}, v{vT0}")
    for q in range(2):
        for i in range(9):
            a(f"v_mov_b32 v{vO[q]+i}, 0")
        for i in range(9, 16):
            a(f"v_mov_b32 v{vO[q]+i}, 0")
    for i in range(4, 8):
        a(f"v_mov_b32 v{vP+i}, 0")
    a(f"v_add_u32 v{vAK}, s26, v{vLane16}")
    a("s_waitcnt vmcnt(8)")
    a("s_barrier")
    tl_stamp(a, 1)

    def rowmax(S):
        a(f"v_max3_f32 v{vM}, v{S}, v{S+1}, v{S+2}")
        for i in range(3, 15, 2):
            a(f"v_max3_f32 v{vM}, v{vM}, v{S+i}, v{S+i+1}")
        a(f"v_max_f32 v{vM}, v{vM}, v{S+15}")
    def bcast_negmax(C):
        a(f"v_mov_b32 v{vT0}, v{vM}")
        a("s_nop 1")
        a(f"v_permlane32_swap_b32 v{vT0}, v{vM}")
        a("s_nop 1")
        a(f"v_max_f32 v{vM}, v{vM}, v{vT0}")
        a(f"v_sub_f32 v{C}, 0, v{vM}")
        for i in range(1, 16):
            a(f"v_mov_b32 v{C+i}, v{C}")

    a(f"ds_read_b128 {vr(vT,4)}, v{vLane16}")
    a(f"ds_read_b128 {vr(vK,4)}, v{vAK}")
    a("s_waitcnt lgkmcnt(1)")
    a(f"v_mfma_f32_32x32x16_bf16 {vr(vS[0],16)}, {vr(vT,4)}, {vr(vQ[0],4)}, 0")
    a(f"v_mfma_f32_32x32x16_bf16 {vr(vS[1],16)}, {vr(vT,4)}, {vr(vQ[1],4)}, 0")
    a(f"s_mov_b64 exec, s[{sMask}:{sMask+1}]")
    a(f"ds_read_b128 {vr(vV0,4)}, v{vAV}")
    a("s_mov_b64 exec, -1")
    a("s_nop 12")
    rowmax(vS[0]); bcast_negmax(vC[0])
    rowmax(vS[1]); bcast_negmax(vC[1])
    a("s_waitcnt lgkmcnt(0)")
    a("s_nop 1")
    a(f"v_mfma_f32_32x32x16_bf16 {vr(vS[0],16)}, {vr(vK,4)}, {vr(vQ[0],4)}, {vr(vC[0],16)}")
    a(f"v_mfma_f32_32x32x16_bf16 {vr(vS[1],16)}, {vr(vK,4)}, {vr(vQ[1],4)}, {vr(vC[1],16)}")
    a(f"ds_read_b128 {vr(vK,4)}, v{vAK} offset:1024")
    a("s_nop 13")
    tl_stamp(a, 2)

    def step(u, q):
        S = vS[q]
        e = lambda i: a(f"v_exp_f32 v{vT+i}, v{S+i}")
        c = lambda i: a(f"v_cvt_pk_bf16_f32 v{vP+i}, v{vT+2*i}, v{vT+2*i+1}")
        e(0); e(1); e(2); c(0); e(3); e(4)
        if q == 1:
            a("s_waitcnt lgkmcnt(0)")
        a(f"v_mfma_f32_32x32x16_bf16 {vr(vO[q^1],16)}, {vr(vV1,4)}, {vr(vP+4,4)}, {vr(vO[q^1],16)}")
        if q == 0:
            a(f"s_mov_b64 exec, s[{sMask}:{sMask+1}]")
            a(f"ds_read_b128 {vr(vV1,4)}, v{vAV} offset:{(2*u+1)*512}")
            a("s_mov_b64 exec, -1")
        c(1); e(5); e(6); c(2); e(7); e(8); c(3); e(9); e(10)
        if q == 0:
            a("s_waitcnt lgkmcnt(2)")
        a(f"v_mfma_f32_32x32x16_bf16 {vr(vO[q],16)}, {vr(vV0,4)}, {vr(vP,4)}, {vr(vO[q],16)}")
        if q == 1:
            a(f"s_mov_b64 exec, s[{sMask}:{sMask+1}]")
            a(f"ds_read_b128 {vr(vV0,4)}, v{vAV} offset:{(2*u+2)*512}")
            a("s_mov_b64 exec, -1")
        e(11); c(4); e(12); c(5); e(13); e(14); c(6); e(15)
        if q == 0:
            a("s_waitcnt lgkmcnt(1)")
        a(f"v_mfma_f32_32x32x16_bf16 {vr(S,16)}, {vr(vK,4)}, {vr(vQ[q],4)}, {vr(vC[q],16)}")
        if q == 1:
            a(f"ds_read_b128 {vr(vK,4)}, v{vAK} offset:{(u+2)*1024}")
        c(7)

    a(f"s_mov_b32 s{sIt}, 0")
    lbl = f"{name}_loop"
    a.label(lbl)
    for u in range(8):
        step(u, 0); step(u, 1)
    a(f"v_add_u32 v{vAK}, 8192, v{vAK}")
    a(f"v_add_u32 v{vAV}, 8192, v{vAV}")
    a(f"s_cmp_lg_u32 s{sIt}, 0")
    a(f"s_cbranch_scc1 {name}_nosync")
    a("s_waitcnt vmcnt(0)")
    a("s_barrier")
    a.label(f"{name}_nosync")
    a(f"s_add_u32 s{sIt}, s{sIt}, 1")
    a(f"s_cmp_lg_u32 s{sIt}, 4")
    a(f"s_cbranch_scc1 {lbl}")
    a("s_nop 1")
    a(f"v_mfma_f32_32x32x16_bf16 {vr(vO[1],16)}, {vr(vV1,4)}, {vr(vP+4,4)}, {vr(vO[1],16)}")
    tl_stamp(a, 3)
    a("s_waitcnt lgkmcnt(0)")
    a("s_nop 15")
    a("s_nop 3")
    a(f"s_mul_i32 s{sTmp}, s{sW}, 2304")
    a(f"s_add_u32 s{sTmp}, s{sTmp}, {LDS_X}")
    a(f"v_add_u32 v{vT0}, s{sTmp}, v{vLane16}")
    a(f"v_lshrrev_b32 v{vT1}, 2, v{vLane16}")
    a(f"v_add_u32 v{vT1}, s{sTmp}, v{vT1}")
    a(f"s_cmp_eq_u32 s{sKh}, 0")
    a(f"s_cbranch_scc0 {name}_x1")
    a(f"ds_write_b128 v{vT0}, {vr(vO[1],4)}")
    a(f"ds_write_b128 v{vT0}, {vr(vO[1]+4,4)} offset:1024")
    a(f"ds_write_b32 v{vT1}, v{vO[1]+8} offset:2048")
    a(f"s_branch {name}_x2")
    a.label(f"{name}_x1")
    a(f"ds_write_b128 v{vT0}, {vr(vO[0],4)}")
    a(f"ds_write_b128 v{vT0}, {vr(vO[0]+4,4)} offset:1024")
    a(f"ds_write_b32 v{vT1}, v{vO[0]+8} offset:2048")
    for i in range(9):
        a(f"v_mov_b32 v{vO[0]+i}, v{vO[1]+i}")
    for i in range(4):
        a(f"v_mov_b32 v{vQ[0]+i}, v{vQ[1]+i}")
    a.label(f"{name}_x2")
    a("s_waitcnt lgkmcnt(0)")
    a("s_barrier")
    a(f"s_xor_b32 s{sTmp}, s{sW}, 4")
    a(f"s_mul_i32 s{sTmp}, s{sTmp}, 2304")
    a(f"s_add_u32 s{sTmp}, s{sTmp}, {LDS_X}")
    a(f"v_add_u32 v{vT0}, s{sTmp}, v{vLane16}")
    a(f"v_lshrrev_b32 v{vT1}, 2, v{vLane16}")
    a(f"v_add_u32 v{vT1}, s{sTmp}, v{vT1}")
    a(f"ds_read_b128 {vr(vT,4)}, v{vT0}")
    a(f"ds_read_b128 {vr(vT+4,4)}, v{vT0} offset:1024")
    a(f"ds_read_b32 v{vT+8}, v{vT1} offset:2048")
    a("s_waitcnt lgkmcnt(0)")
    O = vO[0]
    for i in range(9):
        a(f"v_add_f32 v{O+i}, v{O+i}, v{vT+i}")
    a.label(f"{name}_epi")
    a(f"s_cmp_lg_u32 s{sRetry}, 0")
    a(f"s_cbranch_scc1 {name}_fin")
    a(f"v_mov_b32 v{vT0}, 0x5d800000")
    a(f"v_cmp_nle_f32 vcc, v{O+8}, v{vT0}")
    a("s_nop 4")
    a(f"s_cbranch_vccnz {name}_fallback")
    a.label(f"{name}_fin")
    a(f"v_rcp_f32 v{vT0}, v{O+8}")
    a("s_nop 0")
    for i in range(8):
        a(f"v_mul_f32 v{O+i}, v{O+i}, v{vT0}")
    for i in range(4):
        a(f"v_cvt_pk_bf16_f32 v{vP+i}, v{O+2*i}, v{O+2*i+1}")
    a(f"s_lshl_b32 s{sTmp}, s{sQb}, 3")
    a(f"s_lshl_b32 s{sTmp2}, s{sQp}, 1")
    a(f"s_add_u32 s{sTmp}, s{sTmp}, s{sTmp2}")
    a(f"s_add_u32 s{sTmp}, s{sTmp}, s{sKh}")
    a(f"s_lshl_b32 s{sTmp}, s{sTmp}, 5")
    a(f"s_add_u32 s{sTmp}, s{sTmp}, s{sHead}")
    a(f"s_lshl_b32 s{sTmp}, s{sTmp}, 10")
    a(f"s_add_u32 s{sTmp}, s{sTmp}, {WS_O}")
    a(f"buffer_store_dwordx4 {vr(vP,4)}, v{vLane16}, s[{sSRD}:{sSRD+3}], s{sTmp} offen")
    tl_exit(a, 1, sWS)
    a("s_endpgm")
    a.label(f"{name}_fallback")
    a(f"s_mov_b32 s{sRetry}, 1")
    a(f"v_mov_b32 v{vAK}, v{vLane16}")
    a(f"v_mov_b32 v{vM}, 0xff800000")
    a(f"s_mov_b32 s{sIt}, 64")
    a.label(f"{name}_maxloop")
    a(f"ds_read_b128 {vr(vK,4)}, v{vAK}")
    a("s_waitcnt lgkmcnt(0)")
    a(f"v_mfma_f32_32x32x16_bf16 {vr(vS[0],16)}, {vr(vK,4)}, {vr(vQ[0],4)}, 0")
    a(f"v_add_u32 v{vAK}, 1024, v{vAK}")
    a("s_nop 15")
    a("s_nop 3")
    for i in range(0, 16, 2):
        a(f"v_max3_f32 v{vM}, v{vM}, v{vS[0]+i}, v{vS[0]+i+1}")
    a(f"s_sub_u32 s{sIt}, s{sIt}, 1")
    a(f"s_cmp_lg_u32 s{sIt}, 0")
    a(f"s_cbranch_scc1 {name}_maxloop")
    bcast_negmax(vC[0])
    for i in range(16):
        a(f"v_mov_b32 v{O+i}, 0")
    a(f"v_mov_b32 v{vAK}, v{vLane16}")
    a(f"s_lshl_b32 s26, s{sKh}, 15")
    a(f"s_add_u32 s26, s26, 32768")
    a(f"v_subrev_u32 v{vAV}, s26, v{vAV}")
    a(f"s_mov_b32 s{sIt}, 64")
    a.label(f"{name}_redo")
    a(f"ds_read_b128 {vr(vK,4)}, v{vAK}")
    a(f"s_mov_b64 exec, s[{sMask}:{sMask+1}]")
    a(f"ds_read_b128 {vr(vV0,4)}, v{vAV}")
    a(f"ds_read_b128 {vr(vV1,4)}, v{vAV} offset:512")
    a("s_mov_b64 exec, -1")
    a("s_waitcnt lgkmcnt(0)")
    a(f"v_mfma_f32_32x32x16_bf16 {vr(vS[0],16)}, {vr(vK,4)}, {vr(vQ[0],4)}, {vr(vC[0],16)}")
    a(f"v_add_u32 v{vAK}, 1024, v{vAK}")
    a(f"v_add_u32 v{vAV}, 1024, v{vAV}")
    a("s_nop 15")
    a("s_nop 3")
    for i in range(16):
        a(f"v_exp_f32 v{vT+i}, v{vS[0]+i}")
    a("s_nop 0")
    for i in range(8):
        a(f"v_cvt_pk_bf16_f32 v{vP+i}, v{vT+2*i}, v{vT+2*i+1}")
    a("s_nop 1")
    a(f"v_mfma_f32_32x32x16_bf16 {vr(O,16)}, {vr(vV0,4)}, {vr(vP,4)}, {vr(O,16)}")
    a(f"v_mfma_f32_32x32x16_bf16 {vr(O,16)}, {vr(vV1,4)}, {vr(vP+4,4)}, {vr(O,16)}")
    a(f"s_sub_u32 s{sIt}, s{sIt}, 1")
    a(f"s_cmp_lg_u32 s{sIt}, 0")
    a(f"s_cbranch_scc1 {name}_redo")
    a("s_nop 15")
    a("s_nop 3")
    a(f"s_branch {name}_epi")
    a.label(f"{name}_end")
    a("s_endpgm")
    return nv
```

```python
from asmlib import *
from common import *

QSCALE = 0.25 * 1.4426950408889634
import struct
def f2u(f): return struct.unpack("<I", struct.pack("<f", f))[0]

def gen_k1(a, name):
    R = RegAlloc(0, 256)
    R.alloc("tid")
    vLane = R.alloc("lane")
    vT0 = R.alloc("t0"); vT1 = R.alloc("t1"); vT2 = R.alloc("t2"); vT3 = R.alloc("t3")
    vOffX = [R.alloc("offX0"), R.alloc("offX1")]
    vOffW = R.alloc("offW")
    vX = [[R.alloc(f"X{s}{j}") for j in range(4)] for s in range(2)]
    vW = [[R.alloc(f"W{s}{f}") for f in range(2)] for s in range(2)]
    vH = [[R.alloc(f"H{s}{j}") for j in range(4)] for s in range(2)]
    fX = [[R.alloc(f"fX{s}{t}", 4) for t in range(2)] for s in range(2)]
    fW = [[R.alloc(f"fW{s}{f}", 4) for f in range(2)] for s in range(2)]
    acc = [[R.alloc(f"acc{f}{t}", 16) for t in range(2)] for f in range(2)]
    vSt = R.alloc("stage", 64)
    vFo = R.alloc("fold", 8)
    vOffM = [R.alloc("offM0"), R.alloc("offM1")]
    vRowMain = R.alloc("rowmain", 4)
    vRowMir = R.alloc("rowmir", 4)
    nv = R.next

    sX, sWq, sWS = 4, 6, 8
    srdX, srdW, srdWS = 12, 16, 20
    sW = 24; sWm = 25; sWn = 26
    sTok0 = 27; sN0 = 28; sNb = 29
    sT0, sT1, sT2 = 30, 31, 32
    sXoff = 33; sWoff = 34
    sLdsX = 35; sLdsW = 36
    sSign = 37
    sH = 38
    sK1 = 40
    a.raw(kernel_header(name))
    a("s_cmp_ge_u32 s2, 251")
    a(f"s_cbranch_scc1 {name}_end")
    tl_entry(a)
    a(f"s_load_dwordx2 s[{sX}:{sX+1}], s[0:1], {ARG['x']}")
    a(f"s_load_dwordx2 s[{sWq}:{sWq+1}], s[0:1], {ARG['wqkv']}")
    a(f"s_load_dwordx2 s[{sWS}:{sWS+1}], s[0:1], {ARG['ws']}")
    a(f"v_lshrrev_b32 v{vT0}, 6, v0")
    a(f"v_and_b32 v{vLane}, 63, v0")
    a(f"v_readfirstlane_b32 s{sW}, v{vT0}")
    a(f"s_cmp_ge_u32 s2, 235")
    a(f"s_cbranch_scc1 {name}_gate")
    a(f"s_lshr_b32 s{sWm}, s{sW}, 1")
    a(f"s_and_b32 s{sWn}, s{sW}, 1")
    a(f"v_lshrrev_b32 v{vT0}, 3, v{vLane}")
    a(f"v_lshlrev_b32 v{vT0}, 10, v{vT0}")
    a(f"v_lshrrev_b32 v{vT1}, 4, v{vLane}")
    a(f"v_and_b32 v{vT2}, 7, v{vLane}")
    for p in range(2):
        a(f"v_add_u32 v{vT3}, {4*p}, v{vT1}")
        a(f"v_xor_b32 v{vT3}, v{vT3}, v{vT2}")
        a(f"v_lshlrev_b32 v{vT3}, 4, v{vT3}")
        a(f"v_add_u32 v{vOffX[p]}, v{vT0}, v{vT3}")
    a(f"v_and_b32 v{vT0}, 31, v{vLane}")
    a(f"v_lshrrev_b32 v{vT1}, 5, v{vLane}")
    a(f"v_lshrrev_b32 v{vT2}, 1, v{vT0}")
    a(f"v_and_b32 v{vT2}, 7, v{vT2}")
    a(f"v_xor_b32 v{vT2}, v{vT2}, v{vT1}")
    a(f"v_lshlrev_b32 v{vT2}, 4, v{vT2}")
    a(f"v_lshlrev_b32 v{vT0}, 7, v{vT0}")
    a(f"v_add_u32 v{vT0}, v{vT0}, v{vT2}")
    a(f"s_lshl_b32 s{sT0}, s{sWn}, 13")
    for j in range(4):
        a(f"v_xor_b32 v{vT3}, {j*32}, v{vT0}")
        a(f"v_add_u32 v{vX[0][j]}, s{sT0}, v{vT3}")
        a(f"v_add_u32 v{vX[1][j]}, 65536, v{vX[0][j]}")
    a(f"s_lshl_b32 s{sT1}, s{sWm}, 13")
    a(f"s_add_u32 s{sT1}, s{sT1}, 16384")
    for j in range(4):
        a(f"v_xor_b32 v{vT3}, {j*32}, v{vT0}")
        a(f"v_add_u32 v{vH[0][j]}, s{sT1}, v{vT3}")
        a(f"v_add_u32 v{vH[1][j]}, 65536, v{vH[0][j]}")
    a("s_waitcnt lgkmcnt(0)")
    srd(a, srdX, sX, 2048*1024)
    srd(a, srdWS, sWS, WS_SIZE_USED)
    for f in range(2):
        for t in range(2):
            for i in range(16):
                a(f"v_mov_b32 v{acc[f][t]+i}, 0")
    a("s_cmp_ge_u32 s2, 192")
    a(f"s_cbranch_scc1 {name}_ftype")

    srd(a, srdW, sWq, 512*3072)
    a(f"s_and_b32 s{sT0}, s2, 7")
    a(f"s_lshr_b32 s{sT1}, s2, 3")
    a(f"s_lshr_b32 s{sT2}, s{sT0}, 1")
    a(f"s_lshl_b32 s{sT2}, s{sT2}, 2")
    a(f"s_and_b32 s{sTok0}, s{sT1}, 3")
    a(f"s_add_u32 s{sTok0}, s{sTok0}, s{sT2}")
    a(f"s_lshl_b32 s{sTok0}, s{sTok0}, 7")
    a(f"s_and_b32 s{sT0}, s{sT0}, 1")
    a(f"s_mul_i32 s{sT0}, s{sT0}, 6")
    a(f"s_lshr_b32 s{sNb}, s{sT1}, 2")
    a(f"s_add_u32 s{sNb}, s{sNb}, s{sT0}")
    a(f"s_lshl_b32 s{sN0}, s{sNb}, 7")
    a(f"v_lshrrev_b32 v{vT0}, 4, v{vLane}")
    a(f"v_mul_u32_u24 v{vT1}, 3072, v{vT0}")
    a(f"v_bfe_u32 v{vT2}, v{vLane}, 2, 2")
    a(f"v_xor_b32 v{vT2}, v{vT2}, v{vT0}")
    a(f"v_lshlrev_b32 v{vT2}, 6, v{vT2}")
    a(f"v_add_u32 v{vT1}, v{vT1}, v{vT2}")
    a(f"v_and_b32 v{vT2}, 3, v{vLane}")
    a(f"v_lshlrev_b32 v{vT2}, 4, v{vT2}")
    a(f"v_add_u32 v{vOffW}, v{vT1}, v{vT2}")
    a(f"v_bfe_u32 v{vT0}, v{vLane}, 2, 2")
    a(f"v_lshrrev_b32 v{vT1}, 5, v{vLane}")
    a(f"v_lshlrev_b32 v{vT1}, 3, v{vT1}")
    a(f"v_add_u32 v{vT1}, v{vT1}, v{vT0}")
    a(f"v_lshlrev_b32 v{vT1}, 8, v{vT1}")
    a(f"v_bfe_u32 v{vT2}, v{vLane}, 4, 1")
    a(f"v_lshlrev_b32 v{vT2}, 5, v{vT2}")
    a(f"v_add_u32 v{vT1}, v{vT1}, v{vT2}")
    a(f"v_and_b32 v{vT2}, 3, v{vLane}")
    a(f"v_lshlrev_b32 v{vT2}, 3, v{vT2}")
    a(f"v_add_u32 v{vT1}, v{vT1}, v{vT2}")
    a(f"v_add_u32 v{vT1}, 16384, v{vT1}")
    a(f"s_lshl_b32 s{sT0}, s{sWm}, 1")
    for f in range(2):
        a(f"s_add_u32 s{sT1}, s{sT0}, {f}")
        a(f"v_xor_b32 v{vT2}, s{sT1}, v{vT0}")
        a(f"v_lshlrev_b32 v{vT2}, 6, v{vT2}")
        a(f"v_add_u32 v{vW[0][f]}, v{vT1}, v{vT2}")
        a(f"v_add_u32 v{vW[1][f]}, 65536, v{vW[0][f]}")
    a(f"s_lshl_b32 s{sT0}, s{sW}, 5")
    a(f"s_add_u32 s{sT0}, s{sT0}, s{sTok0}")
    a(f"s_lshl_b32 s{sXoff}, s{sT0}, 10")
    a(f"s_mul_i32 s{sWoff}, s{sW}, {16*3072}")
    a(f"s_lshl_b32 s{sT0}, s{sN0}, 1")
    a(f"s_add_u32 s{sWoff}, s{sWoff}, s{sT0}")
    a(f"s_lshl_b32 s{sLdsX}, s{sW}, 12")
    a(f"s_lshl_b32 s{sLdsW}, s{sW}, 12")
    a(f"s_add_u32 s{sLdsW}, s{sLdsW}, 16384")

    def dma_stage_qkv(st):
        buf = (st & 3) * 32768
        for m in range(4):
            a(f"s_add_u32 m0, s{sLdsX}, {buf + m*1024}")
            a(f"s_add_u32 s{sT0}, s{sXoff}, {m*8192 + st*128}")
            a(f"buffer_load_dwordx4 v{vOffX[m&1]}, s[{srdX}:{srdX+3}], s{sT0} offen lds")
        for m in range(4):
            a(f"s_add_u32 m0, s{sLdsW}, {buf + m*1024}")
            a(f"s_add_u32 s{sT0}, s{sWoff}, {(st*64 + 4*m)*3072}")
            a(f"buffer_load_dwordx4 v{vOffW}, s[{srdW}:{srdW+3}], s{sT0} offen lds")

    def reads_qkv(st, j, s):
        buf = st & 3; hi = buf >> 1; boff = (buf & 1) * 32768
        for t in range(2):
            a(f"ds_read_b128 {vr(fX[s][t],4)}, v{vX[hi][j]} offset:{boff + t*4096}")
        for f in range(2):
            for u in range(2):
                a(f"ds_read_b64_tr_b16 {vr(fW[s][f]+2*u,2)}, v{vW[hi][f]} offset:{boff + (16*j+4*u)*256}")

    def mfmas(s, vtype):
        for f in range(2):
            for t in range(2):
                if vtype:
                    a(f"v_mfma_f32_32x32x16_bf16 {vr(acc[f][t],16)}, {vr(fX[s][t],4)}, {vr(fW[s][f],4)}, {vr(acc[f][t],16)}")
                else:
                    a(f"v_mfma_f32_32x32x16_bf16 {vr(acc[f][t],16)}, {vr(fW[s][f],4)}, {vr(fX[s][t],4)}, {vr(acc[f][t],16)}")

    def gemm_loop(vtype, reads, dma, nreads, ndma, pre_sync=None):
        a(f"s_waitcnt vmcnt({3*ndma})")
        a("s_barrier")
        tl_stamp(a, 2)
        reads(0, 0, 0)
        s = 0
        for st in range(8):
            for j in range(4):
                nxt = (st, j+1) if j < 3 else (st+1, 0)
                if j == 3 and st < 7:
                    i = st + 1
                    n = {1: 2*ndma}.get(i, ndma if i < 7 else 0)
                    a(f"s_waitcnt vmcnt({n})")
                    a("s_barrier")
                    tl_stamp(a, 2 + i)
                    if 2 <= i <= 5:
                        dma(i + 2)
                if nxt[0] < 8:
                    reads(nxt[0], nxt[1], s ^ 1)
                    a(f"s_waitcnt lgkmcnt({nreads})")
                else:
                    a("s_waitcnt lgkmcnt(0)")
                mfmas(s, vtype)
                s ^= 1

    tl_stamp(a, 0)
    for st in range(4):
        dma_stage_qkv(st)
    tl_stamp(a, 1)
    a(f"s_cmp_ge_u32 s{sNb}, 8")
    a(f"s_cbranch_scc1 {name}_vtype")
    gemm_loop(False, reads_qkv, dma_stage_qkv, 6, 8)
    tl_stamp(a, 10)
    a("s_nop 15")
    a(f"s_cmp_lt_u32 s{sNb}, 4")
    a(f"s_cselect_b32 s{sT2}, {f2u(QSCALE)}, 1.0")
    a(f"s_cselect_b32 s{sT0}, {WS_Q}, {WS_K}")
    a(f"s_and_b32 s{sT1}, s{sNb}, 3")
    a(f"s_lshl_b32 s{sT1}, s{sT1}, 3")
    a(f"s_lshl_b32 s44, s{sWm}, 2")
    a(f"s_add_u32 s{sT1}, s{sT1}, s44")
    a(f"s_lshl_b32 s{sT1}, s{sT1}, 16")
    a(f"s_add_u32 s{sT0}, s{sT0}, s{sT1}")
    a(f"s_lshr_b32 s{sT1}, s{sTok0}, 5")
    a(f"s_lshl_b32 s44, s{sWn}, 1")
    a(f"s_add_u32 s{sT1}, s{sT1}, s44")
    a(f"s_lshl_b32 s{sT1}, s{sT1}, 10")
    a(f"s_add_u32 s{sT0}, s{sT0}, s{sT1}")
    a(f"v_lshlrev_b32 v{vT0}, 4, v{vLane}")
    for f in range(2):
        for t in range(2):
            A = acc[f][t]
            for i in range(16):
                a(f"v_mul_f32 v{A+i}, s{sT2}, v{A+i}")
            P = fX[0][0] if (f*2+t) % 2 == 0 else fX[1][0]
            for i in range(8):
                a(f"v_cvt_pk_bf16_f32 v{P+i}, v{A+2*i}, v{A+2*i+1}")
            for hh in range(2):
                a(f"s_add_u32 s{sT1}, s{sT0}, {(f*2+hh)*65536 + t*1024}")
                a(f"buffer_store_dwordx4 {vr(P+4*hh,4)}, v{vT0}, s[{srdWS}:{srdWS+3}], s{sT1} offen")
    tl_exit(a, 0, sWS)
    a("s_endpgm")
    a.label(f"{name}_vtype")
    gemm_loop(True, reads_qkv, dma_stage_qkv, 6, 8)
    tl_stamp(a, 10)
    a("s_nop 15")
    a(f"s_sub_u32 s{sT1}, s{sNb}, 8")
    a(f"s_lshl_b32 s{sT1}, s{sT1}, 3")
    a(f"s_lshl_b32 s44, s{sWm}, 2")
    a(f"s_add_u32 s{sT1}, s{sT1}, s44")
    a(f"s_lshl_b32 s{sT1}, s{sT1}, 16")
    a(f"s_add_u32 s{sT0}, s{sT1}, {WS_V}")
    a(f"s_lshr_b32 s{sT1}, s{sTok0}, 4")
    a(f"s_lshl_b32 s44, s{sWn}, 2")
    a(f"s_add_u32 s{sT1}, s{sT1}, s44")
    a(f"s_lshl_b32 s{sT1}, s{sT1}, 9")
    a(f"s_add_u32 s{sT0}, s{sT0}, s{sT1}")
    a(f"v_bfe_u32 v{vT0}, v{vLane}, 4, 1")
    a(f"v_lshlrev_b32 v{vT0}, 16, v{vT0}")
    a(f"v_lshrrev_b32 v{vT1}, 5, v{vLane}")
    a(f"v_lshlrev_b32 v{vT1}, 8, v{vT1}")
    a(f"v_add_u32 v{vT0}, v{vT0}, v{vT1}")
    a(f"v_and_b32 v{vT1}, 15, v{vLane}")
    a(f"v_lshlrev_b32 v{vT1}, 4, v{vT1}")
    a(f"v_add_u32 v{vT0}, v{vT0}, v{vT1}")
    for f in range(2):
        for t in range(2):
            A = acc[f][t]
            P = fX[0][0] if (f*2+t) % 2 == 0 else fX[1][0]
            for i in range(8):
                a(f"v_cvt_pk_bf16_f32 v{P+i}, v{A+2*i}, v{A+2*i+1}")
            for g in range(2):
                a(f"s_add_u32 s{sT1}, s{sT0}, {f*2*65536 + (t*2+g)*512}")
                a(f"buffer_store_dwordx4 {vr(P+4*g,4)}, v{vT0}, s[{srdWS}:{srdWS+3}], s{sT1} offen")
    tl_exit(a, 0, sWS)
    a("s_endpgm")

    a.label(f"{name}_ftype")
    a(f"s_sub_u32 s{sT0}, s2, 192")
    a(f"s_cmp_ge_u32 s{sT0}, 27")
    a(f"s_cbranch_scc1 {name}_fb")
    a(f"s_mul_i32 s{sT1}, s{sT0}, 43691")
    a(f"s_lshr_b32 s{sT1}, s{sT1}, 17")
    a(f"s_mul_i32 s{sT2}, s{sT1}, 3")
    a(f"s_sub_u32 s{sNb}, s{sT0}, s{sT2}")
    a(f"s_lshl_b32 s{sTok0}, s{sT1}, 7")
    a(f"s_load_dwordx2 s[{sH}:{sH+1}], s[0:1], {ARG['hre']}")
    a(f"s_mov_b32 s40, 0x00003f80")
    a(f"s_mov_b32 s41, 0x3f800000")
    a(f"s_mov_b32 s{sSign}, 0")
    a(f"s_branch {name}_fgo")
    a.label(f"{name}_fb")
    a(f"s_sub_u32 s{sT0}, s{sT0}, 27")
    a(f"s_and_b32 s{sNb}, s{sT0}, 1")
    a(f"s_lshr_b32 s{sT1}, s{sT0}, 1")
    a(f"s_lshl_b32 s{sTok0}, s{sT1}, 7")
    a(f"s_load_dwordx2 s[{sH}:{sH+1}], s[0:1], {ARG['him']}")
    a(f"s_mov_b32 s40, 0x0000bf80")
    a(f"s_mov_b32 s41, 0xbf800000")
    a(f"s_mov_b32 s{sSign}, 1")
    a.label(f"{name}_fgo")
    a(f"s_mov_b32 s42, 0x00003f80")
    a(f"s_mov_b32 s43, 0x3f800000")
    a(f"s_lshl_b32 s{sN0}, s{sNb}, 7")
    a("s_waitcnt lgkmcnt(0)")
    srd(a, srdW, sH, 512*1024)
    a(f"s_lshl_b32 s{sT0}, s{sW}, 5")
    a(f"s_add_u32 s{sT0}, s{sT0}, s{sTok0}")
    a(f"v_lshrrev_b32 v{vT0}, 3, v{vLane}")
    a(f"v_add_u32 v{vT0}, s{sT0}, v{vT0}")
    a(f"v_mov_b32 v{vT3}, 0x40000000")
    for m in range(4):
        a(f"v_add_u32 v{vT1}, {8*m}, v{vT0}")
        a(f"v_and_b32 v{vT2}, 1023, v{vOffX[m&1]}")
        a(f"v_lshl_add_u32 v{vRowMain+m}, v{vT1}, 10, v{vT2}")
        a(f"v_cmp_lt_u32 vcc, 1024, v{vT1}")
        a("s_nop 1")
        a(f"v_cndmask_b32 v{vRowMain+m}, v{vRowMain+m}, v{vT3}, vcc")
        a(f"v_sub_u32 v{vT1}, 2048, v{vT1}")
        a(f"v_lshl_add_u32 v{vRowMir+m}, v{vT1}, 10, v{vT2}")
        a(f"v_cmp_ge_u32 vcc, 1024, v{vT1}")
        a("s_nop 1")
        a(f"v_cndmask_b32 v{vRowMir+m}, v{vRowMir+m}, v{vT3}, vcc")
    a(f"s_lshl_b32 s{sT0}, s{sW}, 5")
    a(f"s_add_u32 s{sT0}, s{sT0}, s{sN0}")
    a(f"s_lshl_b32 s{sWoff}, s{sT0}, 10")
    a(f"s_lshl_b32 s{sLdsW}, s{sW}, 12")
    a(f"s_add_u32 s{sLdsW}, s{sLdsW}, 16384")
    a(f"s_lshl_b32 s{sT0}, s{sW}, 12")
    a(f"v_lshlrev_b32 v{vOffM[0]}, 4, v{vLane}")
    a(f"v_add_u32 v{vOffM[0]}, s{sT0}, v{vOffM[0]}")
    a(f"v_add_u32 v{vOffM[1]}, 65536, v{vOffM[0]}")

    def f_loadA(st):
        base = vSt + (st & 1) * 32
        a(f"s_mov_b32 s{sT0}, {st*128}")
        for m in range(4):
            a(f"buffer_load_dwordx4 {vr(base+8*m,4)}, v{vRowMain+m}, s[{srdX}:{srdX+3}], s{sT0} offen")
            a(f"buffer_load_dwordx4 {vr(base+8*m+4,4)}, v{vRowMir+m}, s[{srdX}:{srdX+3}], s{sT0} offen")
    def f_dmaB(st):
        buf = (st & 3) * 32768
        for m in range(4):
            a(f"s_add_u32 m0, s{sLdsW}, {buf + m*1024}")
            a(f"s_add_u32 s{sT0}, s{sWoff}, {m*8192 + st*128}")
            a(f"buffer_load_dwordx4 v{vOffX[m&1]}, s[{srdW}:{srdW+3}], s{sT0} offen lds")
    def f_fold(st):
        base = vSt + (st & 1) * 32
        buf = st & 3; hi = buf >> 1; boff = (buf & 1) * 32768
        for m in range(4):
            M = base + 8*m; Mi = M + 4
            for q in range(4):
                a(f"v_dot2_f32_bf16 v{vFo+2*q}, v{M+q}, s42, 0")
                a(f"v_dot2_f32_bf16 v{vFo+2*q+1}, v{M+q}, s43, 0")
            for q in range(4):
                a(f"v_dot2c_f32_bf16 v{vFo+2*q}, s40, v{Mi+q}")
                a(f"v_dot2c_f32_bf16 v{vFo+2*q+1}, s41, v{Mi+q}")
            for q in range(4):
                a(f"v_cvt_pk_bf16_f32 v{M+q}, v{vFo+2*q}, v{vFo+2*q+1}")
            a(f"ds_write_b128 v{vOffM[hi]}, {vr(M,4)} offset:{boff + m*1024}")

    def f_reads(st, j, s):
        buf = st & 3; hi = buf >> 1; boff = (buf & 1) * 32768
        for t in range(2):
            a(f"ds_read_b128 {vr(fX[s][t],4)}, v{vX[hi][j]} offset:{boff + t*4096}")
        for f in range(2):
            a(f"ds_read_b128 {vr(fW[s][f],4)}, v{vH[hi][j]} offset:{boff + f*4096}")

    tl_stamp(a, 0)
    f_loadA(0); f_dmaB(0); f_loadA(1); f_dmaB(1)
    tl_stamp(a, 1)
    s = 0
    a("s_waitcnt vmcnt(12)")
    f_fold(0)
    for st in range(8):
        if st + 2 < 8:
            f_loadA(st + 2) if False else None
        a("s_waitcnt lgkmcnt(0)")
        a("s_barrier")
        tl_stamp(a, 2 + st)
        if st + 2 < 8:
            f_loadA(st + 2); f_dmaB(st + 2)
        f_reads(st, 0, s)
        for j in range(4):
            if j < 3:
                f_reads(st, j + 1, s ^ 1)
                a("s_waitcnt lgkmcnt(4)")
            else:
                a("s_waitcnt lgkmcnt(0)")
            mfmas(s, True)
            s ^= 1
            if j == 1 and st + 1 < 8:
                a(f"s_waitcnt vmcnt({12 if st + 2 < 8 else 0})")
                f_fold(st + 1)
                if j < 3: pass
    tl_stamp(a, 10)
    a("s_nop 15")
    a(f"s_cmp_eq_u32 s{sSign}, 0")
    a(f"s_mov_b32 s45, {WS_B}")
    a(f"s_cselect_b32 s{sT0}, {WS_A}, s45")
    a(f"s_cselect_b32 s44, {A_KSTEPS}, 64")
    a(f"s_lshl_b32 s{sT1}, s{sNb}, 2")
    a(f"s_lshl_b32 s45, s{sWm}, 1")
    a(f"s_add_u32 s{sT1}, s{sT1}, s45")
    a(f"s_mul_i32 s{sT1}, s{sT1}, s44")
    a(f"s_lshr_b32 s45, s{sTok0}, 4")
    a(f"s_add_u32 s{sT1}, s{sT1}, s45")
    a(f"s_lshl_b32 s45, s{sWn}, 2")
    a(f"s_add_u32 s{sT1}, s{sT1}, s45")
    a(f"s_lshl_b32 s{sT1}, s{sT1}, 10")
    a(f"s_add_u32 s{sT0}, s{sT0}, s{sT1}")
    a(f"s_lshl_b32 s44, s44, 10")
    a(f"v_lshlrev_b32 v{vT0}, 4, v{vLane}")
    for f in range(2):
        for t in range(2):
            A = acc[f][t]
            P = fX[0][0] if (f*2+t) % 2 == 0 else fX[1][0]
            for i in range(8):
                a(f"v_cvt_pk_bf16_f32 v{P+i}, v{A+2*i}, v{A+2*i+1}")
            a("s_nop 1")
            for g in range(2):
                a(f"v_permlane32_swap_b32 v{P+4*g}, v{P+4*g+2}")
                a(f"v_permlane32_swap_b32 v{P+4*g+1}, v{P+4*g+3}")
            if f == 1 and t == 0:
                a(f"s_add_u32 s{sT0}, s{sT0}, s44")
            for g in range(2):
                a(f"s_add_u32 s{sT1}, s{sT0}, {(t*2+g)*1024}")
                a(f"buffer_store_dwordx4 {vr(P+4*g,4)}, v{vT0}, s[{srdWS}:{srdWS+3}], s{sT1} offen")
    tl_exit(a, 0, sWS)
    a("s_endpgm")

    a.label(f"{name}_gate")
    a(f"s_load_dwordx2 s[{sH}:{sH+1}], s[0:1], {ARG['gate']}")
    a("s_waitcnt lgkmcnt(0)")
    srd(a, srdX, sX, 2048*1024)
    srd(a, srdWS, sWS, WS_SIZE_USED)
    srd(a, srdW, sH, 1024)
    a(f"v_lshlrev_b32 v{vT0}, 4, v{vLane}")
    G = fW[0][0]
    a(f"buffer_load_dwordx4 {vr(G,4)}, v{vT0}, s[{srdW}:{srdW+3}], 0 offen")
    a(f"s_sub_u32 s{sT0}, s2, 235")
    a(f"s_lshl_b32 s{sT0}, s{sT0}, 7")
    a(f"s_lshl_b32 s{sT1}, s{sW}, 5")
    a(f"s_add_u32 s{sTok0}, s{sT0}, s{sT1}")
    a(f"s_lshl_b32 s{sT2}, s{sTok0}, 10")
    X = acc[0][0]
    for half in range(2):
        for r in range(16):
            a(f"s_add_u32 s{sT0}, s{sT2}, {(half*16 + r)*1024}")
            a(f"buffer_load_dwordx4 {vr(X+4*r,4)}, v{vT0}, s[{srdX}:{srdX+3}], s{sT0} offen")
        a("s_waitcnt vmcnt(0)")
        Pp = vSt + half*16
        for r in range(16):
            a(f"v_dot2_f32_bf16 v{Pp+r}, v{X+4*r}, v{G}, 0")
        for q in range(1, 4):
            for r in range(16):
                a(f"v_dot2c_f32_bf16 v{Pp+r}, v{X+4*r+q}, v{G+q}")
    Pp = vSt
    for ctrl in ["row_shr:1", "row_shr:2", "row_shr:4", "row_shr:8"]:
        for r in range(32):
            a(f"v_add_f32_dpp v{Pp+r}, v{Pp+r}, v{Pp+r} {ctrl} row_mask:0xf bank_mask:0xf bound_ctrl:0")
    for r in range(32):
        a(f"v_add_f32_dpp v{Pp+r}, v{Pp+r}, v{Pp+r} row_bcast:15 row_mask:0xa bank_mask:0xf")
    for r in range(32):
        a(f"v_add_f32_dpp v{Pp+r}, v{Pp+r}, v{Pp+r} row_bcast:31 row_mask:0xc bank_mask:0xf")
    a(f"v_mov_b32 v{vT1}, 0")
    for r in range(32):
        a(f"v_readlane_b32 s{sT0}, v{Pp+r}, 63")
        a("s_nop 3")
        a(f"v_writelane_b32 v{vT1}, s{sT0}, {r}")
    a(f"v_mul_f32 v{vT1}, {f2u(-1.4426950408889634)}, v{vT1}")
    a(f"v_exp_f32 v{vT1}, v{vT1}")
    a("s_nop 0")
    a(f"v_add_f32 v{vT1}, 1.0, v{vT1}")
    a(f"v_rcp_f32 v{vT1}, v{vT1}")
    a(f"v_lshlrev_b32 v{vT2}, 2, v{vLane}")
    a(f"s_lshl_b32 s{sT0}, s{sTok0}, 2")
    a(f"s_add_u32 s{sT0}, s{sT0}, {WS_G}")
    a(f"v_cmp_gt_u32 vcc, 32, v{vLane}")
    a("s_and_saveexec_b64 s[46:47], vcc")
    a(f"buffer_store_dword v{vT1}, v{vT2}, s[{srdWS}:{srdWS+3}], s{sT0} offen")
    tl_exit(a, 0, sWS)
    a.label(f"{name}_end")
    a("s_endpgm")
    return nv
```

```python
from asmlib import *
from common import *
import struct
def f2u(f): return struct.unpack("<I", struct.pack("<f", f))[0]
QSCALE = 0.25 * 1.4426950408889634

NBUF = 5
K1_ROT = False
ROTMASK = 7
K1_SCHED = [3, 3, 2, 2, 2, 0, 0, 0]
def gen_k1v2(a, name):
    R = RegAlloc(0, 168)
    R.alloc("tid")
    vLane = R.alloc("lane")
    vT0 = R.alloc("t0"); vT1 = R.alloc("t1"); vT2 = R.alloc("t2"); vT3 = R.alloc("t3")
    base = R.next
    sX, sWq, sWS = 4, 6, 8
    srdX, srdW, srdWS = 12, 16, 20
    sW = 24; sWm = 25; sWn = 26
    sTok0 = 27; sN0 = 28; sNb = 29
    sT0, sT1, sT2 = 30, 31, 32
    sXoff = 33; sWoff = 34; sLdsX = 35; sLdsW = 36
    sSign = 37; sH = 38
    nvmax = [0]

    a.raw(kernel_header(name))
    a("s_cmp_ge_u32 s2, 256")
    a(f"s_cbranch_scc1 {name}_end")
    tl_entry(a)
    a(f"s_load_dwordx2 s[{sX}:{sX+1}], s[0:1], {ARG['x']}")
    a(f"s_load_dwordx2 s[{sWq}:{sWq+1}], s[0:1], {ARG['wqkv']}")
    a(f"s_load_dwordx2 s[{sWS}:{sWS+1}], s[0:1], {ARG['ws']}")
    a(f"s_load_dwordx2 s[{sH}:{sH+1}], s[0:1], {ARG['hre']}")
    a(f"s_load_dwordx2 s[{sH+2}:{sH+3}], s[0:1], {ARG['him']}")
    a(f"s_load_dwordx2 s[42:43], s[0:1], {ARG['gate']}")
    a(f"v_lshrrev_b32 v{vT0}, 6, v0")
    a(f"v_and_b32 v{vLane}, 63, v0")
    a(f"v_readfirstlane_b32 s{sW}, v{vT0}")
    a("s_cmp_ge_u32 s2, 192")
    a(f"s_cbranch_scc1 {name}_decF")
    a(f"s_and_b32 s{sT0}, s2, 7")
    a(f"s_lshr_b32 s{sT1}, s2, 3")
    a(f"s_lshr_b32 s{sT2}, s{sT0}, 1")
    a(f"s_lshl_b32 s{sT2}, s{sT2}, 2")
    a(f"s_and_b32 s{sTok0}, s{sT1}, 3")
    a(f"s_add_u32 s{sTok0}, s{sTok0}, s{sT2}")
    a(f"s_lshl_b32 s{sTok0}, s{sTok0}, 7")
    a(f"s_and_b32 s{sT0}, s{sT0}, 1")
    a(f"s_mul_i32 s{sT0}, s{sT0}, 6")
    a(f"s_lshr_b32 s{sNb}, s{sT1}, 2")
    a(f"s_add_u32 s{sNb}, s{sNb}, s{sT0}")
    a(f"s_lshl_b32 s{sN0}, s{sNb}, 7")
    a(f"s_and_b32 s50, s{sT1}, 3")
    a(f"s_mul_i32 s50, s50, 3")
    a(f"s_lshr_b32 s51, s{sT1}, 2")
    a(f"s_add_u32 s50, s50, s51")
    a(f"s_branch {name}_dec")
    a.label(f"{name}_decF")
    a(f"s_sub_u32 s{sT0}, s2, 192")
    a(f"s_lshr_b32 s{sT1}, s{sT0}, 3")
    a(f"s_lshr_b32 s{sSign}, s{sT1}, 2")
    a(f"s_and_b32 s{sT1}, s{sT1}, 3")
    a(f"s_and_b32 s{sNb}, s{sT0}, 1")
    a(f"s_bfe_u32 s{sT2}, s{sT0}, 0x20001")
    a(f"s_lshl_b32 s51, s{sT2}, 3")
    a(f"s_lshr_b32 s51, 0x040c0800, s51")
    a(f"s_and_b32 s51, s51, 0xff")
    a(f"s_add_u32 s{sT1}, s{sT1}, s51")
    a(f"s_lshl_b32 s{sTok0}, s{sT1}, 6")
    a(f"s_lshl_b32 s{sN0}, s{sNb}, 7")
    a(f"s_lshr_b32 s50, s2, 3")
    a.label(f"{name}_dec")
    if not K1_ROT: a("s_mov_b32 s50, 0")
    a(f"s_cmp_ge_u32 s{sW}, 8")
    a(f"s_cbranch_scc1 {name}_edge")
    a(f"s_cmp_ge_u32 s{sW}, 4")
    a(f"s_cbranch_scc1 {name}_loader")

    Rc = RegAlloc(base, 168)
    vX = [[Rc.alloc(f"X{s}{j}") for j in range(4)] for s in range(3)]
    vW = [[Rc.alloc(f"W{s}{f}") for f in range(2)] for s in range(3)]
    fX = [[Rc.alloc(f"fX{s}{t}", 4) for t in range(2)] for s in range(3)]
    fW = [[Rc.alloc(f"fW{s}{f}", 4) for f in range(2)] for s in range(3)]
    acc = [[Rc.alloc(f"acc{f}{t}", 16) for t in range(2)] for f in range(2)]
    vH = [[Rc.alloc(f"H{s}{j}") for j in range(4)] for s in range(3)]
    nvmax[0] = max(nvmax[0], Rc.next)
    a(f"s_lshr_b32 s{sWm}, s{sW}, 1")
    a(f"s_and_b32 s{sWn}, s{sW}, 1")
    a(f"v_and_b32 v{vT0}, 31, v{vLane}")
    a(f"v_lshrrev_b32 v{vT1}, 5, v{vLane}")
    a(f"v_lshrrev_b32 v{vT2}, 1, v{vT0}")
    a(f"v_and_b32 v{vT2}, 7, v{vT2}")
    a(f"v_xor_b32 v{vT2}, v{vT2}, v{vT1}")
    a(f"v_lshlrev_b32 v{vT2}, 4, v{vT2}")
    a(f"v_lshlrev_b32 v{vT0}, 7, v{vT0}")
    a(f"v_add_u32 v{vT0}, v{vT0}, v{vT2}")
    a("s_cmp_ge_u32 s2, 192")
    a(f"s_cbranch_scc1 {name}_cF")
    a(f"s_lshl_b32 s{sT0}, s{sWn}, 13")
    for j in range(4):
        a(f"v_xor_b32 v{vT3}, {j*32}, v{vT0}")
        a(f"v_add_u32 v{vX[0][j]}, s{sT0}, v{vT3}")
        a(f"v_add_u32 v{vX[1][j]}, 65536, v{vX[0][j]}")
        a(f"v_add_u32 v{vX[2][j]}, 131072, v{vX[0][j]}")
    a(f"v_bfe_u32 v{vT0}, v{vLane}, 2, 2")
    a(f"v_lshrrev_b32 v{vT1}, 5, v{vLane}")
    a(f"v_lshlrev_b32 v{vT1}, 3, v{vT1}")
    a(f"v_add_u32 v{vT1}, v{vT1}, v{vT0}")
    a(f"v_lshlrev_b32 v{vT1}, 8, v{vT1}")
    a(f"v_bfe_u32 v{vT2}, v{vLane}, 4, 1")
    a(f"v_lshlrev_b32 v{vT2}, 5, v{vT2}")
    a(f"v_add_u32 v{vT1}, v{vT1}, v{vT2}")
    a(f"v_and_b32 v{vT2}, 3, v{vLane}")
    a(f"v_lshlrev_b32 v{vT2}, 3, v{vT2}")
    a(f"v_add_u32 v{vT1}, v{vT1}, v{vT2}")
    a(f"v_add_u32 v{vT1}, 16384, v{vT1}")
    a(f"s_lshl_b32 s{sT0}, s{sWm}, 1")
    for f in range(2):
        a(f"s_add_u32 s{sT1}, s{sT0}, {f}")
        a(f"v_xor_b32 v{vT2}, s{sT1}, v{vT0}")
        a(f"v_lshlrev_b32 v{vT2}, 6, v{vT2}")
        a(f"v_add_u32 v{vW[0][f]}, v{vT1}, v{vT2}")
        a(f"v_add_u32 v{vW[1][f]}, 65536, v{vW[0][f]}")
        a(f"v_add_u32 v{vW[2][f]}, 131072, v{vW[0][f]}")
    for f in range(2):
        for t in range(2):
            for i in range(16):
                a(f"v_mov_b32 v{acc[f][t]+i}, 0")
    a("s_waitcnt lgkmcnt(0)")
    srd(a, srdWS, sWS, WS_SIZE_USED)

    def reads_qkv(st, j, s):
        buf = st % NBUF; hi = buf >> 1; boff = (buf & 1) * 32768
        for t in range(2):
            a(f"ds_read_b128 {vr(fX[s][t],4)}, v{vX[hi][j]} offset:{boff + t*4096}")
        for f in range(2):
            for u in range(2):
                a(f"ds_read_b64_tr_b16 {vr(fW[s][f]+2*u,2)}, v{vW[hi][f]} offset:{boff + (16*j+4*u)*256}")
    def mfmas(s, vtype):
        for f in range(2):
            for t in range(2):
                if vtype:
                    a(f"v_mfma_f32_32x32x16_bf16 {vr(acc[f][t],16)}, {vr(fX[s][t],4)}, {vr(fW[s][f],4)}, {vr(acc[f][t],16)}")
                else:
                    a(f"v_mfma_f32_32x32x16_bf16 {vr(acc[f][t],16)}, {vr(fW[s][f],4)}, {vr(fX[s][t],4)}, {vr(acc[f][t],16)}")
    def consume(reads, nreads, domf):
        a("s_barrier")
        tl_stamp(a, 1)
        reads(0, 0, 0)
        reads(0, 1, 1)
        for n in range(32):
            nn = n + 2
            if nn < 32:
                if nn % 4 == 0:
                    a("s_barrier")
                    tl_stamp(a, 1 + nn // 4)
                reads(nn // 4, nn % 4, nn % 3)
                a(f"s_waitcnt lgkmcnt({2*nreads})")
            elif nn == 32:
                a(f"s_waitcnt lgkmcnt({nreads})")
            else:
                a("s_waitcnt lgkmcnt(0)")
            domf(n % 3)
        tl_stamp(a, 9)
    a(f"s_cmp_ge_u32 s{sNb}, 8")
    a(f"s_cbranch_scc1 {name}_vtype")
    consume(reads_qkv, 6, lambda s: mfmas(s, False))
    a("s_nop 7")
    a(f"s_cmp_lt_u32 s{sNb}, 4")
    a(f"s_cselect_b32 s{sT2}, {f2u(QSCALE)}, 1.0")
    a(f"s_cselect_b32 s{sT0}, {WS_Q}, {WS_K}")
    a(f"s_and_b32 s{sT1}, s{sNb}, 3")
    a(f"s_lshl_b32 s{sT1}, s{sT1}, 3")
    a(f"s_lshl_b32 s44, s{sWm}, 2")
    a(f"s_add_u32 s{sT1}, s{sT1}, s44")
    a(f"s_lshl_b32 s{sT1}, s{sT1}, 16")
    a(f"s_add_u32 s{sT0}, s{sT0}, s{sT1}")
    a(f"s_lshr_b32 s{sT1}, s{sTok0}, 5")
    a(f"s_lshl_b32 s44, s{sWn}, 1")
    a(f"s_add_u32 s{sT1}, s{sT1}, s44")
    a(f"s_lshl_b32 s{sT1}, s{sT1}, 10")
    a(f"s_add_u32 s{sT0}, s{sT0}, s{sT1}")
    a(f"v_lshlrev_b32 v{vT0}, 4, v{vLane}")
    a("s_nop 3")
    for f in range(2):
        for t in range(2):
            A = acc[f][t]
            for i in range(16):
                a(f"v_mul_f32 v{A+i}, s{sT2}, v{A+i}")
            P = fX[(f*2+t) % 2][0]
            for i in range(8):
                a(f"v_cvt_pk_bf16_f32 v{P+i}, v{A+2*i}, v{A+2*i+1}")
            for hh in range(2):
                a(f"s_add_u32 s{sT1}, s{sT0}, {(f*2+hh)*65536 + t*1024}")
                a(f"buffer_store_dwordx4 {vr(P+4*hh,4)}, v{vT0}, s[{srdWS}:{srdWS+3}], s{sT1} offen")
    tl_exit(a, 0, sWS)
    a("s_endpgm")
    a.label(f"{name}_vtype")
    consume(reads_qkv, 6, lambda s: mfmas(s, True))
    a(f"s_sub_u32 s{sT1}, s{sNb}, 8")
    a(f"s_lshl_b32 s{sT1}, s{sT1}, 3")
    a(f"s_lshl_b32 s44, s{sWm}, 2")
    a(f"s_add_u32 s{sT1}, s{sT1}, s44")
    a(f"s_lshl_b32 s{sT1}, s{sT1}, 16")
    a(f"s_add_u32 s{sT0}, s{sT1}, {WS_V}")
    a(f"s_lshr_b32 s{sT1}, s{sTok0}, 4")
    a(f"s_lshl_b32 s44, s{sWn}, 2")
    a(f"s_add_u32 s{sT1}, s{sT1}, s44")
    a(f"s_lshl_b32 s{sT1}, s{sT1}, 9")
    a(f"s_add_u32 s{sT0}, s{sT0}, s{sT1}")
    a(f"v_bfe_u32 v{vT0}, v{vLane}, 4, 1")
    a(f"v_lshlrev_b32 v{vT0}, 16, v{vT0}")
    a(f"v_lshrrev_b32 v{vT1}, 5, v{vLane}")
    a(f"v_lshlrev_b32 v{vT1}, 8, v{vT1}")
    a(f"v_add_u32 v{vT0}, v{vT0}, v{vT1}")
    a(f"v_and_b32 v{vT1}, 15, v{vLane}")
    a(f"v_lshlrev_b32 v{vT1}, 4, v{vT1}")
    a(f"v_add_u32 v{vT0}, v{vT0}, v{vT1}")
    a("s_nop 3")
    for f in range(2):
        for t in range(2):
            A = acc[f][t]
            P = fX[(f*2+t) % 2][0]
            for i in range(8):
                a(f"v_cvt_pk_bf16_f32 v{P+i}, v{A+2*i}, v{A+2*i+1}")
            for g in range(2):
                a(f"s_add_u32 s{sT1}, s{sT0}, {f*2*65536 + (t*2+g)*512}")
                a(f"buffer_store_dwordx4 {vr(P+4*g,4)}, v{vT0}, s[{srdWS}:{srdWS+3}], s{sT1} offen")
    tl_exit(a, 0, sWS)
    a("s_endpgm")

    a.label(f"{name}_cF")
    FB = 24576
    a(f"s_lshl_b32 s{sT0}, s{sWn}, 12")
    a(f"s_lshl_b32 s{sT1}, s{sWm}, 13")
    a(f"s_add_u32 s{sT1}, s{sT1}, 8192")
    for j in range(4):
        a(f"v_xor_b32 v{vT3}, {j*32}, v{vT0}")
        a(f"v_add_u32 v{vX[0][j]}, s{sT0}, v{vT3}")
        a(f"v_add_u32 v{vX[1][j]}, {2*FB}, v{vX[0][j]}")
        a(f"v_add_u32 v{vX[2][j]}, {4*FB}, v{vX[0][j]}")
        a(f"v_add_u32 v{vH[0][j]}, s{sT1}, v{vT3}")
        a(f"v_add_u32 v{vH[1][j]}, {2*FB}, v{vH[0][j]}")
        a(f"v_add_u32 v{vH[2][j]}, {4*FB}, v{vH[0][j]}")
    for f in range(2):
        for i in range(16):
            a(f"v_mov_b32 v{acc[f][0]+i}, 0")
    a("s_waitcnt lgkmcnt(0)")
    srd(a, srdWS, sWS, WS_SIZE_USED)
    def reads_f(st, j, s):
        buf = st % 6; k = buf >> 1; boff = (buf & 1) * FB
        a(f"ds_read_b128 {vr(fX[s][0],4)}, v{vX[k][j]} offset:{boff}")
        for f in range(2):
            a(f"ds_read_b128 {vr(fW[s][f],4)}, v{vH[k][j]} offset:{boff + f*4096}")
    def mf_f(s):
        for f in range(2):
            a(f"v_mfma_f32_32x32x16_bf16 {vr(acc[f][0],16)}, {vr(fX[s][0],4)}, {vr(fW[s][f],4)}, {vr(acc[f][0],16)}")
    consume(reads_f, 3, mf_f)
    a(f"s_cmp_eq_u32 s{sSign}, 0")
    a(f"s_mov_b32 s45, {WS_B}")
    a(f"s_cselect_b32 s{sT0}, {WS_A}, s45")
    a(f"s_cselect_b32 s44, {A_KSTEPS}, 64")
    a(f"s_lshl_b32 s{sT1}, s{sNb}, 2")
    a(f"s_lshl_b32 s45, s{sWm}, 1")
    a(f"s_add_u32 s{sT1}, s{sT1}, s45")
    a(f"s_mul_i32 s{sT1}, s{sT1}, s44")
    a(f"s_lshr_b32 s45, s{sTok0}, 4")
    a(f"s_add_u32 s{sT1}, s{sT1}, s45")
    a(f"s_lshl_b32 s45, s{sWn}, 1")
    a(f"s_add_u32 s{sT1}, s{sT1}, s45")
    a(f"s_lshl_b32 s{sT1}, s{sT1}, 10")
    a(f"s_add_u32 s{sT0}, s{sT0}, s{sT1}")
    a(f"s_lshl_b32 s44, s44, 10")
    a(f"v_lshlrev_b32 v{vT0}, 4, v{vLane}")
    a("s_nop 7")
    for f in range(2):
        A = acc[f][0]
        P = fX[f][0]
        for i in range(8):
            a(f"v_cvt_pk_bf16_f32 v{P+i}, v{A+2*i}, v{A+2*i+1}")
        a("s_nop 1")
        for g in range(2):
            a(f"v_permlane32_swap_b32 v{P+4*g}, v{P+4*g+2}")
            a(f"v_permlane32_swap_b32 v{P+4*g+1}, v{P+4*g+3}")
        if f == 1:
            a(f"s_add_u32 s{sT0}, s{sT0}, s44")
        for g in range(2):
            a(f"s_add_u32 s{sT1}, s{sT0}, {g*1024}")
            a(f"buffer_store_dwordx4 {vr(P+4*g,4)}, v{vT0}, s[{srdWS}:{srdWS+3}], s{sT1} offen")
    tl_exit(a, 0, sWS)
    a("s_endpgm")

    a.label(f"{name}_loader")
    Rl = RegAlloc(base, 168)
    vOffX = [Rl.alloc("offX0"), Rl.alloc("offX1")]
    vOffW = Rl.alloc("offW")
    vRowMain = Rl.alloc("rowmain", 2); vRowMir = Rl.alloc("rowmir", 2)
    vWr = Rl.alloc("wr")
    vSt = Rl.alloc("stage", 64)
    vFo = Rl.alloc("fold", 8)
    nvmax[0] = max(nvmax[0], Rl.next)
    a(f"s_sub_u32 s{sW}, s{sW}, 4")
    a(f"v_lshrrev_b32 v{vT0}, 3, v{vLane}")
    a(f"v_lshlrev_b32 v{vT0}, 10, v{vT0}")
    a(f"v_lshrrev_b32 v{vT1}, 4, v{vLane}")
    a(f"v_and_b32 v{vT2}, 7, v{vLane}")
    for p in range(2):
        a(f"v_add_u32 v{vT3}, {4*p}, v{vT1}")
        a(f"v_xor_b32 v{vT3}, v{vT3}, v{vT2}")
        a(f"v_lshlrev_b32 v{vT3}, 4, v{vT3}")
        a(f"v_add_u32 v{vOffX[p]}, v{vT0}, v{vT3}")
    a("s_cmp_ge_u32 s2, 192")
    a(f"s_cbranch_scc1 {name}_lF")
    a(f"v_lshrrev_b32 v{vT0}, 4, v{vLane}")
    a(f"v_mul_u32_u24 v{vT1}, 3072, v{vT0}")
    a(f"v_bfe_u32 v{vT2}, v{vLane}, 2, 2")
    a(f"v_xor_b32 v{vT2}, v{vT2}, v{vT0}")
    a(f"v_lshlrev_b32 v{vT2}, 6, v{vT2}")
    a(f"v_add_u32 v{vT1}, v{vT1}, v{vT2}")
    a(f"v_and_b32 v{vT2}, 3, v{vLane}")
    a(f"v_lshlrev_b32 v{vT2}, 4, v{vT2}")
    a(f"v_add_u32 v{vOffW}, v{vT1}, v{vT2}")
    a(f"s_lshl_b32 s{sT0}, s{sW}, 5")
    a(f"s_add_u32 s{sT0}, s{sT0}, s{sTok0}")
    a(f"s_lshl_b32 s{sXoff}, s{sT0}, 10")
    a(f"s_mul_i32 s{sWoff}, s{sW}, {16*3072}")
    a(f"s_lshl_b32 s{sT0}, s{sN0}, 1")
    a(f"s_add_u32 s{sWoff}, s{sWoff}, s{sT0}")
    a(f"s_lshl_b32 s{sLdsX}, s{sW}, 12")
    a(f"s_add_u32 s{sLdsW}, s{sLdsX}, 16384")
    a("s_waitcnt lgkmcnt(0)")
    srd(a, srdX, sX, 2048*1024)
    srd(a, srdW, sWq, 512*3072)
    vm = Vm(a)
    def dma_qkv(st, half=None):
        buf = (st % NBUF) * 32768
        a(f"s_add_u32 s52, s50, {st}")
        a(f"s_and_b32 s52, s52, {ROTMASK}")
        a(f"s_lshl_b32 s53, s52, 7")
        a(f"s_add_u32 s53, s53, s{sXoff}")
        a(f"s_mul_i32 s54, s52, {64*3072}")
        a(f"s_add_u32 s54, s54, s{sWoff}")
        for m in (range(4) if half is None else range(2*half, 2*half+2)):
            a(f"s_add_u32 m0, s{sLdsX}, {buf + m*1024}")
            a(f"s_add_u32 s{sT0}, s53, {m*8192}")
            a(f"buffer_load_dwordx4 v{vOffX[m&1]}, s[{srdX}:{srdX+3}], s{sT0} offen lds")
            a(f"s_add_u32 m0, s{sLdsW}, {buf + m*1024}")
            a(f"s_add_u32 s{sT0}, s54, {4*m*3072}")
            a(f"buffer_load_dwordx4 v{vOffW}, s[{srdW}:{srdW+3}], s{sT0} offen lds")
        vm.issue(("S", st), 8 if half is None else 4)
    tl_stamp(a, 0)
    for st in range(2):
        dma_qkv(st)
    tl_stamp(a, 1)
    halves = [(st, h) for st in range(2, 8) for h in range(2)]
    SCHED = K1_SCHED
    for i in range(8):
        vm.wait(("S", i))
        a("s_barrier")
        tl_stamp(a, 2 + i)
        for _ in range(SCHED[i]):
            if halves:
                st, h = halves.pop(0)
                assert st <= max(i - 2, -1) + NBUF or st < NBUF, (st, i)
                dma_qkv(st, h)
    assert not halves
    tl_exit(a, 0, sWS)
    a("s_endpgm")

    a.label(f"{name}_lF")
    a(f"s_cmp_eq_u32 s{sSign}, 0")
    a(f"s_cbranch_scc1 {name}_lFa")
    a("s_waitcnt lgkmcnt(0)")
    a(f"s_mov_b32 s{sH}, s{sH+2}")
    a(f"s_mov_b32 s{sH+1}, s{sH+3}")
    a(f"s_mov_b32 s46, 0x0000bf80")
    a(f"s_mov_b32 s47, 0xbf800000")
    a(f"s_branch {name}_lFgo")
    a.label(f"{name}_lFa")
    a(f"s_mov_b32 s46, 0x00003f80")
    a(f"s_mov_b32 s47, 0x3f800000")
    a.label(f"{name}_lFgo")
    a(f"s_mov_b32 s48, 0x00003f80")
    a(f"s_mov_b32 s49, 0x3f800000")
    a(f"s_lshl_b32 s{sT0}, s{sW}, 4")
    a(f"s_add_u32 s{sT0}, s{sT0}, s{sTok0}")
    a(f"v_lshrrev_b32 v{vT0}, 3, v{vLane}")
    a(f"v_add_u32 v{vT0}, s{sT0}, v{vT0}")
    for m in range(2):
        a(f"v_add_u32 v{vT1}, {8*m}, v{vT0}")
        a(f"v_and_b32 v{vT2}, 1023, v{vOffX[m&1]}")
        a(f"v_lshl_add_u32 v{vRowMain+m}, v{vT1}, 10, v{vT2}")
        a(f"v_sub_u32 v{vT1}, 2048, v{vT1}")
        a(f"v_lshl_add_u32 v{vRowMir+m}, v{vT1}, 10, v{vT2}")
    a(f"s_lshl_b32 s{sT0}, s{sW}, 5")
    a(f"s_add_u32 s{sT0}, s{sT0}, s{sN0}")
    a(f"s_lshl_b32 s{sWoff}, s{sT0}, 10")
    a(f"s_lshl_b32 s{sLdsW}, s{sW}, 12")
    a(f"s_add_u32 s{sLdsW}, s{sLdsW}, 8192")
    a(f"s_lshl_b32 s{sT0}, s{sW}, 11")
    a(f"v_lshlrev_b32 v{vWr}, 4, v{vLane}")
    a(f"v_add_u32 v{vWr}, s{sT0}, v{vWr}")
    a("s_waitcnt lgkmcnt(0)")
    srd(a, srdX, sX, 2048*1024)
    srd(a, srdW, sH, 512*1024)
    vm = Vm(a)
    def f_loadA(st):
        b = vSt + (st & 3) * 16
        a(f"s_add_u32 s{sT0}, s50, {st}")
        a(f"s_and_b32 s{sT0}, s{sT0}, 7")
        a(f"s_lshl_b32 s{sT0}, s{sT0}, 7")
        for m in range(2):
            a(f"buffer_load_dwordx4 {vr(b+8*m,4)}, v{vRowMain+m}, s[{srdX}:{srdX+3}], s{sT0} offen")
            a(f"buffer_load_dwordx4 {vr(b+8*m+4,4)}, v{vRowMir+m}, s[{srdX}:{srdX+3}], s{sT0} offen")
        vm.issue(("A", st), 4)
    def f_dmaB(st):
        buf = (st % 6) * FB
        a(f"s_add_u32 s52, s50, {st}")
        a(f"s_and_b32 s52, s52, 7")
        a(f"s_lshl_b32 s52, s52, 7")
        a(f"s_add_u32 s52, s52, s{sWoff}")
        for m in range(4):
            a(f"s_add_u32 m0, s{sLdsW}, {buf + m*1024}")
            a(f"s_add_u32 s{sT0}, s52, {m*8192}")
            a(f"buffer_load_dwordx4 v{vOffX[m&1]}, s[{srdW}:{srdW+3}], s{sT0} offen lds")
        vm.issue(("B", st), 4)
    def f_fold(st):
        b = vSt + (st & 3) * 16
        buf = (st % 6) * FB
        for m in range(2):
            M = b + 8*m; Mi = M + 4
            for q in range(4):
                a(f"v_dot2_f32_bf16 v{vFo+2*q}, v{M+q}, s48, 0")
                a(f"v_dot2_f32_bf16 v{vFo+2*q+1}, v{M+q}, s49, 0")
            for q in range(4):
                a(f"v_dot2c_f32_bf16 v{vFo+2*q}, s46, v{Mi+q}")
                a(f"v_dot2c_f32_bf16 v{vFo+2*q+1}, s47, v{Mi+q}")
            for q in range(4):
                a(f"v_cvt_pk_bf16_f32 v{M+q}, v{vFo+2*q}, v{vFo+2*q+1}")
            if buf + m*1024 + 2048*3 < 65536 - 1024:
                a(f"ds_write_b128 v{vWr}, {vr(M,4)} offset:{buf + m*1024}")
            else:
                a(f"v_add_u32 v{vT0}, {buf + m*1024}, v{vWr}")
                a(f"ds_write_b128 v{vT0}, {vr(M,4)}")
    tl_stamp(a, 0)
    for st in range(3):
        f_loadA(st); f_dmaB(st)
    tl_stamp(a, 1)
    for i in range(8):
        vm.wait(("A", i))
        f_fold(i)
        vm.wait(("B", i))
        a("s_waitcnt lgkmcnt(0)")
        a("s_barrier")
        tl_stamp(a, 2 + i)
        if i == 0:
            f_loadA(3); f_dmaB(3)
        if i + 4 < 8:
            f_loadA(i + 4)
            f_dmaB(i + 4)
    tl_exit(a, 0, sWS)
    a("s_endpgm")

    a.label(f"{name}_edge")
    Re = RegAlloc(base, 168)
    vG = Re.alloc("G", 4); vA = Re.alloc("rowA", 4); vB = Re.alloc("rowB", 4)
    vR = Re.alloc("R", 4); vX1 = Re.alloc("x1024", 4); vRe = Re.alloc("rerow", 4)
    vD = Re.alloc("D", 8)
    nvmax[0] = max(nvmax[0], Re.next)
    a(f"s_sub_u32 s{sW}, s{sW}, 8")
    a(f"s_lshl_b32 s{sTok0}, s2, 2")
    a(f"s_add_u32 s{sTok0}, s{sTok0}, s{sW}")
    a(f"v_lshlrev_b32 v{vT0}, 4, v{vLane}")
    a("s_waitcnt lgkmcnt(0)")
    srd(a, srdX, sX, 2048*1024)
    srd(a, srdWS, sWS, WS_SIZE_USED)
    srd(a, srdW, 42, 1024)
    srd(a, 48, sH, 512*1024)
    a(f"buffer_load_dwordx4 {vr(vG,4)}, v{vT0}, s[{srdW}:{srdW+3}], 0 offen")
    a(f"s_lshl_b32 s{sT0}, s{sTok0}, 10")
    a(f"buffer_load_dwordx4 {vr(vA,4)}, v{vT0}, s[{srdX}:{srdX+3}], s{sT0} offen")
    a(f"s_sub_u32 s{sT1}, 2048, s{sTok0}")
    a(f"s_lshl_b32 s{sT1}, s{sT1}, 10")
    a(f"buffer_load_dwordx4 {vr(vB,4)}, v{vT0}, s[{srdX}:{srdX+3}], s{sT1} offen")
    a(f"s_mov_b32 s{sT1}, {1024*1024}")
    a(f"buffer_load_dwordx4 {vr(vX1,4)}, v{vT0}, s[{srdX}:{srdX+3}], s{sT1} offen")
    a(f"s_lshl_b32 s{sT1}, s2, 10")
    a(f"buffer_load_dwordx4 {vr(vRe,4)}, v{vT0}, s[48:51], s{sT1} offen")
    a("s_barrier")
    a("s_barrier")
    a("s_waitcnt vmcnt(0)")
    a(f"s_mov_b32 s44, 0xbf803f80")
    a(f"v_dot2_f32_bf16 v{vD}, v{vA}, v{vG}, 0")
    a(f"v_dot2_f32_bf16 v{vD+1}, v{vB}, v{vG}, 0")
    a(f"v_dot2_f32_bf16 v{vD+2}, v{vA}, s44, 0")
    a(f"v_dot2_f32_bf16 v{vD+3}, v{vRe}, v{vX1}, 0")
    a(f"v_dot2_f32_bf16 v{vD+4}, v{vX1}, v{vG}, 0")
    a(f"v_dot2_f32_bf16 v{vD+5}, v{vX1}, s44, 0")
    a("s_nop 2")
    for q in range(4):
        if q > 0:
            a(f"v_dot2c_f32_bf16 v{vD}, v{vA+q}, v{vG+q}")
            a(f"v_dot2c_f32_bf16 v{vD+1}, v{vB+q}, v{vG+q}")
            a(f"v_dot2c_f32_bf16 v{vD+2}, s44, v{vA+q}")
            a(f"v_dot2c_f32_bf16 v{vD+3}, v{vRe+q}, v{vX1+q}")
            a(f"v_dot2c_f32_bf16 v{vD+4}, v{vX1+q}, v{vG+q}")
            a(f"v_dot2c_f32_bf16 v{vD+5}, s44, v{vX1+q}")
        a(f"v_dot2c_f32_bf16 v{vD+2}, s44, v{vB+q}")
    a("s_nop 3")
    for ctrl in ["row_shr:1", "row_shr:2", "row_shr:4", "row_shr:8"]:
        for r in range(6):
            a(f"v_add_f32_dpp v{vD+r}, v{vD+r}, v{vD+r} {ctrl} row_mask:0xf bank_mask:0xf bound_ctrl:0")
    for r in range(6):
        a(f"v_add_f32_dpp v{vD+r}, v{vD+r}, v{vD+r} row_bcast:15 row_mask:0xa bank_mask:0xf")
    for r in range(6):
        a(f"v_add_f32_dpp v{vD+r}, v{vD+r}, v{vD+r} row_bcast:31 row_mask:0xc bank_mask:0xf")
    a("s_barrier")
    for r in (0, 1, 4):
        a(f"v_mul_f32 v{vD+r}, {f2u(-1.4426950408889634)}, v{vD+r}")
    for r in (0, 1, 4):
        a(f"v_exp_f32 v{vD+r}, v{vD+r}")
    a("s_nop 0")
    for r in (0, 1, 4):
        a(f"v_add_f32 v{vD+r}, 1.0, v{vD+r}")
    for r in (0, 1, 4):
        a(f"v_rcp_f32 v{vD+r}, v{vD+r}")
    a(f"v_cvt_pk_bf16_f32 v{vD+2}, v{vD+2}, 0")
    a(f"v_cvt_pk_bf16_f32 v{vR}, v{vD+3}, 0")
    a(f"v_cvt_pk_bf16_f32 v{vD+5}, v{vD+5}, 0")
    a(f"v_mov_b32 v{vR+1}, 0"); a(f"v_mov_b32 v{vR+2}, 0"); a(f"v_mov_b32 v{vR+3}, 0")
    a(f"v_mov_b32 v{vA}, 0"); a(f"v_mov_b32 v{vA+1}, 0"); a(f"v_mov_b32 v{vA+2}, 0"); a(f"v_mov_b32 v{vA+3}, 0")
    a(f"v_mov_b32 v{vT1}, 0")
    a("s_mov_b32 exec_lo, 0")
    a("s_mov_b32 exec_hi, 0x80000000")
    a(f"s_lshl_b32 s{sT0}, s{sTok0}, 2")
    a(f"s_add_u32 s{sT0}, s{sT0}, {WS_G}")
    a(f"buffer_store_dword v{vD}, v{vT1}, s[{srdWS}:{srdWS+3}], s{sT0} offen")
    a(f"s_cmp_eq_u32 s{sTok0}, 0")
    a(f"s_cbranch_scc1 {name}_e1")
    a(f"s_sub_u32 s{sT0}, 2048, s{sTok0}")
    a(f"s_lshl_b32 s{sT0}, s{sT0}, 2")
    a(f"s_add_u32 s{sT0}, s{sT0}, {WS_G}")
    a(f"buffer_store_dword v{vD+1}, v{vT1}, s[{srdWS}:{srdWS+3}], s{sT0} offen")
    a.label(f"{name}_e1")
    a(f"s_lshr_b32 s{sT0}, s{sTok0}, 4")
    a(f"s_add_u32 s{sT0}, s{sT0}, {8*A_KSTEPS}")
    a(f"s_lshl_b32 s{sT0}, s{sT0}, 10")
    a(f"s_bfe_u32 s{sT1}, s{sTok0}, 0x10003")
    a(f"s_lshl_b32 s{sT1}, s{sT1}, 9")
    a(f"s_add_u32 s{sT0}, s{sT0}, s{sT1}")
    a(f"s_and_b32 s{sT1}, s{sTok0}, 7")
    a(f"s_lshl_b32 s{sT1}, s{sT1}, 1")
    a(f"s_add_u32 s{sT0}, s{sT0}, s{sT1}")
    a(f"s_add_u32 s{sT0}, s{sT0}, {WS_A}")
    a(f"buffer_store_short v{vD+2}, v{vT1}, s[{srdWS}:{srdWS+3}], s{sT0} offen")
    a(f"s_cmp_lg_u32 s{sW}, 0")
    a(f"s_cbranch_scc1 {name}_e2")
    a(f"s_lshr_b32 s{sT0}, s2, 5")
    a(f"s_mul_i32 s{sT0}, s{sT0}, {A_KSTEPS}")
    a(f"s_add_u32 s{sT0}, s{sT0}, 64")
    a(f"s_lshl_b32 s{sT0}, s{sT0}, 10")
    a(f"s_and_b32 s{sT1}, s2, 31")
    a(f"s_lshl_b32 s{sT1}, s{sT1}, 4")
    a(f"s_add_u32 s{sT0}, s{sT0}, s{sT1}")
    a(f"s_add_u32 s{sT0}, s{sT0}, {WS_A}")
    a(f"buffer_store_dwordx4 {vr(vR,4)}, v{vT1}, s[{srdWS}:{srdWS+3}], s{sT0} offen")
    a(f"buffer_store_dwordx4 {vr(vA,4)}, v{vT1}, s[{srdWS}:{srdWS+3}], s{sT0} offen offset:512")
    a.label(f"{name}_e2")
    a(f"s_cmp_lg_u32 s{sTok0}, 1")
    a(f"s_cbranch_scc1 {name}_e3")
    a(f"s_mov_b32 s{sT0}, {WS_G + 4096}")
    a(f"buffer_store_dword v{vD+4}, v{vT1}, s[{srdWS}:{srdWS+3}], s{sT0} offen")
    a(f"v_mov_b32 v{vR}, v{vD+5}")
    a(f"s_mov_b32 s{sT0}, {WS_A + (8*A_KSTEPS + 64)*1024}")
    a(f"buffer_store_dwordx4 {vr(vR,4)}, v{vT1}, s[{srdWS}:{srdWS+3}], s{sT0} offen")
    a(f"buffer_store_dwordx4 {vr(vA,4)}, v{vT1}, s[{srdWS}:{srdWS+3}], s{sT0} offen offset:512")
    a.label(f"{name}_e3")
    a("s_mov_b64 exec, -1")
    for i in range(3, 8):
        a("s_barrier")
    tl_exit(a, 0, sWS)
    a.label(f"{name}_end")
    a("s_endpgm")
    return nvmax[0]
```

```python
from asmlib import *
from common import *

LDS_CNT = 131072
LDS_RED = 131072 + 256
C_KV, C_F, C_R0, C_R1, C_X = LDS_CNT, LDS_CNT + 4, LDS_CNT + 8, LDS_CNT + 12, LDS_CNT + 16
PRIO_MODE = 1
NT0 = 10

def gen_k2(a, name):
    R = RegAlloc(0, 168)
    R.alloc("tid")
    vLane16 = R.alloc("lane16")
    vT0 = R.alloc("tmp0"); vT1 = R.alloc("tmp1")
    base = R.next
    sWS = 4; sSRD = 8
    sW, sHead, sQb = 12, 13, 14
    sKoff, sVoff = 15, 16
    sKh, sQp = 17, 18
    sIt = 19
    sTmp, sTmp2 = 20, 21
    sMask = 22
    sRetry = 24
    nvmax = [0]

    a.raw(kernel_header(name))
    a("s_cmp_ge_u32 s2, 256")
    a(f"s_cbranch_scc1 {name}_end")
    tl_entry(a)
    a(f"s_load_dwordx2 s[{sWS}:{sWS+1}], s[0:1], {ARG['ws']}")
    a(f"s_load_dwordx2 s[30:31], s[0:1], {ARG['sre']}")
    a(f"s_load_dwordx2 s[32:33], s[0:1], {ARG['sim']}")
    a(f"v_lshrrev_b32 v{vT0}, 6, v0")
    a(f"v_and_b32 v{vT1}, 63, v0")
    a(f"v_readfirstlane_b32 s{sW}, v{vT0}")
    a(f"v_lshlrev_b32 v{vLane16}, 4, v{vT1}")
    a(f"s_and_b32 s{sTmp}, s2, 7")
    a(f"s_lshr_b32 s{sTmp2}, s2, 3")
    a(f"s_lshl_b32 s{sHead}, s{sTmp}, 2")
    a(f"s_and_b32 s{sTmp}, s{sTmp2}, 3")
    a(f"s_add_u32 s{sHead}, s{sHead}, s{sTmp}")
    a(f"s_lshr_b32 s{sQb}, s{sTmp2}, 2")
    a(f"s_cmp_ge_u32 s{sW}, 8")
    a(f"s_cbranch_scc1 {name}_fwave")

    Ra = RegAlloc(base, 168)
    vAK = Ra.alloc("addrK"); vAV = Ra.alloc("addrV"); vM = Ra.alloc("m")
    vQ = [Ra.alloc("Q0", 4), Ra.alloc("Q1", 4)]
    vK = Ra.alloc("K", 4); vV0 = Ra.alloc("V0", 4); vV1 = Ra.alloc("V1", 4)
    vP = Ra.alloc("P", 8)
    vS = [Ra.alloc("S0", 16), Ra.alloc("S1", 16)]
    vT = Ra.alloc("T", 16)
    vO = [Ra.alloc("O0", 16), Ra.alloc("O1", 16)]
    vC = [Ra.alloc("C0", 16), Ra.alloc("C1", 16)]
    nvmax[0] = max(nvmax[0], Ra.next)
    a(f"s_and_b32 s{sQp}, s{sW}, 3")
    a(f"s_lshr_b32 s{sKh}, s{sW}, 2")
    a(f"s_lshl_b32 s{sTmp}, s{sHead}, 6")
    a(f"s_lshl_b32 s{sTmp2}, s{sQb}, 3")
    a(f"s_add_u32 s{sTmp}, s{sTmp}, s{sTmp2}")
    a(f"s_lshl_b32 s{sTmp2}, s{sQp}, 1")
    a(f"s_add_u32 s{sTmp}, s{sTmp}, s{sTmp2}")
    a(f"s_lshl_b32 s{sTmp}, s{sTmp}, 10")
    a("s_waitcnt lgkmcnt(0)")
    srd(a, sSRD, sWS, WS_SIZE_USED)
    a(f"buffer_load_dwordx4 {vr(vQ[0],4)}, v{vLane16}, s[{sSRD}:{sSRD+3}], s{sTmp} offen")
    a(f"buffer_load_dwordx4 {vr(vQ[1],4)}, v{vLane16}, s[{sSRD}:{sSRD+3}], s{sTmp} offen offset:1024")
    a(f"s_mov_b32 s{sMask}, 0x0000ffff")
    a(f"s_mov_b32 s{sMask+1}, 0x0000ffff")
    a(f"s_mov_b32 s{sRetry}, 0")
    a(f"s_lshl_b32 s26, s{sKh}, 15")
    a(f"v_lshrrev_b32 v{vT0}, 5, v{vT1}")
    a(f"v_lshlrev_b32 v{vT0}, 8, v{vT0}")
    a(f"v_and_b32 v{vAV}, 15, v{vT1}")
    a(f"v_lshlrev_b32 v{vAV}, 4, v{vAV}")
    a(f"v_add_u32 v{vAV}, v{vAV}, v{vT0}")
    a(f"v_add_u32 v{vAV}, 65536, v{vAV}")
    a(f"v_add_u32 v{vAV}, s26, v{vAV}")
    a(f"v_and_b32 v{vAK}, 31, v{vT1}")
    a(f"v_mov_b32 v{vM}, 0x3f803f80")
    a(f"v_cmp_eq_u32 vcc, 16, v{vAK}")
    a(f"v_cmp_eq_u32 s[28:29], 20, v{vAK}")
    a("s_nop 1")
    a("s_or_b64 vcc, vcc, s[28:29]")
    a("s_nop 1")
    a(f"v_cndmask_b32 v{vT0}, 0, v{vM}, vcc")
    for i in range(4):
        a(f"v_mov_b32 v{vV0+i}, v{vT0}")
        a(f"v_mov_b32 v{vV1+i}, v{vT0}")
    for q in range(2):
        for i in range(16):
            a(f"v_mov_b32 v{vO[q]+i}, 0")
    for i in range(4, 8):
        a(f"v_mov_b32 v{vP+i}, 0")
    a(f"v_add_u32 v{vAK}, s26, v{vLane16}")
    tl_stamp(a, 0)
    a("s_waitcnt vmcnt(0)")
    a("s_barrier")
    tl_stamp(a, 1)

    def rowmax(S):
        a(f"v_max3_f32 v{vM}, v{S}, v{S+1}, v{S+2}")
        for i in range(3, 15, 2):
            a(f"v_max3_f32 v{vM}, v{vM}, v{S+i}, v{S+i+1}")
        a(f"v_max_f32 v{vM}, v{vM}, v{S+15}")
    def bcast_negmax(C):
        a(f"v_mov_b32 v{vT0}, v{vM}")
        a("s_nop 1")
        a(f"v_permlane32_swap_b32 v{vT0}, v{vM}")
        a("s_nop 1")
        a(f"v_max_f32 v{vM}, v{vM}, v{vT0}")
        a(f"v_sub_f32 v{C}, 0, v{vM}")
        for i in range(1, 16):
            a(f"v_mov_b32 v{C+i}, v{C}")

    a(f"ds_read_b128 {vr(vT,4)}, v{vLane16}")
    a(f"ds_read_b128 {vr(vK,4)}, v{vAK}")
    a("s_waitcnt lgkmcnt(1)")
    a(f"v_mfma_f32_32x32x16_bf16 {vr(vS[0],16)}, {vr(vT,4)}, {vr(vQ[0],4)}, 0")
    a(f"v_mfma_f32_32x32x16_bf16 {vr(vS[1],16)}, {vr(vT,4)}, {vr(vQ[1],4)}, 0")
    a(f"s_mov_b64 exec, s[{sMask}:{sMask+1}]")
    a(f"ds_read_b128 {vr(vV0,4)}, v{vAV}")
    a("s_mov_b64 exec, -1")
    a("s_nop 8")
    rowmax(vS[0]); bcast_negmax(vC[0])
    a("s_waitcnt lgkmcnt(0)")
    a(f"v_mfma_f32_32x32x16_bf16 {vr(vS[0],16)}, {vr(vK,4)}, {vr(vQ[0],4)}, {vr(vC[0],16)}")
    rowmax(vS[1]); bcast_negmax(vC[1])
    a("s_nop 1")
    a(f"v_mfma_f32_32x32x16_bf16 {vr(vS[1],16)}, {vr(vK,4)}, {vr(vQ[1],4)}, {vr(vC[1],16)}")
    a(f"ds_read_b128 {vr(vK,4)}, v{vAK} offset:1024")
    tl_stamp(a, 2)

    def step(u, q):
        S = vS[q]
        e = lambda i: a(f"v_exp_f32 v{vT+i}, v{S+i}")
        c = lambda i: a(f"v_cvt_pk_bf16_f32 v{vP+i}, v{vT+2*i}, v{vT+2*i+1}")
        e(0); e(1); e(2); c(0); e(3); e(4)
        if q == 1:
            a("s_waitcnt lgkmcnt(0)")
        a(f"v_mfma_f32_32x32x16_bf16 {vr(vO[q^1],16)}, {vr(vV1,4)}, {vr(vP+4,4)}, {vr(vO[q^1],16)}")
        if q == 0:
            a(f"s_mov_b64 exec, s[{sMask}:{sMask+1}]")
            a(f"ds_read_b128 {vr(vV1,4)}, v{vAV} offset:{(2*u+1)*512}")
            a("s_mov_b64 exec, -1")
        c(1); e(5); e(6); c(2); e(7); e(8); c(3); e(9); e(10)
        if q == 0:
            a("s_waitcnt lgkmcnt(2)")
        a(f"v_mfma_f32_32x32x16_bf16 {vr(vO[q],16)}, {vr(vV0,4)}, {vr(vP,4)}, {vr(vO[q],16)}")
        if q == 1:
            a(f"s_mov_b64 exec, s[{sMask}:{sMask+1}]")
            a(f"ds_read_b128 {vr(vV0,4)}, v{vAV} offset:{(2*u+2)*512}")
            a("s_mov_b64 exec, -1")
        e(11); c(4); e(12); c(5); e(13); e(14); c(6); e(15)
        if q == 0:
            a("s_waitcnt lgkmcnt(1)")
        a(f"v_mfma_f32_32x32x16_bf16 {vr(S,16)}, {vr(vK,4)}, {vr(vQ[q],4)}, {vr(vC[q],16)}")
        if q == 1:
            a(f"ds_read_b128 {vr(vK,4)}, v{vAK} offset:{(u+2)*1024}")
        c(7)

    a(f"s_mov_b32 s{sIt}, 0")
    a("s_setprio 2")
    lbl = f"{name}_loop"
    a.label(lbl)
    for u in range(8):
        step(u, 0); step(u, 1)
        if PRIO_MODE == 2 and u == 3:
            a(f"s_cmp_lg_u32 s{sIt}, 3")
            a(f"s_cbranch_scc1 {name}_np{u}")
            a("s_setprio 0")
            a.label(f"{name}_np{u}")
    a(f"v_add_u32 v{vAK}, 8192, v{vAK}")
    a(f"v_add_u32 v{vAV}, 8192, v{vAV}")
    a(f"s_cmp_lg_u32 s{sIt}, 0")
    a(f"s_cbranch_scc1 {name}_nosync")
    lds_wait(a, vT0, vT1, sTmp, C_KV, 4, f"{name}_wkv")
    a.label(f"{name}_nosync")
    if PRIO_MODE == 1:
        a(f"s_cmp_lg_u32 s{sIt}, 1")
        a(f"s_cbranch_scc1 {name}_p1")
        a("s_setprio 1")
        a.label(f"{name}_p1")
        a(f"s_cmp_lg_u32 s{sIt}, 2")
        a(f"s_cbranch_scc1 {name}_p2")
        a("s_setprio 0")
        a.label(f"{name}_p2")
    if PRIO_MODE == 2:
        a(f"s_cmp_lg_u32 s{sIt}, 2")
        a(f"s_cbranch_scc1 {name}_p1")
        a("s_setprio 1")
        a.label(f"{name}_p1")
    a(f"s_add_u32 s{sIt}, s{sIt}, 1")
    a(f"s_cmp_lg_u32 s{sIt}, 4")
    a(f"s_cbranch_scc1 {lbl}")
    a("s_nop 1")
    a(f"v_mfma_f32_32x32x16_bf16 {vr(vO[1],16)}, {vr(vV1,4)}, {vr(vP+4,4)}, {vr(vO[1],16)}")
    tl_stamp(a, 3)
    lds_wait(a, vT0, vT1, sTmp, C_F, 4, f"{name}_wf")
    a("s_nop 12")
    a(f"s_mul_i32 s{sTmp}, s{sW}, 2304")
    a(f"s_add_u32 s{sTmp}, s{sTmp}, {LDS_RED}")
    a(f"v_add_u32 v{vT0}, s{sTmp}, v{vLane16}")
    a(f"v_lshrrev_b32 v{vT1}, 2, v{vLane16}")
    a(f"v_add_u32 v{vT1}, s{sTmp}, v{vT1}")
    a(f"s_cmp_eq_u32 s{sKh}, 0")
    a(f"s_cbranch_scc0 {name}_x1")
    a(f"ds_write_b128 v{vT0}, {vr(vO[1],4)}")
    a(f"ds_write_b128 v{vT0}, {vr(vO[1]+4,4)} offset:1024")
    a(f"ds_write_b32 v{vT1}, v{vO[1]+8} offset:2048")
    a(f"s_branch {name}_x2")
    a.label(f"{name}_x1")
    a(f"ds_write_b128 v{vT0}, {vr(vO[0],4)}")
    a(f"ds_write_b128 v{vT0}, {vr(vO[0]+4,4)} offset:1024")
    a(f"ds_write_b32 v{vT1}, v{vO[0]+8} offset:2048")
    for i in range(9):
        a(f"v_mov_b32 v{vO[0]+i}, v{vO[1]+i}")
    for i in range(4):
        a(f"v_mov_b32 v{vQ[0]+i}, v{vQ[1]+i}")
    a.label(f"{name}_x2")
    a("s_waitcnt lgkmcnt(0)")
    a(f"s_lshl_b32 s{sTmp}, s{sQp}, 2")
    a(f"s_add_u32 s{sTmp}, s{sTmp}, {C_X}")
    a(f"v_mov_b32 v{vAK}, s{sTmp}")
    a(f"v_mov_b32 v{vM}, 1")
    a("s_mov_b64 exec, 1")
    a(f"ds_add_u32 v{vAK}, v{vM}")
    a("s_mov_b64 exec, -1")
    a.label(f"{name}_wx")
    a(f"ds_read_b32 v{vM}, v{vAK}")
    a("s_waitcnt lgkmcnt(0)")
    a(f"v_readfirstlane_b32 s{sTmp2}, v{vM}")
    a("s_nop 3")
    a(f"s_cmp_ge_u32 s{sTmp2}, 2")
    a(f"s_cbranch_scc1 {name}_wx_ok")
    a("s_sleep 1")
    a(f"s_branch {name}_wx")
    a.label(f"{name}_wx_ok")
    a(f"s_xor_b32 s{sTmp}, s{sW}, 4")
    a(f"s_mul_i32 s{sTmp}, s{sTmp}, 2304")
    a(f"s_add_u32 s{sTmp}, s{sTmp}, {LDS_RED}")
    a(f"v_add_u32 v{vT0}, s{sTmp}, v{vLane16}")
    a(f"v_lshrrev_b32 v{vT1}, 2, v{vLane16}")
    a(f"v_add_u32 v{vT1}, s{sTmp}, v{vT1}")
    a(f"ds_read_b128 {vr(vT,4)}, v{vT0}")
    a(f"ds_read_b128 {vr(vT+4,4)}, v{vT0} offset:1024")
    a(f"ds_read_b32 v{vT+8}, v{vT1} offset:2048")
    a("s_waitcnt lgkmcnt(0)")
    O = vO[0]
    for i in range(9):
        a(f"v_add_f32 v{O+i}, v{O+i}, v{vT+i}")
    a.label(f"{name}_epi")
    a(f"s_cmp_lg_u32 s{sRetry}, 0")
    a(f"s_cbranch_scc1 {name}_fin")
    a(f"v_mov_b32 v{vT0}, 0x5d800000")
    a(f"v_cmp_nle_f32 vcc, v{O+8}, v{vT0}")
    a("s_nop 4")
    a(f"s_cbranch_vccnz {name}_fallback")
    a.label(f"{name}_fin")
    a(f"v_rcp_f32 v{vT0}, v{O+8}")
    a("s_nop 0")
    for i in range(8):
        a(f"v_mul_f32 v{O+i}, v{O+i}, v{vT0}")
    for i in range(4):
        a(f"v_cvt_pk_bf16_f32 v{vP+i}, v{O+2*i}, v{O+2*i+1}")
    a(f"s_lshl_b32 s{sTmp}, s{sQb}, 3")
    a(f"s_lshl_b32 s{sTmp2}, s{sQp}, 1")
    a(f"s_add_u32 s{sTmp}, s{sTmp}, s{sTmp2}")
    a(f"s_add_u32 s{sTmp}, s{sTmp}, s{sKh}")
    a(f"s_lshl_b32 s{sTmp}, s{sTmp}, 5")
    a(f"s_add_u32 s{sTmp}, s{sTmp}, s{sHead}")
    a(f"s_lshl_b32 s{sTmp}, s{sTmp}, 10")
    a(f"s_add_u32 s{sTmp}, s{sTmp}, {WS_O}")
    a(f"buffer_store_dwordx4 {vr(vP,4)}, v{vLane16}, s[{sSRD}:{sSRD+3}], s{sTmp} offen")
    tl_exit(a, 1, sWS)
    a("s_endpgm")
    a.label(f"{name}_fallback")
    a(f"s_mov_b32 s{sRetry}, 1")
    a(f"v_mov_b32 v{vAK}, v{vLane16}")
    a(f"v_mov_b32 v{vM}, 0xff800000")
    a(f"s_mov_b32 s{sIt}, 64")
    a.label(f"{name}_maxloop")
    a(f"ds_read_b128 {vr(vK,4)}, v{vAK}")
    a("s_waitcnt lgkmcnt(0)")
    a(f"v_mfma_f32_32x32x16_bf16 {vr(vS[0],16)}, {vr(vK,4)}, {vr(vQ[0],4)}, 0")
    a(f"v_add_u32 v{vAK}, 1024, v{vAK}")
    a("s_nop 15")
    a("s_nop 3")
    for i in range(0, 16, 2):
        a(f"v_max3_f32 v{vM}, v{vM}, v{vS[0]+i}, v{vS[0]+i+1}")
    a(f"s_sub_u32 s{sIt}, s{sIt}, 1")
    a(f"s_cmp_lg_u32 s{sIt}, 0")
    a(f"s_cbranch_scc1 {name}_maxloop")
    bcast_negmax(vC[0])
    for i in range(16):
        a(f"v_mov_b32 v{O+i}, 0")
    a(f"v_mov_b32 v{vAK}, v{vLane16}")
    a(f"s_lshl_b32 s26, s{sKh}, 15")
    a(f"s_add_u32 s26, s26, 32768")
    a(f"v_subrev_u32 v{vAV}, s26, v{vAV}")
    a(f"s_mov_b32 s{sIt}, 64")
    a.label(f"{name}_redo")
    a(f"ds_read_b128 {vr(vK,4)}, v{vAK}")
    a(f"s_mov_b64 exec, s[{sMask}:{sMask+1}]")
    a(f"ds_read_b128 {vr(vV0,4)}, v{vAV}")
    a(f"ds_read_b128 {vr(vV1,4)}, v{vAV} offset:512")
    a("s_mov_b64 exec, -1")
    a("s_waitcnt lgkmcnt(0)")
    a(f"v_mfma_f32_32x32x16_bf16 {vr(vS[0],16)}, {vr(vK,4)}, {vr(vQ[0],4)}, {vr(vC[0],16)}")
    a(f"v_add_u32 v{vAK}, 1024, v{vAK}")
    a(f"v_add_u32 v{vAV}, 1024, v{vAV}")
    a("s_nop 15")
    a("s_nop 3")
    for i in range(16):
        a(f"v_exp_f32 v{vT+i}, v{vS[0]+i}")
    a("s_nop 0")
    for i in range(8):
        a(f"v_cvt_pk_bf16_f32 v{vP+i}, v{vT+2*i}, v{vT+2*i+1}")
    a("s_nop 1")
    a(f"v_mfma_f32_32x32x16_bf16 {vr(O,16)}, {vr(vV0,4)}, {vr(vP,4)}, {vr(O,16)}")
    a(f"v_mfma_f32_32x32x16_bf16 {vr(O,16)}, {vr(vV1,4)}, {vr(vP+4,4)}, {vr(O,16)}")
    a(f"s_sub_u32 s{sIt}, s{sIt}, 1")
    a(f"s_cmp_lg_u32 s{sIt}, 0")
    a(f"s_cbranch_scc1 {name}_redo")
    a("s_nop 15")
    a("s_nop 3")
    a(f"s_branch {name}_epi")

    a.label(f"{name}_fwave")
    Rf = RegAlloc(base, 168)
    vB = Rf.alloc("boff"); vY = Rf.alloc("yaddr")
    accP = Rf.alloc("accP", 16); accQ = Rf.alloc("accQ", 16)
    buf = Rf.alloc("buf", 96)
    nvmax[0] = max(nvmax[0], Rf.next)
    sF = 25
    srdRe, srdIm = 36, 40
    sTt, sEt, sHasQ, sA, sBq, sK, sJob = 44, 45, 46, 47, 48, 49, 50
    a(f"s_sub_u32 s{sF}, s{sW}, 8")
    a("s_setprio 3")
    a("s_waitcnt lgkmcnt(0)")
    srd(a, sSRD, sWS, WS_SIZE_USED)
    a(f"s_lshl_b32 s{sTmp}, s{sHead}, 16")
    a(f"s_and_b32 s{sTmp2}, s{sF}, 1")
    a(f"s_lshl_b32 s51, s{sTmp2}, 21")
    a(f"s_add_u32 s{sTmp}, s{sTmp}, s51")
    a(f"s_add_u32 s{sTmp}, s{sTmp}, {WS_K}")
    a(f"s_lshr_b32 s51, s{sF}, 1")
    a(f"s_lshl_b32 s51, s51, 15")
    a(f"s_add_u32 s{sKoff}, s{sTmp}, s51")
    a(f"s_lshl_b32 s{sTmp2}, s{sTmp2}, 16")
    a(f"s_add_u32 s{sVoff}, s{sTmp2}, s51")
    vm = Vm(a)
    def dma_tile(t):
        a(f"s_add_u32 m0, s{sVoff}, {t*1024}")
        a(f"s_add_u32 s{sTmp}, s{sKoff}, {t*1024}")
        a(f"buffer_load_dwordx4 v{vLane16}, s[{sSRD}:{sSRD+3}], s{sTmp} offen lds")
    for t in range(NT0):
        dma_tile(t)
    vm.issue("a", NT0)
    a(f"v_mov_b32 v{vT0}, {LDS_CNT}")
    a(f"v_mov_b32 v{accP}, 0"); a(f"v_mov_b32 v{accP+1}, 0"); a(f"v_mov_b32 v{accP+2}, 0"); a(f"v_mov_b32 v{accP+3}, 0")
    a(f"ds_write_b128 v{vT0}, {vr(accP,4)}")
    a(f"ds_write_b128 v{vT0}, {vr(accP,4)} offset:16")
    for t in range(NT0, NT0 + 6):
        dma_tile(t)
    vm.issue("b", 6)
    vm.wait("a")
    a("s_waitcnt lgkmcnt(0)")
    a("s_barrier")
    tl_stamp(a, 1)
    for t in range(NT0 + 6, 32):
        dma_tile(t)
    vm.issue("b", 32 - NT0 - 6)
    srd(a, srdRe, 30, 2048*4096)
    srd(a, srdIm, 32, 2048*4096)
    vm.wait("b")
    lds_signal(a, vT0, vT1, C_KV)
    tl_stamp(a, 2)

    a(f"s_mov_b32 s{sJob}, 0")
    a(f"s_lshr_b32 s{sTt}, s2, 3")
    a(f"s_and_b32 s{sEt}, s2, 7")
    a(f"s_mov_b32 s{sHasQ}, 1")
    a.label(f"{name}_fjob")
    a(f"v_lshrrev_b32 v{vT1}, 4, v{vLane16}")
    a(f"v_and_b32 v{vT0}, 31, v{vT1}")
    a(f"s_lshl_b32 s{sTmp}, s{sTt}, 5")
    a(f"v_add_u32 v{vT0}, s{sTmp}, v{vT0}")
    a(f"v_mul_u32_u24 v{vY}, {Y_STRIDE}, v{vT0}")
    a(f"v_lshlrev_b32 v{vT0}, 12, v{vT0}")
    a(f"v_lshrrev_b32 v{vT1}, 5, v{vT1}")
    a(f"v_lshlrev_b32 v{vT1}, 4, v{vT1}")
    a(f"v_add_u32 v{vB}, v{vT0}, v{vT1}")
    a(f"v_add_u32 v{vY}, v{vY}, v{vT1}")
    for i in range(16):
        a(f"v_mov_b32 v{accP+i}, 0")
        a(f"v_mov_b32 v{accQ+i}, 0")
    a(f"s_lshl_b32 s{sK}, s{sF}, 4")
    a(f"s_mul_i32 s{sA}, s{sEt}, {A_KSTEPS}")
    a(f"s_add_u32 s{sA}, s{sA}, s{sK}")
    a(f"s_lshl_b32 s{sA}, s{sA}, 10")
    a(f"s_add_u32 s{sA}, s{sA}, {WS_A}")
    a(f"s_mul_i32 s{sBq}, s{sEt}, {B_KSTEPS}")
    a(f"s_add_u32 s{sBq}, s{sBq}, s{sK}")
    a(f"s_lshl_b32 s{sBq}, s{sBq}, 10")
    a(f"s_add_u32 s{sBq}, s{sBq}, {WS_B}")
    a(f"s_lshl_b32 s{sK}, s{sK}, 5")
    a(f"s_cmp_eq_u32 s{sHasQ}, 0")
    a(f"s_cbranch_scc1 {name}_fponly")
    vm = Vm(a)
    def ld_pq(b):
        r = buf + (b % 3) * 32
        for q in range(2):
            k = 2*b + q
            a(f"s_add_u32 s{sTmp}, s{sA}, {k*1024}")
            a(f"buffer_load_dwordx4 {vr(r+16*q,4)}, v{vLane16}, s[{sSRD}:{sSRD+3}], s{sTmp} offen")
            a(f"s_add_u32 s{sTmp}, s{sK}, {k*32}")
            a(f"buffer_load_dwordx4 {vr(r+16*q+4,4)}, v{vB}, s[{srdRe}:{srdRe+3}], s{sTmp} offen")
            a(f"s_add_u32 s{sTmp}, s{sBq}, {k*1024}")
            a(f"buffer_load_dwordx4 {vr(r+16*q+8,4)}, v{vLane16}, s[{sSRD}:{sSRD+3}], s{sTmp} offen")
            a(f"s_add_u32 s{sTmp}, s{sK}, {k*32}")
            a(f"buffer_load_dwordx4 {vr(r+16*q+12,4)}, v{vB}, s[{srdIm}:{srdIm+3}], s{sTmp} offen")
        vm.issue(b, 8)
    for b in range(3): ld_pq(b)
    for b in range(8):
        vm.wait(b)
        r = buf + (b % 3) * 32
        for q in range(2):
            a(f"v_mfma_f32_32x32x16_bf16 {vr(accP,16)}, {vr(r+16*q,4)}, {vr(r+16*q+4,4)}, {vr(accP,16)}")
            a(f"v_mfma_f32_32x32x16_bf16 {vr(accQ,16)}, {vr(r+16*q+8,4)}, {vr(r+16*q+12,4)}, {vr(accQ,16)}")
        if b + 3 < 8:
            a("s_nop 4")
            ld_pq(b + 3)
    a(f"s_branch {name}_fx")
    a.label(f"{name}_fponly")
    vm = Vm(a)
    def ld_p(b):
        r = buf + (b % 3) * 32
        for q in range(4):
            k = 4*b + q
            a(f"s_add_u32 s{sTmp}, s{sA}, {k*1024}")
            a(f"buffer_load_dwordx4 {vr(r+8*q,4)}, v{vLane16}, s[{sSRD}:{sSRD+3}], s{sTmp} offen")
            a(f"s_add_u32 s{sTmp}, s{sK}, {k*32}")
            a(f"buffer_load_dwordx4 {vr(r+8*q+4,4)}, v{vB}, s[{srdRe}:{srdRe+3}], s{sTmp} offen")
        vm.issue(b, 8)
    for b in range(3): ld_p(b)
    for b in range(4):
        vm.wait(b)
        r = buf + (b % 3) * 32
        for q in range(4):
            a(f"v_mfma_f32_32x32x16_bf16 {vr(accP,16)}, {vr(r+8*q,4)}, {vr(r+8*q+4,4)}, {vr(accP,16)}")
        if b + 3 < 4:
            a("s_nop 4")
            ld_p(b + 3)
    a.label(f"{name}_fx")
    a(f"s_cmp_lg_u32 s{sF}, 0")
    a(f"s_cbranch_scc1 {name}_fnox")
    a(f"s_add_u32 s{sTmp}, s{sA}, {64*1024}")
    a(f"buffer_load_dwordx4 {vr(buf,4)}, v{vLane16}, s[{sSRD}:{sSRD+3}], s{sTmp} offen")
    a(f"s_mov_b32 s{sTmp}, {64*32}")
    a(f"buffer_load_dwordx4 {vr(buf+4,4)}, v{vB}, s[{srdRe}:{srdRe+3}], s{sTmp} offen")
    a("s_waitcnt vmcnt(0)")
    a(f"v_mfma_f32_32x32x16_bf16 {vr(accP,16)}, {vr(buf,4)}, {vr(buf+4,4)}, {vr(accP,16)}")
    a.label(f"{name}_fnox")
    a("s_nop 15")
    a("s_nop 3")
    for i in range(16):
        a(f"v_sub_f32 v{buf+i}, v{accP+i}, v{accQ+i}")
        a(f"v_add_f32 v{buf+16+i}, v{accP+i}, v{accQ+i}")
    a(f"s_cmp_eq_u32 s{sF}, 0")
    a(f"s_cbranch_scc1 {name}_fred0")
    a(f"v_mov_b32 v{vT0}, {C_R1}")
    a.label(f"{name}_fw1")
    a(f"ds_read_b32 v{vT1}, v{vT0}")
    a("s_waitcnt lgkmcnt(0)")
    a(f"v_readfirstlane_b32 s{sTmp}, v{vT1}")
    a("s_nop 3")
    a(f"s_cmp_ge_u32 s{sTmp}, s{sJob}")
    a(f"s_cbranch_scc1 {name}_fw1_ok")
    a("s_sleep 2")
    a(f"s_branch {name}_fw1")
    a.label(f"{name}_fw1_ok")
    a(f"s_sub_u32 s{sTmp}, s{sF}, 1")
    a(f"s_lshl_b32 s{sTmp}, s{sTmp}, 13")
    a(f"s_add_u32 s{sTmp}, s{sTmp}, {LDS_RED}")
    a(f"v_add_u32 v{vT0}, s{sTmp}, v{vLane16}")
    for q in range(8):
        a(f"ds_write_b128 v{vT0}, {vr(buf+4*q,4)} offset:{q*1024}")
    a("s_waitcnt lgkmcnt(0)")
    lds_signal(a, vT0, vT1, C_R0)
    a(f"s_branch {name}_fnext")
    a.label(f"{name}_fred0")
    a(f"s_mul_i32 s{sTmp2}, s{sJob}, 3")
    a(f"s_add_u32 s{sTmp2}, s{sTmp2}, 3")
    a(f"v_mov_b32 v{vT0}, {C_R0}")
    a.label(f"{name}_fw0")
    a(f"ds_read_b32 v{vT1}, v{vT0}")
    a("s_waitcnt lgkmcnt(0)")
    a(f"v_readfirstlane_b32 s{sTmp}, v{vT1}")
    a("s_nop 3")
    a(f"s_cmp_ge_u32 s{sTmp}, s{sTmp2}")
    a(f"s_cbranch_scc1 {name}_fw0_ok")
    a("s_sleep 2")
    a(f"s_branch {name}_fw0")
    a.label(f"{name}_fw0_ok")
    a(f"v_add_u32 v{vT0}, {LDS_RED}, v{vLane16}")
    for src in range(3):
        for q in range(8):
            a(f"ds_read_b128 {vr(buf+32+4*q,4)}, v{vT0} offset:{src*8192 + q*1024}")
        a("s_waitcnt lgkmcnt(0)")
        for i in range(32):
            a(f"v_add_f32 v{buf+i}, v{buf+i}, v{buf+32+i}")
    lds_signal(a, vT0, vT1, C_R1)
    a(f"s_lshl_b32 s{sTmp}, s{sEt}, 7")
    for g in range(4):
        a(f"s_add_u32 s{sTmp2}, s{sTmp}, {WS_D + g*32}")
        a(f"buffer_store_dwordx4 {vr(buf+4*g,4)}, v{vY}, s[{sSRD}:{sSRD+3}], s{sTmp2} offen")
        a(f"s_add_u32 s{sTmp2}, s{sTmp}, {WS_E + g*32}")
        a(f"buffer_store_dwordx4 {vr(buf+16+4*g,4)}, v{vY}, s[{sSRD}:{sSRD+3}], s{sTmp2} offen")
    a.label(f"{name}_fnext")
    a(f"s_cmp_lg_u32 s{sJob}, 0")
    a(f"s_cbranch_scc1 {name}_fdone")
    a("s_cmp_ge_u32 s2, 41")
    a(f"s_cbranch_scc1 {name}_fdone")
    a(f"s_mov_b32 s{sJob}, 1")
    a(f"s_mov_b32 s{sHasQ}, 0")
    a(f"s_mov_b32 s{sTt}, s2")
    a(f"s_mov_b32 s{sEt}, 8")
    a("s_cmp_lt_u32 s2, 33")
    a(f"s_cbranch_scc1 {name}_fjob")
    a(f"s_mov_b32 s{sTt}, 32")
    a(f"s_sub_u32 s{sEt}, s2, 33")
    a(f"s_branch {name}_fjob")
    a.label(f"{name}_fdone")
    a(f"s_cmp_eq_u32 s{sF}, 0")
    a(f"s_cbranch_scc1 {name}_fsig")
    a(f"s_add_u32 s{sTmp2}, s{sJob}, 1")
    a(f"v_mov_b32 v{vT0}, {C_R1}")
    a.label(f"{name}_fw2")
    a(f"ds_read_b32 v{vT1}, v{vT0}")
    a("s_waitcnt lgkmcnt(0)")
    a(f"v_readfirstlane_b32 s{sTmp}, v{vT1}")
    a("s_nop 3")
    a(f"s_cmp_ge_u32 s{sTmp}, s{sTmp2}")
    a(f"s_cbranch_scc1 {name}_fsig")
    a("s_sleep 2")
    a(f"s_branch {name}_fw2")
    a.label(f"{name}_fsig")
    lds_signal(a, vT0, vT1, C_F)
    tl_stamp(a, 3)
    tl_exit(a, 1, sWS)
    a.label(f"{name}_end")
    a("s_endpgm")
    return nvmax[0]
```

```python
import sys
from asmlib import *

NAME = "gated_mix__softmax_full_mha__spectral_fnet__prompt"
from common import *
from gen_k1 import gen_k1
from gen_f2 import gen_f2
from gen_k3 import gen_k3
from gen_attn2 import gen_attn2
from gen_k1v2 import gen_k1v2
from gen_k2 import gen_k2

TIMING = False
OPT = {}
def stamp(a, sreg):
    if TIMING:
        a(f"s_memtime s[{sreg}:{sreg+1}]")
def stamp_store(a, regs, vtmp, vaddr, srd_base, wave_index_sreg, stmp):
    if not TIMING: return
    a("s_waitcnt lgkmcnt(0)")
    a(f"s_lshl_b32 s{stmp}, s{wave_index_sreg}, 6")
    a(f"s_add_u32 s{stmp}, s{stmp}, {WS_T}")
    a(f"v_mov_b32 v{vaddr}, 0")
    for i, r in enumerate(regs):
        a(f"v_mov_b32 v{vtmp}, s{r}")
        a(f"buffer_store_dword v{vtmp}, v{vaddr}, s[{srd_base}:{srd_base+3}], s{stmp} offen offset:{4*i}")

def gen_attn(a, name):
    R = RegAlloc(0, 168)
    v_tid = R.alloc("tid")
    vLane16 = R.alloc("lane16")
    vAK = R.alloc("addrK")
    vAV = R.alloc("addrV")
    vT0 = R.alloc("tmp0")
    vT1 = R.alloc("tmp1")
    vM = R.alloc("m")
    vQ = R.alloc("Q", 4)
    vK = R.alloc("K", 4)
    vV0 = R.alloc("V0", 4)
    vV1 = R.alloc("V1", 4)
    vP = R.alloc("P", 8)
    vS = [R.alloc("S0", 16), R.alloc("S1", 16)]
    vT = R.alloc("T", 16)
    vO = R.alloc("O", 16)
    vC = R.alloc("C", 16)
    nv = R.next
    sWS = 4
    sSRD = 8
    sW, sHead, sQb = 12, 13, 14
    sKoff, sVoff = 15, 16
    sCh = 17
    sIt = 18
    sTmp, sTmp2 = 19, 20
    sMask = 22
    sRetry = 24

    a.raw(kernel_header(name))
    a("s_cmp_ge_u32 s2, 256")
    a(f"s_cbranch_scc1 {name}_end")
    tl_entry(a)
    stamp(a, 40)
    if TIMING: a("s_memrealtime s[54:55]")
    a(f"s_load_dwordx2 s[{sWS}:{sWS+1}], s[0:1], {ARG['ws']}")
    a(f"v_lshrrev_b32 v{vT0}, 6, v0")
    a(f"v_and_b32 v{vT1}, 63, v0")
    a(f"v_readfirstlane_b32 s{sW}, v{vT0}")
    a(f"v_lshlrev_b32 v{vLane16}, 4, v{vT1}")
    a(f"s_and_b32 s{sTmp}, s2, 7")
    a(f"s_lshr_b32 s{sTmp2}, s2, 3")
    a(f"s_lshl_b32 s{sHead}, s{sTmp}, 2")
    a(f"s_and_b32 s{sTmp}, s{sTmp2}, 3")
    a(f"s_add_u32 s{sHead}, s{sHead}, s{sTmp}")
    a(f"s_lshr_b32 s{sQb}, s{sTmp2}, 2")
    a(f"s_mov_b32 s{sMask}, 0x0000ffff")
    a(f"s_mov_b32 s{sMask+1}, 0x0000ffff")
    a(f"s_mov_b32 s{sRetry}, 0")
    a("s_waitcnt lgkmcnt(0)")
    srd(a, sSRD, sWS, WS_SIZE_USED)
    a(f"s_lshl_b32 s{sTmp}, s{sHead}, 6")
    a(f"s_add_u32 s{sTmp}, s{sTmp}, s{sW}")
    a(f"s_lshl_b32 s{sTmp}, s{sTmp}, 10")
    a(f"s_add_u32 s{sKoff}, s{sTmp}, {WS_K}")
    a(f"s_add_u32 s{sVoff}, s{sTmp}, {WS_V}")
    a(f"s_lshl_b32 s{sTmp2}, s{sQb}, 13")
    a(f"s_add_u32 s{sTmp2}, s{sTmp2}, s{sTmp}")
    a(f"buffer_load_dwordx4 {vr(vQ,4)}, v{vLane16}, s[{sSRD}:{sSRD+3}], s{sTmp2} offen")

    def dma_chunk(chunk_sreg=None, const=None):
        if const is not None:
            a(f"s_lshl_b32 s{sTmp}, s{sW}, 10")
            a(f"s_add_u32 s{sTmp}, s{sTmp}, {const*8192}")
            a(f"s_add_u32 s{sTmp2}, s{sKoff}, {const*8192}")
            a(f"s_mov_b32 m0, s{sTmp}")
            a(f"s_add_u32 s{sTmp}, s{sTmp}, 65536")
            a(f"buffer_load_dwordx4 v{vLane16}, s[{sSRD}:{sSRD+3}], s{sTmp2} offen lds")
            a(f"s_add_u32 s{sTmp2}, s{sVoff}, {const*8192}")
            a(f"s_mov_b32 m0, s{sTmp}")
            a("s_nop 0")
            a(f"buffer_load_dwordx4 v{vLane16}, s[{sSRD}:{sSRD+3}], s{sTmp2} offen lds")
        else:
            c = chunk_sreg
            a(f"s_lshl_b32 s{sTmp}, s{sW}, 10")
            a(f"s_lshl_b32 s21, s{c}, 13")
            a(f"s_add_u32 s{sTmp}, s{sTmp}, s21")
            a(f"s_add_u32 s{sTmp2}, s{sKoff}, s21")
            a(f"s_mov_b32 m0, s{sTmp}")
            a(f"s_add_u32 s{sTmp}, s{sTmp}, 65536")
            a(f"buffer_load_dwordx4 v{vLane16}, s[{sSRD}:{sSRD+3}], s{sTmp2} offen lds")
            a(f"s_add_u32 s{sTmp2}, s{sVoff}, s21")
            a(f"s_mov_b32 m0, s{sTmp}")
            a("s_nop 0")
            a(f"buffer_load_dwordx4 v{vLane16}, s[{sSRD}:{sSRD+3}], s{sTmp2} offen lds")

    for c in range(3):
        dma_chunk(const=c)
    a(f"v_lshrrev_b32 v{vT0}, 5, v{vT1}")
    a(f"v_lshlrev_b32 v{vT0}, 8, v{vT0}")
    a(f"v_and_b32 v{vAV}, 15, v{vT1}")
    a(f"v_lshlrev_b32 v{vAV}, 4, v{vAV}")
    a(f"v_add_u32 v{vAV}, v{vAV}, v{vT0}")
    a(f"v_add_u32 v{vAV}, 65536, v{vAV}")
    a(f"v_mov_b32 v{vM}, 0x3f803f80")
    a(f"v_and_b32 v{vAK}, 31, v{vT1}")
    a(f"v_cmp_eq_u32 vcc, 16, v{vAK}")
    a(f"v_cmp_eq_u32 s[26:27], 20, v{vAK}")
    a("s_nop 1")
    a("s_or_b64 vcc, vcc, s[26:27]")
    a("s_nop 1")
    a(f"v_cndmask_b32 v{vT0}, 0, v{vM}, vcc")
    for i in range(4):
        a(f"v_mov_b32 v{vV0+i}, v{vT0}")
        a(f"v_mov_b32 v{vV1+i}, v{vT0}")
    stamp(a, 42)
    a("s_waitcnt vmcnt(2)")
    a("s_barrier")
    stamp(a, 44)
    dma_chunk(const=3)
    a(f"s_mov_b32 s{sCh}, 4")

    def first_max_and_C():
        a(f"ds_read_b128 {vr(vK,4)}, v{vLane16}")
        a("s_waitcnt lgkmcnt(0)")
        a(f"v_mfma_f32_32x32x16_bf16 {vr(vS[0],16)}, {vr(vK,4)}, {vr(vQ,4)}, 0")
        a("s_nop 15")
        a("s_nop 3")
        S = vS[0]
        a(f"v_max3_f32 v{vM}, v{S}, v{S+1}, v{S+2}")
        for i in range(3, 15, 2):
            a(f"v_max3_f32 v{vM}, v{vM}, v{S+i}, v{S+i+1}")
        a(f"v_max_f32 v{vM}, v{vM}, v{S+15}")

    def bcast_negmax():
        a(f"v_mov_b32 v{vT0}, v{vM}")
        a("s_nop 1")
        a(f"v_permlane32_swap_b32 v{vT0}, v{vM}")
        a("s_nop 1")
        a(f"v_max_f32 v{vM}, v{vM}, v{vT0}")
        for i in range(16):
            a(f"v_sub_f32 v{vC+i}, 0, v{vM}")

    def pipeline_init():
        for i in range(16):
            a(f"v_mov_b32 v{vO+i}, 0")
        for i in range(4, 8):
            a(f"v_mov_b32 v{vP+i}, 0")
        a(f"v_mov_b32 v{vAK}, v{vLane16}")
        a(f"ds_read_b128 {vr(vK,4)}, v{vAK}")
        a(f"ds_read_b128 {vr(vT,4)}, v{vAK} offset:1024")
        a("s_waitcnt lgkmcnt(0)")
        a(f"v_mfma_f32_32x32x16_bf16 {vr(vS[0],16)}, {vr(vK,4)}, {vr(vQ,4)}, {vr(vC,16)}")
        a(f"v_mfma_f32_32x32x16_bf16 {vr(vS[1],16)}, {vr(vT,4)}, {vr(vQ,4)}, {vr(vC,16)}")
        a(f"s_mov_b64 exec, s[{sMask}:{sMask+1}]")
        a(f"ds_read_b128 {vr(vV0,4)}, v{vAV}")
        a("s_mov_b64 exec, -1")
        a(f"ds_read_b128 {vr(vK,4)}, v{vAK} offset:2048")
        a("s_nop 15")

    def step(u):
        S = vS[u & 1]
        e = lambda i: a(f"v_exp_f32 v{vT+i}, v{S+i}")
        c = lambda i: a(f"v_cvt_pk_bf16_f32 v{vP+i}, v{vT+2*i}, v{vT+2*i+1}")
        e(0); e(1); e(2); c(0); e(3); e(4)
        a("s_waitcnt lgkmcnt(2)")
        a(f"v_mfma_f32_32x32x16_bf16 {vr(vO,16)}, {vr(vV1,4)}, {vr(vP+4,4)}, {vr(vO,16)}")
        if not OPT.get("noexec"): a(f"s_mov_b64 exec, s[{sMask}:{sMask+1}]")
        if not OPT.get("nolds"): a(f"ds_read_b128 {vr(vV1,4)}, v{vAV} offset:{(2*u+1)*512}")
        if not OPT.get("noexec"): a("s_mov_b64 exec, -1")
        c(1); e(5); e(6); c(2); e(7); e(8); c(3); e(9); e(10)
        a("s_waitcnt lgkmcnt(2)")
        a(f"v_mfma_f32_32x32x16_bf16 {vr(vO,16)}, {vr(vV0,4)}, {vr(vP,4)}, {vr(vO,16)}")
        if not OPT.get("noexec"): a(f"s_mov_b64 exec, s[{sMask}:{sMask+1}]")
        if not OPT.get("nolds"): a(f"ds_read_b128 {vr(vV0,4)}, v{vAV} offset:{(2*u+2)*512}")
        if not OPT.get("noexec"): a("s_mov_b64 exec, -1")
        e(11); c(4); e(12); c(5); e(13); e(14); c(6); e(15)
        a("s_waitcnt lgkmcnt(2)")
        a(f"v_mfma_f32_32x32x16_bf16 {vr(S,16)}, {vr(vK,4)}, {vr(vQ,4)}, {vr(vC,16)}")
        if not OPT.get("nolds"): a(f"ds_read_b128 {vr(vK,4)}, v{vAK} offset:{(u+3)*1024}")
        c(7)

    def main_loop(sync, lbl):
        a(f"s_mov_b32 s{sIt}, 8")
        a.label(lbl)
        for u in range(8):
            step(u)
        a(f"v_add_u32 v{vAK}, 8192, v{vAK}")
        a(f"v_add_u32 v{vAV}, 8192, v{vAV}")
        if sync and not OPT.get("nosync"):
            a("s_waitcnt vmcnt(2)")
            a("s_barrier")
            a(f"s_min_u32 s25, s{sCh}, 7")
            dma_chunk(chunk_sreg=25)
            a(f"s_add_u32 s{sCh}, s{sCh}, 1")
        a(f"s_sub_u32 s{sIt}, s{sIt}, 1")
        a(f"s_cmp_lg_u32 s{sIt}, 0")
        a(f"s_cbranch_scc1 {lbl}")
        a("s_waitcnt lgkmcnt(0)")
        a(f"v_mfma_f32_32x32x16_bf16 {vr(vO,16)}, {vr(vV1,4)}, {vr(vP+4,4)}, {vr(vO,16)}")

    first_max_and_C()
    bcast_negmax()
    pipeline_init()
    stamp(a, 46)
    main_loop(True, f"{name}_loop")
    stamp(a, 48)
    a.label(f"{name}_epi")
    a("s_nop 15")
    a("s_nop 3")
    a(f"s_cmp_lg_u32 s{sRetry}, 0")
    a(f"s_cbranch_scc1 {name}_fin")
    a(f"v_mov_b32 v{vT0}, 0x5d800000")
    a(f"v_cmp_nle_f32 vcc, v{vO+8}, v{vT0}")
    a("s_nop 4")
    a(f"s_cbranch_vccnz {name}_fallback")
    a.label(f"{name}_fin")
    a(f"v_rcp_f32 v{vT0}, v{vO+8}")
    a("s_nop 0")
    for i in range(8):
        a(f"v_mul_f32 v{vO+i}, v{vO+i}, v{vT0}")
    for i in range(4):
        a(f"v_cvt_pk_bf16_f32 v{vP+i}, v{vO+2*i}, v{vO+2*i+1}")
    a(f"s_lshl_b32 s{sTmp}, s{sQb}, 3")
    a(f"s_add_u32 s{sTmp}, s{sTmp}, s{sW}")
    a(f"s_lshl_b32 s{sTmp}, s{sTmp}, 5")
    a(f"s_add_u32 s{sTmp}, s{sTmp}, s{sHead}")
    a(f"s_lshl_b32 s{sTmp}, s{sTmp}, 10")
    a(f"s_add_u32 s{sTmp}, s{sTmp}, {WS_O}")
    a(f"buffer_store_dwordx4 {vr(vP,4)}, v{vLane16}, s[{sSRD}:{sSRD+3}], s{sTmp} offen")
    if TIMING:
        stamp(a, 50)
        a("s_memrealtime s[56:57]")
        a(f"s_lshl_b32 s52, s2, 3")
        a(f"s_add_u32 s52, s52, s{sW}")
        stamp_store(a, [40, 42, 44, 46, 48, 50, 54, 56], vT0, vT1, sSRD, 52, 53)
    tl_exit(a, 1, sWS)
    a("s_endpgm")
    a.label(f"{name}_fallback")
    a(f"s_mov_b32 s{sRetry}, 1")
    a(f"v_mov_b32 v{vAK}, v{vLane16}")
    a(f"v_mov_b32 v{vM}, 0xff800000")
    a(f"s_mov_b32 s{sIt}, 64")
    a.label(f"{name}_maxloop")
    a(f"ds_read_b128 {vr(vK,4)}, v{vAK}")
    a("s_waitcnt lgkmcnt(0)")
    a(f"v_mfma_f32_32x32x16_bf16 {vr(vS[0],16)}, {vr(vK,4)}, {vr(vQ,4)}, 0")
    a(f"v_add_u32 v{vAK}, 1024, v{vAK}")
    a("s_nop 15")
    a("s_nop 3")
    S = vS[0]
    for i in range(0, 16, 2):
        a(f"v_max3_f32 v{vM}, v{vM}, v{S+i}, v{S+i+1}")
    a(f"s_sub_u32 s{sIt}, s{sIt}, 1")
    a(f"s_cmp_lg_u32 s{sIt}, 0")
    a(f"s_cbranch_scc1 {name}_maxloop")
    bcast_negmax()
    a(f"v_subrev_u32 v{vAV}, 65536, v{vAV}")
    a(f"s_mov_b64 exec, s[{sMask}:{sMask+1}]")
    for i in range(4):
        a(f"v_mov_b32 v{vV1+i}, 0")
    a("s_mov_b64 exec, -1")
    pipeline_init()
    main_loop(False, f"{name}_loop2")
    a(f"s_branch {name}_epi")
    a.label(f"{name}_end")
    a("s_endpgm")
    return nv

HEADER = """; Kernarg layout for this problem (96 bytes, ptrs only, base s[0:1]):
"""

def build(kernels, launches, path):
    a = Asm()
    descs = []
    for (name, fn, kw) in kernels:
        nv = fn(a, name)
        descs.append(kernel_desc(name, nv, **kw))
    txt = HEADER
    for (k, g, b, lds) in launches:
        txt += f"; @launch kernel={k} grid=({g},1,1) block=({b},1,1) lds={lds}\n"
    txt += '.amdgcn_target "amdgcn-amd-amdhsa--gfx950"\n.text\n'
    txt += a.text()
    txt += '.section .rodata,"a"\n' + "".join(descs)
    open(path, "w").write(txt)

if __name__ == "__main__":
    mode = sys.argv[1]; path = sys.argv[2]
    TIMING = "t" in sys.argv[3:]
    TL["on"] = "tl" in sys.argv[3:]
    for o in sys.argv[3:]:
        OPT[o] = True
    K = dict(k1=("k1_kernel", gen_k1, dict(sgpr=102), ("k1_kernel", 251, 256, 131072)),
             attn=("attn_kernel", gen_attn, dict(sgpr=102), ("attn_kernel", 256, 512, 131072)),
             attn2=("attn_kernel", gen_attn2, dict(sgpr=102), ("attn_kernel", 256, 512, 131072 + 8*2304)),
             k1v2=("k1_kernel", gen_k1v2, dict(sgpr=102), ("k1_kernel", 256, 768, 163840)),
             k2=("k2_kernel", gen_k2, dict(sgpr=102), ("k2_kernel", 256, 768, 163840)),
             f2=("f2_kernel", gen_f2, dict(sgpr=102), ("f2_kernel", 297, 256, 32768)),
             k3=("k3_kernel", gen_k3, dict(sgpr=102), ("k3_kernel", 256, 256, 131072)))
    sel = dict(all=["k1", "attn", "f2", "k3"], all2=["k1", "attn2", "f2", "k3"], all3=["k1v2", "attn2", "f2", "k3"], all4=["k1v2", "k2", "k3"]).get(mode, mode.split(","))
    build([K[k][:3] for k in sel], [K[k][3] for k in sel], path)
```

```python
from asmlib import *
from common import *
import struct
def f2u(f): return struct.unpack("<I", struct.pack("<f", f))[0]
QSCALE = 0.25 * 1.4426950408889634

WS_FLAG = 14 * (1 << 20) + 65536
FL_Q, FL_F1, FL_E, FL_D, FL_O = 0, 256, 512, 768, 1024
FSH = 5
LDS_CNT = 131072
C_NONCE, C_GO, C_KV0, C_KV, C_GO2, C_R0, C_R1, C_F, C_ADONE, C_GO3 = [LDS_CNT + 4*i for i in range(10)]
C_X = LDS_CNT + 48
C_W = LDS_CNT + 64
C_Y = LDS_CNT + 72
C_SLOT = LDS_CNT + 80
C_RDY = LDS_CNT + 128
C_QUE = LDS_CNT + 192
LDS_RED = LDS_CNT + 256
NBUF = 4
FB = 24576
NFB = 5
K1_SCHED = [[(2,0),(2,1),(3,0)], [(3,1)], [(4,0),(4,1)], [(5,0),(5,1)], [(6,0),(6,1)], [(7,0),(7,1)], [], []]
SPIN_MAX = 1 << 16
SC = " sc1"

sX, sWq, sWo, sSre, sSim, sHre, sHim, sGate, sOut, sDbg, sWS = 4, 6, 8, 12, 14, 16, 18, 20, 22, 24, 26
sW, sN = 28, 29
srdWS, srdA, srdB, srdC = 32, 36, 40, 44
sT0, sT1, sT2, sT3 = 48, 49, 50, 51

def gpoll(a, vaddr, vdat, label, scnt):
    a(f"s_mov_b32 s{scnt}, {SPIN_MAX}")
    a.label(label)
    a(f"global_load_dword v{vdat}, v{vaddr}, s[{sWS}:{sWS+1}] sc1")
    a("s_waitcnt vmcnt(0)")
    a(f"v_cmp_ne_u32 vcc, s{sN}, v{vdat}")
    a(f"s_sub_u32 s{scnt}, s{scnt}, 1")
    a(f"s_cbranch_scc1 {label}_ok")
    a("s_nop 2")
    a(f"s_cbranch_vccz {label}_ok")
    a("s_sleep 6")
    a(f"s_branch {label}")
    a.label(f"{label}_ok")

def lwait(a, vaddr, vtmp, stmp, off, target, label, sleep=1):
    a(f"v_mov_b32 v{vaddr}, {off}" if isinstance(off, int) else f"v_mov_b32 v{vaddr}, {off}")
    a(f"s_mov_b32 s{sT3}, {SPIN_MAX*16}")
    a.label(label)
    a(f"ds_read_b32 v{vtmp}, v{vaddr}")
    a("s_waitcnt lgkmcnt(0)")
    a(f"v_readfirstlane_b32 s{stmp}, v{vtmp}")
    a(f"s_sub_u32 s{sT3}, s{sT3}, 1")
    a(f"s_cbranch_scc1 {label}_ok")
    a("s_nop 1")
    a(f"s_cmp_ge_u32 s{stmp}, {target}")
    a(f"s_cbranch_scc1 {label}_ok")
    if sleep: a(f"s_sleep {sleep}")
    a(f"s_branch {label}")
    a.label(f"{label}_ok")

def lsig(a, vaddr, vtmp, off):
    a(f"v_mov_b32 v{vaddr}, {off}")
    a(f"v_mov_b32 v{vtmp}, 1")
    a("s_mov_b64 exec, 1")
    a(f"ds_add_u32 v{vaddr}, v{vtmp}")
    a("s_mov_b64 exec, -1")

def publish(a, vaddr, vtmp, sidx):
    a(f"s_lshl_b32 s{sT3}, s{sidx}, {FSH}")
    a(f"s_add_u32 s{sT3}, s{sT3}, {WS_FLAG}")
    a(f"v_mov_b32 v{vaddr}, s{sT3}")
    a(f"v_mov_b32 v{vtmp}, s{sN}")
    a("s_mov_b64 exec, 1")
    a(f"global_store_dword v{vaddr}, v{vtmp}, s[{sWS}:{sWS+1}] sc1")
    a("s_mov_b64 exec, -1")

def read_nonce(a, vaddr, vtmp):
    a(f"v_mov_b32 v{vaddr}, {C_NONCE}")
    a(f"ds_read_b32 v{vtmp}, v{vaddr}")
    a("s_waitcnt lgkmcnt(0)")
    a(f"v_readfirstlane_b32 s{sN}, v{vtmp}")
    a("s_nop 3")

def gen_fused(a, name):
    R = RegAlloc(0, 168)
    R.alloc("tid")
    vLane = R.alloc("lane"); vL16 = R.alloc("l16")
    vT0 = R.alloc("t0"); vT1 = R.alloc("t1"); vT2 = R.alloc("t2"); vT3 = R.alloc("t3")
    base = R.next
    nvmax = [0]
    sTok0, sN0, sNb, sSign, sWm, sWn = 52, 53, 54, 55, 56, 57
    sXoff, sWoff, sLdsX, sLdsW = 58, 59, 60, 61

    a.raw(kernel_header(name))
    a("s_cmp_ge_u32 s2, 256")
    a(f"s_cbranch_scc1 {name}_end")
    tl_entry(a)
    a("s_load_dwordx16 s[4:19], s[0:1], 0")
    a("s_load_dwordx8 s[20:27], s[0:1], 64")
    a(f"v_lshrrev_b32 v{vT0}, 6, v0")
    a(f"v_and_b32 v{vLane}, 63, v0")
    a(f"v_readfirstlane_b32 s{sW}, v{vT0}")
    a(f"v_lshlrev_b32 v{vL16}, 4, v{vLane}")
    a("s_cmp_ge_u32 s2, 192")
    a(f"s_cbranch_scc1 {name}_decF")
    a(f"s_and_b32 s{sT0}, s2, 7")
    a(f"s_lshr_b32 s{sT1}, s2, 3")
    a(f"s_lshr_b32 s{sT2}, s{sT0}, 1")
    a(f"s_lshl_b32 s{sT2}, s{sT2}, 2")
    a(f"s_and_b32 s{sTok0}, s{sT1}, 3")
    a(f"s_add_u32 s{sTok0}, s{sTok0}, s{sT2}")
    a(f"s_and_b32 s{sT0}, s{sT0}, 1")
    a(f"s_mul_i32 s{sT0}, s{sT0}, 6")
    a(f"s_lshr_b32 s{sNb}, s{sT1}, 2")
    a(f"s_add_u32 s{sNb}, s{sNb}, s{sT0}")
    a(f"s_lshl_b32 s62, s{sNb}, 4")
    a(f"s_add_u32 s62, s62, s{sTok0}")
    a(f"s_lshl_b32 s{sTok0}, s{sTok0}, 7")
    a(f"s_lshl_b32 s{sN0}, s{sNb}, 7")
    a(f"s_branch {name}_dec")
    a.label(f"{name}_decF")
    a(f"s_sub_u32 s{sT0}, s2, 192")
    a(f"s_add_u32 s62, s{sT0}, {FL_F1}")
    a(f"s_lshr_b32 s{sT1}, s{sT0}, 3")
    a(f"s_lshr_b32 s{sSign}, s{sT1}, 2")
    a(f"s_and_b32 s{sT1}, s{sT1}, 3")
    a(f"s_and_b32 s{sNb}, s{sT0}, 1")
    a(f"s_bfe_u32 s{sT2}, s{sT0}, 0x20001")
    a(f"s_lshl_b32 s{sT3}, s{sT2}, 3")
    a(f"s_lshr_b32 s{sT3}, 0x040c0800, s{sT3}")
    a(f"s_and_b32 s{sT3}, s{sT3}, 0xff")
    a(f"s_add_u32 s{sT1}, s{sT1}, s{sT3}")
    a(f"s_lshl_b32 s{sTok0}, s{sT1}, 6")
    a(f"s_lshl_b32 s{sN0}, s{sNb}, 7")
    a.label(f"{name}_dec")
    a(f"s_cmp_ge_u32 s{sW}, 8")
    a(f"s_cbranch_scc1 {name}_edge")
    a(f"s_cmp_lt_u32 s{sW}, 4")
    a(f"s_cbranch_scc1 {name}_cons")

    Rl = RegAlloc(base, 168)
    vOffX = [Rl.alloc("offX0"), Rl.alloc("offX1")]
    vOffW = Rl.alloc("offW")
    vRowMain = Rl.alloc("rowmain", 2); vRowMir = Rl.alloc("rowmir", 2)
    vWr = Rl.alloc("wr")
    vSt = Rl.alloc("stage", 64)
    vFo = Rl.alloc("fold", 8)
    nvmax[0] = max(nvmax[0], Rl.next)
    sLW = 63
    a(f"s_sub_u32 s{sLW}, s{sW}, 4")
    a(f"v_lshrrev_b32 v{vT0}, 3, v{vLane}")
    a(f"v_lshlrev_b32 v{vT0}, 10, v{vT0}")
    a(f"v_lshrrev_b32 v{vT1}, 4, v{vLane}")
    a(f"v_and_b32 v{vT2}, 7, v{vLane}")
    for p in range(2):
        a(f"v_add_u32 v{vT3}, {4*p}, v{vT1}")
        a(f"v_xor_b32 v{vT3}, v{vT3}, v{vT2}")
        a(f"v_lshlrev_b32 v{vT3}, 4, v{vT3}")
        a(f"v_add_u32 v{vOffX[p]}, v{vT0}, v{vT3}")
    a("s_cmp_ge_u32 s2, 192")
    a(f"s_cbranch_scc1 {name}_lF")
    a(f"v_lshrrev_b32 v{vT0}, 4, v{vLane}")
    a(f"v_mul_u32_u24 v{vT1}, 3072, v{vT0}")
    a(f"v_bfe_u32 v{vT2}, v{vLane}, 2, 2")
    a(f"v_xor_b32 v{vT2}, v{vT2}, v{vT0}")
    a(f"v_lshlrev_b32 v{vT2}, 6, v{vT2}")
    a(f"v_add_u32 v{vT1}, v{vT1}, v{vT2}")
    a(f"v_and_b32 v{vT2}, 3, v{vLane}")
    a(f"v_lshlrev_b32 v{vT2}, 4, v{vT2}")
    a(f"v_add_u32 v{vOffW}, v{vT1}, v{vT2}")
    a(f"s_lshl_b32 s{sT0}, s{sLW}, 5")
    a(f"s_add_u32 s{sT0}, s{sT0}, s{sTok0}")
    a(f"s_lshl_b32 s{sXoff}, s{sT0}, 10")
    a(f"s_mul_i32 s{sWoff}, s{sLW}, {16*3072}")
    a(f"s_lshl_b32 s{sT0}, s{sN0}, 1")
    a(f"s_add_u32 s{sWoff}, s{sWoff}, s{sT0}")
    a(f"s_lshl_b32 s{sLdsX}, s{sLW}, 12")
    a(f"s_add_u32 s{sLdsW}, s{sLdsX}, 16384")
    a("s_waitcnt lgkmcnt(0)")
    srd(a, srdA, sX, 2048*1024)
    srd(a, srdB, sWq, 512*3072)
    vm = Vm(a)
    def dma_qkv(st, half=None):
        buf = (st % NBUF) * 32768
        for m in (range(4) if half is None else range(2*half, 2*half+2)):
            a(f"s_add_u32 m0, s{sLdsX}, {buf + m*1024}")
            a(f"s_add_u32 s{sT0}, s{sXoff}, {m*8192 + st*128}")
            a(f"buffer_load_dwordx4 v{vOffX[m&1]}, s[{srdA}:{srdA+3}], s{sT0} offen lds")
            a(f"s_add_u32 m0, s{sLdsW}, {buf + m*1024}")
            a(f"s_add_u32 s{sT0}, s{sWoff}, {(st*64 + 4*m)*3072}")
            a(f"buffer_load_dwordx4 v{vOffW}, s[{srdB}:{srdB+3}], s{sT0} offen lds")
        vm.issue(("S", st), 8 if half is None else 4)
    tl_stamp(a, 0)
    dma_qkv(0); dma_qkv(1)
    for i in range(8):
        vm.wait(("S", i))
        a("s_barrier")
        for (st, h) in K1_SCHED[i]:
            assert st < NBUF or st - NBUF + 2 <= i, (st, i)
            dma_qkv(st, h)
    a("s_barrier")
    tl_stamp(a, 1)
    a(f"s_branch {name}_attn")

    a.label(f"{name}_lF")
    a(f"s_cmp_eq_u32 s{sSign}, 0")
    a(f"s_cbranch_scc1 {name}_lFa")
    a("s_waitcnt lgkmcnt(0)")
    srd(a, srdB, sHim, 512*1024)
    a(f"s_mov_b32 s{srdC}, 0x0000bf80")
    a(f"s_mov_b32 s{srdC+1}, 0xbf800000")
    a(f"s_branch {name}_lFgo")
    a.label(f"{name}_lFa")
    a("s_waitcnt lgkmcnt(0)")
    srd(a, srdB, sHre, 512*1024)
    a(f"s_mov_b32 s{srdC}, 0x00003f80")
    a(f"s_mov_b32 s{srdC+1}, 0x3f800000")
    a.label(f"{name}_lFgo")
    a(f"s_mov_b32 s{srdC+2}, 0x00003f80")
    a(f"s_mov_b32 s{srdC+3}, 0x3f800000")
    a(f"s_lshl_b32 s{sT0}, s{sLW}, 4")
    a(f"s_add_u32 s{sT0}, s{sT0}, s{sTok0}")
    a(f"v_lshrrev_b32 v{vT0}, 3, v{vLane}")
    a(f"v_add_u32 v{vT0}, s{sT0}, v{vT0}")
    for m in range(2):
        a(f"v_add_u32 v{vT1}, {8*m}, v{vT0}")
        a(f"v_and_b32 v{vT2}, 1023, v{vOffX[m&1]}")
        a(f"v_lshl_add_u32 v{vRowMain+m}, v{vT1}, 10, v{vT2}")
        a(f"v_sub_u32 v{vT1}, 2048, v{vT1}")
        a(f"v_lshl_add_u32 v{vRowMir+m}, v{vT1}, 10, v{vT2}")
    a(f"s_lshl_b32 s{sT0}, s{sLW}, 5")
    a(f"s_add_u32 s{sT0}, s{sT0}, s{sN0}")
    a(f"s_lshl_b32 s{sWoff}, s{sT0}, 10")
    a(f"s_lshl_b32 s{sLdsW}, s{sLW}, 12")
    a(f"s_add_u32 s{sLdsW}, s{sLdsW}, 8192")
    a(f"s_lshl_b32 s{sT0}, s{sLW}, 11")
    a(f"v_add_u32 v{vWr}, s{sT0}, v{vL16}")
    srd(a, srdA, sX, 2048*1024)
    vm = Vm(a)
    def f_loadA(st):
        b = vSt + (st & 3) * 16
        a(f"s_mov_b32 s{sT0}, {st*128}")
        for m in range(2):
            a(f"buffer_load_dwordx4 {vr(b+8*m,4)}, v{vRowMain+m}, s[{srdA}:{srdA+3}], s{sT0} offen")
            a(f"buffer_load_dwordx4 {vr(b+8*m+4,4)}, v{vRowMir+m}, s[{srdA}:{srdA+3}], s{sT0} offen")
        vm.issue(("A", st), 4)
    def f_dmaB(st):
        buf = (st % NFB) * FB
        for m in range(4):
            a(f"s_add_u32 m0, s{sLdsW}, {buf + m*1024}")
            a(f"s_add_u32 s{sT0}, s{sWoff}, {m*8192 + st*128}")
            a(f"buffer_load_dwordx4 v{vOffX[m&1]}, s[{srdB}:{srdB+3}], s{sT0} offen lds")
        vm.issue(("B", st), 4)
    def f_fold(st):
        b = vSt + (st & 3) * 16
        buf = (st % NFB) * FB
        for m in range(2):
            M = b + 8*m; Mi = M + 4
            for q in range(4):
                a(f"v_dot2_f32_bf16 v{vFo+2*q}, v{M+q}, s{srdC+2}, 0")
                a(f"v_dot2_f32_bf16 v{vFo+2*q+1}, v{M+q}, s{srdC+3}, 0")
            for q in range(4):
                a(f"v_dot2c_f32_bf16 v{vFo+2*q}, s{srdC}, v{Mi+q}")
                a(f"v_dot2c_f32_bf16 v{vFo+2*q+1}, s{srdC+1}, v{Mi+q}")
            for q in range(4):
                a(f"v_cvt_pk_bf16_f32 v{M+q}, v{vFo+2*q}, v{vFo+2*q+1}")
            if buf + m*1024 <= 65000:
                a(f"ds_write_b128 v{vWr}, {vr(M,4)} offset:{buf + m*1024}")
            else:
                a(f"v_add_u32 v{vT0}, {buf + m*1024}, v{vWr}")
                a(f"ds_write_b128 v{vT0}, {vr(M,4)}")
    tl_stamp(a, 0)
    for st in range(3):
        f_loadA(st); f_dmaB(st)
    for i in range(8):
        vm.wait(("A", i))
        f_fold(i)
        vm.wait(("B", i))
        a("s_waitcnt lgkmcnt(0)")
        a("s_barrier")
        if i == 0:
            f_loadA(3); f_dmaB(3); f_loadA(4); f_dmaB(4)
        elif i + 4 < 8:
            f_loadA(i + 4)
        if i >= 2 and i + 3 < 8:
            f_dmaB(i + 3)
    a("s_barrier")
    tl_stamp(a, 1)
    a(f"s_branch {name}_attn")

    a.label(f"{name}_cons")
    Rc = RegAlloc(base, 168)
    vX = [[Rc.alloc(f"X{s}{j}") for j in range(4)] for s in range(3)]
    vW = [[Rc.alloc(f"W{s}{f}") for f in range(2)] for s in range(2)]
    vH = [[Rc.alloc(f"H{s}{j}") for j in range(4)] for s in range(3)]
    fX = [[Rc.alloc(f"fX{s}{t}", 4) for t in range(2)] for s in range(3)]
    fW = [[Rc.alloc(f"fW{s}{f}", 4) for f in range(2)] for s in range(3)]
    acc = [[Rc.alloc(f"acc{f}{t}", 16) for t in range(2)] for f in range(2)]
    nvmax[0] = max(nvmax[0], Rc.next)
    a(f"s_lshr_b32 s{sWm}, s{sW}, 1")
    a(f"s_and_b32 s{sWn}, s{sW}, 1")
    a(f"v_and_b32 v{vT0}, 31, v{vLane}")
    a(f"v_lshrrev_b32 v{vT1}, 5, v{vLane}")
    a(f"v_lshrrev_b32 v{vT2}, 1, v{vT0}")
    a(f"v_and_b32 v{vT2}, 7, v{vT2}")
    a(f"v_xor_b32 v{vT2}, v{vT2}, v{vT1}")
    a(f"v_lshlrev_b32 v{vT2}, 4, v{vT2}")
    a(f"v_lshlrev_b32 v{vT0}, 7, v{vT0}")
    a(f"v_add_u32 v{vT0}, v{vT0}, v{vT2}")
    a("s_cmp_ge_u32 s2, 192")
    a(f"s_cbranch_scc1 {name}_cF")
    a(f"s_lshl_b32 s{sT0}, s{sWn}, 13")
    for j in range(4):
        a(f"v_xor_b32 v{vT3}, {j*32}, v{vT0}")
        a(f"v_add_u32 v{vX[0][j]}, s{sT0}, v{vT3}")
        a(f"v_add_u32 v{vX[1][j]}, 65536, v{vX[0][j]}")
    a(f"v_bfe_u32 v{vT0}, v{vLane}, 2, 2")
    a(f"v_lshrrev_b32 v{vT1}, 5, v{vLane}")
    a(f"v_lshlrev_b32 v{vT1}, 3, v{vT1}")
    a(f"v_add_u32 v{vT1}, v{vT1}, v{vT0}")
    a(f"v_lshlrev_b32 v{vT1}, 8, v{vT1}")
    a(f"v_bfe_u32 v{vT2}, v{vLane}, 4, 1")
    a(f"v_lshlrev_b32 v{vT2}, 5, v{vT2}")
    a(f"v_add_u32 v{vT1}, v{vT1}, v{vT2}")
    a(f"v_and_b32 v{vT2}, 3, v{vLane}")
    a(f"v_lshlrev_b32 v{vT2}, 3, v{vT2}")
    a(f"v_add_u32 v{vT1}, v{vT1}, v{vT2}")
    a(f"v_add_u32 v{vT1}, 16384, v{vT1}")
    a(f"s_lshl_b32 s{sT0}, s{sWm}, 1")
    for f in range(2):
        a(f"s_add_u32 s{sT1}, s{sT0}, {f}")
        a(f"v_xor_b32 v{vT2}, s{sT1}, v{vT0}")
        a(f"v_lshlrev_b32 v{vT2}, 6, v{vT2}")
        a(f"v_add_u32 v{vW[0][f]}, v{vT1}, v{vT2}")
        a(f"v_add_u32 v{vW[1][f]}, 65536, v{vW[0][f]}")
    for f in range(2):
        for t in range(2):
            for i in range(16):
                a(f"v_mov_b32 v{acc[f][t]+i}, 0")
    a("s_waitcnt lgkmcnt(0)")
    srd(a, srdWS, sWS, WS_SIZE_USED)
    def reads_qkv(st, j, s):
        buf = st % NBUF; hi = buf >> 1; boff = (buf & 1) * 32768
        for t in range(2):
            a(f"ds_read_b128 {vr(fX[s][t],4)}, v{vX[hi][j]} offset:{boff + t*4096}")
        for f in range(2):
            for u in range(2):
                a(f"ds_read_b64_tr_b16 {vr(fW[s][f]+2*u,2)}, v{vW[hi][f]} offset:{boff + (16*j+4*u)*256}")
    def mfmas(s, vtype):
        for f in range(2):
            for t in range(2):
                if vtype:
                    a(f"v_mfma_f32_32x32x16_bf16 {vr(acc[f][t],16)}, {vr(fX[s][t],4)}, {vr(fW[s][f],4)}, {vr(acc[f][t],16)}")
                else:
                    a(f"v_mfma_f32_32x32x16_bf16 {vr(acc[f][t],16)}, {vr(fW[s][f],4)}, {vr(fX[s][t],4)}, {vr(acc[f][t],16)}")
    def consume(reads, nreads, domf):
        a("s_barrier")
        tl_stamp(a, 0)
        reads(0, 0, 0)
        reads(0, 1, 1)
        for n in range(32):
            nn = n + 2
            if nn < 32:
                if nn % 4 == 0:
                    a("s_barrier")
                reads(nn // 4, nn % 4, nn % 3)
                a(f"s_waitcnt lgkmcnt({2*nreads})")
            elif nn == 32:
                a(f"s_waitcnt lgkmcnt({nreads})")
            else:
                a("s_waitcnt lgkmcnt(0)")
            domf(n % 3)
        tl_stamp(a, 1)
    def finish_A():
        a("s_waitcnt vmcnt(0)")
        a("s_barrier")
        tl_stamp(a, 2)
        a(f"s_cmp_lg_u32 s{sW}, 0")
        a(f"s_cbranch_scc1 {name}_attn")
        read_nonce(a, vT0, vT1)
        publish(a, vT0, vT1, 62)
        a(f"s_branch {name}_attn")
    a(f"s_cmp_ge_u32 s{sNb}, 8")
    a(f"s_cbranch_scc1 {name}_vtype")
    consume(reads_qkv, 6, lambda s: mfmas(s, False))
    a(f"s_cmp_lt_u32 s{sNb}, 4")
    a(f"s_cselect_b32 s{sT2}, {f2u(QSCALE)}, 1.0")
    a(f"s_cselect_b32 s{sT0}, {WS_Q}, {WS_K}")
    a(f"s_and_b32 s{sT1}, s{sNb}, 3")
    a(f"s_lshl_b32 s{sT1}, s{sT1}, 3")
    a(f"s_lshl_b32 s{sT3}, s{sWm}, 2")
    a(f"s_add_u32 s{sT1}, s{sT1}, s{sT3}")
    a(f"s_lshl_b32 s{sT1}, s{sT1}, 16")
    a(f"s_add_u32 s{sT0}, s{sT0}, s{sT1}")
    a(f"s_lshr_b32 s{sT1}, s{sTok0}, 5")
    a(f"s_lshl_b32 s{sT3}, s{sWn}, 1")
    a(f"s_add_u32 s{sT1}, s{sT1}, s{sT3}")
    a(f"s_lshl_b32 s{sT1}, s{sT1}, 10")
    a(f"s_add_u32 s{sT0}, s{sT0}, s{sT1}")
    a("s_nop 3")
    a(f"s_cmp_lt_u32 s{sNb}, 4")
    a(f"s_cbranch_scc0 {name}_noscale")
    for f in range(2):
        for t in range(2):
            for i in range(16):
                a(f"v_mul_f32 v{acc[f][t]+i}, s{sT2}, v{acc[f][t]+i}")
    a.label(f"{name}_noscale")
    for f in range(2):
        for t in range(2):
            A = acc[f][t]
            P = fX[(f*2+t) % 3][0]
            for i in range(8):
                a(f"v_cvt_pk_bf16_f32 v{P+i}, v{A+2*i}, v{A+2*i+1}")
            for hh in range(2):
                a(f"s_add_u32 s{sT1}, s{sT0}, {(f*2+hh)*65536 + t*1024}")
                a(f"buffer_store_dwordx4 {vr(P+4*hh,4)}, v{vL16}, s[{srdWS}:{srdWS+3}], s{sT1} offen{SC}")
    finish_A()
    a.label(f"{name}_vtype")
    consume(reads_qkv, 6, lambda s: mfmas(s, True))
    a(f"s_sub_u32 s{sT1}, s{sNb}, 8")
    a(f"s_lshl_b32 s{sT1}, s{sT1}, 3")
    a(f"s_lshl_b32 s{sT3}, s{sWm}, 2")
    a(f"s_add_u32 s{sT1}, s{sT1}, s{sT3}")
    a(f"s_lshl_b32 s{sT1}, s{sT1}, 16")
    a(f"s_add_u32 s{sT0}, s{sT1}, {WS_V}")
    a(f"s_lshr_b32 s{sT1}, s{sTok0}, 4")
    a(f"s_lshl_b32 s{sT3}, s{sWn}, 2")
    a(f"s_add_u32 s{sT1}, s{sT1}, s{sT3}")
    a(f"s_lshl_b32 s{sT1}, s{sT1}, 9")
    a(f"s_add_u32 s{sT0}, s{sT0}, s{sT1}")
    a(f"v_bfe_u32 v{vT0}, v{vLane}, 4, 1")
    a(f"v_lshlrev_b32 v{vT0}, 16, v{vT0}")
    a(f"v_lshrrev_b32 v{vT1}, 5, v{vLane}")
    a(f"v_lshlrev_b32 v{vT1}, 8, v{vT1}")
    a(f"v_add_u32 v{vT0}, v{vT0}, v{vT1}")
    a(f"v_and_b32 v{vT1}, 15, v{vLane}")
    a(f"v_lshlrev_b32 v{vT1}, 4, v{vT1}")
    a(f"v_add_u32 v{vT0}, v{vT0}, v{vT1}")
    for f in range(2):
        for t in range(2):
            A = acc[f][t]
            P = fX[(f*2+t) % 3][0]
            for i in range(8):
                a(f"v_cvt_pk_bf16_f32 v{P+i}, v{A+2*i}, v{A+2*i+1}")
            for g in range(2):
                a(f"s_add_u32 s{sT1}, s{sT0}, {f*2*65536 + (t*2+g)*512}")
                a(f"buffer_store_dwordx4 {vr(P+4*g,4)}, v{vT0}, s[{srdWS}:{srdWS+3}], s{sT1} offen{SC}")
    finish_A()
    a.label(f"{name}_cF")
    a(f"s_lshl_b32 s{sT0}, s{sWn}, 12")
    a(f"s_lshl_b32 s{sT1}, s{sWm}, 13")
    a(f"s_add_u32 s{sT1}, s{sT1}, 8192")
    for j in range(4):
        a(f"v_xor_b32 v{vT3}, {j*32}, v{vT0}")
        a(f"v_add_u32 v{vX[0][j]}, s{sT0}, v{vT3}")
        a(f"v_add_u32 v{vX[1][j]}, {2*FB}, v{vX[0][j]}")
        a(f"v_add_u32 v{vX[2][j]}, {4*FB}, v{vX[0][j]}")
        a(f"v_add_u32 v{vH[0][j]}, s{sT1}, v{vT3}")
        a(f"v_add_u32 v{vH[1][j]}, {2*FB}, v{vH[0][j]}")
        a(f"v_add_u32 v{vH[2][j]}, {4*FB}, v{vH[0][j]}")
    for f in range(2):
        for i in range(16):
            a(f"v_mov_b32 v{acc[f][0]+i}, 0")
    a("s_waitcnt lgkmcnt(0)")
    srd(a, srdWS, sWS, WS_SIZE_USED)
    def reads_f(st, j, s):
        buf = st % NFB; k = buf >> 1; boff = (buf & 1) * FB
        a(f"ds_read_b128 {vr(fX[s][0],4)}, v{vX[k][j]} offset:{boff}")
        for f in range(2):
            a(f"ds_read_b128 {vr(fW[s][f],4)}, v{vH[k][j]} offset:{boff + f*4096}")
    def mf_f(s):
        for f in range(2):
            a(f"v_mfma_f32_32x32x16_bf16 {vr(acc[f][0],16)}, {vr(fX[s][0],4)}, {vr(fW[s][f],4)}, {vr(acc[f][0],16)}")
    consume(reads_f, 3, mf_f)
    a(f"s_cmp_eq_u32 s{sSign}, 0")
    a(f"s_mov_b32 s{sT3}, {WS_B}")
    a(f"s_cselect_b32 s{sT0}, {WS_A}, s{sT3}")
    a(f"s_cselect_b32 s{sT2}, {A_KSTEPS}, 64")
    a(f"s_lshl_b32 s{sT1}, s{sNb}, 2")
    a(f"s_lshl_b32 s{sT3}, s{sWm}, 1")
    a(f"s_add_u32 s{sT1}, s{sT1}, s{sT3}")
    a(f"s_mul_i32 s{sT1}, s{sT1}, s{sT2}")
    a(f"s_lshr_b32 s{sT3}, s{sTok0}, 4")
    a(f"s_add_u32 s{sT1}, s{sT1}, s{sT3}")
    a(f"s_lshl_b32 s{sT3}, s{sWn}, 1")
    a(f"s_add_u32 s{sT1}, s{sT1}, s{sT3}")
    a(f"s_lshl_b32 s{sT1}, s{sT1}, 10")
    a(f"s_add_u32 s{sT0}, s{sT0}, s{sT1}")
    a(f"s_lshl_b32 s{sT2}, s{sT2}, 10")
    a("s_nop 7")
    for f in range(2):
        A = acc[f][0]
        P = fX[f][0]
        for i in range(8):
            a(f"v_cvt_pk_bf16_f32 v{P+i}, v{A+2*i}, v{A+2*i+1}")
        a("s_nop 1")
        for g in range(2):
            a(f"v_permlane32_swap_b32 v{P+4*g}, v{P+4*g+2}")
            a(f"v_permlane32_swap_b32 v{P+4*g+1}, v{P+4*g+3}")
        if f == 1:
            a(f"s_add_u32 s{sT0}, s{sT0}, s{sT2}")
        for g in range(2):
            a(f"s_add_u32 s{sT1}, s{sT0}, {g*1024}")
            a(f"buffer_store_dwordx4 {vr(P+4*g,4)}, v{vL16}, s[{srdWS}:{srdWS+3}], s{sT1} offen{SC}")
    finish_A()

    from gen_fused_b import gen_attn_part, gen_f_part
    gen_attn_part(a, name, base, nvmax, dict(vLane=vLane, vL16=vL16, vT0=vT0, vT1=vT1, vT2=vT2, vT3=vT3))
    gen_f_part(a, name, base, nvmax, dict(vLane=vLane, vL16=vL16, vT0=vT0, vT1=vT1, vT2=vT2, vT3=vT3))
    a.label(f"{name}_end")
    a("s_endpgm")
    return nvmax[0]
```

```python
from asmlib import *
from common import *
from gen_fused import *

PRIO_MODE = 1
sHead, sQb = 52, 53

def decode_hq(a):
    a(f"s_and_b32 s{sT0}, s2, 7")
    a(f"s_lshr_b32 s{sT1}, s2, 3")
    a(f"s_lshl_b32 s{sHead}, s{sT0}, 2")
    a(f"s_and_b32 s{sT0}, s{sT1}, 3")
    a(f"s_add_u32 s{sHead}, s{sHead}, s{sT0}")
    a(f"s_lshr_b32 s{sQb}, s{sT1}, 2")

def gen_attn_part(a, name, base, nvmax, V):
    vLane, vL16, vT0, vT1 = V["vLane"], V["vL16"], V["vT0"], V["vT1"]
    Ra = RegAlloc(base, 168)
    vAK = Ra.alloc("addrK"); vAV = Ra.alloc("addrV"); vM = Ra.alloc("m")
    vRd = Ra.alloc("rdaddr"); vRv = Ra.alloc("rdval")
    vQ = [Ra.alloc("Q0", 4), Ra.alloc("Q1", 4)]
    vK = Ra.alloc("K", 4); vV0 = Ra.alloc("V0", 4); vV1 = Ra.alloc("V1", 4)
    vP = Ra.alloc("P", 8)
    vS = [Ra.alloc("S0", 16), Ra.alloc("S1", 16)]
    vT = Ra.alloc("T", 16)
    vO = [Ra.alloc("O0", 16), Ra.alloc("O1", 16)]
    vC = [Ra.alloc("C0", 16), Ra.alloc("C1", 16)]
    nvmax[0] = max(nvmax[0], Ra.next)
    sKh, sQp, sIt, sMask, sRetry = 54, 55, 56, 58, 57
    a.label(f"{name}_attn")
    decode_hq(a)
    a(f"s_and_b32 s{sQp}, s{sW}, 3")
    a(f"s_lshr_b32 s{sKh}, s{sW}, 2")
    srd(a, srdWS, sWS, WS_SIZE_USED)
    a(f"s_mov_b32 s{sMask}, 0x0000ffff")
    a(f"s_mov_b32 s{sMask+1}, 0x0000ffff")
    a(f"s_mov_b32 s{sRetry}, 0")
    a(f"s_lshl_b32 s60, s{sKh}, 15")
    a(f"v_lshrrev_b32 v{vT0}, 5, v{vLane}")
    a(f"v_lshlrev_b32 v{vT0}, 8, v{vT0}")
    a(f"v_and_b32 v{vAV}, 15, v{vLane}")
    a(f"v_lshlrev_b32 v{vAV}, 4, v{vAV}")
    a(f"v_add_u32 v{vAV}, v{vAV}, v{vT0}")
    a(f"v_add_u32 v{vAV}, 65536, v{vAV}")
    a(f"v_add_u32 v{vAV}, s60, v{vAV}")
    a(f"v_and_b32 v{vAK}, 31, v{vLane}")
    a(f"v_mov_b32 v{vM}, 0x3f803f80")
    a(f"v_cmp_eq_u32 vcc, 16, v{vAK}")
    a(f"v_cmp_eq_u32 s[62:63], 20, v{vAK}")
    a("s_nop 1")
    a("s_or_b64 vcc, vcc, s[62:63]")
    a("s_nop 1")
    a(f"v_cndmask_b32 v{vT0}, 0, v{vM}, vcc")
    for i in range(4):
        a(f"v_mov_b32 v{vV0+i}, v{vT0}")
        a(f"v_mov_b32 v{vV1+i}, v{vT0}")
    for q in range(2):
        for i in range(16):
            a(f"v_mov_b32 v{vO[q]+i}, 0")
    for i in range(4, 8):
        a(f"v_mov_b32 v{vP+i}, 0")
    a(f"v_add_u32 v{vAK}, s60, v{vL16}")
    a(f"s_lshl_b32 s{sT0}, s{sHead}, 6")
    a(f"s_lshl_b32 s{sT1}, s{sQb}, 3")
    a(f"s_add_u32 s{sT0}, s{sT0}, s{sT1}")
    a(f"s_lshl_b32 s{sT1}, s{sQp}, 1")
    a(f"s_add_u32 s{sT0}, s{sT0}, s{sT1}")
    a(f"s_lshl_b32 s61, s{sT0}, 10")
    tl_stamp(a, 3)
    lwait(a, vT0, vT1, sT0, C_GO, 1, f"{name}_wgo", sleep=2)
    a(f"buffer_load_dwordx4 {vr(vQ[0],4)}, v{vL16}, s[{srdWS}:{srdWS+3}], s61 offen{SC}")
    a(f"buffer_load_dwordx4 {vr(vQ[1],4)}, v{vL16}, s[{srdWS}:{srdWS+3}], s61 offen offset:1024{SC}")
    tl_stamp(a, 4)
    lwait(a, vT0, vT1, sT0, C_RDY, 1, f"{name}_wr0", sleep=1)
    a(f"s_lshl_b32 s60, s{sKh}, 2")
    a(f"s_add_u32 s60, s60, {C_RDY}")
    lwait(a, vT0, vT1, sT0, "s60", 1, f"{name}_wr1", sleep=1)
    a(f"s_add_u32 s60, s60, 8")
    lwait(a, vT0, vT1, sT0, "s60", 1, f"{name}_wr2", sleep=1)
    a(f"v_add_u32 v{vRd}, 8, v{vT0}")
    a("s_waitcnt vmcnt(0)")
    tl_stamp(a, 5)

    def rowmax(S):
        a(f"v_max3_f32 v{vM}, v{S}, v{S+1}, v{S+2}")
        for i in range(3, 15, 2):
            a(f"v_max3_f32 v{vM}, v{vM}, v{S+i}, v{S+i+1}")
        a(f"v_max_f32 v{vM}, v{vM}, v{S+15}")
    def bcast_negmax(C):
        a(f"v_mov_b32 v{vT0}, v{vM}")
        a("s_nop 1")
        a(f"v_permlane32_swap_b32 v{vT0}, v{vM}")
        a("s_nop 1")
        a(f"v_max_f32 v{vM}, v{vM}, v{vT0}")
        a(f"v_sub_f32 v{C}, 0, v{vM}")
        for i in range(1, 16):
            a(f"v_mov_b32 v{C+i}, v{C}")
    a(f"ds_read_b128 {vr(vT,4)}, v{vL16}")
    a(f"ds_read_b128 {vr(vK,4)}, v{vAK}")
    a("s_waitcnt lgkmcnt(1)")
    a(f"v_mfma_f32_32x32x16_bf16 {vr(vS[0],16)}, {vr(vT,4)}, {vr(vQ[0],4)}, 0")
    a(f"v_mfma_f32_32x32x16_bf16 {vr(vS[1],16)}, {vr(vT,4)}, {vr(vQ[1],4)}, 0")
    a(f"s_mov_b64 exec, s[{sMask}:{sMask+1}]")
    a(f"ds_read_b128 {vr(vV0,4)}, v{vAV}")
    a("s_mov_b64 exec, -1")
    a("s_nop 8")
    rowmax(vS[0]); bcast_negmax(vC[0])
    a("s_waitcnt lgkmcnt(0)")
    a(f"v_mfma_f32_32x32x16_bf16 {vr(vS[0],16)}, {vr(vK,4)}, {vr(vQ[0],4)}, {vr(vC[0],16)}")
    rowmax(vS[1]); bcast_negmax(vC[1])
    a("s_nop 1")
    a(f"v_mfma_f32_32x32x16_bf16 {vr(vS[1],16)}, {vr(vK,4)}, {vr(vQ[1],4)}, {vr(vC[1],16)}")
    a(f"ds_read_b128 {vr(vK,4)}, v{vAK} offset:1024")
    tl_stamp(a, 6)

    def step(u, q):
        S = vS[q]
        e = lambda i: a(f"v_exp_f32 v{vT+i}, v{S+i}")
        c = lambda i: a(f"v_cvt_pk_bf16_f32 v{vP+i}, v{vT+2*i}, v{vT+2*i+1}")
        e(0); e(1); e(2); c(0); e(3); e(4)
        if q == 1:
            a("s_waitcnt lgkmcnt(0)")
        a(f"v_mfma_f32_32x32x16_bf16 {vr(vO[q^1],16)}, {vr(vV1,4)}, {vr(vP+4,4)}, {vr(vO[q^1],16)}")
        if q == 0:
            a(f"s_mov_b64 exec, s[{sMask}:{sMask+1}]")
            a(f"ds_read_b128 {vr(vV1,4)}, v{vAV} offset:{(2*u+1)*512}")
            a("s_mov_b64 exec, -1")
        c(1); e(5); e(6); c(2); e(7); e(8); c(3); e(9); e(10)
        if q == 0:
            a("s_waitcnt lgkmcnt(2)")
        a(f"v_mfma_f32_32x32x16_bf16 {vr(vO[q],16)}, {vr(vV0,4)}, {vr(vP,4)}, {vr(vO[q],16)}")
        if q == 1:
            a(f"s_mov_b64 exec, s[{sMask}:{sMask+1}]")
            a(f"ds_read_b128 {vr(vV0,4)}, v{vAV} offset:{(2*u+2)*512}")
            a("s_mov_b64 exec, -1")
        e(11); c(4); e(12); c(5); e(13); e(14); c(6); e(15)
        if q == 0:
            a("s_waitcnt lgkmcnt(1)")
        a(f"v_mfma_f32_32x32x16_bf16 {vr(S,16)}, {vr(vK,4)}, {vr(vQ[q],4)}, {vr(vC[q],16)}")
        if q == 1:
            a(f"ds_read_b128 {vr(vK,4)}, v{vAK} offset:{(u+2)*1024}")
        c(7)

    a(f"s_mov_b32 s{sIt}, 0")
    a("s_setprio 2")
    lbl = f"{name}_loop"
    a.label(lbl)
    for u in range(4):
        step(u, 0)
        if u == 1:
            a(f"ds_read_b32 v{vRv}, v{vRd}")
        step(u, 1)
    a(f"v_add_u32 v{vAK}, 4096, v{vAK}")
    a(f"v_add_u32 v{vAV}, 4096, v{vAV}")
    a(f"v_readfirstlane_b32 s{sT0}, v{vRv}")
    a(f"v_add_u32 v{vRd}, 8, v{vRd}")
    a(f"s_cmp_ge_u32 s{sIt}, 6")
    a(f"s_cbranch_scc1 {name}_nosync")
    a(f"s_cmp_lg_u32 s{sT0}, 0")
    a(f"s_cbranch_scc1 {name}_nosync")
    a(f"v_subrev_u32 v{vT0}, 8, v{vRd}")
    a(f"s_mov_b32 s{sT3}, {SPIN_MAX*16}")
    a.label(f"{name}_wrs")
    a(f"ds_read_b32 v{vT1}, v{vT0}")
    a("s_waitcnt lgkmcnt(0)")
    a(f"v_readfirstlane_b32 s{sT0}, v{vT1}")
    a(f"s_sub_u32 s{sT3}, s{sT3}, 1")
    a(f"s_cbranch_scc1 {name}_nosync")
    a("s_nop 1")
    a(f"s_cmp_lg_u32 s{sT0}, 0")
    a(f"s_cbranch_scc1 {name}_nosync")
    a("s_sleep 1")
    a(f"s_branch {name}_wrs")
    a.label(f"{name}_nosync")
    a(f"s_cmp_lg_u32 s{sIt}, 3")
    a(f"s_cbranch_scc1 {name}_p1")
    a("s_setprio 1")
    a.label(f"{name}_p1")
    a(f"s_cmp_lg_u32 s{sIt}, 5")
    a(f"s_cbranch_scc1 {name}_p2")
    a("s_setprio 0")
    a.label(f"{name}_p2")
    a(f"s_add_u32 s{sIt}, s{sIt}, 1")
    a(f"s_cmp_lg_u32 s{sIt}, 8")
    a(f"s_cbranch_scc1 {lbl}")
    a("s_nop 1")
    a(f"v_mfma_f32_32x32x16_bf16 {vr(vO[1],16)}, {vr(vV1,4)}, {vr(vP+4,4)}, {vr(vO[1],16)}")
    tl_stamp(a, 7)
    lwait(a, vT0, vT1, sT0, C_R1, 1, f"{name}_wf")
    a("s_nop 8")
    a(f"s_mul_i32 s{sT0}, s{sW}, 2304")
    a(f"s_add_u32 s{sT0}, s{sT0}, {LDS_RED}")
    a(f"v_add_u32 v{vT0}, s{sT0}, v{vL16}")
    a(f"v_lshrrev_b32 v{vT1}, 2, v{vL16}")
    a(f"v_add_u32 v{vT1}, s{sT0}, v{vT1}")
    a(f"s_cmp_eq_u32 s{sKh}, 0")
    a(f"s_cbranch_scc0 {name}_x1")
    a(f"ds_write_b128 v{vT0}, {vr(vO[1],4)}")
    a(f"ds_write_b128 v{vT0}, {vr(vO[1]+4,4)} offset:1024")
    a(f"ds_write_b32 v{vT1}, v{vO[1]+8} offset:2048")
    a(f"s_branch {name}_x2")
    a.label(f"{name}_x1")
    a(f"ds_write_b128 v{vT0}, {vr(vO[0],4)}")
    a(f"ds_write_b128 v{vT0}, {vr(vO[0]+4,4)} offset:1024")
    a(f"ds_write_b32 v{vT1}, v{vO[0]+8} offset:2048")
    for i in range(9):
        a(f"v_mov_b32 v{vO[0]+i}, v{vO[1]+i}")
    for i in range(4):
        a(f"v_mov_b32 v{vQ[0]+i}, v{vQ[1]+i}")
    a.label(f"{name}_x2")
    a("s_waitcnt lgkmcnt(0)")
    a(f"s_lshl_b32 s{sT0}, s{sQp}, 2")
    a(f"s_add_u32 s61, s{sT0}, {C_X}")
    lsig(a, vAK, vM, "s61")
    lwait(a, vAK, vM, sT0, "s61", 2, f"{name}_wx")
    a(f"s_xor_b32 s{sT0}, s{sW}, 4")
    a(f"s_mul_i32 s{sT0}, s{sT0}, 2304")
    a(f"s_add_u32 s{sT0}, s{sT0}, {LDS_RED}")
    a(f"v_add_u32 v{vT0}, s{sT0}, v{vL16}")
    a(f"v_lshrrev_b32 v{vT1}, 2, v{vL16}")
    a(f"v_add_u32 v{vT1}, s{sT0}, v{vT1}")
    a(f"ds_read_b128 {vr(vT,4)}, v{vT0}")
    a(f"ds_read_b128 {vr(vT+4,4)}, v{vT0} offset:1024")
    a(f"ds_read_b32 v{vT+8}, v{vT1} offset:2048")
    a("s_waitcnt lgkmcnt(0)")
    O = vO[0]
    for i in range(9):
        a(f"v_add_f32 v{O+i}, v{O+i}, v{vT+i}")
    a.label(f"{name}_epi")
    a(f"s_cmp_lg_u32 s{sRetry}, 0")
    a(f"s_cbranch_scc1 {name}_fin")
    a(f"v_mov_b32 v{vT0}, 0x5d800000")
    a(f"v_cmp_nle_f32 vcc, v{O+8}, v{vT0}")
    a("s_nop 4")
    a(f"s_cbranch_vccnz {name}_fallback")
    a.label(f"{name}_fin")
    a(f"v_rcp_f32 v{vT0}, v{O+8}")
    a("s_nop 0")
    for i in range(8):
        a(f"v_mul_f32 v{O+i}, v{O+i}, v{vT0}")
    for i in range(4):
        a(f"v_cvt_pk_bf16_f32 v{vP+i}, v{O+2*i}, v{O+2*i+1}")
    a(f"s_lshl_b32 s{sT0}, s{sQb}, 3")
    a(f"s_lshl_b32 s{sT1}, s{sQp}, 1")
    a(f"s_add_u32 s{sT0}, s{sT0}, s{sT1}")
    a(f"s_add_u32 s{sT0}, s{sT0}, s{sKh}")
    a(f"s_lshl_b32 s{sT0}, s{sT0}, 5")
    a(f"s_add_u32 s{sT0}, s{sT0}, s{sHead}")
    a(f"s_lshl_b32 s{sT0}, s{sT0}, 10")
    a(f"s_add_u32 s{sT0}, s{sT0}, {WS_O}")
    a(f"buffer_store_dwordx4 {vr(vP,4)}, v{vL16}, s[{srdWS}:{srdWS+3}], s{sT0} offen{SC}")
    read_nonce(a, vT0, vT1)
    a("s_waitcnt vmcnt(0)")
    a(f"v_mov_b32 v{vT0}, {C_ADONE}")
    a(f"v_mov_b32 v{vT1}, 1")
    a("s_mov_b64 exec, 1")
    a(f"ds_add_rtn_u32 v{vM}, v{vT0}, v{vT1}")
    a("s_waitcnt lgkmcnt(0)")
    a("s_mov_b64 exec, -1")
    a(f"v_readfirstlane_b32 s{sT0}, v{vM}")
    a("s_nop 3")
    a(f"s_cmp_lg_u32 s{sT0}, 7")
    a(f"s_cbranch_scc1 {name}_adone")
    a(f"s_lshl_b32 s61, s{sQb}, 5")
    a(f"s_add_u32 s61, s61, s{sHead}")
    a(f"s_add_u32 s61, s61, {FL_O}")
    publish(a, vT0, vT1, 61)
    a.label(f"{name}_adone")
    tl_stamp(a, 8)
    tl_exit(a, 1, sWS)
    a("s_endpgm")
    a.label(f"{name}_fallback")
    a(f"s_mov_b32 s{sRetry}, 1")
    a(f"v_mov_b32 v{vAK}, v{vL16}")
    a(f"v_mov_b32 v{vM}, 0xff800000")
    a(f"s_mov_b32 s{sIt}, 64")
    a.label(f"{name}_maxloop")
    a(f"ds_read_b128 {vr(vK,4)}, v{vAK}")
    a("s_waitcnt lgkmcnt(0)")
    a(f"v_mfma_f32_32x32x16_bf16 {vr(vS[0],16)}, {vr(vK,4)}, {vr(vQ[0],4)}, 0")
    a(f"v_add_u32 v{vAK}, 1024, v{vAK}")
    a("s_nop 15")
    a("s_nop 3")
    for i in range(0, 16, 2):
        a(f"v_max3_f32 v{vM}, v{vM}, v{vS[0]+i}, v{vS[0]+i+1}")
    a(f"s_sub_u32 s{sIt}, s{sIt}, 1")
    a(f"s_cmp_lg_u32 s{sIt}, 0")
    a(f"s_cbranch_scc1 {name}_maxloop")
    bcast_negmax(vC[0])
    for i in range(16):
        a(f"v_mov_b32 v{O+i}, 0")
    a(f"v_mov_b32 v{vAK}, v{vL16}")
    a(f"s_lshl_b32 s60, s{sKh}, 15")
    a(f"s_add_u32 s60, s60, 32768")
    a(f"v_subrev_u32 v{vAV}, s60, v{vAV}")
    a(f"s_mov_b32 s{sIt}, 64")
    a.label(f"{name}_redo")
    a(f"ds_read_b128 {vr(vK,4)}, v{vAK}")
    a(f"s_mov_b64 exec, s[{sMask}:{sMask+1}]")
    a(f"ds_read_b128 {vr(vV0,4)}, v{vAV}")
    a(f"ds_read_b128 {vr(vV1,4)}, v{vAV} offset:512")
    a("s_mov_b64 exec, -1")
    a("s_waitcnt lgkmcnt(0)")
    a(f"v_mfma_f32_32x32x16_bf16 {vr(vS[0],16)}, {vr(vK,4)}, {vr(vQ[0],4)}, {vr(vC[0],16)}")
    a(f"v_add_u32 v{vAK}, 1024, v{vAK}")
    a(f"v_add_u32 v{vAV}, 1024, v{vAV}")
    a("s_nop 15")
    a("s_nop 3")
    for i in range(16):
        a(f"v_exp_f32 v{vT+i}, v{vS[0]+i}")
    a("s_nop 0")
    for i in range(8):
        a(f"v_cvt_pk_bf16_f32 v{vP+i}, v{vT+2*i}, v{vT+2*i+1}")
    a("s_nop 1")
    a(f"v_mfma_f32_32x32x16_bf16 {vr(O,16)}, {vr(vV0,4)}, {vr(vP,4)}, {vr(O,16)}")
    a(f"v_mfma_f32_32x32x16_bf16 {vr(O,16)}, {vr(vV1,4)}, {vr(vP+4,4)}, {vr(O,16)}")
    a(f"s_sub_u32 s{sIt}, s{sIt}, 1")
    a(f"s_cmp_lg_u32 s{sIt}, 0")
    a(f"s_cbranch_scc1 {name}_redo")
    a("s_nop 15")
    a("s_nop 3")
    a(f"s_branch {name}_epi")

def gen_f_part(a, name, base, nvmax, V):
    vLane, vL16, vT0, vT1, vT2, vT3 = V["vLane"], V["vL16"], V["vT0"], V["vT1"], V["vT2"], V["vT3"]
    sF = 54
    a.label(f"{name}_edge")
    Re = RegAlloc(base, 168)
    vG = Re.alloc("G", 4); vA = Re.alloc("rowA", 4); vB = Re.alloc("rowB", 4)
    vR = Re.alloc("R", 4); vX1 = Re.alloc("x1024", 4); vRe = Re.alloc("rerow", 4)
    vD = Re.alloc("D", 8)
    nvmax[0] = max(nvmax[0], Re.next)
    sS = 55
    a(f"s_sub_u32 s{sF}, s{sW}, 8")
    a("s_setprio 3")
    a(f"s_lshl_b32 s{sS}, s2, 2")
    a(f"s_add_u32 s{sS}, s{sS}, s{sF}")
    a(f"v_lshlrev_b32 v{vT0}, 2, v{vLane}")
    a(f"v_add_u32 v{vT0}, {LDS_CNT}, v{vT0}")
    a(f"v_mov_b32 v{vT1}, 0")
    a(f"ds_write_b32 v{vT0}, v{vT1}")
    a("s_waitcnt lgkmcnt(0)")
    a(f"s_or_b32 s{sT0}, s2, s{sF}")
    a(f"s_cmp_lg_u32 s{sT0}, 0")
    a(f"s_cbranch_scc1 {name}_nn")
    a(f"s_memrealtime s[{sT0}:{sT0+1}]")
    a("s_waitcnt lgkmcnt(0)")
    a(f"s_or_b32 s{sT0}, s{sT0}, 1")
    a(f"v_mov_b32 v{vT0}, 0")
    a(f"v_mov_b32 v{vT1}, s{sT0}")
    a("s_mov_b64 exec, 1")
    a(f"global_store_dword v{vT0}, v{vT1}, s[{sDbg}:{sDbg+1}] sc1")
    a("s_mov_b64 exec, -1")
    a.label(f"{name}_nn")
    srd(a, srdA, sX, 2048*1024)
    srd(a, srdWS, sWS, WS_SIZE_USED)
    srd(a, srdB, sGate, 1024)
    srd(a, srdC, sHre, 512*1024)
    a(f"buffer_load_dwordx4 {vr(vG,4)}, v{vL16}, s[{srdB}:{srdB+3}], 0 offen")
    a(f"s_lshl_b32 s{sT0}, s{sS}, 10")
    a(f"buffer_load_dwordx4 {vr(vA,4)}, v{vL16}, s[{srdA}:{srdA+3}], s{sT0} offen")
    a(f"s_sub_u32 s{sT1}, 2048, s{sS}")
    a(f"s_lshl_b32 s{sT1}, s{sT1}, 10")
    a(f"buffer_load_dwordx4 {vr(vB,4)}, v{vL16}, s[{srdA}:{srdA+3}], s{sT1} offen")
    a(f"s_mov_b32 s{sT1}, {1024*1024}")
    a(f"buffer_load_dwordx4 {vr(vX1,4)}, v{vL16}, s[{srdA}:{srdA+3}], s{sT1} offen")
    a(f"s_lshl_b32 s{sT1}, s2, 10")
    a(f"buffer_load_dwordx4 {vr(vRe,4)}, v{vL16}, s[{srdC}:{srdC+3}], s{sT1} offen")
    a("s_barrier")
    a("s_barrier")
    a("s_waitcnt vmcnt(0)")
    a(f"s_mov_b32 s56, 0xbf803f80")
    a(f"v_dot2_f32_bf16 v{vD}, v{vA}, v{vG}, 0")
    a(f"v_dot2_f32_bf16 v{vD+1}, v{vB}, v{vG}, 0")
    a(f"v_dot2_f32_bf16 v{vD+2}, v{vA}, s56, 0")
    a(f"v_dot2_f32_bf16 v{vD+3}, v{vRe}, v{vX1}, 0")
    a(f"v_dot2_f32_bf16 v{vD+4}, v{vX1}, v{vG}, 0")
    a(f"v_dot2_f32_bf16 v{vD+5}, v{vX1}, s56, 0")
    a("s_nop 2")
    for q in range(4):
        if q > 0:
            a(f"v_dot2c_f32_bf16 v{vD}, v{vA+q}, v{vG+q}")
            a(f"v_dot2c_f32_bf16 v{vD+1}, v{vB+q}, v{vG+q}")
            a(f"v_dot2c_f32_bf16 v{vD+2}, s56, v{vA+q}")
            a(f"v_dot2c_f32_bf16 v{vD+3}, v{vRe+q}, v{vX1+q}")
            a(f"v_dot2c_f32_bf16 v{vD+4}, v{vX1+q}, v{vG+q}")
            a(f"v_dot2c_f32_bf16 v{vD+5}, s56, v{vX1+q}")
        a(f"v_dot2c_f32_bf16 v{vD+2}, s56, v{vB+q}")
    a("s_nop 3")
    for ctrl in ["row_shr:1", "row_shr:2", "row_shr:4", "row_shr:8"]:
        for r in range(6):
            a(f"v_add_f32_dpp v{vD+r}, v{vD+r}, v{vD+r} {ctrl} row_mask:0xf bank_mask:0xf bound_ctrl:0")
    for r in range(6):
        a(f"v_add_f32_dpp v{vD+r}, v{vD+r}, v{vD+r} row_bcast:15 row_mask:0xa bank_mask:0xf")
    for r in range(6):
        a(f"v_add_f32_dpp v{vD+r}, v{vD+r}, v{vD+r} row_bcast:31 row_mask:0xc bank_mask:0xf")
    a("s_barrier")
    for r in (0, 1, 4):
        a(f"v_mul_f32 v{vD+r}, {f2u(-1.4426950408889634)}, v{vD+r}")
    for r in (0, 1, 4):
        a(f"v_exp_f32 v{vD+r}, v{vD+r}")
    a("s_nop 0")
    for r in (0, 1, 4):
        a(f"v_add_f32 v{vD+r}, 1.0, v{vD+r}")
    for r in (0, 1, 4):
        a(f"v_rcp_f32 v{vD+r}, v{vD+r}")
    a(f"v_cvt_pk_bf16_f32 v{vD+2}, v{vD+2}, 0")
    a(f"v_cvt_pk_bf16_f32 v{vR}, v{vD+3}, 0")
    a(f"v_cvt_pk_bf16_f32 v{vD+5}, v{vD+5}, 0")
    for i in range(1, 4): a(f"v_mov_b32 v{vR+i}, 0")
    for i in range(4): a(f"v_mov_b32 v{vA+i}, 0")
    a(f"v_mov_b32 v{vT1}, 0")
    a("s_mov_b32 exec_lo, 0")
    a("s_mov_b32 exec_hi, 0x80000000")
    a(f"s_lshl_b32 s{sT0}, s{sS}, 2")
    a(f"s_add_u32 s{sT0}, s{sT0}, {WS_G}")
    a(f"buffer_store_dword v{vD}, v{vT1}, s[{srdWS}:{srdWS+3}], s{sT0} offen{SC}")
    a(f"s_cmp_eq_u32 s{sS}, 0")
    a(f"s_cbranch_scc1 {name}_e1")
    a(f"s_sub_u32 s{sT0}, 2048, s{sS}")
    a(f"s_lshl_b32 s{sT0}, s{sT0}, 2")
    a(f"s_add_u32 s{sT0}, s{sT0}, {WS_G}")
    a(f"buffer_store_dword v{vD+1}, v{vT1}, s[{srdWS}:{srdWS+3}], s{sT0} offen{SC}")
    a.label(f"{name}_e1")
    a(f"s_lshr_b32 s{sT0}, s{sS}, 4")
    a(f"s_add_u32 s{sT0}, s{sT0}, {8*A_KSTEPS}")
    a(f"s_lshl_b32 s{sT0}, s{sT0}, 10")
    a(f"s_bfe_u32 s{sT1}, s{sS}, 0x10003")
    a(f"s_lshl_b32 s{sT1}, s{sT1}, 9")
    a(f"s_add_u32 s{sT0}, s{sT0}, s{sT1}")
    a(f"s_and_b32 s{sT1}, s{sS}, 7")
    a(f"s_lshl_b32 s{sT1}, s{sT1}, 1")
    a(f"s_add_u32 s{sT0}, s{sT0}, s{sT1}")
    a(f"s_add_u32 s{sT0}, s{sT0}, {WS_A}")
    a(f"buffer_store_short v{vD+2}, v{vT1}, s[{srdWS}:{srdWS+3}], s{sT0} offen{SC}")
    a(f"s_cmp_lg_u32 s{sF}, 0")
    a(f"s_cbranch_scc1 {name}_e2")
    a(f"s_lshr_b32 s{sT0}, s2, 5")
    a(f"s_mul_i32 s{sT0}, s{sT0}, {A_KSTEPS}")
    a(f"s_add_u32 s{sT0}, s{sT0}, 64")
    a(f"s_lshl_b32 s{sT0}, s{sT0}, 10")
    a(f"s_and_b32 s{sT1}, s2, 31")
    a(f"s_lshl_b32 s{sT1}, s{sT1}, 4")
    a(f"s_add_u32 s{sT0}, s{sT0}, s{sT1}")
    a(f"s_add_u32 s{sT0}, s{sT0}, {WS_A}")
    a(f"buffer_store_dwordx4 {vr(vR,4)}, v{vT1}, s[{srdWS}:{srdWS+3}], s{sT0} offen{SC}")
    a(f"buffer_store_dwordx4 {vr(vA,4)}, v{vT1}, s[{srdWS}:{srdWS+3}], s{sT0} offen offset:512{SC}")
    a.label(f"{name}_e2")
    a(f"s_cmp_lg_u32 s{sS}, 1")
    a(f"s_cbranch_scc1 {name}_e3")
    a(f"s_mov_b32 s{sT0}, {WS_G + 4096}")
    a(f"buffer_store_dword v{vD+4}, v{vT1}, s[{srdWS}:{srdWS+3}], s{sT0} offen{SC}")
    a(f"v_mov_b32 v{vR}, v{vD+5}")
    a(f"s_mov_b32 s{sT0}, {WS_A + (8*A_KSTEPS + 64)*1024}")
    a(f"buffer_store_dwordx4 {vr(vR,4)}, v{vT1}, s[{srdWS}:{srdWS+3}], s{sT0} offen{SC}")
    a(f"buffer_store_dwordx4 {vr(vA,4)}, v{vT1}, s[{srdWS}:{srdWS+3}], s{sT0} offen offset:512{SC}")
    a.label(f"{name}_e3")
    a("s_mov_b64 exec, -1")
    for i in range(3, 6):
        a("s_barrier")
    a(f"s_cmp_lg_u32 s{sF}, 0")
    a(f"s_cbranch_scc1 {name}_nn2")
    a(f"v_mov_b32 v{vT0}, 0")
    a(f"s_mov_b32 s{sT1}, {SPIN_MAX}")
    a.label(f"{name}_npoll")
    a(f"global_load_dword v{vT1}, v{vT0}, s[{sDbg}:{sDbg+1}] sc1")
    a("s_waitcnt vmcnt(0)")
    a(f"v_readfirstlane_b32 s{sN}, v{vT1}")
    a(f"s_sub_u32 s{sT1}, s{sT1}, 1")
    a(f"s_cbranch_scc1 {name}_npoll_ok")
    a("s_nop 1")
    a(f"s_cmp_lg_u32 s{sN}, 0")
    a(f"s_cbranch_scc1 {name}_npoll_ok")
    a("s_sleep 1")
    a(f"s_branch {name}_npoll")
    a.label(f"{name}_npoll_ok")
    a(f"v_mov_b32 v{vT0}, {C_NONCE}")
    a(f"v_mov_b32 v{vT1}, s{sN}")
    a(f"ds_write_b32 v{vT0}, v{vT1}")
    a.label(f"{name}_nn2")
    a("s_waitcnt vmcnt(0) lgkmcnt(0)")
    for i in range(6, 9):
        a("s_barrier")
    tl_stamp(a, 0)

    Rf = RegAlloc(base, 168)
    vB_ = Rf.alloc("boff"); vY = Rf.alloc("yaddr"); vFl = Rf.alloc("flag")
    accP = Rf.alloc("accP", 16); accQ = Rf.alloc("accQ", 16)
    buf = Rf.alloc("buf", 96)
    vCn = Rf.alloc("cn", 4)
    nvmax[0] = max(nvmax[0], Rf.next)
    sKoff, sVoff = 56, 57
    sTt, sEt, sHasQ, sA, sBq, sK, sJob, sCnt = 58, 59, 60, 61, 62, 63, 30, 31
    decode_hq(a)
    KB = accP
    sPend, sQd, sSlot = 60, 61, 62
    a(f"s_lshl_b32 s{sKoff}, s{sHead}, 16")
    a(f"s_add_u32 s{sKoff}, s{sKoff}, {WS_K}")
    a(f"s_cmp_lg_u32 s{sF}, 0")
    a(f"s_cbranch_scc1 {name}_kvld")
    a(f"s_add_u32 s{sT0}, s2, {FL_E}")
    publish(a, vT0, vT1, sT0)
    tl_stamp(a, 1)
    a(f"s_lshr_b32 s{sT0}, s{sHead}, 3")
    a(f"s_lshl_b32 s{sT0}, s{sT0}, 4")
    a(f"v_and_b32 v{vT0}, 15, v{vLane}")
    a(f"v_bfe_u32 v{vT1}, v{vLane}, 4, 1")
    a(f"v_lshlrev_b32 v{vT1}, 6, v{vT1}")
    a(f"v_add_u32 v{vT0}, v{vT0}, v{vT1}")
    a(f"v_add_u32 v{vT0}, 64, v{vT0}")
    a(f"v_and_b32 v{vT1}, 1, v{vLane}")
    a(f"s_lshl_b32 s{sT1}, s{sQb}, 1")
    a(f"v_add_u32 v{vT1}, s{sT1}, v{vT1}")
    a(f"v_cmp_gt_u32 vcc, 32, v{vLane}")
    a("s_nop 1")
    a(f"v_cndmask_b32 v{vT0}, v{vT1}, v{vT0}, vcc")
    a(f"v_add_u32 v{vT0}, s{sT0}, v{vT0}")
    a(f"v_lshlrev_b32 v{vFl}, {FSH}, v{vT0}")
    a(f"v_add_u32 v{vFl}, {WS_FLAG}, v{vFl}")
    a(f"s_mov_b32 s{sPend}, 0xffff")
    a(f"s_mov_b32 s{sQd}, 0")
    a(f"s_mov_b32 s{sSlot}, 0")
    a(f"s_mov_b32 s{sCnt}, {SPIN_MAX}")
    a.label(f"{name}_dpoll")
    a(f"global_load_dword v{vT0}, v{vFl}, s[{sWS}:{sWS+1}] sc1")
    a("s_waitcnt vmcnt(0)")
    a(f"v_cmp_eq_u32 vcc, s{sN}, v{vT0}")
    a(f"s_sub_u32 s{sCnt}, s{sCnt}, 1")
    a(f"s_cbranch_scc0 {name}_dnt")
    a("s_mov_b64 vcc, -1")
    a.label(f"{name}_dnt")
    a("s_nop 2")
    a(f"s_mov_b32 s56, vcc_lo")
    a(f"s_mov_b32 s57, vcc_hi")
    a(f"s_cmp_lg_u32 s{sQd}, 0")
    a(f"s_cbranch_scc1 {name}_dq")
    a(f"s_cmp_lg_u32 s57, -1")
    a(f"s_cbranch_scc1 {name}_dq")
    a(f"s_mov_b32 s{sQd}, 1")
    tl_stamp(a, 2)
    if TL["on"]: a("s_waitcnt lgkmcnt(0)")
    lsig(a, vT0, vT1, C_GO)
    a.label(f"{name}_dq")
    a(f"s_lshr_b32 s{sT0}, s56, 16")
    a(f"s_and_b32 s{sT0}, s{sT0}, s56")
    a(f"s_and_b32 s{sT0}, s{sT0}, s{sPend}")
    a(f"s_cmp_eq_u32 s{sT0}, 0")
    a(f"s_cbranch_scc1 {name}_dnone")
    a(f"s_andn2_b32 s{sPend}, s{sPend}, s{sT0}")
    a.label(f"{name}_dq1")
    a(f"s_ff1_i32_b32 s{sT1}, s{sT0}")
    a(f"s_bitset0_b32 s{sT0}, s{sT1}")
    a(f"s_add_u32 s{sT1}, s{sT1}, 1")
    a(f"s_lshl_b32 s{sT2}, s{sSlot}, 2")
    a(f"s_add_u32 s{sT2}, s{sT2}, {C_QUE}")
    a(f"v_mov_b32 v{vT0}, s{sT2}")
    a(f"v_mov_b32 v{vT1}, s{sT1}")
    a(f"ds_write_b32 v{vT0}, v{vT1}")
    a(f"s_add_u32 s{sSlot}, s{sSlot}, 1")
    a(f"s_cmp_lg_u32 s{sT0}, 0")
    a(f"s_cbranch_scc1 {name}_dq1")
    a.label(f"{name}_dnone")
    a(f"s_cmp_eq_u32 s{sQd}, 0")
    a(f"s_cbranch_scc1 {name}_dagain")
    a(f"s_cmp_eq_u32 s{sPend}, 0")
    a(f"s_cbranch_scc1 {name}_kvdone")
    a.label(f"{name}_dagain")
    a("s_sleep 4")
    a(f"s_branch {name}_dpoll")
    a.label(f"{name}_kvld")
    read_nonce(a, vT0, vT1)
    a(f"s_sub_u32 s{sSlot}, s{sF}, 1")
    a.label(f"{name}_kvnext")
    a(f"s_lshl_b32 s{sT2}, s{sSlot}, 2")
    a(f"s_add_u32 s63, s{sT2}, {C_QUE}")
    lwait(a, vT0, vT1, sT0, "s63", 1, f"{name}_kvwq", sleep=1)
    a(f"s_sub_u32 s{sT0}, s{sT0}, 1")
    a(f"s_and_b32 s{sT0}, s{sT0}, 15")
    a(f"s_lshl_b32 s{sT0}, s{sT0}, 12")
    a(f"s_add_u32 s{sT0}, s{sT0}, s{sKoff}")
    for t in range(4):
        a(f"s_add_u32 s{sT1}, s{sT0}, {t*1024}")
        a(f"buffer_load_dwordx4 {vr(KB+4*t,4)}, v{vL16}, s[{srdWS}:{srdWS+3}], s{sT1} offen{SC}")
        a(f"s_add_u32 s{sT1}, s{sT1}, {WS_V - WS_K}")
        a(f"buffer_load_dwordx4 {vr(KB+16+4*t,4)}, v{vL16}, s[{srdWS}:{srdWS+3}], s{sT1} offen{SC}")
    a(f"s_and_b32 s{sT1}, s{sSlot}, 1")
    a(f"s_lshl_b32 s{sT1}, s{sT1}, 15")
    a(f"s_lshr_b32 s{sT2}, s{sSlot}, 1")
    a(f"s_lshl_b32 s{sT2}, s{sT2}, 12")
    a(f"s_add_u32 s{sT1}, s{sT1}, s{sT2}")
    a(f"v_add_u32 v{vT2}, s{sT1}, v{vL16}")
    a(f"v_add_u32 v{vT3}, 65536, v{vT2}")
    a(f"s_lshl_b32 s{sT0}, s{sSlot}, 2")
    a(f"s_add_u32 s{sT0}, s{sT0}, {C_RDY}")
    a(f"v_mov_b32 v{vT0}, s{sT0}")
    a(f"v_mov_b32 v{vT1}, 1")
    a("s_waitcnt vmcnt(0)")
    for t in range(4):
        a(f"ds_write_b128 v{vT2}, {vr(KB+4*t,4)} offset:{t*1024}")
        a(f"ds_write_b128 v{vT3}, {vr(KB+16+4*t,4)} offset:{t*1024}")
    a("s_waitcnt lgkmcnt(0)")
    a(f"ds_write_b32 v{vT0}, v{vT1}")
    a(f"s_add_u32 s{sSlot}, s{sSlot}, 3")
    a(f"s_cmp_lt_u32 s{sSlot}, 16")
    a(f"s_cbranch_scc1 {name}_kvnext")
    a.label(f"{name}_kvdone")
    tl_stamp(a, 3)
    srd(a, srdA, sSre, 2048*4096)
    srd(a, srdB, sSim, 2048*4096)
    srd(a, srdC, sWo, 512*1024)
    a(f"s_lshr_b32 s{sT0}, s{sHead}, 2")
    a(f"s_lshl_b32 s{sT0}, s{sT0}, 7")
    a(f"s_lshl_b32 s{sT1}, s{sF}, 17")
    a(f"s_add_u32 s{sT0}, s{sT0}, s{sT1}")
    a(f"v_lshlrev_b32 v{vT0}, 10, v{vLane}")
    a(f"buffer_load_dword v{vT3}, v{vT0}, s[{srdC}:{srdC+3}], s{sT0} offen")
    a(f"s_add_u32 s{sT0}, s{sT0}, 65536")
    a(f"buffer_load_dword v{vT3}, v{vT0}, s[{srdC}:{srdC+3}], s{sT0} offen")
    a(f"s_cmp_lg_u32 s{sF}, 0")
    a(f"s_cbranch_scc1 {name}_fnz2")
    a(f"v_lshlrev_b32 v{vFl}, {FSH}, v{vLane}")
    a(f"v_add_u32 v{vFl}, {WS_FLAG + (FL_F1 << FSH)}, v{vFl}")
    gpoll(a, vFl, vT0, f"{name}_g1", sCnt)
    for i in range(4):
        a(f"v_lshlrev_b32 v{vFl}, {FSH}, v{vLane}")
        a(f"v_add_u32 v{vFl}, {WS_FLAG + ((FL_E + 64*i) << FSH)}, v{vFl}")
        gpoll(a, vFl, vT0, f"{name}_ge{i}", sCnt)
    lsig(a, vT0, vT1, C_GO2)
    a(f"s_branch {name}_fgo2")
    a.label(f"{name}_fnz2")
    lwait(a, vT0, vT1, sT0, C_GO2, 1, f"{name}_fwgo2", sleep=4)
    a.label(f"{name}_fgo2")
    tl_stamp(a, 4)

    accX = buf; accW = buf + 16; fb = buf + 32
    a(f"s_lshr_b32 s{sTt}, s2, 3")
    a(f"s_and_b32 s{sEt}, s2, 7")
    a(f"v_and_b32 v{vT0}, 31, v{vLane}")
    a(f"s_lshl_b32 s{sT0}, s{sTt}, 5")
    a(f"v_add_u32 v{vT0}, s{sT0}, v{vT0}")
    a(f"v_mul_u32_u24 v{vY}, {Y_STRIDE}, v{vT0}")
    a(f"v_lshlrev_b32 v{vT0}, 12, v{vT0}")
    a(f"v_lshrrev_b32 v{vT1}, 5, v{vLane}")
    a(f"v_lshlrev_b32 v{vT1}, 4, v{vT1}")
    a(f"v_add_u32 v{vB_}, v{vT0}, v{vT1}")
    a(f"v_add_u32 v{vY}, v{vY}, v{vT1}")
    for i in range(16):
        a(f"v_mov_b32 v{accP+i}, 0")
        a(f"v_mov_b32 v{accQ+i}, 0")
        a(f"v_mov_b32 v{accX+i}, 0")
        a(f"v_mov_b32 v{accW+i}, 0")
    for i in range(4):
        a(f"v_mov_b32 v{vCn+i}, 0xbf803f80")
    a(f"s_lshl_b32 s{sK}, s{sF}, 4")
    a(f"s_mul_i32 s{sA}, s{sEt}, {A_KSTEPS}")
    a(f"s_add_u32 s{sA}, s{sA}, s{sK}")
    a(f"s_lshl_b32 s{sA}, s{sA}, 10")
    a(f"s_add_u32 s{sA}, s{sA}, {WS_A}")
    a(f"s_add_u32 s{sHasQ}, s{sK}, {8*A_KSTEPS}")
    a(f"s_lshl_b32 s{sHasQ}, s{sHasQ}, 10")
    a(f"s_add_u32 s{sHasQ}, s{sHasQ}, {WS_A}")
    sA8 = sHasQ
    a(f"s_mul_i32 s{sBq}, s{sEt}, {B_KSTEPS}")
    a(f"s_add_u32 s{sBq}, s{sBq}, s{sK}")
    a(f"s_lshl_b32 s{sBq}, s{sBq}, 10")
    a(f"s_add_u32 s{sBq}, s{sBq}, {WS_B}")
    a(f"s_lshl_b32 s{sK}, s{sK}, 5")
    a(f"s_cmp_eq_u32 s{sEt}, 0")
    a(f"s_cselect_b32 s{sJob}, 1, 0")
    a(f"s_cmp_eq_u32 s{sTt}, 0")
    a(f"s_cselect_b32 s{sT0}, 2, 0")
    a(f"s_or_b32 s{sJob}, s{sJob}, s{sT0}")
    a(f"s_cmp_eq_u32 s2, 8")
    a(f"s_cselect_b32 s{sT0}, 4, 0")
    a(f"s_or_b32 s{sJob}, s{sJob}, s{sT0}")
    vm = Vm(a)
    NFL = 3
    def ld_k(k, slot, withq=True):
        r = fb + slot * 20
        a(f"s_add_u32 s{sT0}, s{sA}, {k*1024}")
        a(f"buffer_load_dwordx4 {vr(r,4)}, v{vL16}, s[{srdWS}:{srdWS+3}], s{sT0} offen{SC}")
        a(f"s_add_u32 s{sT0}, s{sK}, {k*32}")
        a(f"buffer_load_dwordx4 {vr(r+4,4)}, v{vB_}, s[{srdA}:{srdA+3}], s{sT0} offen")
        a(f"s_add_u32 s{sT0}, s{sA8}, {k*1024}")
        a(f"buffer_load_dwordx4 {vr(r+16,4)}, v{vL16}, s[{srdWS}:{srdWS+3}], s{sT0} offen{SC}")
        n = 3
        if withq:
            a(f"s_add_u32 s{sT0}, s{sBq}, {k*1024}")
            a(f"buffer_load_dwordx4 {vr(r+8,4)}, v{vL16}, s[{srdWS}:{srdWS+3}], s{sT0} offen{SC}")
            a(f"s_add_u32 s{sT0}, s{sK}, {k*32}")
            a(f"buffer_load_dwordx4 {vr(r+12,4)}, v{vB_}, s[{srdB}:{srdB+3}], s{sT0} offen")
            n = 5
        vm.issue(k, n)
    lab = [0]
    def mf_k(slot, withq=True):
        r = fb + slot * 20
        lab[0] += 1
        L = f"{name}_fm{lab[0]}"
        a(f"v_mfma_f32_32x32x16_bf16 {vr(accP,16)}, {vr(r,4)}, {vr(r+4,4)}, {vr(accP,16)}")
        if withq:
            a(f"v_mfma_f32_32x32x16_bf16 {vr(accQ,16)}, {vr(r+8,4)}, {vr(r+12,4)}, {vr(accQ,16)}")
        a(f"s_cmp_eq_u32 s{sJob}, 0")
        a(f"s_cbranch_scc1 {L}c")
        a(f"s_bitcmp1_b32 s{sJob}, 0")
        a(f"s_cbranch_scc0 {L}a")
        a(f"v_mfma_f32_32x32x16_bf16 {vr(accX,16)}, {vr(r+16,4)}, {vr(r+4,4)}, {vr(accX,16)}")
        a.label(f"{L}a")
        a(f"s_bitcmp1_b32 s{sJob}, 1")
        a(f"s_cbranch_scc0 {L}b")
        a(f"v_mfma_f32_32x32x16_bf16 {vr(accW,16)}, {vr(r,4)}, {vr(vCn,4)}, {vr(accW,16)}")
        a.label(f"{L}b")
        a(f"s_bitcmp1_b32 s{sJob}, 2")
        a(f"s_cbranch_scc0 {L}c")
        a(f"v_mfma_f32_32x32x16_bf16 {vr(accW,16)}, {vr(r+16,4)}, {vr(vCn,4)}, {vr(accW,16)}")
        a.label(f"{L}c")
    for k in range(NFL): ld_k(k, k)
    for k in range(16):
        vm.wait(k)
        mf_k(k % NFL)
        if k + NFL < 16:
            a("s_nop 4")
            ld_k(k + NFL, k % NFL)
    a(f"s_cmp_lg_u32 s{sF}, 0")
    a(f"s_cbranch_scc1 {name}_fnox")
    a("s_nop 4")
    vm = Vm(a)
    ld_k(64, 0, withq=False)
    a("s_waitcnt vmcnt(0)")
    mf_k(0, withq=False)
    a.label(f"{name}_fnox")
    a("s_nop 15")
    a("s_nop 3")
    for i in range(16):
        a(f"v_sub_f32 v{fb+i}, v{accP+i}, v{accQ+i}")
        a(f"v_add_f32 v{accQ+i}, v{accP+i}, v{accQ+i}")
    for i in range(16):
        a(f"v_mov_b32 v{accP+i}, v{fb+i}")
    WA = 8192 + 256 + 256
    a(f"s_cmp_eq_u32 s{sF}, 0")
    a(f"s_cbranch_scc1 {name}_fred0")
    a(f"s_sub_u32 s{sT0}, s{sF}, 1")
    a(f"s_mul_i32 s{sT0}, s{sT0}, {WA}")
    a(f"s_add_u32 s{sT0}, s{sT0}, {LDS_RED}")
    a(f"v_add_u32 v{vT0}, s{sT0}, v{vL16}")
    for q in range(8):
        a(f"ds_write_b128 v{vT0}, {vr(accP+4*q,4)} offset:{q*1024}")
    a(f"v_lshrrev_b32 v{vT1}, 2, v{vL16}")
    a(f"v_add_u32 v{vT1}, s{sT0}, v{vT1}")
    a(f"ds_write_b32 v{vT1}, v{accX} offset:8192")
    a(f"v_lshrrev_b32 v{vT1}, 5, v{vLane}")
    a(f"v_lshlrev_b32 v{vT1}, 6, v{vT1}")
    a(f"v_add_u32 v{vT1}, s{sT0}, v{vT1}")
    a("s_mov_b32 exec_lo, 1")
    a("s_mov_b32 exec_hi, 1")
    for q in range(4):
        a(f"ds_write_b128 v{vT1}, {vr(accW+4*q,4)} offset:{8192 + 256 + q*16}")
    a("s_mov_b64 exec, -1")
    a("s_waitcnt lgkmcnt(0)")
    lsig(a, vT0, vT1, C_R0)
    a(f"s_branch {name}_fsig")
    a.label(f"{name}_fred0")
    lwait(a, vT0, vT1, sT0, C_R0, 3, f"{name}_fw0", sleep=2)
    a(f"v_add_u32 v{vT0}, {LDS_RED}, v{vL16}")
    a(f"v_lshrrev_b32 v{vT2}, 2, v{vL16}")
    a(f"v_add_u32 v{vT2}, {LDS_RED}, v{vT2}")
    a(f"v_lshrrev_b32 v{vT1}, 5, v{vLane}")
    a(f"v_lshlrev_b32 v{vT1}, 6, v{vT1}")
    a(f"v_add_u32 v{vT1}, {LDS_RED}, v{vT1}")
    for src in range(3):
        for q in range(8):
            a(f"ds_read_b128 {vr(fb+4*q,4)}, v{vT0} offset:{src*WA + q*1024}")
        a(f"ds_read_b32 v{fb+32}, v{vT2} offset:{src*WA + 8192}")
        for q in range(4):
            a(f"ds_read_b128 {vr(fb+36+4*q,4)}, v{vT1} offset:{src*WA + 8192 + 256 + q*16}")
        a("s_waitcnt lgkmcnt(0)")
        for i in range(32):
            a(f"v_add_f32 v{accP+i}, v{accP+i}, v{fb+i}")
        a(f"v_add_f32 v{accX}, v{accX}, v{fb+32}")
        for i in range(16):
            a(f"v_add_f32 v{accW+i}, v{accW+i}, v{fb+36+i}")
    a(f"s_lshl_b32 s{sT0}, s{sEt}, 7")
    for g in range(4):
        a(f"s_add_u32 s{sT2}, s{sT0}, {WS_D + g*32}")
        a(f"buffer_store_dwordx4 {vr(accP+4*g,4)}, v{vY}, s[{srdWS}:{srdWS+3}], s{sT2} offen{SC}")
        a(f"s_add_u32 s{sT2}, s{sT0}, {WS_E + g*32}")
        a(f"buffer_store_dwordx4 {vr(accQ+4*g,4)}, v{vY}, s[{srdWS}:{srdWS+3}], s{sT2} offen{SC}")
    a(f"s_bitcmp1_b32 s{sJob}, 0")
    a(f"s_cbranch_scc0 {name}_fo1")
    a("s_mov_b32 exec_hi, 0")
    a(f"s_mov_b32 s{sT2}, {WS_D + 1024}")
    a(f"buffer_store_dword v{accX}, v{vY}, s[{srdWS}:{srdWS+3}], s{sT2} offen{SC}")
    a(f"s_mov_b32 s{sT2}, {WS_E + 1024}")
    a(f"buffer_store_dword v{accX}, v{vY}, s[{srdWS}:{srdWS+3}], s{sT2} offen{SC}")
    a("s_mov_b64 exec, -1")
    a.label(f"{name}_fo1")
    a(f"s_bitcmp1_b32 s{sJob}, 1")
    a(f"s_cbranch_scc0 {name}_fo2")
    a(f"v_lshrrev_b32 v{vT1}, 5, v{vLane}")
    a(f"v_lshlrev_b32 v{vT1}, 4, v{vT1}")
    a("s_mov_b32 exec_lo, 1")
    a("s_mov_b32 exec_hi, 1")
    for g in range(4):
        a(f"s_add_u32 s{sT2}, s{sT0}, {WS_D + 1024*Y_STRIDE + g*32}")
        a(f"buffer_store_dwordx4 {vr(accW+4*g,4)}, v{vT1}, s[{srdWS}:{srdWS+3}], s{sT2} offen{SC}")
        a(f"s_add_u32 s{sT2}, s{sT0}, {WS_E + 1024*Y_STRIDE + g*32}")
        a(f"buffer_store_dwordx4 {vr(accW+4*g,4)}, v{vT1}, s[{srdWS}:{srdWS+3}], s{sT2} offen{SC}")
    a("s_mov_b64 exec, -1")
    a.label(f"{name}_fo2")
    a(f"s_bitcmp1_b32 s{sJob}, 2")
    a(f"s_cbranch_scc0 {name}_fo3")
    a(f"v_mov_b32 v{vT1}, 0")
    a("s_mov_b64 exec, 1")
    a(f"s_mov_b32 s{sT2}, {WS_D + 1024*Y_STRIDE + 1024}")
    a(f"buffer_store_dword v{accW}, v{vT1}, s[{srdWS}:{srdWS+3}], s{sT2} offen{SC}")
    a(f"s_mov_b32 s{sT2}, {WS_E + 1024*Y_STRIDE + 1024}")
    a(f"buffer_store_dword v{accW}, v{vT1}, s[{srdWS}:{srdWS+3}], s{sT2} offen{SC}")
    a("s_mov_b64 exec, -1")
    a.label(f"{name}_fo3")
    lsig(a, vT0, vT1, C_R1)
    a("s_waitcnt vmcnt(0)")
    a(f"s_add_u32 s{sT0}, s2, {FL_D}")
    publish(a, vT0, vT1, sT0)
    a.label(f"{name}_fsig")
    tl_stamp(a, 5)

    Rp = RegAlloc(base, 168)
    vWa = [Rp.alloc("wa0"), Rp.alloc("wa1")]
    vG2 = Rp.alloc("g"); vYa = Rp.alloc("ya"); vOffW = Rp.alloc("offw"); vFl2 = Rp.alloc("fl")
    vYv = Rp.alloc("y", 16)
    fO = Rp.alloc("fO", 64)
    NS = 3
    fW = [Rp.alloc(f"fW{i}", 8) for i in range(NS)]
    acc = [Rp.alloc("acc0", 16), Rp.alloc("acc1", 16)]
    nvmax[0] = max(nvmax[0], Rp.next)
    sTb, sEb, sTt2, sKh2, sT0row, sE0, sMirE = 56, 57, 58, 59, 60, 61, 62
    a(f"s_and_b32 s{sTb}, s{sHead}, 3")
    a(f"s_lshl_b32 s{sT0}, s{sQb}, 2")
    a(f"s_add_u32 s{sTb}, s{sTb}, s{sT0}")
    a(f"s_lshr_b32 s{sEb}, s{sHead}, 2")
    a(f"s_and_b32 s{sTt2}, s{sF}, 1")
    a(f"s_lshr_b32 s{sKh2}, s{sF}, 1")
    a(f"s_lshl_b32 s{sT0}, s{sTt2}, 5")
    a(f"s_lshl_b32 s{sT0row}, s{sTb}, 6")
    a(f"s_add_u32 s{sT0row}, s{sT0row}, s{sT0}")
    a(f"s_lshl_b32 s{sT0}, s{sKh2}, 5")
    a(f"s_lshl_b32 s{sE0}, s{sEb}, 6")
    a(f"s_add_u32 s{sE0}, s{sE0}, s{sT0}")
    srd(a, srdA, sOut, 2048*1024)
    a(f"v_lshrrev_b32 v{vT0}, 3, v{vLane}")
    a(f"v_lshlrev_b32 v{vOffW}, 10, v{vT0}")
    a(f"v_bfe_u32 v{vT1}, v{vLane}, 4, 1")
    a(f"v_bfe_u32 v{vT2}, v{vLane}, 2, 1")
    a(f"v_xor_b32 v{vT1}, v{vT1}, v{vT2}")
    a(f"v_lshlrev_b32 v{vT1}, 6, v{vT1}")
    a(f"v_add_u32 v{vOffW}, v{vOffW}, v{vT1}")
    a(f"v_and_b32 v{vT1}, 3, v{vLane}")
    a(f"v_lshlrev_b32 v{vT1}, 4, v{vT1}")
    a(f"v_add_u32 v{vOffW}, v{vOffW}, v{vT1}")
    a(f"v_bfe_u32 v{vT0}, v{vLane}, 2, 2")
    a(f"v_lshrrev_b32 v{vT1}, 5, v{vLane}")
    a(f"v_lshlrev_b32 v{vT1}, 2, v{vT1}")
    a(f"v_add_u32 v{vT0}, v{vT0}, v{vT1}")
    a(f"v_lshlrev_b32 v{vT0}, 7, v{vT0}")
    a(f"v_bfe_u32 v{vT1}, v{vLane}, 4, 1")
    a(f"v_lshlrev_b32 v{vT1}, 5, v{vT1}")
    a(f"v_add_u32 v{vT0}, v{vT0}, v{vT1}")
    a(f"v_and_b32 v{vT1}, 3, v{vLane}")
    a(f"v_lshlrev_b32 v{vT1}, 3, v{vT1}")
    a(f"v_add_u32 v{vT0}, v{vT0}, v{vT1}")
    a(f"s_lshl_b32 s{sT0}, s{sKh2}, 15")
    a(f"v_add_u32 v{vT0}, s{sT0}, v{vT0}")
    a(f"v_bfe_u32 v{vT1}, v{vLane}, 3, 1")
    for et in range(2):
        a(f"v_xor_b32 v{vT2}, {et}, v{vT1}")
        a(f"v_lshlrev_b32 v{vT2}, 6, v{vT2}")
        a(f"v_add_u32 v{vWa[et]}, v{vT0}, v{vT2}")
    a(f"v_and_b32 v{vT0}, 31, v{vLane}")
    a(f"v_add_u32 v{vT0}, s{sT0row}, v{vT0}")
    a(f"v_lshlrev_b32 v{vG2}, 2, v{vT0}")
    a(f"v_sub_u32 v{vT1}, 2048, v{vT0}")
    a(f"s_cmp_lt_u32 s{sT0row}, 1024")
    a("s_cselect_b64 vcc, -1, 0")
    a(f"s_cselect_b32 s{sT2}, 1, 0")
    a(f"v_cndmask_b32 v{vT1}, v{vT1}, v{vT0}, vcc")
    a(f"v_mul_u32_u24 v{vYa}, {Y_STRIDE}, v{vT1}")
    a(f"v_lshrrev_b32 v{vT1}, 5, v{vLane}")
    a(f"v_lshlrev_b32 v{vT1}, 4, v{vT1}")
    a(f"s_cmp_lt_u32 s{sE0}, 256")
    a(f"s_cselect_b32 s{sMirE}, 0, 1")
    a(f"s_cselect_b32 s63, 1, 0")
    a(f"s_cbranch_scc0 {name}_mir")
    a(f"v_add_u32 v{vYa}, v{vYa}, v{vT1}")
    a(f"s_lshl_b32 s{sT1}, s{sE0}, 2")
    a(f"s_branch {name}_ya")
    a.label(f"{name}_mir")
    a(f"s_sub_u32 s{sT1}, 485, s{sE0}")
    a(f"s_lshl_b32 s{sT1}, s{sT1}, 2")
    a(f"v_add_u32 v{vYa}, s{sT1}, v{vYa}")
    a(f"v_sub_u32 v{vYa}, v{vYa}, v{vT1}")
    a(f"s_mov_b32 s{sT1}, 0")
    a.label(f"{name}_ya")
    a(f"s_cmp_eq_u32 s{sT2}, s63")
    a(f"s_mov_b32 s{sT3}, {WS_E}")
    a(f"s_cselect_b32 s{sT2}, {WS_D}, s{sT3}")
    a(f"s_add_u32 s63, s{sT1}, s{sT2}")
    for e in range(2):
        for i in range(16):
            a(f"v_mov_b32 v{acc[e]+i}, 0")
    a(f"s_cmp_lg_u32 s{sF}, 0")
    a(f"s_cbranch_scc1 {name}_c1")
    for i in range(4):
        a(f"v_lshlrev_b32 v{vFl2}, {FSH}, v{vLane}")
        a(f"v_add_u32 v{vFl2}, {WS_FLAG + ((FL_D + 64*i) << FSH)}, v{vFl2}")
        gpoll(a, vFl2, vT0, f"{name}_gd{i}", sCnt)
    lsig(a, vT0, vT1, C_GO3)
    a(f"s_branch {name}_c2")
    a.label(f"{name}_c1")
    lwait(a, vT0, vT1, sT0, C_GO3, 1, f"{name}_cw1", sleep=4)
    a.label(f"{name}_c2")
    a(f"s_mov_b32 s{sT1}, {WS_G}")
    a(f"buffer_load_dword v{vG2}, v{vG2}, s[{srdWS}:{srdWS+3}], s{sT1} offen{SC}")
    for c in range(4):
        a(f"buffer_load_dwordx4 {vr(vYv+4*c,4)}, v{vYa}, s[{srdWS}:{srdWS+3}], s63 offen offset:{c*32}{SC}")
    tl_stamp(a, 6)
    lwait(a, vT0, vT1, sT0, C_ADONE, 8, f"{name}_cw2", sleep=2)
    tl_stamp(a, 7)
    a(f"s_lshl_b32 s{sT0}, s{sKh2}, 8")
    a(f"s_lshl_b32 s{sT1}, s{sTt2}, 7")
    a(f"s_add_u32 s{sT0}, s{sT0}, s{sT1}")
    a(f"s_lshl_b32 s30, s{sT0}, 7")
    a(f"s_lshl_b32 s{sT0}, s{sT0}, 10")
    a(f"s_lshl_b32 s{sT1}, s{sEb}, 7")
    a(f"s_add_u32 s{sT2}, s{sT0}, s{sT1}")
    for m in range(16):
        a(f"s_add_u32 m0, s30, {m*1024}")
        a(f"s_add_u32 s{sT1}, s{sT2}, {m*8192}")
        a(f"buffer_load_dwordx4 v{vOffW}, s[{srdC}:{srdC+3}], s{sT1} offen lds")
    a(f"s_cmp_lg_u32 s{sF}, 0")
    a(f"s_cbranch_scc1 {name}_c3")
    a(f"v_and_b32 v{vT0}, 31, v{vLane}")
    a(f"s_lshl_b32 s{sT0}, s{sQb}, 5")
    a(f"v_add_u32 v{vT0}, s{sT0}, v{vT0}")
    a(f"v_lshlrev_b32 v{vFl2}, {FSH}, v{vT0}")
    a(f"v_add_u32 v{vFl2}, {WS_FLAG + (FL_O << FSH)}, v{vFl2}")
    gpoll(a, vFl2, vT0, f"{name}_go", sCnt)
    lsig(a, vT0, vT1, C_GO3)
    a(f"s_branch {name}_c4")
    a.label(f"{name}_c3")
    lwait(a, vT0, vT1, sT0, C_GO3, 2, f"{name}_cw3", sleep=1)
    a.label(f"{name}_c4")
    tl_stamp(a, 8)
    a(f"s_lshl_b32 s{sT0}, s{sTb}, 1")
    a(f"s_add_u32 s{sT0}, s{sT0}, s{sTt2}")
    a(f"s_lshl_b32 s{sT0}, s{sT0}, 5")
    a(f"s_lshl_b32 s{sT1}, s{sKh2}, 4")
    a(f"s_add_u32 s{sT0}, s{sT0}, s{sT1}")
    a(f"s_lshl_b32 s{sT0}, s{sT0}, 10")
    a(f"s_add_u32 s{sT0}, s{sT0}, {WS_O}")
    for i in range(16):
        a(f"s_add_u32 s{sT1}, s{sT0}, {i*1024}")
        a(f"buffer_load_dwordx4 {vr(fO+4*i,4)}, v{vL16}, s[{srdWS}:{srdWS+3}], s{sT1} offen{SC}")
    a("s_waitcnt vmcnt(16)")
    a(f"s_lshl_b32 s{sT0}, s{sKh2}, 2")
    a(f"s_add_u32 s31, s{sT0}, {C_W}")
    lsig(a, vT0, vT1, "s31")
    lwait(a, vT0, vT1, sT0, "s31", 2, f"{name}_cw4", sleep=0)
    def wreads(i):
        s = i % NS
        for et in range(2):
            for u in range(2):
                a(f"ds_read_b64_tr_b16 {vr(fW[s]+4*et+2*u,2)}, v{vWa[et]} offset:{i*2048 + u*1024}")
    wreads(0); wreads(1)
    for i in range(16):
        if i + 2 < 16:
            wreads(i + 2)
            a(f"s_waitcnt vmcnt({15-i}) lgkmcnt(8)")
        else:
            a(f"s_waitcnt vmcnt({15-i}) lgkmcnt({4*(15-i)})")
        for et in range(2):
            a(f"v_mfma_f32_32x32x16_bf16 {vr(acc[et],16)}, {vr(fW[i%NS]+4*et,4)}, {vr(fO+4*i,4)}, {vr(acc[et],16)}")
    tl_stamp(a, 9)
    a("s_nop 15")
    a(f"s_lshl_b32 s{sT0}, s{sF}, 12")
    a(f"s_add_u32 s{sT0}, s{sT0}, 65536")
    a(f"v_add_u32 v{vT0}, s{sT0}, v{vL16}")
    a(f"s_cmp_eq_u32 s{sKh2}, 0")
    a(f"s_cbranch_scc0 {name}_y1")
    for q in range(4):
        a(f"ds_write_b128 v{vT0}, {vr(acc[1]+4*q,4)} offset:{q*1024}")
    a(f"s_branch {name}_y2")
    a.label(f"{name}_y1")
    for q in range(4):
        a(f"ds_write_b128 v{vT0}, {vr(acc[0]+4*q,4)} offset:{q*1024}")
    for i in range(16):
        a(f"v_mov_b32 v{acc[0]+i}, v{acc[1]+i}")
    a.label(f"{name}_y2")
    a("s_waitcnt lgkmcnt(0)")
    a(f"s_lshl_b32 s{sT0}, s{sTt2}, 2")
    a(f"s_add_u32 s31, s{sT0}, {C_Y}")
    lsig(a, vT1, vT2, "s31")
    lwait(a, vT1, vT2, sT0, "s31", 2, f"{name}_cw5", sleep=0)
    a(f"s_xor_b32 s{sT0}, s{sF}, 2")
    a(f"s_lshl_b32 s{sT0}, s{sT0}, 12")
    a(f"s_add_u32 s{sT0}, s{sT0}, 65536")
    a(f"v_add_u32 v{vT0}, s{sT0}, v{vL16}")
    for q in range(4):
        a(f"ds_read_b128 {vr(fO+4*q,4)}, v{vT0} offset:{q*1024}")
    a("s_waitcnt lgkmcnt(0)")
    S = acc[0]
    for i in range(16):
        a(f"v_add_f32 v{S+i}, v{S+i}, v{fO+i}")
    a(f"s_cmp_eq_u32 s{sMirE}, 0")
    a(f"s_cbranch_scc0 {name}_cm")
    for i in range(16):
        a(f"v_sub_f32 v{S+i}, v{S+i}, v{vYv+i}")
        a(f"v_fma_f32 v{S+i}, v{vG2}, v{S+i}, v{vYv+i}")
    a(f"s_branch {name}_st")
    a.label(f"{name}_cm")
    for g in range(4):
        for r in range(4):
            y = vYv + 4*(3-g) + (3-r)
            a(f"v_sub_f32 v{S+4*g+r}, v{S+4*g+r}, v{y}")
            a(f"v_fma_f32 v{S+4*g+r}, v{vG2}, v{S+4*g+r}, v{y}")
    a.label(f"{name}_st")
    P = fO + 16
    for i in range(8):
        a(f"v_cvt_pk_bf16_f32 v{P+i}, v{S+2*i}, v{S+2*i+1}")
    a(f"v_and_b32 v{vT0}, 31, v{vLane}")
    a(f"v_add_u32 v{vT0}, s{sT0row}, v{vT0}")
    a(f"v_lshlrev_b32 v{vT0}, 10, v{vT0}")
    a(f"v_lshrrev_b32 v{vT1}, 5, v{vLane}")
    a(f"v_lshlrev_b32 v{vT1}, 4, v{vT1}")
    a(f"v_add_u32 v{vT0}, v{vT0}, v{vT1}")
    a(f"s_lshl_b32 s{sT0}, s{sE0}, 1")
    for pr in range(2):
        a(f"v_permlane32_swap_b32 v{P+4*pr}, v{P+4*pr+2}")
        a(f"v_permlane32_swap_b32 v{P+4*pr+1}, v{P+4*pr+3}")
    for pr in range(2):
        a(f"buffer_store_dwordx4 {vr(P+4*pr,4)}, v{vT0}, s[{srdA}:{srdA+3}], s{sT0} offen offset:{32*pr}")
    tl_stamp(a, 10)
    tl_exit(a, 2, sWS)
    a("s_endpgm")
```

```python
from asmlib import *
from common import *

def gen_k3(a, name):
    R = RegAlloc(0, 256)
    R.alloc("tid")
    vLane = R.alloc("lane"); vT0 = R.alloc("t0"); vT1 = R.alloc("t1"); vT2 = R.alloc("t2")
    vL16 = R.alloc("l16"); vOffW = R.alloc("offw"); vWa = [R.alloc("wa0"), R.alloc("wa1")]
    vG = R.alloc("g"); vYa = R.alloc("ya")
    vY = R.alloc("y", 16)
    fO = R.alloc("fO", 64)
    fW = [R.alloc("fW0", 8), R.alloc("fW1", 8)]
    acc = [[R.alloc(f"acc{e}{t}", 16) for t in range(2)] for e in range(2)]
    nv = R.next
    sWS, sWo, sOut = 4, 6, 8
    srdWS, srdWo, srdOut = 12, 16, 20
    sW, sTb, sEb = 24, 25, 26
    sT0, sT1, sT2 = 28, 29, 30
    sT0row, sE0 = 31, 32
    sMirE = 33
    a.raw(kernel_header(name))
    a("s_cmp_ge_u32 s2, 256")
    a(f"s_cbranch_scc1 {name}_end")
    tl_entry(a)
    a(f"s_load_dwordx2 s[{sWS}:{sWS+1}], s[0:1], {ARG['ws']}")
    a(f"s_load_dwordx2 s[{sWo}:{sWo+1}], s[0:1], {ARG['wo']}")
    a(f"s_load_dwordx2 s[{sOut}:{sOut+1}], s[0:1], {ARG['out']}")
    a(f"v_lshrrev_b32 v{vT0}, 6, v0")
    a(f"v_and_b32 v{vLane}, 63, v0")
    a(f"v_readfirstlane_b32 s{sW}, v{vT0}")
    a(f"v_lshlrev_b32 v{vL16}, 4, v{vLane}")
    a(f"s_and_b32 s{sT0}, s2, 7")
    a(f"s_lshr_b32 s{sT1}, s2, 3")
    a(f"s_lshl_b32 s{sTb}, s{sT0}, 2")
    a(f"s_and_b32 s{sT0}, s{sT1}, 3")
    a(f"s_add_u32 s{sTb}, s{sTb}, s{sT0}")
    a(f"s_lshr_b32 s{sEb}, s{sT1}, 2")
    a(f"v_lshrrev_b32 v{vT0}, 3, v{vLane}")
    a(f"v_lshlrev_b32 v{vOffW}, 10, v{vT0}")
    a(f"v_bfe_u32 v{vT1}, v{vLane}, 4, 1")
    a(f"v_bfe_u32 v{vT2}, v{vLane}, 2, 1")
    a(f"v_xor_b32 v{vT1}, v{vT1}, v{vT2}")
    a(f"v_lshlrev_b32 v{vT1}, 6, v{vT1}")
    a(f"v_add_u32 v{vOffW}, v{vOffW}, v{vT1}")
    a(f"v_and_b32 v{vT1}, 3, v{vLane}")
    a(f"v_lshlrev_b32 v{vT1}, 4, v{vT1}")
    a(f"v_add_u32 v{vOffW}, v{vOffW}, v{vT1}")
    a("s_waitcnt lgkmcnt(0)")
    srd(a, srdWS, sWS, WS_SIZE_USED)
    srd(a, srdWo, sWo, 512*1024)
    srd(a, srdOut, sOut, 2048*1024)
    a(f"s_lshl_b32 s{sT0}, s{sTb}, 6")
    a(f"s_lshl_b32 s{sT1}, s{sW}, 3")
    a(f"s_add_u32 s{sT0}, s{sT0}, s{sT1}")
    a(f"s_lshl_b32 s{sT0}, s{sT0}, 10")
    a(f"s_add_u32 s{sT0}, s{sT0}, {WS_O}")
    tl_stamp(a, 0)
    a(f"s_lshl_b32 s{sT2}, s{sW}, 17")
    a(f"s_lshl_b32 s{sT1}, s{sEb}, 7")
    a(f"s_add_u32 s{sT2}, s{sT2}, s{sT1}")
    a(f"s_lshl_b32 s34, s{sW}, 14")
    for hd in range(8):
        for mm in range(2):
            m = hd*2 + mm
            a(f"s_add_u32 m0, s34, {m*1024}")
            a(f"s_add_u32 s{sT1}, s{sT2}, {m*8192}")
            a(f"buffer_load_dwordx4 v{vOffW}, s[{srdWo}:{srdWo+3}], s{sT1} offen lds")
        for tt in range(2):
            a(f"s_add_u32 s{sT1}, s{sT0}, {tt*32768 + hd*1024}")
            a(f"buffer_load_dwordx4 {vr(fO+(hd*2+tt)*4,4)}, v{vL16}, s[{srdWS}:{srdWS+3}], s{sT1} offen")
    tl_stamp(a, 1)
    a(f"s_and_b32 s{sT0}, s{sW}, 1")
    a(f"s_lshl_b32 s{sT0}, s{sT0}, 5")
    a(f"s_lshl_b32 s{sT0row}, s{sTb}, 6")
    a(f"s_add_u32 s{sT0row}, s{sT0row}, s{sT0}")
    a(f"s_lshr_b32 s{sT0}, s{sW}, 1")
    a(f"s_lshl_b32 s{sT0}, s{sT0}, 5")
    a(f"s_lshl_b32 s{sE0}, s{sEb}, 6")
    a(f"s_add_u32 s{sE0}, s{sE0}, s{sT0}")
    a(f"v_and_b32 v{vT0}, 31, v{vLane}")
    a(f"v_add_u32 v{vT0}, s{sT0row}, v{vT0}")
    a(f"v_lshlrev_b32 v{vT1}, 2, v{vT0}")
    a(f"s_mov_b32 s{sT1}, {WS_G}")
    a(f"buffer_load_dword v{vG}, v{vT1}, s[{srdWS}:{srdWS+3}], s{sT1} offen")
    a(f"v_sub_u32 v{vT1}, 2048, v{vT0}")
    a(f"s_cmp_lt_u32 s{sT0row}, 1024")
    a("s_cselect_b64 vcc, -1, 0")
    a(f"s_cselect_b32 s35, 1, 0")
    a(f"v_cndmask_b32 v{vT1}, v{vT1}, v{vT0}, vcc")
    a(f"v_mul_u32_u24 v{vYa}, {Y_STRIDE}, v{vT1}")
    a(f"v_lshrrev_b32 v{vT1}, 5, v{vLane}")
    a(f"v_lshlrev_b32 v{vT1}, 4, v{vT1}")
    a(f"s_cmp_lt_u32 s{sE0}, 256")
    a(f"s_cselect_b32 s{sMirE}, 0, 1")
    a(f"s_cselect_b32 s36, 1, 0")
    a(f"s_cbranch_scc0 {name}_mir")
    a(f"v_add_u32 v{vYa}, v{vYa}, v{vT1}")
    a(f"s_lshl_b32 s{sT1}, s{sE0}, 2")
    a(f"s_branch {name}_ya")
    a.label(f"{name}_mir")
    a(f"s_sub_u32 s{sT1}, 485, s{sE0}")
    a(f"s_lshl_b32 s{sT1}, s{sT1}, 2")
    a(f"v_add_u32 v{vYa}, s{sT1}, v{vYa}")
    a(f"v_sub_u32 v{vYa}, v{vYa}, v{vT1}")
    a(f"s_mov_b32 s{sT1}, 0")
    a.label(f"{name}_ya")
    a(f"s_cmp_eq_u32 s35, s36")
    a(f"s_mov_b32 s37, {WS_E}")
    a(f"s_cselect_b32 s{sT2}, {WS_D}, s37")
    a(f"s_add_u32 s{sT1}, s{sT1}, s{sT2}")
    for c in range(4):
        a(f"buffer_load_dwordx4 {vr(vY+4*c,4)}, v{vYa}, s[{srdWS}:{srdWS+3}], s{sT1} offen offset:{c*32}")
    a(f"v_bfe_u32 v{vT0}, v{vLane}, 2, 2")
    a(f"v_lshrrev_b32 v{vT1}, 5, v{vLane}")
    a(f"v_lshlrev_b32 v{vT1}, 2, v{vT1}")
    a(f"v_add_u32 v{vT0}, v{vT0}, v{vT1}")
    a(f"v_lshlrev_b32 v{vT0}, 7, v{vT0}")
    a(f"v_bfe_u32 v{vT1}, v{vLane}, 4, 1")
    a(f"v_lshlrev_b32 v{vT1}, 5, v{vT1}")
    a(f"v_add_u32 v{vT0}, v{vT0}, v{vT1}")
    a(f"v_and_b32 v{vT1}, 3, v{vLane}")
    a(f"v_lshlrev_b32 v{vT1}, 3, v{vT1}")
    a(f"v_add_u32 v{vT0}, v{vT0}, v{vT1}")
    a(f"v_add_u32 v{vT0}, s34, v{vT0}")
    a(f"v_bfe_u32 v{vT1}, v{vLane}, 3, 1")
    for et in range(2):
        a(f"v_xor_b32 v{vT2}, {et}, v{vT1}")
        a(f"v_lshlrev_b32 v{vT2}, 6, v{vT2}")
        a(f"v_add_u32 v{vWa[et]}, v{vT0}, v{vT2}")
    for e in range(2):
        for t in range(2):
            for i in range(16):
                a(f"v_mov_b32 v{acc[e][t]+i}, 0")
    def wreads(hd, s):
        for et in range(2):
            for u in range(2):
                a(f"ds_read_b64_tr_b16 {vr(fW[s]+4*et+2*u,2)}, v{vWa[et]} offset:{(16*hd+8*u)*128}")
    tl_stamp(a, 2)
    for hd in range(8):
        rem = (7 - hd) * 4 + 5
        a(f"s_waitcnt vmcnt({rem})")
        if hd == 0: tl_stamp(a, 3)
        wreads(hd, hd & 1)
        a("s_waitcnt lgkmcnt(0)")
        for et in range(2):
            for tt in range(2):
                a(f"v_mfma_f32_32x32x16_bf16 {vr(acc[et][tt],16)}, {vr(fW[hd&1]+4*et,4)}, {vr(fO+(hd*2+tt)*4,4)}, {vr(acc[et][tt],16)}")
    tl_stamp(a, 4)
    a("s_nop 15")
    a("s_nop 3")
    a(f"s_lshl_b32 s{sT0}, s{sW}, 12")
    a(f"v_add_u32 v{vT0}, s{sT0}, v{vL16}")
    a(f"v_add_u32 v{vT0}, 65536, v{vT0}")
    for et in range(2):
        for tt in range(2):
            ti = et*2 + tt
            for q in range(4):
                a(f"ds_write_b128 v{vT0}, {vr(acc[et][tt]+4*q,4)} offset:{ti*16384 + q*1024}")
    a("s_waitcnt lgkmcnt(0)")
    a("s_barrier")
    tl_stamp(a, 5)
    a(f"s_lshl_b32 s{sT0}, s{sW}, 14")
    a(f"v_add_u32 v{vT0}, s{sT0}, v{vL16}")
    a(f"v_add_u32 v{vT0}, 65536, v{vT0}")
    S = fO
    for src in range(4):
        for q in range(4):
            a(f"ds_read_b128 {vr(S+16*src+4*q,4)}, v{vT0} offset:{src*4096 + q*1024}")
    a("s_waitcnt lgkmcnt(0)")
    for src in range(1, 4):
        for i in range(16):
            a(f"v_add_f32 v{S+i}, v{S+i}, v{S+16*src+i}")
    tl_stamp(a, 6)
    a("s_waitcnt vmcnt(0)")
    tl_stamp(a, 7)
    a(f"s_cmp_eq_u32 s{sMirE}, 0")
    a(f"s_cbranch_scc0 {name}_cm")
    for i in range(16):
        a(f"v_sub_f32 v{S+i}, v{S+i}, v{vY+i}")
        a(f"v_fma_f32 v{S+i}, v{vG}, v{S+i}, v{vY+i}")
    a(f"s_branch {name}_st")
    a.label(f"{name}_cm")
    for g in range(4):
        for r in range(4):
            y = vY + 4*(3-g) + (3-r)
            a(f"v_sub_f32 v{S+4*g+r}, v{S+4*g+r}, v{y}")
            a(f"v_fma_f32 v{S+4*g+r}, v{vG}, v{S+4*g+r}, v{y}")
    a.label(f"{name}_st")
    P = S + 16
    for i in range(8):
        a(f"v_cvt_pk_bf16_f32 v{P+i}, v{S+2*i}, v{S+2*i+1}")
    a("s_nop 1")
    for pr in range(2):
        a(f"v_permlane32_swap_b32 v{P+4*pr}, v{P+4*pr+2}")
        a(f"v_permlane32_swap_b32 v{P+4*pr+1}, v{P+4*pr+3}")
    a(f"v_and_b32 v{vT0}, 31, v{vLane}")
    a(f"v_add_u32 v{vT0}, s{sT0row}, v{vT0}")
    a(f"v_lshlrev_b32 v{vT0}, 10, v{vT0}")
    a(f"v_lshrrev_b32 v{vT1}, 5, v{vLane}")
    a(f"v_lshlrev_b32 v{vT1}, 4, v{vT1}")
    a(f"v_add_u32 v{vT0}, v{vT0}, v{vT1}")
    a(f"s_lshl_b32 s{sT0}, s{sE0}, 1")
    for pr in range(2):
        a(f"buffer_store_dwordx4 {vr(P+4*pr,4)}, v{vT0}, s[{srdOut}:{srdOut+3}], s{sT0} offen offset:{32*pr}")
    tl_exit(a, 3, sWS)
    a.label(f"{name}_end")
    a("s_endpgm")
    return nv
```

```python
from asmlib import *
from common import *

def gen_k3v2(a, name):
    R = RegAlloc(0, 128)
    R.alloc("tid")
    vLane = R.alloc("lane"); vT0 = R.alloc("t0"); vT1 = R.alloc("t1"); vT2 = R.alloc("t2")
    vL16 = R.alloc("l16")
    base = R.next
    sWS, sWo, sOut = 4, 6, 8
    srdWS, srdWo, srdOut = 12, 16, 20
    sW, sTb, sEb = 24, 25, 26
    sT0, sT1, sT2 = 28, 29, 30
    sT0row, sE0, sMirE = 31, 32, 33
    a.raw(kernel_header(name))
    a("s_cmp_ge_u32 s2, 256")
    a(f"s_cbranch_scc1 {name}_end")
    tl_entry(a)
    a(f"s_load_dwordx2 s[{sWS}:{sWS+1}], s[0:1], {ARG['ws']}")
    a(f"s_load_dwordx2 s[{sWo}:{sWo+1}], s[0:1], {ARG['wo']}")
    a(f"s_load_dwordx2 s[{sOut}:{sOut+1}], s[0:1], {ARG['out']}")
    a(f"v_lshrrev_b32 v{vT0}, 6, v0")
    a(f"v_and_b32 v{vLane}, 63, v0")
    a(f"v_readfirstlane_b32 s{sW}, v{vT0}")
    a(f"v_lshlrev_b32 v{vL16}, 4, v{vLane}")
    a(f"s_and_b32 s{sT0}, s2, 7")
    a(f"s_lshr_b32 s{sT1}, s2, 3")
    a(f"s_lshl_b32 s{sTb}, s{sT0}, 2")
    a(f"s_and_b32 s{sT0}, s{sT1}, 3")
    a(f"s_add_u32 s{sTb}, s{sTb}, s{sT0}")
    a(f"s_lshr_b32 s{sEb}, s{sT1}, 2")
    a(f"s_cmp_lt_u32 s{sW}, 4")
    a(f"s_cbranch_scc1 {name}_cons")
    vOffW = base
    a(f"s_sub_u32 s{sW}, s{sW}, 4")
    a(f"v_lshrrev_b32 v{vT0}, 3, v{vLane}")
    a(f"v_lshlrev_b32 v{vOffW}, 10, v{vT0}")
    a(f"v_bfe_u32 v{vT1}, v{vLane}, 4, 1")
    a(f"v_bfe_u32 v{vT2}, v{vLane}, 2, 1")
    a(f"v_xor_b32 v{vT1}, v{vT1}, v{vT2}")
    a(f"v_lshlrev_b32 v{vT1}, 6, v{vT1}")
    a(f"v_add_u32 v{vOffW}, v{vOffW}, v{vT1}")
    a(f"v_and_b32 v{vT1}, 3, v{vLane}")
    a(f"v_lshlrev_b32 v{vT1}, 4, v{vT1}")
    a(f"v_add_u32 v{vOffW}, v{vOffW}, v{vT1}")
    a(f"s_lshl_b32 s{sT2}, s{sW}, 15")
    a(f"s_lshl_b32 s{sT1}, s{sEb}, 7")
    a(f"s_add_u32 s34, s{sT2}, s{sT1}")
    a(f"s_lshl_b32 s35, s{sW}, 12")
    a(f"s_lshl_b32 s{sT0}, s{sTb}, 6")
    a(f"s_lshl_b32 s{sT1}, s{sW}, 1")
    a(f"s_add_u32 s{sT0}, s{sT0}, s{sT1}")
    a(f"s_lshl_b32 s{sT0}, s{sT0}, 10")
    a(f"s_add_u32 s36, s{sT0}, {WS_O}")
    a(f"s_lshl_b32 s37, s{sW}, 12")
    a(f"s_add_u32 s37, s37, 65536")
    a("s_waitcnt lgkmcnt(0)")
    srd(a, srdWS, sWS, WS_SIZE_USED)
    srd(a, srdWo, sWo, 512*1024)
    vm = Vm(a)
    def chunk(c):
        for m in range(4):
            a(f"s_add_u32 m0, s35, {c*16384 + m*1024}")
            a(f"s_add_u32 s{sT1}, s34, {c*131072 + m*8192}")
            a(f"buffer_load_dwordx4 v{vOffW}, s[{srdWo}:{srdWo+3}], s{sT1} offen lds")
            hh, tt = m >> 1, m & 1
            a(f"s_add_u32 m0, s37, {c*16384 + (hh*2+tt)*1024}")
            a(f"s_add_u32 s{sT1}, s36, {tt*32768 + (8*c+hh)*1024}")
            a(f"buffer_load_dwordx4 v{vL16}, s[{srdWS}:{srdWS+3}], s{sT1} offen lds")
        vm.issue(c, 8)
    tl_stamp(a, 0)
    chunk(0); chunk(1)
    for c in range(4):
        vm.wait(c)
        a("s_barrier")
        tl_stamp(a, 1 + c)
        if c + 2 < 4: chunk(c + 2)
    tl_exit(a, 3, sWS)
    a("s_endpgm")
    a.label(f"{name}_cons")
    Rc = RegAlloc(base, 128)
    vWa = Rc.alloc("wa"); vOa = Rc.alloc("oa"); vG = Rc.alloc("g"); vYa = Rc.alloc("ya")
    vY = Rc.alloc("y", 16)
    NS = 4
    fW = [Rc.alloc(f"fW{i}", 4) for i in range(NS)]
    fO = [Rc.alloc(f"fO{i}", 4) for i in range(NS)]
    acc = Rc.alloc("acc", 16)
    P = Rc.alloc("P", 8)
    nv = Rc.next
    a(f"s_and_b32 s{sT0}, s{sW}, 1")
    a(f"s_lshl_b32 s38, s{sT0}, 10")
    a(f"s_lshl_b32 s{sT0}, s{sT0}, 5")
    a(f"s_lshl_b32 s{sT0row}, s{sTb}, 6")
    a(f"s_add_u32 s{sT0row}, s{sT0row}, s{sT0}")
    a(f"s_lshr_b32 s39, s{sW}, 1")
    a(f"s_lshl_b32 s{sT0}, s39, 5")
    a(f"s_lshl_b32 s{sE0}, s{sEb}, 6")
    a(f"s_add_u32 s{sE0}, s{sE0}, s{sT0}")
    a(f"v_and_b32 v{vT0}, 31, v{vLane}")
    a(f"v_add_u32 v{vT0}, s{sT0row}, v{vT0}")
    a(f"v_lshlrev_b32 v{vT1}, 2, v{vT0}")
    a("s_waitcnt lgkmcnt(0)")
    srd(a, srdWS, sWS, WS_SIZE_USED)
    srd(a, srdOut, sOut, 2048*1024)
    a(f"s_mov_b32 s{sT1}, {WS_G}")
    a(f"buffer_load_dword v{vG}, v{vT1}, s[{srdWS}:{srdWS+3}], s{sT1} offen")
    a(f"v_sub_u32 v{vT1}, 2048, v{vT0}")
    a(f"s_cmp_lt_u32 s{sT0row}, 1024")
    a("s_cselect_b64 vcc, -1, 0")
    a(f"s_cselect_b32 s35, 1, 0")
    a(f"v_cndmask_b32 v{vT1}, v{vT1}, v{vT0}, vcc")
    a(f"v_mul_u32_u24 v{vYa}, {Y_STRIDE}, v{vT1}")
    a(f"v_lshrrev_b32 v{vT1}, 5, v{vLane}")
    a(f"v_lshlrev_b32 v{vT1}, 4, v{vT1}")
    a(f"s_cmp_lt_u32 s{sE0}, 256")
    a(f"s_cselect_b32 s{sMirE}, 0, 1")
    a(f"s_cselect_b32 s36, 1, 0")
    a(f"s_cbranch_scc0 {name}_mir")
    a(f"v_add_u32 v{vYa}, v{vYa}, v{vT1}")
    a(f"s_lshl_b32 s{sT1}, s{sE0}, 2")
    a(f"s_branch {name}_ya")
    a.label(f"{name}_mir")
    a(f"s_sub_u32 s{sT1}, 485, s{sE0}")
    a(f"s_lshl_b32 s{sT1}, s{sT1}, 2")
    a(f"v_add_u32 v{vYa}, s{sT1}, v{vYa}")
    a(f"v_sub_u32 v{vYa}, v{vYa}, v{vT1}")
    a(f"s_mov_b32 s{sT1}, 0")
    a.label(f"{name}_ya")
    a(f"s_cmp_eq_u32 s35, s36")
    a(f"s_mov_b32 s37, {WS_E}")
    a(f"s_cselect_b32 s{sT2}, {WS_D}, s37")
    a(f"s_add_u32 s{sT1}, s{sT1}, s{sT2}")
    for c in range(4):
        a(f"buffer_load_dwordx4 {vr(vY+4*c,4)}, v{vYa}, s[{srdWS}:{srdWS+3}], s{sT1} offen offset:{c*32}")
    a(f"v_bfe_u32 v{vT0}, v{vLane}, 2, 2")
    a(f"v_lshrrev_b32 v{vT1}, 5, v{vLane}")
    a(f"v_lshlrev_b32 v{vT1}, 2, v{vT1}")
    a(f"v_add_u32 v{vT0}, v{vT0}, v{vT1}")
    a(f"v_lshlrev_b32 v{vT0}, 7, v{vT0}")
    a(f"v_bfe_u32 v{vT1}, v{vLane}, 4, 1")
    a(f"v_lshlrev_b32 v{vT1}, 5, v{vT1}")
    a(f"v_add_u32 v{vT0}, v{vT0}, v{vT1}")
    a(f"v_and_b32 v{vT1}, 3, v{vLane}")
    a(f"v_lshlrev_b32 v{vT1}, 3, v{vT1}")
    a(f"v_add_u32 v{vT0}, v{vT0}, v{vT1}")
    a(f"v_bfe_u32 v{vT1}, v{vLane}, 3, 1")
    a(f"v_xor_b32 v{vT1}, s39, v{vT1}")
    a(f"v_lshlrev_b32 v{vT1}, 6, v{vT1}")
    a(f"v_add_u32 v{vWa}, v{vT0}, v{vT1}")
    a(f"v_add_u32 v{vOa}, s38, v{vL16}")
    a(f"v_add_u32 v{vOa}, 65536, v{vOa}")
    for i in range(16):
        a(f"v_mov_b32 v{acc+i}, 0")
    def reads(hd):
        s = hd % NS
        off = hd * 2048
        for u in range(2):
            o = off + u*1024
            if o <= 65535 - 8:
                a(f"ds_read_b64_tr_b16 {vr(fW[s]+2*u,2)}, v{vWa} offset:{o}")
        a(f"ds_read_b128 {vr(fO[s],4)}, v{vOa} offset:{hd*2048}")
    PD = 3
    tl_stamp(a, 0)
    for c in range(4):
        a("s_barrier")
        tl_stamp(a, 1 + c)
        hs = list(range(8*c, 8*c + 8))
        for i in range(PD):
            reads(hs[i])
        for i, hd in enumerate(hs):
            if i + PD < 8:
                reads(hs[i + PD])
                a(f"s_waitcnt lgkmcnt({3*PD})")
            else:
                a(f"s_waitcnt lgkmcnt({3*(7-i)})")
            a(f"v_mfma_f32_32x32x16_bf16 {vr(acc,16)}, {vr(fW[hd%NS],4)}, {vr(fO[hd%NS],4)}, {vr(acc,16)}")
    tl_stamp(a, 5)
    a("s_waitcnt vmcnt(0)")
    a("s_nop 12")
    S = acc
    a(f"s_cmp_eq_u32 s{sMirE}, 0")
    a(f"s_cbranch_scc0 {name}_cm")
    for i in range(16):
        a(f"v_sub_f32 v{S+i}, v{S+i}, v{vY+i}")
        a(f"v_fma_f32 v{S+i}, v{vG}, v{S+i}, v{vY+i}")
    a(f"s_branch {name}_st")
    a.label(f"{name}_cm")
    for g in range(4):
        for r in range(4):
            y = vY + 4*(3-g) + (3-r)
            a(f"v_sub_f32 v{S+4*g+r}, v{S+4*g+r}, v{y}")
            a(f"v_fma_f32 v{S+4*g+r}, v{vG}, v{S+4*g+r}, v{y}")
    a.label(f"{name}_st")
    for i in range(8):
        a(f"v_cvt_pk_bf16_f32 v{P+i}, v{S+2*i}, v{S+2*i+1}")
    a(f"v_and_b32 v{vT0}, 31, v{vLane}")
    a(f"v_add_u32 v{vT0}, s{sT0row}, v{vT0}")
    a(f"v_lshlrev_b32 v{vT0}, 10, v{vT0}")
    a(f"v_lshrrev_b32 v{vT1}, 5, v{vLane}")
    a(f"v_lshlrev_b32 v{vT1}, 4, v{vT1}")
    a(f"v_add_u32 v{vT0}, v{vT0}, v{vT1}")
    a(f"s_lshl_b32 s{sT0}, s{sE0}, 1")
    for pr in range(2):
        a(f"v_permlane32_swap_b32 v{P+4*pr}, v{P+4*pr+2}")
        a(f"v_permlane32_swap_b32 v{P+4*pr+1}, v{P+4*pr+3}")
    for pr in range(2):
        a(f"buffer_store_dwordx4 {vr(P+4*pr,4)}, v{vT0}, s[{srdOut}:{srdOut+3}], s{sT0} offen offset:{32*pr}")
    tl_exit(a, 3, sWS)
    a.label(f"{name}_end")
    a("s_endpgm")
    return nv
```

```python
import sys
from asmlib import *

NAME = "gated_mix__softmax_full_mha__spectral_fnet__prompt"
from common import *
from gen_k1 import gen_k1
from gen_f2 import gen_f2
from gen_k3 import gen_k3
from gen_attn2 import gen_attn2
from gen_k1v2 import gen_k1v2
from gen_k2 import gen_k2
from gen_k3v2 import gen_k3v2
from gen_fused import gen_fused

TIMING = False
OPT = {}
def stamp(a, sreg):
    if TIMING:
        a(f"s_memtime s[{sreg}:{sreg+1}]")
def stamp_store(a, regs, vtmp, vaddr, srd_base, wave_index_sreg, stmp):
    if not TIMING: return
    a("s_waitcnt lgkmcnt(0)")
    a(f"s_lshl_b32 s{stmp}, s{wave_index_sreg}, 6")
    a(f"s_add_u32 s{stmp}, s{stmp}, {WS_T}")
    a(f"v_mov_b32 v{vaddr}, 0")
    for i, r in enumerate(regs):
        a(f"v_mov_b32 v{vtmp}, s{r}")
        a(f"buffer_store_dword v{vtmp}, v{vaddr}, s[{srd_base}:{srd_base+3}], s{stmp} offen offset:{4*i}")

def gen_attn(a, name):
    R = RegAlloc(0, 168)
    v_tid = R.alloc("tid")
    vLane16 = R.alloc("lane16")
    vAK = R.alloc("addrK")
    vAV = R.alloc("addrV")
    vT0 = R.alloc("tmp0")
    vT1 = R.alloc("tmp1")
    vM = R.alloc("m")
    vQ = R.alloc("Q", 4)
    vK = R.alloc("K", 4)
    vV0 = R.alloc("V0", 4)
    vV1 = R.alloc("V1", 4)
    vP = R.alloc("P", 8)
    vS = [R.alloc("S0", 16), R.alloc("S1", 16)]
    vT = R.alloc("T", 16)
    vO = R.alloc("O", 16)
    vC = R.alloc("C", 16)
    nv = R.next
    sWS = 4
    sSRD = 8
    sW, sHead, sQb = 12, 13, 14
    sKoff, sVoff = 15, 16
    sCh = 17
    sIt = 18
    sTmp, sTmp2 = 19, 20
    sMask = 22
    sRetry = 24

    a.raw(kernel_header(name))
    a("s_cmp_ge_u32 s2, 256")
    a(f"s_cbranch_scc1 {name}_end")
    tl_entry(a)
    stamp(a, 40)
    if TIMING: a("s_memrealtime s[54:55]")
    a(f"s_load_dwordx2 s[{sWS}:{sWS+1}], s[0:1], {ARG['ws']}")
    a(f"v_lshrrev_b32 v{vT0}, 6, v0")
    a(f"v_and_b32 v{vT1}, 63, v0")
    a(f"v_readfirstlane_b32 s{sW}, v{vT0}")
    a(f"v_lshlrev_b32 v{vLane16}, 4, v{vT1}")
    a(f"s_and_b32 s{sTmp}, s2, 7")
    a(f"s_lshr_b32 s{sTmp2}, s2, 3")
    a(f"s_lshl_b32 s{sHead}, s{sTmp}, 2")
    a(f"s_and_b32 s{sTmp}, s{sTmp2}, 3")
    a(f"s_add_u32 s{sHead}, s{sHead}, s{sTmp}")
    a(f"s_lshr_b32 s{sQb}, s{sTmp2}, 2")
    a(f"s_mov_b32 s{sMask}, 0x0000ffff")
    a(f"s_mov_b32 s{sMask+1}, 0x0000ffff")
    a(f"s_mov_b32 s{sRetry}, 0")
    a("s_waitcnt lgkmcnt(0)")
    srd(a, sSRD, sWS, WS_SIZE_USED)
    a(f"s_lshl_b32 s{sTmp}, s{sHead}, 6")
    a(f"s_add_u32 s{sTmp}, s{sTmp}, s{sW}")
    a(f"s_lshl_b32 s{sTmp}, s{sTmp}, 10")
    a(f"s_add_u32 s{sKoff}, s{sTmp}, {WS_K}")
    a(f"s_add_u32 s{sVoff}, s{sTmp}, {WS_V}")
    a(f"s_lshl_b32 s{sTmp2}, s{sQb}, 13")
    a(f"s_add_u32 s{sTmp2}, s{sTmp2}, s{sTmp}")
    a(f"buffer_load_dwordx4 {vr(vQ,4)}, v{vLane16}, s[{sSRD}:{sSRD+3}], s{sTmp2} offen")

    def dma_chunk(chunk_sreg=None, const=None):
        if const is not None:
            a(f"s_lshl_b32 s{sTmp}, s{sW}, 10")
            a(f"s_add_u32 s{sTmp}, s{sTmp}, {const*8192}")
            a(f"s_add_u32 s{sTmp2}, s{sKoff}, {const*8192}")
            a(f"s_mov_b32 m0, s{sTmp}")
            a(f"s_add_u32 s{sTmp}, s{sTmp}, 65536")
            a(f"buffer_load_dwordx4 v{vLane16}, s[{sSRD}:{sSRD+3}], s{sTmp2} offen lds")
            a(f"s_add_u32 s{sTmp2}, s{sVoff}, {const*8192}")
            a(f"s_mov_b32 m0, s{sTmp}")
            a("s_nop 0")
            a(f"buffer_load_dwordx4 v{vLane16}, s[{sSRD}:{sSRD+3}], s{sTmp2} offen lds")
        else:
            c = chunk_sreg
            a(f"s_lshl_b32 s{sTmp}, s{sW}, 10")
            a(f"s_lshl_b32 s21, s{c}, 13")
            a(f"s_add_u32 s{sTmp}, s{sTmp}, s21")
            a(f"s_add_u32 s{sTmp2}, s{sKoff}, s21")
            a(f"s_mov_b32 m0, s{sTmp}")
            a(f"s_add_u32 s{sTmp}, s{sTmp}, 65536")
            a(f"buffer_load_dwordx4 v{vLane16}, s[{sSRD}:{sSRD+3}], s{sTmp2} offen lds")
            a(f"s_add_u32 s{sTmp2}, s{sVoff}, s21")
            a(f"s_mov_b32 m0, s{sTmp}")
            a("s_nop 0")
            a(f"buffer_load_dwordx4 v{vLane16}, s[{sSRD}:{sSRD+3}], s{sTmp2} offen lds")

    for c in range(3):
        dma_chunk(const=c)
    a(f"v_lshrrev_b32 v{vT0}, 5, v{vT1}")
    a(f"v_lshlrev_b32 v{vT0}, 8, v{vT0}")
    a(f"v_and_b32 v{vAV}, 15, v{vT1}")
    a(f"v_lshlrev_b32 v{vAV}, 4, v{vAV}")
    a(f"v_add_u32 v{vAV}, v{vAV}, v{vT0}")
    a(f"v_add_u32 v{vAV}, 65536, v{vAV}")
    a(f"v_mov_b32 v{vM}, 0x3f803f80")
    a(f"v_and_b32 v{vAK}, 31, v{vT1}")
    a(f"v_cmp_eq_u32 vcc, 16, v{vAK}")
    a(f"v_cmp_eq_u32 s[26:27], 20, v{vAK}")
    a("s_nop 1")
    a("s_or_b64 vcc, vcc, s[26:27]")
    a("s_nop 1")
    a(f"v_cndmask_b32 v{vT0}, 0, v{vM}, vcc")
    for i in range(4):
        a(f"v_mov_b32 v{vV0+i}, v{vT0}")
        a(f"v_mov_b32 v{vV1+i}, v{vT0}")
    stamp(a, 42)
    a("s_waitcnt vmcnt(2)")
    a("s_barrier")
    stamp(a, 44)
    dma_chunk(const=3)
    a(f"s_mov_b32 s{sCh}, 4")

    def first_max_and_C():
        a(f"ds_read_b128 {vr(vK,4)}, v{vLane16}")
        a("s_waitcnt lgkmcnt(0)")
        a(f"v_mfma_f32_32x32x16_bf16 {vr(vS[0],16)}, {vr(vK,4)}, {vr(vQ,4)}, 0")
        a("s_nop 15")
        a("s_nop 3")
        S = vS[0]
        a(f"v_max3_f32 v{vM}, v{S}, v{S+1}, v{S+2}")
        for i in range(3, 15, 2):
            a(f"v_max3_f32 v{vM}, v{vM}, v{S+i}, v{S+i+1}")
        a(f"v_max_f32 v{vM}, v{vM}, v{S+15}")

    def bcast_negmax():
        a(f"v_mov_b32 v{vT0}, v{vM}")
        a("s_nop 1")
        a(f"v_permlane32_swap_b32 v{vT0}, v{vM}")
        a("s_nop 1")
        a(f"v_max_f32 v{vM}, v{vM}, v{vT0}")
        for i in range(16):
            a(f"v_sub_f32 v{vC+i}, 0, v{vM}")

    def pipeline_init():
        for i in range(16):
            a(f"v_mov_b32 v{vO+i}, 0")
        for i in range(4, 8):
            a(f"v_mov_b32 v{vP+i}, 0")
        a(f"v_mov_b32 v{vAK}, v{vLane16}")
        a(f"ds_read_b128 {vr(vK,4)}, v{vAK}")
        a(f"ds_read_b128 {vr(vT,4)}, v{vAK} offset:1024")
        a("s_waitcnt lgkmcnt(0)")
        a(f"v_mfma_f32_32x32x16_bf16 {vr(vS[0],16)}, {vr(vK,4)}, {vr(vQ,4)}, {vr(vC,16)}")
        a(f"v_mfma_f32_32x32x16_bf16 {vr(vS[1],16)}, {vr(vT,4)}, {vr(vQ,4)}, {vr(vC,16)}")
        a(f"s_mov_b64 exec, s[{sMask}:{sMask+1}]")
        a(f"ds_read_b128 {vr(vV0,4)}, v{vAV}")
        a("s_mov_b64 exec, -1")
        a(f"ds_read_b128 {vr(vK,4)}, v{vAK} offset:2048")
        a("s_nop 15")

    def step(u):
        S = vS[u & 1]
        e = lambda i: a(f"v_exp_f32 v{vT+i}, v{S+i}")
        c = lambda i: a(f"v_cvt_pk_bf16_f32 v{vP+i}, v{vT+2*i}, v{vT+2*i+1}")
        e(0); e(1); e(2); c(0); e(3); e(4)
        a("s_waitcnt lgkmcnt(2)")
        a(f"v_mfma_f32_32x32x16_bf16 {vr(vO,16)}, {vr(vV1,4)}, {vr(vP+4,4)}, {vr(vO,16)}")
        if not OPT.get("noexec"): a(f"s_mov_b64 exec, s[{sMask}:{sMask+1}]")
        if not OPT.get("nolds"): a(f"ds_read_b128 {vr(vV1,4)}, v{vAV} offset:{(2*u+1)*512}")
        if not OPT.get("noexec"): a("s_mov_b64 exec, -1")
        c(1); e(5); e(6); c(2); e(7); e(8); c(3); e(9); e(10)
        a("s_waitcnt lgkmcnt(2)")
        a(f"v_mfma_f32_32x32x16_bf16 {vr(vO,16)}, {vr(vV0,4)}, {vr(vP,4)}, {vr(vO,16)}")
        if not OPT.get("noexec"): a(f"s_mov_b64 exec, s[{sMask}:{sMask+1}]")
        if not OPT.get("nolds"): a(f"ds_read_b128 {vr(vV0,4)}, v{vAV} offset:{(2*u+2)*512}")
        if not OPT.get("noexec"): a("s_mov_b64 exec, -1")
        e(11); c(4); e(12); c(5); e(13); e(14); c(6); e(15)
        a("s_waitcnt lgkmcnt(2)")
        a(f"v_mfma_f32_32x32x16_bf16 {vr(S,16)}, {vr(vK,4)}, {vr(vQ,4)}, {vr(vC,16)}")
        if not OPT.get("nolds"): a(f"ds_read_b128 {vr(vK,4)}, v{vAK} offset:{(u+3)*1024}")
        c(7)

    def main_loop(sync, lbl):
        a(f"s_mov_b32 s{sIt}, 8")
        a.label(lbl)
        for u in range(8):
            step(u)
        a(f"v_add_u32 v{vAK}, 8192, v{vAK}")
        a(f"v_add_u32 v{vAV}, 8192, v{vAV}")
        if sync and not OPT.get("nosync"):
            a("s_waitcnt vmcnt(2)")
            a("s_barrier")
            a(f"s_min_u32 s25, s{sCh}, 7")
            dma_chunk(chunk_sreg=25)
            a(f"s_add_u32 s{sCh}, s{sCh}, 1")
        a(f"s_sub_u32 s{sIt}, s{sIt}, 1")
        a(f"s_cmp_lg_u32 s{sIt}, 0")
        a(f"s_cbranch_scc1 {lbl}")
        a("s_waitcnt lgkmcnt(0)")
        a(f"v_mfma_f32_32x32x16_bf16 {vr(vO,16)}, {vr(vV1,4)}, {vr(vP+4,4)}, {vr(vO,16)}")

    first_max_and_C()
    bcast_negmax()
    pipeline_init()
    stamp(a, 46)
    main_loop(True, f"{name}_loop")
    stamp(a, 48)
    a.label(f"{name}_epi")
    a("s_nop 15")
    a("s_nop 3")
    a(f"s_cmp_lg_u32 s{sRetry}, 0")
    a(f"s_cbranch_scc1 {name}_fin")
    a(f"v_mov_b32 v{vT0}, 0x5d800000")
    a(f"v_cmp_nle_f32 vcc, v{vO+8}, v{vT0}")
    a("s_nop 4")
    a(f"s_cbranch_vccnz {name}_fallback")
    a.label(f"{name}_fin")
    a(f"v_rcp_f32 v{vT0}, v{vO+8}")
    a("s_nop 0")
    for i in range(8):
        a(f"v_mul_f32 v{vO+i}, v{vO+i}, v{vT0}")
    for i in range(4):
        a(f"v_cvt_pk_bf16_f32 v{vP+i}, v{vO+2*i}, v{vO+2*i+1}")
    a(f"s_lshl_b32 s{sTmp}, s{sQb}, 3")
    a(f"s_add_u32 s{sTmp}, s{sTmp}, s{sW}")
    a(f"s_lshl_b32 s{sTmp}, s{sTmp}, 5")
    a(f"s_add_u32 s{sTmp}, s{sTmp}, s{sHead}")
    a(f"s_lshl_b32 s{sTmp}, s{sTmp}, 10")
    a(f"s_add_u32 s{sTmp}, s{sTmp}, {WS_O}")
    a(f"buffer_store_dwordx4 {vr(vP,4)}, v{vLane16}, s[{sSRD}:{sSRD+3}], s{sTmp} offen")
    if TIMING:
        stamp(a, 50)
        a("s_memrealtime s[56:57]")
        a(f"s_lshl_b32 s52, s2, 3")
        a(f"s_add_u32 s52, s52, s{sW}")
        stamp_store(a, [40, 42, 44, 46, 48, 50, 54, 56], vT0, vT1, sSRD, 52, 53)
    tl_exit(a, 1, sWS)
    a("s_endpgm")
    a.label(f"{name}_fallback")
    a(f"s_mov_b32 s{sRetry}, 1")
    a(f"v_mov_b32 v{vAK}, v{vLane16}")
    a(f"v_mov_b32 v{vM}, 0xff800000")
    a(f"s_mov_b32 s{sIt}, 64")
    a.label(f"{name}_maxloop")
    a(f"ds_read_b128 {vr(vK,4)}, v{vAK}")
    a("s_waitcnt lgkmcnt(0)")
    a(f"v_mfma_f32_32x32x16_bf16 {vr(vS[0],16)}, {vr(vK,4)}, {vr(vQ,4)}, 0")
    a(f"v_add_u32 v{vAK}, 1024, v{vAK}")
    a("s_nop 15")
    a("s_nop 3")
    S = vS[0]
    for i in range(0, 16, 2):
        a(f"v_max3_f32 v{vM}, v{vM}, v{S+i}, v{S+i+1}")
    a(f"s_sub_u32 s{sIt}, s{sIt}, 1")
    a(f"s_cmp_lg_u32 s{sIt}, 0")
    a(f"s_cbranch_scc1 {name}_maxloop")
    bcast_negmax()
    a(f"v_subrev_u32 v{vAV}, 65536, v{vAV}")
    a(f"s_mov_b64 exec, s[{sMask}:{sMask+1}]")
    for i in range(4):
        a(f"v_mov_b32 v{vV1+i}, 0")
    a("s_mov_b64 exec, -1")
    pipeline_init()
    main_loop(False, f"{name}_loop2")
    a(f"s_branch {name}_epi")
    a.label(f"{name}_end")
    a("s_endpgm")
    return nv

HEADER = """; Kernarg layout for this problem (96 bytes, ptrs only, base s[0:1]):
"""

SINGLE = False
def build(kernels, launches, path):
    a = Asm()
    descs = []
    for (name, fn, kw) in kernels:
        nv = fn(a, name)
        descs.append(kernel_desc(name, nv, **kw))
    txt = HEADER
    for (k, g, b, lds) in launches:
        if SINGLE:
            txt += f"; @launch grid=({g},1,1) block=({b},1,1) lds={lds}\n"
        else:
            txt += f"; @launch kernel={k} grid=({g},1,1) block=({b},1,1) lds={lds}\n"
    txt += '.amdgcn_target "amdgcn-amd-amdhsa--gfx950"\n.text\n'
    txt += a.text()
    txt += '.section .rodata,"a"\n' + "".join(descs)
    open(path, "w").write(txt)

if __name__ == "__main__":
    mode = sys.argv[1]; path = sys.argv[2]
    TIMING = "t" in sys.argv[3:]
    TL["on"] = "tl" in sys.argv[3:]
    SINGLE = "single" in sys.argv[3:]
    for o in sys.argv[3:]:
        OPT[o] = True
    K = dict(k1=("k1_kernel", gen_k1, dict(sgpr=102), ("k1_kernel", 251, 256, 131072)),
             attn=("attn_kernel", gen_attn, dict(sgpr=102), ("attn_kernel", 256, 512, 131072)),
             attn2=("attn_kernel", gen_attn2, dict(sgpr=102), ("attn_kernel", 256, 512, 131072 + 8*2304)),
             k1v2=("k1_kernel", gen_k1v2, dict(sgpr=102), ("k1_kernel", 256, 768, 163840)),
             k2=("k2_kernel", gen_k2, dict(sgpr=102), ("k2_kernel", 256, 768, 163840)),
             k3v2=("k3_kernel", gen_k3v2, dict(sgpr=102), ("k3_kernel", 256, 512, 131072)),
             fused=(NAME + "_kernel", gen_fused, dict(sgpr=102), (NAME + "_kernel", 256, 768, 163840)),
             f2=("f2_kernel", gen_f2, dict(sgpr=102), ("f2_kernel", 297, 256, 32768)),
             k3=("k3_kernel", gen_k3, dict(sgpr=102), ("k3_kernel", 256, 256, 131072)))
    sel = dict(all=["k1", "attn", "f2", "k3"], all2=["k1", "attn2", "f2", "k3"], all3=["k1v2", "attn2", "f2", "k3"], all4=["k1v2", "k2", "k3"], all5=["k1v2", "k2", "k3v2"]).get(mode, mode.split(","))
    build([K[k][:3] for k in sel], [K[k][3] for k in sel], path)
```

```python
from asmlib import *
from common import *
import struct
def f2u(f): return struct.unpack("<I", struct.pack("<f", f))[0]
QSCALE = 0.25 * 1.4426950408889634

WS_FLAG = 14 * (1 << 20) + 65536
FL_Q, FL_F1, FL_E, FL_D, FL_O = 0, 256, 512, 768, 1024
FSH = 5
LDS_CNT = 131072
C_NONCE, C_GO, C_KV0, C_KV, C_GO2, C_R0, C_R1, C_F, C_ADONE, C_GO3 = [LDS_CNT + 4*i for i in range(10)]
C_X = LDS_CNT + 48
C_W = LDS_CNT + 64
C_Y = LDS_CNT + 72
C_SLOT = LDS_CNT + 80
C_RDY = LDS_CNT + 128
C_QUE = LDS_CNT + 192
LDS_RED = LDS_CNT + 256
NBUF = 4
FB = 24576
NFB = 5
K1_SCHED = [[(2,0),(2,1),(3,0)], [(3,1)], [(4,0),(4,1)], [(5,0),(5,1)], [(6,0),(6,1)], [(7,0),(7,1)], [], []]
SPIN_MAX = 1 << 16
SC = " sc1"

sX, sWq, sWo, sSre, sSim, sHre, sHim, sGate, sOut, sDbg, sWS = 4, 6, 8, 12, 14, 16, 18, 20, 22, 24, 26
sW, sN = 28, 29
srdWS, srdA, srdB, srdC = 32, 36, 40, 44
sT0, sT1, sT2, sT3 = 48, 49, 50, 51

def gpoll(a, vaddr, vdat, label, scnt, sleep=6):
    a(f"s_mov_b32 s{scnt}, {SPIN_MAX}")
    a.label(label)
    a(f"global_load_dword v{vdat}, v{vaddr}, s[{sWS}:{sWS+1}] sc1")
    a("s_waitcnt vmcnt(0)")
    a(f"v_cmp_ne_u32 vcc, s{sN}, v{vdat}")
    a(f"s_sub_u32 s{scnt}, s{scnt}, 1")
    a(f"s_cbranch_scc1 {label}_ok")
    a("s_nop 2")
    a(f"s_cbranch_vccz {label}_ok")
    a(f"s_sleep {sleep}")
    a(f"s_branch {label}")
    a.label(f"{label}_ok")

def gpoll_multi(a, vaddr, vdat0, n, stride, label, scnt, sleep=6):
    a(f"s_mov_b32 s{scnt}, {SPIN_MAX}")
    a.label(label)
    for i in range(n):
        if i*stride < 4096:
            a(f"global_load_dword v{vdat0+i}, v{vaddr}, s[{sWS}:{sWS+1}] offset:{i*stride} sc1")
        else:
            a(f"v_add_u32 v{vdat0+n}, {i*stride}, v{vaddr}")
            a(f"global_load_dword v{vdat0+i}, v{vdat0+n}, s[{sWS}:{sWS+1}] sc1")
    a("s_waitcnt vmcnt(0)")
    a(f"v_cmp_ne_u32 vcc, s{sN}, v{vdat0}")
    for i in range(1, n):
        a(f"v_cmp_ne_u32 s[{sT0}:{sT0+1}], s{sN}, v{vdat0+i}")
        a("s_nop 1")
        a(f"s_or_b64 vcc, vcc, s[{sT0}:{sT0+1}]")
    a(f"s_sub_u32 s{scnt}, s{scnt}, 1")
    a(f"s_cbranch_scc1 {label}_ok")
    a("s_nop 2")
    a(f"s_cbranch_vccz {label}_ok")
    a(f"s_sleep {sleep}")
    a(f"s_branch {label}")
    a.label(f"{label}_ok")

def lwait(a, vaddr, vtmp, stmp, off, target, label, sleep=1):
    a(f"v_mov_b32 v{vaddr}, {off}" if isinstance(off, int) else f"v_mov_b32 v{vaddr}, {off}")
    a(f"s_mov_b32 s{sT3}, {SPIN_MAX*16}")
    a.label(label)
    a(f"ds_read_b32 v{vtmp}, v{vaddr}")
    a("s_waitcnt lgkmcnt(0)")
    a(f"v_readfirstlane_b32 s{stmp}, v{vtmp}")
    a(f"s_sub_u32 s{sT3}, s{sT3}, 1")
    a(f"s_cbranch_scc1 {label}_ok")
    a("s_nop 1")
    a(f"s_cmp_ge_u32 s{stmp}, {target}")
    a(f"s_cbranch_scc1 {label}_ok")
    if sleep: a(f"s_sleep {sleep}")
    a(f"s_branch {label}")
    a.label(f"{label}_ok")

def lsig(a, vaddr, vtmp, off):
    a(f"v_mov_b32 v{vaddr}, {off}")
    a(f"v_mov_b32 v{vtmp}, 1")
    a("s_mov_b64 exec, 1")
    a(f"ds_add_u32 v{vaddr}, v{vtmp}")
    a("s_mov_b64 exec, -1")

def publish(a, vaddr, vtmp, sidx):
    a(f"s_lshl_b32 s{sT3}, s{sidx}, {FSH}")
    a(f"s_add_u32 s{sT3}, s{sT3}, {WS_FLAG}")
    a(f"v_mov_b32 v{vaddr}, s{sT3}")
    a(f"v_mov_b32 v{vtmp}, s{sN}")
    a("s_mov_b64 exec, 1")
    a(f"global_store_dword v{vaddr}, v{vtmp}, s[{sWS}:{sWS+1}] sc1")
    a("s_mov_b64 exec, -1")

def read_nonce(a, vaddr, vtmp):
    a(f"v_mov_b32 v{vaddr}, {C_NONCE}")
    a(f"ds_read_b32 v{vtmp}, v{vaddr}")
    a("s_waitcnt lgkmcnt(0)")
    a(f"v_readfirstlane_b32 s{sN}, v{vtmp}")
    a("s_nop 3")

def gen_fused(a, name):
    R = RegAlloc(0, 168)
    R.alloc("tid")
    vLane = R.alloc("lane"); vL16 = R.alloc("l16")
    vT0 = R.alloc("t0"); vT1 = R.alloc("t1"); vT2 = R.alloc("t2"); vT3 = R.alloc("t3")
    base = R.next
    nvmax = [0]
    sTok0, sN0, sNb, sSign, sWm, sWn = 52, 53, 54, 55, 56, 57
    sXoff, sWoff, sLdsX, sLdsW = 58, 59, 60, 61

    a.raw(kernel_header(name))
    a("s_cmp_ge_u32 s2, 256")
    a(f"s_cbranch_scc1 {name}_end")
    tl_entry(a)
    a("s_load_dwordx16 s[4:19], s[0:1], 0")
    a("s_load_dwordx8 s[20:27], s[0:1], 64")
    a(f"v_lshrrev_b32 v{vT0}, 6, v0")
    a(f"v_and_b32 v{vLane}, 63, v0")
    a(f"v_readfirstlane_b32 s{sW}, v{vT0}")
    a(f"v_lshlrev_b32 v{vL16}, 4, v{vLane}")
    a("s_cmp_ge_u32 s2, 192")
    a(f"s_cbranch_scc1 {name}_decF")
    a(f"s_and_b32 s{sT0}, s2, 7")
    a(f"s_lshr_b32 s{sT1}, s2, 3")
    a(f"s_lshr_b32 s{sT2}, s{sT0}, 1")
    a(f"s_lshl_b32 s{sT2}, s{sT2}, 2")
    a(f"s_and_b32 s{sTok0}, s{sT1}, 3")
    a(f"s_add_u32 s{sTok0}, s{sTok0}, s{sT2}")
    a(f"s_and_b32 s{sT0}, s{sT0}, 1")
    a(f"s_mul_i32 s{sT0}, s{sT0}, 6")
    a(f"s_lshr_b32 s{sNb}, s{sT1}, 2")
    a(f"s_add_u32 s{sNb}, s{sNb}, s{sT0}")
    a(f"s_lshl_b32 s62, s{sNb}, 4")
    a(f"s_add_u32 s62, s62, s{sTok0}")
    a(f"s_lshl_b32 s{sTok0}, s{sTok0}, 7")
    a(f"s_lshl_b32 s{sN0}, s{sNb}, 7")
    a(f"s_branch {name}_dec")
    a.label(f"{name}_decF")
    a(f"s_sub_u32 s{sT0}, s2, 192")
    a(f"s_add_u32 s62, s{sT0}, {FL_F1}")
    a(f"s_lshr_b32 s{sT1}, s{sT0}, 3")
    a(f"s_lshr_b32 s{sSign}, s{sT1}, 2")
    a(f"s_and_b32 s{sT1}, s{sT1}, 3")
    a(f"s_and_b32 s{sNb}, s{sT0}, 1")
    a(f"s_bfe_u32 s{sT2}, s{sT0}, 0x20001")
    a(f"s_lshl_b32 s{sT3}, s{sT2}, 3")
    a(f"s_lshr_b32 s{sT3}, 0x040c0800, s{sT3}")
    a(f"s_and_b32 s{sT3}, s{sT3}, 0xff")
    a(f"s_add_u32 s{sT1}, s{sT1}, s{sT3}")
    a(f"s_lshl_b32 s{sTok0}, s{sT1}, 6")
    a(f"s_lshl_b32 s{sN0}, s{sNb}, 7")
    a.label(f"{name}_dec")
    a(f"s_cmp_ge_u32 s{sW}, 8")
    a(f"s_cbranch_scc1 {name}_edge")
    a(f"s_cmp_lt_u32 s{sW}, 4")
    a(f"s_cbranch_scc1 {name}_cons")

    Rl = RegAlloc(base, 168)
    vOffX = [Rl.alloc("offX0"), Rl.alloc("offX1")]
    vOffW = Rl.alloc("offW")
    vRowMain = Rl.alloc("rowmain", 2); vRowMir = Rl.alloc("rowmir", 2)
    vWr = Rl.alloc("wr")
    vSt = Rl.alloc("stage", 64)
    vFo = Rl.alloc("fold", 8)
    nvmax[0] = max(nvmax[0], Rl.next)
    sLW = 63
    a(f"s_sub_u32 s{sLW}, s{sW}, 4")
    a(f"v_lshrrev_b32 v{vT0}, 3, v{vLane}")
    a(f"v_lshlrev_b32 v{vT0}, 10, v{vT0}")
    a(f"v_lshrrev_b32 v{vT1}, 4, v{vLane}")
    a(f"v_and_b32 v{vT2}, 7, v{vLane}")
    for p in range(2):
        a(f"v_add_u32 v{vT3}, {4*p}, v{vT1}")
        a(f"v_xor_b32 v{vT3}, v{vT3}, v{vT2}")
        a(f"v_lshlrev_b32 v{vT3}, 4, v{vT3}")
        a(f"v_add_u32 v{vOffX[p]}, v{vT0}, v{vT3}")
    a("s_cmp_ge_u32 s2, 192")
    a(f"s_cbranch_scc1 {name}_lF")
    a(f"v_lshrrev_b32 v{vT0}, 4, v{vLane}")
    a(f"v_mul_u32_u24 v{vT1}, 3072, v{vT0}")
    a(f"v_bfe_u32 v{vT2}, v{vLane}, 2, 2")
    a(f"v_xor_b32 v{vT2}, v{vT2}, v{vT0}")
    a(f"v_lshlrev_b32 v{vT2}, 6, v{vT2}")
    a(f"v_add_u32 v{vT1}, v{vT1}, v{vT2}")
    a(f"v_and_b32 v{vT2}, 3, v{vLane}")
    a(f"v_lshlrev_b32 v{vT2}, 4, v{vT2}")
    a(f"v_add_u32 v{vOffW}, v{vT1}, v{vT2}")
    a(f"s_lshl_b32 s{sT0}, s{sLW}, 5")
    a(f"s_add_u32 s{sT0}, s{sT0}, s{sTok0}")
    a(f"s_lshl_b32 s{sXoff}, s{sT0}, 10")
    a(f"s_mul_i32 s{sWoff}, s{sLW}, {16*3072}")
    a(f"s_lshl_b32 s{sT0}, s{sN0}, 1")
    a(f"s_add_u32 s{sWoff}, s{sWoff}, s{sT0}")
    a(f"s_lshl_b32 s{sLdsX}, s{sLW}, 12")
    a(f"s_add_u32 s{sLdsW}, s{sLdsX}, 16384")
    a("s_waitcnt lgkmcnt(0)")
    srd(a, srdA, sX, 2048*1024)
    srd(a, srdB, sWq, 512*3072)
    vm = Vm(a)
    def dma_qkv(st, half=None):
        buf = (st % NBUF) * 32768
        for m in (range(4) if half is None else range(2*half, 2*half+2)):
            a(f"s_add_u32 m0, s{sLdsX}, {buf + m*1024}")
            a(f"s_add_u32 s{sT0}, s{sXoff}, {m*8192 + st*128}")
            a(f"buffer_load_dwordx4 v{vOffX[m&1]}, s[{srdA}:{srdA+3}], s{sT0} offen lds")
            a(f"s_add_u32 m0, s{sLdsW}, {buf + m*1024}")
            a(f"s_add_u32 s{sT0}, s{sWoff}, {(st*64 + 4*m)*3072}")
            a(f"buffer_load_dwordx4 v{vOffW}, s[{srdB}:{srdB+3}], s{sT0} offen lds")
        vm.issue(("S", st), 8 if half is None else 4)
    tl_stamp(a, 0)
    dma_qkv(0); dma_qkv(1)
    for i in range(8):
        vm.wait(("S", i))
        a("s_barrier")
        for (st, h) in K1_SCHED[i]:
            assert st < NBUF or st - NBUF + 2 <= i, (st, i)
            dma_qkv(st, h)
    a("s_barrier")
    tl_stamp(a, 1)
    a(f"s_branch {name}_attn")

    a.label(f"{name}_lF")
    a(f"s_cmp_eq_u32 s{sSign}, 0")
    a(f"s_cbranch_scc1 {name}_lFa")
    a("s_waitcnt lgkmcnt(0)")
    srd(a, srdB, sHim, 512*1024)
    a(f"s_mov_b32 s{srdC}, 0x0000bf80")
    a(f"s_mov_b32 s{srdC+1}, 0xbf800000")
    a(f"s_branch {name}_lFgo")
    a.label(f"{name}_lFa")
    a("s_waitcnt lgkmcnt(0)")
    srd(a, srdB, sHre, 512*1024)
    a(f"s_mov_b32 s{srdC}, 0x00003f80")
    a(f"s_mov_b32 s{srdC+1}, 0x3f800000")
    a.label(f"{name}_lFgo")
    a(f"s_mov_b32 s{srdC+2}, 0x00003f80")
    a(f"s_mov_b32 s{srdC+3}, 0x3f800000")
    a(f"s_lshl_b32 s{sT0}, s{sLW}, 4")
    a(f"s_add_u32 s{sT0}, s{sT0}, s{sTok0}")
    a(f"v_lshrrev_b32 v{vT0}, 3, v{vLane}")
    a(f"v_add_u32 v{vT0}, s{sT0}, v{vT0}")
    for m in range(2):
        a(f"v_add_u32 v{vT1}, {8*m}, v{vT0}")
        a(f"v_and_b32 v{vT2}, 1023, v{vOffX[m&1]}")
        a(f"v_lshl_add_u32 v{vRowMain+m}, v{vT1}, 10, v{vT2}")
        a(f"v_sub_u32 v{vT1}, 2048, v{vT1}")
        a(f"v_lshl_add_u32 v{vRowMir+m}, v{vT1}, 10, v{vT2}")
    a(f"s_lshl_b32 s{sT0}, s{sLW}, 5")
    a(f"s_add_u32 s{sT0}, s{sT0}, s{sN0}")
    a(f"s_lshl_b32 s{sWoff}, s{sT0}, 10")
    a(f"s_lshl_b32 s{sLdsW}, s{sLW}, 12")
    a(f"s_add_u32 s{sLdsW}, s{sLdsW}, 8192")
    a(f"s_lshl_b32 s{sT0}, s{sLW}, 11")
    a(f"v_add_u32 v{vWr}, s{sT0}, v{vL16}")
    srd(a, srdA, sX, 2048*1024)
    vm = Vm(a)
    def f_loadA(st):
        b = vSt + (st & 3) * 16
        a(f"s_mov_b32 s{sT0}, {st*128}")
        for m in range(2):
            a(f"buffer_load_dwordx4 {vr(b+8*m,4)}, v{vRowMain+m}, s[{srdA}:{srdA+3}], s{sT0} offen")
            a(f"buffer_load_dwordx4 {vr(b+8*m+4,4)}, v{vRowMir+m}, s[{srdA}:{srdA+3}], s{sT0} offen")
        vm.issue(("A", st), 4)
    def f_dmaB(st):
        buf = (st % NFB) * FB
        for m in range(4):
            a(f"s_add_u32 m0, s{sLdsW}, {buf + m*1024}")
            a(f"s_add_u32 s{sT0}, s{sWoff}, {m*8192 + st*128}")
            a(f"buffer_load_dwordx4 v{vOffX[m&1]}, s[{srdB}:{srdB+3}], s{sT0} offen lds")
        vm.issue(("B", st), 4)
    def f_fold(st):
        b = vSt + (st & 3) * 16
        buf = (st % NFB) * FB
        for m in range(2):
            M = b + 8*m; Mi = M + 4
            for q in range(4):
                a(f"v_dot2_f32_bf16 v{vFo+2*q}, v{M+q}, s{srdC+2}, 0")
                a(f"v_dot2_f32_bf16 v{vFo+2*q+1}, v{M+q}, s{srdC+3}, 0")
            for q in range(4):
                a(f"v_dot2c_f32_bf16 v{vFo+2*q}, s{srdC}, v{Mi+q}")
                a(f"v_dot2c_f32_bf16 v{vFo+2*q+1}, s{srdC+1}, v{Mi+q}")
            for q in range(4):
                a(f"v_cvt_pk_bf16_f32 v{M+q}, v{vFo+2*q}, v{vFo+2*q+1}")
            if buf + m*1024 <= 65000:
                a(f"ds_write_b128 v{vWr}, {vr(M,4)} offset:{buf + m*1024}")
            else:
                a(f"v_add_u32 v{vT0}, {buf + m*1024}, v{vWr}")
                a(f"ds_write_b128 v{vT0}, {vr(M,4)}")
    tl_stamp(a, 0)
    for st in range(3):
        f_loadA(st); f_dmaB(st)
    for i in range(8):
        vm.wait(("A", i))
        f_fold(i)
        vm.wait(("B", i))
        a("s_waitcnt lgkmcnt(0)")
        a("s_barrier")
        if i == 0:
            f_loadA(3); f_dmaB(3); f_loadA(4); f_dmaB(4)
        elif i + 4 < 8:
            f_loadA(i + 4)
        if i >= 2 and i + 3 < 8:
            f_dmaB(i + 3)
    a("s_barrier")
    tl_stamp(a, 1)
    a(f"s_branch {name}_attn")

    a.label(f"{name}_cons")
    Rc = RegAlloc(base, 168)
    vX = [[Rc.alloc(f"X{s}{j}") for j in range(4)] for s in range(3)]
    vW = [[Rc.alloc(f"W{s}{f}") for f in range(2)] for s in range(2)]
    vH = [[Rc.alloc(f"H{s}{j}") for j in range(4)] for s in range(3)]
    fX = [[Rc.alloc(f"fX{s}{t}", 4) for t in range(2)] for s in range(3)]
    fW = [[Rc.alloc(f"fW{s}{f}", 4) for f in range(2)] for s in range(3)]
    acc = [[Rc.alloc(f"acc{f}{t}", 16) for t in range(2)] for f in range(2)]
    nvmax[0] = max(nvmax[0], Rc.next)
    a(f"s_lshr_b32 s{sWm}, s{sW}, 1")
    a(f"s_and_b32 s{sWn}, s{sW}, 1")
    a(f"v_and_b32 v{vT0}, 31, v{vLane}")
    a(f"v_lshrrev_b32 v{vT1}, 5, v{vLane}")
    a(f"v_lshrrev_b32 v{vT2}, 1, v{vT0}")
    a(f"v_and_b32 v{vT2}, 7, v{vT2}")
    a(f"v_xor_b32 v{vT2}, v{vT2}, v{vT1}")
    a(f"v_lshlrev_b32 v{vT2}, 4, v{vT2}")
    a(f"v_lshlrev_b32 v{vT0}, 7, v{vT0}")
    a(f"v_add_u32 v{vT0}, v{vT0}, v{vT2}")
    a("s_cmp_ge_u32 s2, 192")
    a(f"s_cbranch_scc1 {name}_cF")
    a(f"s_lshl_b32 s{sT0}, s{sWn}, 13")
    for j in range(4):
        a(f"v_xor_b32 v{vT3}, {j*32}, v{vT0}")
        a(f"v_add_u32 v{vX[0][j]}, s{sT0}, v{vT3}")
        a(f"v_add_u32 v{vX[1][j]}, 65536, v{vX[0][j]}")
    a(f"v_bfe_u32 v{vT0}, v{vLane}, 2, 2")
    a(f"v_lshrrev_b32 v{vT1}, 5, v{vLane}")
    a(f"v_lshlrev_b32 v{vT1}, 3, v{vT1}")
    a(f"v_add_u32 v{vT1}, v{vT1}, v{vT0}")
    a(f"v_lshlrev_b32 v{vT1}, 8, v{vT1}")
    a(f"v_bfe_u32 v{vT2}, v{vLane}, 4, 1")
    a(f"v_lshlrev_b32 v{vT2}, 5, v{vT2}")
    a(f"v_add_u32 v{vT1}, v{vT1}, v{vT2}")
    a(f"v_and_b32 v{vT2}, 3, v{vLane}")
    a(f"v_lshlrev_b32 v{vT2}, 3, v{vT2}")
    a(f"v_add_u32 v{vT1}, v{vT1}, v{vT2}")
    a(f"v_add_u32 v{vT1}, 16384, v{vT1}")
    a(f"s_lshl_b32 s{sT0}, s{sWm}, 1")
    for f in range(2):
        a(f"s_add_u32 s{sT1}, s{sT0}, {f}")
        a(f"v_xor_b32 v{vT2}, s{sT1}, v{vT0}")
        a(f"v_lshlrev_b32 v{vT2}, 6, v{vT2}")
        a(f"v_add_u32 v{vW[0][f]}, v{vT1}, v{vT2}")
        a(f"v_add_u32 v{vW[1][f]}, 65536, v{vW[0][f]}")
    for f in range(2):
        for t in range(2):
            for i in range(16):
                a(f"v_mov_b32 v{acc[f][t]+i}, 0")
    a("s_waitcnt lgkmcnt(0)")
    srd(a, srdWS, sWS, WS_SIZE_USED)
    def reads_qkv(st, j, s):
        buf = st % NBUF; hi = buf >> 1; boff = (buf & 1) * 32768
        for t in range(2):
            a(f"ds_read_b128 {vr(fX[s][t],4)}, v{vX[hi][j]} offset:{boff + t*4096}")
        for f in range(2):
            for u in range(2):
                a(f"ds_read_b64_tr_b16 {vr(fW[s][f]+2*u,2)}, v{vW[hi][f]} offset:{boff + (16*j+4*u)*256}")
    def mfmas(s, vtype):
        for f in range(2):
            for t in range(2):
                if vtype:
                    a(f"v_mfma_f32_32x32x16_bf16 {vr(acc[f][t],16)}, {vr(fX[s][t],4)}, {vr(fW[s][f],4)}, {vr(acc[f][t],16)}")
                else:
                    a(f"v_mfma_f32_32x32x16_bf16 {vr(acc[f][t],16)}, {vr(fW[s][f],4)}, {vr(fX[s][t],4)}, {vr(acc[f][t],16)}")
    def consume(reads, nreads, domf):
        a("s_barrier")
        tl_stamp(a, 0)
        reads(0, 0, 0)
        reads(0, 1, 1)
        for n in range(32):
            nn = n + 2
            if nn < 32:
                if nn % 4 == 0:
                    a("s_barrier")
                reads(nn // 4, nn % 4, nn % 3)
                a(f"s_waitcnt lgkmcnt({2*nreads})")
            elif nn == 32:
                a(f"s_waitcnt lgkmcnt({nreads})")
            else:
                a("s_waitcnt lgkmcnt(0)")
            domf(n % 3)
        tl_stamp(a, 1)
    def finish_A():
        a("s_waitcnt vmcnt(0)")
        a("s_barrier")
        tl_stamp(a, 2)
        a(f"s_cmp_lg_u32 s{sW}, 0")
        a(f"s_cbranch_scc1 {name}_attn")
        read_nonce(a, vT0, vT1)
        publish(a, vT0, vT1, 62)
        a(f"s_branch {name}_attn")
    a(f"s_cmp_ge_u32 s{sNb}, 8")
    a(f"s_cbranch_scc1 {name}_vtype")
    consume(reads_qkv, 6, lambda s: mfmas(s, False))
    a(f"s_cmp_lt_u32 s{sNb}, 4")
    a(f"s_cselect_b32 s{sT2}, {f2u(QSCALE)}, 1.0")
    a(f"s_cselect_b32 s{sT0}, {WS_Q}, {WS_K}")
    a(f"s_and_b32 s{sT1}, s{sNb}, 3")
    a(f"s_lshl_b32 s{sT1}, s{sT1}, 3")
    a(f"s_lshl_b32 s{sT3}, s{sWm}, 2")
    a(f"s_add_u32 s{sT1}, s{sT1}, s{sT3}")
    a(f"s_lshl_b32 s{sT1}, s{sT1}, 16")
    a(f"s_add_u32 s{sT0}, s{sT0}, s{sT1}")
    a(f"s_lshr_b32 s{sT1}, s{sTok0}, 5")
    a(f"s_lshl_b32 s{sT3}, s{sWn}, 1")
    a(f"s_add_u32 s{sT1}, s{sT1}, s{sT3}")
    a(f"s_lshl_b32 s{sT1}, s{sT1}, 10")
    a(f"s_add_u32 s{sT0}, s{sT0}, s{sT1}")
    a("s_nop 3")
    a(f"s_cmp_lt_u32 s{sNb}, 4")
    a(f"s_cbranch_scc0 {name}_noscale")
    for f in range(2):
        for t in range(2):
            for i in range(16):
                a(f"v_mul_f32 v{acc[f][t]+i}, s{sT2}, v{acc[f][t]+i}")
    a.label(f"{name}_noscale")
    for f in range(2):
        for t in range(2):
            A = acc[f][t]
            P = fX[(f*2+t) % 3][0]
            for i in range(8):
                a(f"v_cvt_pk_bf16_f32 v{P+i}, v{A+2*i}, v{A+2*i+1}")
            for hh in range(2):
                a(f"s_add_u32 s{sT1}, s{sT0}, {(f*2+hh)*65536 + t*1024}")
                a(f"buffer_store_dwordx4 {vr(P+4*hh,4)}, v{vL16}, s[{srdWS}:{srdWS+3}], s{sT1} offen{SC}")
    finish_A()
    a.label(f"{name}_vtype")
    consume(reads_qkv, 6, lambda s: mfmas(s, True))
    a(f"s_sub_u32 s{sT1}, s{sNb}, 8")
    a(f"s_lshl_b32 s{sT1}, s{sT1}, 3")
    a(f"s_lshl_b32 s{sT3}, s{sWm}, 2")
    a(f"s_add_u32 s{sT1}, s{sT1}, s{sT3}")
    a(f"s_lshl_b32 s{sT1}, s{sT1}, 16")
    a(f"s_add_u32 s{sT0}, s{sT1}, {WS_V}")
    a(f"s_lshr_b32 s{sT1}, s{sTok0}, 4")
    a(f"s_lshl_b32 s{sT3}, s{sWn}, 2")
    a(f"s_add_u32 s{sT1}, s{sT1}, s{sT3}")
    a(f"s_lshl_b32 s{sT1}, s{sT1}, 9")
    a(f"s_add_u32 s{sT0}, s{sT0}, s{sT1}")
    a(f"v_bfe_u32 v{vT0}, v{vLane}, 4, 1")
    a(f"v_lshlrev_b32 v{vT0}, 16, v{vT0}")
    a(f"v_lshrrev_b32 v{vT1}, 5, v{vLane}")
    a(f"v_lshlrev_b32 v{vT1}, 8, v{vT1}")
    a(f"v_add_u32 v{vT0}, v{vT0}, v{vT1}")
    a(f"v_and_b32 v{vT1}, 15, v{vLane}")
    a(f"v_lshlrev_b32 v{vT1}, 4, v{vT1}")
    a(f"v_add_u32 v{vT0}, v{vT0}, v{vT1}")
    for f in range(2):
        for t in range(2):
            A = acc[f][t]
            P = fX[(f*2+t) % 3][0]
            for i in range(8):
                a(f"v_cvt_pk_bf16_f32 v{P+i}, v{A+2*i}, v{A+2*i+1}")
            for g in range(2):
                a(f"s_add_u32 s{sT1}, s{sT0}, {f*2*65536 + (t*2+g)*512}")
                a(f"buffer_store_dwordx4 {vr(P+4*g,4)}, v{vT0}, s[{srdWS}:{srdWS+3}], s{sT1} offen{SC}")
    finish_A()
    a.label(f"{name}_cF")
    a(f"s_lshl_b32 s{sT0}, s{sWn}, 12")
    a(f"s_lshl_b32 s{sT1}, s{sWm}, 13")
    a(f"s_add_u32 s{sT1}, s{sT1}, 8192")
    for j in range(4):
        a(f"v_xor_b32 v{vT3}, {j*32}, v{vT0}")
        a(f"v_add_u32 v{vX[0][j]}, s{sT0}, v{vT3}")
        a(f"v_add_u32 v{vX[1][j]}, {2*FB}, v{vX[0][j]}")
        a(f"v_add_u32 v{vX[2][j]}, {4*FB}, v{vX[0][j]}")
        a(f"v_add_u32 v{vH[0][j]}, s{sT1}, v{vT3}")
        a(f"v_add_u32 v{vH[1][j]}, {2*FB}, v{vH[0][j]}")
        a(f"v_add_u32 v{vH[2][j]}, {4*FB}, v{vH[0][j]}")
    for f in range(2):
        for i in range(16):
            a(f"v_mov_b32 v{acc[f][0]+i}, 0")
    a("s_waitcnt lgkmcnt(0)")
    srd(a, srdWS, sWS, WS_SIZE_USED)
    def reads_f(st, j, s):
        buf = st % NFB; k = buf >> 1; boff = (buf & 1) * FB
        a(f"ds_read_b128 {vr(fX[s][0],4)}, v{vX[k][j]} offset:{boff}")
        for f in range(2):
            a(f"ds_read_b128 {vr(fW[s][f],4)}, v{vH[k][j]} offset:{boff + f*4096}")
    def mf_f(s):
        for f in range(2):
            a(f"v_mfma_f32_32x32x16_bf16 {vr(acc[f][0],16)}, {vr(fX[s][0],4)}, {vr(fW[s][f],4)}, {vr(acc[f][0],16)}")
    consume(reads_f, 3, mf_f)
    a(f"s_cmp_eq_u32 s{sSign}, 0")
    a(f"s_mov_b32 s{sT3}, {WS_B}")
    a(f"s_cselect_b32 s{sT0}, {WS_A}, s{sT3}")
    a(f"s_cselect_b32 s{sT2}, {A_KSTEPS}, 64")
    a(f"s_lshl_b32 s{sT1}, s{sNb}, 2")
    a(f"s_lshl_b32 s{sT3}, s{sWm}, 1")
    a(f"s_add_u32 s{sT1}, s{sT1}, s{sT3}")
    a(f"s_mul_i32 s{sT1}, s{sT1}, s{sT2}")
    a(f"s_lshr_b32 s{sT3}, s{sTok0}, 4")
    a(f"s_add_u32 s{sT1}, s{sT1}, s{sT3}")
    a(f"s_lshl_b32 s{sT3}, s{sWn}, 1")
    a(f"s_add_u32 s{sT1}, s{sT1}, s{sT3}")
    a(f"s_lshl_b32 s{sT1}, s{sT1}, 10")
    a(f"s_add_u32 s{sT0}, s{sT0}, s{sT1}")
    a(f"s_lshl_b32 s{sT2}, s{sT2}, 10")
    a("s_nop 7")
    for f in range(2):
        A = acc[f][0]
        P = fX[f][0]
        for i in range(8):
            a(f"v_cvt_pk_bf16_f32 v{P+i}, v{A+2*i}, v{A+2*i+1}")
        a("s_nop 1")
        for g in range(2):
            a(f"v_permlane32_swap_b32 v{P+4*g}, v{P+4*g+2}")
            a(f"v_permlane32_swap_b32 v{P+4*g+1}, v{P+4*g+3}")
        if f == 1:
            a(f"s_add_u32 s{sT0}, s{sT0}, s{sT2}")
        for g in range(2):
            a(f"s_add_u32 s{sT1}, s{sT0}, {g*1024}")
            a(f"buffer_store_dwordx4 {vr(P+4*g,4)}, v{vL16}, s[{srdWS}:{srdWS+3}], s{sT1} offen{SC}")
    finish_A()

    from gen_fused_b import gen_attn_part, gen_f_part
    gen_attn_part(a, name, base, nvmax, dict(vLane=vLane, vL16=vL16, vT0=vT0, vT1=vT1, vT2=vT2, vT3=vT3))
    gen_f_part(a, name, base, nvmax, dict(vLane=vLane, vL16=vL16, vT0=vT0, vT1=vT1, vT2=vT2, vT3=vT3))
    a.label(f"{name}_end")
    a("s_endpgm")
    return nvmax[0]
```

```python
from asmlib import *
from common import *
from gen_fused import *

PRIO_MODE = 1
EXP = {}
sHead, sQb = 52, 53

def decode_hq(a):
    a(f"s_and_b32 s{sT0}, s2, 7")
    a(f"s_lshr_b32 s{sT1}, s2, 3")
    a(f"s_lshl_b32 s{sHead}, s{sT0}, 2")
    a(f"s_and_b32 s{sT0}, s{sT1}, 3")
    a(f"s_add_u32 s{sHead}, s{sHead}, s{sT0}")
    a(f"s_lshr_b32 s{sQb}, s{sT1}, 2")

def gen_attn_part(a, name, base, nvmax, V):
    vLane, vL16, vT0, vT1 = V["vLane"], V["vL16"], V["vT0"], V["vT1"]
    Ra = RegAlloc(base, 168)
    vAK = Ra.alloc("addrK"); vAV = Ra.alloc("addrV"); vM = Ra.alloc("m")
    vRd = Ra.alloc("rdaddr"); vRv = Ra.alloc("rdval")
    vQ = [Ra.alloc("Q0", 4), Ra.alloc("Q1", 4)]
    vK = Ra.alloc("K", 4); vV0 = Ra.alloc("V0", 4); vV1 = Ra.alloc("V1", 4)
    vP = Ra.alloc("P", 8)
    vS = [Ra.alloc("S0", 16), Ra.alloc("S1", 16)]
    vT = Ra.alloc("T", 16)
    vO = [Ra.alloc("O0", 16), Ra.alloc("O1", 16)]
    vC = [Ra.alloc("C0", 16), Ra.alloc("C1", 16)]
    nvmax[0] = max(nvmax[0], Ra.next)
    sKh, sQp, sIt, sMask, sRetry = 54, 55, 56, 58, 57
    a.label(f"{name}_attn")
    decode_hq(a)
    a(f"s_and_b32 s{sQp}, s{sW}, 3")
    a(f"s_lshr_b32 s{sKh}, s{sW}, 2")
    srd(a, srdWS, sWS, WS_SIZE_USED)
    a(f"s_mov_b32 s{sMask}, 0x0000ffff")
    a(f"s_mov_b32 s{sMask+1}, 0x0000ffff")
    a(f"s_mov_b32 s{sRetry}, 0")
    a(f"s_lshl_b32 s60, s{sKh}, 15")
    a(f"v_lshrrev_b32 v{vT0}, 5, v{vLane}")
    a(f"v_lshlrev_b32 v{vT0}, 8, v{vT0}")
    a(f"v_and_b32 v{vAV}, 15, v{vLane}")
    a(f"v_lshlrev_b32 v{vAV}, 4, v{vAV}")
    a(f"v_add_u32 v{vAV}, v{vAV}, v{vT0}")
    a(f"v_add_u32 v{vAV}, 65536, v{vAV}")
    a(f"v_add_u32 v{vAV}, s60, v{vAV}")
    a(f"v_and_b32 v{vAK}, 31, v{vLane}")
    a(f"v_mov_b32 v{vM}, 0x3f803f80")
    a(f"v_cmp_eq_u32 vcc, 16, v{vAK}")
    a(f"v_cmp_eq_u32 s[62:63], 20, v{vAK}")
    a("s_nop 1")
    a("s_or_b64 vcc, vcc, s[62:63]")
    a("s_nop 1")
    a(f"v_cndmask_b32 v{vT0}, 0, v{vM}, vcc")
    for i in range(4):
        a(f"v_mov_b32 v{vV0+i}, v{vT0}")
        a(f"v_mov_b32 v{vV1+i}, v{vT0}")
    for q in range(2):
        for i in range(16):
            a(f"v_mov_b32 v{vO[q]+i}, 0")
    for i in range(4, 8):
        a(f"v_mov_b32 v{vP+i}, 0")
    a(f"v_add_u32 v{vAK}, s60, v{vL16}")
    a(f"s_lshl_b32 s{sT0}, s{sHead}, 6")
    a(f"s_lshl_b32 s{sT1}, s{sQb}, 3")
    a(f"s_add_u32 s{sT0}, s{sT0}, s{sT1}")
    a(f"s_lshl_b32 s{sT1}, s{sQp}, 1")
    a(f"s_add_u32 s{sT0}, s{sT0}, s{sT1}")
    a(f"s_lshl_b32 s61, s{sT0}, 10")
    read_nonce(a, vT0, vT1)
    tl_stamp(a, 3)
    lwait(a, vT0, vT1, sT0, C_GO, 1, f"{name}_wgo", sleep=2)
    a(f"buffer_load_dwordx4 {vr(vQ[0],4)}, v{vL16}, s[{srdWS}:{srdWS+3}], s61 offen{SC}")
    a(f"buffer_load_dwordx4 {vr(vQ[1],4)}, v{vL16}, s[{srdWS}:{srdWS+3}], s61 offen offset:1024{SC}")
    tl_stamp(a, 4)
    lwait(a, vT0, vT1, sT0, C_RDY, 1, f"{name}_wr0", sleep=1)
    a(f"s_lshl_b32 s60, s{sKh}, 2")
    a(f"s_add_u32 s60, s60, {C_RDY}")
    lwait(a, vT0, vT1, sT0, "s60", 1, f"{name}_wr1", sleep=1)
    a(f"s_add_u32 s60, s60, 8")
    lwait(a, vT0, vT1, sT0, "s60", 1, f"{name}_wr2", sleep=1)
    a(f"v_add_u32 v{vRd}, 8, v{vT0}")
    a("s_waitcnt vmcnt(0)")
    tl_stamp(a, 5)

    def rowmax(S):
        a(f"v_max3_f32 v{vM}, v{S}, v{S+1}, v{S+2}")
        for i in range(3, 15, 2):
            a(f"v_max3_f32 v{vM}, v{vM}, v{S+i}, v{S+i+1}")
        a(f"v_max_f32 v{vM}, v{vM}, v{S+15}")
    def bcast_negmax(C):
        a(f"v_mov_b32 v{vT0}, v{vM}")
        a("s_nop 1")
        a(f"v_permlane32_swap_b32 v{vT0}, v{vM}")
        a("s_nop 1")
        a(f"v_max_f32 v{vM}, v{vM}, v{vT0}")
        a(f"v_sub_f32 v{C}, 0, v{vM}")
        for i in range(1, 16):
            a(f"v_mov_b32 v{C+i}, v{C}")
    a(f"ds_read_b128 {vr(vT,4)}, v{vL16}")
    a(f"ds_read_b128 {vr(vK,4)}, v{vAK}")
    a("s_waitcnt lgkmcnt(1)")
    a(f"v_mfma_f32_32x32x16_bf16 {vr(vS[0],16)}, {vr(vT,4)}, {vr(vQ[0],4)}, 0")
    a(f"v_mfma_f32_32x32x16_bf16 {vr(vS[1],16)}, {vr(vT,4)}, {vr(vQ[1],4)}, 0")
    a(f"s_mov_b64 exec, s[{sMask}:{sMask+1}]")
    a(f"ds_read_b128 {vr(vV0,4)}, v{vAV}")
    a("s_mov_b64 exec, -1")
    a("s_nop 8")
    rowmax(vS[0]); bcast_negmax(vC[0])
    a("s_waitcnt lgkmcnt(0)")
    a(f"v_mfma_f32_32x32x16_bf16 {vr(vS[0],16)}, {vr(vK,4)}, {vr(vQ[0],4)}, {vr(vC[0],16)}")
    rowmax(vS[1]); bcast_negmax(vC[1])
    a("s_nop 1")
    a(f"v_mfma_f32_32x32x16_bf16 {vr(vS[1],16)}, {vr(vK,4)}, {vr(vQ[1],4)}, {vr(vC[1],16)}")
    a(f"ds_read_b128 {vr(vK,4)}, v{vAK} offset:1024")
    tl_stamp(a, 6)

    def step(u, q):
        S = vS[q]
        e = lambda i: a(f"v_exp_f32 v{vT+i}, v{S+i}")
        c = lambda i: a(f"v_cvt_pk_bf16_f32 v{vP+i}, v{vT+2*i}, v{vT+2*i+1}")
        e(0); e(1); e(2); c(0); e(3); e(4)
        if q == 1:
            a("s_waitcnt lgkmcnt(0)")
        a(f"v_mfma_f32_32x32x16_bf16 {vr(vO[q^1],16)}, {vr(vV1,4)}, {vr(vP+4,4)}, {vr(vO[q^1],16)}")
        if q == 0:
            a(f"s_mov_b64 exec, s[{sMask}:{sMask+1}]")
            a(f"ds_read_b128 {vr(vV1,4)}, v{vAV} offset:{(2*u+1)*512}")
            a("s_mov_b64 exec, -1")
        c(1); e(5); e(6); c(2); e(7); e(8); c(3); e(9); e(10)
        if q == 0:
            a("s_waitcnt lgkmcnt(2)")
        a(f"v_mfma_f32_32x32x16_bf16 {vr(vO[q],16)}, {vr(vV0,4)}, {vr(vP,4)}, {vr(vO[q],16)}")
        if q == 1:
            a(f"s_mov_b64 exec, s[{sMask}:{sMask+1}]")
            a(f"ds_read_b128 {vr(vV0,4)}, v{vAV} offset:{(2*u+2)*512}")
            a("s_mov_b64 exec, -1")
        e(11); c(4); e(12); c(5); e(13); e(14); c(6); e(15)
        if q == 0:
            a("s_waitcnt lgkmcnt(1)")
        a(f"v_mfma_f32_32x32x16_bf16 {vr(S,16)}, {vr(vK,4)}, {vr(vQ[q],4)}, {vr(vC[q],16)}")
        if q == 1:
            a(f"ds_read_b128 {vr(vK,4)}, v{vAK} offset:{(u+2)*1024}")
        c(7)

    a(f"s_mov_b32 s{sIt}, 0")
    a("s_setprio 2")
    lbl = f"{name}_loop"
    a.label(lbl)
    for u in range(4):
        step(u, 0)
        if u == 1:
            a(f"ds_read_b32 v{vRv}, v{vRd}")
        step(u, 1)
    a(f"v_add_u32 v{vAK}, 4096, v{vAK}")
    a(f"v_add_u32 v{vAV}, 4096, v{vAV}")
    a(f"v_readfirstlane_b32 s{sT0}, v{vRv}")
    a(f"v_add_u32 v{vRd}, 8, v{vRd}")
    a(f"s_cmp_ge_u32 s{sIt}, 6")
    a(f"s_cbranch_scc1 {name}_nosync")
    a(f"s_cmp_lg_u32 s{sT0}, 0")
    a(f"s_cbranch_scc1 {name}_nosync")
    a(f"v_subrev_u32 v{vT0}, 8, v{vRd}")
    a(f"s_mov_b32 s{sT3}, {SPIN_MAX*16}")
    a.label(f"{name}_wrs")
    a(f"ds_read_b32 v{vT1}, v{vT0}")
    a("s_waitcnt lgkmcnt(0)")
    a(f"v_readfirstlane_b32 s{sT0}, v{vT1}")
    a(f"s_sub_u32 s{sT3}, s{sT3}, 1")
    a(f"s_cbranch_scc1 {name}_nosync")
    a("s_nop 1")
    a(f"s_cmp_lg_u32 s{sT0}, 0")
    a(f"s_cbranch_scc1 {name}_nosync")
    a("s_sleep 1")
    a(f"s_branch {name}_wrs")
    a.label(f"{name}_nosync")
    a(f"s_cmp_lg_u32 s{sIt}, 3")
    a(f"s_cbranch_scc1 {name}_p1")
    a("s_setprio 1")
    a.label(f"{name}_p1")
    a(f"s_cmp_lg_u32 s{sIt}, 5")
    a(f"s_cbranch_scc1 {name}_p2")
    a("s_setprio 0")
    a.label(f"{name}_p2")
    a(f"s_add_u32 s{sIt}, s{sIt}, 1")
    a(f"s_cmp_lg_u32 s{sIt}, 8")
    a(f"s_cbranch_scc1 {lbl}")
    a("s_nop 1")
    a(f"v_mfma_f32_32x32x16_bf16 {vr(vO[1],16)}, {vr(vV1,4)}, {vr(vP+4,4)}, {vr(vO[1],16)}")
    tl_stamp(a, 7)
    lwait(a, vT0, vT1, sT0, C_R1, 1, f"{name}_wf")
    a("s_nop 8")
    a(f"s_mul_i32 s{sT0}, s{sW}, 2304")
    a(f"s_add_u32 s{sT0}, s{sT0}, {LDS_RED}")
    a(f"v_add_u32 v{vT0}, s{sT0}, v{vL16}")
    a(f"v_lshrrev_b32 v{vT1}, 2, v{vL16}")
    a(f"v_add_u32 v{vT1}, s{sT0}, v{vT1}")
    a(f"s_cmp_eq_u32 s{sKh}, 0")
    a(f"s_cbranch_scc0 {name}_x1")
    a(f"ds_write_b128 v{vT0}, {vr(vO[1],4)}")
    a(f"ds_write_b128 v{vT0}, {vr(vO[1]+4,4)} offset:1024")
    a(f"ds_write_b32 v{vT1}, v{vO[1]+8} offset:2048")
    a(f"s_branch {name}_x2")
    a.label(f"{name}_x1")
    a(f"ds_write_b128 v{vT0}, {vr(vO[0],4)}")
    a(f"ds_write_b128 v{vT0}, {vr(vO[0]+4,4)} offset:1024")
    a(f"ds_write_b32 v{vT1}, v{vO[0]+8} offset:2048")
    for i in range(9):
        a(f"v_mov_b32 v{vO[0]+i}, v{vO[1]+i}")
    for i in range(4):
        a(f"v_mov_b32 v{vQ[0]+i}, v{vQ[1]+i}")
    a.label(f"{name}_x2")
    a("s_waitcnt lgkmcnt(0)")
    a(f"s_lshl_b32 s{sT0}, s{sQp}, 2")
    a(f"s_add_u32 s61, s{sT0}, {C_X}")
    lsig(a, vAK, vM, "s61")
    lwait(a, vAK, vM, sT0, "s61", 2, f"{name}_wx")
    a(f"s_xor_b32 s{sT0}, s{sW}, 4")
    a(f"s_mul_i32 s{sT0}, s{sT0}, 2304")
    a(f"s_add_u32 s{sT0}, s{sT0}, {LDS_RED}")
    a(f"v_add_u32 v{vT0}, s{sT0}, v{vL16}")
    a(f"v_lshrrev_b32 v{vT1}, 2, v{vL16}")
    a(f"v_add_u32 v{vT1}, s{sT0}, v{vT1}")
    a(f"ds_read_b128 {vr(vT,4)}, v{vT0}")
    a(f"ds_read_b128 {vr(vT+4,4)}, v{vT0} offset:1024")
    a(f"ds_read_b32 v{vT+8}, v{vT1} offset:2048")
    a("s_waitcnt lgkmcnt(0)")
    O = vO[0]
    for i in range(9):
        a(f"v_add_f32 v{O+i}, v{O+i}, v{vT+i}")
    a.label(f"{name}_epi")
    a(f"s_cmp_lg_u32 s{sRetry}, 0")
    a(f"s_cbranch_scc1 {name}_fin")
    a(f"v_mov_b32 v{vT0}, 0x5d800000")
    a(f"v_cmp_nle_f32 vcc, v{O+8}, v{vT0}")
    a("s_nop 4")
    a(f"s_cbranch_vccnz {name}_fallback")
    a.label(f"{name}_fin")
    a(f"v_rcp_f32 v{vT0}, v{O+8}")
    a("s_nop 0")
    for i in range(8):
        a(f"v_mul_f32 v{O+i}, v{O+i}, v{vT0}")
    for i in range(4):
        a(f"v_cvt_pk_bf16_f32 v{vP+i}, v{O+2*i}, v{O+2*i+1}")
    a(f"s_lshl_b32 s{sT0}, s{sQb}, 3")
    a(f"s_lshl_b32 s{sT1}, s{sQp}, 1")
    a(f"s_add_u32 s{sT0}, s{sT0}, s{sT1}")
    a(f"s_add_u32 s{sT0}, s{sT0}, s{sKh}")
    a(f"s_lshl_b32 s{sT0}, s{sT0}, 5")
    a(f"s_add_u32 s{sT0}, s{sT0}, s{sHead}")
    a(f"s_lshl_b32 s{sT0}, s{sT0}, 10")
    a(f"s_add_u32 s{sT0}, s{sT0}, {WS_O}")
    a(f"buffer_store_dwordx4 {vr(vP,4)}, v{vL16}, s[{srdWS}:{srdWS+3}], s{sT0} offen{SC}")
    a(f"v_mov_b32 v{vT0}, {C_ADONE}")
    a(f"v_mov_b32 v{vT1}, 1")
    a("s_mov_b64 exec, 1")
    a(f"ds_add_rtn_u32 v{vM}, v{vT0}, v{vT1}")
    a("s_waitcnt lgkmcnt(0)")
    a("s_mov_b64 exec, -1")
    a(f"v_readfirstlane_b32 s{sT0}, v{vM}")
    a("s_nop 3")
    a(f"s_cmp_lg_u32 s{sT0}, 7")
    a(f"s_cbranch_scc1 {name}_adone")
    a(f"s_lshl_b32 s61, s{sQb}, 5")
    a(f"s_add_u32 s61, s61, s{sHead}")
    a(f"s_add_u32 s61, s61, {FL_O}")
    publish(a, vT0, vT1, 61)
    a.label(f"{name}_adone")
    tl_stamp(a, 8)
    tl_exit(a, 1, sWS)
    a("s_endpgm")
    a.label(f"{name}_fallback")
    a(f"s_mov_b32 s{sRetry}, 1")
    a(f"v_mov_b32 v{vAK}, v{vL16}")
    a(f"v_mov_b32 v{vM}, 0xff800000")
    a(f"s_mov_b32 s{sIt}, 64")
    a.label(f"{name}_maxloop")
    a(f"ds_read_b128 {vr(vK,4)}, v{vAK}")
    a("s_waitcnt lgkmcnt(0)")
    a(f"v_mfma_f32_32x32x16_bf16 {vr(vS[0],16)}, {vr(vK,4)}, {vr(vQ[0],4)}, 0")
    a(f"v_add_u32 v{vAK}, 1024, v{vAK}")
    a("s_nop 15")
    a("s_nop 3")
    for i in range(0, 16, 2):
        a(f"v_max3_f32 v{vM}, v{vM}, v{vS[0]+i}, v{vS[0]+i+1}")
    a(f"s_sub_u32 s{sIt}, s{sIt}, 1")
    a(f"s_cmp_lg_u32 s{sIt}, 0")
    a(f"s_cbranch_scc1 {name}_maxloop")
    bcast_negmax(vC[0])
    for i in range(16):
        a(f"v_mov_b32 v{O+i}, 0")
    a(f"v_mov_b32 v{vAK}, v{vL16}")
    a(f"s_lshl_b32 s60, s{sKh}, 15")
    a(f"s_add_u32 s60, s60, 32768")
    a(f"v_subrev_u32 v{vAV}, s60, v{vAV}")
    a(f"s_mov_b32 s{sIt}, 64")
    a.label(f"{name}_redo")
    a(f"ds_read_b128 {vr(vK,4)}, v{vAK}")
    a(f"s_mov_b64 exec, s[{sMask}:{sMask+1}]")
    a(f"ds_read_b128 {vr(vV0,4)}, v{vAV}")
    a(f"ds_read_b128 {vr(vV1,4)}, v{vAV} offset:512")
    a("s_mov_b64 exec, -1")
    a("s_waitcnt lgkmcnt(0)")
    a(f"v_mfma_f32_32x32x16_bf16 {vr(vS[0],16)}, {vr(vK,4)}, {vr(vQ[0],4)}, {vr(vC[0],16)}")
    a(f"v_add_u32 v{vAK}, 1024, v{vAK}")
    a(f"v_add_u32 v{vAV}, 1024, v{vAV}")
    a("s_nop 15")
    a("s_nop 3")
    for i in range(16):
        a(f"v_exp_f32 v{vT+i}, v{vS[0]+i}")
    a("s_nop 0")
    for i in range(8):
        a(f"v_cvt_pk_bf16_f32 v{vP+i}, v{vT+2*i}, v{vT+2*i+1}")
    a("s_nop 1")
    a(f"v_mfma_f32_32x32x16_bf16 {vr(O,16)}, {vr(vV0,4)}, {vr(vP,4)}, {vr(O,16)}")
    a(f"v_mfma_f32_32x32x16_bf16 {vr(O,16)}, {vr(vV1,4)}, {vr(vP+4,4)}, {vr(O,16)}")
    a(f"s_sub_u32 s{sIt}, s{sIt}, 1")
    a(f"s_cmp_lg_u32 s{sIt}, 0")
    a(f"s_cbranch_scc1 {name}_redo")
    a("s_nop 15")
    a("s_nop 3")
    a(f"s_branch {name}_epi")

def gen_f_part(a, name, base, nvmax, V):
    vLane, vL16, vT0, vT1, vT2, vT3 = V["vLane"], V["vL16"], V["vT0"], V["vT1"], V["vT2"], V["vT3"]
    sF = 54
    a.label(f"{name}_edge")
    Re = RegAlloc(base, 168)
    vG = Re.alloc("G", 4); vA = Re.alloc("rowA", 4); vB = Re.alloc("rowB", 4)
    vR = Re.alloc("R", 4); vX1 = Re.alloc("x1024", 4); vRe = Re.alloc("rerow", 4)
    vD = Re.alloc("D", 8)
    nvmax[0] = max(nvmax[0], Re.next)
    sS = 55
    a(f"s_sub_u32 s{sF}, s{sW}, 8")
    a("s_setprio 3")
    a(f"s_lshl_b32 s{sS}, s2, 2")
    a(f"s_add_u32 s{sS}, s{sS}, s{sF}")
    a(f"v_lshlrev_b32 v{vT0}, 2, v{vLane}")
    a(f"v_add_u32 v{vT0}, {LDS_CNT}, v{vT0}")
    a(f"v_mov_b32 v{vT1}, 0")
    a(f"ds_write_b32 v{vT0}, v{vT1}")
    a("s_waitcnt lgkmcnt(0)")
    a(f"s_or_b32 s{sT0}, s2, s{sF}")
    a(f"s_cmp_lg_u32 s{sT0}, 0")
    a(f"s_cbranch_scc1 {name}_nn")
    a(f"s_memrealtime s[{sT0}:{sT0+1}]")
    a("s_waitcnt lgkmcnt(0)")
    a(f"s_or_b32 s{sT0}, s{sT0}, 1")
    a(f"v_mov_b32 v{vT0}, 0")
    a(f"v_mov_b32 v{vT1}, s{sT0}")
    a("s_mov_b64 exec, 1")
    a(f"global_store_dword v{vT0}, v{vT1}, s[{sDbg}:{sDbg+1}] sc1")
    a("s_mov_b64 exec, -1")
    a.label(f"{name}_nn")
    srd(a, srdA, sX, 2048*1024)
    srd(a, srdWS, sWS, WS_SIZE_USED)
    srd(a, srdB, sGate, 1024)
    srd(a, srdC, sHre, 512*1024)
    a(f"buffer_load_dwordx4 {vr(vG,4)}, v{vL16}, s[{srdB}:{srdB+3}], 0 offen")
    a(f"s_lshl_b32 s{sT0}, s{sS}, 10")
    a(f"buffer_load_dwordx4 {vr(vA,4)}, v{vL16}, s[{srdA}:{srdA+3}], s{sT0} offen")
    a(f"s_sub_u32 s{sT1}, 2048, s{sS}")
    a(f"s_lshl_b32 s{sT1}, s{sT1}, 10")
    a(f"buffer_load_dwordx4 {vr(vB,4)}, v{vL16}, s[{srdA}:{srdA+3}], s{sT1} offen")
    a(f"s_mov_b32 s{sT1}, {1024*1024}")
    a(f"buffer_load_dwordx4 {vr(vX1,4)}, v{vL16}, s[{srdA}:{srdA+3}], s{sT1} offen")
    a(f"s_lshl_b32 s{sT1}, s2, 10")
    a(f"buffer_load_dwordx4 {vr(vRe,4)}, v{vL16}, s[{srdC}:{srdC+3}], s{sT1} offen")
    decode_hq(a)
    for i in range(4):
        a(f"v_mov_b32 v{vD+i}, -1")
    a(f"s_lshl_b32 s{sT0}, s{sQb}, 3")
    a(f"s_lshl_b32 s{sT1}, s{sF}, 1")
    a(f"s_add_u32 s{sT0}, s{sT0}, s{sT1}")
    a(f"s_lshl_b32 s{sT0}, s{sT0}, 5")
    a(f"s_add_u32 s{sT0}, s{sT0}, s{sHead}")
    a(f"s_lshl_b32 s{sT0}, s{sT0}, 10")
    a(f"s_add_u32 s{sT0}, s{sT0}, {WS_O}")
    a(f"buffer_store_dwordx4 {vr(vD,4)}, v{vL16}, s[{srdWS}:{srdWS+3}], s{sT0} offen{SC}")
    a(f"s_add_u32 s{sT0}, s{sT0}, 32768")
    a(f"buffer_store_dwordx4 {vr(vD,4)}, v{vL16}, s[{srdWS}:{srdWS+3}], s{sT0} offen{SC}")
    a("s_barrier")
    a("s_barrier")
    a("s_waitcnt vmcnt(0)")
    a(f"s_mov_b32 s56, 0xbf803f80")
    a(f"v_dot2_f32_bf16 v{vD}, v{vA}, v{vG}, 0")
    a(f"v_dot2_f32_bf16 v{vD+1}, v{vB}, v{vG}, 0")
    a(f"v_dot2_f32_bf16 v{vD+2}, v{vA}, s56, 0")
    a(f"v_dot2_f32_bf16 v{vD+3}, v{vRe}, v{vX1}, 0")
    a(f"v_dot2_f32_bf16 v{vD+4}, v{vX1}, v{vG}, 0")
    a(f"v_dot2_f32_bf16 v{vD+5}, v{vX1}, s56, 0")
    a("s_nop 2")
    for q in range(4):
        if q > 0:
            a(f"v_dot2c_f32_bf16 v{vD}, v{vA+q}, v{vG+q}")
            a(f"v_dot2c_f32_bf16 v{vD+1}, v{vB+q}, v{vG+q}")
            a(f"v_dot2c_f32_bf16 v{vD+2}, s56, v{vA+q}")
            a(f"v_dot2c_f32_bf16 v{vD+3}, v{vRe+q}, v{vX1+q}")
            a(f"v_dot2c_f32_bf16 v{vD+4}, v{vX1+q}, v{vG+q}")
            a(f"v_dot2c_f32_bf16 v{vD+5}, s56, v{vX1+q}")
        a(f"v_dot2c_f32_bf16 v{vD+2}, s56, v{vB+q}")
    a("s_nop 3")
    for ctrl in ["row_shr:1", "row_shr:2", "row_shr:4", "row_shr:8"]:
        for r in range(6):
            a(f"v_add_f32_dpp v{vD+r}, v{vD+r}, v{vD+r} {ctrl} row_mask:0xf bank_mask:0xf bound_ctrl:0")
    for r in range(6):
        a(f"v_add_f32_dpp v{vD+r}, v{vD+r}, v{vD+r} row_bcast:15 row_mask:0xa bank_mask:0xf")
    for r in range(6):
        a(f"v_add_f32_dpp v{vD+r}, v{vD+r}, v{vD+r} row_bcast:31 row_mask:0xc bank_mask:0xf")
    a("s_barrier")
    for r in (0, 1, 4):
        a(f"v_mul_f32 v{vD+r}, {f2u(-1.4426950408889634)}, v{vD+r}")
    for r in (0, 1, 4):
        a(f"v_exp_f32 v{vD+r}, v{vD+r}")
    a("s_nop 0")
    for r in (0, 1, 4):
        a(f"v_add_f32 v{vD+r}, 1.0, v{vD+r}")
    for r in (0, 1, 4):
        a(f"v_rcp_f32 v{vD+r}, v{vD+r}")
    a(f"v_cvt_pk_bf16_f32 v{vD+2}, v{vD+2}, 0")
    a(f"v_cvt_pk_bf16_f32 v{vR}, v{vD+3}, 0")
    a(f"v_cvt_pk_bf16_f32 v{vD+5}, v{vD+5}, 0")
    for i in range(1, 4): a(f"v_mov_b32 v{vR+i}, 0")
    for i in range(4): a(f"v_mov_b32 v{vA+i}, 0")
    a(f"v_mov_b32 v{vT1}, 0")
    a("s_mov_b32 exec_lo, 0")
    a("s_mov_b32 exec_hi, 0x80000000")
    a(f"s_lshl_b32 s{sT0}, s{sS}, 2")
    a(f"s_add_u32 s{sT0}, s{sT0}, {WS_G}")
    a(f"buffer_store_dword v{vD}, v{vT1}, s[{srdWS}:{srdWS+3}], s{sT0} offen{SC}")
    a(f"s_cmp_eq_u32 s{sS}, 0")
    a(f"s_cbranch_scc1 {name}_e1")
    a(f"s_sub_u32 s{sT0}, 2048, s{sS}")
    a(f"s_lshl_b32 s{sT0}, s{sT0}, 2")
    a(f"s_add_u32 s{sT0}, s{sT0}, {WS_G}")
    a(f"buffer_store_dword v{vD+1}, v{vT1}, s[{srdWS}:{srdWS+3}], s{sT0} offen{SC}")
    a.label(f"{name}_e1")
    a(f"s_lshr_b32 s{sT0}, s{sS}, 4")
    a(f"s_add_u32 s{sT0}, s{sT0}, {8*A_KSTEPS}")
    a(f"s_lshl_b32 s{sT0}, s{sT0}, 10")
    a(f"s_bfe_u32 s{sT1}, s{sS}, 0x10003")
    a(f"s_lshl_b32 s{sT1}, s{sT1}, 9")
    a(f"s_add_u32 s{sT0}, s{sT0}, s{sT1}")
    a(f"s_and_b32 s{sT1}, s{sS}, 7")
    a(f"s_lshl_b32 s{sT1}, s{sT1}, 1")
    a(f"s_add_u32 s{sT0}, s{sT0}, s{sT1}")
    a(f"s_add_u32 s{sT0}, s{sT0}, {WS_A}")
    a(f"buffer_store_short v{vD+2}, v{vT1}, s[{srdWS}:{srdWS+3}], s{sT0} offen{SC}")
    a(f"s_cmp_lg_u32 s{sF}, 0")
    a(f"s_cbranch_scc1 {name}_e2")
    a(f"s_lshr_b32 s{sT0}, s2, 5")
    a(f"s_mul_i32 s{sT0}, s{sT0}, {A_KSTEPS}")
    a(f"s_add_u32 s{sT0}, s{sT0}, 64")
    a(f"s_lshl_b32 s{sT0}, s{sT0}, 10")
    a(f"s_and_b32 s{sT1}, s2, 31")
    a(f"s_lshl_b32 s{sT1}, s{sT1}, 4")
    a(f"s_add_u32 s{sT0}, s{sT0}, s{sT1}")
    a(f"s_add_u32 s{sT0}, s{sT0}, {WS_A}")
    a(f"buffer_store_dwordx4 {vr(vR,4)}, v{vT1}, s[{srdWS}:{srdWS+3}], s{sT0} offen{SC}")
    a(f"buffer_store_dwordx4 {vr(vA,4)}, v{vT1}, s[{srdWS}:{srdWS+3}], s{sT0} offen offset:512{SC}")
    a.label(f"{name}_e2")
    a(f"s_cmp_lg_u32 s{sS}, 1")
    a(f"s_cbranch_scc1 {name}_e3")
    a(f"s_mov_b32 s{sT0}, {WS_G + 4096}")
    a(f"buffer_store_dword v{vD+4}, v{vT1}, s[{srdWS}:{srdWS+3}], s{sT0} offen{SC}")
    a(f"v_mov_b32 v{vR}, v{vD+5}")
    a(f"s_mov_b32 s{sT0}, {WS_A + (8*A_KSTEPS + 64)*1024}")
    a(f"buffer_store_dwordx4 {vr(vR,4)}, v{vT1}, s[{srdWS}:{srdWS+3}], s{sT0} offen{SC}")
    a(f"buffer_store_dwordx4 {vr(vA,4)}, v{vT1}, s[{srdWS}:{srdWS+3}], s{sT0} offen offset:512{SC}")
    a.label(f"{name}_e3")
    a("s_mov_b64 exec, -1")
    for i in range(3, 6):
        a("s_barrier")
    a(f"s_cmp_lg_u32 s{sF}, 0")
    a(f"s_cbranch_scc1 {name}_nn2")
    a(f"v_mov_b32 v{vT0}, 0")
    a(f"s_mov_b32 s{sT1}, {SPIN_MAX}")
    a.label(f"{name}_npoll")
    a(f"global_load_dword v{vT1}, v{vT0}, s[{sDbg}:{sDbg+1}] sc1")
    a("s_waitcnt vmcnt(0)")
    a(f"v_readfirstlane_b32 s{sN}, v{vT1}")
    a(f"s_sub_u32 s{sT1}, s{sT1}, 1")
    a(f"s_cbranch_scc1 {name}_npoll_ok")
    a("s_nop 1")
    a(f"s_cmp_lg_u32 s{sN}, 0")
    a(f"s_cbranch_scc1 {name}_npoll_ok")
    a("s_sleep 1")
    a(f"s_branch {name}_npoll")
    a.label(f"{name}_npoll_ok")
    a(f"v_mov_b32 v{vT0}, {C_NONCE}")
    a(f"v_mov_b32 v{vT1}, s{sN}")
    a(f"ds_write_b32 v{vT0}, v{vT1}")
    a.label(f"{name}_nn2")
    a("s_waitcnt vmcnt(0) lgkmcnt(0)")
    for i in range(6, 9):
        a("s_barrier")
    tl_stamp(a, 0)

    Rf = RegAlloc(base, 168)
    vB_ = Rf.alloc("boff"); vY = Rf.alloc("yaddr"); vFl = Rf.alloc("flag")
    accP = Rf.alloc("accP", 16); accQ = Rf.alloc("accQ", 16)
    buf = Rf.alloc("buf", 96)
    vCn = Rf.alloc("cn", 4)
    nvmax[0] = max(nvmax[0], Rf.next)
    sKoff, sVoff = 56, 57
    sTt, sEt, sHasQ, sA, sBq, sK, sJob, sCnt = 58, 59, 60, 61, 62, 63, 30, 31
    decode_hq(a)
    KB = accP
    sPend, sQd, sSlot = 60, 61, 62
    a(f"s_lshl_b32 s{sKoff}, s{sHead}, 16")
    a(f"s_add_u32 s{sKoff}, s{sKoff}, {WS_K}")
    a(f"s_cmp_lg_u32 s{sF}, 0")
    a(f"s_cbranch_scc1 {name}_kvld")
    a(f"s_add_u32 s{sT0}, s2, {FL_E}")
    publish(a, vT0, vT1, sT0)
    tl_stamp(a, 1)
    a(f"s_lshr_b32 s{sT0}, s{sHead}, 3")
    a(f"s_lshl_b32 s{sT0}, s{sT0}, 4")
    a(f"v_and_b32 v{vT0}, 15, v{vLane}")
    a(f"v_bfe_u32 v{vT1}, v{vLane}, 4, 1")
    a(f"v_lshlrev_b32 v{vT1}, 6, v{vT1}")
    a(f"v_add_u32 v{vT0}, v{vT0}, v{vT1}")
    a(f"v_add_u32 v{vT0}, 64, v{vT0}")
    a(f"v_and_b32 v{vT1}, 1, v{vLane}")
    a(f"s_lshl_b32 s{sT1}, s{sQb}, 1")
    a(f"v_add_u32 v{vT1}, s{sT1}, v{vT1}")
    a(f"v_cmp_gt_u32 vcc, 32, v{vLane}")
    a("s_nop 1")
    a(f"v_cndmask_b32 v{vT0}, v{vT1}, v{vT0}, vcc")
    a(f"v_add_u32 v{vT0}, s{sT0}, v{vT0}")
    a(f"v_lshlrev_b32 v{vFl}, {FSH}, v{vT0}")
    a(f"v_add_u32 v{vFl}, {WS_FLAG}, v{vFl}")
    a(f"s_mov_b32 s{sPend}, 0xffff")
    a(f"s_mov_b32 s{sQd}, 0")
    a(f"s_mov_b32 s{sSlot}, 0")
    a(f"s_mov_b32 s{sCnt}, {SPIN_MAX}")
    a.label(f"{name}_dpoll")
    a(f"global_load_dword v{vT0}, v{vFl}, s[{sWS}:{sWS+1}] sc1")
    a("s_waitcnt vmcnt(0)")
    a(f"v_cmp_eq_u32 vcc, s{sN}, v{vT0}")
    a(f"s_sub_u32 s{sCnt}, s{sCnt}, 1")
    a(f"s_cbranch_scc0 {name}_dnt")
    a("s_mov_b64 vcc, -1")
    a.label(f"{name}_dnt")
    a("s_nop 2")
    a(f"s_mov_b32 s56, vcc_lo")
    a(f"s_mov_b32 s57, vcc_hi")
    a(f"s_cmp_lg_u32 s{sQd}, 0")
    a(f"s_cbranch_scc1 {name}_dq")
    a(f"s_cmp_lg_u32 s57, -1")
    a(f"s_cbranch_scc1 {name}_dq")
    a(f"s_mov_b32 s{sQd}, 1")
    tl_stamp(a, 2)
    if TL["on"]: a("s_waitcnt lgkmcnt(0)")
    lsig(a, vT0, vT1, C_GO)
    a.label(f"{name}_dq")
    a(f"s_lshr_b32 s{sT0}, s56, 16")
    a(f"s_and_b32 s{sT0}, s{sT0}, s56")
    a(f"s_and_b32 s{sT0}, s{sT0}, s{sPend}")
    a(f"s_cmp_eq_u32 s{sT0}, 0")
    a(f"s_cbranch_scc1 {name}_dnone")
    a(f"s_andn2_b32 s{sPend}, s{sPend}, s{sT0}")
    a.label(f"{name}_dq1")
    a(f"s_ff1_i32_b32 s{sT1}, s{sT0}")
    a(f"s_bitset0_b32 s{sT0}, s{sT1}")
    a(f"s_add_u32 s{sT1}, s{sT1}, 1")
    a(f"s_lshl_b32 s{sT2}, s{sSlot}, 2")
    a(f"s_add_u32 s{sT2}, s{sT2}, {C_QUE}")
    a(f"v_mov_b32 v{vT0}, s{sT2}")
    a(f"v_mov_b32 v{vT1}, s{sT1}")
    a(f"ds_write_b32 v{vT0}, v{vT1}")
    a(f"s_add_u32 s{sSlot}, s{sSlot}, 1")
    a(f"s_cmp_lg_u32 s{sT0}, 0")
    a(f"s_cbranch_scc1 {name}_dq1")
    a.label(f"{name}_dnone")
    a(f"s_cmp_eq_u32 s{sQd}, 0")
    a(f"s_cbranch_scc1 {name}_dagain")
    a(f"s_cmp_eq_u32 s{sPend}, 0")
    a(f"s_cbranch_scc1 {name}_kvdone")
    a.label(f"{name}_dagain")
    a("s_sleep 4")
    a(f"s_branch {name}_dpoll")
    a.label(f"{name}_kvld")
    read_nonce(a, vT0, vT1)
    a(f"s_sub_u32 s{sSlot}, s{sF}, 1")
    a.label(f"{name}_kvnext")
    a(f"s_lshl_b32 s{sT2}, s{sSlot}, 2")
    a(f"s_add_u32 s63, s{sT2}, {C_QUE}")
    lwait(a, vT0, vT1, sT0, "s63", 1, f"{name}_kvwq", sleep=1)
    a(f"s_sub_u32 s{sT0}, s{sT0}, 1")
    a(f"s_and_b32 s{sT0}, s{sT0}, 15")
    a(f"s_lshl_b32 s{sT0}, s{sT0}, 12")
    a(f"s_add_u32 s{sT0}, s{sT0}, s{sKoff}")
    for t in range(4):
        a(f"s_add_u32 s{sT1}, s{sT0}, {t*1024}")
        a(f"buffer_load_dwordx4 {vr(KB+4*t,4)}, v{vL16}, s[{srdWS}:{srdWS+3}], s{sT1} offen{SC}")
        a(f"s_add_u32 s{sT1}, s{sT1}, {WS_V - WS_K}")
        a(f"buffer_load_dwordx4 {vr(KB+16+4*t,4)}, v{vL16}, s[{srdWS}:{srdWS+3}], s{sT1} offen{SC}")
    a(f"s_and_b32 s{sT1}, s{sSlot}, 1")
    a(f"s_lshl_b32 s{sT1}, s{sT1}, 15")
    a(f"s_lshr_b32 s{sT2}, s{sSlot}, 1")
    a(f"s_lshl_b32 s{sT2}, s{sT2}, 12")
    a(f"s_add_u32 s{sT1}, s{sT1}, s{sT2}")
    a(f"v_add_u32 v{vT2}, s{sT1}, v{vL16}")
    a(f"v_add_u32 v{vT3}, 65536, v{vT2}")
    a(f"s_lshl_b32 s{sT0}, s{sSlot}, 2")
    a(f"s_add_u32 s{sT0}, s{sT0}, {C_RDY}")
    a(f"v_mov_b32 v{vT0}, s{sT0}")
    a(f"v_mov_b32 v{vT1}, 1")
    a("s_waitcnt vmcnt(0)")
    for t in range(4):
        a(f"ds_write_b128 v{vT2}, {vr(KB+4*t,4)} offset:{t*1024}")
        a(f"ds_write_b128 v{vT3}, {vr(KB+16+4*t,4)} offset:{t*1024}")
    a("s_waitcnt lgkmcnt(0)")
    a(f"ds_write_b32 v{vT0}, v{vT1}")
    a(f"s_add_u32 s{sSlot}, s{sSlot}, 3")
    a(f"s_cmp_lt_u32 s{sSlot}, 16")
    a(f"s_cbranch_scc1 {name}_kvnext")
    a.label(f"{name}_kvdone")
    tl_stamp(a, 3)
    srd(a, srdA, sSre, 2048*4096)
    srd(a, srdB, sSim, 2048*4096)
    srd(a, srdC, sWo, 512*1024)
    a(f"s_lshl_b32 s{sT0}, s{sQb}, 7")
    a(f"s_lshl_b32 s{sT1}, s{sF}, 17")
    a(f"s_add_u32 s{sT0}, s{sT0}, s{sT1}")
    a(f"v_lshlrev_b32 v{vT0}, 10, v{vLane}")
    a(f"buffer_load_dword v{vT3}, v{vT0}, s[{srdC}:{srdC+3}], s{sT0} offen")
    a(f"s_add_u32 s{sT0}, s{sT0}, 65536")
    a(f"buffer_load_dword v{vT3}, v{vT0}, s[{srdC}:{srdC+3}], s{sT0} offen")
    a(f"s_cmp_lg_u32 s{sF}, 0")
    a(f"s_cbranch_scc1 {name}_fnz2")
    a(f"v_lshlrev_b32 v{vFl}, {FSH}, v{vLane}")
    a(f"v_add_u32 v{vFl}, {WS_FLAG + (FL_F1 << FSH)}, v{vFl}")
    a(f"s_mov_b32 s{sCnt}, {SPIN_MAX}")
    a.label(f"{name}_g1")
    a(f"global_load_dword v{buf}, v{vFl}, s[{sWS}:{sWS+1}] sc1")
    for i in range(4):
        a(f"v_add_u32 v{buf+8}, {((FL_E - FL_F1 + 64*i) << FSH)}, v{vFl}")
        a(f"global_load_dword v{buf+1+i}, v{buf+8}, s[{sWS}:{sWS+1}] sc1")
    a("s_waitcnt vmcnt(0)")
    a(f"v_cmp_ne_u32 vcc, s{sN}, v{buf}")
    for i in range(4):
        a(f"v_cmp_ne_u32 s[{sT0}:{sT0+1}], s{sN}, v{buf+1+i}")
        a("s_nop 1")
        a(f"s_or_b64 vcc, vcc, s[{sT0}:{sT0+1}]")
    a(f"s_sub_u32 s{sCnt}, s{sCnt}, 1")
    a(f"s_cbranch_scc1 {name}_g1_ok")
    a("s_nop 2")
    a(f"s_cbranch_vccz {name}_g1_ok")
    a("s_sleep 8")
    a(f"s_branch {name}_g1")
    a.label(f"{name}_g1_ok")
    lsig(a, vT0, vT1, C_GO2)
    a(f"s_branch {name}_fgo2")
    a.label(f"{name}_fnz2")
    lwait(a, vT0, vT1, sT0, C_GO2, 1, f"{name}_fwgo2", sleep=4)
    a.label(f"{name}_fgo2")
    tl_stamp(a, 4)

    accX = buf; accW = buf + 16; fb = buf + 32
    a(f"s_mov_b32 s{sTt}, s{sHead}")
    a(f"s_mov_b32 s{sEt}, s{sQb}")
    a(f"v_and_b32 v{vT0}, 31, v{vLane}")
    a(f"s_lshl_b32 s{sT0}, s{sTt}, 5")
    a(f"v_add_u32 v{vT0}, s{sT0}, v{vT0}")
    a(f"v_mul_u32_u24 v{vY}, {Y_STRIDE}, v{vT0}")
    a(f"v_lshlrev_b32 v{vT0}, 12, v{vT0}")
    a(f"v_lshrrev_b32 v{vT1}, 5, v{vLane}")
    a(f"v_lshlrev_b32 v{vT1}, 4, v{vT1}")
    a(f"v_add_u32 v{vB_}, v{vT0}, v{vT1}")
    a(f"v_add_u32 v{vY}, v{vY}, v{vT1}")
    for i in range(16):
        a(f"v_mov_b32 v{accP+i}, 0")
        a(f"v_mov_b32 v{accQ+i}, 0")
        a(f"v_mov_b32 v{accX+i}, 0")
        a(f"v_mov_b32 v{accW+i}, 0")
    for i in range(4):
        a(f"v_mov_b32 v{vCn+i}, 0xbf803f80")
    a(f"s_lshl_b32 s{sK}, s{sF}, 4")
    a(f"s_mul_i32 s{sA}, s{sEt}, {A_KSTEPS}")
    a(f"s_add_u32 s{sA}, s{sA}, s{sK}")
    a(f"s_lshl_b32 s{sA}, s{sA}, 10")
    a(f"s_add_u32 s{sA}, s{sA}, {WS_A}")
    a(f"s_add_u32 s{sHasQ}, s{sK}, {8*A_KSTEPS}")
    a(f"s_lshl_b32 s{sHasQ}, s{sHasQ}, 10")
    a(f"s_add_u32 s{sHasQ}, s{sHasQ}, {WS_A}")
    sA8 = sHasQ
    a(f"s_mul_i32 s{sBq}, s{sEt}, {B_KSTEPS}")
    a(f"s_add_u32 s{sBq}, s{sBq}, s{sK}")
    a(f"s_lshl_b32 s{sBq}, s{sBq}, 10")
    a(f"s_add_u32 s{sBq}, s{sBq}, {WS_B}")
    a(f"s_lshl_b32 s{sK}, s{sK}, 5")
    a(f"s_cmp_eq_u32 s{sEt}, 0")
    a(f"s_cselect_b32 s{sJob}, 1, 0")
    a(f"s_cmp_eq_u32 s{sTt}, 0")
    a(f"s_cselect_b32 s{sT0}, 2, 0")
    a(f"s_or_b32 s{sJob}, s{sJob}, s{sT0}")
    a(f"s_cmp_eq_u32 s2, 8")
    a(f"s_cselect_b32 s{sT0}, 4, 0")
    a(f"s_or_b32 s{sJob}, s{sJob}, s{sT0}")
    vm = Vm(a)
    NFL = 3
    def ld_k(k, slot, withq=True):
        r = fb + slot * 20
        a(f"s_add_u32 s{sT0}, s{sA}, {k*1024}")
        a(f"buffer_load_dwordx4 {vr(r,4)}, v{vL16}, s[{srdWS}:{srdWS+3}], s{sT0} offen{SC}")
        a(f"s_add_u32 s{sT0}, s{sK}, {k*32}")
        a(f"buffer_load_dwordx4 {vr(r+4,4)}, v{vB_}, s[{srdA}:{srdA+3}], s{sT0} offen")
        a(f"s_add_u32 s{sT0}, s{sA8}, {k*1024}")
        a(f"buffer_load_dwordx4 {vr(r+16,4)}, v{vL16}, s[{srdWS}:{srdWS+3}], s{sT0} offen{SC}")
        n = 3
        if withq:
            a(f"s_add_u32 s{sT0}, s{sBq}, {k*1024}")
            a(f"buffer_load_dwordx4 {vr(r+8,4)}, v{vL16}, s[{srdWS}:{srdWS+3}], s{sT0} offen{SC}")
            a(f"s_add_u32 s{sT0}, s{sK}, {k*32}")
            a(f"buffer_load_dwordx4 {vr(r+12,4)}, v{vB_}, s[{srdB}:{srdB+3}], s{sT0} offen")
            n = 5
        vm.issue(k, n)
    lab = [0]
    def mf_k(slot, withq=True):
        r = fb + slot * 20
        lab[0] += 1
        L = f"{name}_fm{lab[0]}"
        a(f"v_mfma_f32_32x32x16_bf16 {vr(accP,16)}, {vr(r,4)}, {vr(r+4,4)}, {vr(accP,16)}")
        if withq:
            a(f"v_mfma_f32_32x32x16_bf16 {vr(accQ,16)}, {vr(r+8,4)}, {vr(r+12,4)}, {vr(accQ,16)}")
        a(f"s_cmp_eq_u32 s{sJob}, 0")
        a(f"s_cbranch_scc1 {L}c")
        a(f"s_bitcmp1_b32 s{sJob}, 0")
        a(f"s_cbranch_scc0 {L}a")
        a(f"v_mfma_f32_32x32x16_bf16 {vr(accX,16)}, {vr(r+16,4)}, {vr(r+4,4)}, {vr(accX,16)}")
        a.label(f"{L}a")
        a(f"s_bitcmp1_b32 s{sJob}, 1")
        a(f"s_cbranch_scc0 {L}b")
        a(f"v_mfma_f32_32x32x16_bf16 {vr(accW,16)}, {vr(r,4)}, {vr(vCn,4)}, {vr(accW,16)}")
        a.label(f"{L}b")
        a(f"s_bitcmp1_b32 s{sJob}, 2")
        a(f"s_cbranch_scc0 {L}c")
        a(f"v_mfma_f32_32x32x16_bf16 {vr(accW,16)}, {vr(r+16,4)}, {vr(vCn,4)}, {vr(accW,16)}")
        a.label(f"{L}c")
    if EXP.get("nof2"): a(f"s_branch {name}_fnox")
    for k in range(NFL): ld_k(k, k)
    for k in range(16):
        vm.wait(k)
        mf_k(k % NFL)
        if k + NFL < 16:
            a("s_nop 4")
            ld_k(k + NFL, k % NFL)
    a(f"s_cmp_lg_u32 s{sF}, 0")
    a(f"s_cbranch_scc1 {name}_fnox")
    a("s_nop 4")
    vm = Vm(a)
    ld_k(64, 0, withq=False)
    a("s_waitcnt vmcnt(0)")
    mf_k(0, withq=False)
    a.label(f"{name}_fnox")
    a("s_nop 15")
    a("s_nop 3")
    for i in range(16):
        a(f"v_sub_f32 v{fb+i}, v{accP+i}, v{accQ+i}")
        a(f"v_add_f32 v{accQ+i}, v{accP+i}, v{accQ+i}")
    for i in range(16):
        a(f"v_mov_b32 v{accP+i}, v{fb+i}")
    WA = 8192 + 256 + 256
    a(f"s_cmp_eq_u32 s{sF}, 0")
    a(f"s_cbranch_scc1 {name}_fred0")
    a(f"s_sub_u32 s{sT0}, s{sF}, 1")
    a(f"s_mul_i32 s{sT0}, s{sT0}, {WA}")
    a(f"s_add_u32 s{sT0}, s{sT0}, {LDS_RED}")
    a(f"v_add_u32 v{vT0}, s{sT0}, v{vL16}")
    for q in range(8):
        a(f"ds_write_b128 v{vT0}, {vr(accP+4*q,4)} offset:{q*1024}")
    a(f"v_lshrrev_b32 v{vT1}, 2, v{vL16}")
    a(f"v_add_u32 v{vT1}, s{sT0}, v{vT1}")
    a(f"ds_write_b32 v{vT1}, v{accX} offset:8192")
    a(f"v_lshrrev_b32 v{vT1}, 5, v{vLane}")
    a(f"v_lshlrev_b32 v{vT1}, 6, v{vT1}")
    a(f"v_add_u32 v{vT1}, s{sT0}, v{vT1}")
    a("s_mov_b32 exec_lo, 1")
    a("s_mov_b32 exec_hi, 1")
    for q in range(4):
        a(f"ds_write_b128 v{vT1}, {vr(accW+4*q,4)} offset:{8192 + 256 + q*16}")
    a("s_mov_b64 exec, -1")
    a("s_waitcnt lgkmcnt(0)")
    lsig(a, vT0, vT1, C_R0)
    a(f"s_branch {name}_fsig")
    a.label(f"{name}_fred0")
    lwait(a, vT0, vT1, sT0, C_R0, 3, f"{name}_fw0", sleep=2)
    a(f"v_add_u32 v{vT0}, {LDS_RED}, v{vL16}")
    a(f"v_lshrrev_b32 v{vT2}, 2, v{vL16}")
    a(f"v_add_u32 v{vT2}, {LDS_RED}, v{vT2}")
    a(f"v_lshrrev_b32 v{vT1}, 5, v{vLane}")
    a(f"v_lshlrev_b32 v{vT1}, 6, v{vT1}")
    a(f"v_add_u32 v{vT1}, {LDS_RED}, v{vT1}")
    for src in range(3):
        for q in range(8):
            a(f"ds_read_b128 {vr(fb+4*q,4)}, v{vT0} offset:{src*WA + q*1024}")
        a(f"ds_read_b32 v{fb+32}, v{vT2} offset:{src*WA + 8192}")
        for q in range(4):
            a(f"ds_read_b128 {vr(fb+36+4*q,4)}, v{vT1} offset:{src*WA + 8192 + 256 + q*16}")
        a("s_waitcnt lgkmcnt(0)")
        for i in range(32):
            a(f"v_add_f32 v{accP+i}, v{accP+i}, v{fb+i}")
        a(f"v_add_f32 v{accX}, v{accX}, v{fb+32}")
        for i in range(16):
            a(f"v_add_f32 v{accW+i}, v{accW+i}, v{fb+36+i}")
    a(f"s_lshl_b32 s{sT0}, s{sEt}, 7")
    for g in range(4):
        a(f"s_add_u32 s{sT2}, s{sT0}, {WS_D + g*32}")
        a(f"buffer_store_dwordx4 {vr(accP+4*g,4)}, v{vY}, s[{srdWS}:{srdWS+3}], s{sT2} offen{SC}")
        a(f"s_add_u32 s{sT2}, s{sT0}, {WS_E + g*32}")
        a(f"buffer_store_dwordx4 {vr(accQ+4*g,4)}, v{vY}, s[{srdWS}:{srdWS+3}], s{sT2} offen{SC}")
    a(f"s_bitcmp1_b32 s{sJob}, 0")
    a(f"s_cbranch_scc0 {name}_fo1")
    a("s_mov_b32 exec_hi, 0")
    a(f"s_mov_b32 s{sT2}, {WS_D + 1024}")
    a(f"buffer_store_dword v{accX}, v{vY}, s[{srdWS}:{srdWS+3}], s{sT2} offen{SC}")
    a(f"s_mov_b32 s{sT2}, {WS_E + 1024}")
    a(f"buffer_store_dword v{accX}, v{vY}, s[{srdWS}:{srdWS+3}], s{sT2} offen{SC}")
    a("s_mov_b64 exec, -1")
    a.label(f"{name}_fo1")
    a(f"s_bitcmp1_b32 s{sJob}, 1")
    a(f"s_cbranch_scc0 {name}_fo2")
    a(f"v_lshrrev_b32 v{vT1}, 5, v{vLane}")
    a(f"v_lshlrev_b32 v{vT1}, 4, v{vT1}")
    a("s_mov_b32 exec_lo, 1")
    a("s_mov_b32 exec_hi, 1")
    for g in range(4):
        a(f"s_add_u32 s{sT2}, s{sT0}, {WS_D + 1024*Y_STRIDE + g*32}")
        a(f"buffer_store_dwordx4 {vr(accW+4*g,4)}, v{vT1}, s[{srdWS}:{srdWS+3}], s{sT2} offen{SC}")
        a(f"s_add_u32 s{sT2}, s{sT0}, {WS_E + 1024*Y_STRIDE + g*32}")
        a(f"buffer_store_dwordx4 {vr(accW+4*g,4)}, v{vT1}, s[{srdWS}:{srdWS+3}], s{sT2} offen{SC}")
    a("s_mov_b64 exec, -1")
    a.label(f"{name}_fo2")
    a(f"s_bitcmp1_b32 s{sJob}, 2")
    a(f"s_cbranch_scc0 {name}_fo3")
    a(f"v_mov_b32 v{vT1}, 0")
    a("s_mov_b64 exec, 1")
    a(f"s_mov_b32 s{sT2}, {WS_D + 1024*Y_STRIDE + 1024}")
    a(f"buffer_store_dword v{accW}, v{vT1}, s[{srdWS}:{srdWS+3}], s{sT2} offen{SC}")
    a(f"s_mov_b32 s{sT2}, {WS_E + 1024*Y_STRIDE + 1024}")
    a(f"buffer_store_dword v{accW}, v{vT1}, s[{srdWS}:{srdWS+3}], s{sT2} offen{SC}")
    a("s_mov_b64 exec, -1")
    a.label(f"{name}_fo3")
    lsig(a, vT0, vT1, C_R1)
    a("s_waitcnt vmcnt(0)")
    a(f"s_add_u32 s{sT0}, s2, {FL_D}")
    publish(a, vT0, vT1, sT0)
    a.label(f"{name}_fsig")
    tl_stamp(a, 5)

    Rp = RegAlloc(base, 168)
    vWa = [Rp.alloc("wa0"), Rp.alloc("wa1")]
    vG2 = Rp.alloc("g"); vYa = Rp.alloc("ya"); vOffW = Rp.alloc("offw"); vFl2 = Rp.alloc("fl")
    vYv = Rp.alloc("y", 16)
    fO = Rp.alloc("fO", 64)
    NS = 3
    fW = [Rp.alloc(f"fW{i}", 8) for i in range(NS)]
    acc = [Rp.alloc("acc0", 16), Rp.alloc("acc1", 16)]
    nvmax[0] = max(nvmax[0], Rp.next)
    sTb, sEb, sTt2, sKh2, sT0row, sE0, sMirE = 56, 57, 58, 59, 60, 61, 62
    a(f"s_mov_b32 s{sTb}, s{sHead}")
    a(f"s_mov_b32 s{sEb}, s{sQb}")
    a(f"s_and_b32 s{sTt2}, s{sF}, 1")
    a(f"s_lshr_b32 s{sKh2}, s{sF}, 1")
    a(f"s_lshl_b32 s{sT0}, s{sTt2}, 5")
    a(f"s_lshl_b32 s{sT0row}, s{sTb}, 6")
    a(f"s_add_u32 s{sT0row}, s{sT0row}, s{sT0}")
    a(f"s_lshl_b32 s{sT0}, s{sKh2}, 5")
    a(f"s_lshl_b32 s{sE0}, s{sEb}, 6")
    a(f"s_add_u32 s{sE0}, s{sE0}, s{sT0}")
    srd(a, srdA, sOut, 2048*1024)
    a(f"v_lshrrev_b32 v{vT0}, 3, v{vLane}")
    a(f"v_lshlrev_b32 v{vOffW}, 10, v{vT0}")
    a(f"v_bfe_u32 v{vT1}, v{vLane}, 4, 1")
    a(f"v_bfe_u32 v{vT2}, v{vLane}, 2, 1")
    a(f"v_xor_b32 v{vT1}, v{vT1}, v{vT2}")
    a(f"v_lshlrev_b32 v{vT1}, 6, v{vT1}")
    a(f"v_add_u32 v{vOffW}, v{vOffW}, v{vT1}")
    a(f"v_and_b32 v{vT1}, 3, v{vLane}")
    a(f"v_lshlrev_b32 v{vT1}, 4, v{vT1}")
    a(f"v_add_u32 v{vOffW}, v{vOffW}, v{vT1}")
    a(f"v_bfe_u32 v{vT0}, v{vLane}, 2, 2")
    a(f"v_lshrrev_b32 v{vT1}, 5, v{vLane}")
    a(f"v_lshlrev_b32 v{vT1}, 2, v{vT1}")
    a(f"v_add_u32 v{vT0}, v{vT0}, v{vT1}")
    a(f"v_lshlrev_b32 v{vT0}, 7, v{vT0}")
    a(f"v_bfe_u32 v{vT1}, v{vLane}, 4, 1")
    a(f"v_lshlrev_b32 v{vT1}, 5, v{vT1}")
    a(f"v_add_u32 v{vT0}, v{vT0}, v{vT1}")
    a(f"v_and_b32 v{vT1}, 3, v{vLane}")
    a(f"v_lshlrev_b32 v{vT1}, 3, v{vT1}")
    a(f"v_add_u32 v{vT0}, v{vT0}, v{vT1}")
    a(f"s_lshl_b32 s{sT0}, s{sKh2}, 15")
    a(f"v_add_u32 v{vT0}, s{sT0}, v{vT0}")
    a(f"v_bfe_u32 v{vT1}, v{vLane}, 3, 1")
    for et in range(2):
        a(f"v_xor_b32 v{vT2}, {et}, v{vT1}")
        a(f"v_lshlrev_b32 v{vT2}, 6, v{vT2}")
        a(f"v_add_u32 v{vWa[et]}, v{vT0}, v{vT2}")
    a(f"v_and_b32 v{vT0}, 31, v{vLane}")
    a(f"v_add_u32 v{vT0}, s{sT0row}, v{vT0}")
    a(f"v_lshlrev_b32 v{vG2}, 2, v{vT0}")
    a(f"v_sub_u32 v{vT1}, 2048, v{vT0}")
    a(f"s_cmp_lt_u32 s{sT0row}, 1024")
    a("s_cselect_b64 vcc, -1, 0")
    a(f"s_cselect_b32 s{sT2}, 1, 0")
    a(f"v_cndmask_b32 v{vT1}, v{vT1}, v{vT0}, vcc")
    a(f"v_mul_u32_u24 v{vYa}, {Y_STRIDE}, v{vT1}")
    a(f"v_lshrrev_b32 v{vT1}, 5, v{vLane}")
    a(f"v_lshlrev_b32 v{vT1}, 4, v{vT1}")
    a(f"s_cmp_lt_u32 s{sE0}, 256")
    a(f"s_cselect_b32 s{sMirE}, 0, 1")
    a(f"s_cselect_b32 s63, 1, 0")
    a(f"s_cbranch_scc0 {name}_mir")
    a(f"v_add_u32 v{vYa}, v{vYa}, v{vT1}")
    a(f"s_lshl_b32 s{sT1}, s{sE0}, 2")
    a(f"s_branch {name}_ya")
    a.label(f"{name}_mir")
    a(f"s_sub_u32 s{sT1}, 485, s{sE0}")
    a(f"s_lshl_b32 s{sT1}, s{sT1}, 2")
    a(f"v_add_u32 v{vYa}, s{sT1}, v{vYa}")
    a(f"v_sub_u32 v{vYa}, v{vYa}, v{vT1}")
    a(f"s_mov_b32 s{sT1}, 0")
    a.label(f"{name}_ya")
    a(f"s_cmp_eq_u32 s{sT2}, s63")
    a(f"s_mov_b32 s{sT3}, {WS_E}")
    a(f"s_cselect_b32 s{sT2}, {WS_D}, s{sT3}")
    a(f"s_add_u32 s63, s{sT1}, s{sT2}")
    for e in range(2):
        for i in range(16):
            a(f"v_mov_b32 v{acc[e]+i}, 0")
    a(f"s_lshl_b32 s{sT0}, s{sKh2}, 8")
    a(f"s_lshl_b32 s{sT1}, s{sTt2}, 7")
    a(f"s_add_u32 s{sT0}, s{sT0}, s{sT1}")
    a(f"s_lshl_b32 s30, s{sT0}, 7")
    a(f"s_lshl_b32 s{sT0}, s{sT0}, 10")
    a(f"s_lshl_b32 s{sT1}, s{sEb}, 7")
    a(f"s_add_u32 s{sT2}, s{sT0}, s{sT1}")
    for m in range(16):
        a(f"s_add_u32 s{sT1}, s{sT2}, {m*8192}")
        a(f"buffer_load_dwordx4 {vr(fO+4*m,4)}, v{vOffW}, s[{srdC}:{srdC+3}], s{sT1} offen")
    a(f"s_cmp_lg_u32 s{sF}, 0")
    a(f"s_cbranch_scc1 {name}_c1")
    a(f"v_lshlrev_b32 v{vFl2}, {FSH}, v{vLane}")
    a(f"v_add_u32 v{vFl2}, {WS_FLAG + (FL_D << FSH)}, v{vFl2}")
    gpoll_multi(a, vFl2, vYv, 4, 64 << FSH, f"{name}_gd", sCnt, sleep=8)
    lsig(a, vT0, vT1, C_GO3)
    a(f"s_branch {name}_c2")
    a.label(f"{name}_c1")
    lwait(a, vT0, vT1, sT0, C_GO3, 1, f"{name}_cw1", sleep=4)
    a.label(f"{name}_c2")
    a(f"s_mov_b32 s{sT1}, {WS_G}")
    a(f"buffer_load_dword v{vG2}, v{vG2}, s[{srdWS}:{srdWS+3}], s{sT1} offen{SC}")
    for c in range(4):
        a(f"buffer_load_dwordx4 {vr(vYv+4*c,4)}, v{vYa}, s[{srdWS}:{srdWS+3}], s63 offen offset:{c*32}{SC}")
    tl_stamp(a, 6)
    a(f"v_and_b32 v{vT0}, 31, v{vLane}")
    a(f"s_lshr_b32 s{sT0}, s{sHead}, 2")
    a(f"s_lshl_b32 s{sT0}, s{sT0}, 5")
    a(f"v_add_u32 v{vT0}, s{sT0}, v{vT0}")
    a(f"v_lshlrev_b32 v{vFl2}, {FSH}, v{vT0}")
    a(f"v_add_u32 v{vFl2}, {WS_FLAG + (FL_O << FSH)}, v{vFl2}")
    a(f"v_add_u32 v{vOffW}, s30, v{vL16}")
    a(f"s_lshl_b32 s{sT0}, s{sTb}, 1")
    a(f"s_add_u32 s{sT0}, s{sT0}, s{sTt2}")
    a(f"s_lshl_b32 s{sT0}, s{sT0}, 5")
    a(f"s_lshl_b32 s{sT1}, s{sKh2}, 4")
    a(f"s_add_u32 s{sT0}, s{sT0}, s{sT1}")
    a(f"s_lshl_b32 s{sT0}, s{sT0}, 10")
    a(f"s_add_u32 s30, s{sT0}, {WS_O}")
    a("s_waitcnt vmcnt(0)")
    lwait(a, vT0, vT1, sT0, C_ADONE, 8, f"{name}_cw2", sleep=1)
    tl_stamp(a, 7)
    for m in range(16):
        a(f"ds_write_b128 v{vOffW}, {vr(fO+4*m,4)} offset:{m*1024}")
    a("s_waitcnt lgkmcnt(0)")
    a(f"s_lshl_b32 s{sT0}, s{sKh2}, 2")
    a(f"s_add_u32 s31, s{sT0}, {C_W}")
    lsig(a, vT0, vT1, "s31")
    tl_stamp(a, 1)
    a(f"s_cmp_lg_u32 s{sF}, 0")
    a(f"s_cbranch_scc1 {name}_c3")
    gpoll(a, vFl2, vT0, f"{name}_go", 55, sleep=2)
    lsig(a, vT0, vT1, C_GO3)
    a(f"s_branch {name}_c4")
    a.label(f"{name}_c3")
    lwait(a, vT0, vT1, sT0, C_GO3, 2, f"{name}_cw3", sleep=1)
    a.label(f"{name}_c4")
    tl_stamp(a, 8)
    a(f"s_mov_b32 s55, 32")
    a.label(f"{name}_oload")
    for i in range(16):
        a(f"s_add_u32 s{sT1}, s30, {i*1024}")
        a(f"buffer_load_dwordx4 {vr(fO+4*i,4)}, v{vL16}, s[{srdWS}:{srdWS+3}], s{sT1} offen{SC}")
    lwait(a, vT0, vT1, sT0, "s31", 2, f"{name}_cw4", sleep=0)
    a(f"v_mov_b32 v{vFl2}, 0")
    def wreads(i):
        s = i % NS
        for et in range(2):
            for u in range(2):
                a(f"ds_read_b64_tr_b16 {vr(fW[s]+4*et+2*u,2)}, v{vWa[et]} offset:{i*2048 + u*1024}")
    tl_stamp(a, 2)
    wreads(0); wreads(1)
    for i in range(16):
        if i == 1: tl_stamp(a, 3)
        if i == 8: tl_stamp(a, 4)
        if i + 2 < 16:
            wreads(i + 2)
            a(f"s_waitcnt vmcnt({15-i}) lgkmcnt(8)")
        else:
            a(f"s_waitcnt vmcnt({15-i}) lgkmcnt({4*(15-i)})")
        for et in range(2):
            a(f"v_mfma_f32_32x32x16_bf16 {vr(acc[et],16)}, {vr(fW[i%NS]+4*et,4)}, {vr(fO+4*i,4)}, {vr(acc[et],16)}")
        a(f"v_max3_u32 v{vFl2}, v{vFl2}, v{fO+4*i}, v{fO+4*i+1}")
        a(f"v_max3_u32 v{vFl2}, v{vFl2}, v{fO+4*i+2}, v{fO+4*i+3}")
    a(f"v_cmp_eq_u32 vcc, -1, v{vFl2}")
    a("s_nop 4")
    a(f"s_cbranch_vccz {name}_ook")
    a(f"s_sub_u32 s55, s55, 1")
    a(f"s_cbranch_scc1 {name}_ook")
    a("s_nop 15")
    for e in range(2):
        for i in range(16):
            a(f"v_mov_b32 v{acc[e]+i}, 0")
    a("s_sleep 2")
    a(f"s_branch {name}_oload")
    a.label(f"{name}_ook")
    if TL["on"]:
        a("s_sub_u32 s86, 32, s55")
        a("s_add_u32 s86, s86, s90" if TL.get("rt") else "s_add_u32 s86, s86, s92")
    tl_stamp(a, 9)
    a("s_nop 15")
    a(f"s_lshl_b32 s{sT0}, s{sF}, 12")
    a(f"s_add_u32 s{sT0}, s{sT0}, 65536")
    a(f"v_add_u32 v{vT0}, s{sT0}, v{vL16}")
    a(f"s_cmp_eq_u32 s{sKh2}, 0")
    a(f"s_cbranch_scc0 {name}_y1")
    for q in range(4):
        a(f"ds_write_b128 v{vT0}, {vr(acc[1]+4*q,4)} offset:{q*1024}")
    a(f"s_branch {name}_y2")
    a.label(f"{name}_y1")
    for q in range(4):
        a(f"ds_write_b128 v{vT0}, {vr(acc[0]+4*q,4)} offset:{q*1024}")
    for i in range(16):
        a(f"v_mov_b32 v{acc[0]+i}, v{acc[1]+i}")
    a.label(f"{name}_y2")
    a("s_waitcnt lgkmcnt(0)")
    a(f"s_lshl_b32 s{sT0}, s{sTt2}, 2")
    a(f"s_add_u32 s31, s{sT0}, {C_Y}")
    lsig(a, vT1, vT2, "s31")
    lwait(a, vT1, vT2, sT0, "s31", 2, f"{name}_cw5", sleep=0)
    a(f"s_xor_b32 s{sT0}, s{sF}, 2")
    a(f"s_lshl_b32 s{sT0}, s{sT0}, 12")
    a(f"s_add_u32 s{sT0}, s{sT0}, 65536")
    a(f"v_add_u32 v{vT0}, s{sT0}, v{vL16}")
    for q in range(4):
        a(f"ds_read_b128 {vr(fO+4*q,4)}, v{vT0} offset:{q*1024}")
    a("s_waitcnt lgkmcnt(0)")
    S = acc[0]
    for i in range(16):
        a(f"v_add_f32 v{S+i}, v{S+i}, v{fO+i}")
    a(f"s_cmp_eq_u32 s{sMirE}, 0")
    a(f"s_cbranch_scc0 {name}_cm")
    for i in range(16):
        a(f"v_sub_f32 v{S+i}, v{S+i}, v{vYv+i}")
        a(f"v_fma_f32 v{S+i}, v{vG2}, v{S+i}, v{vYv+i}")
    a(f"s_branch {name}_st")
    a.label(f"{name}_cm")
    for g in range(4):
        for r in range(4):
            y = vYv + 4*(3-g) + (3-r)
            a(f"v_sub_f32 v{S+4*g+r}, v{S+4*g+r}, v{y}")
            a(f"v_fma_f32 v{S+4*g+r}, v{vG2}, v{S+4*g+r}, v{y}")
    a.label(f"{name}_st")
    P = fO + 16
    for i in range(8):
        a(f"v_cvt_pk_bf16_f32 v{P+i}, v{S+2*i}, v{S+2*i+1}")
    a(f"v_and_b32 v{vT0}, 31, v{vLane}")
    a(f"v_add_u32 v{vT0}, s{sT0row}, v{vT0}")
    a(f"v_lshlrev_b32 v{vT0}, 10, v{vT0}")
    a(f"v_lshrrev_b32 v{vT1}, 5, v{vLane}")
    a(f"v_lshlrev_b32 v{vT1}, 4, v{vT1}")
    a(f"v_add_u32 v{vT0}, v{vT0}, v{vT1}")
    a(f"s_lshl_b32 s{sT0}, s{sE0}, 1")
    for pr in range(2):
        a(f"v_permlane32_swap_b32 v{P+4*pr}, v{P+4*pr+2}")
        a(f"v_permlane32_swap_b32 v{P+4*pr+1}, v{P+4*pr+3}")
    for pr in range(2):
        a(f"buffer_store_dwordx4 {vr(P+4*pr,4)}, v{vT0}, s[{srdA}:{srdA+3}], s{sT0} offen offset:{32*pr}")
    tl_stamp(a, 10)
    tl_exit(a, 2, sWS)
    a("s_endpgm")
```

```python
import sys
from asmlib import *

NAME = "gated_mix__softmax_full_mha__spectral_fnet__prompt"
from common import *
from gen_k1 import gen_k1
from gen_f2 import gen_f2
from gen_k3 import gen_k3
from gen_attn2 import gen_attn2
from gen_k1v2 import gen_k1v2
from gen_k2 import gen_k2
from gen_k3v2 import gen_k3v2
from gen_fused import gen_fused

TIMING = False
OPT = {}
def stamp(a, sreg):
    if TIMING:
        a(f"s_memtime s[{sreg}:{sreg+1}]")
def stamp_store(a, regs, vtmp, vaddr, srd_base, wave_index_sreg, stmp):
    if not TIMING: return
    a("s_waitcnt lgkmcnt(0)")
    a(f"s_lshl_b32 s{stmp}, s{wave_index_sreg}, 6")
    a(f"s_add_u32 s{stmp}, s{stmp}, {WS_T}")
    a(f"v_mov_b32 v{vaddr}, 0")
    for i, r in enumerate(regs):
        a(f"v_mov_b32 v{vtmp}, s{r}")
        a(f"buffer_store_dword v{vtmp}, v{vaddr}, s[{srd_base}:{srd_base+3}], s{stmp} offen offset:{4*i}")

def gen_attn(a, name):
    R = RegAlloc(0, 168)
    v_tid = R.alloc("tid")
    vLane16 = R.alloc("lane16")
    vAK = R.alloc("addrK")
    vAV = R.alloc("addrV")
    vT0 = R.alloc("tmp0")
    vT1 = R.alloc("tmp1")
    vM = R.alloc("m")
    vQ = R.alloc("Q", 4)
    vK = R.alloc("K", 4)
    vV0 = R.alloc("V0", 4)
    vV1 = R.alloc("V1", 4)
    vP = R.alloc("P", 8)
    vS = [R.alloc("S0", 16), R.alloc("S1", 16)]
    vT = R.alloc("T", 16)
    vO = R.alloc("O", 16)
    vC = R.alloc("C", 16)
    nv = R.next
    sWS = 4
    sSRD = 8
    sW, sHead, sQb = 12, 13, 14
    sKoff, sVoff = 15, 16
    sCh = 17
    sIt = 18
    sTmp, sTmp2 = 19, 20
    sMask = 22
    sRetry = 24

    a.raw(kernel_header(name))
    a("s_cmp_ge_u32 s2, 256")
    a(f"s_cbranch_scc1 {name}_end")
    tl_entry(a)
    stamp(a, 40)
    if TIMING: a("s_memrealtime s[54:55]")
    a(f"s_load_dwordx2 s[{sWS}:{sWS+1}], s[0:1], {ARG['ws']}")
    a(f"v_lshrrev_b32 v{vT0}, 6, v0")
    a(f"v_and_b32 v{vT1}, 63, v0")
    a(f"v_readfirstlane_b32 s{sW}, v{vT0}")
    a(f"v_lshlrev_b32 v{vLane16}, 4, v{vT1}")
    a(f"s_and_b32 s{sTmp}, s2, 7")
    a(f"s_lshr_b32 s{sTmp2}, s2, 3")
    a(f"s_lshl_b32 s{sHead}, s{sTmp}, 2")
    a(f"s_and_b32 s{sTmp}, s{sTmp2}, 3")
    a(f"s_add_u32 s{sHead}, s{sHead}, s{sTmp}")
    a(f"s_lshr_b32 s{sQb}, s{sTmp2}, 2")
    a(f"s_mov_b32 s{sMask}, 0x0000ffff")
    a(f"s_mov_b32 s{sMask+1}, 0x0000ffff")
    a(f"s_mov_b32 s{sRetry}, 0")
    a("s_waitcnt lgkmcnt(0)")
    srd(a, sSRD, sWS, WS_SIZE_USED)
    a(f"s_lshl_b32 s{sTmp}, s{sHead}, 6")
    a(f"s_add_u32 s{sTmp}, s{sTmp}, s{sW}")
    a(f"s_lshl_b32 s{sTmp}, s{sTmp}, 10")
    a(f"s_add_u32 s{sKoff}, s{sTmp}, {WS_K}")
    a(f"s_add_u32 s{sVoff}, s{sTmp}, {WS_V}")
    a(f"s_lshl_b32 s{sTmp2}, s{sQb}, 13")
    a(f"s_add_u32 s{sTmp2}, s{sTmp2}, s{sTmp}")
    a(f"buffer_load_dwordx4 {vr(vQ,4)}, v{vLane16}, s[{sSRD}:{sSRD+3}], s{sTmp2} offen")

    def dma_chunk(chunk_sreg=None, const=None):
        if const is not None:
            a(f"s_lshl_b32 s{sTmp}, s{sW}, 10")
            a(f"s_add_u32 s{sTmp}, s{sTmp}, {const*8192}")
            a(f"s_add_u32 s{sTmp2}, s{sKoff}, {const*8192}")
            a(f"s_mov_b32 m0, s{sTmp}")
            a(f"s_add_u32 s{sTmp}, s{sTmp}, 65536")
            a(f"buffer_load_dwordx4 v{vLane16}, s[{sSRD}:{sSRD+3}], s{sTmp2} offen lds")
            a(f"s_add_u32 s{sTmp2}, s{sVoff}, {const*8192}")
            a(f"s_mov_b32 m0, s{sTmp}")
            a("s_nop 0")
            a(f"buffer_load_dwordx4 v{vLane16}, s[{sSRD}:{sSRD+3}], s{sTmp2} offen lds")
        else:
            c = chunk_sreg
            a(f"s_lshl_b32 s{sTmp}, s{sW}, 10")
            a(f"s_lshl_b32 s21, s{c}, 13")
            a(f"s_add_u32 s{sTmp}, s{sTmp}, s21")
            a(f"s_add_u32 s{sTmp2}, s{sKoff}, s21")
            a(f"s_mov_b32 m0, s{sTmp}")
            a(f"s_add_u32 s{sTmp}, s{sTmp}, 65536")
            a(f"buffer_load_dwordx4 v{vLane16}, s[{sSRD}:{sSRD+3}], s{sTmp2} offen lds")
            a(f"s_add_u32 s{sTmp2}, s{sVoff}, s21")
            a(f"s_mov_b32 m0, s{sTmp}")
            a("s_nop 0")
            a(f"buffer_load_dwordx4 v{vLane16}, s[{sSRD}:{sSRD+3}], s{sTmp2} offen lds")

    for c in range(3):
        dma_chunk(const=c)
    a(f"v_lshrrev_b32 v{vT0}, 5, v{vT1}")
    a(f"v_lshlrev_b32 v{vT0}, 8, v{vT0}")
    a(f"v_and_b32 v{vAV}, 15, v{vT1}")
    a(f"v_lshlrev_b32 v{vAV}, 4, v{vAV}")
    a(f"v_add_u32 v{vAV}, v{vAV}, v{vT0}")
    a(f"v_add_u32 v{vAV}, 65536, v{vAV}")
    a(f"v_mov_b32 v{vM}, 0x3f803f80")
    a(f"v_and_b32 v{vAK}, 31, v{vT1}")
    a(f"v_cmp_eq_u32 vcc, 16, v{vAK}")
    a(f"v_cmp_eq_u32 s[26:27], 20, v{vAK}")
    a("s_nop 1")
    a("s_or_b64 vcc, vcc, s[26:27]")
    a("s_nop 1")
    a(f"v_cndmask_b32 v{vT0}, 0, v{vM}, vcc")
    for i in range(4):
        a(f"v_mov_b32 v{vV0+i}, v{vT0}")
        a(f"v_mov_b32 v{vV1+i}, v{vT0}")
    stamp(a, 42)
    a("s_waitcnt vmcnt(2)")
    a("s_barrier")
    stamp(a, 44)
    dma_chunk(const=3)
    a(f"s_mov_b32 s{sCh}, 4")

    def first_max_and_C():
        a(f"ds_read_b128 {vr(vK,4)}, v{vLane16}")
        a("s_waitcnt lgkmcnt(0)")
        a(f"v_mfma_f32_32x32x16_bf16 {vr(vS[0],16)}, {vr(vK,4)}, {vr(vQ,4)}, 0")
        a("s_nop 15")
        a("s_nop 3")
        S = vS[0]
        a(f"v_max3_f32 v{vM}, v{S}, v{S+1}, v{S+2}")
        for i in range(3, 15, 2):
            a(f"v_max3_f32 v{vM}, v{vM}, v{S+i}, v{S+i+1}")
        a(f"v_max_f32 v{vM}, v{vM}, v{S+15}")

    def bcast_negmax():
        a(f"v_mov_b32 v{vT0}, v{vM}")
        a("s_nop 1")
        a(f"v_permlane32_swap_b32 v{vT0}, v{vM}")
        a("s_nop 1")
        a(f"v_max_f32 v{vM}, v{vM}, v{vT0}")
        for i in range(16):
            a(f"v_sub_f32 v{vC+i}, 0, v{vM}")

    def pipeline_init():
        for i in range(16):
            a(f"v_mov_b32 v{vO+i}, 0")
        for i in range(4, 8):
            a(f"v_mov_b32 v{vP+i}, 0")
        a(f"v_mov_b32 v{vAK}, v{vLane16}")
        a(f"ds_read_b128 {vr(vK,4)}, v{vAK}")
        a(f"ds_read_b128 {vr(vT,4)}, v{vAK} offset:1024")
        a("s_waitcnt lgkmcnt(0)")
        a(f"v_mfma_f32_32x32x16_bf16 {vr(vS[0],16)}, {vr(vK,4)}, {vr(vQ,4)}, {vr(vC,16)}")
        a(f"v_mfma_f32_32x32x16_bf16 {vr(vS[1],16)}, {vr(vT,4)}, {vr(vQ,4)}, {vr(vC,16)}")
        a(f"s_mov_b64 exec, s[{sMask}:{sMask+1}]")
        a(f"ds_read_b128 {vr(vV0,4)}, v{vAV}")
        a("s_mov_b64 exec, -1")
        a(f"ds_read_b128 {vr(vK,4)}, v{vAK} offset:2048")
        a("s_nop 15")

    def step(u):
        S = vS[u & 1]
        e = lambda i: a(f"v_exp_f32 v{vT+i}, v{S+i}")
        c = lambda i: a(f"v_cvt_pk_bf16_f32 v{vP+i}, v{vT+2*i}, v{vT+2*i+1}")
        e(0); e(1); e(2); c(0); e(3); e(4)
        a("s_waitcnt lgkmcnt(2)")
        a(f"v_mfma_f32_32x32x16_bf16 {vr(vO,16)}, {vr(vV1,4)}, {vr(vP+4,4)}, {vr(vO,16)}")
        if not OPT.get("noexec"): a(f"s_mov_b64 exec, s[{sMask}:{sMask+1}]")
        if not OPT.get("nolds"): a(f"ds_read_b128 {vr(vV1,4)}, v{vAV} offset:{(2*u+1)*512}")
        if not OPT.get("noexec"): a("s_mov_b64 exec, -1")
        c(1); e(5); e(6); c(2); e(7); e(8); c(3); e(9); e(10)
        a("s_waitcnt lgkmcnt(2)")
        a(f"v_mfma_f32_32x32x16_bf16 {vr(vO,16)}, {vr(vV0,4)}, {vr(vP,4)}, {vr(vO,16)}")
        if not OPT.get("noexec"): a(f"s_mov_b64 exec, s[{sMask}:{sMask+1}]")
        if not OPT.get("nolds"): a(f"ds_read_b128 {vr(vV0,4)}, v{vAV} offset:{(2*u+2)*512}")
        if not OPT.get("noexec"): a("s_mov_b64 exec, -1")
        e(11); c(4); e(12); c(5); e(13); e(14); c(6); e(15)
        a("s_waitcnt lgkmcnt(2)")
        a(f"v_mfma_f32_32x32x16_bf16 {vr(S,16)}, {vr(vK,4)}, {vr(vQ,4)}, {vr(vC,16)}")
        if not OPT.get("nolds"): a(f"ds_read_b128 {vr(vK,4)}, v{vAK} offset:{(u+3)*1024}")
        c(7)

    def main_loop(sync, lbl):
        a(f"s_mov_b32 s{sIt}, 8")
        a.label(lbl)
        for u in range(8):
            step(u)
        a(f"v_add_u32 v{vAK}, 8192, v{vAK}")
        a(f"v_add_u32 v{vAV}, 8192, v{vAV}")
        if sync and not OPT.get("nosync"):
            a("s_waitcnt vmcnt(2)")
            a("s_barrier")
            a(f"s_min_u32 s25, s{sCh}, 7")
            dma_chunk(chunk_sreg=25)
            a(f"s_add_u32 s{sCh}, s{sCh}, 1")
        a(f"s_sub_u32 s{sIt}, s{sIt}, 1")
        a(f"s_cmp_lg_u32 s{sIt}, 0")
        a(f"s_cbranch_scc1 {lbl}")
        a("s_waitcnt lgkmcnt(0)")
        a(f"v_mfma_f32_32x32x16_bf16 {vr(vO,16)}, {vr(vV1,4)}, {vr(vP+4,4)}, {vr(vO,16)}")

    first_max_and_C()
    bcast_negmax()
    pipeline_init()
    stamp(a, 46)
    main_loop(True, f"{name}_loop")
    stamp(a, 48)
    a.label(f"{name}_epi")
    a("s_nop 15")
    a("s_nop 3")
    a(f"s_cmp_lg_u32 s{sRetry}, 0")
    a(f"s_cbranch_scc1 {name}_fin")
    a(f"v_mov_b32 v{vT0}, 0x5d800000")
    a(f"v_cmp_nle_f32 vcc, v{vO+8}, v{vT0}")
    a("s_nop 4")
    a(f"s_cbranch_vccnz {name}_fallback")
    a.label(f"{name}_fin")
    a(f"v_rcp_f32 v{vT0}, v{vO+8}")
    a("s_nop 0")
    for i in range(8):
        a(f"v_mul_f32 v{vO+i}, v{vO+i}, v{vT0}")
    for i in range(4):
        a(f"v_cvt_pk_bf16_f32 v{vP+i}, v{vO+2*i}, v{vO+2*i+1}")
    a(f"s_lshl_b32 s{sTmp}, s{sQb}, 3")
    a(f"s_add_u32 s{sTmp}, s{sTmp}, s{sW}")
    a(f"s_lshl_b32 s{sTmp}, s{sTmp}, 5")
    a(f"s_add_u32 s{sTmp}, s{sTmp}, s{sHead}")
    a(f"s_lshl_b32 s{sTmp}, s{sTmp}, 10")
    a(f"s_add_u32 s{sTmp}, s{sTmp}, {WS_O}")
    a(f"buffer_store_dwordx4 {vr(vP,4)}, v{vLane16}, s[{sSRD}:{sSRD+3}], s{sTmp} offen")
    if TIMING:
        stamp(a, 50)
        a("s_memrealtime s[56:57]")
        a(f"s_lshl_b32 s52, s2, 3")
        a(f"s_add_u32 s52, s52, s{sW}")
        stamp_store(a, [40, 42, 44, 46, 48, 50, 54, 56], vT0, vT1, sSRD, 52, 53)
    tl_exit(a, 1, sWS)
    a("s_endpgm")
    a.label(f"{name}_fallback")
    a(f"s_mov_b32 s{sRetry}, 1")
    a(f"v_mov_b32 v{vAK}, v{vLane16}")
    a(f"v_mov_b32 v{vM}, 0xff800000")
    a(f"s_mov_b32 s{sIt}, 64")
    a.label(f"{name}_maxloop")
    a(f"ds_read_b128 {vr(vK,4)}, v{vAK}")
    a("s_waitcnt lgkmcnt(0)")
    a(f"v_mfma_f32_32x32x16_bf16 {vr(vS[0],16)}, {vr(vK,4)}, {vr(vQ,4)}, 0")
    a(f"v_add_u32 v{vAK}, 1024, v{vAK}")
    a("s_nop 15")
    a("s_nop 3")
    S = vS[0]
    for i in range(0, 16, 2):
        a(f"v_max3_f32 v{vM}, v{vM}, v{S+i}, v{S+i+1}")
    a(f"s_sub_u32 s{sIt}, s{sIt}, 1")
    a(f"s_cmp_lg_u32 s{sIt}, 0")
    a(f"s_cbranch_scc1 {name}_maxloop")
    bcast_negmax()
    a(f"v_subrev_u32 v{vAV}, 65536, v{vAV}")
    a(f"s_mov_b64 exec, s[{sMask}:{sMask+1}]")
    for i in range(4):
        a(f"v_mov_b32 v{vV1+i}, 0")
    a("s_mov_b64 exec, -1")
    pipeline_init()
    main_loop(False, f"{name}_loop2")
    a(f"s_branch {name}_epi")
    a.label(f"{name}_end")
    a("s_endpgm")
    return nv

HEADER = """; Kernarg layout for this problem (96 bytes, ptrs only, base s[0:1]):
"""

SINGLE = False
def build(kernels, launches, path):
    a = Asm()
    descs = []
    for (name, fn, kw) in kernels:
        nv = fn(a, name)
        descs.append(kernel_desc(name, nv, **kw))
    txt = HEADER
    for (k, g, b, lds) in launches:
        if SINGLE:
            txt += f"; @launch grid=({g},1,1) block=({b},1,1) lds={lds}\n"
        else:
            txt += f"; @launch kernel={k} grid=({g},1,1) block=({b},1,1) lds={lds}\n"
    txt += '.amdgcn_target "amdgcn-amd-amdhsa--gfx950"\n.text\n'
    txt += a.text()
    txt += '.section .rodata,"a"\n' + "".join(descs)
    open(path, "w").write(txt)

if __name__ == "__main__":
    mode = sys.argv[1]; path = sys.argv[2]
    TIMING = "t" in sys.argv[3:]
    TL["on"] = "tl" in sys.argv[3:] or "rt" in sys.argv[3:]
    TL["rt"] = "rt" in sys.argv[3:]
    import gen_fused_b
    for o in sys.argv[3:]: gen_fused_b.EXP[o] = True
    SINGLE = "single" in sys.argv[3:]
    for o in sys.argv[3:]:
        OPT[o] = True
    K = dict(k1=("k1_kernel", gen_k1, dict(sgpr=102), ("k1_kernel", 251, 256, 131072)),
             attn=("attn_kernel", gen_attn, dict(sgpr=102), ("attn_kernel", 256, 512, 131072)),
             attn2=("attn_kernel", gen_attn2, dict(sgpr=102), ("attn_kernel", 256, 512, 131072 + 8*2304)),
             k1v2=("k1_kernel", gen_k1v2, dict(sgpr=102), ("k1_kernel", 256, 768, 163840)),
             k2=("k2_kernel", gen_k2, dict(sgpr=102), ("k2_kernel", 256, 768, 163840)),
             k3v2=("k3_kernel", gen_k3v2, dict(sgpr=102), ("k3_kernel", 256, 512, 131072)),
             fused=(NAME + "_kernel", gen_fused, dict(sgpr=102), (NAME + "_kernel", 256, 768, 163840)),
             f2=("f2_kernel", gen_f2, dict(sgpr=102), ("f2_kernel", 297, 256, 32768)),
             k3=("k3_kernel", gen_k3, dict(sgpr=102), ("k3_kernel", 256, 256, 131072)))
    sel = dict(all=["k1", "attn", "f2", "k3"], all2=["k1", "attn2", "f2", "k3"], all3=["k1v2", "attn2", "f2", "k3"], all4=["k1v2", "k2", "k3"], all5=["k1v2", "k2", "k3v2"]).get(mode, mode.split(","))
    build([K[k][:3] for k in sel], [K[k][3] for k in sel], path)
```

```python
WS_Q = 0
WS_K = 2 << 20
WS_V = 4 << 20
WS_O = 6 << 20
WS_A = 8 << 20
WS_B = 9 << 20
WS_D = 10 << 20
WS_E = 12 << 20
WS_G = 14 << 20
WS_T = 15 << 20
WS_T2 = 16 << 20
WS_SIZE_USED = 20 << 20
A_KSTEPS = 72
B_KSTEPS = 64
Y_STRIDE = 288 * 4
ARG = dict(x=0, wqkv=8, wo=16, bx=24, sre=32, sim=40, hre=48, him=56, gate=64, out=72, dbg=80, ws=88)

def srd(a, d, lo, size):
    a(f"s_mov_b32 s{d}, s{lo}")
    a(f"s_and_b32 s{d+1}, s{lo+1}, 0xffff")
    a(f"s_mov_b32 s{d+2}, {size}")
    a(f"s_mov_b32 s{d+3}, 0x00020000")

TL = {"on": False}
def tl_entry(a):
    if TL["on"]:
        for i in range(12):
            a(f"s_mov_b32 s{64+2*i}, 0")
        a("s_memrealtime s[90:91]")
        a("s_memtime s[92:93]")
def tl_stamp(a, i):
    if TL["on"]:
        a(f"s_memrealtime s[{64+2*i}:{65+2*i}]" if TL.get("rt") else f"s_memtime s[{64+2*i}:{65+2*i}]")
        TL.setdefault("n", 0)
def dbg_exit(a, slots, wg_list, wave, dbase):
    if not TL.get("dbg"):
        return
    a("s_waitcnt vmcnt(0) lgkmcnt(0)")
    for j, wg in enumerate(wg_list):
        lab = a.newlabel("dbg")
        a(f"s_cmp_lg_u32 s2, {wg}")
        a(f"s_cbranch_scc1 {lab}")
        a(f"s_cmp_lg_u32 s28, {wave}")
        a(f"s_cbranch_scc1 {lab}")
        a("s_memrealtime s[94:95]")
        a("s_waitcnt lgkmcnt(0)")
        a("v_mov_b32 v1, 0")
        for i, sl in enumerate(slots):
            src = "s94" if sl < 0 else f"s{64+2*sl}"
            a(f"v_mov_b32 v2, {src}")
            a(f"global_store_dword v1, v2, s[24:25] offset:{4*(dbase + j*len(slots) + i)}")
        a.label(lab)
def tl_exit(a, kidx, wsptr_lo):
    if not TL["on"]:
        return
    a("s_waitcnt vmcnt(0)")
    a("s_memrealtime s[94:95]")
    a("s_memtime s[96:97]")
    a("s_mov_b64 exec, -1")
    a("v_lshrrev_b32 v1, 6, v0")
    a("s_nop 1")
    a("v_readfirstlane_b32 s98, v1")
    a("s_lshl_b32 s99, s2, 4")
    a("s_add_u32 s99, s99, s98")
    a("s_lshl_b32 s99, s99, 4")
    a(f"s_add_u32 s99, s99, {WS_T + kidx*131072}")
    a("s_waitcnt lgkmcnt(0)")
    a(f"s_add_u32 s100, s{wsptr_lo}, s99")
    a(f"s_addc_u32 s101, s{wsptr_lo+1}, 0")
    a("v_mov_b32 v2, s90")
    a("v_mov_b32 v3, s94")
    a("v_mov_b32 v4, s92")
    a("v_mov_b32 v5, s96")
    a("v_mov_b32 v1, 0")
    a("global_store_dwordx4 v1, v[2:5], s[100:101]")
    a(f"s_lshl_b32 s99, s2, 4")
    a("s_add_u32 s99, s99, s98")
    a("s_lshl_b32 s99, s99, 6")
    a(f"s_add_u32 s99, s99, {WS_T2 + kidx*524288}")
    a(f"s_add_u32 s100, s{wsptr_lo}, s99")
    a(f"s_addc_u32 s101, s{wsptr_lo+1}, 0")
    for q in range(3):
        for i in range(4):
            a(f"v_mov_b32 v{2+i}, s{64+2*(4*q+i)}")
        a(f"global_store_dwordx4 v1, v[2:5], s[100:101] offset:{16*q}")
        a("s_nop 2")

class Vm:
    def __init__(self, a):
        self.a = a
        self.q = []
    def issue(self, tag, n=1):
        for _ in range(n):
            self.q.append(tag)
    def wait(self, *tags):
        last = -1
        for i, t in enumerate(self.q):
            if t in tags:
                last = i
        if last < 0:
            return
        n = len(self.q) - 1 - last
        assert n <= 63
        self.a(f"s_waitcnt vmcnt({n})")
        self.q = self.q[last+1:]
    def wait_all(self):
        self.a("s_waitcnt vmcnt(0)")
        self.q = []

def lds_signal(a, vaddr, vtmp, off):
    a(f"v_mov_b32 v{vaddr}, {off}")
    a(f"v_mov_b32 v{vtmp}, 1")
    a("s_mov_b64 exec, 1")
    a(f"ds_add_u32 v{vaddr}, v{vtmp}")
    a("s_mov_b64 exec, -1")

def lds_wait(a, vaddr, vtmp, stmp, off, target, label, sleep=1):
    a(f"v_mov_b32 v{vaddr}, {off}")
    a.label(label)
    a(f"ds_read_b32 v{vtmp}, v{vaddr}")
    a("s_waitcnt lgkmcnt(0)")
    a(f"v_readfirstlane_b32 s{stmp}, v{vtmp}")
    a("s_nop 3")
    a(f"s_cmp_ge_u32 s{stmp}, {target}")
    a(f"s_cbranch_scc1 {label}_ok")
    if sleep: a(f"s_sleep {sleep}")
    a(f"s_branch {label}")
    a.label(f"{label}_ok")
```

```python
from asmlib import *
from common import *
import struct
def f2u(f): return struct.unpack("<I", struct.pack("<f", f))[0]
QSCALE = 0.25 * 1.4426950408889634

WS_FLAG = 14 * (1 << 20) + 65536
FL_Q, FL_F1, FL_E, FL_D, FL_O = 0, 256, 512, 768, 1024
FSH = 5
VG = 544
VHALF = 64 * VG
LDS_CNT = 65536 + 128 * VG
C_NONCE, C_GO, C_KV0, C_KV, C_GO2, C_R0, C_R1, C_F, C_ADONE, C_GO3 = [LDS_CNT + 4*i for i in range(10)]
C_X = LDS_CNT + 48
C_W = LDS_CNT + 64
C_Y = LDS_CNT + 72
C_SLOT = LDS_CNT + 80
C_ST = LDS_CNT + 84
C_ED = LDS_CNT + 88
C_RDY = LDS_CNT + 128
C_QUE = LDS_CNT + 192
LDS_RED = LDS_CNT + 256
NBUF = 4
FB = 24576
NFB = 5
K1_SCHED = [[(2,0),(2,1),(3,0)], [(3,1)], [(4,0),(4,1)], [(5,0),(5,1)], [(6,0),(6,1)], [(7,0),(7,1)], [], []]
SPIN_MAX = 1 << 16
SC = " sc1"

sX, sWq, sWo, sSre, sSim, sHre, sHim, sGate, sOut, sDbg, sWS = 4, 6, 8, 12, 14, 16, 18, 20, 22, 24, 26
sW, sN = 28, 29
srdWS, srdA, srdB, srdC = 32, 36, 40, 44
sT0, sT1, sT2, sT3 = 48, 49, 50, 51

def gpoll(a, vaddr, vdat, label, scnt, sleep=6):
    a(f"s_mov_b32 s{scnt}, {SPIN_MAX}")
    a.label(label)
    a(f"global_load_dword v{vdat}, v{vaddr}, s[{sWS}:{sWS+1}] sc1")
    a("s_waitcnt vmcnt(0)")
    a(f"v_cmp_ne_u32 vcc, s{sN}, v{vdat}")
    a(f"s_sub_u32 s{scnt}, s{scnt}, 1")
    a(f"s_cbranch_scc1 {label}_ok")
    a("s_nop 2")
    a(f"s_cbranch_vccz {label}_ok")
    a(f"s_sleep {sleep}")
    a(f"s_branch {label}")
    a.label(f"{label}_ok")

def gpoll_multi(a, vaddr, vdat0, n, stride, label, scnt, sleep=6):
    a(f"s_mov_b32 s{scnt}, {SPIN_MAX}")
    a.label(label)
    for i in range(n):
        if i*stride < 4096:
            a(f"global_load_dword v{vdat0+i}, v{vaddr}, s[{sWS}:{sWS+1}] offset:{i*stride} sc1")
        else:
            a(f"v_add_u32 v{vdat0+n}, {i*stride}, v{vaddr}")
            a(f"global_load_dword v{vdat0+i}, v{vdat0+n}, s[{sWS}:{sWS+1}] sc1")
    a("s_waitcnt vmcnt(0)")
    a(f"v_cmp_ne_u32 vcc, s{sN}, v{vdat0}")
    for i in range(1, n):
        a(f"v_cmp_ne_u32 s[{sT0}:{sT0+1}], s{sN}, v{vdat0+i}")
        a("s_nop 1")
        a(f"s_or_b64 vcc, vcc, s[{sT0}:{sT0+1}]")
    a(f"s_sub_u32 s{scnt}, s{scnt}, 1")
    a(f"s_cbranch_scc1 {label}_ok")
    a("s_nop 2")
    a(f"s_cbranch_vccz {label}_ok")
    a(f"s_sleep {sleep}")
    a(f"s_branch {label}")
    a.label(f"{label}_ok")

def lwait(a, vaddr, vtmp, stmp, off, target, label, sleep=1):
    a(f"v_mov_b32 v{vaddr}, {off}" if isinstance(off, int) else f"v_mov_b32 v{vaddr}, {off}")
    a(f"s_mov_b32 s{sT3}, {SPIN_MAX*16}")
    a.label(label)
    a(f"ds_read_b32 v{vtmp}, v{vaddr}")
    a("s_waitcnt lgkmcnt(0)")
    a(f"v_readfirstlane_b32 s{stmp}, v{vtmp}")
    a(f"s_sub_u32 s{sT3}, s{sT3}, 1")
    a(f"s_cbranch_scc1 {label}_ok")
    a("s_nop 1")
    a(f"s_cmp_ge_u32 s{stmp}, {target}")
    a(f"s_cbranch_scc1 {label}_ok")
    if sleep: a(f"s_sleep {sleep}")
    a(f"s_branch {label}")
    a.label(f"{label}_ok")

def lsig(a, vaddr, vtmp, off):
    a(f"v_mov_b32 v{vaddr}, {off}")
    a(f"v_mov_b32 v{vtmp}, 1")
    a("s_mov_b64 exec, 1")
    a(f"ds_add_u32 v{vaddr}, v{vtmp}")
    a("s_mov_b64 exec, -1")

def publish(a, vaddr, vtmp, sidx):
    a(f"s_lshl_b32 s{sT3}, s{sidx}, {FSH}")
    a(f"s_add_u32 s{sT3}, s{sT3}, {WS_FLAG}")
    a(f"v_mov_b32 v{vaddr}, s{sT3}")
    a(f"v_mov_b32 v{vtmp}, s{sN}")
    a("s_mov_b64 exec, 1")
    a(f"global_store_dword v{vaddr}, v{vtmp}, s[{sWS}:{sWS+1}] sc1")
    a("s_mov_b64 exec, -1")

def read_nonce(a, vaddr, vtmp):
    a(f"v_mov_b32 v{vaddr}, {C_NONCE}")
    a(f"ds_read_b32 v{vtmp}, v{vaddr}")
    a("s_waitcnt lgkmcnt(0)")
    a(f"v_readfirstlane_b32 s{sN}, v{vtmp}")
    a("s_nop 3")

def gen_fused(a, name):
    R = RegAlloc(0, 168)
    R.alloc("tid")
    vLane = R.alloc("lane"); vL16 = R.alloc("l16")
    vT0 = R.alloc("t0"); vT1 = R.alloc("t1"); vT2 = R.alloc("t2"); vT3 = R.alloc("t3")
    base = R.next
    nvmax = [0]
    sTok0, sN0, sNb, sSign, sWm, sWn = 52, 53, 54, 55, 56, 57
    sXoff, sWoff, sLdsX, sLdsW = 58, 59, 60, 61

    a.raw(kernel_header(name))
    a("s_cmp_ge_u32 s2, 256")
    a(f"s_cbranch_scc1 {name}_end")
    tl_entry(a)
    a("s_load_dwordx16 s[4:19], s[0:1], 0")
    a("s_load_dwordx8 s[20:27], s[0:1], 64")
    a(f"v_lshrrev_b32 v{vT0}, 6, v0")
    a(f"v_and_b32 v{vLane}, 63, v0")
    a(f"v_readfirstlane_b32 s{sW}, v{vT0}")
    a(f"v_lshlrev_b32 v{vL16}, 4, v{vLane}")
    a("s_cmp_ge_u32 s2, 192")
    a(f"s_cbranch_scc1 {name}_decF")
    a(f"s_and_b32 s{sT0}, s2, 7")
    a(f"s_lshr_b32 s{sT1}, s2, 3")
    a(f"s_lshr_b32 s{sT2}, s{sT0}, 1")
    a(f"s_lshl_b32 s{sT2}, s{sT2}, 2")
    a(f"s_and_b32 s{sTok0}, s{sT1}, 3")
    a(f"s_add_u32 s{sTok0}, s{sTok0}, s{sT2}")
    a(f"s_and_b32 s{sT0}, s{sT0}, 1")
    a(f"s_mul_i32 s{sT0}, s{sT0}, 6")
    a(f"s_lshr_b32 s{sNb}, s{sT1}, 2")
    a(f"s_add_u32 s{sNb}, s{sNb}, s{sT0}")
    a(f"s_lshl_b32 s62, s{sNb}, 4")
    a(f"s_add_u32 s62, s62, s{sTok0}")
    a(f"s_lshl_b32 s{sTok0}, s{sTok0}, 7")
    a(f"s_lshl_b32 s{sN0}, s{sNb}, 7")
    a(f"s_branch {name}_dec")
    a.label(f"{name}_decF")
    a(f"s_sub_u32 s{sT0}, s2, 192")
    a(f"s_add_u32 s62, s{sT0}, {FL_F1}")
    a(f"s_lshr_b32 s{sT1}, s{sT0}, 3")
    a(f"s_lshr_b32 s{sSign}, s{sT1}, 2")
    a(f"s_and_b32 s{sT1}, s{sT1}, 3")
    a(f"s_and_b32 s{sNb}, s{sT0}, 1")
    a(f"s_bfe_u32 s{sT2}, s{sT0}, 0x20001")
    a(f"s_lshl_b32 s{sT3}, s{sT2}, 3")
    a(f"s_lshr_b32 s{sT3}, 0x040c0800, s{sT3}")
    a(f"s_and_b32 s{sT3}, s{sT3}, 0xff")
    a(f"s_add_u32 s{sT1}, s{sT1}, s{sT3}")
    a(f"s_lshl_b32 s{sTok0}, s{sT1}, 6")
    a(f"s_lshl_b32 s{sN0}, s{sNb}, 7")
    a.label(f"{name}_dec")
    a(f"s_cmp_ge_u32 s{sW}, 8")
    a(f"s_cbranch_scc1 {name}_edge")
    a(f"s_cmp_lt_u32 s{sW}, 4")
    a(f"s_cbranch_scc1 {name}_cons")

    Rl = RegAlloc(base, 168)
    vOffX = [Rl.alloc("offX0"), Rl.alloc("offX1")]
    vOffW = Rl.alloc("offW")
    vRowMain = Rl.alloc("rowmain", 2); vRowMir = Rl.alloc("rowmir", 2)
    vWr = Rl.alloc("wr")
    vSt = Rl.alloc("stage", 64)
    vFo = Rl.alloc("fold", 8)
    ER = Rl.alloc("edge", 32)
    nvmax[0] = max(nvmax[0], Rl.next)
    sLW = 63
    a(f"s_sub_u32 s{sLW}, s{sW}, 4")
    a(f"v_lshrrev_b32 v{vT0}, 3, v{vLane}")
    a(f"v_lshlrev_b32 v{vT0}, 10, v{vT0}")
    a(f"v_lshrrev_b32 v{vT1}, 4, v{vLane}")
    a(f"v_and_b32 v{vT2}, 7, v{vLane}")
    for p in range(2):
        a(f"v_add_u32 v{vT3}, {4*p}, v{vT1}")
        a(f"v_xor_b32 v{vT3}, v{vT3}, v{vT2}")
        a(f"v_lshlrev_b32 v{vT3}, 4, v{vT3}")
        a(f"v_add_u32 v{vOffX[p]}, v{vT0}, v{vT3}")
    a("s_cmp_ge_u32 s2, 192")
    a(f"s_cbranch_scc1 {name}_lF")
    a(f"v_lshrrev_b32 v{vT0}, 4, v{vLane}")
    a(f"v_mul_u32_u24 v{vT1}, 3072, v{vT0}")
    a(f"v_bfe_u32 v{vT2}, v{vLane}, 2, 2")
    a(f"v_xor_b32 v{vT2}, v{vT2}, v{vT0}")
    a(f"v_lshlrev_b32 v{vT2}, 6, v{vT2}")
    a(f"v_add_u32 v{vT1}, v{vT1}, v{vT2}")
    a(f"v_and_b32 v{vT2}, 3, v{vLane}")
    a(f"v_lshlrev_b32 v{vT2}, 4, v{vT2}")
    a(f"v_add_u32 v{vOffW}, v{vT1}, v{vT2}")
    a(f"s_lshl_b32 s{sT0}, s{sLW}, 5")
    a(f"s_add_u32 s{sT0}, s{sT0}, s{sTok0}")
    a(f"s_lshl_b32 s{sXoff}, s{sT0}, 10")
    a(f"s_mul_i32 s{sWoff}, s{sLW}, {16*3072}")
    a(f"s_lshl_b32 s{sT0}, s{sN0}, 1")
    a(f"s_add_u32 s{sWoff}, s{sWoff}, s{sT0}")
    a(f"s_lshl_b32 s{sLdsX}, s{sLW}, 12")
    a(f"s_add_u32 s{sLdsW}, s{sLdsX}, 16384")
    a("s_waitcnt lgkmcnt(0)")
    srd(a, srdA, sX, 2048*1024)
    srd(a, srdB, sWq, 512*3072)
    vm = Vm(a)
    def dma_qkv(st, half=None):
        buf = (st % NBUF) * 32768
        for m in (range(4) if half is None else range(2*half, 2*half+2)):
            a(f"s_add_u32 m0, s{sLdsX}, {buf + m*1024}")
            a(f"s_add_u32 s{sT0}, s{sXoff}, {m*8192 + st*128}")
            a(f"buffer_load_dwordx4 v{vOffX[m&1]}, s[{srdA}:{srdA+3}], s{sT0} offen lds")
            a(f"s_add_u32 m0, s{sLdsW}, {buf + m*1024}")
            a(f"s_add_u32 s{sT0}, s{sWoff}, {(st*64 + 4*m)*3072}")
            a(f"buffer_load_dwordx4 v{vOffW}, s[{srdB}:{srdB+3}], s{sT0} offen lds")
        vm.issue(("S", st), 8 if half is None else 4)
    tl_stamp(a, 0)
    dma_qkv(0); dma_qkv(1)
    from gen_fused_b import emit_edge_loads, emit_edge_compute
    VV = dict(vLane=vLane, vL16=vL16, vT0=vT0, vT1=vT1, vT2=vT2, vT3=vT3)
    for i in range(8):
        vm.wait(("S", i))
        a("s_barrier")
        for (st, h) in K1_SCHED[i]:
            assert st < NBUF or st - NBUF + 2 <= i, (st, i)
            dma_qkv(st, h)
    a("s_barrier")
    tl_stamp(a, 1)
    a(f"s_branch {name}_attn")

    a.label(f"{name}_lF")
    a(f"s_cmp_eq_u32 s{sSign}, 0")
    a(f"s_cbranch_scc1 {name}_lFa")
    a("s_waitcnt lgkmcnt(0)")
    srd(a, srdB, sHim, 512*1024)
    a(f"s_mov_b32 s{srdC}, 0x0000bf80")
    a(f"s_mov_b32 s{srdC+1}, 0xbf800000")
    a(f"s_branch {name}_lFgo")
    a.label(f"{name}_lFa")
    a("s_waitcnt lgkmcnt(0)")
    srd(a, srdB, sHre, 512*1024)
    a(f"s_mov_b32 s{srdC}, 0x00003f80")
    a(f"s_mov_b32 s{srdC+1}, 0x3f800000")
    a.label(f"{name}_lFgo")
    a(f"s_mov_b32 s{srdC+2}, 0x00003f80")
    a(f"s_mov_b32 s{srdC+3}, 0x3f800000")
    a(f"s_lshl_b32 s{sT0}, s{sLW}, 4")
    a(f"s_add_u32 s{sT0}, s{sT0}, s{sTok0}")
    a(f"v_lshrrev_b32 v{vT0}, 3, v{vLane}")
    a(f"v_add_u32 v{vT0}, s{sT0}, v{vT0}")
    for m in range(2):
        a(f"v_add_u32 v{vT1}, {8*m}, v{vT0}")
        a(f"v_and_b32 v{vT2}, 1023, v{vOffX[m&1]}")
        a(f"v_lshl_add_u32 v{vRowMain+m}, v{vT1}, 10, v{vT2}")
        a(f"v_sub_u32 v{vT1}, 2048, v{vT1}")
        a(f"v_lshl_add_u32 v{vRowMir+m}, v{vT1}, 10, v{vT2}")
    a(f"s_lshl_b32 s{sT0}, s{sLW}, 5")
    a(f"s_add_u32 s{sT0}, s{sT0}, s{sN0}")
    a(f"s_lshl_b32 s{sWoff}, s{sT0}, 10")
    a(f"s_lshl_b32 s{sLdsW}, s{sLW}, 12")
    a(f"s_add_u32 s{sLdsW}, s{sLdsW}, 8192")
    a(f"s_lshl_b32 s{sT0}, s{sLW}, 11")
    a(f"v_add_u32 v{vWr}, s{sT0}, v{vL16}")
    srd(a, srdA, sX, 2048*1024)
    vm = Vm(a)
    def f_loadA(st):
        b = vSt + (st & 3) * 16
        a(f"s_mov_b32 s{sT0}, {st*128}")
        for m in range(2):
            a(f"buffer_load_dwordx4 {vr(b+8*m,4)}, v{vRowMain+m}, s[{srdA}:{srdA+3}], s{sT0} offen")
            a(f"buffer_load_dwordx4 {vr(b+8*m+4,4)}, v{vRowMir+m}, s[{srdA}:{srdA+3}], s{sT0} offen")
        vm.issue(("A", st), 4)
    def f_dmaB(st):
        buf = (st % NFB) * FB
        for m in range(4):
            a(f"s_add_u32 m0, s{sLdsW}, {buf + m*1024}")
            a(f"s_add_u32 s{sT0}, s{sWoff}, {m*8192 + st*128}")
            a(f"buffer_load_dwordx4 v{vOffX[m&1]}, s[{srdB}:{srdB+3}], s{sT0} offen lds")
        vm.issue(("B", st), 4)
    def f_fold(st):
        b = vSt + (st & 3) * 16
        buf = (st % NFB) * FB
        for m in range(2):
            M = b + 8*m; Mi = M + 4
            for q in range(4):
                a(f"v_dot2_f32_bf16 v{vFo+2*q}, v{M+q}, s{srdC+2}, 0")
                a(f"v_dot2_f32_bf16 v{vFo+2*q+1}, v{M+q}, s{srdC+3}, 0")
            for q in range(4):
                a(f"v_dot2c_f32_bf16 v{vFo+2*q}, s{srdC}, v{Mi+q}")
                a(f"v_dot2c_f32_bf16 v{vFo+2*q+1}, s{srdC+1}, v{Mi+q}")
            for q in range(4):
                a(f"v_cvt_pk_bf16_f32 v{M+q}, v{vFo+2*q}, v{vFo+2*q+1}")
            if buf + m*1024 <= 65000:
                a(f"ds_write_b128 v{vWr}, {vr(M,4)} offset:{buf + m*1024}")
            else:
                a(f"v_add_u32 v{vT0}, {buf + m*1024}, v{vWr}")
                a(f"ds_write_b128 v{vT0}, {vr(M,4)}")
    tl_stamp(a, 0)
    for st in range(3):
        f_loadA(st); f_dmaB(st)
    for i in range(8):
        vm.wait(("A", i))
        f_fold(i)
        vm.wait(("B", i))
        a("s_waitcnt lgkmcnt(0)")
        a("s_barrier")
        if i == 0:
            f_loadA(3); f_dmaB(3); f_loadA(4); f_dmaB(4)
        elif i + 4 < 8:
            f_loadA(i + 4)
        if i >= 2 and i + 3 < 8:
            f_dmaB(i + 3)
    a("s_barrier")
    tl_stamp(a, 1)
    a(f"s_branch {name}_attn")

    a.label(f"{name}_cons")
    Rc = RegAlloc(base, 168)
    vX = [[Rc.alloc(f"X{s}{j}") for j in range(4)] for s in range(3)]
    vW = [[Rc.alloc(f"W{s}{f}") for f in range(2)] for s in range(2)]
    vH = [[Rc.alloc(f"H{s}{j}") for j in range(4)] for s in range(3)]
    fX = [[Rc.alloc(f"fX{s}{t}", 4) for t in range(2)] for s in range(3)]
    fW = [[Rc.alloc(f"fW{s}{f}", 4) for f in range(2)] for s in range(3)]
    acc = [[Rc.alloc(f"acc{f}{t}", 16) for t in range(2)] for f in range(2)]
    nvmax[0] = max(nvmax[0], Rc.next)
    a(f"s_lshr_b32 s{sWm}, s{sW}, 1")
    a(f"s_and_b32 s{sWn}, s{sW}, 1")
    a(f"v_and_b32 v{vT0}, 31, v{vLane}")
    a(f"v_lshrrev_b32 v{vT1}, 5, v{vLane}")
    a(f"v_lshrrev_b32 v{vT2}, 1, v{vT0}")
    a(f"v_and_b32 v{vT2}, 7, v{vT2}")
    a(f"v_xor_b32 v{vT2}, v{vT2}, v{vT1}")
    a(f"v_lshlrev_b32 v{vT2}, 4, v{vT2}")
    a(f"v_lshlrev_b32 v{vT0}, 7, v{vT0}")
    a(f"v_add_u32 v{vT0}, v{vT0}, v{vT2}")
    a("s_cmp_ge_u32 s2, 192")
    a(f"s_cbranch_scc1 {name}_cF")
    a(f"s_lshl_b32 s{sT0}, s{sWn}, 13")
    for j in range(4):
        a(f"v_xor_b32 v{vT3}, {j*32}, v{vT0}")
        a(f"v_add_u32 v{vX[0][j]}, s{sT0}, v{vT3}")
        a(f"v_add_u32 v{vX[1][j]}, 65536, v{vX[0][j]}")
    a(f"v_bfe_u32 v{vT0}, v{vLane}, 2, 2")
    a(f"v_lshrrev_b32 v{vT1}, 5, v{vLane}")
    a(f"v_lshlrev_b32 v{vT1}, 3, v{vT1}")
    a(f"v_add_u32 v{vT1}, v{vT1}, v{vT0}")
    a(f"v_lshlrev_b32 v{vT1}, 8, v{vT1}")
    a(f"v_bfe_u32 v{vT2}, v{vLane}, 4, 1")
    a(f"v_lshlrev_b32 v{vT2}, 5, v{vT2}")
    a(f"v_add_u32 v{vT1}, v{vT1}, v{vT2}")
    a(f"v_and_b32 v{vT2}, 3, v{vLane}")
    a(f"v_lshlrev_b32 v{vT2}, 3, v{vT2}")
    a(f"v_add_u32 v{vT1}, v{vT1}, v{vT2}")
    a(f"v_add_u32 v{vT1}, 16384, v{vT1}")
    a(f"s_lshl_b32 s{sT0}, s{sWm}, 1")
    for f in range(2):
        a(f"s_add_u32 s{sT1}, s{sT0}, {f}")
        a(f"v_xor_b32 v{vT2}, s{sT1}, v{vT0}")
        a(f"v_lshlrev_b32 v{vT2}, 6, v{vT2}")
        a(f"v_add_u32 v{vW[0][f]}, v{vT1}, v{vT2}")
        a(f"v_add_u32 v{vW[1][f]}, 65536, v{vW[0][f]}")
    for f in range(2):
        for t in range(2):
            for i in range(16):
                a(f"v_mov_b32 v{acc[f][t]+i}, 0")
    a("s_waitcnt lgkmcnt(0)")
    srd(a, srdWS, sWS, WS_SIZE_USED)
    def reads_qkv(st, j, s):
        buf = st % NBUF; hi = buf >> 1; boff = (buf & 1) * 32768
        for t in range(2):
            a(f"ds_read_b128 {vr(fX[s][t],4)}, v{vX[hi][j]} offset:{boff + t*4096}")
        for f in range(2):
            for u in range(2):
                a(f"ds_read_b64_tr_b16 {vr(fW[s][f]+2*u,2)}, v{vW[hi][f]} offset:{boff + (16*j+4*u)*256}")
    def mfmas(s, vtype):
        for f in range(2):
            for t in range(2):
                if vtype:
                    a(f"v_mfma_f32_32x32x16_bf16 {vr(acc[f][t],16)}, {vr(fX[s][t],4)}, {vr(fW[s][f],4)}, {vr(acc[f][t],16)}")
                else:
                    a(f"v_mfma_f32_32x32x16_bf16 {vr(acc[f][t],16)}, {vr(fW[s][f],4)}, {vr(fX[s][t],4)}, {vr(acc[f][t],16)}")
    def consume(reads, nreads, domf):
        a("s_barrier")
        tl_stamp(a, 0)
        reads(0, 0, 0)
        reads(0, 1, 1)
        for n in range(32):
            nn = n + 2
            if nn < 32:
                if nn % 4 == 0:
                    a("s_barrier")
                reads(nn // 4, nn % 4, nn % 3)
                a(f"s_waitcnt lgkmcnt({2*nreads})")
            elif nn == 32:
                a(f"s_waitcnt lgkmcnt({nreads})")
            else:
                a("s_waitcnt lgkmcnt(0)")
            domf(n % 3)
        a("s_barrier")
        tl_stamp(a, 1)
    lab = [0]
    def finish_A():
        lab[0] += 1
        read_nonce(a, vT0, vT1)
        a("s_waitcnt vmcnt(0)")
        a(f"v_mov_b32 v{vT0}, {C_ST}")
        a(f"v_mov_b32 v{vT1}, 1")
        a("s_mov_b64 exec, 1")
        a(f"ds_add_rtn_u32 v{vT2}, v{vT0}, v{vT1}")
        a("s_waitcnt lgkmcnt(0)")
        a("s_mov_b64 exec, -1")
        a(f"v_readfirstlane_b32 s{sT0}, v{vT2}")
        tl_stamp(a, 2)
        a("s_nop 3")
        a(f"s_cmp_lg_u32 s{sT0}, 3")
        a(f"s_cbranch_scc1 {name}_attn")
        publish(a, vT0, vT1, 62)
        a(f"s_branch {name}_attn")
    a(f"s_cmp_ge_u32 s{sNb}, 8")
    a(f"s_cbranch_scc1 {name}_vtype")
    consume(reads_qkv, 6, lambda s: mfmas(s, False))
    a(f"s_cmp_lt_u32 s{sNb}, 4")
    a(f"s_cselect_b32 s{sT2}, {f2u(QSCALE)}, 1.0")
    a(f"s_cselect_b32 s{sT0}, {WS_Q}, {WS_K}")
    a(f"s_and_b32 s{sT1}, s{sNb}, 3")
    a(f"s_lshl_b32 s{sT1}, s{sT1}, 3")
    a(f"s_lshl_b32 s{sT3}, s{sWm}, 2")
    a(f"s_add_u32 s{sT1}, s{sT1}, s{sT3}")
    a(f"s_lshl_b32 s{sT1}, s{sT1}, 16")
    a(f"s_add_u32 s{sT0}, s{sT0}, s{sT1}")
    a(f"s_lshr_b32 s{sT1}, s{sTok0}, 5")
    a(f"s_lshl_b32 s{sT3}, s{sWn}, 1")
    a(f"s_add_u32 s{sT1}, s{sT1}, s{sT3}")
    a(f"s_lshl_b32 s{sT1}, s{sT1}, 10")
    a(f"s_add_u32 s{sT0}, s{sT0}, s{sT1}")
    a("s_nop 3")
    a(f"s_cmp_lt_u32 s{sNb}, 4")
    a(f"s_cbranch_scc0 {name}_noscale")
    for f in range(2):
        for t in range(2):
            for i in range(16):
                a(f"v_mul_f32 v{acc[f][t]+i}, s{sT2}, v{acc[f][t]+i}")
    a.label(f"{name}_noscale")
    for f in range(2):
        for t in range(2):
            A = acc[f][t]
            P = fX[(f*2+t) % 3][0]
            for i in range(8):
                a(f"v_cvt_pk_bf16_f32 v{P+i}, v{A+2*i}, v{A+2*i+1}")
            for hh in range(2):
                a(f"s_add_u32 s{sT1}, s{sT0}, {(f*2+hh)*65536 + t*1024}")
                a(f"buffer_store_dwordx4 {vr(P+4*hh,4)}, v{vL16}, s[{srdWS}:{srdWS+3}], s{sT1} offen{SC}")
    finish_A()
    a.label(f"{name}_vtype")
    consume(reads_qkv, 6, lambda s: mfmas(s, True))
    a(f"s_sub_u32 s{sT1}, s{sNb}, 8")
    a(f"s_lshl_b32 s{sT1}, s{sT1}, 3")
    a(f"s_lshl_b32 s{sT3}, s{sWm}, 2")
    a(f"s_add_u32 s{sT1}, s{sT1}, s{sT3}")
    a(f"s_lshl_b32 s{sT1}, s{sT1}, 16")
    a(f"s_add_u32 s{sT0}, s{sT1}, {WS_V}")
    a(f"s_lshr_b32 s{sT1}, s{sTok0}, 4")
    a(f"s_lshl_b32 s{sT3}, s{sWn}, 2")
    a(f"s_add_u32 s{sT1}, s{sT1}, s{sT3}")
    a(f"s_lshl_b32 s{sT1}, s{sT1}, 9")
    a(f"s_add_u32 s{sT0}, s{sT0}, s{sT1}")
    a(f"v_bfe_u32 v{vT0}, v{vLane}, 4, 1")
    a(f"v_lshlrev_b32 v{vT0}, 16, v{vT0}")
    a(f"v_lshrrev_b32 v{vT1}, 5, v{vLane}")
    a(f"v_lshlrev_b32 v{vT1}, 8, v{vT1}")
    a(f"v_add_u32 v{vT0}, v{vT0}, v{vT1}")
    a(f"v_and_b32 v{vT1}, 15, v{vLane}")
    a(f"v_lshlrev_b32 v{vT1}, 4, v{vT1}")
    a(f"v_add_u32 v{vT0}, v{vT0}, v{vT1}")
    for f in range(2):
        for t in range(2):
            A = acc[f][t]
            P = fX[(f*2+t) % 3][0]
            for i in range(8):
                a(f"v_cvt_pk_bf16_f32 v{P+i}, v{A+2*i}, v{A+2*i+1}")
            for g in range(2):
                a(f"s_add_u32 s{sT1}, s{sT0}, {f*2*65536 + (t*2+g)*512}")
                a(f"buffer_store_dwordx4 {vr(P+4*g,4)}, v{vT0}, s[{srdWS}:{srdWS+3}], s{sT1} offen{SC}")
    finish_A()
    a.label(f"{name}_cF")
    a(f"s_lshl_b32 s{sT0}, s{sWn}, 12")
    a(f"s_lshl_b32 s{sT1}, s{sWm}, 13")
    a(f"s_add_u32 s{sT1}, s{sT1}, 8192")
    for j in range(4):
        a(f"v_xor_b32 v{vT3}, {j*32}, v{vT0}")
        a(f"v_add_u32 v{vX[0][j]}, s{sT0}, v{vT3}")
        a(f"v_add_u32 v{vX[1][j]}, {2*FB}, v{vX[0][j]}")
        a(f"v_add_u32 v{vX[2][j]}, {4*FB}, v{vX[0][j]}")
        a(f"v_add_u32 v{vH[0][j]}, s{sT1}, v{vT3}")
        a(f"v_add_u32 v{vH[1][j]}, {2*FB}, v{vH[0][j]}")
        a(f"v_add_u32 v{vH[2][j]}, {4*FB}, v{vH[0][j]}")
    for f in range(2):
        for i in range(16):
            a(f"v_mov_b32 v{acc[f][0]+i}, 0")
    a("s_waitcnt lgkmcnt(0)")
    srd(a, srdWS, sWS, WS_SIZE_USED)
    def reads_f(st, j, s):
        buf = st % NFB; k = buf >> 1; boff = (buf & 1) * FB
        a(f"ds_read_b128 {vr(fX[s][0],4)}, v{vX[k][j]} offset:{boff}")
        for f in range(2):
            a(f"ds_read_b128 {vr(fW[s][f],4)}, v{vH[k][j]} offset:{boff + f*4096}")
    def mf_f(s):
        for f in range(2):
            a(f"v_mfma_f32_32x32x16_bf16 {vr(acc[f][0],16)}, {vr(fX[s][0],4)}, {vr(fW[s][f],4)}, {vr(acc[f][0],16)}")
    consume(reads_f, 3, mf_f)
    a(f"s_cmp_eq_u32 s{sSign}, 0")
    a(f"s_mov_b32 s{sT3}, {WS_B}")
    a(f"s_cselect_b32 s{sT0}, {WS_A}, s{sT3}")
    a(f"s_cselect_b32 s{sT2}, {A_KSTEPS}, 64")
    a(f"s_lshl_b32 s{sT1}, s{sNb}, 2")
    a(f"s_lshl_b32 s{sT3}, s{sWm}, 1")
    a(f"s_add_u32 s{sT1}, s{sT1}, s{sT3}")
    a(f"s_mul_i32 s{sT1}, s{sT1}, s{sT2}")
    a(f"s_lshr_b32 s{sT3}, s{sTok0}, 4")
    a(f"s_add_u32 s{sT1}, s{sT1}, s{sT3}")
    a(f"s_lshl_b32 s{sT3}, s{sWn}, 1")
    a(f"s_add_u32 s{sT1}, s{sT1}, s{sT3}")
    a(f"s_lshl_b32 s{sT1}, s{sT1}, 10")
    a(f"s_add_u32 s{sT0}, s{sT0}, s{sT1}")
    a(f"s_lshl_b32 s{sT2}, s{sT2}, 10")
    a("s_nop 7")
    for f in range(2):
        A = acc[f][0]
        P = fX[f][0]
        for i in range(8):
            a(f"v_cvt_pk_bf16_f32 v{P+i}, v{A+2*i}, v{A+2*i+1}")
        a("s_nop 1")
        for g in range(2):
            a(f"v_permlane32_swap_b32 v{P+4*g}, v{P+4*g+2}")
            a(f"v_permlane32_swap_b32 v{P+4*g+1}, v{P+4*g+3}")
        if f == 1:
            a(f"s_add_u32 s{sT0}, s{sT0}, s{sT2}")
        for g in range(2):
            a(f"s_add_u32 s{sT1}, s{sT0}, {g*1024}")
            a(f"buffer_store_dwordx4 {vr(P+4*g,4)}, v{vL16}, s[{srdWS}:{srdWS+3}], s{sT1} offen{SC}")
    finish_A()

    from gen_fused_b import gen_attn_part, gen_f_part
    gen_attn_part(a, name, base, nvmax, dict(vLane=vLane, vL16=vL16, vT0=vT0, vT1=vT1, vT2=vT2, vT3=vT3))
    gen_f_part(a, name, base, nvmax, dict(vLane=vLane, vL16=vL16, vT0=vT0, vT1=vT1, vT2=vT2, vT3=vT3))
    a.label(f"{name}_end")
    a("s_endpgm")
    return nvmax[0]
```

```python
from asmlib import *
from common import *
from gen_fused import *

PRIO_MODE = 1
PRIO_SW = (5, 7)
EXP = {}
PAR = {}
sHead, sQb = 52, 53

def decode_hq(a):
    a(f"s_and_b32 s{sT0}, s2, 7")
    a(f"s_lshr_b32 s{sT1}, s2, 3")
    a(f"s_lshl_b32 s{sHead}, s{sT0}, 2")
    a(f"s_and_b32 s{sT0}, s{sT1}, 3")
    a(f"s_add_u32 s{sHead}, s{sHead}, s{sT0}")
    a(f"s_lshr_b32 s{sQb}, s{sT1}, 2")


def edge_regs(r0):
    return dict(vG=r0, vA=r0+4, vB=r0+8, vR=r0+12, vX1=r0+16, vRe=r0+20, vD=r0+24)

def emit_edge_loads(a, name, V, r0, sF, sS):
    vL16 = V["vL16"]
    E = edge_regs(r0); vG, vA, vB, vR, vX1, vRe, vD = [E[k] for k in ("vG","vA","vB","vR","vX1","vRe","vD")]
    a(f"s_lshl_b32 s{sS}, s2, 2")
    a(f"s_add_u32 s{sS}, s{sS}, s{sF}")
    a(f"global_load_dwordx4 {vr(vG,4)}, v{vL16}, s[{sGate}:{sGate+1}]")
    a(f"s_lshl_b32 s{sT0}, s{sS}, 10")
    a(f"buffer_load_dwordx4 {vr(vA,4)}, v{vL16}, s[{srdA}:{srdA+3}], s{sT0} offen")
    a(f"s_sub_u32 s{sT1}, 2048, s{sS}")
    a(f"s_lshl_b32 s{sT1}, s{sT1}, 10")
    a(f"buffer_load_dwordx4 {vr(vB,4)}, v{vL16}, s[{srdA}:{srdA+3}], s{sT1} offen")
    a(f"s_mov_b32 s{sT1}, {1024*1024}")
    a(f"buffer_load_dwordx4 {vr(vX1,4)}, v{vL16}, s[{srdA}:{srdA+3}], s{sT1} offen")
    a(f"s_lshl_b32 s{sT1}, s2, 10")
    a(f"v_add_u32 v{vD}, s{sT1}, v{vL16}")
    a(f"global_load_dwordx4 {vr(vRe,4)}, v{vD}, s[{sHre}:{sHre+1}]")

def emit_edge_compute(a, name, V, r0, sF, sS, sfx):
    vLane, vL16, vT0, vT1, vT2, vT3 = V["vLane"], V["vL16"], V["vT0"], V["vT1"], V["vT2"], V["vT3"]
    E = edge_regs(r0); vG, vA, vB, vR, vX1, vRe, vD = [E[k] for k in ("vG","vA","vB","vR","vX1","vRe","vD")]
    srd(a, srdWS, sWS, WS_SIZE_USED)
    a("s_waitcnt vmcnt(0)")
    a(f"s_mov_b32 s31, 0xbf803f80")
    a(f"v_dot2_f32_bf16 v{vD}, v{vA}, v{vG}, 0")
    a(f"v_dot2_f32_bf16 v{vD+1}, v{vB}, v{vG}, 0")
    a(f"v_dot2_f32_bf16 v{vD+2}, v{vA}, s31, 0")
    a(f"v_dot2_f32_bf16 v{vD+3}, v{vRe}, v{vX1}, 0")
    a(f"v_dot2_f32_bf16 v{vD+4}, v{vX1}, v{vG}, 0")
    a(f"v_dot2_f32_bf16 v{vD+5}, v{vX1}, s31, 0")
    a("s_nop 2")
    for q in range(4):
        if q > 0:
            a(f"v_dot2c_f32_bf16 v{vD}, v{vA+q}, v{vG+q}")
            a(f"v_dot2c_f32_bf16 v{vD+1}, v{vB+q}, v{vG+q}")
            a(f"v_dot2c_f32_bf16 v{vD+2}, s31, v{vA+q}")
            a(f"v_dot2c_f32_bf16 v{vD+3}, v{vRe+q}, v{vX1+q}")
            a(f"v_dot2c_f32_bf16 v{vD+4}, v{vX1+q}, v{vG+q}")
            a(f"v_dot2c_f32_bf16 v{vD+5}, s31, v{vX1+q}")
        a(f"v_dot2c_f32_bf16 v{vD+2}, s31, v{vB+q}")
    a("s_nop 3")
    for ctrl in ["row_shr:1", "row_shr:2", "row_shr:4", "row_shr:8"]:
        for r in range(6):
            a(f"v_add_f32_dpp v{vD+r}, v{vD+r}, v{vD+r} {ctrl} row_mask:0xf bank_mask:0xf bound_ctrl:0")
    for r in range(6):
        a(f"v_add_f32_dpp v{vD+r}, v{vD+r}, v{vD+r} row_bcast:15 row_mask:0xa bank_mask:0xf")
    for r in range(6):
        a(f"v_add_f32_dpp v{vD+r}, v{vD+r}, v{vD+r} row_bcast:31 row_mask:0xc bank_mask:0xf")
    for r in (0, 1, 4):
        a(f"v_mul_f32 v{vD+r}, {f2u(-1.4426950408889634)}, v{vD+r}")
    for r in (0, 1, 4):
        a(f"v_exp_f32 v{vD+r}, v{vD+r}")
    a("s_nop 0")
    for r in (0, 1, 4):
        a(f"v_add_f32 v{vD+r}, 1.0, v{vD+r}")
    for r in (0, 1, 4):
        a(f"v_rcp_f32 v{vD+r}, v{vD+r}")
    a(f"v_cvt_pk_bf16_f32 v{vD+2}, v{vD+2}, 0")
    a(f"v_cvt_pk_bf16_f32 v{vR}, v{vD+3}, 0")
    a(f"v_cvt_pk_bf16_f32 v{vD+5}, v{vD+5}, 0")
    for i in range(1, 4): a(f"v_mov_b32 v{vR+i}, 0")
    for i in range(4): a(f"v_mov_b32 v{vA+i}, 0")
    a(f"v_mov_b32 v{vT1}, 0")
    a("s_mov_b32 exec_lo, 0")
    a("s_mov_b32 exec_hi, 0x80000000")
    a(f"s_lshl_b32 s{sT0}, s{sS}, 2")
    a(f"s_add_u32 s{sT0}, s{sT0}, {WS_G}")
    a(f"buffer_store_dword v{vD}, v{vT1}, s[{srdWS}:{srdWS+3}], s{sT0} offen{SC}")
    a(f"s_cmp_eq_u32 s{sS}, 0")
    a(f"s_cbranch_scc1 {name}_e1{sfx}")
    a(f"s_sub_u32 s{sT0}, 2048, s{sS}")
    a(f"s_lshl_b32 s{sT0}, s{sT0}, 2")
    a(f"s_add_u32 s{sT0}, s{sT0}, {WS_G}")
    a(f"buffer_store_dword v{vD+1}, v{vT1}, s[{srdWS}:{srdWS+3}], s{sT0} offen{SC}")
    a.label(f"{name}_e1{sfx}")
    a(f"s_lshr_b32 s{sT0}, s{sS}, 4")
    a(f"s_add_u32 s{sT0}, s{sT0}, {8*A_KSTEPS}")
    a(f"s_lshl_b32 s{sT0}, s{sT0}, 10")
    a(f"s_bfe_u32 s{sT1}, s{sS}, 0x10003")
    a(f"s_lshl_b32 s{sT1}, s{sT1}, 9")
    a(f"s_add_u32 s{sT0}, s{sT0}, s{sT1}")
    a(f"s_and_b32 s{sT1}, s{sS}, 7")
    a(f"s_lshl_b32 s{sT1}, s{sT1}, 1")
    a(f"s_add_u32 s{sT0}, s{sT0}, s{sT1}")
    a(f"s_add_u32 s{sT0}, s{sT0}, {WS_A}")
    a(f"buffer_store_short v{vD+2}, v{vT1}, s[{srdWS}:{srdWS+3}], s{sT0} offen{SC}")
    a(f"s_cmp_lg_u32 s{sF}, 0")
    a(f"s_cbranch_scc1 {name}_e2{sfx}")
    a(f"s_lshr_b32 s{sT0}, s2, 5")
    a(f"s_mul_i32 s{sT0}, s{sT0}, {A_KSTEPS}")
    a(f"s_add_u32 s{sT0}, s{sT0}, 64")
    a(f"s_lshl_b32 s{sT0}, s{sT0}, 10")
    a(f"s_and_b32 s{sT1}, s2, 31")
    a(f"s_lshl_b32 s{sT1}, s{sT1}, 4")
    a(f"s_add_u32 s{sT0}, s{sT0}, s{sT1}")
    a(f"s_add_u32 s{sT0}, s{sT0}, {WS_A}")
    a(f"buffer_store_dwordx4 {vr(vR,4)}, v{vT1}, s[{srdWS}:{srdWS+3}], s{sT0} offen{SC}")
    a(f"buffer_store_dwordx4 {vr(vA,4)}, v{vT1}, s[{srdWS}:{srdWS+3}], s{sT0} offen offset:512{SC}")
    a.label(f"{name}_e2{sfx}")
    a(f"s_cmp_lg_u32 s{sS}, 1")
    a(f"s_cbranch_scc1 {name}_e3{sfx}")
    a(f"s_mov_b32 s{sT0}, {WS_G + 4096}")
    a(f"buffer_store_dword v{vD+4}, v{vT1}, s[{srdWS}:{srdWS+3}], s{sT0} offen{SC}")
    a(f"v_mov_b32 v{vR}, v{vD+5}")
    a(f"s_mov_b32 s{sT0}, {WS_A + (8*A_KSTEPS + 64)*1024}")
    a(f"buffer_store_dwordx4 {vr(vR,4)}, v{vT1}, s[{srdWS}:{srdWS+3}], s{sT0} offen{SC}")
    a(f"buffer_store_dwordx4 {vr(vA,4)}, v{vT1}, s[{srdWS}:{srdWS+3}], s{sT0} offen offset:512{SC}")
    a.label(f"{name}_e3{sfx}")
    a("s_mov_b64 exec, -1")

def gen_attn_part(a, name, base, nvmax, V):
    vLane, vL16, vT0, vT1 = V["vLane"], V["vL16"], V["vT0"], V["vT1"]
    Ra = RegAlloc(base, 168)
    vAK = Ra.alloc("addrK"); vAV = Ra.alloc("addrV"); vM = Ra.alloc("m")
    vRd = Ra.alloc("rdaddr"); vRv = Ra.alloc("rdval")
    vQ = [Ra.alloc("Q0", 4), Ra.alloc("Q1", 4)]
    vK = Ra.alloc("K", 4); vV0 = Ra.alloc("V0", 4); vV1 = Ra.alloc("V1", 4)
    vP = Ra.alloc("P", 8)
    vS = [Ra.alloc("S0", 16), Ra.alloc("S1", 16)]
    vT = Ra.alloc("T", 16)
    vO = [Ra.alloc("O0", 16), Ra.alloc("O1", 16)]
    vC = [Ra.alloc("C0", 16), Ra.alloc("C1", 16)]
    nvmax[0] = max(nvmax[0], Ra.next)
    sKh, sQp, sIt, sMask, sRetry = 54, 55, 56, 58, 57
    a.label(f"{name}_attn")
    decode_hq(a)
    a(f"s_and_b32 s{sQp}, s{sW}, 3")
    a(f"s_lshr_b32 s{sKh}, s{sW}, 2")
    srd(a, srdWS, sWS, WS_SIZE_USED)
    a(f"s_mov_b32 s{sRetry}, 0")
    a(f"s_lshl_b32 s60, s{sKh}, 15")
    a(f"s_mul_i32 s59, s{sKh}, {VHALF}")
    a(f"v_lshrrev_b32 v{vT0}, 5, v{vLane}")
    a(f"v_lshlrev_b32 v{vT0}, 8, v{vT0}")
    a(f"v_and_b32 v{vAK}, 31, v{vLane}")
    a(f"v_lshlrev_b32 v{vAV}, 4, v{vAK}")
    a(f"v_add_u32 v{vAV}, v{vAV}, v{vT0}")
    a(f"v_cmp_eq_u32 vcc, 16, v{vAK}")
    a(f"v_cmp_eq_u32 s[62:63], 20, v{vAK}")
    a(f"v_mov_b32 v{vM}, 528")
    a(f"v_mov_b32 v{vT0}, 512")
    a("s_or_b64 vcc, vcc, s[62:63]")
    a("s_nop 1")
    a(f"v_cndmask_b32 v{vM}, v{vM}, v{vT0}, vcc")
    a(f"v_cmp_gt_u32 vcc, 16, v{vAK}")
    a("s_nop 1")
    a(f"v_cndmask_b32 v{vAV}, v{vM}, v{vAV}, vcc")
    a(f"v_add_u32 v{vAV}, 65536, v{vAV}")
    a(f"v_add_u32 v{vAV}, s59, v{vAV}")
    for i in range(4):
        a(f"v_mov_b32 v{vV1+i}, 0")
    for q in range(2):
        for i in range(16):
            a(f"v_mov_b32 v{vO[q]+i}, 0")
    for i in range(4, 8):
        a(f"v_mov_b32 v{vP+i}, 0")
    a(f"v_add_u32 v{vAK}, s60, v{vL16}")
    a(f"s_lshl_b32 s{sT0}, s{sHead}, 6")
    a(f"s_lshl_b32 s{sT1}, s{sQb}, 3")
    a(f"s_add_u32 s{sT0}, s{sT0}, s{sT1}")
    a(f"s_lshl_b32 s{sT1}, s{sQp}, 1")
    a(f"s_add_u32 s{sT0}, s{sT0}, s{sT1}")
    a(f"s_lshl_b32 s61, s{sT0}, 10")
    read_nonce(a, vT0, vT1)
    tl_stamp(a, 3)
    lwait(a, vT0, vT1, sT0, C_GO, 1, f"{name}_wgo", sleep=2)
    a(f"buffer_load_dwordx4 {vr(vQ[0],4)}, v{vL16}, s[{srdWS}:{srdWS+3}], s61 offen{SC}")
    a(f"buffer_load_dwordx4 {vr(vQ[1],4)}, v{vL16}, s[{srdWS}:{srdWS+3}], s61 offen offset:1024{SC}")
    tl_stamp(a, 4)
    lwait(a, vT0, vT1, sT0, C_RDY, 1, f"{name}_wr0", sleep=1)
    a(f"s_lshl_b32 s60, s{sKh}, 2")
    a(f"s_add_u32 s60, s60, {C_RDY}")
    lwait(a, vT0, vT1, sT0, "s60", 1, f"{name}_wr1", sleep=1)
    a(f"v_add_u32 v{vRd}, 8, v{vT0}")
    a("s_waitcnt vmcnt(0)")
    tl_stamp(a, 5)

    def rowmax(S):
        a(f"v_max3_f32 v{vM}, v{S}, v{S+1}, v{S+2}")
        for i in range(3, 15, 2):
            a(f"v_max3_f32 v{vM}, v{vM}, v{S+i}, v{S+i+1}")
        a(f"v_max_f32 v{vM}, v{vM}, v{S+15}")
    def bcast_negmax(C):
        a(f"v_mov_b32 v{vT0}, v{vM}")
        a("s_nop 1")
        a(f"v_permlane32_swap_b32 v{vT0}, v{vM}")
        a("s_nop 1")
        a(f"v_max_f32 v{vM}, v{vM}, v{vT0}")
        a(f"v_sub_f32 v{C}, 0, v{vM}")
        for i in range(1, 16):
            a(f"v_mov_b32 v{C+i}, v{C}")
    a(f"ds_read_b128 {vr(vT,4)}, v{vL16}")
    a(f"ds_read_b128 {vr(vK,4)}, v{vAK}")
    a("s_waitcnt lgkmcnt(1)")
    a(f"v_mfma_f32_32x32x16_bf16 {vr(vS[0],16)}, {vr(vT,4)}, {vr(vQ[0],4)}, 0")
    a(f"v_mfma_f32_32x32x16_bf16 {vr(vS[1],16)}, {vr(vT,4)}, {vr(vQ[1],4)}, 0")
    a(f"ds_read_b128 {vr(vV0,4)}, v{vAV}")
    a("s_nop 8")
    rowmax(vS[0]); bcast_negmax(vC[0])
    a("s_waitcnt lgkmcnt(0)")
    a(f"v_mfma_f32_32x32x16_bf16 {vr(vS[0],16)}, {vr(vK,4)}, {vr(vQ[0],4)}, {vr(vC[0],16)}")
    rowmax(vS[1]); bcast_negmax(vC[1])
    a("s_nop 1")
    a(f"v_mfma_f32_32x32x16_bf16 {vr(vS[1],16)}, {vr(vK,4)}, {vr(vQ[1],4)}, {vr(vC[1],16)}")
    a(f"ds_read_b128 {vr(vK,4)}, v{vAK} offset:1024")
    tl_stamp(a, 6)

    def step(u, q):
        S = vS[q]
        e = lambda i: a(f"v_exp_f32 v{vT+i}, v{S+i}")
        c = lambda i: a(f"v_cvt_pk_bf16_f32 v{vP+i}, v{vT+2*i}, v{vT+2*i+1}")
        e(0); e(1); e(2); c(0); e(3); e(4)
        if q == 1:
            a("s_waitcnt lgkmcnt(0)")
        a(f"v_mfma_f32_32x32x16_bf16 {vr(vO[q^1],16)}, {vr(vV1,4)}, {vr(vP+4,4)}, {vr(vO[q^1],16)}")
        if q == 0:
            a(f"ds_read_b128 {vr(vV1,4)}, v{vAV} offset:{(2*u+1)*VG}")
        c(1); e(5); e(6); c(2); e(7); e(8); c(3); e(9); e(10)
        if q == 0:
            a("s_waitcnt lgkmcnt(2)")
        a(f"v_mfma_f32_32x32x16_bf16 {vr(vO[q],16)}, {vr(vV0,4)}, {vr(vP,4)}, {vr(vO[q],16)}")
        if q == 1:
            a(f"ds_read_b128 {vr(vV0,4)}, v{vAV} offset:{(2*u+2)*VG}")
        e(11); c(4); e(12); c(5); e(13); e(14); c(6); e(15)
        if q == 0:
            a("s_waitcnt lgkmcnt(1)")
        a(f"v_mfma_f32_32x32x16_bf16 {vr(S,16)}, {vr(vK,4)}, {vr(vQ[q],4)}, {vr(vC[q],16)}")
        if q == 1:
            a(f"ds_read_b128 {vr(vK,4)}, v{vAK} offset:{(u+2)*1024}")
        c(7)

    a(f"s_mov_b32 s{sIt}, 0")
    a("s_setprio 2")
    lbl = f"{name}_loop"
    if EXP.get("al64"): a.raw(".p2align 6")
    if EXP.get("al64s4"):
        a.raw(".p2align 6"); a("s_nop 0")
    a.label(lbl)
    for u in range(4):
        step(u, 0)
        if u == 0:
            a(f"ds_read_b32 v{vRv}, v{vRd}")
        step(u, 1)
        if u == 1:
            a(f"v_readfirstlane_b32 s{sT0}, v{vRv}")
            a(f"v_add_u32 v{vRd}, 8, v{vRd}")
            a("s_nop 2")
            a(f"s_cmp_lg_u32 s{sT0}, 0")
            a(f"s_cbranch_scc1 {name}_nosync")
            a(f"v_subrev_u32 v{vT0}, 8, v{vRd}")
            a(f"s_mov_b32 s{sT3}, {SPIN_MAX*16}")
            a.label(f"{name}_wrs")
            a(f"ds_read_b32 v{vT1}, v{vT0}")
            a("s_waitcnt lgkmcnt(0)")
            a(f"v_readfirstlane_b32 s{sT0}, v{vT1}")
            a(f"s_sub_u32 s{sT3}, s{sT3}, 1")
            a(f"s_cbranch_scc1 {name}_nosync")
            a("s_nop 1")
            a(f"s_cmp_lg_u32 s{sT0}, 0")
            a(f"s_cbranch_scc1 {name}_nosync")
            a("s_sleep 1")
            a(f"s_branch {name}_wrs")
            a.label(f"{name}_nosync")
    a(f"v_add_u32 v{vAK}, 4096, v{vAK}")
    a(f"v_add_u32 v{vAV}, {8*VG}, v{vAV}")
    a(f"s_add_u32 s{sIt}, s{sIt}, 1")
    a(f"s_cmp_eq_u32 s{sIt}, {PRIO_SW[0]}")
    a(f"s_cbranch_scc0 {name}_p1")
    a("s_setprio 1")
    a.label(f"{name}_p1")
    a(f"s_cmp_eq_u32 s{sIt}, {PRIO_SW[1]}")
    a(f"s_cbranch_scc0 {name}_p2")
    a("s_setprio 0")
    a.label(f"{name}_p2")
    a(f"s_cmp_lg_u32 s{sIt}, 8")
    a(f"s_cbranch_scc1 {lbl}")
    a("s_nop 1")
    a(f"v_mfma_f32_32x32x16_bf16 {vr(vO[1],16)}, {vr(vV1,4)}, {vr(vP+4,4)}, {vr(vO[1],16)}")
    tl_stamp(a, 7)
    lwait(a, vT0, vT1, sT0, C_R1, 1, f"{name}_wf")
    a("s_nop 8")
    a(f"s_mul_i32 s{sT0}, s{sW}, 2304")
    a(f"s_add_u32 s{sT0}, s{sT0}, {LDS_RED}")
    a(f"v_add_u32 v{vT0}, s{sT0}, v{vL16}")
    a(f"v_lshrrev_b32 v{vT1}, 2, v{vL16}")
    a(f"v_add_u32 v{vT1}, s{sT0}, v{vT1}")
    a(f"s_cmp_eq_u32 s{sKh}, 0")
    a(f"s_cbranch_scc0 {name}_x1")
    a(f"ds_write_b128 v{vT0}, {vr(vO[1],4)}")
    a(f"ds_write_b128 v{vT0}, {vr(vO[1]+4,4)} offset:1024")
    a(f"ds_write_b32 v{vT1}, v{vO[1]+8} offset:2048")
    a(f"s_branch {name}_x2")
    a.label(f"{name}_x1")
    a(f"ds_write_b128 v{vT0}, {vr(vO[0],4)}")
    a(f"ds_write_b128 v{vT0}, {vr(vO[0]+4,4)} offset:1024")
    a(f"ds_write_b32 v{vT1}, v{vO[0]+8} offset:2048")
    for i in range(9):
        a(f"v_mov_b32 v{vO[0]+i}, v{vO[1]+i}")
    for i in range(4):
        a(f"v_mov_b32 v{vQ[0]+i}, v{vQ[1]+i}")
    a.label(f"{name}_x2")
    a("s_waitcnt lgkmcnt(0)")
    a(f"s_lshl_b32 s{sT0}, s{sQp}, 2")
    a(f"s_add_u32 s61, s{sT0}, {C_X}")
    lsig(a, vAK, vM, "s61")
    lwait(a, vAK, vM, sT0, "s61", 2, f"{name}_wx")
    a(f"s_xor_b32 s{sT0}, s{sW}, 4")
    a(f"s_mul_i32 s{sT0}, s{sT0}, 2304")
    a(f"s_add_u32 s{sT0}, s{sT0}, {LDS_RED}")
    a(f"v_add_u32 v{vT0}, s{sT0}, v{vL16}")
    a(f"v_lshrrev_b32 v{vT1}, 2, v{vL16}")
    a(f"v_add_u32 v{vT1}, s{sT0}, v{vT1}")
    a(f"ds_read_b128 {vr(vT,4)}, v{vT0}")
    a(f"ds_read_b128 {vr(vT+4,4)}, v{vT0} offset:1024")
    a(f"ds_read_b32 v{vT+8}, v{vT1} offset:2048")
    a("s_waitcnt lgkmcnt(0)")
    O = vO[0]
    for i in range(9):
        a(f"v_add_f32 v{O+i}, v{O+i}, v{vT+i}")
    a.label(f"{name}_epi")
    a(f"s_cmp_lg_u32 s{sRetry}, 0")
    a(f"s_cbranch_scc1 {name}_fin")
    a(f"v_mov_b32 v{vT0}, 0x5d800000")
    a(f"v_cmp_nle_f32 vcc, v{O+8}, v{vT0}")
    a("s_nop 4")
    a(f"s_cbranch_vccnz {name}_fallback")
    a.label(f"{name}_fin")
    a(f"v_rcp_f32 v{vT0}, v{O+8}")
    a("s_nop 0")
    for i in range(8):
        a(f"v_mul_f32 v{O+i}, v{O+i}, v{vT0}")
    for i in range(4):
        a(f"v_cvt_pk_bf16_f32 v{vP+i}, v{O+2*i}, v{O+2*i+1}")
    a(f"s_lshl_b32 s{sT0}, s{sQb}, 3")
    a(f"s_lshl_b32 s{sT1}, s{sQp}, 1")
    a(f"s_add_u32 s{sT0}, s{sT0}, s{sT1}")
    a(f"s_add_u32 s{sT0}, s{sT0}, s{sKh}")
    a(f"s_lshl_b32 s{sT0}, s{sT0}, 5")
    a(f"s_add_u32 s{sT0}, s{sT0}, s{sHead}")
    a(f"s_lshl_b32 s{sT0}, s{sT0}, 10")
    a(f"s_add_u32 s{sT0}, s{sT0}, {WS_O}")
    a(f"buffer_store_dwordx4 {vr(vP,4)}, v{vL16}, s[{srdWS}:{srdWS+3}], s{sT0} offen{SC}")
    a(f"v_mov_b32 v{vT0}, {C_ADONE}")
    a(f"v_mov_b32 v{vT1}, 1")
    a("s_mov_b64 exec, 1")
    a(f"ds_add_rtn_u32 v{vM}, v{vT0}, v{vT1}")
    a("s_waitcnt lgkmcnt(0)")
    a("s_mov_b64 exec, -1")
    a(f"v_readfirstlane_b32 s{sT0}, v{vM}")
    a("s_nop 3")
    a(f"s_cmp_lg_u32 s{sT0}, 7")
    a(f"s_cbranch_scc1 {name}_adone")
    a(f"s_lshl_b32 s61, s{sQb}, 5")
    a(f"s_add_u32 s61, s61, s{sHead}")
    a(f"s_add_u32 s61, s61, {FL_O}")
    publish(a, vT0, vT1, 61)
    a.label(f"{name}_adone")
    tl_stamp(a, 8)
    dbg_exit(a, [1, 6, 7], [0, 5], 4, 1)
    if not TL.get("dbg"): tl_exit(a, 1, sWS)
    a("s_endpgm")
    a.label(f"{name}_fallback")
    a(f"s_mov_b32 s{sRetry}, 1")
    a(f"v_mov_b32 v{vAK}, v{vL16}")
    a(f"v_mov_b32 v{vM}, 0xff800000")
    a(f"s_mov_b32 s{sIt}, 64")
    a.label(f"{name}_maxloop")
    a(f"ds_read_b128 {vr(vK,4)}, v{vAK}")
    a("s_waitcnt lgkmcnt(0)")
    a(f"v_mfma_f32_32x32x16_bf16 {vr(vS[0],16)}, {vr(vK,4)}, {vr(vQ[0],4)}, 0")
    a(f"v_add_u32 v{vAK}, 1024, v{vAK}")
    a("s_nop 15")
    a("s_nop 3")
    for i in range(0, 16, 2):
        a(f"v_max3_f32 v{vM}, v{vM}, v{vS[0]+i}, v{vS[0]+i+1}")
    a(f"s_sub_u32 s{sIt}, s{sIt}, 1")
    a(f"s_cmp_lg_u32 s{sIt}, 0")
    a(f"s_cbranch_scc1 {name}_maxloop")
    bcast_negmax(vC[0])
    for i in range(16):
        a(f"v_mov_b32 v{O+i}, 0")
    a(f"v_mov_b32 v{vAK}, v{vL16}")
    a(f"s_mul_i32 s60, s{sKh}, {VHALF}")
    a(f"s_add_u32 s60, s60, {VHALF}")
    a(f"v_subrev_u32 v{vAV}, s60, v{vAV}")
    a(f"s_mov_b32 s{sIt}, 64")
    a.label(f"{name}_redo")
    a(f"ds_read_b128 {vr(vK,4)}, v{vAK}")
    a(f"ds_read_b128 {vr(vV0,4)}, v{vAV}")
    a(f"ds_read_b128 {vr(vV1,4)}, v{vAV} offset:{VG}")
    a("s_waitcnt lgkmcnt(0)")
    a(f"v_mfma_f32_32x32x16_bf16 {vr(vS[0],16)}, {vr(vK,4)}, {vr(vQ[0],4)}, {vr(vC[0],16)}")
    a(f"v_add_u32 v{vAK}, 1024, v{vAK}")
    a(f"v_add_u32 v{vAV}, {2*VG}, v{vAV}")
    a("s_nop 15")
    a("s_nop 3")
    for i in range(16):
        a(f"v_exp_f32 v{vT+i}, v{vS[0]+i}")
    a("s_nop 0")
    for i in range(8):
        a(f"v_cvt_pk_bf16_f32 v{vP+i}, v{vT+2*i}, v{vT+2*i+1}")
    a("s_nop 1")
    a(f"v_mfma_f32_32x32x16_bf16 {vr(O,16)}, {vr(vV0,4)}, {vr(vP,4)}, {vr(O,16)}")
    a(f"v_mfma_f32_32x32x16_bf16 {vr(O,16)}, {vr(vV1,4)}, {vr(vP+4,4)}, {vr(O,16)}")
    a(f"s_sub_u32 s{sIt}, s{sIt}, 1")
    a(f"s_cmp_lg_u32 s{sIt}, 0")
    a(f"s_cbranch_scc1 {name}_redo")
    a("s_nop 15")
    a("s_nop 3")
    a(f"s_branch {name}_epi")

def gen_f_part(a, name, base, nvmax, V):
    vLane, vL16, vT0, vT1, vT2, vT3 = V["vLane"], V["vL16"], V["vT0"], V["vT1"], V["vT2"], V["vT3"]
    sF = 54
    a.label(f"{name}_edge")
    sS = 55
    a(f"s_sub_u32 s{sF}, s{sW}, 8")
    a("s_setprio 3")
    a(f"v_lshlrev_b32 v{vT0}, 2, v{vLane}")
    a(f"v_add_u32 v{vT0}, {LDS_CNT}, v{vT0}")
    a(f"v_mov_b32 v{vT1}, 0")
    a(f"ds_write_b32 v{vT0}, v{vT1}")
    a("s_waitcnt lgkmcnt(0)")
    a(f"s_or_b32 s{sT0}, s2, s{sF}")
    a(f"s_cmp_lg_u32 s{sT0}, 0")
    a(f"s_cbranch_scc1 {name}_nn")
    a(f"s_memrealtime s[{sT0}:{sT0+1}]")
    a("s_waitcnt lgkmcnt(0)")
    a(f"s_or_b32 s{sT0}, s{sT0}, 1")
    a(f"v_mov_b32 v{vT0}, 0")
    a(f"v_mov_b32 v{vT1}, s{sT0}")
    a("s_mov_b64 exec, 1")
    a(f"global_store_dword v{vT0}, v{vT1}, s[{sDbg}:{sDbg+1}] sc1")
    a("s_mov_b64 exec, -1")
    a.label(f"{name}_nn")
    srd(a, srdWS, sWS, WS_SIZE_USED)
    decode_hq(a)
    vPz = (base + 3) // 4 * 4 - 1
    for i in range(4):
        a(f"v_mov_b32 v{vPz+1+i}, -1")
    a(f"s_lshl_b32 s{sT0}, s{sQb}, 3")
    a(f"s_lshl_b32 s{sT1}, s{sF}, 1")
    a(f"s_add_u32 s{sT0}, s{sT0}, s{sT1}")
    a(f"s_lshl_b32 s{sT0}, s{sT0}, 5")
    a(f"s_add_u32 s{sT0}, s{sT0}, s{sHead}")
    a(f"s_lshl_b32 s{sT0}, s{sT0}, 10")
    a(f"s_add_u32 s{sT0}, s{sT0}, {WS_O}")
    a(f"buffer_store_dwordx4 {vr(vPz+1,4)}, v{vL16}, s[{srdWS}:{srdWS+3}], s{sT0} offen{SC}")
    a(f"s_add_u32 s{sT0}, s{sT0}, 32768")
    a(f"buffer_store_dwordx4 {vr(vPz+1,4)}, v{vL16}, s[{srdWS}:{srdWS+3}], s{sT0} offen{SC}")
    ER = (base + 7) // 4 * 4 + 4
    EB0, EB1 = PAR.get("EB0", 1), PAR.get("EB1", 3)
    srd(a, srdA, sX, 2048*1024)
    nb = 0
    while nb < EB0:
        a("s_barrier"); nb += 1
    emit_edge_loads(a, name, V, ER, sF, 30)
    while nb < EB1:
        a("s_barrier"); nb += 1
    emit_edge_compute(a, name, V, ER, sF, 30, "p")
    while nb < 5:
        a("s_barrier"); nb += 1
    a(f"s_cmp_lg_u32 s{sF}, 0")
    a(f"s_cbranch_scc1 {name}_nn2")
    a(f"v_mov_b32 v{vT0}, 0")
    a(f"s_mov_b32 s{sT1}, {SPIN_MAX}")
    a.label(f"{name}_npoll")
    a(f"global_load_dword v{vT1}, v{vT0}, s[{sDbg}:{sDbg+1}] sc1")
    a("s_waitcnt vmcnt(0)")
    a(f"v_readfirstlane_b32 s{sN}, v{vT1}")
    a(f"s_sub_u32 s{sT1}, s{sT1}, 1")
    a(f"s_cbranch_scc1 {name}_npoll_ok")
    a("s_nop 1")
    a(f"s_cmp_lg_u32 s{sN}, 0")
    a(f"s_cbranch_scc1 {name}_npoll_ok")
    a("s_sleep 1")
    a(f"s_branch {name}_npoll")
    a.label(f"{name}_npoll_ok")
    a(f"v_mov_b32 v{vT0}, {C_NONCE}")
    a(f"v_mov_b32 v{vT1}, s{sN}")
    a(f"ds_write_b32 v{vT0}, v{vT1}")
    a.label(f"{name}_nn2")
    a("s_waitcnt vmcnt(0) lgkmcnt(0)")
    for i in range(5, 9):
        a("s_barrier")
    tl_stamp(a, 0)

    Rf = RegAlloc(base, 168)
    vB_ = Rf.alloc("boff"); vY = Rf.alloc("yaddr"); vFl = Rf.alloc("flag")
    accP = Rf.alloc("accP", 16); accQ = Rf.alloc("accQ", 16)
    buf = Rf.alloc("buf", 112)
    vCn = Rf.alloc("cn", 4)
    nvmax[0] = max(nvmax[0], Rf.next)
    sKoff, sVoff = 56, 57
    sTt, sEt, sHasQ, sA, sBq, sK, sJob, sCnt = 58, 59, 60, 61, 62, 63, 30, 31
    decode_hq(a)
    KB = accP
    sPend, sQd, sSlot = 60, 61, 62
    sEd = 30
    a(f"s_mov_b32 s{sEd}, 0")
    a(f"s_lshl_b32 s{sKoff}, s{sHead}, 16")
    a(f"s_add_u32 s{sKoff}, s{sKoff}, {WS_K}")
    a(f"s_cmp_lg_u32 s{sF}, 0")
    a(f"s_cbranch_scc1 {name}_kvld")
    a(f"s_add_u32 s{sT0}, s2, {FL_E}")
    publish(a, vT0, vT1, sT0)
    tl_stamp(a, 1)
    a(f"s_lshr_b32 s{sT0}, s{sHead}, 3")
    a(f"s_lshl_b32 s{sT0}, s{sT0}, 4")
    a(f"v_and_b32 v{vT0}, 15, v{vLane}")
    a(f"v_bfe_u32 v{vT1}, v{vLane}, 4, 1")
    a(f"v_lshlrev_b32 v{vT1}, 6, v{vT1}")
    a(f"v_add_u32 v{vT0}, v{vT0}, v{vT1}")
    a(f"v_add_u32 v{vT0}, 64, v{vT0}")
    a(f"v_and_b32 v{vT1}, 1, v{vLane}")
    a(f"s_lshl_b32 s{sT1}, s{sQb}, 1")
    a(f"v_add_u32 v{vT1}, s{sT1}, v{vT1}")
    a(f"v_cmp_gt_u32 vcc, 32, v{vLane}")
    a("s_nop 1")
    a(f"v_cndmask_b32 v{vT0}, v{vT1}, v{vT0}, vcc")
    a(f"v_add_u32 v{vT0}, s{sT0}, v{vT0}")
    a(f"v_lshlrev_b32 v{vFl}, {FSH}, v{vT0}")
    a(f"v_add_u32 v{vFl}, {WS_FLAG}, v{vFl}")
    a(f"s_mov_b32 s{sPend}, 0xffff")
    a(f"s_mov_b32 s{sQd}, 0")
    a(f"s_mov_b32 s{sSlot}, 0")
    a(f"s_mov_b32 s{sCnt}, {SPIN_MAX}")
    a.label(f"{name}_dpoll")
    a(f"global_load_dword v{vT0}, v{vFl}, s[{sWS}:{sWS+1}] sc1")
    a("s_waitcnt vmcnt(0)")
    a(f"v_cmp_eq_u32 vcc, s{sN}, v{vT0}")
    a(f"s_sub_u32 s{sCnt}, s{sCnt}, 1")
    a(f"s_cbranch_scc0 {name}_dnt")
    a("s_mov_b64 vcc, -1")
    a.label(f"{name}_dnt")
    a("s_nop 2")
    a(f"s_mov_b32 s56, vcc_lo")
    a(f"s_mov_b32 s57, vcc_hi")
    a(f"s_cmp_lg_u32 s{sQd}, 0")
    a(f"s_cbranch_scc1 {name}_dq")
    a(f"s_cmp_lg_u32 s57, -1")
    a(f"s_cbranch_scc1 {name}_dq")
    a(f"s_mov_b32 s{sQd}, 1")
    tl_stamp(a, 2)
    if TL["on"]: a("s_waitcnt lgkmcnt(0)")
    lsig(a, vT0, vT1, C_GO)
    a.label(f"{name}_dq")
    a(f"s_lshr_b32 s{sT0}, s56, 16")
    a(f"s_and_b32 s{sT0}, s{sT0}, s56")
    a(f"s_and_b32 s{sT0}, s{sT0}, s{sPend}")
    a(f"s_cmp_eq_u32 s{sT0}, 0")
    a(f"s_cbranch_scc1 {name}_dnone")
    a(f"s_andn2_b32 s{sPend}, s{sPend}, s{sT0}")
    a.label(f"{name}_dq1")
    a(f"s_ff1_i32_b32 s{sT1}, s{sT0}")
    a(f"s_bitset0_b32 s{sT0}, s{sT1}")
    a(f"s_add_u32 s{sT1}, s{sT1}, 1")
    a(f"s_lshl_b32 s{sT2}, s{sSlot}, 2")
    a(f"s_add_u32 s{sT2}, s{sT2}, {C_QUE}")
    a(f"v_mov_b32 v{vT0}, s{sT2}")
    a(f"v_mov_b32 v{vT1}, s{sT1}")
    a(f"ds_write_b32 v{vT0}, v{vT1}")
    a(f"s_add_u32 s{sSlot}, s{sSlot}, 1")
    a(f"s_cmp_lg_u32 s{sT0}, 0")
    a(f"s_cbranch_scc1 {name}_dq1")
    a.label(f"{name}_dnone")
    a(f"s_cmp_eq_u32 s{sQd}, 0")
    a(f"s_cbranch_scc1 {name}_dagain")
    a(f"s_cmp_eq_u32 s{sPend}, 0")
    a(f"s_cbranch_scc1 {name}_kvdone")
    a.label(f"{name}_dagain")
    a(f"s_sleep {PAR.get('DSLEEP', 4)}")
    a(f"s_branch {name}_dpoll")
    a.label(f"{name}_kvld")
    read_nonce(a, vT0, vT1)
    vVw, vCa, vCa2, vCd = KB + 40, KB + 41, KB + 42, KB + 44
    a(f"v_lshrrev_b32 v{vT0}, 5, v{vLane}")
    a(f"v_mul_u32_u24 v{vT0}, {VG}, v{vT0}")
    a(f"v_and_b32 v{vT1}, 31, v{vLane}")
    a(f"v_lshlrev_b32 v{vT1}, 4, v{vT1}")
    a(f"v_add_u32 v{vVw}, v{vT0}, v{vT1}")
    a(f"v_lshrrev_b32 v{vT0}, 1, v{vLane}")
    a(f"v_mul_u32_u24 v{vT0}, {VG}, v{vT0}")
    a(f"v_and_b32 v{vT1}, 1, v{vLane}")
    a(f"v_lshlrev_b32 v{vT2}, 4, v{vT1}")
    a(f"v_add_u32 v{vT0}, v{vT0}, v{vT2}")
    a(f"v_add_u32 v{vCa}, 512, v{vT0}")
    a(f"v_cmp_eq_u32 vcc, 0, v{vT1}")
    a(f"v_mov_b32 v{vT0}, 0x3f803f80")
    a("s_nop 0")
    for i in range(4):
        a(f"v_cndmask_b32 v{vCd+i}, 0, v{vT0}, vcc")
    a(f"s_sub_u32 s{sSlot}, s{sF}, 1")
    a.label(f"{name}_kvnext")
    a(f"s_lshl_b32 s{sT2}, s{sSlot}, 2")
    a(f"s_add_u32 s63, s{sT2}, {C_QUE}")
    lwait(a, vT0, vT1, sT0, "s63", 1, f"{name}_kvwq", sleep=1)
    a(f"s_sub_u32 s{sT0}, s{sT0}, 1")
    a(f"s_and_b32 s{sT0}, s{sT0}, 15")
    a(f"s_lshl_b32 s{sT0}, s{sT0}, 12")
    a(f"s_add_u32 s{sT0}, s{sT0}, s{sKoff}")
    for t in range(4):
        a(f"s_add_u32 s{sT1}, s{sT0}, {t*1024}")
        a(f"buffer_load_dwordx4 {vr(KB+4*t,4)}, v{vL16}, s[{srdWS}:{srdWS+3}], s{sT1} offen{SC}")
        a(f"s_add_u32 s{sT1}, s{sT1}, {WS_V - WS_K}")
        a(f"buffer_load_dwordx4 {vr(KB+16+4*t,4)}, v{vL16}, s[{srdWS}:{srdWS+3}], s{sT1} offen{SC}")
    a(f"s_and_b32 s{sT1}, s{sSlot}, 1")
    a(f"s_lshr_b32 s{sT2}, s{sSlot}, 1")
    a(f"s_mul_i32 s58, s{sT1}, {VHALF}")
    a(f"s_mul_i32 s59, s{sT2}, {8*VG}")
    a(f"s_add_u32 s58, s58, s59")
    a(f"s_add_u32 s58, s58, 65536")
    a(f"s_lshl_b32 s{sT1}, s{sT1}, 15")
    a(f"s_lshl_b32 s{sT2}, s{sT2}, 12")
    a(f"s_add_u32 s{sT1}, s{sT1}, s{sT2}")
    a(f"v_add_u32 v{vT2}, s{sT1}, v{vL16}")
    a(f"v_add_u32 v{vT3}, s58, v{vVw}")
    a(f"v_add_u32 v{vCa2}, s58, v{vCa}")
    a(f"s_lshl_b32 s{sT0}, s{sSlot}, 2")
    a(f"s_add_u32 s{sT0}, s{sT0}, {C_RDY}")
    a(f"v_mov_b32 v{vT0}, s{sT0}")
    a(f"v_mov_b32 v{vT1}, 1")
    a("s_mov_b32 exec_lo, 0xffff")
    a("s_mov_b32 exec_hi, 0")
    a(f"ds_write_b128 v{vCa2}, {vr(vCd,4)}")
    a("s_mov_b64 exec, -1")
    a("s_waitcnt vmcnt(0)")
    for t in range(4):
        a(f"ds_write_b128 v{vT2}, {vr(KB+4*t,4)} offset:{t*1024}")
        a(f"ds_write_b128 v{vT3}, {vr(KB+16+4*t,4)} offset:{t*2*VG}")
    a("s_waitcnt lgkmcnt(0)")
    a(f"ds_write_b32 v{vT0}, v{vT1}")
    a(f"s_cmp_lg_u32 s{sEd}, 1")
    a(f"s_cbranch_scc1 {name}_kvne")
    a(f"s_cmp_ge_u32 s{sF}, 3")
    a(f"s_cbranch_scc1 {name}_kvne")
    a(f"v_and_b32 v{vT0}, 31, v{vLane}")
    a(f"s_lshl_b32 s{sT0}, s{sHead}, 5")
    a(f"v_add_u32 v{vT0}, s{sT0}, v{vT0}")
    a(f"v_lshlrev_b32 v{vT0}, 12, v{vT0}")
    a(f"v_lshrrev_b32 v{vT1}, 5, v{vLane}")
    a(f"s_lshl_b32 s{sT0}, s{sQb}, 1")
    a(f"v_add_u32 v{vT1}, s{sT0}, v{vT1}")
    a(f"v_lshlrev_b32 v{vT1}, 7, v{vT1}")
    a(f"v_add_u32 v{vT0}, v{vT0}, v{vT1}")
    a(f"s_cmp_eq_u32 s{sF}, 1")
    a(f"s_cselect_b32 s{sT0}, s{sSre}, s{sSim}")
    a(f"s_cselect_b32 s{sT1}, s{sSre+1}, s{sSim+1}")
    a(f"global_load_dword v{KB+96}, v{vT0}, s[{sT0}:{sT0+1}]")
    a.label(f"{name}_kvne")
    a(f"s_add_u32 s{sEd}, s{sEd}, 1")
    a(f"s_add_u32 s{sSlot}, s{sSlot}, 3")
    a(f"s_cmp_lt_u32 s{sSlot}, 16")
    a(f"s_cbranch_scc1 {name}_kvnext")
    a.label(f"{name}_kvdone")
    tl_stamp(a, 3)
    srd(a, srdA, sSre, 2048*4096)
    srd(a, srdB, sSim, 2048*4096)
    srd(a, srdC, sWo, 512*1024)
    a(f"s_lshl_b32 s{sT0}, s{sQb}, 7")
    a(f"s_lshl_b32 s{sT1}, s{sF}, 17")
    a(f"s_add_u32 s{sT0}, s{sT0}, s{sT1}")
    a(f"v_lshlrev_b32 v{vT0}, 10, v{vLane}")
    a(f"buffer_load_dword v{vT3}, v{vT0}, s[{srdC}:{srdC+3}], s{sT0} offen")
    a(f"s_add_u32 s{sT0}, s{sT0}, 65536")
    a(f"buffer_load_dword v{vT3}, v{vT0}, s[{srdC}:{srdC+3}], s{sT0} offen")
    a(f"s_cmp_lg_u32 s{sF}, 0")
    a(f"s_cbranch_scc1 {name}_fnz2")
    a(f"v_lshlrev_b32 v{vFl}, {FSH}, v{vLane}")
    a(f"v_add_u32 v{vFl}, {WS_FLAG + (FL_F1 << FSH)}, v{vFl}")
    a(f"s_mov_b32 s{sCnt}, {SPIN_MAX}")
    a.label(f"{name}_g1")
    a(f"global_load_dword v{buf}, v{vFl}, s[{sWS}:{sWS+1}] sc1")
    for i in range(4):
        a(f"v_add_u32 v{buf+8}, {((FL_E - FL_F1 + 64*i) << FSH)}, v{vFl}")
        a(f"global_load_dword v{buf+1+i}, v{buf+8}, s[{sWS}:{sWS+1}] sc1")
    a("s_waitcnt vmcnt(0)")
    a(f"v_cmp_ne_u32 vcc, s{sN}, v{buf}")
    for i in range(4):
        a(f"v_cmp_ne_u32 s[{sT0}:{sT0+1}], s{sN}, v{buf+1+i}")
        a("s_nop 1")
        a(f"s_or_b64 vcc, vcc, s[{sT0}:{sT0+1}]")
    a(f"s_sub_u32 s{sCnt}, s{sCnt}, 1")
    a(f"s_cbranch_scc1 {name}_g1_ok")
    a("s_nop 2")
    a(f"s_cbranch_vccz {name}_g1_ok")
    a("s_sleep 8")
    a(f"s_branch {name}_g1")
    a.label(f"{name}_g1_ok")
    lsig(a, vT0, vT1, C_GO2)
    a(f"s_branch {name}_fgo2")
    a.label(f"{name}_fnz2")
    lwait(a, vT0, vT1, sT0, C_GO2, 1, f"{name}_fwgo2", sleep=8)
    a.label(f"{name}_fgo2")
    tl_stamp(a, 4)

    accX = buf; accW = buf + 16; fb = buf + 32
    a(f"s_mov_b32 s{sTt}, s{sHead}")
    a(f"s_mov_b32 s{sEt}, s{sQb}")
    a(f"v_and_b32 v{vT0}, 31, v{vLane}")
    a(f"s_lshl_b32 s{sT0}, s{sTt}, 5")
    a(f"v_add_u32 v{vT0}, s{sT0}, v{vT0}")
    a(f"v_mul_u32_u24 v{vY}, {Y_STRIDE}, v{vT0}")
    a(f"v_lshlrev_b32 v{vT0}, 12, v{vT0}")
    a(f"v_lshrrev_b32 v{vT1}, 5, v{vLane}")
    a(f"v_lshlrev_b32 v{vT1}, 4, v{vT1}")
    a(f"v_add_u32 v{vB_}, v{vT0}, v{vT1}")
    a(f"v_add_u32 v{vY}, v{vY}, v{vT1}")
    for i in range(16):
        a(f"v_mov_b32 v{accP+i}, 0")
        a(f"v_mov_b32 v{accQ+i}, 0")
        a(f"v_mov_b32 v{accX+i}, 0")
        a(f"v_mov_b32 v{accW+i}, 0")
    for i in range(4):
        a(f"v_mov_b32 v{vCn+i}, 0xbf803f80")
    a(f"s_lshl_b32 s{sK}, s{sF}, 4")
    a(f"s_mul_i32 s{sA}, s{sEt}, {A_KSTEPS}")
    a(f"s_add_u32 s{sA}, s{sA}, s{sK}")
    a(f"s_lshl_b32 s{sA}, s{sA}, 10")
    a(f"s_add_u32 s{sA}, s{sA}, {WS_A}")
    a(f"s_add_u32 s{sHasQ}, s{sK}, {8*A_KSTEPS}")
    a(f"s_lshl_b32 s{sHasQ}, s{sHasQ}, 10")
    a(f"s_add_u32 s{sHasQ}, s{sHasQ}, {WS_A}")
    sA8 = sHasQ
    a(f"s_mul_i32 s{sBq}, s{sEt}, {B_KSTEPS}")
    a(f"s_add_u32 s{sBq}, s{sBq}, s{sK}")
    a(f"s_lshl_b32 s{sBq}, s{sBq}, 10")
    a(f"s_add_u32 s{sBq}, s{sBq}, {WS_B}")
    a(f"s_lshl_b32 s{sK}, s{sK}, 5")
    a(f"s_cmp_eq_u32 s{sEt}, 0")
    a(f"s_cselect_b32 s{sJob}, 1, 0")
    a(f"s_cmp_eq_u32 s{sTt}, 0")
    a(f"s_cselect_b32 s{sT0}, 2, 0")
    a(f"s_or_b32 s{sJob}, s{sJob}, s{sT0}")
    a(f"s_cmp_eq_u32 s2, 8")
    a(f"s_cselect_b32 s{sT0}, 4, 0")
    a(f"s_or_b32 s{sJob}, s{sJob}, s{sT0}")
    vm = Vm(a)
    NFL = 4
    def ld_k(k, slot, withq=True):
        r = fb + slot * 20
        a(f"s_add_u32 s{sT0}, s{sA}, {k*1024}")
        a(f"buffer_load_dwordx4 {vr(r,4)}, v{vL16}, s[{srdWS}:{srdWS+3}], s{sT0} offen{SC}")
        a(f"s_add_u32 s{sT0}, s{sK}, {k*32}")
        a(f"buffer_load_dwordx4 {vr(r+4,4)}, v{vB_}, s[{srdA}:{srdA+3}], s{sT0} offen")
        a(f"s_add_u32 s{sT0}, s{sA8}, {k*1024}")
        a(f"buffer_load_dwordx4 {vr(r+16,4)}, v{vL16}, s[{srdWS}:{srdWS+3}], s{sT0} offen{SC}")
        n = 3
        if withq:
            a(f"s_add_u32 s{sT0}, s{sBq}, {k*1024}")
            a(f"buffer_load_dwordx4 {vr(r+8,4)}, v{vL16}, s[{srdWS}:{srdWS+3}], s{sT0} offen{SC}")
            a(f"s_add_u32 s{sT0}, s{sK}, {k*32}")
            a(f"buffer_load_dwordx4 {vr(r+12,4)}, v{vB_}, s[{srdB}:{srdB+3}], s{sT0} offen")
            n = 5
        vm.issue(k, n)
    lab = [0]
    def mf_k(slot, withq=True):
        r = fb + slot * 20
        lab[0] += 1
        L = f"{name}_fm{lab[0]}"
        a(f"v_mfma_f32_32x32x16_bf16 {vr(accP,16)}, {vr(r,4)}, {vr(r+4,4)}, {vr(accP,16)}")
        if withq:
            a(f"v_mfma_f32_32x32x16_bf16 {vr(accQ,16)}, {vr(r+8,4)}, {vr(r+12,4)}, {vr(accQ,16)}")
        a(f"s_cmp_eq_u32 s{sJob}, 0")
        a(f"s_cbranch_scc1 {L}c")
        a(f"s_bitcmp1_b32 s{sJob}, 0")
        a(f"s_cbranch_scc0 {L}a")
        a(f"v_mfma_f32_32x32x16_bf16 {vr(accX,16)}, {vr(r+16,4)}, {vr(r+4,4)}, {vr(accX,16)}")
        a.label(f"{L}a")
        a(f"s_bitcmp1_b32 s{sJob}, 1")
        a(f"s_cbranch_scc0 {L}b")
        a(f"v_mfma_f32_32x32x16_bf16 {vr(accW,16)}, {vr(r,4)}, {vr(vCn,4)}, {vr(accW,16)}")
        a.label(f"{L}b")
        a(f"s_bitcmp1_b32 s{sJob}, 2")
        a(f"s_cbranch_scc0 {L}c")
        a(f"v_mfma_f32_32x32x16_bf16 {vr(accW,16)}, {vr(r+16,4)}, {vr(vCn,4)}, {vr(accW,16)}")
        a.label(f"{L}c")
    if EXP.get("nof2"): a(f"s_branch {name}_fnox")
    for k in range(NFL): ld_k(k, k)
    for k in range(16):
        vm.wait(k)
        mf_k(k % NFL)
        if k + NFL < 16:
            a("s_nop 4")
            ld_k(k + NFL, k % NFL)
    a(f"s_cmp_lg_u32 s{sF}, 0")
    a(f"s_cbranch_scc1 {name}_fnox")
    a("s_nop 4")
    vm = Vm(a)
    ld_k(64, 0, withq=False)
    a("s_waitcnt vmcnt(0)")
    mf_k(0, withq=False)
    a.label(f"{name}_fnox")
    a("s_nop 15")
    a("s_nop 3")
    for i in range(16):
        a(f"v_sub_f32 v{fb+i}, v{accP+i}, v{accQ+i}")
        a(f"v_add_f32 v{accQ+i}, v{accP+i}, v{accQ+i}")
    for i in range(16):
        a(f"v_mov_b32 v{accP+i}, v{fb+i}")
    WA = 8192 + 256 + 256
    a(f"s_cmp_eq_u32 s{sF}, 0")
    a(f"s_cbranch_scc1 {name}_fred0")
    a(f"s_sub_u32 s{sT0}, s{sF}, 1")
    a(f"s_mul_i32 s{sT0}, s{sT0}, {WA}")
    a(f"s_add_u32 s{sT0}, s{sT0}, {LDS_RED}")
    a(f"v_add_u32 v{vT0}, s{sT0}, v{vL16}")
    for q in range(8):
        a(f"ds_write_b128 v{vT0}, {vr(accP+4*q,4)} offset:{q*1024}")
    a(f"v_lshrrev_b32 v{vT1}, 2, v{vL16}")
    a(f"v_add_u32 v{vT1}, s{sT0}, v{vT1}")
    a(f"ds_write_b32 v{vT1}, v{accX} offset:8192")
    a(f"v_lshrrev_b32 v{vT1}, 5, v{vLane}")
    a(f"v_lshlrev_b32 v{vT1}, 6, v{vT1}")
    a(f"v_add_u32 v{vT1}, s{sT0}, v{vT1}")
    a("s_mov_b32 exec_lo, 1")
    a("s_mov_b32 exec_hi, 1")
    for q in range(4):
        a(f"ds_write_b128 v{vT1}, {vr(accW+4*q,4)} offset:{8192 + 256 + q*16}")
    a("s_mov_b64 exec, -1")
    a("s_waitcnt lgkmcnt(0)")
    lsig(a, vT0, vT1, C_R0)
    a(f"s_branch {name}_fsig")
    a.label(f"{name}_fred0")
    lwait(a, vT0, vT1, sT0, C_R0, 3, f"{name}_fw0", sleep=2)
    a(f"v_add_u32 v{vT0}, {LDS_RED}, v{vL16}")
    a(f"v_lshrrev_b32 v{vT2}, 2, v{vL16}")
    a(f"v_add_u32 v{vT2}, {LDS_RED}, v{vT2}")
    a(f"v_lshrrev_b32 v{vT1}, 5, v{vLane}")
    a(f"v_lshlrev_b32 v{vT1}, 6, v{vT1}")
    a(f"v_add_u32 v{vT1}, {LDS_RED}, v{vT1}")
    for src in range(3):
        for q in range(8):
            a(f"ds_read_b128 {vr(fb+4*q,4)}, v{vT0} offset:{src*WA + q*1024}")
        a(f"ds_read_b32 v{fb+32}, v{vT2} offset:{src*WA + 8192}")
        for q in range(4):
            a(f"ds_read_b128 {vr(fb+36+4*q,4)}, v{vT1} offset:{src*WA + 8192 + 256 + q*16}")
        a("s_waitcnt lgkmcnt(0)")
        for i in range(32):
            a(f"v_add_f32 v{accP+i}, v{accP+i}, v{fb+i}")
        a(f"v_add_f32 v{accX}, v{accX}, v{fb+32}")
        for i in range(16):
            a(f"v_add_f32 v{accW+i}, v{accW+i}, v{fb+36+i}")
    a(f"s_lshl_b32 s{sT0}, s{sEt}, 7")
    for g in range(4):
        a(f"s_add_u32 s{sT2}, s{sT0}, {WS_D + g*32}")
        a(f"buffer_store_dwordx4 {vr(accP+4*g,4)}, v{vY}, s[{srdWS}:{srdWS+3}], s{sT2} offen{SC}")
        a(f"s_add_u32 s{sT2}, s{sT0}, {WS_E + g*32}")
        a(f"buffer_store_dwordx4 {vr(accQ+4*g,4)}, v{vY}, s[{srdWS}:{srdWS+3}], s{sT2} offen{SC}")
    a(f"s_bitcmp1_b32 s{sJob}, 0")
    a(f"s_cbranch_scc0 {name}_fo1")
    a("s_mov_b32 exec_hi, 0")
    a(f"s_mov_b32 s{sT2}, {WS_D + 1024}")
    a(f"buffer_store_dword v{accX}, v{vY}, s[{srdWS}:{srdWS+3}], s{sT2} offen{SC}")
    a(f"s_mov_b32 s{sT2}, {WS_E + 1024}")
    a(f"buffer_store_dword v{accX}, v{vY}, s[{srdWS}:{srdWS+3}], s{sT2} offen{SC}")
    a("s_mov_b64 exec, -1")
    a.label(f"{name}_fo1")
    a(f"s_bitcmp1_b32 s{sJob}, 1")
    a(f"s_cbranch_scc0 {name}_fo2")
    a(f"v_lshrrev_b32 v{vT1}, 5, v{vLane}")
    a(f"v_lshlrev_b32 v{vT1}, 4, v{vT1}")
    a("s_mov_b32 exec_lo, 1")
    a("s_mov_b32 exec_hi, 1")
    for g in range(4):
        a(f"s_add_u32 s{sT2}, s{sT0}, {WS_D + 1024*Y_STRIDE + g*32}")
        a(f"buffer_store_dwordx4 {vr(accW+4*g,4)}, v{vT1}, s[{srdWS}:{srdWS+3}], s{sT2} offen{SC}")
        a(f"s_add_u32 s{sT2}, s{sT0}, {WS_E + 1024*Y_STRIDE + g*32}")
        a(f"buffer_store_dwordx4 {vr(accW+4*g,4)}, v{vT1}, s[{srdWS}:{srdWS+3}], s{sT2} offen{SC}")
    a("s_mov_b64 exec, -1")
    a.label(f"{name}_fo2")
    a(f"s_bitcmp1_b32 s{sJob}, 2")
    a(f"s_cbranch_scc0 {name}_fo3")
    a(f"v_mov_b32 v{vT1}, 0")
    a("s_mov_b64 exec, 1")
    a(f"s_mov_b32 s{sT2}, {WS_D + 1024*Y_STRIDE + 1024}")
    a(f"buffer_store_dword v{accW}, v{vT1}, s[{srdWS}:{srdWS+3}], s{sT2} offen{SC}")
    a(f"s_mov_b32 s{sT2}, {WS_E + 1024*Y_STRIDE + 1024}")
    a(f"buffer_store_dword v{accW}, v{vT1}, s[{srdWS}:{srdWS+3}], s{sT2} offen{SC}")
    a("s_mov_b64 exec, -1")
    a.label(f"{name}_fo3")
    lsig(a, vT0, vT1, C_R1)
    a("s_waitcnt vmcnt(0)")
    a(f"s_add_u32 s{sT0}, s2, {FL_D}")
    publish(a, vT0, vT1, sT0)
    a.label(f"{name}_fsig")
    tl_stamp(a, 5)

    Rp = RegAlloc(base, 168)
    vWa = [Rp.alloc("wa0"), Rp.alloc("wa1")]
    vG2 = Rp.alloc("g"); vYa = Rp.alloc("ya"); vOffW = Rp.alloc("offw"); vFl2 = Rp.alloc("fl")
    vYv = Rp.alloc("y", 16)
    fO = Rp.alloc("fO", 64)
    NS = 3
    fW = [Rp.alloc(f"fW{i}", 8) for i in range(NS)]
    acc = [Rp.alloc("acc0", 16), Rp.alloc("acc1", 16)]
    nvmax[0] = max(nvmax[0], Rp.next)
    sTb, sEb, sTt2, sKh2, sT0row, sE0, sMirE = 56, 57, 58, 59, 60, 61, 62
    a(f"s_mov_b32 s{sTb}, s{sHead}")
    a(f"s_mov_b32 s{sEb}, s{sQb}")
    a(f"s_and_b32 s{sTt2}, s{sF}, 1")
    a(f"s_lshr_b32 s{sKh2}, s{sF}, 1")
    a(f"s_lshl_b32 s{sT0}, s{sTt2}, 5")
    a(f"s_lshl_b32 s{sT0row}, s{sTb}, 6")
    a(f"s_add_u32 s{sT0row}, s{sT0row}, s{sT0}")
    a(f"s_lshl_b32 s{sT0}, s{sKh2}, 5")
    a(f"s_lshl_b32 s{sE0}, s{sEb}, 6")
    a(f"s_add_u32 s{sE0}, s{sE0}, s{sT0}")
    srd(a, srdA, sOut, 2048*1024)
    a(f"v_lshrrev_b32 v{vT0}, 3, v{vLane}")
    a(f"v_lshlrev_b32 v{vOffW}, 10, v{vT0}")
    a(f"v_bfe_u32 v{vT1}, v{vLane}, 4, 1")
    a(f"v_bfe_u32 v{vT2}, v{vLane}, 2, 1")
    a(f"v_xor_b32 v{vT1}, v{vT1}, v{vT2}")
    a(f"v_lshlrev_b32 v{vT1}, 6, v{vT1}")
    a(f"v_add_u32 v{vOffW}, v{vOffW}, v{vT1}")
    a(f"v_and_b32 v{vT1}, 3, v{vLane}")
    a(f"v_lshlrev_b32 v{vT1}, 4, v{vT1}")
    a(f"v_add_u32 v{vOffW}, v{vOffW}, v{vT1}")
    a(f"v_bfe_u32 v{vT0}, v{vLane}, 2, 2")
    a(f"v_lshrrev_b32 v{vT1}, 5, v{vLane}")
    a(f"v_lshlrev_b32 v{vT1}, 2, v{vT1}")
    a(f"v_add_u32 v{vT0}, v{vT0}, v{vT1}")
    a(f"v_lshlrev_b32 v{vT0}, 7, v{vT0}")
    a(f"v_bfe_u32 v{vT1}, v{vLane}, 4, 1")
    a(f"v_lshlrev_b32 v{vT1}, 5, v{vT1}")
    a(f"v_add_u32 v{vT0}, v{vT0}, v{vT1}")
    a(f"v_and_b32 v{vT1}, 3, v{vLane}")
    a(f"v_lshlrev_b32 v{vT1}, 3, v{vT1}")
    a(f"v_add_u32 v{vT0}, v{vT0}, v{vT1}")
    a(f"s_lshl_b32 s{sT0}, s{sKh2}, 15")
    a(f"v_add_u32 v{vT0}, s{sT0}, v{vT0}")
    a(f"v_bfe_u32 v{vT1}, v{vLane}, 3, 1")
    for et in range(2):
        a(f"v_xor_b32 v{vT2}, {et}, v{vT1}")
        a(f"v_lshlrev_b32 v{vT2}, 6, v{vT2}")
        a(f"v_add_u32 v{vWa[et]}, v{vT0}, v{vT2}")
    a(f"v_and_b32 v{vT0}, 31, v{vLane}")
    a(f"v_add_u32 v{vT0}, s{sT0row}, v{vT0}")
    a(f"v_lshlrev_b32 v{vG2}, 2, v{vT0}")
    a(f"v_sub_u32 v{vT1}, 2048, v{vT0}")
    a(f"s_cmp_lt_u32 s{sT0row}, 1024")
    a("s_cselect_b64 vcc, -1, 0")
    a(f"s_cselect_b32 s{sT2}, 1, 0")
    a(f"v_cndmask_b32 v{vT1}, v{vT1}, v{vT0}, vcc")
    a(f"v_mul_u32_u24 v{vYa}, {Y_STRIDE}, v{vT1}")
    a(f"v_lshrrev_b32 v{vT1}, 5, v{vLane}")
    a(f"v_lshlrev_b32 v{vT1}, 4, v{vT1}")
    a(f"s_cmp_lt_u32 s{sE0}, 256")
    a(f"s_cselect_b32 s{sMirE}, 0, 1")
    a(f"s_cselect_b32 s63, 1, 0")
    a(f"s_cbranch_scc0 {name}_mir")
    a(f"v_add_u32 v{vYa}, v{vYa}, v{vT1}")
    a(f"s_lshl_b32 s{sT1}, s{sE0}, 2")
    a(f"s_branch {name}_ya")
    a.label(f"{name}_mir")
    a(f"s_sub_u32 s{sT1}, 485, s{sE0}")
    a(f"s_lshl_b32 s{sT1}, s{sT1}, 2")
    a(f"v_add_u32 v{vYa}, s{sT1}, v{vYa}")
    a(f"v_sub_u32 v{vYa}, v{vYa}, v{vT1}")
    a(f"s_mov_b32 s{sT1}, 0")
    a.label(f"{name}_ya")
    a(f"s_cmp_eq_u32 s{sT2}, s63")
    a(f"s_mov_b32 s{sT3}, {WS_E}")
    a(f"s_cselect_b32 s{sT2}, {WS_D}, s{sT3}")
    a(f"s_add_u32 s63, s{sT1}, s{sT2}")
    for e in range(2):
        for i in range(16):
            a(f"v_mov_b32 v{acc[e]+i}, 0")
    a(f"s_lshl_b32 s{sT0}, s{sKh2}, 8")
    a(f"s_lshl_b32 s{sT1}, s{sTt2}, 7")
    a(f"s_add_u32 s{sT0}, s{sT0}, s{sT1}")
    a(f"s_lshl_b32 s30, s{sT0}, 7")
    a(f"s_lshl_b32 s{sT0}, s{sT0}, 10")
    a(f"s_lshl_b32 s{sT1}, s{sEb}, 7")
    a(f"s_add_u32 s{sT2}, s{sT0}, s{sT1}")
    for m in range(16):
        a(f"s_add_u32 s{sT1}, s{sT2}, {m*8192}")
        a(f"buffer_load_dwordx4 {vr(fO+4*m,4)}, v{vOffW}, s[{srdC}:{srdC+3}], s{sT1} offen")
    a(f"s_cmp_lg_u32 s{sF}, 0")
    a(f"s_cbranch_scc1 {name}_c1")
    a(f"v_lshlrev_b32 v{vFl2}, {FSH}, v{vLane}")
    a(f"v_add_u32 v{vFl2}, {WS_FLAG + (FL_D << FSH)}, v{vFl2}")
    gpoll_multi(a, vFl2, vYv, 4, 64 << FSH, f"{name}_gd", sCnt, sleep=8)
    lsig(a, vT0, vT1, C_GO3)
    a(f"s_branch {name}_c2")
    a.label(f"{name}_c1")
    lwait(a, vT0, vT1, sT0, C_GO3, 1, f"{name}_cw1", sleep=16)
    a.label(f"{name}_c2")
    a(f"s_mov_b32 s{sT1}, {WS_G}")
    a(f"buffer_load_dword v{vG2}, v{vG2}, s[{srdWS}:{srdWS+3}], s{sT1} offen{SC}")
    for c in range(4):
        a(f"buffer_load_dwordx4 {vr(vYv+4*c,4)}, v{vYa}, s[{srdWS}:{srdWS+3}], s63 offen offset:{c*32}{SC}")
    tl_stamp(a, 6)
    a(f"v_and_b32 v{vT0}, 31, v{vLane}")
    a(f"s_lshr_b32 s{sT0}, s{sHead}, 2")
    a(f"s_lshl_b32 s{sT0}, s{sT0}, 5")
    a(f"v_add_u32 v{vT0}, s{sT0}, v{vT0}")
    a(f"v_lshlrev_b32 v{vFl2}, {FSH}, v{vT0}")
    a(f"v_add_u32 v{vFl2}, {WS_FLAG + (FL_O << FSH)}, v{vFl2}")
    a(f"v_add_u32 v{vOffW}, s30, v{vL16}")
    a(f"s_lshl_b32 s{sT0}, s{sTb}, 1")
    a(f"s_add_u32 s{sT0}, s{sT0}, s{sTt2}")
    a(f"s_lshl_b32 s{sT0}, s{sT0}, 5")
    a(f"s_lshl_b32 s{sT1}, s{sKh2}, 4")
    a(f"s_add_u32 s{sT0}, s{sT0}, s{sT1}")
    a(f"s_lshl_b32 s{sT0}, s{sT0}, 10")
    a(f"s_add_u32 s30, s{sT0}, {WS_O}")
    a("s_waitcnt vmcnt(0)")
    lwait(a, vT0, vT1, sT0, C_ADONE, 8, f"{name}_cw2", sleep=3)
    tl_stamp(a, 7)
    for m in range(16):
        a(f"ds_write_b128 v{vOffW}, {vr(fO+4*m,4)} offset:{m*1024}")
    a("s_waitcnt lgkmcnt(0)")
    a(f"s_lshl_b32 s{sT0}, s{sKh2}, 2")
    a(f"s_add_u32 s31, s{sT0}, {C_W}")
    lsig(a, vT0, vT1, "s31")
    tl_stamp(a, 1)
    a(f"s_cmp_lg_u32 s{sF}, 0")
    a(f"s_cbranch_scc1 {name}_c3")
    gpoll(a, vFl2, vT0, f"{name}_go", 55, sleep=2)
    lsig(a, vT0, vT1, C_GO3)
    a(f"s_branch {name}_c4")
    a.label(f"{name}_c3")
    lwait(a, vT0, vT1, sT0, C_GO3, 2, f"{name}_cw3", sleep=1)
    a.label(f"{name}_c4")
    tl_stamp(a, 8)
    a(f"s_mov_b32 s55, 32")
    a.label(f"{name}_oload")
    for i in range(16):
        a(f"s_add_u32 s{sT1}, s30, {i*1024}")
        a(f"buffer_load_dwordx4 {vr(fO+4*i,4)}, v{vL16}, s[{srdWS}:{srdWS+3}], s{sT1} offen{SC}")
    lwait(a, vT0, vT1, sT0, "s31", 2, f"{name}_cw4", sleep=0)
    a(f"v_mov_b32 v{vFl2}, 0")
    def wreads(i):
        s = i % NS
        for et in range(2):
            for u in range(2):
                a(f"ds_read_b64_tr_b16 {vr(fW[s]+4*et+2*u,2)}, v{vWa[et]} offset:{i*2048 + u*1024}")
    tl_stamp(a, 2)
    wreads(0); wreads(1)
    for i in range(16):
        if i == 1: tl_stamp(a, 3)
        if i == 8: tl_stamp(a, 4)
        if i + 2 < 16:
            wreads(i + 2)
            a(f"s_waitcnt vmcnt({15-i}) lgkmcnt(8)")
        else:
            a(f"s_waitcnt vmcnt({15-i}) lgkmcnt({4*(15-i)})")
        for et in range(2):
            a(f"v_mfma_f32_32x32x16_bf16 {vr(acc[et],16)}, {vr(fW[i%NS]+4*et,4)}, {vr(fO+4*i,4)}, {vr(acc[et],16)}")
        a(f"v_max3_u32 v{vFl2}, v{vFl2}, v{fO+4*i}, v{fO+4*i+1}")
        a(f"v_max3_u32 v{vFl2}, v{vFl2}, v{fO+4*i+2}, v{fO+4*i+3}")
    a(f"v_cmp_eq_u32 vcc, -1, v{vFl2}")
    a("s_nop 4")
    a(f"s_cbranch_vccz {name}_ook")
    a(f"s_sub_u32 s55, s55, 1")
    a(f"s_cbranch_scc1 {name}_ook")
    a("s_nop 15")
    for e in range(2):
        for i in range(16):
            a(f"v_mov_b32 v{acc[e]+i}, 0")
    a("s_sleep 2")
    a(f"s_branch {name}_oload")
    a.label(f"{name}_ook")
    if TL["on"]:
        a("s_sub_u32 s86, 32, s55")
        a("s_add_u32 s86, s86, s90" if TL.get("rt") else "s_add_u32 s86, s86, s92")
    tl_stamp(a, 9)
    a("s_nop 15")
    a(f"s_lshl_b32 s{sT0}, s{sF}, 12")
    a(f"s_add_u32 s{sT0}, s{sT0}, 65536")
    a(f"v_add_u32 v{vT0}, s{sT0}, v{vL16}")
    a(f"s_cmp_eq_u32 s{sKh2}, 0")
    a(f"s_cbranch_scc0 {name}_y1")
    for q in range(4):
        a(f"ds_write_b128 v{vT0}, {vr(acc[1]+4*q,4)} offset:{q*1024}")
    a(f"s_branch {name}_y2")
    a.label(f"{name}_y1")
    for q in range(4):
        a(f"ds_write_b128 v{vT0}, {vr(acc[0]+4*q,4)} offset:{q*1024}")
    for i in range(16):
        a(f"v_mov_b32 v{acc[0]+i}, v{acc[1]+i}")
    a.label(f"{name}_y2")
    a("s_waitcnt lgkmcnt(0)")
    a(f"s_lshl_b32 s{sT0}, s{sTt2}, 2")
    a(f"s_add_u32 s31, s{sT0}, {C_Y}")
    lsig(a, vT1, vT2, "s31")
    lwait(a, vT1, vT2, sT0, "s31", 2, f"{name}_cw5", sleep=0)
    a(f"s_xor_b32 s{sT0}, s{sF}, 2")
    a(f"s_lshl_b32 s{sT0}, s{sT0}, 12")
    a(f"s_add_u32 s{sT0}, s{sT0}, 65536")
    a(f"v_add_u32 v{vT0}, s{sT0}, v{vL16}")
    for q in range(4):
        a(f"ds_read_b128 {vr(fO+4*q,4)}, v{vT0} offset:{q*1024}")
    a("s_waitcnt lgkmcnt(0)")
    S = acc[0]
    for i in range(16):
        a(f"v_add_f32 v{S+i}, v{S+i}, v{fO+i}")
    a(f"s_cmp_eq_u32 s{sMirE}, 0")
    a(f"s_cbranch_scc0 {name}_cm")
    for i in range(16):
        a(f"v_sub_f32 v{S+i}, v{S+i}, v{vYv+i}")
        a(f"v_fma_f32 v{S+i}, v{vG2}, v{S+i}, v{vYv+i}")
    a(f"s_branch {name}_st")
    a.label(f"{name}_cm")
    for g in range(4):
        for r in range(4):
            y = vYv + 4*(3-g) + (3-r)
            a(f"v_sub_f32 v{S+4*g+r}, v{S+4*g+r}, v{y}")
            a(f"v_fma_f32 v{S+4*g+r}, v{vG2}, v{S+4*g+r}, v{y}")
    a.label(f"{name}_st")
    P = fO + 16
    for i in range(8):
        a(f"v_cvt_pk_bf16_f32 v{P+i}, v{S+2*i}, v{S+2*i+1}")
    a(f"v_and_b32 v{vT0}, 31, v{vLane}")
    a(f"v_add_u32 v{vT0}, s{sT0row}, v{vT0}")
    a(f"v_lshlrev_b32 v{vT0}, 10, v{vT0}")
    a(f"v_lshrrev_b32 v{vT1}, 5, v{vLane}")
    a(f"v_lshlrev_b32 v{vT1}, 4, v{vT1}")
    a(f"v_add_u32 v{vT0}, v{vT0}, v{vT1}")
    a(f"s_lshl_b32 s{sT0}, s{sE0}, 1")
    for pr in range(2):
        a(f"v_permlane32_swap_b32 v{P+4*pr}, v{P+4*pr+2}")
        a(f"v_permlane32_swap_b32 v{P+4*pr+1}, v{P+4*pr+3}")
    for pr in range(2):
        a(f"buffer_store_dwordx4 {vr(P+4*pr,4)}, v{vT0}, s[{srdA}:{srdA+3}], s{sT0} offen offset:{32*pr}")
    tl_stamp(a, 10)
    dbg_exit(a, [5, 8, -1], [0, 5], 8, 7)
    if not TL.get("dbg"): tl_exit(a, 2, sWS)
    a("s_endpgm")
```

```python
import sys
from asmlib import *

NAME = "gated_mix__softmax_full_mha__spectral_fnet__prompt"
from common import *
from gen_k1 import gen_k1
from gen_f2 import gen_f2
from gen_k3 import gen_k3
from gen_attn2 import gen_attn2
from gen_k1v2 import gen_k1v2
from gen_k2 import gen_k2
from gen_k3v2 import gen_k3v2
from gen_fused import gen_fused

TIMING = False
OPT = {}
def stamp(a, sreg):
    if TIMING:
        a(f"s_memtime s[{sreg}:{sreg+1}]")
def stamp_store(a, regs, vtmp, vaddr, srd_base, wave_index_sreg, stmp):
    if not TIMING: return
    a("s_waitcnt lgkmcnt(0)")
    a(f"s_lshl_b32 s{stmp}, s{wave_index_sreg}, 6")
    a(f"s_add_u32 s{stmp}, s{stmp}, {WS_T}")
    a(f"v_mov_b32 v{vaddr}, 0")
    for i, r in enumerate(regs):
        a(f"v_mov_b32 v{vtmp}, s{r}")
        a(f"buffer_store_dword v{vtmp}, v{vaddr}, s[{srd_base}:{srd_base+3}], s{stmp} offen offset:{4*i}")

def gen_attn(a, name):
    R = RegAlloc(0, 168)
    v_tid = R.alloc("tid")
    vLane16 = R.alloc("lane16")
    vAK = R.alloc("addrK")
    vAV = R.alloc("addrV")
    vT0 = R.alloc("tmp0")
    vT1 = R.alloc("tmp1")
    vM = R.alloc("m")
    vQ = R.alloc("Q", 4)
    vK = R.alloc("K", 4)
    vV0 = R.alloc("V0", 4)
    vV1 = R.alloc("V1", 4)
    vP = R.alloc("P", 8)
    vS = [R.alloc("S0", 16), R.alloc("S1", 16)]
    vT = R.alloc("T", 16)
    vO = R.alloc("O", 16)
    vC = R.alloc("C", 16)
    nv = R.next
    sWS = 4
    sSRD = 8
    sW, sHead, sQb = 12, 13, 14
    sKoff, sVoff = 15, 16
    sCh = 17
    sIt = 18
    sTmp, sTmp2 = 19, 20
    sMask = 22
    sRetry = 24

    a.raw(kernel_header(name))
    a("s_cmp_ge_u32 s2, 256")
    a(f"s_cbranch_scc1 {name}_end")
    tl_entry(a)
    stamp(a, 40)
    if TIMING: a("s_memrealtime s[54:55]")
    a(f"s_load_dwordx2 s[{sWS}:{sWS+1}], s[0:1], {ARG['ws']}")
    a(f"v_lshrrev_b32 v{vT0}, 6, v0")
    a(f"v_and_b32 v{vT1}, 63, v0")
    a(f"v_readfirstlane_b32 s{sW}, v{vT0}")
    a(f"v_lshlrev_b32 v{vLane16}, 4, v{vT1}")
    a(f"s_and_b32 s{sTmp}, s2, 7")
    a(f"s_lshr_b32 s{sTmp2}, s2, 3")
    a(f"s_lshl_b32 s{sHead}, s{sTmp}, 2")
    a(f"s_and_b32 s{sTmp}, s{sTmp2}, 3")
    a(f"s_add_u32 s{sHead}, s{sHead}, s{sTmp}")
    a(f"s_lshr_b32 s{sQb}, s{sTmp2}, 2")
    a(f"s_mov_b32 s{sMask}, 0x0000ffff")
    a(f"s_mov_b32 s{sMask+1}, 0x0000ffff")
    a(f"s_mov_b32 s{sRetry}, 0")
    a("s_waitcnt lgkmcnt(0)")
    srd(a, sSRD, sWS, WS_SIZE_USED)
    a(f"s_lshl_b32 s{sTmp}, s{sHead}, 6")
    a(f"s_add_u32 s{sTmp}, s{sTmp}, s{sW}")
    a(f"s_lshl_b32 s{sTmp}, s{sTmp}, 10")
    a(f"s_add_u32 s{sKoff}, s{sTmp}, {WS_K}")
    a(f"s_add_u32 s{sVoff}, s{sTmp}, {WS_V}")
    a(f"s_lshl_b32 s{sTmp2}, s{sQb}, 13")
    a(f"s_add_u32 s{sTmp2}, s{sTmp2}, s{sTmp}")
    a(f"buffer_load_dwordx4 {vr(vQ,4)}, v{vLane16}, s[{sSRD}:{sSRD+3}], s{sTmp2} offen")

    def dma_chunk(chunk_sreg=None, const=None):
        if const is not None:
            a(f"s_lshl_b32 s{sTmp}, s{sW}, 10")
            a(f"s_add_u32 s{sTmp}, s{sTmp}, {const*8192}")
            a(f"s_add_u32 s{sTmp2}, s{sKoff}, {const*8192}")
            a(f"s_mov_b32 m0, s{sTmp}")
            a(f"s_add_u32 s{sTmp}, s{sTmp}, 65536")
            a(f"buffer_load_dwordx4 v{vLane16}, s[{sSRD}:{sSRD+3}], s{sTmp2} offen lds")
            a(f"s_add_u32 s{sTmp2}, s{sVoff}, {const*8192}")
            a(f"s_mov_b32 m0, s{sTmp}")
            a("s_nop 0")
            a(f"buffer_load_dwordx4 v{vLane16}, s[{sSRD}:{sSRD+3}], s{sTmp2} offen lds")
        else:
            c = chunk_sreg
            a(f"s_lshl_b32 s{sTmp}, s{sW}, 10")
            a(f"s_lshl_b32 s21, s{c}, 13")
            a(f"s_add_u32 s{sTmp}, s{sTmp}, s21")
            a(f"s_add_u32 s{sTmp2}, s{sKoff}, s21")
            a(f"s_mov_b32 m0, s{sTmp}")
            a(f"s_add_u32 s{sTmp}, s{sTmp}, 65536")
            a(f"buffer_load_dwordx4 v{vLane16}, s[{sSRD}:{sSRD+3}], s{sTmp2} offen lds")
            a(f"s_add_u32 s{sTmp2}, s{sVoff}, s21")
            a(f"s_mov_b32 m0, s{sTmp}")
            a("s_nop 0")
            a(f"buffer_load_dwordx4 v{vLane16}, s[{sSRD}:{sSRD+3}], s{sTmp2} offen lds")

    for c in range(3):
        dma_chunk(const=c)
    a(f"v_lshrrev_b32 v{vT0}, 5, v{vT1}")
    a(f"v_lshlrev_b32 v{vT0}, 8, v{vT0}")
    a(f"v_and_b32 v{vAV}, 15, v{vT1}")
    a(f"v_lshlrev_b32 v{vAV}, 4, v{vAV}")
    a(f"v_add_u32 v{vAV}, v{vAV}, v{vT0}")
    a(f"v_add_u32 v{vAV}, 65536, v{vAV}")
    a(f"v_mov_b32 v{vM}, 0x3f803f80")
    a(f"v_and_b32 v{vAK}, 31, v{vT1}")
    a(f"v_cmp_eq_u32 vcc, 16, v{vAK}")
    a(f"v_cmp_eq_u32 s[26:27], 20, v{vAK}")
    a("s_nop 1")
    a("s_or_b64 vcc, vcc, s[26:27]")
    a("s_nop 1")
    a(f"v_cndmask_b32 v{vT0}, 0, v{vM}, vcc")
    for i in range(4):
        a(f"v_mov_b32 v{vV0+i}, v{vT0}")
        a(f"v_mov_b32 v{vV1+i}, v{vT0}")
    stamp(a, 42)
    a("s_waitcnt vmcnt(2)")
    a("s_barrier")
    stamp(a, 44)
    dma_chunk(const=3)
    a(f"s_mov_b32 s{sCh}, 4")

    def first_max_and_C():
        a(f"ds_read_b128 {vr(vK,4)}, v{vLane16}")
        a("s_waitcnt lgkmcnt(0)")
        a(f"v_mfma_f32_32x32x16_bf16 {vr(vS[0],16)}, {vr(vK,4)}, {vr(vQ,4)}, 0")
        a("s_nop 15")
        a("s_nop 3")
        S = vS[0]
        a(f"v_max3_f32 v{vM}, v{S}, v{S+1}, v{S+2}")
        for i in range(3, 15, 2):
            a(f"v_max3_f32 v{vM}, v{vM}, v{S+i}, v{S+i+1}")
        a(f"v_max_f32 v{vM}, v{vM}, v{S+15}")

    def bcast_negmax():
        a(f"v_mov_b32 v{vT0}, v{vM}")
        a("s_nop 1")
        a(f"v_permlane32_swap_b32 v{vT0}, v{vM}")
        a("s_nop 1")
        a(f"v_max_f32 v{vM}, v{vM}, v{vT0}")
        for i in range(16):
            a(f"v_sub_f32 v{vC+i}, 0, v{vM}")

    def pipeline_init():
        for i in range(16):
            a(f"v_mov_b32 v{vO+i}, 0")
        for i in range(4, 8):
            a(f"v_mov_b32 v{vP+i}, 0")
        a(f"v_mov_b32 v{vAK}, v{vLane16}")
        a(f"ds_read_b128 {vr(vK,4)}, v{vAK}")
        a(f"ds_read_b128 {vr(vT,4)}, v{vAK} offset:1024")
        a("s_waitcnt lgkmcnt(0)")
        a(f"v_mfma_f32_32x32x16_bf16 {vr(vS[0],16)}, {vr(vK,4)}, {vr(vQ,4)}, {vr(vC,16)}")
        a(f"v_mfma_f32_32x32x16_bf16 {vr(vS[1],16)}, {vr(vT,4)}, {vr(vQ,4)}, {vr(vC,16)}")
        a(f"s_mov_b64 exec, s[{sMask}:{sMask+1}]")
        a(f"ds_read_b128 {vr(vV0,4)}, v{vAV}")
        a("s_mov_b64 exec, -1")
        a(f"ds_read_b128 {vr(vK,4)}, v{vAK} offset:2048")
        a("s_nop 15")

    def step(u):
        S = vS[u & 1]
        e = lambda i: a(f"v_exp_f32 v{vT+i}, v{S+i}")
        c = lambda i: a(f"v_cvt_pk_bf16_f32 v{vP+i}, v{vT+2*i}, v{vT+2*i+1}")
        e(0); e(1); e(2); c(0); e(3); e(4)
        a("s_waitcnt lgkmcnt(2)")
        a(f"v_mfma_f32_32x32x16_bf16 {vr(vO,16)}, {vr(vV1,4)}, {vr(vP+4,4)}, {vr(vO,16)}")
        if not OPT.get("noexec"): a(f"s_mov_b64 exec, s[{sMask}:{sMask+1}]")
        if not OPT.get("nolds"): a(f"ds_read_b128 {vr(vV1,4)}, v{vAV} offset:{(2*u+1)*512}")
        if not OPT.get("noexec"): a("s_mov_b64 exec, -1")
        c(1); e(5); e(6); c(2); e(7); e(8); c(3); e(9); e(10)
        a("s_waitcnt lgkmcnt(2)")
        a(f"v_mfma_f32_32x32x16_bf16 {vr(vO,16)}, {vr(vV0,4)}, {vr(vP,4)}, {vr(vO,16)}")
        if not OPT.get("noexec"): a(f"s_mov_b64 exec, s[{sMask}:{sMask+1}]")
        if not OPT.get("nolds"): a(f"ds_read_b128 {vr(vV0,4)}, v{vAV} offset:{(2*u+2)*512}")
        if not OPT.get("noexec"): a("s_mov_b64 exec, -1")
        e(11); c(4); e(12); c(5); e(13); e(14); c(6); e(15)
        a("s_waitcnt lgkmcnt(2)")
        a(f"v_mfma_f32_32x32x16_bf16 {vr(S,16)}, {vr(vK,4)}, {vr(vQ,4)}, {vr(vC,16)}")
        if not OPT.get("nolds"): a(f"ds_read_b128 {vr(vK,4)}, v{vAK} offset:{(u+3)*1024}")
        c(7)

    def main_loop(sync, lbl):
        a(f"s_mov_b32 s{sIt}, 8")
        a.label(lbl)
        for u in range(8):
            step(u)
        a(f"v_add_u32 v{vAK}, 8192, v{vAK}")
        a(f"v_add_u32 v{vAV}, 8192, v{vAV}")
        if sync and not OPT.get("nosync"):
            a("s_waitcnt vmcnt(2)")
            a("s_barrier")
            a(f"s_min_u32 s25, s{sCh}, 7")
            dma_chunk(chunk_sreg=25)
            a(f"s_add_u32 s{sCh}, s{sCh}, 1")
        a(f"s_sub_u32 s{sIt}, s{sIt}, 1")
        a(f"s_cmp_lg_u32 s{sIt}, 0")
        a(f"s_cbranch_scc1 {lbl}")
        a("s_waitcnt lgkmcnt(0)")
        a(f"v_mfma_f32_32x32x16_bf16 {vr(vO,16)}, {vr(vV1,4)}, {vr(vP+4,4)}, {vr(vO,16)}")

    first_max_and_C()
    bcast_negmax()
    pipeline_init()
    stamp(a, 46)
    main_loop(True, f"{name}_loop")
    stamp(a, 48)
    a.label(f"{name}_epi")
    a("s_nop 15")
    a("s_nop 3")
    a(f"s_cmp_lg_u32 s{sRetry}, 0")
    a(f"s_cbranch_scc1 {name}_fin")
    a(f"v_mov_b32 v{vT0}, 0x5d800000")
    a(f"v_cmp_nle_f32 vcc, v{vO+8}, v{vT0}")
    a("s_nop 4")
    a(f"s_cbranch_vccnz {name}_fallback")
    a.label(f"{name}_fin")
    a(f"v_rcp_f32 v{vT0}, v{vO+8}")
    a("s_nop 0")
    for i in range(8):
        a(f"v_mul_f32 v{vO+i}, v{vO+i}, v{vT0}")
    for i in range(4):
        a(f"v_cvt_pk_bf16_f32 v{vP+i}, v{vO+2*i}, v{vO+2*i+1}")
    a(f"s_lshl_b32 s{sTmp}, s{sQb}, 3")
    a(f"s_add_u32 s{sTmp}, s{sTmp}, s{sW}")
    a(f"s_lshl_b32 s{sTmp}, s{sTmp}, 5")
    a(f"s_add_u32 s{sTmp}, s{sTmp}, s{sHead}")
    a(f"s_lshl_b32 s{sTmp}, s{sTmp}, 10")
    a(f"s_add_u32 s{sTmp}, s{sTmp}, {WS_O}")
    a(f"buffer_store_dwordx4 {vr(vP,4)}, v{vLane16}, s[{sSRD}:{sSRD+3}], s{sTmp} offen")
    if TIMING:
        stamp(a, 50)
        a("s_memrealtime s[56:57]")
        a(f"s_lshl_b32 s52, s2, 3")
        a(f"s_add_u32 s52, s52, s{sW}")
        stamp_store(a, [40, 42, 44, 46, 48, 50, 54, 56], vT0, vT1, sSRD, 52, 53)
    tl_exit(a, 1, sWS)
    a("s_endpgm")
    a.label(f"{name}_fallback")
    a(f"s_mov_b32 s{sRetry}, 1")
    a(f"v_mov_b32 v{vAK}, v{vLane16}")
    a(f"v_mov_b32 v{vM}, 0xff800000")
    a(f"s_mov_b32 s{sIt}, 64")
    a.label(f"{name}_maxloop")
    a(f"ds_read_b128 {vr(vK,4)}, v{vAK}")
    a("s_waitcnt lgkmcnt(0)")
    a(f"v_mfma_f32_32x32x16_bf16 {vr(vS[0],16)}, {vr(vK,4)}, {vr(vQ,4)}, 0")
    a(f"v_add_u32 v{vAK}, 1024, v{vAK}")
    a("s_nop 15")
    a("s_nop 3")
    S = vS[0]
    for i in range(0, 16, 2):
        a(f"v_max3_f32 v{vM}, v{vM}, v{S+i}, v{S+i+1}")
    a(f"s_sub_u32 s{sIt}, s{sIt}, 1")
    a(f"s_cmp_lg_u32 s{sIt}, 0")
    a(f"s_cbranch_scc1 {name}_maxloop")
    bcast_negmax()
    a(f"v_subrev_u32 v{vAV}, 65536, v{vAV}")
    a(f"s_mov_b64 exec, s[{sMask}:{sMask+1}]")
    for i in range(4):
        a(f"v_mov_b32 v{vV1+i}, 0")
    a("s_mov_b64 exec, -1")
    pipeline_init()
    main_loop(False, f"{name}_loop2")
    a(f"s_branch {name}_epi")
    a.label(f"{name}_end")
    a("s_endpgm")
    return nv

HEADER = """; Kernarg layout for this problem (96 bytes, ptrs only, base s[0:1]):
"""

SINGLE = False
def build(kernels, launches, path):
    a = Asm()
    descs = []
    for (name, fn, kw) in kernels:
        nv = fn(a, name)
        descs.append(kernel_desc(name, nv, **kw))
    txt = HEADER
    for (k, g, b, lds) in launches:
        if SINGLE:
            txt += f"; @launch grid=({g},1,1) block=({b},1,1) lds={lds}\n"
        else:
            txt += f"; @launch kernel={k} grid=({g},1,1) block=({b},1,1) lds={lds}\n"
    txt += '.amdgcn_target "amdgcn-amd-amdhsa--gfx950"\n.text\n'
    txt += a.text()
    txt += '.section .rodata,"a"\n' + "".join(descs)
    open(path, "w").write(txt)

if __name__ == "__main__":
    mode = sys.argv[1]; path = sys.argv[2]
    TIMING = "t" in sys.argv[3:]
    TL["on"] = "tl" in sys.argv[3:] or "rt" in sys.argv[3:]
    TL["rt"] = "rt" in sys.argv[3:]
    if "dbg" in sys.argv[3:]:
        TL["on"] = True; TL["rt"] = True; TL["dbg"] = True
    import gen_fused_b
    for o in sys.argv[3:]:
        gen_fused_b.EXP[o] = True
        if "=" in o:
            k, v = o.split("="); gen_fused_b.PAR[k] = eval(v)
            import gen_fused as GF
            if hasattr(GF, k): setattr(GF, k, eval(v))
    SINGLE = "single" in sys.argv[3:]
    for o in sys.argv[3:]:
        OPT[o] = True
    K = dict(k1=("k1_kernel", gen_k1, dict(sgpr=102), ("k1_kernel", 251, 256, 131072)),
             attn=("attn_kernel", gen_attn, dict(sgpr=102), ("attn_kernel", 256, 512, 131072)),
             attn2=("attn_kernel", gen_attn2, dict(sgpr=102), ("attn_kernel", 256, 512, 131072 + 8*2304)),
             k1v2=("k1_kernel", gen_k1v2, dict(sgpr=102), ("k1_kernel", 256, 768, 163840)),
             k2=("k2_kernel", gen_k2, dict(sgpr=102), ("k2_kernel", 256, 768, 163840)),
             k3v2=("k3_kernel", gen_k3v2, dict(sgpr=102), ("k3_kernel", 256, 512, 131072)),
             fused=(NAME + "_kernel", gen_fused, dict(sgpr=102), (NAME + "_kernel", 256, 768, 163840)),
             f2=("f2_kernel", gen_f2, dict(sgpr=102), ("f2_kernel", 297, 256, 32768)),
             k3=("k3_kernel", gen_k3, dict(sgpr=102), ("k3_kernel", 256, 256, 131072)))
    sel = dict(all=["k1", "attn", "f2", "k3"], all2=["k1", "attn2", "f2", "k3"], all3=["k1v2", "attn2", "f2", "k3"], all4=["k1v2", "k2", "k3"], all5=["k1v2", "k2", "k3v2"]).get(mode, mode.split(","))
    build([K[k][:3] for k in sel], [K[k][3] for k in sel], path)
```

```python
from asmlib import *
from common import *
import struct
def f2u(f): return struct.unpack("<I", struct.pack("<f", f))[0]
QSCALE = 0.25 * 1.4426950408889634

WS_FLAG = 14 * (1 << 20) + 65536
FL_Q, FL_F1, FL_E, FL_D, FL_O = 0, 256, 512, 768, 1024
FSH = 5
VG = 544
VHALF = 64 * VG
LDS_CNT = 65536 + 128 * VG
C_NONCE, C_GO, C_KV0, C_KV, C_GO2, C_R0, C_R1, C_F, C_ADONE, C_GO3 = [LDS_CNT + 4*i for i in range(10)]
C_X = LDS_CNT + 48
C_W = LDS_CNT + 64
C_Y = LDS_CNT + 72
C_SLOT = LDS_CNT + 80
C_ST = LDS_CNT + 84
C_ED = LDS_CNT + 88
C_RDY = LDS_CNT + 128
C_QUE = LDS_CNT + 192
LDS_RED = LDS_CNT + 256
NBUF = 4
TOUCH = 0
FB = 24576
NFB = 5
K1_SCHED = [[(2,0),(2,1),(3,0)], [(3,1)], [(4,0),(4,1)], [(5,0),(5,1)], [(6,0),(6,1)], [(7,0),(7,1)], [], []]
SPIN_MAX = 1 << 16
SC = " sc1"

sX, sWq, sWo, sSre, sSim, sHre, sHim, sGate, sOut, sDbg, sWS = 4, 6, 8, 12, 14, 16, 18, 20, 22, 24, 26
sW, sN = 28, 29
srdWS, srdA, srdB, srdC = 32, 36, 40, 44
sT0, sT1, sT2, sT3 = 48, 49, 50, 51

def gpoll(a, vaddr, vdat, label, scnt, sleep=6):
    a(f"s_mov_b32 s{scnt}, {SPIN_MAX}")
    a.label(label)
    a(f"global_load_dword v{vdat}, v{vaddr}, s[{sWS}:{sWS+1}] sc1")
    a("s_waitcnt vmcnt(0)")
    a(f"v_cmp_ne_u32 vcc, s{sN}, v{vdat}")
    a(f"s_sub_u32 s{scnt}, s{scnt}, 1")
    a(f"s_cbranch_scc1 {label}_ok")
    a("s_nop 2")
    a(f"s_cbranch_vccz {label}_ok")
    a(f"s_sleep {sleep}")
    a(f"s_branch {label}")
    a.label(f"{label}_ok")

def gpoll_multi(a, vaddr, vdat0, n, stride, label, scnt, sleep=6):
    a(f"s_mov_b32 s{scnt}, {SPIN_MAX}")
    a.label(label)
    for i in range(n):
        if i*stride < 4096:
            a(f"global_load_dword v{vdat0+i}, v{vaddr}, s[{sWS}:{sWS+1}] offset:{i*stride} sc1")
        else:
            a(f"v_add_u32 v{vdat0+n}, {i*stride}, v{vaddr}")
            a(f"global_load_dword v{vdat0+i}, v{vdat0+n}, s[{sWS}:{sWS+1}] sc1")
    a("s_waitcnt vmcnt(0)")
    a(f"v_cmp_ne_u32 vcc, s{sN}, v{vdat0}")
    for i in range(1, n):
        a(f"v_cmp_ne_u32 s[{sT0}:{sT0+1}], s{sN}, v{vdat0+i}")
        a("s_nop 1")
        a(f"s_or_b64 vcc, vcc, s[{sT0}:{sT0+1}]")
    a(f"s_sub_u32 s{scnt}, s{scnt}, 1")
    a(f"s_cbranch_scc1 {label}_ok")
    a("s_nop 2")
    a(f"s_cbranch_vccz {label}_ok")
    a(f"s_sleep {sleep}")
    a(f"s_branch {label}")
    a.label(f"{label}_ok")

def lwait(a, vaddr, vtmp, stmp, off, target, label, sleep=1):
    a(f"v_mov_b32 v{vaddr}, {off}" if isinstance(off, int) else f"v_mov_b32 v{vaddr}, {off}")
    a(f"s_mov_b32 s{sT3}, {SPIN_MAX*16}")
    a.label(label)
    a(f"ds_read_b32 v{vtmp}, v{vaddr}")
    a("s_waitcnt lgkmcnt(0)")
    a(f"v_readfirstlane_b32 s{stmp}, v{vtmp}")
    a(f"s_sub_u32 s{sT3}, s{sT3}, 1")
    a(f"s_cbranch_scc1 {label}_ok")
    a("s_nop 1")
    a(f"s_cmp_ge_u32 s{stmp}, {target}")
    a(f"s_cbranch_scc1 {label}_ok")
    if sleep: a(f"s_sleep {sleep}")
    a(f"s_branch {label}")
    a.label(f"{label}_ok")

def lsig(a, vaddr, vtmp, off):
    a(f"v_mov_b32 v{vaddr}, {off}")
    a(f"v_mov_b32 v{vtmp}, 1")
    a("s_mov_b64 exec, 1")
    a(f"ds_add_u32 v{vaddr}, v{vtmp}")
    a("s_mov_b64 exec, -1")

def publish(a, vaddr, vtmp, sidx):
    a(f"s_lshl_b32 s{sT3}, s{sidx}, {FSH}")
    a(f"s_add_u32 s{sT3}, s{sT3}, {WS_FLAG}")
    a(f"v_mov_b32 v{vaddr}, s{sT3}")
    a(f"v_mov_b32 v{vtmp}, s{sN}")
    a("s_mov_b64 exec, 1")
    a(f"global_store_dword v{vaddr}, v{vtmp}, s[{sWS}:{sWS+1}] sc1")
    a("s_mov_b64 exec, -1")

def read_nonce(a, vaddr, vtmp):
    a(f"v_mov_b32 v{vaddr}, {C_NONCE}")
    a(f"ds_read_b32 v{vtmp}, v{vaddr}")
    a("s_waitcnt lgkmcnt(0)")
    a(f"v_readfirstlane_b32 s{sN}, v{vtmp}")
    a("s_nop 3")

def gen_fused(a, name):
    R = RegAlloc(0, 168)
    R.alloc("tid")
    vLane = R.alloc("lane"); vL16 = R.alloc("l16")
    vT0 = R.alloc("t0"); vT1 = R.alloc("t1"); vT2 = R.alloc("t2"); vT3 = R.alloc("t3")
    base = R.next
    nvmax = [0]
    sTok0, sN0, sNb, sSign, sWm, sWn = 52, 53, 54, 55, 56, 57
    sXoff, sWoff, sLdsX, sLdsW = 58, 59, 60, 61

    a.raw(kernel_header(name))
    a("s_cmp_ge_u32 s2, 256")
    a(f"s_cbranch_scc1 {name}_end")
    tl_entry(a)
    a("s_load_dwordx16 s[4:19], s[0:1], 0")
    a("s_load_dwordx8 s[20:27], s[0:1], 64")
    a(f"v_lshrrev_b32 v{vT0}, 6, v0")
    a(f"v_and_b32 v{vLane}, 63, v0")
    a(f"v_readfirstlane_b32 s{sW}, v{vT0}")
    a(f"v_lshlrev_b32 v{vL16}, 4, v{vLane}")
    a("s_cmp_ge_u32 s2, 192")
    a(f"s_cbranch_scc1 {name}_decF")
    a(f"s_and_b32 s{sT0}, s2, 7")
    a(f"s_lshr_b32 s{sT1}, s2, 3")
    a(f"s_lshr_b32 s{sT2}, s{sT0}, 1")
    a(f"s_lshl_b32 s{sT2}, s{sT2}, 2")
    a(f"s_and_b32 s{sTok0}, s{sT1}, 3")
    a(f"s_add_u32 s{sTok0}, s{sTok0}, s{sT2}")
    a(f"s_and_b32 s{sT0}, s{sT0}, 1")
    a(f"s_mul_i32 s{sT0}, s{sT0}, 6")
    a(f"s_lshr_b32 s{sNb}, s{sT1}, 2")
    a(f"s_add_u32 s{sNb}, s{sNb}, s{sT0}")
    a(f"s_lshl_b32 s62, s{sNb}, 4")
    a(f"s_add_u32 s62, s62, s{sTok0}")
    a(f"s_lshl_b32 s{sTok0}, s{sTok0}, 7")
    a(f"s_lshl_b32 s{sN0}, s{sNb}, 7")
    a(f"s_branch {name}_dec")
    a.label(f"{name}_decF")
    a(f"s_sub_u32 s{sT0}, s2, 192")
    a(f"s_add_u32 s62, s{sT0}, {FL_F1}")
    a(f"s_lshr_b32 s{sT1}, s{sT0}, 3")
    a(f"s_lshr_b32 s{sSign}, s{sT1}, 2")
    a(f"s_and_b32 s{sT1}, s{sT1}, 3")
    a(f"s_and_b32 s{sNb}, s{sT0}, 1")
    a(f"s_bfe_u32 s{sT2}, s{sT0}, 0x20001")
    a(f"s_lshl_b32 s{sT3}, s{sT2}, 3")
    a(f"s_lshr_b32 s{sT3}, 0x040c0800, s{sT3}")
    a(f"s_and_b32 s{sT3}, s{sT3}, 0xff")
    a(f"s_add_u32 s{sT1}, s{sT1}, s{sT3}")
    a(f"s_lshl_b32 s{sTok0}, s{sT1}, 6")
    a(f"s_lshl_b32 s{sN0}, s{sNb}, 7")
    a.label(f"{name}_dec")
    a(f"s_cmp_ge_u32 s{sW}, 8")
    a(f"s_cbranch_scc1 {name}_edge")
    a(f"s_cmp_lt_u32 s{sW}, 4")
    a(f"s_cbranch_scc1 {name}_cons")

    Rl = RegAlloc(base, 168)
    vOffX = [Rl.alloc("offX0"), Rl.alloc("offX1")]
    vOffW = Rl.alloc("offW")
    vRowMain = Rl.alloc("rowmain", 2); vRowMir = Rl.alloc("rowmir", 2)
    vWr = Rl.alloc("wr")
    vSt = Rl.alloc("stage", 64)
    vFo = Rl.alloc("fold", 8)
    ER = Rl.alloc("edge", 32)
    nvmax[0] = max(nvmax[0], Rl.next)
    sLW = 63
    a(f"s_sub_u32 s{sLW}, s{sW}, 4")
    a(f"v_lshrrev_b32 v{vT0}, 3, v{vLane}")
    a(f"v_lshlrev_b32 v{vT0}, 10, v{vT0}")
    a(f"v_lshrrev_b32 v{vT1}, 4, v{vLane}")
    a(f"v_and_b32 v{vT2}, 7, v{vLane}")
    for p in range(2):
        a(f"v_add_u32 v{vT3}, {4*p}, v{vT1}")
        a(f"v_xor_b32 v{vT3}, v{vT3}, v{vT2}")
        a(f"v_lshlrev_b32 v{vT3}, 4, v{vT3}")
        a(f"v_add_u32 v{vOffX[p]}, v{vT0}, v{vT3}")
    a("s_cmp_ge_u32 s2, 192")
    a(f"s_cbranch_scc1 {name}_lF")
    a(f"v_lshrrev_b32 v{vT0}, 4, v{vLane}")
    a(f"v_mul_u32_u24 v{vT1}, 3072, v{vT0}")
    a(f"v_bfe_u32 v{vT2}, v{vLane}, 2, 2")
    a(f"v_xor_b32 v{vT2}, v{vT2}, v{vT0}")
    a(f"v_lshlrev_b32 v{vT2}, 6, v{vT2}")
    a(f"v_add_u32 v{vT1}, v{vT1}, v{vT2}")
    a(f"v_and_b32 v{vT2}, 3, v{vLane}")
    a(f"v_lshlrev_b32 v{vT2}, 4, v{vT2}")
    a(f"v_add_u32 v{vOffW}, v{vT1}, v{vT2}")
    a(f"s_lshl_b32 s{sT0}, s{sLW}, 5")
    a(f"s_add_u32 s{sT0}, s{sT0}, s{sTok0}")
    a(f"s_lshl_b32 s{sXoff}, s{sT0}, 10")
    a(f"s_mul_i32 s{sWoff}, s{sLW}, {16*3072}")
    a(f"s_lshl_b32 s{sT0}, s{sN0}, 1")
    a(f"s_add_u32 s{sWoff}, s{sWoff}, s{sT0}")
    a(f"s_lshl_b32 s{sLdsX}, s{sLW}, 12")
    a(f"s_add_u32 s{sLdsW}, s{sLdsX}, 16384")
    a("s_waitcnt lgkmcnt(0)")
    srd(a, srdA, sX, 2048*1024)
    srd(a, srdB, sWq, 512*3072)
    vm = Vm(a)
    def dma_qkv(st, half=None):
        buf = (st % NBUF) * 32768
        for m in (range(4) if half is None else range(2*half, 2*half+2)):
            a(f"s_add_u32 m0, s{sLdsX}, {buf + m*1024}")
            a(f"s_add_u32 s{sT0}, s{sXoff}, {m*8192 + st*128}")
            a(f"buffer_load_dwordx4 v{vOffX[m&1]}, s[{srdA}:{srdA+3}], s{sT0} offen lds")
            a(f"s_add_u32 m0, s{sLdsW}, {buf + m*1024}")
            a(f"s_add_u32 s{sT0}, s{sWoff}, {(st*64 + 4*m)*3072}")
            a(f"buffer_load_dwordx4 v{vOffW}, s[{srdB}:{srdB+3}], s{sT0} offen lds")
        vm.issue(("S", st), 8 if half is None else 4)
    tl_stamp(a, 0)
    dma_qkv(0); dma_qkv(1)
    from gen_fused_b import emit_edge_loads, emit_edge_compute
    VV = dict(vLane=vLane, vL16=vL16, vT0=vT0, vT1=vT1, vT2=vT2, vT3=vT3)
    for i in range(8):
        vm.wait(("S", i))
        a("s_barrier")
        for (st, h) in K1_SCHED[i]:
            assert st < NBUF or st - NBUF + 2 <= i, (st, i)
            dma_qkv(st, h)
    a("s_barrier")
    tl_stamp(a, 1)
    a(f"s_branch {name}_attn")

    a.label(f"{name}_lF")
    a(f"s_cmp_eq_u32 s{sSign}, 0")
    a(f"s_cbranch_scc1 {name}_lFa")
    a("s_waitcnt lgkmcnt(0)")
    srd(a, srdB, sHim, 512*1024)
    a(f"s_mov_b32 s{srdC}, 0x0000bf80")
    a(f"s_mov_b32 s{srdC+1}, 0xbf800000")
    a(f"s_branch {name}_lFgo")
    a.label(f"{name}_lFa")
    a("s_waitcnt lgkmcnt(0)")
    srd(a, srdB, sHre, 512*1024)
    a(f"s_mov_b32 s{srdC}, 0x00003f80")
    a(f"s_mov_b32 s{srdC+1}, 0x3f800000")
    a.label(f"{name}_lFgo")
    a(f"s_mov_b32 s{srdC+2}, 0x00003f80")
    a(f"s_mov_b32 s{srdC+3}, 0x3f800000")
    a(f"s_lshl_b32 s{sT0}, s{sLW}, 4")
    a(f"s_add_u32 s{sT0}, s{sT0}, s{sTok0}")
    a(f"v_lshrrev_b32 v{vT0}, 3, v{vLane}")
    a(f"v_add_u32 v{vT0}, s{sT0}, v{vT0}")
    for m in range(2):
        a(f"v_add_u32 v{vT1}, {8*m}, v{vT0}")
        a(f"v_and_b32 v{vT2}, 1023, v{vOffX[m&1]}")
        a(f"v_lshl_add_u32 v{vRowMain+m}, v{vT1}, 10, v{vT2}")
        a(f"v_sub_u32 v{vT1}, 2048, v{vT1}")
        a(f"v_lshl_add_u32 v{vRowMir+m}, v{vT1}, 10, v{vT2}")
    a(f"s_lshl_b32 s{sT0}, s{sLW}, 5")
    a(f"s_add_u32 s{sT0}, s{sT0}, s{sN0}")
    a(f"s_lshl_b32 s{sWoff}, s{sT0}, 10")
    a(f"s_lshl_b32 s{sLdsW}, s{sLW}, 12")
    a(f"s_add_u32 s{sLdsW}, s{sLdsW}, 8192")
    a(f"s_lshl_b32 s{sT0}, s{sLW}, 11")
    a(f"v_add_u32 v{vWr}, s{sT0}, v{vL16}")
    srd(a, srdA, sX, 2048*1024)
    vm = Vm(a)
    def f_loadA(st):
        b = vSt + (st & 3) * 16
        a(f"s_mov_b32 s{sT0}, {st*128}")
        for m in range(2):
            a(f"buffer_load_dwordx4 {vr(b+8*m,4)}, v{vRowMain+m}, s[{srdA}:{srdA+3}], s{sT0} offen")
            a(f"buffer_load_dwordx4 {vr(b+8*m+4,4)}, v{vRowMir+m}, s[{srdA}:{srdA+3}], s{sT0} offen")
        vm.issue(("A", st), 4)
    def f_dmaB(st):
        buf = (st % NFB) * FB
        for m in range(4):
            a(f"s_add_u32 m0, s{sLdsW}, {buf + m*1024}")
            a(f"s_add_u32 s{sT0}, s{sWoff}, {m*8192 + st*128}")
            a(f"buffer_load_dwordx4 v{vOffX[m&1]}, s[{srdB}:{srdB+3}], s{sT0} offen lds")
        vm.issue(("B", st), 4)
    def f_fold(st):
        b = vSt + (st & 3) * 16
        buf = (st % NFB) * FB
        for m in range(2):
            M = b + 8*m; Mi = M + 4
            for q in range(4):
                a(f"v_dot2_f32_bf16 v{vFo+2*q}, v{M+q}, s{srdC+2}, 0")
                a(f"v_dot2_f32_bf16 v{vFo+2*q+1}, v{M+q}, s{srdC+3}, 0")
            for q in range(4):
                a(f"v_dot2c_f32_bf16 v{vFo+2*q}, s{srdC}, v{Mi+q}")
                a(f"v_dot2c_f32_bf16 v{vFo+2*q+1}, s{srdC+1}, v{Mi+q}")
            for q in range(4):
                a(f"v_cvt_pk_bf16_f32 v{M+q}, v{vFo+2*q}, v{vFo+2*q+1}")
            if buf + m*1024 <= 65000:
                a(f"ds_write_b128 v{vWr}, {vr(M,4)} offset:{buf + m*1024}")
            else:
                a(f"v_add_u32 v{vT0}, {buf + m*1024}, v{vWr}")
                a(f"ds_write_b128 v{vT0}, {vr(M,4)}")
    tl_stamp(a, 0)
    for st in range(3):
        f_loadA(st); f_dmaB(st)
    for i in range(8):
        vm.wait(("A", i))
        f_fold(i)
        vm.wait(("B", i))
        a("s_waitcnt lgkmcnt(0)")
        a("s_barrier")
        if i == 0:
            f_loadA(3); f_dmaB(3); f_loadA(4); f_dmaB(4)
        elif i + 4 < 8:
            f_loadA(i + 4)
        if i >= 2 and i + 3 < 8:
            f_dmaB(i + 3)
    a("s_barrier")
    tl_stamp(a, 1)
    a(f"s_branch {name}_attn")

    a.label(f"{name}_cons")
    Rc = RegAlloc(base, 168)
    vX = [[Rc.alloc(f"X{s}{j}") for j in range(4)] for s in range(3)]
    vW = [[Rc.alloc(f"W{s}{f}") for f in range(2)] for s in range(2)]
    vH = [[Rc.alloc(f"H{s}{j}") for j in range(4)] for s in range(3)]
    fX = [[Rc.alloc(f"fX{s}{t}", 4) for t in range(2)] for s in range(3)]
    fW = [[Rc.alloc(f"fW{s}{f}", 4) for f in range(2)] for s in range(3)]
    acc = [[Rc.alloc(f"acc{f}{t}", 16) for t in range(2)] for f in range(2)]
    nvmax[0] = max(nvmax[0], Rc.next)
    a(f"s_lshr_b32 s{sWm}, s{sW}, 1")
    a(f"s_and_b32 s{sWn}, s{sW}, 1")
    a(f"v_and_b32 v{vT0}, 31, v{vLane}")
    a(f"v_lshrrev_b32 v{vT1}, 5, v{vLane}")
    a(f"v_lshrrev_b32 v{vT2}, 1, v{vT0}")
    a(f"v_and_b32 v{vT2}, 7, v{vT2}")
    a(f"v_xor_b32 v{vT2}, v{vT2}, v{vT1}")
    a(f"v_lshlrev_b32 v{vT2}, 4, v{vT2}")
    a(f"v_lshlrev_b32 v{vT0}, 7, v{vT0}")
    a(f"v_add_u32 v{vT0}, v{vT0}, v{vT2}")
    a("s_cmp_ge_u32 s2, 192")
    a(f"s_cbranch_scc1 {name}_cF")
    a(f"s_lshl_b32 s{sT0}, s{sWn}, 13")
    for j in range(4):
        a(f"v_xor_b32 v{vT3}, {j*32}, v{vT0}")
        a(f"v_add_u32 v{vX[0][j]}, s{sT0}, v{vT3}")
        a(f"v_add_u32 v{vX[1][j]}, 65536, v{vX[0][j]}")
    a(f"v_bfe_u32 v{vT0}, v{vLane}, 2, 2")
    a(f"v_lshrrev_b32 v{vT1}, 5, v{vLane}")
    a(f"v_lshlrev_b32 v{vT1}, 3, v{vT1}")
    a(f"v_add_u32 v{vT1}, v{vT1}, v{vT0}")
    a(f"v_lshlrev_b32 v{vT1}, 8, v{vT1}")
    a(f"v_bfe_u32 v{vT2}, v{vLane}, 4, 1")
    a(f"v_lshlrev_b32 v{vT2}, 5, v{vT2}")
    a(f"v_add_u32 v{vT1}, v{vT1}, v{vT2}")
    a(f"v_and_b32 v{vT2}, 3, v{vLane}")
    a(f"v_lshlrev_b32 v{vT2}, 3, v{vT2}")
    a(f"v_add_u32 v{vT1}, v{vT1}, v{vT2}")
    a(f"v_add_u32 v{vT1}, 16384, v{vT1}")
    a(f"s_lshl_b32 s{sT0}, s{sWm}, 1")
    for f in range(2):
        a(f"s_add_u32 s{sT1}, s{sT0}, {f}")
        a(f"v_xor_b32 v{vT2}, s{sT1}, v{vT0}")
        a(f"v_lshlrev_b32 v{vT2}, 6, v{vT2}")
        a(f"v_add_u32 v{vW[0][f]}, v{vT1}, v{vT2}")
        a(f"v_add_u32 v{vW[1][f]}, 65536, v{vW[0][f]}")
    a("s_waitcnt lgkmcnt(0)")
    if TOUCH:
        a(f"s_lshr_b32 s{sT0}, s2, 3")
        a(f"s_and_b32 s{sT1}, s{sT0}, 3")
        a(f"s_lshr_b32 s{sT0}, s{sT0}, 2")
        a(f"s_cmp_ge_u32 s{sW}, 2")
        a(f"s_cbranch_scc1 {name}_tW")
        a(f"s_cmp_ge_u32 s{sT0}, {8-TOUCH}")
        a(f"s_cselect_b32 s{sT2}, {8-TOUCH}, 0")
        a(f"s_sub_u32 s{sT0}, s{sT0}, s{sT2}")
        a(f"s_add_u32 s{sT0}, s{sT0}, {TOUCH}")
        a(f"s_lshl_b32 s{sT0}, s{sT0}, 7")
        a(f"s_lshl_b32 s{sT2}, s{sW}, 6")
        a(f"s_add_u32 s{sT2}, s{sT2}, s{sTok0}")
        a(f"v_add_u32 v{vT1}, s{sT2}, v{vLane}")
        a(f"v_lshlrev_b32 v{vT1}, 10, v{vT1}")
        a(f"v_add_u32 v{vT1}, s{sT0}, v{vT1}")
        a(f"global_load_dword v{vT2}, v{vT1}, s[{sX}:{sX+1}]")
        a(f"s_branch {name}_tD")
        a.label(f"{name}_tW")
        a(f"s_add_u32 s{sT1}, s{sT1}, {TOUCH}")
        a(f"s_min_u32 s{sT1}, s{sT1}, 7")
        a(f"s_lshl_b32 s{sT1}, s{sT1}, 6")
        a(f"s_sub_u32 s{sT2}, s{sW}, 2")
        a(f"s_lshl_b32 s{sT2}, s{sT2}, 5")
        a(f"s_add_u32 s{sT1}, s{sT1}, s{sT2}")
        a(f"v_lshrrev_b32 v{vT1}, 1, v{vLane}")
        a(f"v_add_u32 v{vT1}, s{sT1}, v{vT1}")
        a(f"v_mul_u32_u24 v{vT1}, 3072, v{vT1}")
        a(f"v_and_b32 v{vT2}, 1, v{vLane}")
        a(f"v_lshlrev_b32 v{vT2}, 7, v{vT2}")
        a(f"v_add_u32 v{vT1}, v{vT1}, v{vT2}")
        a(f"s_lshl_b32 s{sT2}, s{sN0}, 1")
        a(f"v_add_u32 v{vT1}, s{sT2}, v{vT1}")
        a(f"global_load_dword v{vT2}, v{vT1}, s[{sWq}:{sWq+1}]")
        a.label(f"{name}_tD")
    for f in range(2):
        for t in range(2):
            for i in range(16):
                a(f"v_mov_b32 v{acc[f][t]+i}, 0")
    srd(a, srdWS, sWS, WS_SIZE_USED)
    def reads_qkv(st, j, s):
        buf = st % NBUF; hi = buf >> 1; boff = (buf & 1) * 32768
        for t in range(2):
            a(f"ds_read_b128 {vr(fX[s][t],4)}, v{vX[hi][j]} offset:{boff + t*4096}")
        for f in range(2):
            for u in range(2):
                a(f"ds_read_b64_tr_b16 {vr(fW[s][f]+2*u,2)}, v{vW[hi][f]} offset:{boff + (16*j+4*u)*256}")
    def mfmas(s, vtype):
        for f in range(2):
            for t in range(2):
                if vtype:
                    a(f"v_mfma_f32_32x32x16_bf16 {vr(acc[f][t],16)}, {vr(fX[s][t],4)}, {vr(fW[s][f],4)}, {vr(acc[f][t],16)}")
                else:
                    a(f"v_mfma_f32_32x32x16_bf16 {vr(acc[f][t],16)}, {vr(fW[s][f],4)}, {vr(fX[s][t],4)}, {vr(acc[f][t],16)}")
    def consume(reads, nreads, domf):
        a("s_barrier")
        tl_stamp(a, 0)
        reads(0, 0, 0)
        reads(0, 1, 1)
        for n in range(32):
            nn = n + 2
            if nn < 32:
                if nn % 4 == 0:
                    a("s_barrier")
                reads(nn // 4, nn % 4, nn % 3)
                a(f"s_waitcnt lgkmcnt({2*nreads})")
            elif nn == 32:
                a(f"s_waitcnt lgkmcnt({nreads})")
            else:
                a("s_waitcnt lgkmcnt(0)")
            domf(n % 3)
        a("s_barrier")
        tl_stamp(a, 1)
    lab = [0]
    def finish_A():
        lab[0] += 1
        read_nonce(a, vT0, vT1)
        a("s_waitcnt vmcnt(0)")
        a(f"v_mov_b32 v{vT0}, {C_ST}")
        a(f"v_mov_b32 v{vT1}, 1")
        a("s_mov_b64 exec, 1")
        a(f"ds_add_rtn_u32 v{vT2}, v{vT0}, v{vT1}")
        a("s_waitcnt lgkmcnt(0)")
        a("s_mov_b64 exec, -1")
        a(f"v_readfirstlane_b32 s{sT0}, v{vT2}")
        tl_stamp(a, 2)
        a("s_nop 3")
        a(f"s_cmp_lg_u32 s{sT0}, 3")
        a(f"s_cbranch_scc1 {name}_attn")
        publish(a, vT0, vT1, 62)
        a(f"s_branch {name}_attn")
    a(f"s_cmp_ge_u32 s{sNb}, 8")
    a(f"s_cbranch_scc1 {name}_vtype")
    consume(reads_qkv, 6, lambda s: mfmas(s, False))
    a(f"s_cmp_lt_u32 s{sNb}, 4")
    a(f"s_cselect_b32 s{sT2}, {f2u(QSCALE)}, 1.0")
    a(f"s_cselect_b32 s{sT0}, {WS_Q}, {WS_K}")
    a(f"s_and_b32 s{sT1}, s{sNb}, 3")
    a(f"s_lshl_b32 s{sT1}, s{sT1}, 3")
    a(f"s_lshl_b32 s{sT3}, s{sWm}, 2")
    a(f"s_add_u32 s{sT1}, s{sT1}, s{sT3}")
    a(f"s_lshl_b32 s{sT1}, s{sT1}, 16")
    a(f"s_add_u32 s{sT0}, s{sT0}, s{sT1}")
    a(f"s_lshr_b32 s{sT1}, s{sTok0}, 5")
    a(f"s_lshl_b32 s{sT3}, s{sWn}, 1")
    a(f"s_add_u32 s{sT1}, s{sT1}, s{sT3}")
    a(f"s_lshl_b32 s{sT1}, s{sT1}, 10")
    a(f"s_add_u32 s{sT0}, s{sT0}, s{sT1}")
    a("s_nop 3")
    a(f"s_cmp_lt_u32 s{sNb}, 4")
    a(f"s_cbranch_scc0 {name}_noscale")
    for f in range(2):
        for t in range(2):
            for i in range(16):
                a(f"v_mul_f32 v{acc[f][t]+i}, s{sT2}, v{acc[f][t]+i}")
    a.label(f"{name}_noscale")
    for f in range(2):
        for t in range(2):
            A = acc[f][t]
            P = fX[(f*2+t) % 3][0]
            for i in range(8):
                a(f"v_cvt_pk_bf16_f32 v{P+i}, v{A+2*i}, v{A+2*i+1}")
            for hh in range(2):
                a(f"s_add_u32 s{sT1}, s{sT0}, {(f*2+hh)*65536 + t*1024}")
                a(f"buffer_store_dwordx4 {vr(P+4*hh,4)}, v{vL16}, s[{srdWS}:{srdWS+3}], s{sT1} offen{SC}")
    finish_A()
    a.label(f"{name}_vtype")
    consume(reads_qkv, 6, lambda s: mfmas(s, True))
    a(f"s_sub_u32 s{sT1}, s{sNb}, 8")
    a(f"s_lshl_b32 s{sT1}, s{sT1}, 3")
    a(f"s_lshl_b32 s{sT3}, s{sWm}, 2")
    a(f"s_add_u32 s{sT1}, s{sT1}, s{sT3}")
    a(f"s_lshl_b32 s{sT1}, s{sT1}, 16")
    a(f"s_add_u32 s{sT0}, s{sT1}, {WS_V}")
    a(f"s_lshr_b32 s{sT1}, s{sTok0}, 4")
    a(f"s_lshl_b32 s{sT3}, s{sWn}, 2")
    a(f"s_add_u32 s{sT1}, s{sT1}, s{sT3}")
    a(f"s_lshl_b32 s{sT1}, s{sT1}, 9")
    a(f"s_add_u32 s{sT0}, s{sT0}, s{sT1}")
    a(f"v_bfe_u32 v{vT0}, v{vLane}, 4, 1")
    a(f"v_lshlrev_b32 v{vT0}, 16, v{vT0}")
    a(f"v_lshrrev_b32 v{vT1}, 5, v{vLane}")
    a(f"v_lshlrev_b32 v{vT1}, 8, v{vT1}")
    a(f"v_add_u32 v{vT0}, v{vT0}, v{vT1}")
    a(f"v_and_b32 v{vT1}, 15, v{vLane}")
    a(f"v_lshlrev_b32 v{vT1}, 4, v{vT1}")
    a(f"v_add_u32 v{vT0}, v{vT0}, v{vT1}")
    for f in range(2):
        for t in range(2):
            A = acc[f][t]
            P = fX[(f*2+t) % 3][0]
            for i in range(8):
                a(f"v_cvt_pk_bf16_f32 v{P+i}, v{A+2*i}, v{A+2*i+1}")
            for g in range(2):
                a(f"s_add_u32 s{sT1}, s{sT0}, {f*2*65536 + (t*2+g)*512}")
                a(f"buffer_store_dwordx4 {vr(P+4*g,4)}, v{vT0}, s[{srdWS}:{srdWS+3}], s{sT1} offen{SC}")
    finish_A()
    a.label(f"{name}_cF")
    a(f"s_lshl_b32 s{sT0}, s{sWn}, 12")
    a(f"s_lshl_b32 s{sT1}, s{sWm}, 13")
    a(f"s_add_u32 s{sT1}, s{sT1}, 8192")
    for j in range(4):
        a(f"v_xor_b32 v{vT3}, {j*32}, v{vT0}")
        a(f"v_add_u32 v{vX[0][j]}, s{sT0}, v{vT3}")
        a(f"v_add_u32 v{vX[1][j]}, {2*FB}, v{vX[0][j]}")
        a(f"v_add_u32 v{vX[2][j]}, {4*FB}, v{vX[0][j]}")
        a(f"v_add_u32 v{vH[0][j]}, s{sT1}, v{vT3}")
        a(f"v_add_u32 v{vH[1][j]}, {2*FB}, v{vH[0][j]}")
        a(f"v_add_u32 v{vH[2][j]}, {4*FB}, v{vH[0][j]}")
    for f in range(2):
        for i in range(16):
            a(f"v_mov_b32 v{acc[f][0]+i}, 0")
    a("s_waitcnt lgkmcnt(0)")
    srd(a, srdWS, sWS, WS_SIZE_USED)
    def reads_f(st, j, s):
        buf = st % NFB; k = buf >> 1; boff = (buf & 1) * FB
        a(f"ds_read_b128 {vr(fX[s][0],4)}, v{vX[k][j]} offset:{boff}")
        for f in range(2):
            a(f"ds_read_b128 {vr(fW[s][f],4)}, v{vH[k][j]} offset:{boff + f*4096}")
    def mf_f(s):
        for f in range(2):
            a(f"v_mfma_f32_32x32x16_bf16 {vr(acc[f][0],16)}, {vr(fX[s][0],4)}, {vr(fW[s][f],4)}, {vr(acc[f][0],16)}")
    consume(reads_f, 3, mf_f)
    a(f"s_cmp_eq_u32 s{sSign}, 0")
    a(f"s_mov_b32 s{sT3}, {WS_B}")
    a(f"s_cselect_b32 s{sT0}, {WS_A}, s{sT3}")
    a(f"s_cselect_b32 s{sT2}, {A_KSTEPS}, 64")
    a(f"s_lshl_b32 s{sT1}, s{sNb}, 2")
    a(f"s_lshl_b32 s{sT3}, s{sWm}, 1")
    a(f"s_add_u32 s{sT1}, s{sT1}, s{sT3}")
    a(f"s_mul_i32 s{sT1}, s{sT1}, s{sT2}")
    a(f"s_lshr_b32 s{sT3}, s{sTok0}, 4")
    a(f"s_add_u32 s{sT1}, s{sT1}, s{sT3}")
    a(f"s_lshl_b32 s{sT3}, s{sWn}, 1")
    a(f"s_add_u32 s{sT1}, s{sT1}, s{sT3}")
    a(f"s_lshl_b32 s{sT1}, s{sT1}, 10")
    a(f"s_add_u32 s{sT0}, s{sT0}, s{sT1}")
    a(f"s_lshl_b32 s{sT2}, s{sT2}, 10")
    a("s_nop 7")
    for f in range(2):
        A = acc[f][0]
        P = fX[f][0]
        for i in range(8):
            a(f"v_cvt_pk_bf16_f32 v{P+i}, v{A+2*i}, v{A+2*i+1}")
        a("s_nop 1")
        for g in range(2):
            a(f"v_permlane32_swap_b32 v{P+4*g}, v{P+4*g+2}")
            a(f"v_permlane32_swap_b32 v{P+4*g+1}, v{P+4*g+3}")
        if f == 1:
            a(f"s_add_u32 s{sT0}, s{sT0}, s{sT2}")
        for g in range(2):
            a(f"s_add_u32 s{sT1}, s{sT0}, {g*1024}")
            a(f"buffer_store_dwordx4 {vr(P+4*g,4)}, v{vL16}, s[{srdWS}:{srdWS+3}], s{sT1} offen{SC}")
    finish_A()

    from gen_fused_b import gen_attn_part, gen_f_part
    gen_attn_part(a, name, base, nvmax, dict(vLane=vLane, vL16=vL16, vT0=vT0, vT1=vT1, vT2=vT2, vT3=vT3))
    gen_f_part(a, name, base, nvmax, dict(vLane=vLane, vL16=vL16, vT0=vT0, vT1=vT1, vT2=vT2, vT3=vT3))
    a.label(f"{name}_end")
    a("s_endpgm")
    return nvmax[0]
```

```python
from asmlib import *
from common import *
from gen_fused import *

PRIO_MODE = 1
PRIO_SW = (5, 7)
EXP = {}
PAR = {}
sHead, sQb = 52, 53

def decode_hq(a):
    a(f"s_and_b32 s{sT0}, s2, 7")
    a(f"s_lshr_b32 s{sT1}, s2, 3")
    a(f"s_lshl_b32 s{sHead}, s{sT0}, 2")
    a(f"s_and_b32 s{sT0}, s{sT1}, 3")
    a(f"s_add_u32 s{sHead}, s{sHead}, s{sT0}")
    a(f"s_lshr_b32 s{sQb}, s{sT1}, 2")


def edge_regs(r0):
    return dict(vG=r0, vA=r0+4, vB=r0+8, vR=r0+12, vX1=r0+16, vRe=r0+20, vD=r0+24)

def emit_edge_loads(a, name, V, r0, sF, sS):
    vL16 = V["vL16"]
    E = edge_regs(r0); vG, vA, vB, vR, vX1, vRe, vD = [E[k] for k in ("vG","vA","vB","vR","vX1","vRe","vD")]
    a(f"s_lshl_b32 s{sS}, s2, 2")
    a(f"s_add_u32 s{sS}, s{sS}, s{sF}")
    a(f"global_load_dwordx4 {vr(vG,4)}, v{vL16}, s[{sGate}:{sGate+1}]")
    a(f"s_lshl_b32 s{sT0}, s{sS}, 10")
    a(f"buffer_load_dwordx4 {vr(vA,4)}, v{vL16}, s[{srdA}:{srdA+3}], s{sT0} offen")
    a(f"s_sub_u32 s{sT1}, 2048, s{sS}")
    a(f"s_lshl_b32 s{sT1}, s{sT1}, 10")
    a(f"buffer_load_dwordx4 {vr(vB,4)}, v{vL16}, s[{srdA}:{srdA+3}], s{sT1} offen")
    a(f"s_mov_b32 s{sT1}, {1024*1024}")
    a(f"buffer_load_dwordx4 {vr(vX1,4)}, v{vL16}, s[{srdA}:{srdA+3}], s{sT1} offen")
    a(f"s_lshl_b32 s{sT1}, s2, 10")
    a(f"v_add_u32 v{vD}, s{sT1}, v{vL16}")
    a(f"global_load_dwordx4 {vr(vRe,4)}, v{vD}, s[{sHre}:{sHre+1}]")

def emit_edge_compute(a, name, V, r0, sF, sS, sfx):
    vLane, vL16, vT0, vT1, vT2, vT3 = V["vLane"], V["vL16"], V["vT0"], V["vT1"], V["vT2"], V["vT3"]
    E = edge_regs(r0); vG, vA, vB, vR, vX1, vRe, vD = [E[k] for k in ("vG","vA","vB","vR","vX1","vRe","vD")]
    srd(a, srdWS, sWS, WS_SIZE_USED)
    a("s_waitcnt vmcnt(0)")
    a(f"s_mov_b32 s31, 0xbf803f80")
    a(f"v_dot2_f32_bf16 v{vD}, v{vA}, v{vG}, 0")
    a(f"v_dot2_f32_bf16 v{vD+1}, v{vB}, v{vG}, 0")
    a(f"v_dot2_f32_bf16 v{vD+2}, v{vA}, s31, 0")
    a(f"v_dot2_f32_bf16 v{vD+3}, v{vRe}, v{vX1}, 0")
    a(f"v_dot2_f32_bf16 v{vD+4}, v{vX1}, v{vG}, 0")
    a(f"v_dot2_f32_bf16 v{vD+5}, v{vX1}, s31, 0")
    a("s_nop 2")
    for q in range(4):
        if q > 0:
            a(f"v_dot2c_f32_bf16 v{vD}, v{vA+q}, v{vG+q}")
            a(f"v_dot2c_f32_bf16 v{vD+1}, v{vB+q}, v{vG+q}")
            a(f"v_dot2c_f32_bf16 v{vD+2}, s31, v{vA+q}")
            a(f"v_dot2c_f32_bf16 v{vD+3}, v{vRe+q}, v{vX1+q}")
            a(f"v_dot2c_f32_bf16 v{vD+4}, v{vX1+q}, v{vG+q}")
            a(f"v_dot2c_f32_bf16 v{vD+5}, s31, v{vX1+q}")
        a(f"v_dot2c_f32_bf16 v{vD+2}, s31, v{vB+q}")
    a("s_nop 3")
    for ctrl in ["row_shr:1", "row_shr:2", "row_shr:4", "row_shr:8"]:
        for r in range(6):
            a(f"v_add_f32_dpp v{vD+r}, v{vD+r}, v{vD+r} {ctrl} row_mask:0xf bank_mask:0xf bound_ctrl:0")
    for r in range(6):
        a(f"v_add_f32_dpp v{vD+r}, v{vD+r}, v{vD+r} row_bcast:15 row_mask:0xa bank_mask:0xf")
    for r in range(6):
        a(f"v_add_f32_dpp v{vD+r}, v{vD+r}, v{vD+r} row_bcast:31 row_mask:0xc bank_mask:0xf")
    for r in (0, 1, 4):
        a(f"v_mul_f32 v{vD+r}, {f2u(-1.4426950408889634)}, v{vD+r}")
    for r in (0, 1, 4):
        a(f"v_exp_f32 v{vD+r}, v{vD+r}")
    a("s_nop 0")
    for r in (0, 1, 4):
        a(f"v_add_f32 v{vD+r}, 1.0, v{vD+r}")
    for r in (0, 1, 4):
        a(f"v_rcp_f32 v{vD+r}, v{vD+r}")
    a(f"v_cvt_pk_bf16_f32 v{vD+2}, v{vD+2}, 0")
    a(f"v_cvt_pk_bf16_f32 v{vR}, v{vD+3}, 0")
    a(f"v_cvt_pk_bf16_f32 v{vD+5}, v{vD+5}, 0")
    for i in range(1, 4): a(f"v_mov_b32 v{vR+i}, 0")
    for i in range(4): a(f"v_mov_b32 v{vA+i}, 0")
    a(f"v_mov_b32 v{vT1}, 0")
    a("s_mov_b32 exec_lo, 0")
    a("s_mov_b32 exec_hi, 0x80000000")
    a(f"s_lshl_b32 s{sT0}, s{sS}, 2")
    a(f"s_add_u32 s{sT0}, s{sT0}, {WS_G}")
    a(f"buffer_store_dword v{vD}, v{vT1}, s[{srdWS}:{srdWS+3}], s{sT0} offen{SC}")
    a(f"s_cmp_eq_u32 s{sS}, 0")
    a(f"s_cbranch_scc1 {name}_e1{sfx}")
    a(f"s_sub_u32 s{sT0}, 2048, s{sS}")
    a(f"s_lshl_b32 s{sT0}, s{sT0}, 2")
    a(f"s_add_u32 s{sT0}, s{sT0}, {WS_G}")
    a(f"buffer_store_dword v{vD+1}, v{vT1}, s[{srdWS}:{srdWS+3}], s{sT0} offen{SC}")
    a.label(f"{name}_e1{sfx}")
    a(f"s_lshr_b32 s{sT0}, s{sS}, 4")
    a(f"s_add_u32 s{sT0}, s{sT0}, {8*A_KSTEPS}")
    a(f"s_lshl_b32 s{sT0}, s{sT0}, 10")
    a(f"s_bfe_u32 s{sT1}, s{sS}, 0x10003")
    a(f"s_lshl_b32 s{sT1}, s{sT1}, 9")
    a(f"s_add_u32 s{sT0}, s{sT0}, s{sT1}")
    a(f"s_and_b32 s{sT1}, s{sS}, 7")
    a(f"s_lshl_b32 s{sT1}, s{sT1}, 1")
    a(f"s_add_u32 s{sT0}, s{sT0}, s{sT1}")
    a(f"s_add_u32 s{sT0}, s{sT0}, {WS_A}")
    a(f"buffer_store_short v{vD+2}, v{vT1}, s[{srdWS}:{srdWS+3}], s{sT0} offen{SC}")
    a(f"s_cmp_lg_u32 s{sF}, 0")
    a(f"s_cbranch_scc1 {name}_e2{sfx}")
    a(f"s_lshr_b32 s{sT0}, s2, 5")
    a(f"s_mul_i32 s{sT0}, s{sT0}, {A_KSTEPS}")
    a(f"s_add_u32 s{sT0}, s{sT0}, 64")
    a(f"s_lshl_b32 s{sT0}, s{sT0}, 10")
    a(f"s_and_b32 s{sT1}, s2, 31")
    a(f"s_lshl_b32 s{sT1}, s{sT1}, 4")
    a(f"s_add_u32 s{sT0}, s{sT0}, s{sT1}")
    a(f"s_add_u32 s{sT0}, s{sT0}, {WS_A}")
    a(f"buffer_store_dwordx4 {vr(vR,4)}, v{vT1}, s[{srdWS}:{srdWS+3}], s{sT0} offen{SC}")
    a(f"buffer_store_dwordx4 {vr(vA,4)}, v{vT1}, s[{srdWS}:{srdWS+3}], s{sT0} offen offset:512{SC}")
    a.label(f"{name}_e2{sfx}")
    a(f"s_cmp_lg_u32 s{sS}, 1")
    a(f"s_cbranch_scc1 {name}_e3{sfx}")
    a(f"s_mov_b32 s{sT0}, {WS_G + 4096}")
    a(f"buffer_store_dword v{vD+4}, v{vT1}, s[{srdWS}:{srdWS+3}], s{sT0} offen{SC}")
    a(f"v_mov_b32 v{vR}, v{vD+5}")
    a(f"s_mov_b32 s{sT0}, {WS_A + (8*A_KSTEPS + 64)*1024}")
    a(f"buffer_store_dwordx4 {vr(vR,4)}, v{vT1}, s[{srdWS}:{srdWS+3}], s{sT0} offen{SC}")
    a(f"buffer_store_dwordx4 {vr(vA,4)}, v{vT1}, s[{srdWS}:{srdWS+3}], s{sT0} offen offset:512{SC}")
    a.label(f"{name}_e3{sfx}")
    a("s_mov_b64 exec, -1")

def gen_attn_part(a, name, base, nvmax, V):
    vLane, vL16, vT0, vT1 = V["vLane"], V["vL16"], V["vT0"], V["vT1"]
    Ra = RegAlloc(base, 168)
    vAK = Ra.alloc("addrK"); vAV = Ra.alloc("addrV"); vM = Ra.alloc("m")
    vRd = Ra.alloc("rdaddr"); vRv = Ra.alloc("rdval")
    vQ = [Ra.alloc("Q0", 4), Ra.alloc("Q1", 4)]
    vK = Ra.alloc("K", 4); vV0 = Ra.alloc("V0", 4); vV1 = Ra.alloc("V1", 4)
    vP = Ra.alloc("P", 8)
    vS = [Ra.alloc("S0", 16), Ra.alloc("S1", 16)]
    vT = Ra.alloc("T", 16)
    vO = [Ra.alloc("O0", 16), Ra.alloc("O1", 16)]
    vC = [Ra.alloc("C0", 16), Ra.alloc("C1", 16)]
    nvmax[0] = max(nvmax[0], Ra.next)
    sKh, sQp, sIt, sMask, sRetry = 54, 55, 56, 58, 57
    a.label(f"{name}_attn")
    decode_hq(a)
    a(f"s_and_b32 s{sQp}, s{sW}, 3")
    a(f"s_lshr_b32 s{sKh}, s{sW}, 2")
    srd(a, srdWS, sWS, WS_SIZE_USED)
    a(f"s_mov_b32 s{sRetry}, 0")
    a(f"s_lshl_b32 s60, s{sKh}, 15")
    a(f"s_mul_i32 s59, s{sKh}, {VHALF}")
    a(f"v_lshrrev_b32 v{vT0}, 5, v{vLane}")
    a(f"v_lshlrev_b32 v{vT0}, 8, v{vT0}")
    a(f"v_and_b32 v{vAK}, 31, v{vLane}")
    a(f"v_lshlrev_b32 v{vAV}, 4, v{vAK}")
    a(f"v_add_u32 v{vAV}, v{vAV}, v{vT0}")
    a(f"v_cmp_eq_u32 vcc, 16, v{vAK}")
    a(f"v_cmp_eq_u32 s[62:63], 20, v{vAK}")
    a(f"v_mov_b32 v{vM}, 528")
    a(f"v_mov_b32 v{vT0}, 512")
    a("s_or_b64 vcc, vcc, s[62:63]")
    a("s_nop 1")
    a(f"v_cndmask_b32 v{vM}, v{vM}, v{vT0}, vcc")
    a(f"v_cmp_gt_u32 vcc, 16, v{vAK}")
    a("s_nop 1")
    a(f"v_cndmask_b32 v{vAV}, v{vM}, v{vAV}, vcc")
    a(f"v_add_u32 v{vAV}, 65536, v{vAV}")
    a(f"v_add_u32 v{vAV}, s59, v{vAV}")
    for i in range(4):
        a(f"v_mov_b32 v{vV1+i}, 0")
    for q in range(2):
        for i in range(16):
            a(f"v_mov_b32 v{vO[q]+i}, 0")
    for i in range(4, 8):
        a(f"v_mov_b32 v{vP+i}, 0")
    a(f"v_add_u32 v{vAK}, s60, v{vL16}")
    a(f"s_lshl_b32 s{sT0}, s{sHead}, 6")
    a(f"s_lshl_b32 s{sT1}, s{sQb}, 3")
    a(f"s_add_u32 s{sT0}, s{sT0}, s{sT1}")
    a(f"s_lshl_b32 s{sT1}, s{sQp}, 1")
    a(f"s_add_u32 s{sT0}, s{sT0}, s{sT1}")
    a(f"s_lshl_b32 s61, s{sT0}, 10")
    read_nonce(a, vT0, vT1)
    tl_stamp(a, 3)
    lwait(a, vT0, vT1, sT0, C_GO, 1, f"{name}_wgo", sleep=2)
    a(f"buffer_load_dwordx4 {vr(vQ[0],4)}, v{vL16}, s[{srdWS}:{srdWS+3}], s61 offen{SC}")
    a(f"buffer_load_dwordx4 {vr(vQ[1],4)}, v{vL16}, s[{srdWS}:{srdWS+3}], s61 offen offset:1024{SC}")
    tl_stamp(a, 4)
    lwait(a, vT0, vT1, sT0, C_RDY, 1, f"{name}_wr0", sleep=1)
    a(f"s_lshl_b32 s60, s{sKh}, 2")
    a(f"s_add_u32 s60, s60, {C_RDY}")
    lwait(a, vT0, vT1, sT0, "s60", 1, f"{name}_wr1", sleep=1)
    a(f"v_add_u32 v{vRd}, 8, v{vT0}")
    a("s_waitcnt vmcnt(0)")
    tl_stamp(a, 5)

    def rowmax(S):
        a(f"v_max3_f32 v{vM}, v{S}, v{S+1}, v{S+2}")
        for i in range(3, 15, 2):
            a(f"v_max3_f32 v{vM}, v{vM}, v{S+i}, v{S+i+1}")
        a(f"v_max_f32 v{vM}, v{vM}, v{S+15}")
    def bcast_negmax(C):
        a(f"v_mov_b32 v{vT0}, v{vM}")
        a("s_nop 1")
        a(f"v_permlane32_swap_b32 v{vT0}, v{vM}")
        a("s_nop 1")
        a(f"v_max_f32 v{vM}, v{vM}, v{vT0}")
        a(f"v_sub_f32 v{C}, 0, v{vM}")
        for i in range(1, 16):
            a(f"v_mov_b32 v{C+i}, v{C}")
    a(f"ds_read_b128 {vr(vT,4)}, v{vL16}")
    a(f"ds_read_b128 {vr(vK,4)}, v{vAK}")
    a("s_waitcnt lgkmcnt(1)")
    a(f"v_mfma_f32_32x32x16_bf16 {vr(vS[0],16)}, {vr(vT,4)}, {vr(vQ[0],4)}, 0")
    a(f"v_mfma_f32_32x32x16_bf16 {vr(vS[1],16)}, {vr(vT,4)}, {vr(vQ[1],4)}, 0")
    a(f"ds_read_b128 {vr(vV0,4)}, v{vAV}")
    a("s_nop 8")
    rowmax(vS[0]); bcast_negmax(vC[0])
    a("s_waitcnt lgkmcnt(0)")
    a(f"v_mfma_f32_32x32x16_bf16 {vr(vS[0],16)}, {vr(vK,4)}, {vr(vQ[0],4)}, {vr(vC[0],16)}")
    rowmax(vS[1]); bcast_negmax(vC[1])
    a("s_nop 1")
    a(f"v_mfma_f32_32x32x16_bf16 {vr(vS[1],16)}, {vr(vK,4)}, {vr(vQ[1],4)}, {vr(vC[1],16)}")
    a(f"ds_read_b128 {vr(vK,4)}, v{vAK} offset:1024")
    tl_stamp(a, 6)

    def step(u, q):
        S = vS[q]
        e = lambda i: a(f"v_exp_f32 v{vT+i}, v{S+i}")
        c = lambda i: a(f"v_cvt_pk_bf16_f32 v{vP+i}, v{vT+2*i}, v{vT+2*i+1}")
        e(0); e(1); e(2); c(0); e(3); e(4)
        if q == 1:
            a("s_waitcnt lgkmcnt(0)")
        a(f"v_mfma_f32_32x32x16_bf16 {vr(vO[q^1],16)}, {vr(vV1,4)}, {vr(vP+4,4)}, {vr(vO[q^1],16)}")
        if q == 0:
            a(f"ds_read_b128 {vr(vV1,4)}, v{vAV} offset:{(2*u+1)*VG}")
        c(1); e(5); e(6); c(2); e(7); e(8); c(3); e(9); e(10)
        if q == 0:
            a("s_waitcnt lgkmcnt(2)")
        a(f"v_mfma_f32_32x32x16_bf16 {vr(vO[q],16)}, {vr(vV0,4)}, {vr(vP,4)}, {vr(vO[q],16)}")
        if q == 1:
            a(f"ds_read_b128 {vr(vV0,4)}, v{vAV} offset:{(2*u+2)*VG}")
        e(11); c(4); e(12); c(5); e(13); e(14); c(6); e(15)
        if q == 0:
            a("s_waitcnt lgkmcnt(1)")
        a(f"v_mfma_f32_32x32x16_bf16 {vr(S,16)}, {vr(vK,4)}, {vr(vQ[q],4)}, {vr(vC[q],16)}")
        if q == 1:
            a(f"ds_read_b128 {vr(vK,4)}, v{vAK} offset:{(u+2)*1024}")
        c(7)

    a(f"s_mov_b32 s{sIt}, 0")
    a("s_setprio 2")
    lbl = f"{name}_loop"
    if EXP.get("al64"): a.raw(".p2align 6")
    if EXP.get("al64s4"):
        a.raw(".p2align 6"); a("s_nop 0")
    a.label(lbl)
    for u in range(4):
        step(u, 0)
        if u == 0:
            a(f"ds_read_b32 v{vRv}, v{vRd}")
        step(u, 1)
        if u == 1:
            a(f"v_readfirstlane_b32 s{sT0}, v{vRv}")
            a(f"v_add_u32 v{vRd}, 8, v{vRd}")
            a("s_nop 2")
            a(f"s_cmp_lg_u32 s{sT0}, 0")
            a(f"s_cbranch_scc1 {name}_nosync")
            a(f"v_subrev_u32 v{vT0}, 8, v{vRd}")
            a(f"s_mov_b32 s{sT3}, {SPIN_MAX*16}")
            a.label(f"{name}_wrs")
            a(f"ds_read_b32 v{vT1}, v{vT0}")
            a("s_waitcnt lgkmcnt(0)")
            a(f"v_readfirstlane_b32 s{sT0}, v{vT1}")
            a(f"s_sub_u32 s{sT3}, s{sT3}, 1")
            a(f"s_cbranch_scc1 {name}_nosync")
            a("s_nop 1")
            a(f"s_cmp_lg_u32 s{sT0}, 0")
            a(f"s_cbranch_scc1 {name}_nosync")
            a("s_sleep 1")
            a(f"s_branch {name}_wrs")
            a.label(f"{name}_nosync")
    a(f"v_add_u32 v{vAK}, 4096, v{vAK}")
    a(f"v_add_u32 v{vAV}, {8*VG}, v{vAV}")
    a(f"s_add_u32 s{sIt}, s{sIt}, 1")
    a(f"s_cmp_eq_u32 s{sIt}, {PRIO_SW[0]}")
    a(f"s_cbranch_scc0 {name}_p1")
    a("s_setprio 1")
    a.label(f"{name}_p1")
    a(f"s_cmp_eq_u32 s{sIt}, {PRIO_SW[1]}")
    a(f"s_cbranch_scc0 {name}_p2")
    a("s_setprio 0")
    a.label(f"{name}_p2")
    a(f"s_cmp_lg_u32 s{sIt}, 8")
    a(f"s_cbranch_scc1 {lbl}")
    a("s_nop 1")
    a(f"v_mfma_f32_32x32x16_bf16 {vr(vO[1],16)}, {vr(vV1,4)}, {vr(vP+4,4)}, {vr(vO[1],16)}")
    tl_stamp(a, 7)
    lwait(a, vT0, vT1, sT0, C_R1, 1, f"{name}_wf")
    a("s_nop 8")
    a(f"s_mul_i32 s{sT0}, s{sW}, 2304")
    a(f"s_add_u32 s{sT0}, s{sT0}, {LDS_RED}")
    a(f"v_add_u32 v{vT0}, s{sT0}, v{vL16}")
    a(f"v_lshrrev_b32 v{vT1}, 2, v{vL16}")
    a(f"v_add_u32 v{vT1}, s{sT0}, v{vT1}")
    a(f"s_cmp_eq_u32 s{sKh}, 0")
    a(f"s_cbranch_scc0 {name}_x1")
    a(f"ds_write_b128 v{vT0}, {vr(vO[1],4)}")
    a(f"ds_write_b128 v{vT0}, {vr(vO[1]+4,4)} offset:1024")
    a(f"ds_write_b32 v{vT1}, v{vO[1]+8} offset:2048")
    a(f"s_branch {name}_x2")
    a.label(f"{name}_x1")
    a(f"ds_write_b128 v{vT0}, {vr(vO[0],4)}")
    a(f"ds_write_b128 v{vT0}, {vr(vO[0]+4,4)} offset:1024")
    a(f"ds_write_b32 v{vT1}, v{vO[0]+8} offset:2048")
    for i in range(9):
        a(f"v_mov_b32 v{vO[0]+i}, v{vO[1]+i}")
    for i in range(4):
        a(f"v_mov_b32 v{vQ[0]+i}, v{vQ[1]+i}")
    a.label(f"{name}_x2")
    a("s_waitcnt lgkmcnt(0)")
    a(f"s_lshl_b32 s{sT0}, s{sQp}, 2")
    a(f"s_add_u32 s61, s{sT0}, {C_X}")
    lsig(a, vAK, vM, "s61")
    lwait(a, vAK, vM, sT0, "s61", 2, f"{name}_wx")
    a(f"s_xor_b32 s{sT0}, s{sW}, 4")
    a(f"s_mul_i32 s{sT0}, s{sT0}, 2304")
    a(f"s_add_u32 s{sT0}, s{sT0}, {LDS_RED}")
    a(f"v_add_u32 v{vT0}, s{sT0}, v{vL16}")
    a(f"v_lshrrev_b32 v{vT1}, 2, v{vL16}")
    a(f"v_add_u32 v{vT1}, s{sT0}, v{vT1}")
    a(f"ds_read_b128 {vr(vT,4)}, v{vT0}")
    a(f"ds_read_b128 {vr(vT+4,4)}, v{vT0} offset:1024")
    a(f"ds_read_b32 v{vT+8}, v{vT1} offset:2048")
    a("s_waitcnt lgkmcnt(0)")
    O = vO[0]
    for i in range(9):
        a(f"v_add_f32 v{O+i}, v{O+i}, v{vT+i}")
    a.label(f"{name}_epi")
    a(f"s_cmp_lg_u32 s{sRetry}, 0")
    a(f"s_cbranch_scc1 {name}_fin")
    a(f"v_mov_b32 v{vT0}, 0x5d800000")
    a(f"v_cmp_nle_f32 vcc, v{O+8}, v{vT0}")
    a("s_nop 4")
    a(f"s_cbranch_vccnz {name}_fallback")
    a.label(f"{name}_fin")
    a(f"v_rcp_f32 v{vT0}, v{O+8}")
    a("s_nop 0")
    for i in range(8):
        a(f"v_mul_f32 v{O+i}, v{O+i}, v{vT0}")
    for i in range(4):
        a(f"v_cvt_pk_bf16_f32 v{vP+i}, v{O+2*i}, v{O+2*i+1}")
    a(f"s_lshl_b32 s{sT0}, s{sQb}, 3")
    a(f"s_lshl_b32 s{sT1}, s{sQp}, 1")
    a(f"s_add_u32 s{sT0}, s{sT0}, s{sT1}")
    a(f"s_add_u32 s{sT0}, s{sT0}, s{sKh}")
    a(f"s_lshl_b32 s{sT0}, s{sT0}, 5")
    a(f"s_add_u32 s{sT0}, s{sT0}, s{sHead}")
    a(f"s_lshl_b32 s{sT0}, s{sT0}, 10")
    a(f"s_add_u32 s{sT0}, s{sT0}, {WS_O}")
    a(f"buffer_store_dwordx4 {vr(vP,4)}, v{vL16}, s[{srdWS}:{srdWS+3}], s{sT0} offen{SC}")
    a(f"v_mov_b32 v{vT0}, {C_ADONE}")
    a(f"v_mov_b32 v{vT1}, 1")
    a("s_mov_b64 exec, 1")
    a(f"ds_add_rtn_u32 v{vM}, v{vT0}, v{vT1}")
    a("s_waitcnt lgkmcnt(0)")
    a("s_mov_b64 exec, -1")
    a(f"v_readfirstlane_b32 s{sT0}, v{vM}")
    a("s_nop 3")
    a(f"s_cmp_lg_u32 s{sT0}, 7")
    a(f"s_cbranch_scc1 {name}_adone")
    a(f"s_lshl_b32 s61, s{sQb}, 5")
    a(f"s_add_u32 s61, s61, s{sHead}")
    a(f"s_add_u32 s61, s61, {FL_O}")
    publish(a, vT0, vT1, 61)
    a.label(f"{name}_adone")
    tl_stamp(a, 8)
    dbg_exit(a, [1, 6, 7], [0, 5], 4, 1)
    if not TL.get("dbg"): tl_exit(a, 1, sWS)
    a("s_endpgm")
    a.label(f"{name}_fallback")
    a(f"s_mov_b32 s{sRetry}, 1")
    a(f"v_mov_b32 v{vAK}, v{vL16}")
    a(f"v_mov_b32 v{vM}, 0xff800000")
    a(f"s_mov_b32 s{sIt}, 64")
    a.label(f"{name}_maxloop")
    a(f"ds_read_b128 {vr(vK,4)}, v{vAK}")
    a("s_waitcnt lgkmcnt(0)")
    a(f"v_mfma_f32_32x32x16_bf16 {vr(vS[0],16)}, {vr(vK,4)}, {vr(vQ[0],4)}, 0")
    a(f"v_add_u32 v{vAK}, 1024, v{vAK}")
    a("s_nop 15")
    a("s_nop 3")
    for i in range(0, 16, 2):
        a(f"v_max3_f32 v{vM}, v{vM}, v{vS[0]+i}, v{vS[0]+i+1}")
    a(f"s_sub_u32 s{sIt}, s{sIt}, 1")
    a(f"s_cmp_lg_u32 s{sIt}, 0")
    a(f"s_cbranch_scc1 {name}_maxloop")
    bcast_negmax(vC[0])
    for i in range(16):
        a(f"v_mov_b32 v{O+i}, 0")
    a(f"v_mov_b32 v{vAK}, v{vL16}")
    a(f"s_mul_i32 s60, s{sKh}, {VHALF}")
    a(f"s_add_u32 s60, s60, {VHALF}")
    a(f"v_subrev_u32 v{vAV}, s60, v{vAV}")
    a(f"s_mov_b32 s{sIt}, 64")
    a.label(f"{name}_redo")
    a(f"ds_read_b128 {vr(vK,4)}, v{vAK}")
    a(f"ds_read_b128 {vr(vV0,4)}, v{vAV}")
    a(f"ds_read_b128 {vr(vV1,4)}, v{vAV} offset:{VG}")
    a("s_waitcnt lgkmcnt(0)")
    a(f"v_mfma_f32_32x32x16_bf16 {vr(vS[0],16)}, {vr(vK,4)}, {vr(vQ[0],4)}, {vr(vC[0],16)}")
    a(f"v_add_u32 v{vAK}, 1024, v{vAK}")
    a(f"v_add_u32 v{vAV}, {2*VG}, v{vAV}")
    a("s_nop 15")
    a("s_nop 3")
    for i in range(16):
        a(f"v_exp_f32 v{vT+i}, v{vS[0]+i}")
    a("s_nop 0")
    for i in range(8):
        a(f"v_cvt_pk_bf16_f32 v{vP+i}, v{vT+2*i}, v{vT+2*i+1}")
    a("s_nop 1")
    a(f"v_mfma_f32_32x32x16_bf16 {vr(O,16)}, {vr(vV0,4)}, {vr(vP,4)}, {vr(O,16)}")
    a(f"v_mfma_f32_32x32x16_bf16 {vr(O,16)}, {vr(vV1,4)}, {vr(vP+4,4)}, {vr(O,16)}")
    a(f"s_sub_u32 s{sIt}, s{sIt}, 1")
    a(f"s_cmp_lg_u32 s{sIt}, 0")
    a(f"s_cbranch_scc1 {name}_redo")
    a("s_nop 15")
    a("s_nop 3")
    a(f"s_branch {name}_epi")

def gen_f_part(a, name, base, nvmax, V):
    vLane, vL16, vT0, vT1, vT2, vT3 = V["vLane"], V["vL16"], V["vT0"], V["vT1"], V["vT2"], V["vT3"]
    sF = 54
    a.label(f"{name}_edge")
    sS = 55
    a(f"s_sub_u32 s{sF}, s{sW}, 8")
    a("s_setprio 3")
    a(f"v_lshlrev_b32 v{vT0}, 2, v{vLane}")
    a(f"v_add_u32 v{vT0}, {LDS_CNT}, v{vT0}")
    a(f"v_mov_b32 v{vT1}, 0")
    a(f"ds_write_b32 v{vT0}, v{vT1}")
    a("s_waitcnt lgkmcnt(0)")
    a(f"s_or_b32 s{sT0}, s2, s{sF}")
    a(f"s_cmp_lg_u32 s{sT0}, 0")
    a(f"s_cbranch_scc1 {name}_nn")
    a(f"s_memrealtime s[{sT0}:{sT0+1}]")
    a("s_waitcnt lgkmcnt(0)")
    a(f"s_or_b32 s{sT0}, s{sT0}, 1")
    a(f"v_mov_b32 v{vT0}, 0")
    a(f"v_mov_b32 v{vT1}, s{sT0}")
    a("s_mov_b64 exec, 1")
    a(f"global_store_dword v{vT0}, v{vT1}, s[{sDbg}:{sDbg+1}] sc1")
    a("s_mov_b64 exec, -1")
    a.label(f"{name}_nn")
    srd(a, srdWS, sWS, WS_SIZE_USED)
    decode_hq(a)
    vPz = (base + 3) // 4 * 4 - 1
    for i in range(4):
        a(f"v_mov_b32 v{vPz+1+i}, -1")
    a(f"s_lshl_b32 s{sT0}, s{sQb}, 3")
    a(f"s_lshl_b32 s{sT1}, s{sF}, 1")
    a(f"s_add_u32 s{sT0}, s{sT0}, s{sT1}")
    a(f"s_lshl_b32 s{sT0}, s{sT0}, 5")
    a(f"s_add_u32 s{sT0}, s{sT0}, s{sHead}")
    a(f"s_lshl_b32 s{sT0}, s{sT0}, 10")
    a(f"s_add_u32 s{sT0}, s{sT0}, {WS_O}")
    a(f"buffer_store_dwordx4 {vr(vPz+1,4)}, v{vL16}, s[{srdWS}:{srdWS+3}], s{sT0} offen{SC}")
    a(f"s_add_u32 s{sT0}, s{sT0}, 32768")
    a(f"buffer_store_dwordx4 {vr(vPz+1,4)}, v{vL16}, s[{srdWS}:{srdWS+3}], s{sT0} offen{SC}")
    ER = (base + 7) // 4 * 4 + 4
    EB0, EB1 = PAR.get("EB0", 1), PAR.get("EB1", 3)
    srd(a, srdA, sX, 2048*1024)
    nb = 0
    while nb < EB0:
        a("s_barrier"); nb += 1
    emit_edge_loads(a, name, V, ER, sF, 30)
    while nb < EB1:
        a("s_barrier"); nb += 1
    emit_edge_compute(a, name, V, ER, sF, 30, "p")
    while nb < 5:
        a("s_barrier"); nb += 1
    a(f"s_cmp_lg_u32 s{sF}, 0")
    a(f"s_cbranch_scc1 {name}_nn2")
    a(f"v_mov_b32 v{vT0}, 0")
    a(f"s_mov_b32 s{sT1}, {SPIN_MAX}")
    a.label(f"{name}_npoll")
    a(f"global_load_dword v{vT1}, v{vT0}, s[{sDbg}:{sDbg+1}] sc1")
    a("s_waitcnt vmcnt(0)")
    a(f"v_readfirstlane_b32 s{sN}, v{vT1}")
    a(f"s_sub_u32 s{sT1}, s{sT1}, 1")
    a(f"s_cbranch_scc1 {name}_npoll_ok")
    a("s_nop 1")
    a(f"s_cmp_lg_u32 s{sN}, 0")
    a(f"s_cbranch_scc1 {name}_npoll_ok")
    a("s_sleep 1")
    a(f"s_branch {name}_npoll")
    a.label(f"{name}_npoll_ok")
    a(f"v_mov_b32 v{vT0}, {C_NONCE}")
    a(f"v_mov_b32 v{vT1}, s{sN}")
    a(f"ds_write_b32 v{vT0}, v{vT1}")
    a.label(f"{name}_nn2")
    a("s_waitcnt vmcnt(0) lgkmcnt(0)")
    for i in range(5, 9):
        a("s_barrier")
    tl_stamp(a, 0)

    Rf = RegAlloc(base, 168)
    vB_ = Rf.alloc("boff"); vY = Rf.alloc("yaddr"); vFl = Rf.alloc("flag")
    accP = Rf.alloc("accP", 16); accQ = Rf.alloc("accQ", 16)
    buf = Rf.alloc("buf", 112)
    vCn = Rf.alloc("cn", 4)
    nvmax[0] = max(nvmax[0], Rf.next)
    sKoff, sVoff = 56, 57
    sTt, sEt, sHasQ, sA, sBq, sK, sJob, sCnt = 58, 59, 60, 61, 62, 63, 30, 31
    decode_hq(a)
    KB = accP
    sPend, sQd, sSlot = 60, 61, 62
    sEd = 30
    a(f"s_mov_b32 s{sEd}, 0")
    a(f"s_lshl_b32 s{sKoff}, s{sHead}, 16")
    a(f"s_add_u32 s{sKoff}, s{sKoff}, {WS_K}")
    a(f"s_cmp_lg_u32 s{sF}, 0")
    a(f"s_cbranch_scc1 {name}_kvld")
    a(f"s_add_u32 s{sT0}, s2, {FL_E}")
    publish(a, vT0, vT1, sT0)
    tl_stamp(a, 1)
    a(f"s_lshr_b32 s{sT0}, s{sHead}, 3")
    a(f"s_lshl_b32 s{sT0}, s{sT0}, 4")
    a(f"v_and_b32 v{vT0}, 15, v{vLane}")
    a(f"v_bfe_u32 v{vT1}, v{vLane}, 4, 1")
    a(f"v_lshlrev_b32 v{vT1}, 6, v{vT1}")
    a(f"v_add_u32 v{vT0}, v{vT0}, v{vT1}")
    a(f"v_add_u32 v{vT0}, 64, v{vT0}")
    a(f"v_and_b32 v{vT1}, 1, v{vLane}")
    a(f"s_lshl_b32 s{sT1}, s{sQb}, 1")
    a(f"v_add_u32 v{vT1}, s{sT1}, v{vT1}")
    a(f"v_cmp_gt_u32 vcc, 32, v{vLane}")
    a("s_nop 1")
    a(f"v_cndmask_b32 v{vT0}, v{vT1}, v{vT0}, vcc")
    a(f"v_add_u32 v{vT0}, s{sT0}, v{vT0}")
    a(f"v_lshlrev_b32 v{vFl}, {FSH}, v{vT0}")
    a(f"v_add_u32 v{vFl}, {WS_FLAG}, v{vFl}")
    a(f"s_mov_b32 s{sPend}, 0xffff")
    a(f"s_mov_b32 s{sQd}, 0")
    a(f"s_mov_b32 s{sSlot}, 0")
    a(f"s_mov_b32 s{sCnt}, {SPIN_MAX}")
    a.label(f"{name}_dpoll")
    a(f"global_load_dword v{vT0}, v{vFl}, s[{sWS}:{sWS+1}] sc1")
    a("s_waitcnt vmcnt(0)")
    a(f"v_cmp_eq_u32 vcc, s{sN}, v{vT0}")
    a(f"s_sub_u32 s{sCnt}, s{sCnt}, 1")
    a(f"s_cbranch_scc0 {name}_dnt")
    a("s_mov_b64 vcc, -1")
    a.label(f"{name}_dnt")
    a("s_nop 2")
    a(f"s_mov_b32 s56, vcc_lo")
    a(f"s_mov_b32 s57, vcc_hi")
    a(f"s_cmp_lg_u32 s{sQd}, 0")
    a(f"s_cbranch_scc1 {name}_dq")
    a(f"s_cmp_lg_u32 s57, -1")
    a(f"s_cbranch_scc1 {name}_dq")
    a(f"s_mov_b32 s{sQd}, 1")
    tl_stamp(a, 2)
    if TL["on"]: a("s_waitcnt lgkmcnt(0)")
    lsig(a, vT0, vT1, C_GO)
    a.label(f"{name}_dq")
    a(f"s_lshr_b32 s{sT0}, s56, 16")
    a(f"s_and_b32 s{sT0}, s{sT0}, s56")
    a(f"s_and_b32 s{sT0}, s{sT0}, s{sPend}")
    a(f"s_cmp_eq_u32 s{sT0}, 0")
    a(f"s_cbranch_scc1 {name}_dnone")
    a(f"s_andn2_b32 s{sPend}, s{sPend}, s{sT0}")
    a.label(f"{name}_dq1")
    a(f"s_ff1_i32_b32 s{sT1}, s{sT0}")
    a(f"s_bitset0_b32 s{sT0}, s{sT1}")
    a(f"s_add_u32 s{sT1}, s{sT1}, 1")
    a(f"s_lshl_b32 s{sT2}, s{sSlot}, 2")
    a(f"s_add_u32 s{sT2}, s{sT2}, {C_QUE}")
    a(f"v_mov_b32 v{vT0}, s{sT2}")
    a(f"v_mov_b32 v{vT1}, s{sT1}")
    a(f"ds_write_b32 v{vT0}, v{vT1}")
    a(f"s_add_u32 s{sSlot}, s{sSlot}, 1")
    a(f"s_cmp_lg_u32 s{sT0}, 0")
    a(f"s_cbranch_scc1 {name}_dq1")
    a.label(f"{name}_dnone")
    a(f"s_cmp_eq_u32 s{sQd}, 0")
    a(f"s_cbranch_scc1 {name}_dagain")
    a(f"s_cmp_eq_u32 s{sPend}, 0")
    a(f"s_cbranch_scc1 {name}_kvdone")
    a.label(f"{name}_dagain")
    a(f"s_sleep {PAR.get('DSLEEP', 4)}")
    a(f"s_branch {name}_dpoll")
    a.label(f"{name}_kvld")
    read_nonce(a, vT0, vT1)
    vVw, vCa, vCa2, vCd = KB + 40, KB + 41, KB + 42, KB + 44
    a(f"v_lshrrev_b32 v{vT0}, 5, v{vLane}")
    a(f"v_mul_u32_u24 v{vT0}, {VG}, v{vT0}")
    a(f"v_and_b32 v{vT1}, 31, v{vLane}")
    a(f"v_lshlrev_b32 v{vT1}, 4, v{vT1}")
    a(f"v_add_u32 v{vVw}, v{vT0}, v{vT1}")
    a(f"v_lshrrev_b32 v{vT0}, 1, v{vLane}")
    a(f"v_mul_u32_u24 v{vT0}, {VG}, v{vT0}")
    a(f"v_and_b32 v{vT1}, 1, v{vLane}")
    a(f"v_lshlrev_b32 v{vT2}, 4, v{vT1}")
    a(f"v_add_u32 v{vT0}, v{vT0}, v{vT2}")
    a(f"v_add_u32 v{vCa}, 512, v{vT0}")
    a(f"v_cmp_eq_u32 vcc, 0, v{vT1}")
    a(f"v_mov_b32 v{vT0}, 0x3f803f80")
    a("s_nop 0")
    for i in range(4):
        a(f"v_cndmask_b32 v{vCd+i}, 0, v{vT0}, vcc")
    a(f"s_sub_u32 s{sSlot}, s{sF}, 1")
    a.label(f"{name}_kvnext")
    a(f"s_lshl_b32 s{sT2}, s{sSlot}, 2")
    a(f"s_add_u32 s63, s{sT2}, {C_QUE}")
    lwait(a, vT0, vT1, sT0, "s63", 1, f"{name}_kvwq", sleep=1)
    a(f"s_sub_u32 s{sT0}, s{sT0}, 1")
    a(f"s_and_b32 s{sT0}, s{sT0}, 15")
    a(f"s_lshl_b32 s{sT0}, s{sT0}, 12")
    a(f"s_add_u32 s{sT0}, s{sT0}, s{sKoff}")
    for t in range(4):
        a(f"s_add_u32 s{sT1}, s{sT0}, {t*1024}")
        a(f"buffer_load_dwordx4 {vr(KB+4*t,4)}, v{vL16}, s[{srdWS}:{srdWS+3}], s{sT1} offen{SC}")
        a(f"s_add_u32 s{sT1}, s{sT1}, {WS_V - WS_K}")
        a(f"buffer_load_dwordx4 {vr(KB+16+4*t,4)}, v{vL16}, s[{srdWS}:{srdWS+3}], s{sT1} offen{SC}")
    a(f"s_and_b32 s{sT1}, s{sSlot}, 1")
    a(f"s_lshr_b32 s{sT2}, s{sSlot}, 1")
    a(f"s_mul_i32 s58, s{sT1}, {VHALF}")
    a(f"s_mul_i32 s59, s{sT2}, {8*VG}")
    a(f"s_add_u32 s58, s58, s59")
    a(f"s_add_u32 s58, s58, 65536")
    a(f"s_lshl_b32 s{sT1}, s{sT1}, 15")
    a(f"s_lshl_b32 s{sT2}, s{sT2}, 12")
    a(f"s_add_u32 s{sT1}, s{sT1}, s{sT2}")
    a(f"v_add_u32 v{vT2}, s{sT1}, v{vL16}")
    a(f"v_add_u32 v{vT3}, s58, v{vVw}")
    a(f"v_add_u32 v{vCa2}, s58, v{vCa}")
    a(f"s_lshl_b32 s{sT0}, s{sSlot}, 2")
    a(f"s_add_u32 s{sT0}, s{sT0}, {C_RDY}")
    a(f"v_mov_b32 v{vT0}, s{sT0}")
    a(f"v_mov_b32 v{vT1}, 1")
    a("s_mov_b32 exec_lo, 0xffff")
    a("s_mov_b32 exec_hi, 0")
    a(f"ds_write_b128 v{vCa2}, {vr(vCd,4)}")
    a("s_mov_b64 exec, -1")
    a("s_waitcnt vmcnt(0)")
    for t in range(4):
        a(f"ds_write_b128 v{vT2}, {vr(KB+4*t,4)} offset:{t*1024}")
        a(f"ds_write_b128 v{vT3}, {vr(KB+16+4*t,4)} offset:{t*2*VG}")
    a("s_waitcnt lgkmcnt(0)")
    a(f"ds_write_b32 v{vT0}, v{vT1}")
    a(f"s_cmp_lg_u32 s{sEd}, 1")
    a(f"s_cbranch_scc1 {name}_kvne")
    a(f"s_cmp_ge_u32 s{sF}, 3")
    a(f"s_cbranch_scc1 {name}_kvne")
    a(f"v_and_b32 v{vT0}, 31, v{vLane}")
    a(f"s_lshl_b32 s{sT0}, s{sHead}, 5")
    a(f"v_add_u32 v{vT0}, s{sT0}, v{vT0}")
    a(f"v_lshlrev_b32 v{vT0}, 12, v{vT0}")
    a(f"v_lshrrev_b32 v{vT1}, 5, v{vLane}")
    a(f"s_lshl_b32 s{sT0}, s{sQb}, 1")
    a(f"v_add_u32 v{vT1}, s{sT0}, v{vT1}")
    a(f"v_lshlrev_b32 v{vT1}, 7, v{vT1}")
    a(f"v_add_u32 v{vT0}, v{vT0}, v{vT1}")
    a(f"s_cmp_eq_u32 s{sF}, 1")
    a(f"s_cselect_b32 s{sT0}, s{sSre}, s{sSim}")
    a(f"s_cselect_b32 s{sT1}, s{sSre+1}, s{sSim+1}")
    a(f"global_load_dword v{KB+96}, v{vT0}, s[{sT0}:{sT0+1}]")
    a.label(f"{name}_kvne")
    a(f"s_add_u32 s{sEd}, s{sEd}, 1")
    a(f"s_add_u32 s{sSlot}, s{sSlot}, 3")
    a(f"s_cmp_lt_u32 s{sSlot}, 16")
    a(f"s_cbranch_scc1 {name}_kvnext")
    a.label(f"{name}_kvdone")
    tl_stamp(a, 3)
    srd(a, srdA, sSre, 2048*4096)
    srd(a, srdB, sSim, 2048*4096)
    srd(a, srdC, sWo, 512*1024)
    a(f"s_lshl_b32 s{sT0}, s{sQb}, 7")
    a(f"s_lshl_b32 s{sT1}, s{sF}, 17")
    a(f"s_add_u32 s{sT0}, s{sT0}, s{sT1}")
    a(f"v_lshlrev_b32 v{vT0}, 10, v{vLane}")
    a(f"buffer_load_dword v{vT3}, v{vT0}, s[{srdC}:{srdC+3}], s{sT0} offen")
    a(f"s_add_u32 s{sT0}, s{sT0}, 65536")
    a(f"buffer_load_dword v{vT3}, v{vT0}, s[{srdC}:{srdC+3}], s{sT0} offen")
    a(f"s_cmp_lg_u32 s{sF}, 0")
    a(f"s_cbranch_scc1 {name}_fnz2")
    a(f"v_lshlrev_b32 v{vFl}, {FSH}, v{vLane}")
    a(f"v_add_u32 v{vFl}, {WS_FLAG + (FL_F1 << FSH)}, v{vFl}")
    a(f"s_mov_b32 s{sCnt}, {SPIN_MAX}")
    a.label(f"{name}_g1")
    a(f"global_load_dword v{buf}, v{vFl}, s[{sWS}:{sWS+1}] sc1")
    for i in range(4):
        a(f"v_add_u32 v{buf+8}, {((FL_E - FL_F1 + 64*i) << FSH)}, v{vFl}")
        a(f"global_load_dword v{buf+1+i}, v{buf+8}, s[{sWS}:{sWS+1}] sc1")
    a("s_waitcnt vmcnt(0)")
    a(f"v_cmp_ne_u32 vcc, s{sN}, v{buf}")
    for i in range(4):
        a(f"v_cmp_ne_u32 s[{sT0}:{sT0+1}], s{sN}, v{buf+1+i}")
        a("s_nop 1")
        a(f"s_or_b64 vcc, vcc, s[{sT0}:{sT0+1}]")
    a(f"s_sub_u32 s{sCnt}, s{sCnt}, 1")
    a(f"s_cbranch_scc1 {name}_g1_ok")
    a("s_nop 2")
    a(f"s_cbranch_vccz {name}_g1_ok")
    a("s_sleep 8")
    a(f"s_branch {name}_g1")
    a.label(f"{name}_g1_ok")
    lsig(a, vT0, vT1, C_GO2)
    a(f"s_branch {name}_fgo2")
    a.label(f"{name}_fnz2")
    lwait(a, vT0, vT1, sT0, C_GO2, 1, f"{name}_fwgo2", sleep=8)
    a.label(f"{name}_fgo2")
    tl_stamp(a, 4)

    accX = buf; accW = buf + 16; fb = buf + 32
    a(f"s_mov_b32 s{sTt}, s{sHead}")
    a(f"s_mov_b32 s{sEt}, s{sQb}")
    a(f"v_and_b32 v{vT0}, 31, v{vLane}")
    a(f"s_lshl_b32 s{sT0}, s{sTt}, 5")
    a(f"v_add_u32 v{vT0}, s{sT0}, v{vT0}")
    a(f"v_mul_u32_u24 v{vY}, {Y_STRIDE}, v{vT0}")
    a(f"v_lshlrev_b32 v{vT0}, 12, v{vT0}")
    a(f"v_lshrrev_b32 v{vT1}, 5, v{vLane}")
    a(f"v_lshlrev_b32 v{vT1}, 4, v{vT1}")
    a(f"v_add_u32 v{vB_}, v{vT0}, v{vT1}")
    a(f"v_add_u32 v{vY}, v{vY}, v{vT1}")
    for i in range(16):
        a(f"v_mov_b32 v{accP+i}, 0")
        a(f"v_mov_b32 v{accQ+i}, 0")
        a(f"v_mov_b32 v{accX+i}, 0")
        a(f"v_mov_b32 v{accW+i}, 0")
    for i in range(4):
        a(f"v_mov_b32 v{vCn+i}, 0xbf803f80")
    a(f"s_lshl_b32 s{sK}, s{sF}, 4")
    a(f"s_mul_i32 s{sA}, s{sEt}, {A_KSTEPS}")
    a(f"s_add_u32 s{sA}, s{sA}, s{sK}")
    a(f"s_lshl_b32 s{sA}, s{sA}, 10")
    a(f"s_add_u32 s{sA}, s{sA}, {WS_A}")
    a(f"s_add_u32 s{sHasQ}, s{sK}, {8*A_KSTEPS}")
    a(f"s_lshl_b32 s{sHasQ}, s{sHasQ}, 10")
    a(f"s_add_u32 s{sHasQ}, s{sHasQ}, {WS_A}")
    sA8 = sHasQ
    a(f"s_mul_i32 s{sBq}, s{sEt}, {B_KSTEPS}")
    a(f"s_add_u32 s{sBq}, s{sBq}, s{sK}")
    a(f"s_lshl_b32 s{sBq}, s{sBq}, 10")
    a(f"s_add_u32 s{sBq}, s{sBq}, {WS_B}")
    a(f"s_lshl_b32 s{sK}, s{sK}, 5")
    a(f"s_cmp_eq_u32 s{sEt}, 0")
    a(f"s_cselect_b32 s{sJob}, 1, 0")
    a(f"s_cmp_eq_u32 s{sTt}, 0")
    a(f"s_cselect_b32 s{sT0}, 2, 0")
    a(f"s_or_b32 s{sJob}, s{sJob}, s{sT0}")
    a(f"s_cmp_eq_u32 s2, 8")
    a(f"s_cselect_b32 s{sT0}, 4, 0")
    a(f"s_or_b32 s{sJob}, s{sJob}, s{sT0}")
    vm = Vm(a)
    NFL = 4
    def ld_k(k, slot, withq=True):
        r = fb + slot * 20
        a(f"s_add_u32 s{sT0}, s{sA}, {k*1024}")
        a(f"buffer_load_dwordx4 {vr(r,4)}, v{vL16}, s[{srdWS}:{srdWS+3}], s{sT0} offen{SC}")
        a(f"s_add_u32 s{sT0}, s{sK}, {k*32}")
        a(f"buffer_load_dwordx4 {vr(r+4,4)}, v{vB_}, s[{srdA}:{srdA+3}], s{sT0} offen")
        a(f"s_add_u32 s{sT0}, s{sA8}, {k*1024}")
        a(f"buffer_load_dwordx4 {vr(r+16,4)}, v{vL16}, s[{srdWS}:{srdWS+3}], s{sT0} offen{SC}")
        n = 3
        if withq:
            a(f"s_add_u32 s{sT0}, s{sBq}, {k*1024}")
            a(f"buffer_load_dwordx4 {vr(r+8,4)}, v{vL16}, s[{srdWS}:{srdWS+3}], s{sT0} offen{SC}")
            a(f"s_add_u32 s{sT0}, s{sK}, {k*32}")
            a(f"buffer_load_dwordx4 {vr(r+12,4)}, v{vB_}, s[{srdB}:{srdB+3}], s{sT0} offen")
            n = 5
        vm.issue(k, n)
    lab = [0]
    def mf_k(slot, withq=True):
        r = fb + slot * 20
        lab[0] += 1
        L = f"{name}_fm{lab[0]}"
        a(f"v_mfma_f32_32x32x16_bf16 {vr(accP,16)}, {vr(r,4)}, {vr(r+4,4)}, {vr(accP,16)}")
        if withq:
            a(f"v_mfma_f32_32x32x16_bf16 {vr(accQ,16)}, {vr(r+8,4)}, {vr(r+12,4)}, {vr(accQ,16)}")
        a(f"s_cmp_eq_u32 s{sJob}, 0")
        a(f"s_cbranch_scc1 {L}c")
        a(f"s_bitcmp1_b32 s{sJob}, 0")
        a(f"s_cbranch_scc0 {L}a")
        a(f"v_mfma_f32_32x32x16_bf16 {vr(accX,16)}, {vr(r+16,4)}, {vr(r+4,4)}, {vr(accX,16)}")
        a.label(f"{L}a")
        a(f"s_bitcmp1_b32 s{sJob}, 1")
        a(f"s_cbranch_scc0 {L}b")
        a(f"v_mfma_f32_32x32x16_bf16 {vr(accW,16)}, {vr(r,4)}, {vr(vCn,4)}, {vr(accW,16)}")
        a.label(f"{L}b")
        a(f"s_bitcmp1_b32 s{sJob}, 2")
        a(f"s_cbranch_scc0 {L}c")
        a(f"v_mfma_f32_32x32x16_bf16 {vr(accW,16)}, {vr(r+16,4)}, {vr(vCn,4)}, {vr(accW,16)}")
        a.label(f"{L}c")
    if EXP.get("nof2"): a(f"s_branch {name}_fnox")
    for k in range(NFL): ld_k(k, k)
    for k in range(16):
        vm.wait(k)
        mf_k(k % NFL)
        if k + NFL < 16:
            a("s_nop 4")
            ld_k(k + NFL, k % NFL)
    a(f"s_cmp_lg_u32 s{sF}, 0")
    a(f"s_cbranch_scc1 {name}_fnox")
    a("s_nop 4")
    vm = Vm(a)
    ld_k(64, 0, withq=False)
    a("s_waitcnt vmcnt(0)")
    mf_k(0, withq=False)
    a.label(f"{name}_fnox")
    a("s_nop 15")
    a("s_nop 3")
    for i in range(16):
        a(f"v_sub_f32 v{fb+i}, v{accP+i}, v{accQ+i}")
        a(f"v_add_f32 v{accQ+i}, v{accP+i}, v{accQ+i}")
    for i in range(16):
        a(f"v_mov_b32 v{accP+i}, v{fb+i}")
    WA = 8192 + 256 + 256
    a(f"s_cmp_eq_u32 s{sF}, 0")
    a(f"s_cbranch_scc1 {name}_fred0")
    a(f"s_sub_u32 s{sT0}, s{sF}, 1")
    a(f"s_mul_i32 s{sT0}, s{sT0}, {WA}")
    a(f"s_add_u32 s{sT0}, s{sT0}, {LDS_RED}")
    a(f"v_add_u32 v{vT0}, s{sT0}, v{vL16}")
    for q in range(8):
        a(f"ds_write_b128 v{vT0}, {vr(accP+4*q,4)} offset:{q*1024}")
    a(f"v_lshrrev_b32 v{vT1}, 2, v{vL16}")
    a(f"v_add_u32 v{vT1}, s{sT0}, v{vT1}")
    a(f"ds_write_b32 v{vT1}, v{accX} offset:8192")
    a(f"v_lshrrev_b32 v{vT1}, 5, v{vLane}")
    a(f"v_lshlrev_b32 v{vT1}, 6, v{vT1}")
    a(f"v_add_u32 v{vT1}, s{sT0}, v{vT1}")
    a("s_mov_b32 exec_lo, 1")
    a("s_mov_b32 exec_hi, 1")
    for q in range(4):
        a(f"ds_write_b128 v{vT1}, {vr(accW+4*q,4)} offset:{8192 + 256 + q*16}")
    a("s_mov_b64 exec, -1")
    a("s_waitcnt lgkmcnt(0)")
    lsig(a, vT0, vT1, C_R0)
    a(f"s_branch {name}_fsig")
    a.label(f"{name}_fred0")
    lwait(a, vT0, vT1, sT0, C_R0, 3, f"{name}_fw0", sleep=2)
    a(f"v_add_u32 v{vT0}, {LDS_RED}, v{vL16}")
    a(f"v_lshrrev_b32 v{vT2}, 2, v{vL16}")
    a(f"v_add_u32 v{vT2}, {LDS_RED}, v{vT2}")
    a(f"v_lshrrev_b32 v{vT1}, 5, v{vLane}")
    a(f"v_lshlrev_b32 v{vT1}, 6, v{vT1}")
    a(f"v_add_u32 v{vT1}, {LDS_RED}, v{vT1}")
    for src in range(3):
        for q in range(8):
            a(f"ds_read_b128 {vr(fb+4*q,4)}, v{vT0} offset:{src*WA + q*1024}")
        a(f"ds_read_b32 v{fb+32}, v{vT2} offset:{src*WA + 8192}")
        for q in range(4):
            a(f"ds_read_b128 {vr(fb+36+4*q,4)}, v{vT1} offset:{src*WA + 8192 + 256 + q*16}")
        a("s_waitcnt lgkmcnt(0)")
        for i in range(32):
            a(f"v_add_f32 v{accP+i}, v{accP+i}, v{fb+i}")
        a(f"v_add_f32 v{accX}, v{accX}, v{fb+32}")
        for i in range(16):
            a(f"v_add_f32 v{accW+i}, v{accW+i}, v{fb+36+i}")
    a(f"s_lshl_b32 s{sT0}, s{sEt}, 7")
    for g in range(4):
        a(f"s_add_u32 s{sT2}, s{sT0}, {WS_D + g*32}")
        a(f"buffer_store_dwordx4 {vr(accP+4*g,4)}, v{vY}, s[{srdWS}:{srdWS+3}], s{sT2} offen{SC}")
        a(f"s_add_u32 s{sT2}, s{sT0}, {WS_E + g*32}")
        a(f"buffer_store_dwordx4 {vr(accQ+4*g,4)}, v{vY}, s[{srdWS}:{srdWS+3}], s{sT2} offen{SC}")
    a(f"s_bitcmp1_b32 s{sJob}, 0")
    a(f"s_cbranch_scc0 {name}_fo1")
    a("s_mov_b32 exec_hi, 0")
    a(f"s_mov_b32 s{sT2}, {WS_D + 1024}")
    a(f"buffer_store_dword v{accX}, v{vY}, s[{srdWS}:{srdWS+3}], s{sT2} offen{SC}")
    a(f"s_mov_b32 s{sT2}, {WS_E + 1024}")
    a(f"buffer_store_dword v{accX}, v{vY}, s[{srdWS}:{srdWS+3}], s{sT2} offen{SC}")
    a("s_mov_b64 exec, -1")
    a.label(f"{name}_fo1")
    a(f"s_bitcmp1_b32 s{sJob}, 1")
    a(f"s_cbranch_scc0 {name}_fo2")
    a(f"v_lshrrev_b32 v{vT1}, 5, v{vLane}")
    a(f"v_lshlrev_b32 v{vT1}, 4, v{vT1}")
    a("s_mov_b32 exec_lo, 1")
    a("s_mov_b32 exec_hi, 1")
    for g in range(4):
        a(f"s_add_u32 s{sT2}, s{sT0}, {WS_D + 1024*Y_STRIDE + g*32}")
        a(f"buffer_store_dwordx4 {vr(accW+4*g,4)}, v{vT1}, s[{srdWS}:{srdWS+3}], s{sT2} offen{SC}")
        a(f"s_add_u32 s{sT2}, s{sT0}, {WS_E + 1024*Y_STRIDE + g*32}")
        a(f"buffer_store_dwordx4 {vr(accW+4*g,4)}, v{vT1}, s[{srdWS}:{srdWS+3}], s{sT2} offen{SC}")
    a("s_mov_b64 exec, -1")
    a.label(f"{name}_fo2")
    a(f"s_bitcmp1_b32 s{sJob}, 2")
    a(f"s_cbranch_scc0 {name}_fo3")
    a(f"v_mov_b32 v{vT1}, 0")
    a("s_mov_b64 exec, 1")
    a(f"s_mov_b32 s{sT2}, {WS_D + 1024*Y_STRIDE + 1024}")
    a(f"buffer_store_dword v{accW}, v{vT1}, s[{srdWS}:{srdWS+3}], s{sT2} offen{SC}")
    a(f"s_mov_b32 s{sT2}, {WS_E + 1024*Y_STRIDE + 1024}")
    a(f"buffer_store_dword v{accW}, v{vT1}, s[{srdWS}:{srdWS+3}], s{sT2} offen{SC}")
    a("s_mov_b64 exec, -1")
    a.label(f"{name}_fo3")
    lsig(a, vT0, vT1, C_R1)
    a("s_waitcnt vmcnt(0)")
    a(f"s_add_u32 s{sT0}, s2, {FL_D}")
    publish(a, vT0, vT1, sT0)
    a.label(f"{name}_fsig")
    tl_stamp(a, 5)

    Rp = RegAlloc(base, 168)
    vWa = [Rp.alloc("wa0"), Rp.alloc("wa1")]
    vG2 = Rp.alloc("g"); vYa = Rp.alloc("ya"); vOffW = Rp.alloc("offw"); vFl2 = Rp.alloc("fl")
    vYv = Rp.alloc("y", 16)
    fO = Rp.alloc("fO", 64)
    NS = 3
    fW = [Rp.alloc(f"fW{i}", 8) for i in range(NS)]
    acc = [Rp.alloc("acc0", 16), Rp.alloc("acc1", 16)]
    nvmax[0] = max(nvmax[0], Rp.next)
    sTb, sEb, sTt2, sKh2, sT0row, sE0, sMirE = 56, 57, 58, 59, 60, 61, 62
    a(f"s_mov_b32 s{sTb}, s{sHead}")
    a(f"s_mov_b32 s{sEb}, s{sQb}")
    a(f"s_and_b32 s{sTt2}, s{sF}, 1")
    a(f"s_lshr_b32 s{sKh2}, s{sF}, 1")
    a(f"s_lshl_b32 s{sT0}, s{sTt2}, 5")
    a(f"s_lshl_b32 s{sT0row}, s{sTb}, 6")
    a(f"s_add_u32 s{sT0row}, s{sT0row}, s{sT0}")
    a(f"s_lshl_b32 s{sT0}, s{sKh2}, 5")
    a(f"s_lshl_b32 s{sE0}, s{sEb}, 6")
    a(f"s_add_u32 s{sE0}, s{sE0}, s{sT0}")
    srd(a, srdA, sOut, 2048*1024)
    a(f"v_lshrrev_b32 v{vT0}, 3, v{vLane}")
    a(f"v_lshlrev_b32 v{vOffW}, 10, v{vT0}")
    a(f"v_bfe_u32 v{vT1}, v{vLane}, 4, 1")
    a(f"v_bfe_u32 v{vT2}, v{vLane}, 2, 1")
    a(f"v_xor_b32 v{vT1}, v{vT1}, v{vT2}")
    a(f"v_lshlrev_b32 v{vT1}, 6, v{vT1}")
    a(f"v_add_u32 v{vOffW}, v{vOffW}, v{vT1}")
    a(f"v_and_b32 v{vT1}, 3, v{vLane}")
    a(f"v_lshlrev_b32 v{vT1}, 4, v{vT1}")
    a(f"v_add_u32 v{vOffW}, v{vOffW}, v{vT1}")
    a(f"v_bfe_u32 v{vT0}, v{vLane}, 2, 2")
    a(f"v_lshrrev_b32 v{vT1}, 5, v{vLane}")
    a(f"v_lshlrev_b32 v{vT1}, 2, v{vT1}")
    a(f"v_add_u32 v{vT0}, v{vT0}, v{vT1}")
    a(f"v_lshlrev_b32 v{vT0}, 7, v{vT0}")
    a(f"v_bfe_u32 v{vT1}, v{vLane}, 4, 1")
    a(f"v_lshlrev_b32 v{vT1}, 5, v{vT1}")
    a(f"v_add_u32 v{vT0}, v{vT0}, v{vT1}")
    a(f"v_and_b32 v{vT1}, 3, v{vLane}")
    a(f"v_lshlrev_b32 v{vT1}, 3, v{vT1}")
    a(f"v_add_u32 v{vT0}, v{vT0}, v{vT1}")
    a(f"s_lshl_b32 s{sT0}, s{sKh2}, 15")
    a(f"v_add_u32 v{vT0}, s{sT0}, v{vT0}")
    a(f"v_bfe_u32 v{vT1}, v{vLane}, 3, 1")
    for et in range(2):
        a(f"v_xor_b32 v{vT2}, {et}, v{vT1}")
        a(f"v_lshlrev_b32 v{vT2}, 6, v{vT2}")
        a(f"v_add_u32 v{vWa[et]}, v{vT0}, v{vT2}")
    a(f"v_and_b32 v{vT0}, 31, v{vLane}")
    a(f"v_add_u32 v{vT0}, s{sT0row}, v{vT0}")
    a(f"v_lshlrev_b32 v{vG2}, 2, v{vT0}")
    a(f"v_sub_u32 v{vT1}, 2048, v{vT0}")
    a(f"s_cmp_lt_u32 s{sT0row}, 1024")
    a("s_cselect_b64 vcc, -1, 0")
    a(f"s_cselect_b32 s{sT2}, 1, 0")
    a(f"v_cndmask_b32 v{vT1}, v{vT1}, v{vT0}, vcc")
    a(f"v_mul_u32_u24 v{vYa}, {Y_STRIDE}, v{vT1}")
    a(f"v_lshrrev_b32 v{vT1}, 5, v{vLane}")
    a(f"v_lshlrev_b32 v{vT1}, 4, v{vT1}")
    a(f"s_cmp_lt_u32 s{sE0}, 256")
    a(f"s_cselect_b32 s{sMirE}, 0, 1")
    a(f"s_cselect_b32 s63, 1, 0")
    a(f"s_cbranch_scc0 {name}_mir")
    a(f"v_add_u32 v{vYa}, v{vYa}, v{vT1}")
    a(f"s_lshl_b32 s{sT1}, s{sE0}, 2")
    a(f"s_branch {name}_ya")
    a.label(f"{name}_mir")
    a(f"s_sub_u32 s{sT1}, 485, s{sE0}")
    a(f"s_lshl_b32 s{sT1}, s{sT1}, 2")
    a(f"v_add_u32 v{vYa}, s{sT1}, v{vYa}")
    a(f"v_sub_u32 v{vYa}, v{vYa}, v{vT1}")
    a(f"s_mov_b32 s{sT1}, 0")
    a.label(f"{name}_ya")
    a(f"s_cmp_eq_u32 s{sT2}, s63")
    a(f"s_mov_b32 s{sT3}, {WS_E}")
    a(f"s_cselect_b32 s{sT2}, {WS_D}, s{sT3}")
    a(f"s_add_u32 s63, s{sT1}, s{sT2}")
    for e in range(2):
        for i in range(16):
            a(f"v_mov_b32 v{acc[e]+i}, 0")
    a(f"s_lshl_b32 s{sT0}, s{sKh2}, 8")
    a(f"s_lshl_b32 s{sT1}, s{sTt2}, 7")
    a(f"s_add_u32 s{sT0}, s{sT0}, s{sT1}")
    a(f"s_lshl_b32 s30, s{sT0}, 7")
    a(f"s_lshl_b32 s{sT0}, s{sT0}, 10")
    a(f"s_lshl_b32 s{sT1}, s{sEb}, 7")
    a(f"s_add_u32 s{sT2}, s{sT0}, s{sT1}")
    for m in range(16):
        a(f"s_add_u32 s{sT1}, s{sT2}, {m*8192}")
        a(f"buffer_load_dwordx4 {vr(fO+4*m,4)}, v{vOffW}, s[{srdC}:{srdC+3}], s{sT1} offen")
    a(f"s_cmp_lg_u32 s{sF}, 0")
    a(f"s_cbranch_scc1 {name}_c1")
    a(f"v_lshlrev_b32 v{vFl2}, {FSH}, v{vLane}")
    a(f"v_add_u32 v{vFl2}, {WS_FLAG + (FL_D << FSH)}, v{vFl2}")
    gpoll_multi(a, vFl2, vYv, 4, 64 << FSH, f"{name}_gd", sCnt, sleep=8)
    lsig(a, vT0, vT1, C_GO3)
    a(f"s_branch {name}_c2")
    a.label(f"{name}_c1")
    lwait(a, vT0, vT1, sT0, C_GO3, 1, f"{name}_cw1", sleep=16)
    a.label(f"{name}_c2")
    a(f"s_mov_b32 s{sT1}, {WS_G}")
    a(f"buffer_load_dword v{vG2}, v{vG2}, s[{srdWS}:{srdWS+3}], s{sT1} offen{SC}")
    for c in range(4):
        a(f"buffer_load_dwordx4 {vr(vYv+4*c,4)}, v{vYa}, s[{srdWS}:{srdWS+3}], s63 offen offset:{c*32}{SC}")
    tl_stamp(a, 6)
    a(f"v_and_b32 v{vT0}, 31, v{vLane}")
    a(f"s_lshr_b32 s{sT0}, s{sHead}, 2")
    a(f"s_lshl_b32 s{sT0}, s{sT0}, 5")
    a(f"v_add_u32 v{vT0}, s{sT0}, v{vT0}")
    a(f"v_lshlrev_b32 v{vFl2}, {FSH}, v{vT0}")
    a(f"v_add_u32 v{vFl2}, {WS_FLAG + (FL_O << FSH)}, v{vFl2}")
    a(f"v_add_u32 v{vOffW}, s30, v{vL16}")
    a(f"s_lshl_b32 s{sT0}, s{sTb}, 1")
    a(f"s_add_u32 s{sT0}, s{sT0}, s{sTt2}")
    a(f"s_lshl_b32 s{sT0}, s{sT0}, 5")
    a(f"s_lshl_b32 s{sT1}, s{sKh2}, 4")
    a(f"s_add_u32 s{sT0}, s{sT0}, s{sT1}")
    a(f"s_lshl_b32 s{sT0}, s{sT0}, 10")
    a(f"s_add_u32 s30, s{sT0}, {WS_O}")
    a("s_waitcnt vmcnt(0)")
    lwait(a, vT0, vT1, sT0, C_ADONE, 8, f"{name}_cw2", sleep=3)
    tl_stamp(a, 7)
    for m in range(16):
        a(f"ds_write_b128 v{vOffW}, {vr(fO+4*m,4)} offset:{m*1024}")
    a("s_waitcnt lgkmcnt(0)")
    a(f"s_lshl_b32 s{sT0}, s{sKh2}, 2")
    a(f"s_add_u32 s31, s{sT0}, {C_W}")
    lsig(a, vT0, vT1, "s31")
    tl_stamp(a, 1)
    if not PAR.get("ODIRECT", 0):
        a(f"s_cmp_lg_u32 s{sF}, 0")
        a(f"s_cbranch_scc1 {name}_c3")
        gpoll(a, vFl2, vT0, f"{name}_go", 55, sleep=2)
        lsig(a, vT0, vT1, C_GO3)
        a(f"s_branch {name}_c4")
        a.label(f"{name}_c3")
        lwait(a, vT0, vT1, sT0, C_GO3, 2, f"{name}_cw3", sleep=1)
        a.label(f"{name}_c4")
    tl_stamp(a, 8)
    a(f"s_mov_b32 s55, {PAR.get('ORETRY', 32)}")
    a.label(f"{name}_oload")
    for i in range(16):
        a(f"s_add_u32 s{sT1}, s30, {i*1024}")
        a(f"buffer_load_dwordx4 {vr(fO+4*i,4)}, v{vL16}, s[{srdWS}:{srdWS+3}], s{sT1} offen{SC}")
    lwait(a, vT0, vT1, sT0, "s31", 2, f"{name}_cw4", sleep=0)
    a(f"v_mov_b32 v{vFl2}, 0")
    def wreads(i):
        s = i % NS
        for et in range(2):
            for u in range(2):
                a(f"ds_read_b64_tr_b16 {vr(fW[s]+4*et+2*u,2)}, v{vWa[et]} offset:{i*2048 + u*1024}")
    tl_stamp(a, 2)
    wreads(0); wreads(1)
    for i in range(16):
        if i == 1: tl_stamp(a, 3)
        if i == 8: tl_stamp(a, 4)
        if i + 2 < 16:
            wreads(i + 2)
            a(f"s_waitcnt vmcnt({15-i}) lgkmcnt(8)")
        else:
            a(f"s_waitcnt vmcnt({15-i}) lgkmcnt({4*(15-i)})")
        for et in range(2):
            a(f"v_mfma_f32_32x32x16_bf16 {vr(acc[et],16)}, {vr(fW[i%NS]+4*et,4)}, {vr(fO+4*i,4)}, {vr(acc[et],16)}")
        a(f"v_max3_u32 v{vFl2}, v{vFl2}, v{fO+4*i}, v{fO+4*i+1}")
        a(f"v_max3_u32 v{vFl2}, v{vFl2}, v{fO+4*i+2}, v{fO+4*i+3}")
    a(f"v_cmp_eq_u32 vcc, -1, v{vFl2}")
    a("s_nop 4")
    a(f"s_cbranch_vccz {name}_ook")
    a(f"s_sub_u32 s55, s55, 1")
    a(f"s_cbranch_scc1 {name}_ook")
    a("s_nop 15")
    for e in range(2):
        for i in range(16):
            a(f"v_mov_b32 v{acc[e]+i}, 0")
    a("s_sleep 2")
    a(f"s_branch {name}_oload")
    a.label(f"{name}_ook")
    if TL["on"]:
        a("s_sub_u32 s86, 32, s55")
        a("s_add_u32 s86, s86, s90" if TL.get("rt") else "s_add_u32 s86, s86, s92")
    tl_stamp(a, 9)
    a("s_nop 15")
    a(f"s_lshl_b32 s{sT0}, s{sF}, 12")
    a(f"s_add_u32 s{sT0}, s{sT0}, 65536")
    a(f"v_add_u32 v{vT0}, s{sT0}, v{vL16}")
    a(f"s_cmp_eq_u32 s{sKh2}, 0")
    a(f"s_cbranch_scc0 {name}_y1")
    for q in range(4):
        a(f"ds_write_b128 v{vT0}, {vr(acc[1]+4*q,4)} offset:{q*1024}")
    a(f"s_branch {name}_y2")
    a.label(f"{name}_y1")
    for q in range(4):
        a(f"ds_write_b128 v{vT0}, {vr(acc[0]+4*q,4)} offset:{q*1024}")
    for i in range(16):
        a(f"v_mov_b32 v{acc[0]+i}, v{acc[1]+i}")
    a.label(f"{name}_y2")
    a("s_waitcnt lgkmcnt(0)")
    a(f"s_lshl_b32 s{sT0}, s{sTt2}, 2")
    a(f"s_add_u32 s31, s{sT0}, {C_Y}")
    lsig(a, vT1, vT2, "s31")
    lwait(a, vT1, vT2, sT0, "s31", 2, f"{name}_cw5", sleep=0)
    a(f"s_xor_b32 s{sT0}, s{sF}, 2")
    a(f"s_lshl_b32 s{sT0}, s{sT0}, 12")
    a(f"s_add_u32 s{sT0}, s{sT0}, 65536")
    a(f"v_add_u32 v{vT0}, s{sT0}, v{vL16}")
    for q in range(4):
        a(f"ds_read_b128 {vr(fO+4*q,4)}, v{vT0} offset:{q*1024}")
    a("s_waitcnt lgkmcnt(0)")
    S = acc[0]
    for i in range(16):
        a(f"v_add_f32 v{S+i}, v{S+i}, v{fO+i}")
    a(f"s_cmp_eq_u32 s{sMirE}, 0")
    a(f"s_cbranch_scc0 {name}_cm")
    for i in range(16):
        a(f"v_sub_f32 v{S+i}, v{S+i}, v{vYv+i}")
        a(f"v_fma_f32 v{S+i}, v{vG2}, v{S+i}, v{vYv+i}")
    a(f"s_branch {name}_st")
    a.label(f"{name}_cm")
    for g in range(4):
        for r in range(4):
            y = vYv + 4*(3-g) + (3-r)
            a(f"v_sub_f32 v{S+4*g+r}, v{S+4*g+r}, v{y}")
            a(f"v_fma_f32 v{S+4*g+r}, v{vG2}, v{S+4*g+r}, v{y}")
    a.label(f"{name}_st")
    P = fO + 16
    for i in range(8):
        a(f"v_cvt_pk_bf16_f32 v{P+i}, v{S+2*i}, v{S+2*i+1}")
    a(f"v_and_b32 v{vT0}, 31, v{vLane}")
    a(f"v_add_u32 v{vT0}, s{sT0row}, v{vT0}")
    a(f"v_lshlrev_b32 v{vT0}, 10, v{vT0}")
    a(f"v_lshrrev_b32 v{vT1}, 5, v{vLane}")
    a(f"v_lshlrev_b32 v{vT1}, 4, v{vT1}")
    a(f"v_add_u32 v{vT0}, v{vT0}, v{vT1}")
    a(f"s_lshl_b32 s{sT0}, s{sE0}, 1")
    for pr in range(2):
        a(f"v_permlane32_swap_b32 v{P+4*pr}, v{P+4*pr+2}")
        a(f"v_permlane32_swap_b32 v{P+4*pr+1}, v{P+4*pr+3}")
    for pr in range(2):
        a(f"buffer_store_dwordx4 {vr(P+4*pr,4)}, v{vT0}, s[{srdA}:{srdA+3}], s{sT0} offen offset:{32*pr}")
    tl_stamp(a, 10)
    dbg_exit(a, [5, 8, -1], [0, 5], 8, 7)
    if not TL.get("dbg"): tl_exit(a, 2, sWS)
    a("s_endpgm")
```

```python
from asmlib import *
from common import *
from gen_fused import *

PRIO_MODE = 1
PRIO_SW = (5, 7)
EXP = {}
PAR = {}
sHead, sQb = 52, 53

def decode_hq(a):
    a(f"s_and_b32 s{sT0}, s2, 7")
    a(f"s_lshr_b32 s{sT1}, s2, 3")
    a(f"s_lshl_b32 s{sHead}, s{sT0}, 2")
    a(f"s_and_b32 s{sT0}, s{sT1}, 3")
    a(f"s_add_u32 s{sHead}, s{sHead}, s{sT0}")
    a(f"s_lshr_b32 s{sQb}, s{sT1}, 2")


def edge_regs(r0):
    return dict(vG=r0, vA=r0+4, vB=r0+8, vR=r0+12, vX1=r0+16, vRe=r0+20, vD=r0+24)

def emit_edge_loads(a, name, V, r0, sF, sS):
    vL16 = V["vL16"]
    E = edge_regs(r0); vG, vA, vB, vR, vX1, vRe, vD = [E[k] for k in ("vG","vA","vB","vR","vX1","vRe","vD")]
    a(f"s_lshl_b32 s{sS}, s2, 2")
    a(f"s_add_u32 s{sS}, s{sS}, s{sF}")
    a(f"global_load_dwordx4 {vr(vG,4)}, v{vL16}, s[{sGate}:{sGate+1}]")
    a(f"s_lshl_b32 s{sT0}, s{sS}, 10")
    a(f"buffer_load_dwordx4 {vr(vA,4)}, v{vL16}, s[{srdA}:{srdA+3}], s{sT0} offen")
    a(f"s_sub_u32 s{sT1}, 2048, s{sS}")
    a(f"s_lshl_b32 s{sT1}, s{sT1}, 10")
    a(f"buffer_load_dwordx4 {vr(vB,4)}, v{vL16}, s[{srdA}:{srdA+3}], s{sT1} offen")
    a(f"s_mov_b32 s{sT1}, {1024*1024}")
    a(f"buffer_load_dwordx4 {vr(vX1,4)}, v{vL16}, s[{srdA}:{srdA+3}], s{sT1} offen")
    a(f"s_lshl_b32 s{sT1}, s2, 10")
    a(f"v_add_u32 v{vD}, s{sT1}, v{vL16}")
    a(f"global_load_dwordx4 {vr(vRe,4)}, v{vD}, s[{sHre}:{sHre+1}]")

def emit_edge_compute(a, name, V, r0, sF, sS, sfx):
    vLane, vL16, vT0, vT1, vT2, vT3 = V["vLane"], V["vL16"], V["vT0"], V["vT1"], V["vT2"], V["vT3"]
    E = edge_regs(r0); vG, vA, vB, vR, vX1, vRe, vD = [E[k] for k in ("vG","vA","vB","vR","vX1","vRe","vD")]
    srd(a, srdWS, sWS, WS_SIZE_USED)
    a("s_waitcnt vmcnt(0)")
    a(f"s_mov_b32 s31, 0xbf803f80")
    a(f"v_dot2_f32_bf16 v{vD}, v{vA}, v{vG}, 0")
    a(f"v_dot2_f32_bf16 v{vD+1}, v{vB}, v{vG}, 0")
    a(f"v_dot2_f32_bf16 v{vD+2}, v{vA}, s31, 0")
    a(f"v_dot2_f32_bf16 v{vD+3}, v{vRe}, v{vX1}, 0")
    a(f"v_dot2_f32_bf16 v{vD+4}, v{vX1}, v{vG}, 0")
    a(f"v_dot2_f32_bf16 v{vD+5}, v{vX1}, s31, 0")
    a("s_nop 2")
    for q in range(4):
        if q > 0:
            a(f"v_dot2c_f32_bf16 v{vD}, v{vA+q}, v{vG+q}")
            a(f"v_dot2c_f32_bf16 v{vD+1}, v{vB+q}, v{vG+q}")
            a(f"v_dot2c_f32_bf16 v{vD+2}, s31, v{vA+q}")
            a(f"v_dot2c_f32_bf16 v{vD+3}, v{vRe+q}, v{vX1+q}")
            a(f"v_dot2c_f32_bf16 v{vD+4}, v{vX1+q}, v{vG+q}")
            a(f"v_dot2c_f32_bf16 v{vD+5}, s31, v{vX1+q}")
        a(f"v_dot2c_f32_bf16 v{vD+2}, s31, v{vB+q}")
    a("s_nop 3")
    for ctrl in ["row_shr:1", "row_shr:2", "row_shr:4", "row_shr:8"]:
        for r in range(6):
            a(f"v_add_f32_dpp v{vD+r}, v{vD+r}, v{vD+r} {ctrl} row_mask:0xf bank_mask:0xf bound_ctrl:0")
    for r in range(6):
        a(f"v_add_f32_dpp v{vD+r}, v{vD+r}, v{vD+r} row_bcast:15 row_mask:0xa bank_mask:0xf")
    for r in range(6):
        a(f"v_add_f32_dpp v{vD+r}, v{vD+r}, v{vD+r} row_bcast:31 row_mask:0xc bank_mask:0xf")
    for r in (0, 1, 4):
        a(f"v_mul_f32 v{vD+r}, {f2u(-1.4426950408889634)}, v{vD+r}")
    for r in (0, 1, 4):
        a(f"v_exp_f32 v{vD+r}, v{vD+r}")
    a("s_nop 0")
    for r in (0, 1, 4):
        a(f"v_add_f32 v{vD+r}, 1.0, v{vD+r}")
    for r in (0, 1, 4):
        a(f"v_rcp_f32 v{vD+r}, v{vD+r}")
    a(f"v_cvt_pk_bf16_f32 v{vD+2}, v{vD+2}, 0")
    a(f"v_cvt_pk_bf16_f32 v{vR}, v{vD+3}, 0")
    a(f"v_cvt_pk_bf16_f32 v{vD+5}, v{vD+5}, 0")
    for i in range(1, 4): a(f"v_mov_b32 v{vR+i}, 0")
    for i in range(4): a(f"v_mov_b32 v{vA+i}, 0")
    a(f"v_mov_b32 v{vT1}, 0")
    a("s_mov_b32 exec_lo, 0")
    a("s_mov_b32 exec_hi, 0x80000000")
    a(f"s_lshl_b32 s{sT0}, s{sS}, 2")
    a(f"s_add_u32 s{sT0}, s{sT0}, {WS_G}")
    a(f"buffer_store_dword v{vD}, v{vT1}, s[{srdWS}:{srdWS+3}], s{sT0} offen{SC}")
    a(f"s_cmp_eq_u32 s{sS}, 0")
    a(f"s_cbranch_scc1 {name}_e1{sfx}")
    a(f"s_sub_u32 s{sT0}, 2048, s{sS}")
    a(f"s_lshl_b32 s{sT0}, s{sT0}, 2")
    a(f"s_add_u32 s{sT0}, s{sT0}, {WS_G}")
    a(f"buffer_store_dword v{vD+1}, v{vT1}, s[{srdWS}:{srdWS+3}], s{sT0} offen{SC}")
    a.label(f"{name}_e1{sfx}")
    a(f"s_lshr_b32 s{sT0}, s{sS}, 4")
    a(f"s_add_u32 s{sT0}, s{sT0}, {8*A_KSTEPS}")
    a(f"s_lshl_b32 s{sT0}, s{sT0}, 10")
    a(f"s_bfe_u32 s{sT1}, s{sS}, 0x10003")
    a(f"s_lshl_b32 s{sT1}, s{sT1}, 9")
    a(f"s_add_u32 s{sT0}, s{sT0}, s{sT1}")
    a(f"s_and_b32 s{sT1}, s{sS}, 7")
    a(f"s_lshl_b32 s{sT1}, s{sT1}, 1")
    a(f"s_add_u32 s{sT0}, s{sT0}, s{sT1}")
    a(f"s_add_u32 s{sT0}, s{sT0}, {WS_A}")
    a(f"buffer_store_short v{vD+2}, v{vT1}, s[{srdWS}:{srdWS+3}], s{sT0} offen{SC}")
    a(f"s_cmp_lg_u32 s{sF}, 0")
    a(f"s_cbranch_scc1 {name}_e2{sfx}")
    a(f"s_lshr_b32 s{sT0}, s2, 5")
    a(f"s_mul_i32 s{sT0}, s{sT0}, {A_KSTEPS}")
    a(f"s_add_u32 s{sT0}, s{sT0}, 64")
    a(f"s_lshl_b32 s{sT0}, s{sT0}, 10")
    a(f"s_and_b32 s{sT1}, s2, 31")
    a(f"s_lshl_b32 s{sT1}, s{sT1}, 4")
    a(f"s_add_u32 s{sT0}, s{sT0}, s{sT1}")
    a(f"s_add_u32 s{sT0}, s{sT0}, {WS_A}")
    a(f"buffer_store_dwordx4 {vr(vR,4)}, v{vT1}, s[{srdWS}:{srdWS+3}], s{sT0} offen{SC}")
    a(f"buffer_store_dwordx4 {vr(vA,4)}, v{vT1}, s[{srdWS}:{srdWS+3}], s{sT0} offen offset:512{SC}")
    a.label(f"{name}_e2{sfx}")
    a(f"s_cmp_lg_u32 s{sS}, 1")
    a(f"s_cbranch_scc1 {name}_e3{sfx}")
    a(f"s_mov_b32 s{sT0}, {WS_G + 4096}")
    a(f"buffer_store_dword v{vD+4}, v{vT1}, s[{srdWS}:{srdWS+3}], s{sT0} offen{SC}")
    a(f"v_mov_b32 v{vR}, v{vD+5}")
    a(f"s_mov_b32 s{sT0}, {WS_A + (8*A_KSTEPS + 64)*1024}")
    a(f"buffer_store_dwordx4 {vr(vR,4)}, v{vT1}, s[{srdWS}:{srdWS+3}], s{sT0} offen{SC}")
    a(f"buffer_store_dwordx4 {vr(vA,4)}, v{vT1}, s[{srdWS}:{srdWS+3}], s{sT0} offen offset:512{SC}")
    a.label(f"{name}_e3{sfx}")
    a("s_mov_b64 exec, -1")

def gen_attn_part(a, name, base, nvmax, V):
    vLane, vL16, vT0, vT1 = V["vLane"], V["vL16"], V["vT0"], V["vT1"]
    Ra = RegAlloc(base, 168)
    vAK = Ra.alloc("addrK"); vAV = Ra.alloc("addrV"); vM = Ra.alloc("m")
    vRd = Ra.alloc("rdaddr"); vRv = Ra.alloc("rdval")
    vQ = [Ra.alloc("Q0", 4), Ra.alloc("Q1", 4)]
    vK = Ra.alloc("K", 4); vV0 = Ra.alloc("V0", 4); vV1 = Ra.alloc("V1", 4)
    vP = Ra.alloc("P", 8)
    vS = [Ra.alloc("S0", 16), Ra.alloc("S1", 16)]
    vT = Ra.alloc("T", 16)
    vO = [Ra.alloc("O0", 16), Ra.alloc("O1", 16)]
    vC = [Ra.alloc("C0", 16), Ra.alloc("C1", 16)]
    nvmax[0] = max(nvmax[0], Ra.next)
    sKh, sQp, sIt, sMask, sRetry = 54, 55, 56, 58, 57
    a.label(f"{name}_attn")
    decode_hq(a)
    a(f"s_and_b32 s{sQp}, s{sW}, 3")
    a(f"s_lshr_b32 s{sKh}, s{sW}, 2")
    srd(a, srdWS, sWS, WS_SIZE_USED)
    a(f"s_mov_b32 s{sRetry}, 0")
    a(f"s_lshl_b32 s60, s{sKh}, 15")
    a(f"s_mul_i32 s59, s{sKh}, {VHALF}")
    a(f"v_lshrrev_b32 v{vT0}, 5, v{vLane}")
    a(f"v_lshlrev_b32 v{vT0}, 8, v{vT0}")
    a(f"v_and_b32 v{vAK}, 31, v{vLane}")
    a(f"v_lshlrev_b32 v{vAV}, 4, v{vAK}")
    a(f"v_add_u32 v{vAV}, v{vAV}, v{vT0}")
    a(f"v_cmp_eq_u32 vcc, 16, v{vAK}")
    a(f"v_cmp_eq_u32 s[62:63], 20, v{vAK}")
    a(f"v_mov_b32 v{vM}, 528")
    a(f"v_mov_b32 v{vT0}, 512")
    a("s_or_b64 vcc, vcc, s[62:63]")
    a("s_nop 1")
    a(f"v_cndmask_b32 v{vM}, v{vM}, v{vT0}, vcc")
    a(f"v_cmp_gt_u32 vcc, 16, v{vAK}")
    a("s_nop 1")
    a(f"v_cndmask_b32 v{vAV}, v{vM}, v{vAV}, vcc")
    a(f"v_add_u32 v{vAV}, 65536, v{vAV}")
    a(f"v_add_u32 v{vAV}, s59, v{vAV}")
    for i in range(4):
        a(f"v_mov_b32 v{vV1+i}, 0")
    for q in range(2):
        for i in range(16):
            a(f"v_mov_b32 v{vO[q]+i}, 0")
    for i in range(4, 8):
        a(f"v_mov_b32 v{vP+i}, 0")
    a(f"v_add_u32 v{vAK}, s60, v{vL16}")
    a(f"s_lshl_b32 s{sT0}, s{sHead}, 6")
    a(f"s_lshl_b32 s{sT1}, s{sQb}, 3")
    a(f"s_add_u32 s{sT0}, s{sT0}, s{sT1}")
    a(f"s_lshl_b32 s{sT1}, s{sQp}, 1")
    a(f"s_add_u32 s{sT0}, s{sT0}, s{sT1}")
    a(f"s_lshl_b32 s61, s{sT0}, 10")
    read_nonce(a, vT0, vT1)
    tl_stamp(a, 3)
    lwait(a, vT0, vT1, sT0, C_GO, 1, f"{name}_wgo", sleep=2)
    a(f"buffer_load_dwordx4 {vr(vQ[0],4)}, v{vL16}, s[{srdWS}:{srdWS+3}], s61 offen{SC}")
    a(f"buffer_load_dwordx4 {vr(vQ[1],4)}, v{vL16}, s[{srdWS}:{srdWS+3}], s61 offen offset:1024{SC}")
    tl_stamp(a, 4)
    lwait(a, vT0, vT1, sT0, C_RDY, 1, f"{name}_wr0", sleep=1)
    a(f"s_lshl_b32 s60, s{sKh}, 2")
    a(f"s_add_u32 s60, s60, {C_RDY}")
    lwait(a, vT0, vT1, sT0, "s60", 1, f"{name}_wr1", sleep=1)
    a(f"v_add_u32 v{vRd}, 8, v{vT0}")
    a("s_waitcnt vmcnt(0)")
    tl_stamp(a, 5)

    def rowmax(S):
        a(f"v_max3_f32 v{vM}, v{S}, v{S+1}, v{S+2}")
        for i in range(3, 15, 2):
            a(f"v_max3_f32 v{vM}, v{vM}, v{S+i}, v{S+i+1}")
        a(f"v_max_f32 v{vM}, v{vM}, v{S+15}")
    def bcast_negmax(C):
        a(f"v_mov_b32 v{vT0}, v{vM}")
        a("s_nop 1")
        a(f"v_permlane32_swap_b32 v{vT0}, v{vM}")
        a("s_nop 1")
        a(f"v_max_f32 v{vM}, v{vM}, v{vT0}")
        a(f"v_sub_f32 v{C}, 0, v{vM}")
        for i in range(1, 16):
            a(f"v_mov_b32 v{C+i}, v{C}")
    a(f"ds_read_b128 {vr(vT,4)}, v{vL16}")
    a(f"ds_read_b128 {vr(vK,4)}, v{vAK}")
    a("s_waitcnt lgkmcnt(1)")
    a(f"v_mfma_f32_32x32x16_bf16 {vr(vS[0],16)}, {vr(vT,4)}, {vr(vQ[0],4)}, 0")
    a(f"v_mfma_f32_32x32x16_bf16 {vr(vS[1],16)}, {vr(vT,4)}, {vr(vQ[1],4)}, 0")
    a(f"ds_read_b128 {vr(vV0,4)}, v{vAV}")
    a("s_nop 8")
    rowmax(vS[0]); bcast_negmax(vC[0])
    a("s_waitcnt lgkmcnt(0)")
    a(f"v_mfma_f32_32x32x16_bf16 {vr(vS[0],16)}, {vr(vK,4)}, {vr(vQ[0],4)}, {vr(vC[0],16)}")
    rowmax(vS[1]); bcast_negmax(vC[1])
    a("s_nop 1")
    a(f"v_mfma_f32_32x32x16_bf16 {vr(vS[1],16)}, {vr(vK,4)}, {vr(vQ[1],4)}, {vr(vC[1],16)}")
    a(f"ds_read_b128 {vr(vK,4)}, v{vAK} offset:1024")
    tl_stamp(a, 6)

    def step(u, q):
        S = vS[q]
        e = lambda i: a(f"v_exp_f32 v{vT+i}, v{S+i}")
        c = lambda i: a(f"v_cvt_pk_bf16_f32 v{vP+i}, v{vT+2*i}, v{vT+2*i+1}")
        e(0); e(1); e(2); c(0); e(3); e(4)
        if q == 1:
            a("s_waitcnt lgkmcnt(0)")
        a(f"v_mfma_f32_32x32x16_bf16 {vr(vO[q^1],16)}, {vr(vV1,4)}, {vr(vP+4,4)}, {vr(vO[q^1],16)}")
        if q == 0:
            a(f"ds_read_b128 {vr(vV1,4)}, v{vAV} offset:{(2*u+1)*VG}")
        c(1); e(5); e(6); c(2); e(7); e(8); c(3); e(9); e(10)
        if q == 0:
            a("s_waitcnt lgkmcnt(2)")
        a(f"v_mfma_f32_32x32x16_bf16 {vr(vO[q],16)}, {vr(vV0,4)}, {vr(vP,4)}, {vr(vO[q],16)}")
        if q == 1:
            a(f"ds_read_b128 {vr(vV0,4)}, v{vAV} offset:{(2*u+2)*VG}")
        e(11); c(4); e(12); c(5); e(13); e(14); c(6); e(15)
        if q == 0:
            a("s_waitcnt lgkmcnt(1)")
        a(f"v_mfma_f32_32x32x16_bf16 {vr(S,16)}, {vr(vK,4)}, {vr(vQ[q],4)}, {vr(vC[q],16)}")
        if q == 1:
            a(f"ds_read_b128 {vr(vK,4)}, v{vAK} offset:{(u+2)*1024}")
        c(7)

    a(f"s_mov_b32 s{sIt}, 0")
    a("s_setprio 2")
    lbl = f"{name}_loop"
    if EXP.get("al64"): a.raw(".p2align 6")
    if EXP.get("al64s4"):
        a.raw(".p2align 6"); a("s_nop 0")
    a.label(lbl)
    for u in range(4):
        step(u, 0)
        if u == 0:
            a(f"ds_read_b32 v{vRv}, v{vRd}")
        step(u, 1)
        if u == 1:
            a(f"v_readfirstlane_b32 s{sT0}, v{vRv}")
            a(f"v_add_u32 v{vRd}, 8, v{vRd}")
            a("s_nop 2")
            a(f"s_cmp_lg_u32 s{sT0}, 0")
            a(f"s_cbranch_scc1 {name}_nosync")
            a(f"v_subrev_u32 v{vT0}, 8, v{vRd}")
            a(f"s_mov_b32 s{sT3}, {SPIN_MAX*16}")
            a.label(f"{name}_wrs")
            a(f"ds_read_b32 v{vT1}, v{vT0}")
            a("s_waitcnt lgkmcnt(0)")
            a(f"v_readfirstlane_b32 s{sT0}, v{vT1}")
            a(f"s_sub_u32 s{sT3}, s{sT3}, 1")
            a(f"s_cbranch_scc1 {name}_nosync")
            a("s_nop 1")
            a(f"s_cmp_lg_u32 s{sT0}, 0")
            a(f"s_cbranch_scc1 {name}_nosync")
            a("s_sleep 1")
            a(f"s_branch {name}_wrs")
            a.label(f"{name}_nosync")
    a(f"v_add_u32 v{vAK}, 4096, v{vAK}")
    a(f"v_add_u32 v{vAV}, {8*VG}, v{vAV}")
    a(f"s_add_u32 s{sIt}, s{sIt}, 1")
    a(f"s_cmp_eq_u32 s{sIt}, {PRIO_SW[0]}")
    a(f"s_cbranch_scc0 {name}_p1")
    a("s_setprio 1")
    a.label(f"{name}_p1")
    a(f"s_cmp_eq_u32 s{sIt}, {PRIO_SW[1]}")
    a(f"s_cbranch_scc0 {name}_p2")
    a("s_setprio 0")
    a.label(f"{name}_p2")
    a(f"s_cmp_lg_u32 s{sIt}, 8")
    a(f"s_cbranch_scc1 {lbl}")
    a("s_nop 1")
    a(f"v_mfma_f32_32x32x16_bf16 {vr(vO[1],16)}, {vr(vV1,4)}, {vr(vP+4,4)}, {vr(vO[1],16)}")
    tl_stamp(a, 7)
    lwait(a, vT0, vT1, sT0, C_R1, 1, f"{name}_wf")
    a("s_nop 8")
    a(f"s_mul_i32 s{sT0}, s{sW}, 2304")
    a(f"s_add_u32 s{sT0}, s{sT0}, {LDS_RED}")
    a(f"v_add_u32 v{vT0}, s{sT0}, v{vL16}")
    a(f"v_lshrrev_b32 v{vT1}, 2, v{vL16}")
    a(f"v_add_u32 v{vT1}, s{sT0}, v{vT1}")
    a(f"s_cmp_eq_u32 s{sKh}, 0")
    a(f"s_cbranch_scc0 {name}_x1")
    a(f"ds_write_b128 v{vT0}, {vr(vO[1],4)}")
    a(f"ds_write_b128 v{vT0}, {vr(vO[1]+4,4)} offset:1024")
    a(f"ds_write_b32 v{vT1}, v{vO[1]+8} offset:2048")
    a(f"s_branch {name}_x2")
    a.label(f"{name}_x1")
    a(f"ds_write_b128 v{vT0}, {vr(vO[0],4)}")
    a(f"ds_write_b128 v{vT0}, {vr(vO[0]+4,4)} offset:1024")
    a(f"ds_write_b32 v{vT1}, v{vO[0]+8} offset:2048")
    for i in range(9):
        a(f"v_mov_b32 v{vO[0]+i}, v{vO[1]+i}")
    for i in range(4):
        a(f"v_mov_b32 v{vQ[0]+i}, v{vQ[1]+i}")
    a.label(f"{name}_x2")
    a("s_waitcnt lgkmcnt(0)")
    a(f"s_lshl_b32 s{sT0}, s{sQp}, 2")
    a(f"s_add_u32 s61, s{sT0}, {C_X}")
    lsig(a, vAK, vM, "s61")
    lwait(a, vAK, vM, sT0, "s61", 2, f"{name}_wx")
    a(f"s_xor_b32 s{sT0}, s{sW}, 4")
    a(f"s_mul_i32 s{sT0}, s{sT0}, 2304")
    a(f"s_add_u32 s{sT0}, s{sT0}, {LDS_RED}")
    a(f"v_add_u32 v{vT0}, s{sT0}, v{vL16}")
    a(f"v_lshrrev_b32 v{vT1}, 2, v{vL16}")
    a(f"v_add_u32 v{vT1}, s{sT0}, v{vT1}")
    a(f"ds_read_b128 {vr(vT,4)}, v{vT0}")
    a(f"ds_read_b128 {vr(vT+4,4)}, v{vT0} offset:1024")
    a(f"ds_read_b32 v{vT+8}, v{vT1} offset:2048")
    a("s_waitcnt lgkmcnt(0)")
    O = vO[0]
    for i in range(9):
        a(f"v_add_f32 v{O+i}, v{O+i}, v{vT+i}")
    a.label(f"{name}_epi")
    a(f"s_cmp_lg_u32 s{sRetry}, 0")
    a(f"s_cbranch_scc1 {name}_fin")
    a(f"v_mov_b32 v{vT0}, 0x5d800000")
    a(f"v_cmp_nle_f32 vcc, v{O+8}, v{vT0}")
    a("s_nop 4")
    a(f"s_cbranch_vccnz {name}_fallback")
    a.label(f"{name}_fin")
    a(f"v_rcp_f32 v{vT0}, v{O+8}")
    a("s_nop 0")
    for i in range(8):
        a(f"v_mul_f32 v{O+i}, v{O+i}, v{vT0}")
    for i in range(4):
        a(f"v_cvt_pk_bf16_f32 v{vP+i}, v{O+2*i}, v{O+2*i+1}")
    a(f"s_lshl_b32 s{sT0}, s{sQb}, 3")
    a(f"s_lshl_b32 s{sT1}, s{sQp}, 1")
    a(f"s_add_u32 s{sT0}, s{sT0}, s{sT1}")
    a(f"s_add_u32 s{sT0}, s{sT0}, s{sKh}")
    a(f"s_lshl_b32 s{sT0}, s{sT0}, 5")
    a(f"s_add_u32 s{sT0}, s{sT0}, s{sHead}")
    a(f"s_lshl_b32 s{sT0}, s{sT0}, 10")
    a(f"s_add_u32 s{sT0}, s{sT0}, {WS_O}")
    a(f"buffer_store_dwordx4 {vr(vP,4)}, v{vL16}, s[{srdWS}:{srdWS+3}], s{sT0} offen{SC}")
    a(f"v_mov_b32 v{vT0}, {C_ADONE}")
    a(f"v_mov_b32 v{vT1}, 1")
    a("s_mov_b64 exec, 1")
    if PAR.get("ODIRECT", 0):
        a(f"ds_add_u32 v{vT0}, v{vT1}")
        a("s_mov_b64 exec, -1")
    else:
        a(f"ds_add_rtn_u32 v{vM}, v{vT0}, v{vT1}")
        a("s_waitcnt lgkmcnt(0)")
        a("s_mov_b64 exec, -1")
        a(f"v_readfirstlane_b32 s{sT0}, v{vM}")
        a("s_nop 3")
        a(f"s_cmp_lg_u32 s{sT0}, 7")
        a(f"s_cbranch_scc1 {name}_adone")
        a(f"s_lshl_b32 s61, s{sQb}, 5")
        a(f"s_add_u32 s61, s61, s{sHead}")
        a(f"s_add_u32 s61, s61, {FL_O}")
        publish(a, vT0, vT1, 61)
    a.label(f"{name}_adone")
    tl_stamp(a, 8)
    dbg_exit(a, [1, 6, 7], [0, 5], 4, 1)
    if not TL.get("dbg"): tl_exit(a, 1, sWS)
    a("s_endpgm")
    a.label(f"{name}_fallback")
    a(f"s_mov_b32 s{sRetry}, 1")
    a(f"v_mov_b32 v{vAK}, v{vL16}")
    a(f"v_mov_b32 v{vM}, 0xff800000")
    a(f"s_mov_b32 s{sIt}, 64")
    a.label(f"{name}_maxloop")
    a(f"ds_read_b128 {vr(vK,4)}, v{vAK}")
    a("s_waitcnt lgkmcnt(0)")
    a(f"v_mfma_f32_32x32x16_bf16 {vr(vS[0],16)}, {vr(vK,4)}, {vr(vQ[0],4)}, 0")
    a(f"v_add_u32 v{vAK}, 1024, v{vAK}")
    a("s_nop 15")
    a("s_nop 3")
    for i in range(0, 16, 2):
        a(f"v_max3_f32 v{vM}, v{vM}, v{vS[0]+i}, v{vS[0]+i+1}")
    a(f"s_sub_u32 s{sIt}, s{sIt}, 1")
    a(f"s_cmp_lg_u32 s{sIt}, 0")
    a(f"s_cbranch_scc1 {name}_maxloop")
    bcast_negmax(vC[0])
    for i in range(16):
        a(f"v_mov_b32 v{O+i}, 0")
    a(f"v_mov_b32 v{vAK}, v{vL16}")
    a(f"s_mul_i32 s60, s{sKh}, {VHALF}")
    a(f"s_add_u32 s60, s60, {VHALF}")
    a(f"v_subrev_u32 v{vAV}, s60, v{vAV}")
    a(f"s_mov_b32 s{sIt}, 64")
    a.label(f"{name}_redo")
    a(f"ds_read_b128 {vr(vK,4)}, v{vAK}")
    a(f"ds_read_b128 {vr(vV0,4)}, v{vAV}")
    a(f"ds_read_b128 {vr(vV1,4)}, v{vAV} offset:{VG}")
    a("s_waitcnt lgkmcnt(0)")
    a(f"v_mfma_f32_32x32x16_bf16 {vr(vS[0],16)}, {vr(vK,4)}, {vr(vQ[0],4)}, {vr(vC[0],16)}")
    a(f"v_add_u32 v{vAK}, 1024, v{vAK}")
    a(f"v_add_u32 v{vAV}, {2*VG}, v{vAV}")
    a("s_nop 15")
    a("s_nop 3")
    for i in range(16):
        a(f"v_exp_f32 v{vT+i}, v{vS[0]+i}")
    a("s_nop 0")
    for i in range(8):
        a(f"v_cvt_pk_bf16_f32 v{vP+i}, v{vT+2*i}, v{vT+2*i+1}")
    a("s_nop 1")
    a(f"v_mfma_f32_32x32x16_bf16 {vr(O,16)}, {vr(vV0,4)}, {vr(vP,4)}, {vr(O,16)}")
    a(f"v_mfma_f32_32x32x16_bf16 {vr(O,16)}, {vr(vV1,4)}, {vr(vP+4,4)}, {vr(O,16)}")
    a(f"s_sub_u32 s{sIt}, s{sIt}, 1")
    a(f"s_cmp_lg_u32 s{sIt}, 0")
    a(f"s_cbranch_scc1 {name}_redo")
    a("s_nop 15")
    a("s_nop 3")
    a(f"s_branch {name}_epi")

def gen_f_part(a, name, base, nvmax, V):
    vLane, vL16, vT0, vT1, vT2, vT3 = V["vLane"], V["vL16"], V["vT0"], V["vT1"], V["vT2"], V["vT3"]
    sF = 54
    a.label(f"{name}_edge")
    sS = 55
    a(f"s_sub_u32 s{sF}, s{sW}, 8")
    a("s_setprio 3")
    a(f"v_lshlrev_b32 v{vT0}, 2, v{vLane}")
    a(f"v_add_u32 v{vT0}, {LDS_CNT}, v{vT0}")
    a(f"v_mov_b32 v{vT1}, 0")
    a(f"ds_write_b32 v{vT0}, v{vT1}")
    a("s_waitcnt lgkmcnt(0)")
    a(f"s_or_b32 s{sT0}, s2, s{sF}")
    a(f"s_cmp_lg_u32 s{sT0}, 0")
    a(f"s_cbranch_scc1 {name}_nn")
    a(f"s_memrealtime s[{sT0}:{sT0+1}]")
    a("s_waitcnt lgkmcnt(0)")
    a(f"s_or_b32 s{sT0}, s{sT0}, 1")
    a(f"v_mov_b32 v{vT0}, 0")
    a(f"v_mov_b32 v{vT1}, s{sT0}")
    a("s_mov_b64 exec, 1")
    a(f"global_store_dword v{vT0}, v{vT1}, s[{sDbg}:{sDbg+1}] sc1")
    a("s_mov_b64 exec, -1")
    a.label(f"{name}_nn")
    srd(a, srdWS, sWS, WS_SIZE_USED)
    decode_hq(a)
    vPz = (base + 3) // 4 * 4 - 1
    for i in range(4):
        a(f"v_mov_b32 v{vPz+1+i}, -1")
    a(f"s_lshl_b32 s{sT0}, s{sQb}, 3")
    a(f"s_lshl_b32 s{sT1}, s{sF}, 1")
    a(f"s_add_u32 s{sT0}, s{sT0}, s{sT1}")
    a(f"s_lshl_b32 s{sT0}, s{sT0}, 5")
    a(f"s_add_u32 s{sT0}, s{sT0}, s{sHead}")
    a(f"s_lshl_b32 s{sT0}, s{sT0}, 10")
    a(f"s_add_u32 s{sT0}, s{sT0}, {WS_O}")
    a(f"buffer_store_dwordx4 {vr(vPz+1,4)}, v{vL16}, s[{srdWS}:{srdWS+3}], s{sT0} offen{SC}")
    a(f"s_add_u32 s{sT0}, s{sT0}, 32768")
    a(f"buffer_store_dwordx4 {vr(vPz+1,4)}, v{vL16}, s[{srdWS}:{srdWS+3}], s{sT0} offen{SC}")
    ER = (base + 7) // 4 * 4 + 4
    EB0, EB1 = PAR.get("EB0", 1), PAR.get("EB1", 3)
    srd(a, srdA, sX, 2048*1024)
    nb = 0
    while nb < EB0:
        a("s_barrier"); nb += 1
    emit_edge_loads(a, name, V, ER, sF, 30)
    while nb < EB1:
        a("s_barrier"); nb += 1
    emit_edge_compute(a, name, V, ER, sF, 30, "p")
    while nb < 5:
        a("s_barrier"); nb += 1
    a(f"s_cmp_lg_u32 s{sF}, 0")
    a(f"s_cbranch_scc1 {name}_nn2")
    a(f"v_mov_b32 v{vT0}, 0")
    a(f"s_mov_b32 s{sT1}, {SPIN_MAX}")
    a.label(f"{name}_npoll")
    a(f"global_load_dword v{vT1}, v{vT0}, s[{sDbg}:{sDbg+1}] sc1")
    a("s_waitcnt vmcnt(0)")
    a(f"v_readfirstlane_b32 s{sN}, v{vT1}")
    a(f"s_sub_u32 s{sT1}, s{sT1}, 1")
    a(f"s_cbranch_scc1 {name}_npoll_ok")
    a("s_nop 1")
    a(f"s_cmp_lg_u32 s{sN}, 0")
    a(f"s_cbranch_scc1 {name}_npoll_ok")
    a("s_sleep 1")
    a(f"s_branch {name}_npoll")
    a.label(f"{name}_npoll_ok")
    a(f"v_mov_b32 v{vT0}, {C_NONCE}")
    a(f"v_mov_b32 v{vT1}, s{sN}")
    a(f"ds_write_b32 v{vT0}, v{vT1}")
    a.label(f"{name}_nn2")
    a("s_waitcnt vmcnt(0) lgkmcnt(0)")
    for i in range(5, 9):
        a("s_barrier")
    tl_stamp(a, 0)

    Rf = RegAlloc(base, 168)
    vB_ = Rf.alloc("boff"); vY = Rf.alloc("yaddr"); vFl = Rf.alloc("flag")
    accP = Rf.alloc("accP", 16); accQ = Rf.alloc("accQ", 16)
    buf = Rf.alloc("buf", 112)
    vCn = Rf.alloc("cn", 4)
    nvmax[0] = max(nvmax[0], Rf.next)
    sKoff, sVoff = 56, 57
    sTt, sEt, sHasQ, sA, sBq, sK, sJob, sCnt = 58, 59, 60, 61, 62, 63, 30, 31
    decode_hq(a)
    KB = accP
    sPend, sQd, sSlot = 60, 61, 62
    sEd = 30
    a(f"s_mov_b32 s{sEd}, 0")
    a(f"s_lshl_b32 s{sKoff}, s{sHead}, 16")
    a(f"s_add_u32 s{sKoff}, s{sKoff}, {WS_K}")
    a(f"s_cmp_lg_u32 s{sF}, 0")
    a(f"s_cbranch_scc1 {name}_kvld")
    a(f"s_add_u32 s{sT0}, s2, {FL_E}")
    publish(a, vT0, vT1, sT0)
    tl_stamp(a, 1)
    a(f"s_lshr_b32 s{sT0}, s{sHead}, 3")
    a(f"s_lshl_b32 s{sT0}, s{sT0}, 4")
    a(f"v_and_b32 v{vT0}, 15, v{vLane}")
    a(f"v_bfe_u32 v{vT1}, v{vLane}, 4, 1")
    a(f"v_lshlrev_b32 v{vT1}, 6, v{vT1}")
    a(f"v_add_u32 v{vT0}, v{vT0}, v{vT1}")
    a(f"v_add_u32 v{vT0}, 64, v{vT0}")
    a(f"v_and_b32 v{vT1}, 1, v{vLane}")
    a(f"s_lshl_b32 s{sT1}, s{sQb}, 1")
    a(f"v_add_u32 v{vT1}, s{sT1}, v{vT1}")
    a(f"v_cmp_gt_u32 vcc, 32, v{vLane}")
    a("s_nop 1")
    a(f"v_cndmask_b32 v{vT0}, v{vT1}, v{vT0}, vcc")
    a(f"v_add_u32 v{vT0}, s{sT0}, v{vT0}")
    a(f"v_lshlrev_b32 v{vFl}, {FSH}, v{vT0}")
    a(f"v_add_u32 v{vFl}, {WS_FLAG}, v{vFl}")
    a(f"s_mov_b32 s{sPend}, 0xffff")
    a(f"s_mov_b32 s{sQd}, 0")
    a(f"s_mov_b32 s{sSlot}, 0")
    a(f"s_mov_b32 s{sCnt}, {SPIN_MAX}")
    a.label(f"{name}_dpoll")
    a(f"global_load_dword v{vT0}, v{vFl}, s[{sWS}:{sWS+1}] sc1")
    a("s_waitcnt vmcnt(0)")
    a(f"v_cmp_eq_u32 vcc, s{sN}, v{vT0}")
    a(f"s_sub_u32 s{sCnt}, s{sCnt}, 1")
    a(f"s_cbranch_scc0 {name}_dnt")
    a("s_mov_b64 vcc, -1")
    a.label(f"{name}_dnt")
    a("s_nop 2")
    a(f"s_mov_b32 s56, vcc_lo")
    a(f"s_mov_b32 s57, vcc_hi")
    a(f"s_cmp_lg_u32 s{sQd}, 0")
    a(f"s_cbranch_scc1 {name}_dq")
    a(f"s_cmp_lg_u32 s57, -1")
    a(f"s_cbranch_scc1 {name}_dq")
    a(f"s_mov_b32 s{sQd}, 1")
    tl_stamp(a, 2)
    if TL["on"]: a("s_waitcnt lgkmcnt(0)")
    lsig(a, vT0, vT1, C_GO)
    a.label(f"{name}_dq")
    a(f"s_lshr_b32 s{sT0}, s56, 16")
    a(f"s_and_b32 s{sT0}, s{sT0}, s56")
    a(f"s_and_b32 s{sT0}, s{sT0}, s{sPend}")
    a(f"s_cmp_eq_u32 s{sT0}, 0")
    a(f"s_cbranch_scc1 {name}_dnone")
    a(f"s_andn2_b32 s{sPend}, s{sPend}, s{sT0}")
    a.label(f"{name}_dq1")
    a(f"s_ff1_i32_b32 s{sT1}, s{sT0}")
    a(f"s_bitset0_b32 s{sT0}, s{sT1}")
    a(f"s_add_u32 s{sT1}, s{sT1}, 1")
    a(f"s_lshl_b32 s{sT2}, s{sSlot}, 2")
    a(f"s_add_u32 s{sT2}, s{sT2}, {C_QUE}")
    a(f"v_mov_b32 v{vT0}, s{sT2}")
    a(f"v_mov_b32 v{vT1}, s{sT1}")
    a(f"ds_write_b32 v{vT0}, v{vT1}")
    a(f"s_add_u32 s{sSlot}, s{sSlot}, 1")
    a(f"s_cmp_lg_u32 s{sT0}, 0")
    a(f"s_cbranch_scc1 {name}_dq1")
    a.label(f"{name}_dnone")
    a(f"s_cmp_eq_u32 s{sQd}, 0")
    a(f"s_cbranch_scc1 {name}_dagain")
    a(f"s_cmp_eq_u32 s{sPend}, 0")
    a(f"s_cbranch_scc1 {name}_kvdone")
    a.label(f"{name}_dagain")
    a(f"s_sleep {PAR.get('DSLEEP', 4)}")
    a(f"s_branch {name}_dpoll")
    a.label(f"{name}_kvld")
    read_nonce(a, vT0, vT1)
    vVw, vCa, vCa2, vCd = KB + 40, KB + 41, KB + 42, KB + 44
    a(f"v_lshrrev_b32 v{vT0}, 5, v{vLane}")
    a(f"v_mul_u32_u24 v{vT0}, {VG}, v{vT0}")
    a(f"v_and_b32 v{vT1}, 31, v{vLane}")
    a(f"v_lshlrev_b32 v{vT1}, 4, v{vT1}")
    a(f"v_add_u32 v{vVw}, v{vT0}, v{vT1}")
    a(f"v_lshrrev_b32 v{vT0}, 1, v{vLane}")
    a(f"v_mul_u32_u24 v{vT0}, {VG}, v{vT0}")
    a(f"v_and_b32 v{vT1}, 1, v{vLane}")
    a(f"v_lshlrev_b32 v{vT2}, 4, v{vT1}")
    a(f"v_add_u32 v{vT0}, v{vT0}, v{vT2}")
    a(f"v_add_u32 v{vCa}, 512, v{vT0}")
    a(f"v_cmp_eq_u32 vcc, 0, v{vT1}")
    a(f"v_mov_b32 v{vT0}, 0x3f803f80")
    a("s_nop 0")
    for i in range(4):
        a(f"v_cndmask_b32 v{vCd+i}, 0, v{vT0}, vcc")
    a(f"s_sub_u32 s{sSlot}, s{sF}, 1")
    a.label(f"{name}_kvnext")
    a(f"s_lshl_b32 s{sT2}, s{sSlot}, 2")
    a(f"s_add_u32 s63, s{sT2}, {C_QUE}")
    lwait(a, vT0, vT1, sT0, "s63", 1, f"{name}_kvwq", sleep=1)
    a(f"s_sub_u32 s{sT0}, s{sT0}, 1")
    a(f"s_and_b32 s{sT0}, s{sT0}, 15")
    a(f"s_lshl_b32 s{sT0}, s{sT0}, 12")
    a(f"s_add_u32 s{sT0}, s{sT0}, s{sKoff}")
    for t in range(4):
        a(f"s_add_u32 s{sT1}, s{sT0}, {t*1024}")
        a(f"buffer_load_dwordx4 {vr(KB+4*t,4)}, v{vL16}, s[{srdWS}:{srdWS+3}], s{sT1} offen{SC}")
        a(f"s_add_u32 s{sT1}, s{sT1}, {WS_V - WS_K}")
        a(f"buffer_load_dwordx4 {vr(KB+16+4*t,4)}, v{vL16}, s[{srdWS}:{srdWS+3}], s{sT1} offen{SC}")
    a(f"s_and_b32 s{sT1}, s{sSlot}, 1")
    a(f"s_lshr_b32 s{sT2}, s{sSlot}, 1")
    a(f"s_mul_i32 s58, s{sT1}, {VHALF}")
    a(f"s_mul_i32 s59, s{sT2}, {8*VG}")
    a(f"s_add_u32 s58, s58, s59")
    a(f"s_add_u32 s58, s58, 65536")
    a(f"s_lshl_b32 s{sT1}, s{sT1}, 15")
    a(f"s_lshl_b32 s{sT2}, s{sT2}, 12")
    a(f"s_add_u32 s{sT1}, s{sT1}, s{sT2}")
    a(f"v_add_u32 v{vT2}, s{sT1}, v{vL16}")
    a(f"v_add_u32 v{vT3}, s58, v{vVw}")
    a(f"v_add_u32 v{vCa2}, s58, v{vCa}")
    a(f"s_lshl_b32 s{sT0}, s{sSlot}, 2")
    a(f"s_add_u32 s{sT0}, s{sT0}, {C_RDY}")
    a(f"v_mov_b32 v{vT0}, s{sT0}")
    a(f"v_mov_b32 v{vT1}, 1")
    a("s_mov_b32 exec_lo, 0xffff")
    a("s_mov_b32 exec_hi, 0")
    a(f"ds_write_b128 v{vCa2}, {vr(vCd,4)}")
    a("s_mov_b64 exec, -1")
    a("s_waitcnt vmcnt(0)")
    for t in range(4):
        a(f"ds_write_b128 v{vT2}, {vr(KB+4*t,4)} offset:{t*1024}")
        a(f"ds_write_b128 v{vT3}, {vr(KB+16+4*t,4)} offset:{t*2*VG}")
    a("s_waitcnt lgkmcnt(0)")
    a(f"ds_write_b32 v{vT0}, v{vT1}")
    a(f"s_cmp_lg_u32 s{sEd}, 1")
    a(f"s_cbranch_scc1 {name}_kvne")
    a(f"s_cmp_ge_u32 s{sF}, 3")
    a(f"s_cbranch_scc1 {name}_kvne")
    a(f"v_and_b32 v{vT0}, 31, v{vLane}")
    a(f"s_lshl_b32 s{sT0}, s{sHead}, 5")
    a(f"v_add_u32 v{vT0}, s{sT0}, v{vT0}")
    a(f"v_lshlrev_b32 v{vT0}, 12, v{vT0}")
    a(f"v_lshrrev_b32 v{vT1}, 5, v{vLane}")
    a(f"s_lshl_b32 s{sT0}, s{sQb}, 1")
    a(f"v_add_u32 v{vT1}, s{sT0}, v{vT1}")
    a(f"v_lshlrev_b32 v{vT1}, 7, v{vT1}")
    a(f"v_add_u32 v{vT0}, v{vT0}, v{vT1}")
    a(f"s_cmp_eq_u32 s{sF}, 1")
    a(f"s_cselect_b32 s{sT0}, s{sSre}, s{sSim}")
    a(f"s_cselect_b32 s{sT1}, s{sSre+1}, s{sSim+1}")
    a(f"global_load_dword v{KB+96}, v{vT0}, s[{sT0}:{sT0+1}]")
    a.label(f"{name}_kvne")
    a(f"s_add_u32 s{sEd}, s{sEd}, 1")
    a(f"s_add_u32 s{sSlot}, s{sSlot}, 3")
    a(f"s_cmp_lt_u32 s{sSlot}, 16")
    a(f"s_cbranch_scc1 {name}_kvnext")
    a.label(f"{name}_kvdone")
    tl_stamp(a, 3)
    srd(a, srdA, sSre, 2048*4096)
    srd(a, srdB, sSim, 2048*4096)
    srd(a, srdC, sWo, 512*1024)
    a(f"s_lshl_b32 s{sT0}, s{sQb}, 7")
    a(f"s_lshl_b32 s{sT1}, s{sF}, 17")
    a(f"s_add_u32 s{sT0}, s{sT0}, s{sT1}")
    a(f"v_lshlrev_b32 v{vT0}, 10, v{vLane}")
    a(f"buffer_load_dword v{vT3}, v{vT0}, s[{srdC}:{srdC+3}], s{sT0} offen")
    a(f"s_add_u32 s{sT0}, s{sT0}, 65536")
    a(f"buffer_load_dword v{vT3}, v{vT0}, s[{srdC}:{srdC+3}], s{sT0} offen")
    a(f"s_cmp_lg_u32 s{sF}, 0")
    a(f"s_cbranch_scc1 {name}_fnz2")
    a(f"v_lshlrev_b32 v{vFl}, {FSH}, v{vLane}")
    a(f"v_add_u32 v{vFl}, {WS_FLAG + (FL_F1 << FSH)}, v{vFl}")
    a(f"s_mov_b32 s{sCnt}, {SPIN_MAX}")
    a.label(f"{name}_g1")
    a(f"global_load_dword v{buf}, v{vFl}, s[{sWS}:{sWS+1}] sc1")
    for i in range(4):
        a(f"v_add_u32 v{buf+8}, {((FL_E - FL_F1 + 64*i) << FSH)}, v{vFl}")
        a(f"global_load_dword v{buf+1+i}, v{buf+8}, s[{sWS}:{sWS+1}] sc1")
    a("s_waitcnt vmcnt(0)")
    a(f"v_cmp_ne_u32 vcc, s{sN}, v{buf}")
    for i in range(4):
        a(f"v_cmp_ne_u32 s[{sT0}:{sT0+1}], s{sN}, v{buf+1+i}")
        a("s_nop 1")
        a(f"s_or_b64 vcc, vcc, s[{sT0}:{sT0+1}]")
    a(f"s_sub_u32 s{sCnt}, s{sCnt}, 1")
    a(f"s_cbranch_scc1 {name}_g1_ok")
    a("s_nop 2")
    a(f"s_cbranch_vccz {name}_g1_ok")
    a("s_sleep 8")
    a(f"s_branch {name}_g1")
    a.label(f"{name}_g1_ok")
    lsig(a, vT0, vT1, C_GO2)
    a(f"s_branch {name}_fgo2")
    a.label(f"{name}_fnz2")
    lwait(a, vT0, vT1, sT0, C_GO2, 1, f"{name}_fwgo2", sleep=8)
    a.label(f"{name}_fgo2")
    tl_stamp(a, 4)

    accX = buf; accW = buf + 16; fb = buf + 32
    a(f"s_mov_b32 s{sTt}, s{sHead}")
    a(f"s_mov_b32 s{sEt}, s{sQb}")
    a(f"v_and_b32 v{vT0}, 31, v{vLane}")
    a(f"s_lshl_b32 s{sT0}, s{sTt}, 5")
    a(f"v_add_u32 v{vT0}, s{sT0}, v{vT0}")
    a(f"v_mul_u32_u24 v{vY}, {Y_STRIDE}, v{vT0}")
    a(f"v_lshlrev_b32 v{vT0}, 12, v{vT0}")
    a(f"v_lshrrev_b32 v{vT1}, 5, v{vLane}")
    a(f"v_lshlrev_b32 v{vT1}, 4, v{vT1}")
    a(f"v_add_u32 v{vB_}, v{vT0}, v{vT1}")
    a(f"v_add_u32 v{vY}, v{vY}, v{vT1}")
    for i in range(16):
        a(f"v_mov_b32 v{accP+i}, 0")
        a(f"v_mov_b32 v{accQ+i}, 0")
        a(f"v_mov_b32 v{accX+i}, 0")
        a(f"v_mov_b32 v{accW+i}, 0")
    for i in range(4):
        a(f"v_mov_b32 v{vCn+i}, 0xbf803f80")
    a(f"s_lshl_b32 s{sK}, s{sF}, 4")
    a(f"s_mul_i32 s{sA}, s{sEt}, {A_KSTEPS}")
    a(f"s_add_u32 s{sA}, s{sA}, s{sK}")
    a(f"s_lshl_b32 s{sA}, s{sA}, 10")
    a(f"s_add_u32 s{sA}, s{sA}, {WS_A}")
    a(f"s_add_u32 s{sHasQ}, s{sK}, {8*A_KSTEPS}")
    a(f"s_lshl_b32 s{sHasQ}, s{sHasQ}, 10")
    a(f"s_add_u32 s{sHasQ}, s{sHasQ}, {WS_A}")
    sA8 = sHasQ
    a(f"s_mul_i32 s{sBq}, s{sEt}, {B_KSTEPS}")
    a(f"s_add_u32 s{sBq}, s{sBq}, s{sK}")
    a(f"s_lshl_b32 s{sBq}, s{sBq}, 10")
    a(f"s_add_u32 s{sBq}, s{sBq}, {WS_B}")
    a(f"s_lshl_b32 s{sK}, s{sK}, 5")
    a(f"s_cmp_eq_u32 s{sEt}, 0")
    a(f"s_cselect_b32 s{sJob}, 1, 0")
    a(f"s_cmp_eq_u32 s{sTt}, 0")
    a(f"s_cselect_b32 s{sT0}, 2, 0")
    a(f"s_or_b32 s{sJob}, s{sJob}, s{sT0}")
    a(f"s_cmp_eq_u32 s2, 8")
    a(f"s_cselect_b32 s{sT0}, 4, 0")
    a(f"s_or_b32 s{sJob}, s{sJob}, s{sT0}")
    vm = Vm(a)
    NFL = 4
    def ld_k(k, slot, withq=True):
        r = fb + slot * 20
        a(f"s_add_u32 s{sT0}, s{sA}, {k*1024}")
        a(f"buffer_load_dwordx4 {vr(r,4)}, v{vL16}, s[{srdWS}:{srdWS+3}], s{sT0} offen{SC}")
        a(f"s_add_u32 s{sT0}, s{sK}, {k*32}")
        a(f"buffer_load_dwordx4 {vr(r+4,4)}, v{vB_}, s[{srdA}:{srdA+3}], s{sT0} offen")
        a(f"s_add_u32 s{sT0}, s{sA8}, {k*1024}")
        a(f"buffer_load_dwordx4 {vr(r+16,4)}, v{vL16}, s[{srdWS}:{srdWS+3}], s{sT0} offen{SC}")
        n = 3
        if withq:
            a(f"s_add_u32 s{sT0}, s{sBq}, {k*1024}")
            a(f"buffer_load_dwordx4 {vr(r+8,4)}, v{vL16}, s[{srdWS}:{srdWS+3}], s{sT0} offen{SC}")
            a(f"s_add_u32 s{sT0}, s{sK}, {k*32}")
            a(f"buffer_load_dwordx4 {vr(r+12,4)}, v{vB_}, s[{srdB}:{srdB+3}], s{sT0} offen")
            n = 5
        vm.issue(k, n)
    lab = [0]
    def mf_k(slot, withq=True):
        r = fb + slot * 20
        lab[0] += 1
        L = f"{name}_fm{lab[0]}"
        a(f"v_mfma_f32_32x32x16_bf16 {vr(accP,16)}, {vr(r,4)}, {vr(r+4,4)}, {vr(accP,16)}")
        if withq:
            a(f"v_mfma_f32_32x32x16_bf16 {vr(accQ,16)}, {vr(r+8,4)}, {vr(r+12,4)}, {vr(accQ,16)}")
        a(f"s_cmp_eq_u32 s{sJob}, 0")
        a(f"s_cbranch_scc1 {L}c")
        a(f"s_bitcmp1_b32 s{sJob}, 0")
        a(f"s_cbranch_scc0 {L}a")
        a(f"v_mfma_f32_32x32x16_bf16 {vr(accX,16)}, {vr(r+16,4)}, {vr(r+4,4)}, {vr(accX,16)}")
        a.label(f"{L}a")
        a(f"s_bitcmp1_b32 s{sJob}, 1")
        a(f"s_cbranch_scc0 {L}b")
        a(f"v_mfma_f32_32x32x16_bf16 {vr(accW,16)}, {vr(r,4)}, {vr(vCn,4)}, {vr(accW,16)}")
        a.label(f"{L}b")
        a(f"s_bitcmp1_b32 s{sJob}, 2")
        a(f"s_cbranch_scc0 {L}c")
        a(f"v_mfma_f32_32x32x16_bf16 {vr(accW,16)}, {vr(r+16,4)}, {vr(vCn,4)}, {vr(accW,16)}")
        a.label(f"{L}c")
    if EXP.get("nof2"): a(f"s_branch {name}_fnox")
    for k in range(NFL): ld_k(k, k)
    for k in range(16):
        vm.wait(k)
        mf_k(k % NFL)
        if k + NFL < 16:
            a("s_nop 4")
            ld_k(k + NFL, k % NFL)
    a(f"s_cmp_lg_u32 s{sF}, 0")
    a(f"s_cbranch_scc1 {name}_fnox")
    a("s_nop 4")
    vm = Vm(a)
    ld_k(64, 0, withq=False)
    a("s_waitcnt vmcnt(0)")
    mf_k(0, withq=False)
    a.label(f"{name}_fnox")
    a("s_nop 15")
    a("s_nop 3")
    for i in range(16):
        a(f"v_sub_f32 v{fb+i}, v{accP+i}, v{accQ+i}")
        a(f"v_add_f32 v{accQ+i}, v{accP+i}, v{accQ+i}")
    for i in range(16):
        a(f"v_mov_b32 v{accP+i}, v{fb+i}")
    WA = 8192 + 256 + 256
    a(f"s_cmp_eq_u32 s{sF}, 0")
    a(f"s_cbranch_scc1 {name}_fred0")
    a(f"s_sub_u32 s{sT0}, s{sF}, 1")
    a(f"s_mul_i32 s{sT0}, s{sT0}, {WA}")
    a(f"s_add_u32 s{sT0}, s{sT0}, {LDS_RED}")
    a(f"v_add_u32 v{vT0}, s{sT0}, v{vL16}")
    for q in range(8):
        a(f"ds_write_b128 v{vT0}, {vr(accP+4*q,4)} offset:{q*1024}")
    a(f"v_lshrrev_b32 v{vT1}, 2, v{vL16}")
    a(f"v_add_u32 v{vT1}, s{sT0}, v{vT1}")
    a(f"ds_write_b32 v{vT1}, v{accX} offset:8192")
    a(f"v_lshrrev_b32 v{vT1}, 5, v{vLane}")
    a(f"v_lshlrev_b32 v{vT1}, 6, v{vT1}")
    a(f"v_add_u32 v{vT1}, s{sT0}, v{vT1}")
    a("s_mov_b32 exec_lo, 1")
    a("s_mov_b32 exec_hi, 1")
    for q in range(4):
        a(f"ds_write_b128 v{vT1}, {vr(accW+4*q,4)} offset:{8192 + 256 + q*16}")
    a("s_mov_b64 exec, -1")
    a("s_waitcnt lgkmcnt(0)")
    lsig(a, vT0, vT1, C_R0)
    a(f"s_branch {name}_fsig")
    a.label(f"{name}_fred0")
    lwait(a, vT0, vT1, sT0, C_R0, 3, f"{name}_fw0", sleep=2)
    a(f"v_add_u32 v{vT0}, {LDS_RED}, v{vL16}")
    a(f"v_lshrrev_b32 v{vT2}, 2, v{vL16}")
    a(f"v_add_u32 v{vT2}, {LDS_RED}, v{vT2}")
    a(f"v_lshrrev_b32 v{vT1}, 5, v{vLane}")
    a(f"v_lshlrev_b32 v{vT1}, 6, v{vT1}")
    a(f"v_add_u32 v{vT1}, {LDS_RED}, v{vT1}")
    for src in range(3):
        for q in range(8):
            a(f"ds_read_b128 {vr(fb+4*q,4)}, v{vT0} offset:{src*WA + q*1024}")
        a(f"ds_read_b32 v{fb+32}, v{vT2} offset:{src*WA + 8192}")
        for q in range(4):
            a(f"ds_read_b128 {vr(fb+36+4*q,4)}, v{vT1} offset:{src*WA + 8192 + 256 + q*16}")
        a("s_waitcnt lgkmcnt(0)")
        for i in range(32):
            a(f"v_add_f32 v{accP+i}, v{accP+i}, v{fb+i}")
        a(f"v_add_f32 v{accX}, v{accX}, v{fb+32}")
        for i in range(16):
            a(f"v_add_f32 v{accW+i}, v{accW+i}, v{fb+36+i}")
    a(f"s_lshl_b32 s{sT0}, s{sEt}, 7")
    for g in range(4):
        a(f"s_add_u32 s{sT2}, s{sT0}, {WS_D + g*32}")
        a(f"buffer_store_dwordx4 {vr(accP+4*g,4)}, v{vY}, s[{srdWS}:{srdWS+3}], s{sT2} offen{SC}")
        a(f"s_add_u32 s{sT2}, s{sT0}, {WS_E + g*32}")
        a(f"buffer_store_dwordx4 {vr(accQ+4*g,4)}, v{vY}, s[{srdWS}:{srdWS+3}], s{sT2} offen{SC}")
    a(f"s_bitcmp1_b32 s{sJob}, 0")
    a(f"s_cbranch_scc0 {name}_fo1")
    a("s_mov_b32 exec_hi, 0")
    a(f"s_mov_b32 s{sT2}, {WS_D + 1024}")
    a(f"buffer_store_dword v{accX}, v{vY}, s[{srdWS}:{srdWS+3}], s{sT2} offen{SC}")
    a(f"s_mov_b32 s{sT2}, {WS_E + 1024}")
    a(f"buffer_store_dword v{accX}, v{vY}, s[{srdWS}:{srdWS+3}], s{sT2} offen{SC}")
    a("s_mov_b64 exec, -1")
    a.label(f"{name}_fo1")
    a(f"s_bitcmp1_b32 s{sJob}, 1")
    a(f"s_cbranch_scc0 {name}_fo2")
    a(f"v_lshrrev_b32 v{vT1}, 5, v{vLane}")
    a(f"v_lshlrev_b32 v{vT1}, 4, v{vT1}")
    a("s_mov_b32 exec_lo, 1")
    a("s_mov_b32 exec_hi, 1")
    for g in range(4):
        a(f"s_add_u32 s{sT2}, s{sT0}, {WS_D + 1024*Y_STRIDE + g*32}")
        a(f"buffer_store_dwordx4 {vr(accW+4*g,4)}, v{vT1}, s[{srdWS}:{srdWS+3}], s{sT2} offen{SC}")
        a(f"s_add_u32 s{sT2}, s{sT0}, {WS_E + 1024*Y_STRIDE + g*32}")
        a(f"buffer_store_dwordx4 {vr(accW+4*g,4)}, v{vT1}, s[{srdWS}:{srdWS+3}], s{sT2} offen{SC}")
    a("s_mov_b64 exec, -1")
    a.label(f"{name}_fo2")
    a(f"s_bitcmp1_b32 s{sJob}, 2")
    a(f"s_cbranch_scc0 {name}_fo3")
    a(f"v_mov_b32 v{vT1}, 0")
    a("s_mov_b64 exec, 1")
    a(f"s_mov_b32 s{sT2}, {WS_D + 1024*Y_STRIDE + 1024}")
    a(f"buffer_store_dword v{accW}, v{vT1}, s[{srdWS}:{srdWS+3}], s{sT2} offen{SC}")
    a(f"s_mov_b32 s{sT2}, {WS_E + 1024*Y_STRIDE + 1024}")
    a(f"buffer_store_dword v{accW}, v{vT1}, s[{srdWS}:{srdWS+3}], s{sT2} offen{SC}")
    a("s_mov_b64 exec, -1")
    a.label(f"{name}_fo3")
    lsig(a, vT0, vT1, C_R1)
    a("s_waitcnt vmcnt(0)")
    a(f"s_add_u32 s{sT0}, s2, {FL_D}")
    publish(a, vT0, vT1, sT0)
    a.label(f"{name}_fsig")
    tl_stamp(a, 5)

    Rp = RegAlloc(base, 168)
    vWa = [Rp.alloc("wa0"), Rp.alloc("wa1")]
    vG2 = Rp.alloc("g"); vYa = Rp.alloc("ya"); vOffW = Rp.alloc("offw"); vFl2 = Rp.alloc("fl")
    vYv = Rp.alloc("y", 16)
    fO = Rp.alloc("fO", 64)
    NS = 3
    fW = [Rp.alloc(f"fW{i}", 8) for i in range(NS)]
    acc = [Rp.alloc("acc0", 16), Rp.alloc("acc1", 16)]
    nvmax[0] = max(nvmax[0], Rp.next)
    sTb, sEb, sTt2, sKh2, sT0row, sE0, sMirE = 56, 57, 58, 59, 60, 61, 62
    a(f"s_mov_b32 s{sTb}, s{sHead}")
    a(f"s_mov_b32 s{sEb}, s{sQb}")
    a(f"s_and_b32 s{sTt2}, s{sF}, 1")
    a(f"s_lshr_b32 s{sKh2}, s{sF}, 1")
    a(f"s_lshl_b32 s{sT0}, s{sTt2}, 5")
    a(f"s_lshl_b32 s{sT0row}, s{sTb}, 6")
    a(f"s_add_u32 s{sT0row}, s{sT0row}, s{sT0}")
    a(f"s_lshl_b32 s{sT0}, s{sKh2}, 5")
    a(f"s_lshl_b32 s{sE0}, s{sEb}, 6")
    a(f"s_add_u32 s{sE0}, s{sE0}, s{sT0}")
    srd(a, srdA, sOut, 2048*1024)
    a(f"v_lshrrev_b32 v{vT0}, 3, v{vLane}")
    a(f"v_lshlrev_b32 v{vOffW}, 10, v{vT0}")
    a(f"v_bfe_u32 v{vT1}, v{vLane}, 4, 1")
    a(f"v_bfe_u32 v{vT2}, v{vLane}, 2, 1")
    a(f"v_xor_b32 v{vT1}, v{vT1}, v{vT2}")
    a(f"v_lshlrev_b32 v{vT1}, 6, v{vT1}")
    a(f"v_add_u32 v{vOffW}, v{vOffW}, v{vT1}")
    a(f"v_and_b32 v{vT1}, 3, v{vLane}")
    a(f"v_lshlrev_b32 v{vT1}, 4, v{vT1}")
    a(f"v_add_u32 v{vOffW}, v{vOffW}, v{vT1}")
    a(f"v_bfe_u32 v{vT0}, v{vLane}, 2, 2")
    a(f"v_lshrrev_b32 v{vT1}, 5, v{vLane}")
    a(f"v_lshlrev_b32 v{vT1}, 2, v{vT1}")
    a(f"v_add_u32 v{vT0}, v{vT0}, v{vT1}")
    a(f"v_lshlrev_b32 v{vT0}, 7, v{vT0}")
    a(f"v_bfe_u32 v{vT1}, v{vLane}, 4, 1")
    a(f"v_lshlrev_b32 v{vT1}, 5, v{vT1}")
    a(f"v_add_u32 v{vT0}, v{vT0}, v{vT1}")
    a(f"v_and_b32 v{vT1}, 3, v{vLane}")
    a(f"v_lshlrev_b32 v{vT1}, 3, v{vT1}")
    a(f"v_add_u32 v{vT0}, v{vT0}, v{vT1}")
    a(f"s_lshl_b32 s{sT0}, s{sKh2}, 15")
    a(f"v_add_u32 v{vT0}, s{sT0}, v{vT0}")
    a(f"v_bfe_u32 v{vT1}, v{vLane}, 3, 1")
    for et in range(2):
        a(f"v_xor_b32 v{vT2}, {et}, v{vT1}")
        a(f"v_lshlrev_b32 v{vT2}, 6, v{vT2}")
        a(f"v_add_u32 v{vWa[et]}, v{vT0}, v{vT2}")
    a(f"v_and_b32 v{vT0}, 31, v{vLane}")
    a(f"v_add_u32 v{vT0}, s{sT0row}, v{vT0}")
    a(f"v_lshlrev_b32 v{vG2}, 2, v{vT0}")
    a(f"v_sub_u32 v{vT1}, 2048, v{vT0}")
    a(f"s_cmp_lt_u32 s{sT0row}, 1024")
    a("s_cselect_b64 vcc, -1, 0")
    a(f"s_cselect_b32 s{sT2}, 1, 0")
    a(f"v_cndmask_b32 v{vT1}, v{vT1}, v{vT0}, vcc")
    a(f"v_mul_u32_u24 v{vYa}, {Y_STRIDE}, v{vT1}")
    a(f"v_lshrrev_b32 v{vT1}, 5, v{vLane}")
    a(f"v_lshlrev_b32 v{vT1}, 4, v{vT1}")
    a(f"s_cmp_lt_u32 s{sE0}, 256")
    a(f"s_cselect_b32 s{sMirE}, 0, 1")
    a(f"s_cselect_b32 s63, 1, 0")
    a(f"s_cbranch_scc0 {name}_mir")
    a(f"v_add_u32 v{vYa}, v{vYa}, v{vT1}")
    a(f"s_lshl_b32 s{sT1}, s{sE0}, 2")
    a(f"s_branch {name}_ya")
    a.label(f"{name}_mir")
    a(f"s_sub_u32 s{sT1}, 485, s{sE0}")
    a(f"s_lshl_b32 s{sT1}, s{sT1}, 2")
    a(f"v_add_u32 v{vYa}, s{sT1}, v{vYa}")
    a(f"v_sub_u32 v{vYa}, v{vYa}, v{vT1}")
    a(f"s_mov_b32 s{sT1}, 0")
    a.label(f"{name}_ya")
    a(f"s_cmp_eq_u32 s{sT2}, s63")
    a(f"s_mov_b32 s{sT3}, {WS_E}")
    a(f"s_cselect_b32 s{sT2}, {WS_D}, s{sT3}")
    a(f"s_add_u32 s63, s{sT1}, s{sT2}")
    for e in range(2):
        for i in range(16):
            a(f"v_mov_b32 v{acc[e]+i}, 0")
    a(f"s_lshl_b32 s{sT0}, s{sKh2}, 8")
    a(f"s_lshl_b32 s{sT1}, s{sTt2}, 7")
    a(f"s_add_u32 s{sT0}, s{sT0}, s{sT1}")
    a(f"s_lshl_b32 s30, s{sT0}, 7")
    a(f"s_lshl_b32 s{sT0}, s{sT0}, 10")
    a(f"s_lshl_b32 s{sT1}, s{sEb}, 7")
    a(f"s_add_u32 s{sT2}, s{sT0}, s{sT1}")
    for m in range(16):
        a(f"s_add_u32 s{sT1}, s{sT2}, {m*8192}")
        a(f"buffer_load_dwordx4 {vr(fO+4*m,4)}, v{vOffW}, s[{srdC}:{srdC+3}], s{sT1} offen")
    a(f"s_cmp_lg_u32 s{sF}, 0")
    a(f"s_cbranch_scc1 {name}_c1")
    a(f"v_lshlrev_b32 v{vFl2}, {FSH}, v{vLane}")
    a(f"v_add_u32 v{vFl2}, {WS_FLAG + (FL_D << FSH)}, v{vFl2}")
    gpoll_multi(a, vFl2, vYv, 4, 64 << FSH, f"{name}_gd", sCnt, sleep=8)
    lsig(a, vT0, vT1, C_GO3)
    a(f"s_branch {name}_c2")
    a.label(f"{name}_c1")
    lwait(a, vT0, vT1, sT0, C_GO3, 1, f"{name}_cw1", sleep=16)
    a.label(f"{name}_c2")
    a(f"s_mov_b32 s{sT1}, {WS_G}")
    a(f"buffer_load_dword v{vG2}, v{vG2}, s[{srdWS}:{srdWS+3}], s{sT1} offen{SC}")
    for c in range(4):
        a(f"buffer_load_dwordx4 {vr(vYv+4*c,4)}, v{vYa}, s[{srdWS}:{srdWS+3}], s63 offen offset:{c*32}{SC}")
    tl_stamp(a, 6)
    a(f"v_and_b32 v{vT0}, 31, v{vLane}")
    a(f"s_lshr_b32 s{sT0}, s{sHead}, 2")
    a(f"s_lshl_b32 s{sT0}, s{sT0}, 5")
    a(f"v_add_u32 v{vT0}, s{sT0}, v{vT0}")
    a(f"v_lshlrev_b32 v{vFl2}, {FSH}, v{vT0}")
    a(f"v_add_u32 v{vFl2}, {WS_FLAG + (FL_O << FSH)}, v{vFl2}")
    a(f"v_add_u32 v{vOffW}, s30, v{vL16}")
    a(f"s_lshl_b32 s{sT0}, s{sTb}, 1")
    a(f"s_add_u32 s{sT0}, s{sT0}, s{sTt2}")
    a(f"s_lshl_b32 s{sT0}, s{sT0}, 5")
    a(f"s_lshl_b32 s{sT1}, s{sKh2}, 4")
    a(f"s_add_u32 s{sT0}, s{sT0}, s{sT1}")
    a(f"s_lshl_b32 s{sT0}, s{sT0}, 10")
    a(f"s_add_u32 s30, s{sT0}, {WS_O}")
    a("s_waitcnt vmcnt(0)")
    lwait(a, vT0, vT1, sT0, C_ADONE, 8, f"{name}_cw2", sleep=3)
    tl_stamp(a, 7)
    for m in range(16):
        a(f"ds_write_b128 v{vOffW}, {vr(fO+4*m,4)} offset:{m*1024}")
    a("s_waitcnt lgkmcnt(0)")
    a(f"s_lshl_b32 s{sT0}, s{sKh2}, 2")
    a(f"s_add_u32 s31, s{sT0}, {C_W}")
    lsig(a, vT0, vT1, "s31")
    tl_stamp(a, 1)
    if not PAR.get("ODIRECT", 0):
        a(f"s_cmp_lg_u32 s{sF}, 0")
        a(f"s_cbranch_scc1 {name}_c3")
        gpoll(a, vFl2, vT0, f"{name}_go", 55, sleep=2)
        lsig(a, vT0, vT1, C_GO3)
        a(f"s_branch {name}_c4")
        a.label(f"{name}_c3")
        lwait(a, vT0, vT1, sT0, C_GO3, 2, f"{name}_cw3", sleep=1)
        a.label(f"{name}_c4")
    tl_stamp(a, 8)
    a(f"s_mov_b32 s55, {PAR.get('ORETRY', 32)}")
    a.label(f"{name}_oload")
    for i in range(16):
        a(f"s_add_u32 s{sT1}, s30, {i*1024}")
        a(f"buffer_load_dwordx4 {vr(fO+4*i,4)}, v{vL16}, s[{srdWS}:{srdWS+3}], s{sT1} offen{SC}")
    def wreads(i):
        s_ = i % NS
        for et in range(2):
            for u in range(2):
                a(f"ds_read_b64_tr_b16 {vr(fW[s_]+4*et+2*u,2)}, v{vWa[et]} offset:{i*2048 + u*1024}")
    if PAR.get("OCHK", 0):
        a(f"v_mov_b32 v{vFl2}, 0")
        for i in range(16):
            a(f"s_waitcnt vmcnt({15-i})")
            a(f"v_max3_u32 v{vFl2}, v{vFl2}, v{fO+4*i}, v{fO+4*i+1}")
            a(f"v_max3_u32 v{vFl2}, v{vFl2}, v{fO+4*i+2}, v{fO+4*i+3}")
        a(f"v_cmp_eq_u32 vcc, -1, v{vFl2}")
        a("s_nop 4")
        a(f"s_cbranch_vccz {name}_ogood")
        a(f"s_sub_u32 s55, s55, 1")
        a(f"s_cbranch_scc0 {name}_oload")
        a.label(f"{name}_ogood")
        lwait(a, vT0, vT1, sT0, "s31", 2, f"{name}_cw4", sleep=0)
        tl_stamp(a, 2)
        wreads(0); wreads(1)
        for i in range(16):
            if i + 2 < 16:
                wreads(i + 2)
                a(f"s_waitcnt lgkmcnt(8)")
            else:
                a(f"s_waitcnt lgkmcnt({4*(15-i)})")
            for et in range(2):
                a(f"v_mfma_f32_32x32x16_bf16 {vr(acc[et],16)}, {vr(fW[i%NS]+4*et,4)}, {vr(fO+4*i,4)}, {vr(acc[et],16)}")
    else:
        lwait(a, vT0, vT1, sT0, "s31", 2, f"{name}_cw4", sleep=0)
        a(f"v_mov_b32 v{vFl2}, 0")
        tl_stamp(a, 2)
        wreads(0); wreads(1)
        for i in range(16):
            if i + 2 < 16:
                wreads(i + 2)
                a(f"s_waitcnt vmcnt({15-i}) lgkmcnt(8)")
            else:
                a(f"s_waitcnt vmcnt({15-i}) lgkmcnt({4*(15-i)})")
            for et in range(2):
                a(f"v_mfma_f32_32x32x16_bf16 {vr(acc[et],16)}, {vr(fW[i%NS]+4*et,4)}, {vr(fO+4*i,4)}, {vr(acc[et],16)}")
            a(f"v_max3_u32 v{vFl2}, v{vFl2}, v{fO+4*i}, v{fO+4*i+1}")
            a(f"v_max3_u32 v{vFl2}, v{vFl2}, v{fO+4*i+2}, v{fO+4*i+3}")
        a(f"v_cmp_eq_u32 vcc, -1, v{vFl2}")
        a("s_nop 4")
        a(f"s_cbranch_vccz {name}_ook")
        a(f"s_sub_u32 s55, s55, 1")
        a(f"s_cbranch_scc1 {name}_ook")
        a("s_nop 15")
        for e in range(2):
            for i in range(16):
                a(f"v_mov_b32 v{acc[e]+i}, 0")
        a("s_sleep 2")
        a(f"s_branch {name}_oload")
    a.label(f"{name}_ook")
    if TL["on"]:
        a("s_sub_u32 s86, 32, s55")
        a("s_add_u32 s86, s86, s90" if TL.get("rt") else "s_add_u32 s86, s86, s92")
    tl_stamp(a, 9)
    a("s_nop 15")
    a(f"s_lshl_b32 s{sT0}, s{sF}, 12")
    a(f"s_add_u32 s{sT0}, s{sT0}, 65536")
    a(f"v_add_u32 v{vT0}, s{sT0}, v{vL16}")
    a(f"s_cmp_eq_u32 s{sKh2}, 0")
    a(f"s_cbranch_scc0 {name}_y1")
    for q in range(4):
        a(f"ds_write_b128 v{vT0}, {vr(acc[1]+4*q,4)} offset:{q*1024}")
    a(f"s_branch {name}_y2")
    a.label(f"{name}_y1")
    for q in range(4):
        a(f"ds_write_b128 v{vT0}, {vr(acc[0]+4*q,4)} offset:{q*1024}")
    for i in range(16):
        a(f"v_mov_b32 v{acc[0]+i}, v{acc[1]+i}")
    a.label(f"{name}_y2")
    a("s_waitcnt lgkmcnt(0)")
    a(f"s_lshl_b32 s{sT0}, s{sTt2}, 2")
    a(f"s_add_u32 s31, s{sT0}, {C_Y}")
    lsig(a, vT1, vT2, "s31")
    lwait(a, vT1, vT2, sT0, "s31", 2, f"{name}_cw5", sleep=0)
    a(f"s_xor_b32 s{sT0}, s{sF}, 2")
    a(f"s_lshl_b32 s{sT0}, s{sT0}, 12")
    a(f"s_add_u32 s{sT0}, s{sT0}, 65536")
    a(f"v_add_u32 v{vT0}, s{sT0}, v{vL16}")
    for q in range(4):
        a(f"ds_read_b128 {vr(fO+4*q,4)}, v{vT0} offset:{q*1024}")
    a("s_waitcnt lgkmcnt(0)")
    S = acc[0]
    for i in range(16):
        a(f"v_add_f32 v{S+i}, v{S+i}, v{fO+i}")
    a(f"s_cmp_eq_u32 s{sMirE}, 0")
    a(f"s_cbranch_scc0 {name}_cm")
    for i in range(16):
        a(f"v_sub_f32 v{S+i}, v{S+i}, v{vYv+i}")
        a(f"v_fma_f32 v{S+i}, v{vG2}, v{S+i}, v{vYv+i}")
    a(f"s_branch {name}_st")
    a.label(f"{name}_cm")
    for g in range(4):
        for r in range(4):
            y = vYv + 4*(3-g) + (3-r)
            a(f"v_sub_f32 v{S+4*g+r}, v{S+4*g+r}, v{y}")
            a(f"v_fma_f32 v{S+4*g+r}, v{vG2}, v{S+4*g+r}, v{y}")
    a.label(f"{name}_st")
    P = fO + 16
    for i in range(8):
        a(f"v_cvt_pk_bf16_f32 v{P+i}, v{S+2*i}, v{S+2*i+1}")
    a(f"v_and_b32 v{vT0}, 31, v{vLane}")
    a(f"v_add_u32 v{vT0}, s{sT0row}, v{vT0}")
    a(f"v_lshlrev_b32 v{vT0}, 10, v{vT0}")
    a(f"v_lshrrev_b32 v{vT1}, 5, v{vLane}")
    a(f"v_lshlrev_b32 v{vT1}, 4, v{vT1}")
    a(f"v_add_u32 v{vT0}, v{vT0}, v{vT1}")
    a(f"s_lshl_b32 s{sT0}, s{sE0}, 1")
    for pr in range(2):
        a(f"v_permlane32_swap_b32 v{P+4*pr}, v{P+4*pr+2}")
        a(f"v_permlane32_swap_b32 v{P+4*pr+1}, v{P+4*pr+3}")
    for pr in range(2):
        a(f"buffer_store_dwordx4 {vr(P+4*pr,4)}, v{vT0}, s[{srdA}:{srdA+3}], s{sT0} offen offset:{32*pr}")
    tl_stamp(a, 10)
    dbg_exit(a, [5, 8, -1], [0, 5], 8, 7)
    if not TL.get("dbg"): tl_exit(a, 2, sWS)
    a("s_endpgm")
```

```python
from asmlib import *
from common import *
import struct
def f2u(f): return struct.unpack("<I", struct.pack("<f", f))[0]
QSCALE = 0.25 * 1.4426950408889634

WS_FLAG = 14 * (1 << 20) + 65536
FL_Q, FL_F1, FL_E, FL_D, FL_O = 0, 256, 512, 768, 1024
FSH = 5
VG = 544
VHALF = 64 * VG
LDS_CNT = 65536 + 128 * VG
C_NONCE, C_GO, C_KV0, C_KV, C_GO2, C_R0, C_R1, C_F, C_ADONE, C_GO3 = [LDS_CNT + 4*i for i in range(10)]
C_X = LDS_CNT + 48
C_W = LDS_CNT + 64
C_Y = LDS_CNT + 72
C_SLOT = LDS_CNT + 80
C_ST = LDS_CNT + 84
C_ED = LDS_CNT + 88
C_FB = LDS_CNT + 92
C_NEAR = LDS_CNT + 96
C_FD = LDS_CNT + 100
C_RDY = LDS_CNT + 128
C_QUE = LDS_CNT + 192
LDS_RED = LDS_CNT + 256
NBUF = 4
MAP2 = 0
TOUCH = 0
FB = 24576
NFB = 5
K1_SCHED = [[(2,0),(2,1),(3,0)], [(3,1)], [(4,0),(4,1)], [(5,0),(5,1)], [(6,0),(6,1)], [(7,0),(7,1)], [], []]
SPIN_MAX = 1 << 16
SC = " sc1"

sX, sWq, sWo, sSre, sSim, sHre, sHim, sGate, sOut, sDbg, sWS = 4, 6, 8, 12, 14, 16, 18, 20, 22, 24, 26
sW, sN = 28, 29
srdWS, srdA, srdB, srdC = 32, 36, 40, 44
sT0, sT1, sT2, sT3 = 48, 49, 50, 51

def gpoll(a, vaddr, vdat, label, scnt, sleep=6):
    a(f"s_mov_b32 s{scnt}, {SPIN_MAX}")
    a.label(label)
    a(f"global_load_dword v{vdat}, v{vaddr}, s[{sWS}:{sWS+1}] sc1")
    a("s_waitcnt vmcnt(0)")
    a(f"v_cmp_ne_u32 vcc, s{sN}, v{vdat}")
    a(f"s_sub_u32 s{scnt}, s{scnt}, 1")
    a(f"s_cbranch_scc1 {label}_ok")
    a("s_nop 2")
    a(f"s_cbranch_vccz {label}_ok")
    a(f"s_sleep {sleep}")
    a(f"s_branch {label}")
    a.label(f"{label}_ok")

def gpoll_multi(a, vaddr, vdat0, n, stride, label, scnt, sleep=6):
    a(f"s_mov_b32 s{scnt}, {SPIN_MAX}")
    a.label(label)
    for i in range(n):
        if i*stride < 4096:
            a(f"global_load_dword v{vdat0+i}, v{vaddr}, s[{sWS}:{sWS+1}] offset:{i*stride} sc1")
        else:
            a(f"v_add_u32 v{vdat0+n}, {i*stride}, v{vaddr}")
            a(f"global_load_dword v{vdat0+i}, v{vdat0+n}, s[{sWS}:{sWS+1}] sc1")
    a("s_waitcnt vmcnt(0)")
    a(f"v_cmp_ne_u32 vcc, s{sN}, v{vdat0}")
    for i in range(1, n):
        a(f"v_cmp_ne_u32 s[{sT0}:{sT0+1}], s{sN}, v{vdat0+i}")
        a("s_nop 1")
        a(f"s_or_b64 vcc, vcc, s[{sT0}:{sT0+1}]")
    a(f"s_sub_u32 s{scnt}, s{scnt}, 1")
    a(f"s_cbranch_scc1 {label}_ok")
    a("s_nop 2")
    a(f"s_cbranch_vccz {label}_ok")
    a(f"s_sleep {sleep}")
    a(f"s_branch {label}")
    a.label(f"{label}_ok")

def lwait(a, vaddr, vtmp, stmp, off, target, label, sleep=1):
    a(f"v_mov_b32 v{vaddr}, {off}" if isinstance(off, int) else f"v_mov_b32 v{vaddr}, {off}")
    a(f"s_mov_b32 s{sT3}, {SPIN_MAX*16}")
    a.label(label)
    a(f"ds_read_b32 v{vtmp}, v{vaddr}")
    a("s_waitcnt lgkmcnt(0)")
    a(f"v_readfirstlane_b32 s{stmp}, v{vtmp}")
    a(f"s_sub_u32 s{sT3}, s{sT3}, 1")
    a(f"s_cbranch_scc1 {label}_ok")
    a("s_nop 1")
    a(f"s_cmp_ge_u32 s{stmp}, {target}")
    a(f"s_cbranch_scc1 {label}_ok")
    if sleep: a(f"s_sleep {sleep}")
    a(f"s_branch {label}")
    a.label(f"{label}_ok")

def lsig(a, vaddr, vtmp, off):
    a(f"v_mov_b32 v{vaddr}, {off}")
    a(f"v_mov_b32 v{vtmp}, 1")
    a("s_mov_b64 exec, 1")
    a(f"ds_add_u32 v{vaddr}, v{vtmp}")
    a("s_mov_b64 exec, -1")

def publish(a, vaddr, vtmp, sidx):
    a(f"s_lshl_b32 s{sT3}, s{sidx}, {FSH}")
    a(f"s_add_u32 s{sT3}, s{sT3}, {WS_FLAG}")
    a(f"v_mov_b32 v{vaddr}, s{sT3}")
    a(f"v_mov_b32 v{vtmp}, s{sN}")
    a("s_mov_b64 exec, 1")
    a(f"global_store_dword v{vaddr}, v{vtmp}, s[{sWS}:{sWS+1}] sc1")
    a("s_mov_b64 exec, -1")

def read_nonce(a, vaddr, vtmp):
    a(f"v_mov_b32 v{vaddr}, {C_NONCE}")
    a(f"ds_read_b32 v{vtmp}, v{vaddr}")
    a("s_waitcnt lgkmcnt(0)")
    a(f"v_readfirstlane_b32 s{sN}, v{vtmp}")
    a("s_nop 3")

def gen_fused(a, name):
    R = RegAlloc(0, 168)
    R.alloc("tid")
    vLane = R.alloc("lane"); vL16 = R.alloc("l16")
    vT0 = R.alloc("t0"); vT1 = R.alloc("t1"); vT2 = R.alloc("t2"); vT3 = R.alloc("t3")
    base = R.next
    nvmax = [0]
    sTok0, sN0, sNb, sSign, sWm, sWn = 52, 53, 54, 55, 56, 57
    sXoff, sWoff, sLdsX, sLdsW = 58, 59, 60, 61

    a.raw(kernel_header(name))
    a("s_cmp_ge_u32 s2, 256")
    a(f"s_cbranch_scc1 {name}_end")
    tl_entry(a)
    a("s_load_dwordx16 s[4:19], s[0:1], 0")
    a("s_load_dwordx8 s[20:27], s[0:1], 64")
    a(f"v_lshrrev_b32 v{vT0}, 6, v0")
    a(f"v_and_b32 v{vLane}, 63, v0")
    a(f"v_readfirstlane_b32 s{sW}, v{vT0}")
    a(f"v_lshlrev_b32 v{vL16}, 4, v{vLane}")
    if MAP2:
        a(f"s_and_b32 s{sT0}, s2, 7")
        a(f"s_lshr_b32 s{sT1}, s2, 3")
        a(f"s_and_b32 s{sT2}, s{sT0}, 6")
        a(f"s_cmp_eq_u32 s{sT2}, 4")
        a(f"s_cselect_b32 s30, 1, 0")
        a(f"s_cbranch_scc1 {name}_decF")
        a(f"s_sub_u32 s{sT2}, 11, s{sT0}")
        a(f"s_cmp_ge_u32 s{sT0}, 4")
        a(f"s_cselect_b32 s{sT0}, s{sT2}, s{sT0}")
        a(f"s_and_b32 s{sT2}, s{sT0}, 1")
        a(f"s_lshl_b32 s{sT2}, s{sT2}, 3")
        a(f"s_and_b32 s{sTok0}, s{sT1}, 7")
        a(f"s_add_u32 s{sTok0}, s{sTok0}, s{sT2}")
        a(f"s_lshr_b32 s{sT0}, s{sT0}, 1")
        a(f"s_lshl_b32 s{sT0}, s{sT0}, 2")
        a(f"s_lshr_b32 s{sNb}, s{sT1}, 3")
        a(f"s_add_u32 s{sNb}, s{sNb}, s{sT0}")
        a(f"s_lshl_b32 s62, s{sNb}, 4")
        a(f"s_add_u32 s62, s62, s{sTok0}")
        a(f"s_lshl_b32 s{sTok0}, s{sTok0}, 7")
        a(f"s_lshl_b32 s{sN0}, s{sNb}, 7")
        a(f"s_branch {name}_dec")
        a.label(f"{name}_decF")
        a(f"s_and_b32 s{sSign}, s{sT0}, 1")
        a(f"s_lshl_b32 s62, s{sSign}, 5")
        a(f"s_add_u32 s62, s62, s{sT1}")
        a(f"s_add_u32 s62, s62, {FL_F1}")
        a(f"s_and_b32 s{sNb}, s{sT1}, 1")
        a(f"s_lshr_b32 s{sT1}, s{sT1}, 1")
        a(f"s_lshl_b32 s{sTok0}, s{sT1}, 6")
        a(f"s_lshl_b32 s{sN0}, s{sNb}, 7")
    else:
        a("s_cmp_ge_u32 s2, 192")
        a(f"s_cselect_b32 s30, 1, 0")
        a(f"s_cbranch_scc1 {name}_decF")
        a(f"s_and_b32 s{sT0}, s2, 7")
        a(f"s_lshr_b32 s{sT1}, s2, 3")
        a(f"s_lshr_b32 s{sT2}, s{sT0}, 1")
        a(f"s_lshl_b32 s{sT2}, s{sT2}, 2")
        a(f"s_and_b32 s{sTok0}, s{sT1}, 3")
        a(f"s_add_u32 s{sTok0}, s{sTok0}, s{sT2}")
        a(f"s_and_b32 s{sT0}, s{sT0}, 1")
        a(f"s_mul_i32 s{sT0}, s{sT0}, 6")
        a(f"s_lshr_b32 s{sNb}, s{sT1}, 2")
        a(f"s_add_u32 s{sNb}, s{sNb}, s{sT0}")
        a(f"s_lshl_b32 s62, s{sNb}, 4")
        a(f"s_add_u32 s62, s62, s{sTok0}")
        a(f"s_lshl_b32 s{sTok0}, s{sTok0}, 7")
        a(f"s_lshl_b32 s{sN0}, s{sNb}, 7")
        a(f"s_branch {name}_dec")
        a.label(f"{name}_decF")
        a(f"s_sub_u32 s{sT0}, s2, 192")
        a(f"s_add_u32 s62, s{sT0}, {FL_F1}")
        a(f"s_lshr_b32 s{sT1}, s{sT0}, 3")
        a(f"s_lshr_b32 s{sSign}, s{sT1}, 2")
        a(f"s_and_b32 s{sT1}, s{sT1}, 3")
        a(f"s_and_b32 s{sNb}, s{sT0}, 1")
        a(f"s_bfe_u32 s{sT2}, s{sT0}, 0x20001")
        a(f"s_lshl_b32 s{sT3}, s{sT2}, 3")
        a(f"s_lshr_b32 s{sT3}, 0x040c0800, s{sT3}")
        a(f"s_and_b32 s{sT3}, s{sT3}, 0xff")
        a(f"s_add_u32 s{sT1}, s{sT1}, s{sT3}")
        a(f"s_lshl_b32 s{sTok0}, s{sT1}, 6")
        a(f"s_lshl_b32 s{sN0}, s{sNb}, 7")
    a.label(f"{name}_dec")
    a(f"s_cmp_ge_u32 s{sW}, 8")
    a(f"s_cbranch_scc1 {name}_edge")
    a(f"s_cmp_lt_u32 s{sW}, 4")
    a(f"s_cbranch_scc1 {name}_cons")

    Rl = RegAlloc(base, 168)
    vOffX = [Rl.alloc("offX0"), Rl.alloc("offX1")]
    vOffW = Rl.alloc("offW")
    vRowMain = Rl.alloc("rowmain", 2); vRowMir = Rl.alloc("rowmir", 2)
    vWr = Rl.alloc("wr")
    vSt = Rl.alloc("stage", 64)
    vFo = Rl.alloc("fold", 8)
    ER = Rl.alloc("edge", 32)
    nvmax[0] = max(nvmax[0], Rl.next)
    sLW = 63
    a(f"s_sub_u32 s{sLW}, s{sW}, 4")
    a(f"v_lshrrev_b32 v{vT0}, 3, v{vLane}")
    a(f"v_lshlrev_b32 v{vT0}, 10, v{vT0}")
    a(f"v_lshrrev_b32 v{vT1}, 4, v{vLane}")
    a(f"v_and_b32 v{vT2}, 7, v{vLane}")
    for p in range(2):
        a(f"v_add_u32 v{vT3}, {4*p}, v{vT1}")
        a(f"v_xor_b32 v{vT3}, v{vT3}, v{vT2}")
        a(f"v_lshlrev_b32 v{vT3}, 4, v{vT3}")
        a(f"v_add_u32 v{vOffX[p]}, v{vT0}, v{vT3}")
    a("s_cmp_lg_u32 s30, 0")
    a(f"s_cbranch_scc1 {name}_lF")
    a(f"v_lshrrev_b32 v{vT0}, 4, v{vLane}")
    a(f"v_mul_u32_u24 v{vT1}, 3072, v{vT0}")
    a(f"v_bfe_u32 v{vT2}, v{vLane}, 2, 2")
    a(f"v_xor_b32 v{vT2}, v{vT2}, v{vT0}")
    a(f"v_lshlrev_b32 v{vT2}, 6, v{vT2}")
    a(f"v_add_u32 v{vT1}, v{vT1}, v{vT2}")
    a(f"v_and_b32 v{vT2}, 3, v{vLane}")
    a(f"v_lshlrev_b32 v{vT2}, 4, v{vT2}")
    a(f"v_add_u32 v{vOffW}, v{vT1}, v{vT2}")
    a(f"s_lshl_b32 s{sT0}, s{sLW}, 5")
    a(f"s_add_u32 s{sT0}, s{sT0}, s{sTok0}")
    a(f"s_lshl_b32 s{sXoff}, s{sT0}, 10")
    a(f"s_mul_i32 s{sWoff}, s{sLW}, {16*3072}")
    a(f"s_lshl_b32 s{sT0}, s{sN0}, 1")
    a(f"s_add_u32 s{sWoff}, s{sWoff}, s{sT0}")
    a(f"s_lshl_b32 s{sLdsX}, s{sLW}, 12")
    a(f"s_add_u32 s{sLdsW}, s{sLdsX}, 16384")
    a("s_waitcnt lgkmcnt(0)")
    srd(a, srdA, sX, 2048*1024)
    srd(a, srdB, sWq, 512*3072)
    vm = Vm(a)
    def dma_qkv(st, half=None):
        buf = (st % NBUF) * 32768
        for m in (range(4) if half is None else range(2*half, 2*half+2)):
            a(f"s_add_u32 m0, s{sLdsX}, {buf + m*1024}")
            a(f"s_add_u32 s{sT0}, s{sXoff}, {m*8192 + st*128}")
            a(f"buffer_load_dwordx4 v{vOffX[m&1]}, s[{srdA}:{srdA+3}], s{sT0} offen lds")
            a(f"s_add_u32 m0, s{sLdsW}, {buf + m*1024}")
            a(f"s_add_u32 s{sT0}, s{sWoff}, {(st*64 + 4*m)*3072}")
            a(f"buffer_load_dwordx4 v{vOffW}, s[{srdB}:{srdB+3}], s{sT0} offen lds")
        vm.issue(("S", st), 8 if half is None else 4)
    tl_stamp(a, 0)
    dma_qkv(0); dma_qkv(1)
    from gen_fused_b import emit_edge_loads, emit_edge_compute
    VV = dict(vLane=vLane, vL16=vL16, vT0=vT0, vT1=vT1, vT2=vT2, vT3=vT3)
    for i in range(8):
        vm.wait(("S", i))
        a("s_barrier")
        for (st, h) in K1_SCHED[i]:
            assert st < NBUF or st - NBUF + 2 <= i, (st, i)
            dma_qkv(st, h)
    a("s_barrier")
    tl_stamp(a, 1)
    a(f"s_branch {name}_attn")

    a.label(f"{name}_lF")
    a(f"s_cmp_eq_u32 s{sSign}, 0")
    a(f"s_cbranch_scc1 {name}_lFa")
    a("s_waitcnt lgkmcnt(0)")
    srd(a, srdB, sHim, 512*1024)
    a(f"s_mov_b32 s{srdC}, 0x0000bf80")
    a(f"s_mov_b32 s{srdC+1}, 0xbf800000")
    a(f"s_branch {name}_lFgo")
    a.label(f"{name}_lFa")
    a("s_waitcnt lgkmcnt(0)")
    srd(a, srdB, sHre, 512*1024)
    a(f"s_mov_b32 s{srdC}, 0x00003f80")
    a(f"s_mov_b32 s{srdC+1}, 0x3f800000")
    a.label(f"{name}_lFgo")
    a(f"s_mov_b32 s{srdC+2}, 0x00003f80")
    a(f"s_mov_b32 s{srdC+3}, 0x3f800000")
    a(f"s_lshl_b32 s{sT0}, s{sLW}, 4")
    a(f"s_add_u32 s{sT0}, s{sT0}, s{sTok0}")
    a(f"v_lshrrev_b32 v{vT0}, 3, v{vLane}")
    a(f"v_add_u32 v{vT0}, s{sT0}, v{vT0}")
    for m in range(2):
        a(f"v_add_u32 v{vT1}, {8*m}, v{vT0}")
        a(f"v_and_b32 v{vT2}, 1023, v{vOffX[m&1]}")
        a(f"v_lshl_add_u32 v{vRowMain+m}, v{vT1}, 10, v{vT2}")
        a(f"v_sub_u32 v{vT1}, 2048, v{vT1}")
        a(f"v_lshl_add_u32 v{vRowMir+m}, v{vT1}, 10, v{vT2}")
    a(f"s_lshl_b32 s{sT0}, s{sLW}, 5")
    a(f"s_add_u32 s{sT0}, s{sT0}, s{sN0}")
    a(f"s_lshl_b32 s{sWoff}, s{sT0}, 10")
    a(f"s_lshl_b32 s{sLdsW}, s{sLW}, 12")
    a(f"s_add_u32 s{sLdsW}, s{sLdsW}, 8192")
    a(f"s_lshl_b32 s{sT0}, s{sLW}, 11")
    a(f"v_add_u32 v{vWr}, s{sT0}, v{vL16}")
    srd(a, srdA, sX, 2048*1024)
    vm = Vm(a)
    def f_loadA(st):
        b = vSt + (st & 3) * 16
        a(f"s_mov_b32 s{sT0}, {st*128}")
        for m in range(2):
            a(f"buffer_load_dwordx4 {vr(b+8*m,4)}, v{vRowMain+m}, s[{srdA}:{srdA+3}], s{sT0} offen")
            a(f"buffer_load_dwordx4 {vr(b+8*m+4,4)}, v{vRowMir+m}, s[{srdA}:{srdA+3}], s{sT0} offen")
        vm.issue(("A", st), 4)
    def f_dmaB(st):
        buf = (st % NFB) * FB
        for m in range(4):
            a(f"s_add_u32 m0, s{sLdsW}, {buf + m*1024}")
            a(f"s_add_u32 s{sT0}, s{sWoff}, {m*8192 + st*128}")
            a(f"buffer_load_dwordx4 v{vOffX[m&1]}, s[{srdB}:{srdB+3}], s{sT0} offen lds")
        vm.issue(("B", st), 4)
    def f_fold(st):
        b = vSt + (st & 3) * 16
        buf = (st % NFB) * FB
        for m in range(2):
            M = b + 8*m; Mi = M + 4
            for q in range(4):
                a(f"v_dot2_f32_bf16 v{vFo+2*q}, v{M+q}, s{srdC+2}, 0")
                a(f"v_dot2_f32_bf16 v{vFo+2*q+1}, v{M+q}, s{srdC+3}, 0")
            for q in range(4):
                a(f"v_dot2c_f32_bf16 v{vFo+2*q}, s{srdC}, v{Mi+q}")
                a(f"v_dot2c_f32_bf16 v{vFo+2*q+1}, s{srdC+1}, v{Mi+q}")
            for q in range(4):
                a(f"v_cvt_pk_bf16_f32 v{M+q}, v{vFo+2*q}, v{vFo+2*q+1}")
            if buf + m*1024 <= 65000:
                a(f"ds_write_b128 v{vWr}, {vr(M,4)} offset:{buf + m*1024}")
            else:
                a(f"v_add_u32 v{vT0}, {buf + m*1024}, v{vWr}")
                a(f"ds_write_b128 v{vT0}, {vr(M,4)}")
    tl_stamp(a, 0)
    for st in range(3):
        f_loadA(st); f_dmaB(st)
    for i in range(8):
        vm.wait(("A", i))
        f_fold(i)
        vm.wait(("B", i))
        a("s_waitcnt lgkmcnt(0)")
        a("s_barrier")
        if i == 0:
            f_loadA(3); f_dmaB(3); f_loadA(4); f_dmaB(4)
        elif i + 4 < 8:
            f_loadA(i + 4)
        if i >= 2 and i + 3 < 8:
            f_dmaB(i + 3)
    a("s_barrier")
    tl_stamp(a, 1)
    a(f"s_branch {name}_attn")

    a.label(f"{name}_cons")
    Rc = RegAlloc(base, 168)
    vX = [[Rc.alloc(f"X{s}{j}") for j in range(4)] for s in range(3)]
    vW = [[Rc.alloc(f"W{s}{f}") for f in range(2)] for s in range(2)]
    vH = [[Rc.alloc(f"H{s}{j}") for j in range(4)] for s in range(3)]
    fX = [[Rc.alloc(f"fX{s}{t}", 4) for t in range(2)] for s in range(3)]
    fW = [[Rc.alloc(f"fW{s}{f}", 4) for f in range(2)] for s in range(3)]
    acc = [[Rc.alloc(f"acc{f}{t}", 16) for t in range(2)] for f in range(2)]
    nvmax[0] = max(nvmax[0], Rc.next)
    a(f"s_lshr_b32 s{sWm}, s{sW}, 1")
    a(f"s_and_b32 s{sWn}, s{sW}, 1")
    a(f"v_and_b32 v{vT0}, 31, v{vLane}")
    a(f"v_lshrrev_b32 v{vT1}, 5, v{vLane}")
    a(f"v_lshrrev_b32 v{vT2}, 1, v{vT0}")
    a(f"v_and_b32 v{vT2}, 7, v{vT2}")
    a(f"v_xor_b32 v{vT2}, v{vT2}, v{vT1}")
    a(f"v_lshlrev_b32 v{vT2}, 4, v{vT2}")
    a(f"v_lshlrev_b32 v{vT0}, 7, v{vT0}")
    a(f"v_add_u32 v{vT0}, v{vT0}, v{vT2}")
    a("s_cmp_lg_u32 s30, 0")
    a(f"s_cbranch_scc1 {name}_cF")
    a(f"s_lshl_b32 s{sT0}, s{sWn}, 13")
    for j in range(4):
        a(f"v_xor_b32 v{vT3}, {j*32}, v{vT0}")
        a(f"v_add_u32 v{vX[0][j]}, s{sT0}, v{vT3}")
        a(f"v_add_u32 v{vX[1][j]}, 65536, v{vX[0][j]}")
    a(f"v_bfe_u32 v{vT0}, v{vLane}, 2, 2")
    a(f"v_lshrrev_b32 v{vT1}, 5, v{vLane}")
    a(f"v_lshlrev_b32 v{vT1}, 3, v{vT1}")
    a(f"v_add_u32 v{vT1}, v{vT1}, v{vT0}")
    a(f"v_lshlrev_b32 v{vT1}, 8, v{vT1}")
    a(f"v_bfe_u32 v{vT2}, v{vLane}, 4, 1")
    a(f"v_lshlrev_b32 v{vT2}, 5, v{vT2}")
    a(f"v_add_u32 v{vT1}, v{vT1}, v{vT2}")
    a(f"v_and_b32 v{vT2}, 3, v{vLane}")
    a(f"v_lshlrev_b32 v{vT2}, 3, v{vT2}")
    a(f"v_add_u32 v{vT1}, v{vT1}, v{vT2}")
    a(f"v_add_u32 v{vT1}, 16384, v{vT1}")
    a(f"s_lshl_b32 s{sT0}, s{sWm}, 1")
    for f in range(2):
        a(f"s_add_u32 s{sT1}, s{sT0}, {f}")
        a(f"v_xor_b32 v{vT2}, s{sT1}, v{vT0}")
        a(f"v_lshlrev_b32 v{vT2}, 6, v{vT2}")
        a(f"v_add_u32 v{vW[0][f]}, v{vT1}, v{vT2}")
        a(f"v_add_u32 v{vW[1][f]}, 65536, v{vW[0][f]}")
    a("s_waitcnt lgkmcnt(0)")
    if TOUCH:
        a(f"s_lshr_b32 s{sT0}, s2, 3")
        a(f"s_and_b32 s{sT1}, s{sT0}, 3")
        a(f"s_lshr_b32 s{sT0}, s{sT0}, 2")
        a(f"s_cmp_ge_u32 s{sW}, 2")
        a(f"s_cbranch_scc1 {name}_tW")
        a(f"s_cmp_ge_u32 s{sT0}, {8-TOUCH}")
        a(f"s_cselect_b32 s{sT2}, {8-TOUCH}, 0")
        a(f"s_sub_u32 s{sT0}, s{sT0}, s{sT2}")
        a(f"s_add_u32 s{sT0}, s{sT0}, {TOUCH}")
        a(f"s_lshl_b32 s{sT0}, s{sT0}, 7")
        a(f"s_lshl_b32 s{sT2}, s{sW}, 6")
        a(f"s_add_u32 s{sT2}, s{sT2}, s{sTok0}")
        a(f"v_add_u32 v{vT1}, s{sT2}, v{vLane}")
        a(f"v_lshlrev_b32 v{vT1}, 10, v{vT1}")
        a(f"v_add_u32 v{vT1}, s{sT0}, v{vT1}")
        a(f"global_load_dword v{vT2}, v{vT1}, s[{sX}:{sX+1}]")
        a(f"s_branch {name}_tD")
        a.label(f"{name}_tW")
        a(f"s_add_u32 s{sT1}, s{sT1}, {TOUCH}")
        a(f"s_min_u32 s{sT1}, s{sT1}, 7")
        a(f"s_lshl_b32 s{sT1}, s{sT1}, 6")
        a(f"s_sub_u32 s{sT2}, s{sW}, 2")
        a(f"s_lshl_b32 s{sT2}, s{sT2}, 5")
        a(f"s_add_u32 s{sT1}, s{sT1}, s{sT2}")
        a(f"v_lshrrev_b32 v{vT1}, 1, v{vLane}")
        a(f"v_add_u32 v{vT1}, s{sT1}, v{vT1}")
        a(f"v_mul_u32_u24 v{vT1}, 3072, v{vT1}")
        a(f"v_and_b32 v{vT2}, 1, v{vLane}")
        a(f"v_lshlrev_b32 v{vT2}, 7, v{vT2}")
        a(f"v_add_u32 v{vT1}, v{vT1}, v{vT2}")
        a(f"s_lshl_b32 s{sT2}, s{sN0}, 1")
        a(f"v_add_u32 v{vT1}, s{sT2}, v{vT1}")
        a(f"global_load_dword v{vT2}, v{vT1}, s[{sWq}:{sWq+1}]")
        a.label(f"{name}_tD")
    for f in range(2):
        for t in range(2):
            for i in range(16):
                a(f"v_mov_b32 v{acc[f][t]+i}, 0")
    srd(a, srdWS, sWS, WS_SIZE_USED)
    def reads_qkv(st, j, s):
        buf = st % NBUF; hi = buf >> 1; boff = (buf & 1) * 32768
        for t in range(2):
            a(f"ds_read_b128 {vr(fX[s][t],4)}, v{vX[hi][j]} offset:{boff + t*4096}")
        for f in range(2):
            for u in range(2):
                a(f"ds_read_b64_tr_b16 {vr(fW[s][f]+2*u,2)}, v{vW[hi][f]} offset:{boff + (16*j+4*u)*256}")
    def mfmas(s, vtype):
        for f in range(2):
            for t in range(2):
                if vtype:
                    a(f"v_mfma_f32_32x32x16_bf16 {vr(acc[f][t],16)}, {vr(fX[s][t],4)}, {vr(fW[s][f],4)}, {vr(acc[f][t],16)}")
                else:
                    a(f"v_mfma_f32_32x32x16_bf16 {vr(acc[f][t],16)}, {vr(fW[s][f],4)}, {vr(fX[s][t],4)}, {vr(acc[f][t],16)}")
    def consume(reads, nreads, domf):
        a("s_barrier")
        tl_stamp(a, 0)
        reads(0, 0, 0)
        reads(0, 1, 1)
        for n in range(32):
            nn = n + 2
            if nn < 32:
                if nn % 4 == 0:
                    a("s_barrier")
                reads(nn // 4, nn % 4, nn % 3)
                a(f"s_waitcnt lgkmcnt({2*nreads})")
            elif nn == 32:
                a(f"s_waitcnt lgkmcnt({nreads})")
            else:
                a("s_waitcnt lgkmcnt(0)")
            domf(n % 3)
        a("s_barrier")
        tl_stamp(a, 1)
    lab = [0]
    def finish_A():
        lab[0] += 1
        read_nonce(a, vT0, vT1)
        a("s_waitcnt vmcnt(0)")
        a(f"v_mov_b32 v{vT0}, {C_ST}")
        a(f"v_mov_b32 v{vT1}, 1")
        a("s_mov_b64 exec, 1")
        a(f"ds_add_rtn_u32 v{vT2}, v{vT0}, v{vT1}")
        a("s_waitcnt lgkmcnt(0)")
        a("s_mov_b64 exec, -1")
        a(f"v_readfirstlane_b32 s{sT0}, v{vT2}")
        tl_stamp(a, 2)
        a("s_nop 3")
        a(f"s_cmp_lg_u32 s{sT0}, 3")
        a(f"s_cbranch_scc1 {name}_attn")
        publish(a, vT0, vT1, 62)
        a(f"s_branch {name}_attn")
    a(f"s_cmp_ge_u32 s{sNb}, 8")
    a(f"s_cbranch_scc1 {name}_vtype")
    consume(reads_qkv, 6, lambda s: mfmas(s, False))
    a(f"s_cmp_lt_u32 s{sNb}, 4")
    a(f"s_cselect_b32 s{sT2}, {f2u(QSCALE)}, 1.0")
    a(f"s_cselect_b32 s{sT0}, {WS_Q}, {WS_K}")
    a(f"s_and_b32 s{sT1}, s{sNb}, 3")
    a(f"s_lshl_b32 s{sT1}, s{sT1}, 3")
    a(f"s_lshl_b32 s{sT3}, s{sWm}, 2")
    a(f"s_add_u32 s{sT1}, s{sT1}, s{sT3}")
    a(f"s_lshl_b32 s{sT1}, s{sT1}, 16")
    a(f"s_add_u32 s{sT0}, s{sT0}, s{sT1}")
    a(f"s_lshr_b32 s{sT1}, s{sTok0}, 5")
    a(f"s_lshl_b32 s{sT3}, s{sWn}, 1")
    a(f"s_add_u32 s{sT1}, s{sT1}, s{sT3}")
    a(f"s_lshl_b32 s{sT1}, s{sT1}, 10")
    a(f"s_add_u32 s{sT0}, s{sT0}, s{sT1}")
    a("s_nop 3")
    a(f"s_cmp_lt_u32 s{sNb}, 4")
    a(f"s_cbranch_scc0 {name}_noscale")
    for f in range(2):
        for t in range(2):
            for i in range(16):
                a(f"v_mul_f32 v{acc[f][t]+i}, s{sT2}, v{acc[f][t]+i}")
    a.label(f"{name}_noscale")
    for f in range(2):
        for t in range(2):
            A = acc[f][t]
            P = fX[(f*2+t) % 3][0]
            for i in range(8):
                a(f"v_cvt_pk_bf16_f32 v{P+i}, v{A+2*i}, v{A+2*i+1}")
            for hh in range(2):
                a(f"s_add_u32 s{sT1}, s{sT0}, {(f*2+hh)*65536 + t*1024}")
                a(f"buffer_store_dwordx4 {vr(P+4*hh,4)}, v{vL16}, s[{srdWS}:{srdWS+3}], s{sT1} offen{SC}")
    finish_A()
    a.label(f"{name}_vtype")
    consume(reads_qkv, 6, lambda s: mfmas(s, True))
    a(f"s_sub_u32 s{sT1}, s{sNb}, 8")
    a(f"s_lshl_b32 s{sT1}, s{sT1}, 3")
    a(f"s_lshl_b32 s{sT3}, s{sWm}, 2")
    a(f"s_add_u32 s{sT1}, s{sT1}, s{sT3}")
    a(f"s_lshl_b32 s{sT1}, s{sT1}, 16")
    a(f"s_add_u32 s{sT0}, s{sT1}, {WS_V}")
    a(f"s_lshr_b32 s{sT1}, s{sTok0}, 4")
    a(f"s_lshl_b32 s{sT3}, s{sWn}, 2")
    a(f"s_add_u32 s{sT1}, s{sT1}, s{sT3}")
    a(f"s_lshl_b32 s{sT1}, s{sT1}, 9")
    a(f"s_add_u32 s{sT0}, s{sT0}, s{sT1}")
    a(f"v_bfe_u32 v{vT0}, v{vLane}, 4, 1")
    a(f"v_lshlrev_b32 v{vT0}, 16, v{vT0}")
    a(f"v_lshrrev_b32 v{vT1}, 5, v{vLane}")
    a(f"v_lshlrev_b32 v{vT1}, 8, v{vT1}")
    a(f"v_add_u32 v{vT0}, v{vT0}, v{vT1}")
    a(f"v_and_b32 v{vT1}, 15, v{vLane}")
    a(f"v_lshlrev_b32 v{vT1}, 4, v{vT1}")
    a(f"v_add_u32 v{vT0}, v{vT0}, v{vT1}")
    for f in range(2):
        for t in range(2):
            A = acc[f][t]
            P = fX[(f*2+t) % 3][0]
            for i in range(8):
                a(f"v_cvt_pk_bf16_f32 v{P+i}, v{A+2*i}, v{A+2*i+1}")
            for g in range(2):
                a(f"s_add_u32 s{sT1}, s{sT0}, {f*2*65536 + (t*2+g)*512}")
                a(f"buffer_store_dwordx4 {vr(P+4*g,4)}, v{vT0}, s[{srdWS}:{srdWS+3}], s{sT1} offen{SC}")
    finish_A()
    a.label(f"{name}_cF")
    a(f"s_lshl_b32 s{sT0}, s{sWn}, 12")
    a(f"s_lshl_b32 s{sT1}, s{sWm}, 13")
    a(f"s_add_u32 s{sT1}, s{sT1}, 8192")
    for j in range(4):
        a(f"v_xor_b32 v{vT3}, {j*32}, v{vT0}")
        a(f"v_add_u32 v{vX[0][j]}, s{sT0}, v{vT3}")
        a(f"v_add_u32 v{vX[1][j]}, {2*FB}, v{vX[0][j]}")
        a(f"v_add_u32 v{vX[2][j]}, {4*FB}, v{vX[0][j]}")
        a(f"v_add_u32 v{vH[0][j]}, s{sT1}, v{vT3}")
        a(f"v_add_u32 v{vH[1][j]}, {2*FB}, v{vH[0][j]}")
        a(f"v_add_u32 v{vH[2][j]}, {4*FB}, v{vH[0][j]}")
    for f in range(2):
        for i in range(16):
            a(f"v_mov_b32 v{acc[f][0]+i}, 0")
    a("s_waitcnt lgkmcnt(0)")
    srd(a, srdWS, sWS, WS_SIZE_USED)
    def reads_f(st, j, s):
        buf = st % NFB; k = buf >> 1; boff = (buf & 1) * FB
        a(f"ds_read_b128 {vr(fX[s][0],4)}, v{vX[k][j]} offset:{boff}")
        for f in range(2):
            a(f"ds_read_b128 {vr(fW[s][f],4)}, v{vH[k][j]} offset:{boff + f*4096}")
    def mf_f(s):
        for f in range(2):
            a(f"v_mfma_f32_32x32x16_bf16 {vr(acc[f][0],16)}, {vr(fX[s][0],4)}, {vr(fW[s][f],4)}, {vr(acc[f][0],16)}")
    consume(reads_f, 3, mf_f)
    a(f"s_cmp_eq_u32 s{sSign}, 0")
    a(f"s_mov_b32 s{sT3}, {WS_B}")
    a(f"s_cselect_b32 s{sT0}, {WS_A}, s{sT3}")
    a(f"s_cselect_b32 s{sT2}, {A_KSTEPS}, 64")
    a(f"s_lshl_b32 s{sT1}, s{sNb}, 2")
    a(f"s_lshl_b32 s{sT3}, s{sWm}, 1")
    a(f"s_add_u32 s{sT1}, s{sT1}, s{sT3}")
    a(f"s_mul_i32 s{sT1}, s{sT1}, s{sT2}")
    a(f"s_lshr_b32 s{sT3}, s{sTok0}, 4")
    a(f"s_add_u32 s{sT1}, s{sT1}, s{sT3}")
    a(f"s_lshl_b32 s{sT3}, s{sWn}, 1")
    a(f"s_add_u32 s{sT1}, s{sT1}, s{sT3}")
    a(f"s_lshl_b32 s{sT1}, s{sT1}, 10")
    a(f"s_add_u32 s{sT0}, s{sT0}, s{sT1}")
    a(f"s_lshl_b32 s{sT2}, s{sT2}, 10")
    a("s_nop 7")
    for f in range(2):
        A = acc[f][0]
        P = fX[f][0]
        for i in range(8):
            a(f"v_cvt_pk_bf16_f32 v{P+i}, v{A+2*i}, v{A+2*i+1}")
        a("s_nop 1")
        for g in range(2):
            a(f"v_permlane32_swap_b32 v{P+4*g}, v{P+4*g+2}")
            a(f"v_permlane32_swap_b32 v{P+4*g+1}, v{P+4*g+3}")
        if f == 1:
            a(f"s_add_u32 s{sT0}, s{sT0}, s{sT2}")
        for g in range(2):
            a(f"s_add_u32 s{sT1}, s{sT0}, {g*1024}")
            a(f"buffer_store_dwordx4 {vr(P+4*g,4)}, v{vL16}, s[{srdWS}:{srdWS+3}], s{sT1} offen{SC}")
    finish_A()

    from gen_fused_b import gen_attn_part, gen_f_part
    gen_attn_part(a, name, base, nvmax, dict(vLane=vLane, vL16=vL16, vT0=vT0, vT1=vT1, vT2=vT2, vT3=vT3))
    gen_f_part(a, name, base, nvmax, dict(vLane=vLane, vL16=vL16, vT0=vT0, vT1=vT1, vT2=vT2, vT3=vT3))
    a.label(f"{name}_end")
    a("s_endpgm")
    return nvmax[0]
```

```python
from asmlib import *
from common import *
from gen_fused import *

PRIO_MODE = 1
PRIO_SW = (5, 7)
EXP = {}
PAR = {}
sHead, sQb = 52, 53

def decode_hq(a):
    a(f"s_and_b32 s{sT0}, s2, 7")
    a(f"s_lshr_b32 s{sT1}, s2, 3")
    a(f"s_lshl_b32 s{sHead}, s{sT0}, 2")
    a(f"s_and_b32 s{sT0}, s{sT1}, 3")
    a(f"s_add_u32 s{sHead}, s{sHead}, s{sT0}")
    a(f"s_lshr_b32 s{sQb}, s{sT1}, 2")


def edge_regs(r0):
    return dict(vG=r0, vA=r0+4, vB=r0+8, vR=r0+12, vX1=r0+16, vRe=r0+20, vD=r0+24)

def emit_edge_loads(a, name, V, r0, sF, sS):
    vL16 = V["vL16"]
    E = edge_regs(r0); vG, vA, vB, vR, vX1, vRe, vD = [E[k] for k in ("vG","vA","vB","vR","vX1","vRe","vD")]
    a(f"s_lshl_b32 s{sS}, s2, 2")
    a(f"s_add_u32 s{sS}, s{sS}, s{sF}")
    a(f"global_load_dwordx4 {vr(vG,4)}, v{vL16}, s[{sGate}:{sGate+1}]")
    a(f"s_lshl_b32 s{sT0}, s{sS}, 10")
    a(f"buffer_load_dwordx4 {vr(vA,4)}, v{vL16}, s[{srdA}:{srdA+3}], s{sT0} offen")
    a(f"s_sub_u32 s{sT1}, 2048, s{sS}")
    a(f"s_lshl_b32 s{sT1}, s{sT1}, 10")
    a(f"buffer_load_dwordx4 {vr(vB,4)}, v{vL16}, s[{srdA}:{srdA+3}], s{sT1} offen")
    a(f"s_mov_b32 s{sT1}, {1024*1024}")
    a(f"buffer_load_dwordx4 {vr(vX1,4)}, v{vL16}, s[{srdA}:{srdA+3}], s{sT1} offen")
    a(f"s_lshl_b32 s{sT1}, s2, 10")
    a(f"v_add_u32 v{vD}, s{sT1}, v{vL16}")
    a(f"global_load_dwordx4 {vr(vRe,4)}, v{vD}, s[{sHre}:{sHre+1}]")

def emit_edge_compute(a, name, V, r0, sF, sS, sfx):
    vLane, vL16, vT0, vT1, vT2, vT3 = V["vLane"], V["vL16"], V["vT0"], V["vT1"], V["vT2"], V["vT3"]
    E = edge_regs(r0); vG, vA, vB, vR, vX1, vRe, vD = [E[k] for k in ("vG","vA","vB","vR","vX1","vRe","vD")]
    srd(a, srdWS, sWS, WS_SIZE_USED)
    a("s_waitcnt vmcnt(0)")
    a(f"s_mov_b32 s31, 0xbf803f80")
    a(f"v_dot2_f32_bf16 v{vD}, v{vA}, v{vG}, 0")
    a(f"v_dot2_f32_bf16 v{vD+1}, v{vB}, v{vG}, 0")
    a(f"v_dot2_f32_bf16 v{vD+2}, v{vA}, s31, 0")
    a(f"v_dot2_f32_bf16 v{vD+3}, v{vRe}, v{vX1}, 0")
    a(f"v_dot2_f32_bf16 v{vD+4}, v{vX1}, v{vG}, 0")
    a(f"v_dot2_f32_bf16 v{vD+5}, v{vX1}, s31, 0")
    a("s_nop 2")
    for q in range(4):
        if q > 0:
            a(f"v_dot2c_f32_bf16 v{vD}, v{vA+q}, v{vG+q}")
            a(f"v_dot2c_f32_bf16 v{vD+1}, v{vB+q}, v{vG+q}")
            a(f"v_dot2c_f32_bf16 v{vD+2}, s31, v{vA+q}")
            a(f"v_dot2c_f32_bf16 v{vD+3}, v{vRe+q}, v{vX1+q}")
            a(f"v_dot2c_f32_bf16 v{vD+4}, v{vX1+q}, v{vG+q}")
            a(f"v_dot2c_f32_bf16 v{vD+5}, s31, v{vX1+q}")
        a(f"v_dot2c_f32_bf16 v{vD+2}, s31, v{vB+q}")
    a("s_nop 3")
    for ctrl in ["row_shr:1", "row_shr:2", "row_shr:4", "row_shr:8"]:
        for r in range(6):
            a(f"v_add_f32_dpp v{vD+r}, v{vD+r}, v{vD+r} {ctrl} row_mask:0xf bank_mask:0xf bound_ctrl:0")
    for r in range(6):
        a(f"v_add_f32_dpp v{vD+r}, v{vD+r}, v{vD+r} row_bcast:15 row_mask:0xa bank_mask:0xf")
    for r in range(6):
        a(f"v_add_f32_dpp v{vD+r}, v{vD+r}, v{vD+r} row_bcast:31 row_mask:0xc bank_mask:0xf")
    for r in (0, 1, 4):
        a(f"v_mul_f32 v{vD+r}, {f2u(-1.4426950408889634)}, v{vD+r}")
    for r in (0, 1, 4):
        a(f"v_exp_f32 v{vD+r}, v{vD+r}")
    a("s_nop 0")
    for r in (0, 1, 4):
        a(f"v_add_f32 v{vD+r}, 1.0, v{vD+r}")
    for r in (0, 1, 4):
        a(f"v_rcp_f32 v{vD+r}, v{vD+r}")
    a(f"v_cvt_pk_bf16_f32 v{vD+2}, v{vD+2}, 0")
    a(f"v_cvt_pk_bf16_f32 v{vR}, v{vD+3}, 0")
    a(f"v_cvt_pk_bf16_f32 v{vD+5}, v{vD+5}, 0")
    for i in range(1, 4): a(f"v_mov_b32 v{vR+i}, 0")
    for i in range(4): a(f"v_mov_b32 v{vA+i}, 0")
    a(f"v_mov_b32 v{vT1}, 0")
    a("s_mov_b32 exec_lo, 0")
    a("s_mov_b32 exec_hi, 0x80000000")
    a(f"s_lshl_b32 s{sT0}, s{sS}, 2")
    a(f"s_add_u32 s{sT0}, s{sT0}, {WS_G}")
    a(f"buffer_store_dword v{vD}, v{vT1}, s[{srdWS}:{srdWS+3}], s{sT0} offen{SC}")
    a(f"s_cmp_eq_u32 s{sS}, 0")
    a(f"s_cbranch_scc1 {name}_e1{sfx}")
    a(f"s_sub_u32 s{sT0}, 2048, s{sS}")
    a(f"s_lshl_b32 s{sT0}, s{sT0}, 2")
    a(f"s_add_u32 s{sT0}, s{sT0}, {WS_G}")
    a(f"buffer_store_dword v{vD+1}, v{vT1}, s[{srdWS}:{srdWS+3}], s{sT0} offen{SC}")
    a.label(f"{name}_e1{sfx}")
    a(f"s_lshr_b32 s{sT0}, s{sS}, 4")
    a(f"s_add_u32 s{sT0}, s{sT0}, {8*A_KSTEPS}")
    a(f"s_lshl_b32 s{sT0}, s{sT0}, 10")
    a(f"s_bfe_u32 s{sT1}, s{sS}, 0x10003")
    a(f"s_lshl_b32 s{sT1}, s{sT1}, 9")
    a(f"s_add_u32 s{sT0}, s{sT0}, s{sT1}")
    a(f"s_and_b32 s{sT1}, s{sS}, 7")
    a(f"s_lshl_b32 s{sT1}, s{sT1}, 1")
    a(f"s_add_u32 s{sT0}, s{sT0}, s{sT1}")
    a(f"s_add_u32 s{sT0}, s{sT0}, {WS_A}")
    a(f"buffer_store_short v{vD+2}, v{vT1}, s[{srdWS}:{srdWS+3}], s{sT0} offen{SC}")
    a(f"s_cmp_lg_u32 s{sF}, 0")
    a(f"s_cbranch_scc1 {name}_e2{sfx}")
    a(f"s_lshr_b32 s{sT0}, s2, 5")
    a(f"s_mul_i32 s{sT0}, s{sT0}, {A_KSTEPS}")
    a(f"s_add_u32 s{sT0}, s{sT0}, 64")
    a(f"s_lshl_b32 s{sT0}, s{sT0}, 10")
    a(f"s_and_b32 s{sT1}, s2, 31")
    a(f"s_lshl_b32 s{sT1}, s{sT1}, 4")
    a(f"s_add_u32 s{sT0}, s{sT0}, s{sT1}")
    a(f"s_add_u32 s{sT0}, s{sT0}, {WS_A}")
    a(f"buffer_store_dwordx4 {vr(vR,4)}, v{vT1}, s[{srdWS}:{srdWS+3}], s{sT0} offen{SC}")
    a(f"buffer_store_dwordx4 {vr(vA,4)}, v{vT1}, s[{srdWS}:{srdWS+3}], s{sT0} offen offset:512{SC}")
    a.label(f"{name}_e2{sfx}")
    a(f"s_cmp_lg_u32 s{sS}, 1")
    a(f"s_cbranch_scc1 {name}_e3{sfx}")
    a(f"s_mov_b32 s{sT0}, {WS_G + 4096}")
    a(f"buffer_store_dword v{vD+4}, v{vT1}, s[{srdWS}:{srdWS+3}], s{sT0} offen{SC}")
    a(f"v_mov_b32 v{vR}, v{vD+5}")
    a(f"s_mov_b32 s{sT0}, {WS_A + (8*A_KSTEPS + 64)*1024}")
    a(f"buffer_store_dwordx4 {vr(vR,4)}, v{vT1}, s[{srdWS}:{srdWS+3}], s{sT0} offen{SC}")
    a(f"buffer_store_dwordx4 {vr(vA,4)}, v{vT1}, s[{srdWS}:{srdWS+3}], s{sT0} offen offset:512{SC}")
    a.label(f"{name}_e3{sfx}")
    a("s_mov_b64 exec, -1")

def gen_attn_part(a, name, base, nvmax, V):
    vLane, vL16, vT0, vT1 = V["vLane"], V["vL16"], V["vT0"], V["vT1"]
    Ra = RegAlloc(base, 168)
    vAK = Ra.alloc("addrK"); vAV = Ra.alloc("addrV"); vM = Ra.alloc("m")
    vRd = Ra.alloc("rdaddr"); vRv = Ra.alloc("rdval")
    vQ = [Ra.alloc("Q0", 4), Ra.alloc("Q1", 4)]
    vK = Ra.alloc("K", 4); vV0 = Ra.alloc("V0", 4); vV1 = Ra.alloc("V1", 4)
    vP = Ra.alloc("P", 8)
    vS = [Ra.alloc("S0", 16), Ra.alloc("S1", 16)]
    vT = Ra.alloc("T", 16)
    vO = [Ra.alloc("O0", 16), Ra.alloc("O1", 16)]
    vC = [Ra.alloc("C0", 16), Ra.alloc("C1", 16)]
    nvmax[0] = max(nvmax[0], Ra.next)
    sKh, sQp, sIt, sMask, sRetry = 54, 55, 56, 58, 57
    a.label(f"{name}_attn")
    decode_hq(a)
    a(f"s_and_b32 s{sQp}, s{sW}, 3")
    a(f"s_lshr_b32 s{sKh}, s{sW}, 2")
    srd(a, srdWS, sWS, WS_SIZE_USED)
    a(f"s_mov_b32 s{sRetry}, 0")
    a(f"s_lshl_b32 s60, s{sKh}, 15")
    a(f"s_mul_i32 s59, s{sKh}, {VHALF}")
    a(f"v_lshrrev_b32 v{vT0}, 5, v{vLane}")
    a(f"v_lshlrev_b32 v{vT0}, 8, v{vT0}")
    a(f"v_and_b32 v{vAK}, 31, v{vLane}")
    a(f"v_lshlrev_b32 v{vAV}, 4, v{vAK}")
    a(f"v_add_u32 v{vAV}, v{vAV}, v{vT0}")
    a(f"v_cmp_eq_u32 vcc, 16, v{vAK}")
    a(f"v_cmp_eq_u32 s[62:63], 20, v{vAK}")
    a(f"v_mov_b32 v{vM}, 528")
    a(f"v_mov_b32 v{vT0}, 512")
    a("s_or_b64 vcc, vcc, s[62:63]")
    a("s_nop 1")
    a(f"v_cndmask_b32 v{vM}, v{vM}, v{vT0}, vcc")
    a(f"v_cmp_gt_u32 vcc, 16, v{vAK}")
    a("s_nop 1")
    a(f"v_cndmask_b32 v{vAV}, v{vM}, v{vAV}, vcc")
    a(f"v_add_u32 v{vAV}, 65536, v{vAV}")
    a(f"v_add_u32 v{vAV}, s59, v{vAV}")
    for i in range(4):
        a(f"v_mov_b32 v{vV1+i}, 0")
    for q in range(2):
        for i in range(16):
            a(f"v_mov_b32 v{vO[q]+i}, 0")
    for i in range(4, 8):
        a(f"v_mov_b32 v{vP+i}, 0")
    a(f"v_add_u32 v{vAK}, s60, v{vL16}")
    a(f"s_lshl_b32 s{sT0}, s{sHead}, 6")
    a(f"s_lshl_b32 s{sT1}, s{sQb}, 3")
    a(f"s_add_u32 s{sT0}, s{sT0}, s{sT1}")
    a(f"s_lshl_b32 s{sT1}, s{sQp}, 1")
    a(f"s_add_u32 s{sT0}, s{sT0}, s{sT1}")
    a(f"s_lshl_b32 s61, s{sT0}, 10")
    read_nonce(a, vT0, vT1)
    tl_stamp(a, 3)
    lwait(a, vT0, vT1, sT0, C_GO, 1, f"{name}_wgo", sleep=2)
    if PAR.get("QDIRECT", 0):
        a(f"s_mov_b32 s59, 8192")
        a.label(f"{name}_qload")
    a(f"buffer_load_dwordx4 {vr(vQ[0],4)}, v{vL16}, s[{srdWS}:{srdWS+3}], s61 offen{SC}")
    a(f"buffer_load_dwordx4 {vr(vQ[1],4)}, v{vL16}, s[{srdWS}:{srdWS+3}], s61 offen offset:1024{SC}")
    if PAR.get("QDIRECT", 0):
        a("s_waitcnt vmcnt(0)")
        a(f"v_max3_u32 v{vM}, v{vQ[0]}, v{vQ[0]+1}, v{vQ[0]+2}")
        a(f"v_max3_u32 v{vM}, v{vM}, v{vQ[0]+3}, v{vQ[1]}")
        a(f"v_max3_u32 v{vM}, v{vM}, v{vQ[1]+1}, v{vQ[1]+2}")
        a(f"v_max_u32 v{vM}, v{vM}, v{vQ[1]+3}")
        a(f"v_cmp_eq_u32 vcc, -1, v{vM}")
        a("s_nop 4")
        a(f"s_cbranch_vccz {name}_qok")
        a("s_sub_u32 s59, s59, 1")
        a(f"s_cbranch_scc1 {name}_qok")
        a("s_sleep 2")
        a(f"s_branch {name}_qload")
        a.label(f"{name}_qok")
    tl_stamp(a, 4)
    lwait(a, vT0, vT1, sT0, C_RDY, 1, f"{name}_wr0", sleep=1)
    a(f"s_lshl_b32 s60, s{sKh}, 2")
    a(f"s_add_u32 s60, s60, {C_RDY}")
    lwait(a, vT0, vT1, sT0, "s60", 1, f"{name}_wr1", sleep=1)
    a(f"v_add_u32 v{vRd}, 8, v{vT0}")
    a("s_waitcnt vmcnt(0)")
    tl_stamp(a, 5)

    def rowmax(S):
        a(f"v_max3_f32 v{vM}, v{S}, v{S+1}, v{S+2}")
        for i in range(3, 15, 2):
            a(f"v_max3_f32 v{vM}, v{vM}, v{S+i}, v{S+i+1}")
        a(f"v_max_f32 v{vM}, v{vM}, v{S+15}")
    def bcast_negmax(C):
        a(f"v_mov_b32 v{vT0}, v{vM}")
        a("s_nop 1")
        a(f"v_permlane32_swap_b32 v{vT0}, v{vM}")
        a("s_nop 1")
        a(f"v_max_f32 v{vM}, v{vM}, v{vT0}")
        a(f"v_sub_f32 v{C}, 0, v{vM}")
        for i in range(1, 16):
            a(f"v_mov_b32 v{C+i}, v{C}")
    a(f"ds_read_b128 {vr(vT,4)}, v{vL16}")
    a(f"ds_read_b128 {vr(vK,4)}, v{vAK}")
    a("s_waitcnt lgkmcnt(1)")
    a(f"v_mfma_f32_32x32x16_bf16 {vr(vS[0],16)}, {vr(vT,4)}, {vr(vQ[0],4)}, 0")
    a(f"v_mfma_f32_32x32x16_bf16 {vr(vS[1],16)}, {vr(vT,4)}, {vr(vQ[1],4)}, 0")
    a(f"ds_read_b128 {vr(vV0,4)}, v{vAV}")
    a("s_nop 8")
    rowmax(vS[0]); bcast_negmax(vC[0])
    a("s_waitcnt lgkmcnt(0)")
    a(f"v_mfma_f32_32x32x16_bf16 {vr(vS[0],16)}, {vr(vK,4)}, {vr(vQ[0],4)}, {vr(vC[0],16)}")
    rowmax(vS[1]); bcast_negmax(vC[1])
    a("s_nop 1")
    a(f"v_mfma_f32_32x32x16_bf16 {vr(vS[1],16)}, {vr(vK,4)}, {vr(vQ[1],4)}, {vr(vC[1],16)}")
    a(f"ds_read_b128 {vr(vK,4)}, v{vAK} offset:1024")
    tl_stamp(a, 6)

    def step(u, q):
        S = vS[q]
        e = lambda i: a(f"v_exp_f32 v{vT+i}, v{S+i}")
        c = lambda i: a(f"v_cvt_pk_bf16_f32 v{vP+i}, v{vT+2*i}, v{vT+2*i+1}")
        e(0); e(1); e(2); c(0); e(3); e(4)
        if q == 1:
            a("s_waitcnt lgkmcnt(0)")
        a(f"v_mfma_f32_32x32x16_bf16 {vr(vO[q^1],16)}, {vr(vV1,4)}, {vr(vP+4,4)}, {vr(vO[q^1],16)}")
        if q == 0:
            a(f"ds_read_b128 {vr(vV1,4)}, v{vAV} offset:{(2*u+1)*VG}")
        c(1); e(5); e(6); c(2); e(7); e(8); c(3); e(9); e(10)
        if q == 0:
            a("s_waitcnt lgkmcnt(2)")
        a(f"v_mfma_f32_32x32x16_bf16 {vr(vO[q],16)}, {vr(vV0,4)}, {vr(vP,4)}, {vr(vO[q],16)}")
        if q == 1:
            a(f"ds_read_b128 {vr(vV0,4)}, v{vAV} offset:{(2*u+2)*VG}")
        e(11); c(4); e(12); c(5); e(13); e(14); c(6); e(15)
        if q == 0:
            a("s_waitcnt lgkmcnt(1)")
        a(f"v_mfma_f32_32x32x16_bf16 {vr(S,16)}, {vr(vK,4)}, {vr(vQ[q],4)}, {vr(vC[q],16)}")
        if q == 1:
            a(f"ds_read_b128 {vr(vK,4)}, v{vAK} offset:{(u+2)*1024}")
        c(7)

    a(f"s_mov_b32 s{sIt}, 0")
    a("s_setprio 2")
    lbl = f"{name}_loop"
    if EXP.get("al64"): a.raw(".p2align 6")
    if EXP.get("al64s4"):
        a.raw(".p2align 6"); a("s_nop 0")
    a.label(lbl)
    for u in range(4):
        step(u, 0)
        if u == 0:
            a(f"ds_read_b32 v{vRv}, v{vRd}")
        step(u, 1)
        if u == 1:
            a(f"v_readfirstlane_b32 s{sT0}, v{vRv}")
            a(f"v_add_u32 v{vRd}, 8, v{vRd}")
            a("s_nop 2")
            a(f"s_cmp_lg_u32 s{sT0}, 0")
            a(f"s_cbranch_scc1 {name}_nosync")
            a(f"v_subrev_u32 v{vT0}, 8, v{vRd}")
            a(f"s_mov_b32 s{sT3}, {SPIN_MAX*16}")
            a.label(f"{name}_wrs")
            a(f"ds_read_b32 v{vT1}, v{vT0}")
            a("s_waitcnt lgkmcnt(0)")
            a(f"v_readfirstlane_b32 s{sT0}, v{vT1}")
            a(f"s_sub_u32 s{sT3}, s{sT3}, 1")
            a(f"s_cbranch_scc1 {name}_nosync")
            a("s_nop 1")
            a(f"s_cmp_lg_u32 s{sT0}, 0")
            a(f"s_cbranch_scc1 {name}_nosync")
            a("s_sleep 1")
            a(f"s_branch {name}_wrs")
            a.label(f"{name}_nosync")
    a(f"v_add_u32 v{vAK}, 4096, v{vAK}")
    a(f"v_add_u32 v{vAV}, {8*VG}, v{vAV}")
    a(f"s_add_u32 s{sIt}, s{sIt}, 1")
    a(f"s_cmp_eq_u32 s{sIt}, {PRIO_SW[0]}")
    a(f"s_cbranch_scc0 {name}_p1")
    a("s_setprio 1")
    a.label(f"{name}_p1")
    a(f"s_cmp_eq_u32 s{sIt}, {PRIO_SW[1]}")
    a(f"s_cbranch_scc0 {name}_p2")
    a("s_setprio 0")
    a.label(f"{name}_p2")
    a(f"s_cmp_lg_u32 s{sIt}, 8")
    a(f"s_cbranch_scc1 {lbl}")
    a("s_nop 1")
    a(f"v_mfma_f32_32x32x16_bf16 {vr(vO[1],16)}, {vr(vV1,4)}, {vr(vP+4,4)}, {vr(vO[1],16)}")
    tl_stamp(a, 7)
    lwait(a, vT0, vT1, sT0, C_R1, 1, f"{name}_wf")
    a("s_nop 8")
    a(f"s_mul_i32 s{sT0}, s{sW}, 2304")
    a(f"s_add_u32 s{sT0}, s{sT0}, {LDS_RED}")
    a(f"v_add_u32 v{vT0}, s{sT0}, v{vL16}")
    a(f"v_lshrrev_b32 v{vT1}, 2, v{vL16}")
    a(f"v_add_u32 v{vT1}, s{sT0}, v{vT1}")
    a(f"s_cmp_eq_u32 s{sKh}, 0")
    a(f"s_cbranch_scc0 {name}_x1")
    a(f"ds_write_b128 v{vT0}, {vr(vO[1],4)}")
    a(f"ds_write_b128 v{vT0}, {vr(vO[1]+4,4)} offset:1024")
    a(f"ds_write_b32 v{vT1}, v{vO[1]+8} offset:2048")
    a(f"s_branch {name}_x2")
    a.label(f"{name}_x1")
    a(f"ds_write_b128 v{vT0}, {vr(vO[0],4)}")
    a(f"ds_write_b128 v{vT0}, {vr(vO[0]+4,4)} offset:1024")
    a(f"ds_write_b32 v{vT1}, v{vO[0]+8} offset:2048")
    for i in range(9):
        a(f"v_mov_b32 v{vO[0]+i}, v{vO[1]+i}")
    for i in range(4):
        a(f"v_mov_b32 v{vQ[0]+i}, v{vQ[1]+i}")
    a.label(f"{name}_x2")
    a("s_waitcnt lgkmcnt(0)")
    a(f"s_lshl_b32 s{sT0}, s{sQp}, 2")
    a(f"s_add_u32 s61, s{sT0}, {C_X}")
    lsig(a, vAK, vM, "s61")
    lwait(a, vAK, vM, sT0, "s61", 2, f"{name}_wx")
    a(f"s_xor_b32 s{sT0}, s{sW}, 4")
    a(f"s_mul_i32 s{sT0}, s{sT0}, 2304")
    a(f"s_add_u32 s{sT0}, s{sT0}, {LDS_RED}")
    a(f"v_add_u32 v{vT0}, s{sT0}, v{vL16}")
    a(f"v_lshrrev_b32 v{vT1}, 2, v{vL16}")
    a(f"v_add_u32 v{vT1}, s{sT0}, v{vT1}")
    a(f"ds_read_b128 {vr(vT,4)}, v{vT0}")
    a(f"ds_read_b128 {vr(vT+4,4)}, v{vT0} offset:1024")
    a(f"ds_read_b32 v{vT+8}, v{vT1} offset:2048")
    a("s_waitcnt lgkmcnt(0)")
    O = vO[0]
    for i in range(9):
        a(f"v_add_f32 v{O+i}, v{O+i}, v{vT+i}")
    a.label(f"{name}_epi")
    a(f"s_cmp_lg_u32 s{sRetry}, 0")
    a(f"s_cbranch_scc1 {name}_fin")
    a(f"v_mov_b32 v{vT0}, 0x5d800000")
    a(f"v_cmp_nle_f32 vcc, v{O+8}, v{vT0}")
    a("s_nop 4")
    a(f"s_cbranch_vccnz {name}_fallback")
    a.label(f"{name}_fin")
    a(f"v_rcp_f32 v{vT0}, v{O+8}")
    a("s_nop 0")
    for i in range(8):
        a(f"v_mul_f32 v{O+i}, v{O+i}, v{vT0}")
    for i in range(4):
        a(f"v_cvt_pk_bf16_f32 v{vP+i}, v{O+2*i}, v{O+2*i+1}")
    a(f"s_lshl_b32 s{sT0}, s{sQb}, 3")
    a(f"s_lshl_b32 s{sT1}, s{sQp}, 1")
    a(f"s_add_u32 s{sT0}, s{sT0}, s{sT1}")
    a(f"s_add_u32 s{sT0}, s{sT0}, s{sKh}")
    a(f"s_lshl_b32 s{sT0}, s{sT0}, 5")
    a(f"s_add_u32 s{sT0}, s{sT0}, s{sHead}")
    a(f"s_lshl_b32 s{sT0}, s{sT0}, 10")
    a(f"s_add_u32 s{sT0}, s{sT0}, {WS_O}")
    a(f"buffer_store_dwordx4 {vr(vP,4)}, v{vL16}, s[{srdWS}:{srdWS+3}], s{sT0} offen{SC}")
    a(f"v_mov_b32 v{vT0}, {C_ADONE}")
    a(f"v_mov_b32 v{vT1}, 1")
    a("s_mov_b64 exec, 1")
    if PAR.get("ODIRECT", 0):
        a(f"ds_add_u32 v{vT0}, v{vT1}")
        a("s_mov_b64 exec, -1")
    else:
        a(f"ds_add_rtn_u32 v{vM}, v{vT0}, v{vT1}")
        a("s_waitcnt lgkmcnt(0)")
        a("s_mov_b64 exec, -1")
        a(f"v_readfirstlane_b32 s{sT0}, v{vM}")
        a("s_nop 3")
        a(f"s_cmp_lg_u32 s{sT0}, 7")
        a(f"s_cbranch_scc1 {name}_adone")
        a(f"s_lshl_b32 s61, s{sQb}, 5")
        a(f"s_add_u32 s61, s61, s{sHead}")
        a(f"s_add_u32 s61, s61, {FL_O}")
        publish(a, vT0, vT1, 61)
    a.label(f"{name}_adone")
    tl_stamp(a, 8)
    dbg_exit(a, [1, 6, 7], [0, 5], 4, 1)
    if not TL.get("dbg"): tl_exit(a, 1, sWS)
    a("s_endpgm")
    a.label(f"{name}_fallback")
    a(f"s_mov_b32 s{sRetry}, 1")
    a(f"v_mov_b32 v{vAK}, v{vL16}")
    a(f"v_mov_b32 v{vM}, 0xff800000")
    a(f"s_mov_b32 s{sIt}, 64")
    a.label(f"{name}_maxloop")
    a(f"ds_read_b128 {vr(vK,4)}, v{vAK}")
    a("s_waitcnt lgkmcnt(0)")
    a(f"v_mfma_f32_32x32x16_bf16 {vr(vS[0],16)}, {vr(vK,4)}, {vr(vQ[0],4)}, 0")
    a(f"v_add_u32 v{vAK}, 1024, v{vAK}")
    a("s_nop 15")
    a("s_nop 3")
    for i in range(0, 16, 2):
        a(f"v_max3_f32 v{vM}, v{vM}, v{vS[0]+i}, v{vS[0]+i+1}")
    a(f"s_sub_u32 s{sIt}, s{sIt}, 1")
    a(f"s_cmp_lg_u32 s{sIt}, 0")
    a(f"s_cbranch_scc1 {name}_maxloop")
    bcast_negmax(vC[0])
    for i in range(16):
        a(f"v_mov_b32 v{O+i}, 0")
    a(f"v_mov_b32 v{vAK}, v{vL16}")
    a(f"s_mul_i32 s60, s{sKh}, {VHALF}")
    a(f"s_add_u32 s60, s60, {VHALF}")
    a(f"v_subrev_u32 v{vAV}, s60, v{vAV}")
    a(f"s_mov_b32 s{sIt}, 64")
    a.label(f"{name}_redo")
    a(f"ds_read_b128 {vr(vK,4)}, v{vAK}")
    a(f"ds_read_b128 {vr(vV0,4)}, v{vAV}")
    a(f"ds_read_b128 {vr(vV1,4)}, v{vAV} offset:{VG}")
    a("s_waitcnt lgkmcnt(0)")
    a(f"v_mfma_f32_32x32x16_bf16 {vr(vS[0],16)}, {vr(vK,4)}, {vr(vQ[0],4)}, {vr(vC[0],16)}")
    a(f"v_add_u32 v{vAK}, 1024, v{vAK}")
    a(f"v_add_u32 v{vAV}, {2*VG}, v{vAV}")
    a("s_nop 15")
    a("s_nop 3")
    for i in range(16):
        a(f"v_exp_f32 v{vT+i}, v{vS[0]+i}")
    a("s_nop 0")
    for i in range(8):
        a(f"v_cvt_pk_bf16_f32 v{vP+i}, v{vT+2*i}, v{vT+2*i+1}")
    a("s_nop 1")
    a(f"v_mfma_f32_32x32x16_bf16 {vr(O,16)}, {vr(vV0,4)}, {vr(vP,4)}, {vr(O,16)}")
    a(f"v_mfma_f32_32x32x16_bf16 {vr(O,16)}, {vr(vV1,4)}, {vr(vP+4,4)}, {vr(O,16)}")
    a(f"s_sub_u32 s{sIt}, s{sIt}, 1")
    a(f"s_cmp_lg_u32 s{sIt}, 0")
    a(f"s_cbranch_scc1 {name}_redo")
    a("s_nop 15")
    a("s_nop 3")
    a(f"s_branch {name}_epi")

def gen_f_part(a, name, base, nvmax, V):
    vLane, vL16, vT0, vT1, vT2, vT3 = V["vLane"], V["vL16"], V["vT0"], V["vT1"], V["vT2"], V["vT3"]
    sF = 54
    a.label(f"{name}_edge")
    sS = 55
    if PAR.get("QDIRECT", 0):
        a("s_cmp_eq_u32 s30, 0")
        a("s_cselect_b32 s58, 1, 0")
        a("s_cmp_lt_u32 s54, 4")
        a("s_cselect_b32 s59, 1, 0")
        a("s_and_b32 s58, s58, s59")
        a(f"s_sub_u32 s{sT0}, s{sW}, 8")
        a(f"s_lshr_b32 s{sT1}, s{sT0}, 1")
        a(f"s_lshl_b32 s{sT1}, s{sT1}, 2")
        a(f"s_and_b32 s{sT2}, s54, 3")
        a(f"s_lshl_b32 s{sT2}, s{sT2}, 3")
        a(f"s_add_u32 s{sT1}, s{sT1}, s{sT2}")
        a(f"s_lshl_b32 s{sT1}, s{sT1}, 16")
        a(f"s_and_b32 s{sT0}, s{sT0}, 1")
        a(f"s_lshl_b32 s{sT0}, s{sT0}, 1")
        a(f"s_lshr_b32 s{sT2}, s52, 5")
        a(f"s_add_u32 s{sT0}, s{sT0}, s{sT2}")
        a(f"s_lshl_b32 s{sT0}, s{sT0}, 10")
        a(f"s_add_u32 s59, s{sT0}, s{sT1}")
        a(f"s_add_u32 s59, s59, {WS_Q}")
        a(f"s_add_u32 s57, s62, {FL_O}")
    a(f"s_sub_u32 s{sF}, s{sW}, 8")
    a("s_setprio 3")
    a(f"v_lshlrev_b32 v{vT0}, 2, v{vLane}")
    a(f"v_add_u32 v{vT0}, {LDS_CNT}, v{vT0}")
    a(f"v_mov_b32 v{vT1}, 0")
    a(f"ds_write_b32 v{vT0}, v{vT1}")
    a("s_waitcnt lgkmcnt(0)")
    a(f"s_or_b32 s{sT0}, s2, s{sF}")
    a(f"s_cmp_lg_u32 s{sT0}, 0")
    a(f"s_cbranch_scc1 {name}_nn")
    a(f"s_memrealtime s[{sT0}:{sT0+1}]")
    a("s_waitcnt lgkmcnt(0)")
    a(f"s_or_b32 s{sT0}, s{sT0}, 1")
    a(f"v_mov_b32 v{vT0}, 0")
    a(f"v_mov_b32 v{vT1}, s{sT0}")
    a("s_mov_b64 exec, 1")
    a(f"global_store_dword v{vT0}, v{vT1}, s[{sDbg}:{sDbg+1}] sc1")
    a("s_mov_b64 exec, -1")
    a.label(f"{name}_nn")
    srd(a, srdWS, sWS, WS_SIZE_USED)
    decode_hq(a)
    vPz = (base + 3) // 4 * 4 - 1
    for i in range(4):
        a(f"v_mov_b32 v{vPz+1+i}, -1")
    a(f"s_lshl_b32 s{sT0}, s{sQb}, 3")
    a(f"s_lshl_b32 s{sT1}, s{sF}, 1")
    a(f"s_add_u32 s{sT0}, s{sT0}, s{sT1}")
    a(f"s_lshl_b32 s{sT0}, s{sT0}, 5")
    a(f"s_add_u32 s{sT0}, s{sT0}, s{sHead}")
    a(f"s_lshl_b32 s{sT0}, s{sT0}, 10")
    a(f"s_add_u32 s{sT0}, s{sT0}, {WS_O}")
    a(f"buffer_store_dwordx4 {vr(vPz+1,4)}, v{vL16}, s[{srdWS}:{srdWS+3}], s{sT0} offen{SC}")
    a(f"s_add_u32 s{sT0}, s{sT0}, 32768")
    a(f"buffer_store_dwordx4 {vr(vPz+1,4)}, v{vL16}, s[{srdWS}:{srdWS+3}], s{sT0} offen{SC}")
    if PAR.get("QDIRECT", 0):
        a("s_cmp_eq_u32 s58, 0")
        a(f"s_cbranch_scc1 {name}_noqp")
        for f_ in range(2):
            for hh in range(2):
                for t in range(2):
                    a(f"s_add_u32 s{sT0}, s59, {(f_*2+hh)*65536 + t*1024}")
                    a(f"buffer_store_dwordx4 {vr(vPz+1,4)}, v{vL16}, s[{srdWS}:{srdWS+3}], s{sT0} offen{SC}")
        a.label(f"{name}_noqp")
    ER = (base + 7) // 4 * 4 + 4
    EB0, EB1 = PAR.get("EB0", 1), PAR.get("EB1", 3)
    srd(a, srdA, sX, 2048*1024)
    nb = 0
    while nb < EB0:
        a("s_barrier"); nb += 1
    emit_edge_loads(a, name, V, ER, sF, 30)
    while nb < EB1:
        a("s_barrier"); nb += 1
    emit_edge_compute(a, name, V, ER, sF, 30, "p")
    while nb < 5:
        a("s_barrier"); nb += 1
    a(f"s_cmp_lg_u32 s{sF}, 0")
    a(f"s_cbranch_scc1 {name}_nn2")
    a(f"v_mov_b32 v{vT0}, 0")
    a(f"s_mov_b32 s{sT1}, {SPIN_MAX}")
    a.label(f"{name}_npoll")
    a(f"global_load_dword v{vT1}, v{vT0}, s[{sDbg}:{sDbg+1}] sc1")
    a("s_waitcnt vmcnt(0)")
    a(f"v_readfirstlane_b32 s{sN}, v{vT1}")
    a(f"s_sub_u32 s{sT1}, s{sT1}, 1")
    a(f"s_cbranch_scc1 {name}_npoll_ok")
    a("s_nop 1")
    a(f"s_cmp_lg_u32 s{sN}, 0")
    a(f"s_cbranch_scc1 {name}_npoll_ok")
    a("s_sleep 1")
    a(f"s_branch {name}_npoll")
    a.label(f"{name}_npoll_ok")
    a(f"v_mov_b32 v{vT0}, {C_NONCE}")
    a(f"v_mov_b32 v{vT1}, s{sN}")
    a(f"ds_write_b32 v{vT0}, v{vT1}")
    a.label(f"{name}_nn2")
    a("s_waitcnt vmcnt(0) lgkmcnt(0)")
    for i in range(5, 9):
        a("s_barrier")
        if i == 5 and PAR.get("QDIRECT", 0):
            a("s_cmp_eq_u32 s58, 0")
            a(f"s_cbranch_scc1 {name}_noqf")
            a(f"s_cmp_lg_u32 s{sF}, 0")
            a(f"s_cbranch_scc1 {name}_noqf")
            publish(a, vT0, vT1, 57)
            a.label(f"{name}_noqf")
    tl_stamp(a, 0)

    Rf = RegAlloc(base, 168)
    vB_ = Rf.alloc("boff"); vY = Rf.alloc("yaddr"); vFl = Rf.alloc("flag")
    accP = Rf.alloc("accP", 16); accQ = Rf.alloc("accQ", 16)
    buf = Rf.alloc("buf", 112)
    vCn = Rf.alloc("cn", 4)
    nvmax[0] = max(nvmax[0], Rf.next)
    sKoff, sVoff = 56, 57
    sTt, sEt, sHasQ, sA, sBq, sK, sJob, sCnt = 58, 59, 60, 61, 62, 63, 30, 31
    decode_hq(a)
    KB = accP
    sPend, sQd, sSlot = 60, 61, 62
    sEd = 30
    a(f"s_mov_b32 s{sEd}, 0")
    a(f"s_lshl_b32 s{sKoff}, s{sHead}, 16")
    a(f"s_add_u32 s{sKoff}, s{sKoff}, {WS_K}")
    a(f"s_cmp_lg_u32 s{sF}, 0")
    a(f"s_cbranch_scc1 {name}_kvld")
    a(f"s_add_u32 s{sT0}, s2, {FL_E}")
    publish(a, vT0, vT1, sT0)
    tl_stamp(a, 1)
    a(f"s_lshr_b32 s{sT0}, s{sHead}, 3")
    a(f"s_lshl_b32 s{sT0}, s{sT0}, 4")
    a(f"v_and_b32 v{vT0}, 15, v{vLane}")
    a(f"v_bfe_u32 v{vT1}, v{vLane}, 4, 1")
    a(f"v_lshlrev_b32 v{vT1}, 6, v{vT1}")
    a(f"v_add_u32 v{vT0}, v{vT0}, v{vT1}")
    a(f"v_add_u32 v{vT0}, 64, v{vT0}")
    a(f"v_and_b32 v{vT1}, 1, v{vLane}")
    a(f"s_lshl_b32 s{sT1}, s{sQb}, 1")
    if PAR.get("QDIRECT", 0): a(f"s_add_u32 s{sT1}, s{sT1}, {FL_O}")
    a(f"v_add_u32 v{vT1}, s{sT1}, v{vT1}")
    a(f"v_cmp_gt_u32 vcc, 32, v{vLane}")
    a("s_nop 1")
    a(f"v_cndmask_b32 v{vT0}, v{vT1}, v{vT0}, vcc")
    a(f"v_add_u32 v{vT0}, s{sT0}, v{vT0}")
    a(f"v_lshlrev_b32 v{vFl}, {FSH}, v{vT0}")
    a(f"v_add_u32 v{vFl}, {WS_FLAG}, v{vFl}")
    a(f"s_mov_b32 s{sPend}, 0xffff")
    a(f"s_mov_b32 s{sQd}, 0")
    a(f"s_mov_b32 s{sSlot}, 0")
    a(f"s_mov_b32 s{sCnt}, {SPIN_MAX}")
    a.label(f"{name}_dpoll")
    a(f"global_load_dword v{vT0}, v{vFl}, s[{sWS}:{sWS+1}] sc1")
    a("s_waitcnt vmcnt(0)")
    a(f"v_cmp_eq_u32 vcc, s{sN}, v{vT0}")
    a(f"s_sub_u32 s{sCnt}, s{sCnt}, 1")
    a(f"s_cbranch_scc0 {name}_dnt")
    a("s_mov_b64 vcc, -1")
    a.label(f"{name}_dnt")
    a("s_nop 2")
    a(f"s_mov_b32 s56, vcc_lo")
    a(f"s_mov_b32 s57, vcc_hi")
    a(f"s_cmp_lg_u32 s{sQd}, 0")
    a(f"s_cbranch_scc1 {name}_dq")
    a(f"s_cmp_lg_u32 s57, -1")
    a(f"s_cbranch_scc1 {name}_dq")
    a(f"s_mov_b32 s{sQd}, 1")
    tl_stamp(a, 2)
    if TL["on"]: a("s_waitcnt lgkmcnt(0)")
    lsig(a, vT0, vT1, C_GO)
    a.label(f"{name}_dq")
    a(f"s_lshr_b32 s{sT0}, s56, 16")
    a(f"s_and_b32 s{sT0}, s{sT0}, s56")
    a(f"s_and_b32 s{sT0}, s{sT0}, s{sPend}")
    a(f"s_cmp_eq_u32 s{sT0}, 0")
    a(f"s_cbranch_scc1 {name}_dnone")
    a(f"s_andn2_b32 s{sPend}, s{sPend}, s{sT0}")
    a.label(f"{name}_dq1")
    a(f"s_ff1_i32_b32 s{sT1}, s{sT0}")
    a(f"s_bitset0_b32 s{sT0}, s{sT1}")
    a(f"s_add_u32 s{sT1}, s{sT1}, 1")
    a(f"s_lshl_b32 s{sT2}, s{sSlot}, 2")
    a(f"s_add_u32 s{sT2}, s{sT2}, {C_QUE}")
    a(f"v_mov_b32 v{vT0}, s{sT2}")
    a(f"v_mov_b32 v{vT1}, s{sT1}")
    a(f"ds_write_b32 v{vT0}, v{vT1}")
    a(f"s_add_u32 s{sSlot}, s{sSlot}, 1")
    a(f"s_cmp_lg_u32 s{sT0}, 0")
    a(f"s_cbranch_scc1 {name}_dq1")
    a.label(f"{name}_dnone")
    a(f"s_cmp_eq_u32 s{sQd}, 0")
    a(f"s_cbranch_scc1 {name}_dagain")
    a(f"s_cmp_eq_u32 s{sPend}, 0")
    a(f"s_cbranch_scc1 {name}_kvdone")
    a.label(f"{name}_dagain")
    a(f"s_sleep {PAR.get('DSLEEP', 4)}")
    a(f"s_branch {name}_dpoll")
    a.label(f"{name}_kvld")
    read_nonce(a, vT0, vT1)
    vVw, vCa, vCa2, vCd = KB + 40, KB + 41, KB + 42, KB + 44
    a(f"v_lshrrev_b32 v{vT0}, 5, v{vLane}")
    a(f"v_mul_u32_u24 v{vT0}, {VG}, v{vT0}")
    a(f"v_and_b32 v{vT1}, 31, v{vLane}")
    a(f"v_lshlrev_b32 v{vT1}, 4, v{vT1}")
    a(f"v_add_u32 v{vVw}, v{vT0}, v{vT1}")
    a(f"v_lshrrev_b32 v{vT0}, 1, v{vLane}")
    a(f"v_mul_u32_u24 v{vT0}, {VG}, v{vT0}")
    a(f"v_and_b32 v{vT1}, 1, v{vLane}")
    a(f"v_lshlrev_b32 v{vT2}, 4, v{vT1}")
    a(f"v_add_u32 v{vT0}, v{vT0}, v{vT2}")
    a(f"v_add_u32 v{vCa}, 512, v{vT0}")
    a(f"v_cmp_eq_u32 vcc, 0, v{vT1}")
    a(f"v_mov_b32 v{vT0}, 0x3f803f80")
    a("s_nop 0")
    for i in range(4):
        a(f"v_cndmask_b32 v{vCd+i}, 0, v{vT0}, vcc")
    a(f"s_sub_u32 s{sSlot}, s{sF}, 1")
    a.label(f"{name}_kvnext")
    a(f"s_lshl_b32 s{sT2}, s{sSlot}, 2")
    a(f"s_add_u32 s63, s{sT2}, {C_QUE}")
    lwait(a, vT0, vT1, sT0, "s63", 1, f"{name}_kvwq", sleep=1)
    a(f"s_sub_u32 s{sT0}, s{sT0}, 1")
    a(f"s_and_b32 s{sT0}, s{sT0}, 15")
    a(f"s_lshl_b32 s{sT0}, s{sT0}, 12")
    a(f"s_add_u32 s{sT0}, s{sT0}, s{sKoff}")
    for t in range(4):
        a(f"s_add_u32 s{sT1}, s{sT0}, {t*1024}")
        a(f"buffer_load_dwordx4 {vr(KB+4*t,4)}, v{vL16}, s[{srdWS}:{srdWS+3}], s{sT1} offen{SC}")
        a(f"s_add_u32 s{sT1}, s{sT1}, {WS_V - WS_K}")
        a(f"buffer_load_dwordx4 {vr(KB+16+4*t,4)}, v{vL16}, s[{srdWS}:{srdWS+3}], s{sT1} offen{SC}")
    a(f"s_and_b32 s{sT1}, s{sSlot}, 1")
    a(f"s_lshr_b32 s{sT2}, s{sSlot}, 1")
    a(f"s_mul_i32 s58, s{sT1}, {VHALF}")
    a(f"s_mul_i32 s59, s{sT2}, {8*VG}")
    a(f"s_add_u32 s58, s58, s59")
    a(f"s_add_u32 s58, s58, 65536")
    a(f"s_lshl_b32 s{sT1}, s{sT1}, 15")
    a(f"s_lshl_b32 s{sT2}, s{sT2}, 12")
    a(f"s_add_u32 s{sT1}, s{sT1}, s{sT2}")
    a(f"v_add_u32 v{vT2}, s{sT1}, v{vL16}")
    a(f"v_add_u32 v{vT3}, s58, v{vVw}")
    a(f"v_add_u32 v{vCa2}, s58, v{vCa}")
    a(f"s_lshl_b32 s{sT0}, s{sSlot}, 2")
    a(f"s_add_u32 s{sT0}, s{sT0}, {C_RDY}")
    a(f"v_mov_b32 v{vT0}, s{sT0}")
    a(f"v_mov_b32 v{vT1}, 1")
    a("s_mov_b32 exec_lo, 0xffff")
    a("s_mov_b32 exec_hi, 0")
    a(f"ds_write_b128 v{vCa2}, {vr(vCd,4)}")
    a("s_mov_b64 exec, -1")
    a("s_waitcnt vmcnt(0)")
    for t in range(4):
        a(f"ds_write_b128 v{vT2}, {vr(KB+4*t,4)} offset:{t*1024}")
        a(f"ds_write_b128 v{vT3}, {vr(KB+16+4*t,4)} offset:{t*2*VG}")
    a("s_waitcnt lgkmcnt(0)")
    a(f"ds_write_b32 v{vT0}, v{vT1}")
    a(f"s_cmp_lg_u32 s{sEd}, 1")
    a(f"s_cbranch_scc1 {name}_kvne")
    a(f"s_cmp_ge_u32 s{sF}, 3")
    a(f"s_cbranch_scc1 {name}_kvne")
    a(f"v_and_b32 v{vT0}, 31, v{vLane}")
    a(f"s_lshl_b32 s{sT0}, s{sHead}, 5")
    a(f"v_add_u32 v{vT0}, s{sT0}, v{vT0}")
    a(f"v_lshlrev_b32 v{vT0}, 12, v{vT0}")
    a(f"v_lshrrev_b32 v{vT1}, 5, v{vLane}")
    a(f"s_lshl_b32 s{sT0}, s{sQb}, 1")
    a(f"v_add_u32 v{vT1}, s{sT0}, v{vT1}")
    a(f"v_lshlrev_b32 v{vT1}, 7, v{vT1}")
    a(f"v_add_u32 v{vT0}, v{vT0}, v{vT1}")
    a(f"s_cmp_eq_u32 s{sF}, 1")
    a(f"s_cselect_b32 s{sT0}, s{sSre}, s{sSim}")
    a(f"s_cselect_b32 s{sT1}, s{sSre+1}, s{sSim+1}")
    a(f"global_load_dword v{KB+96}, v{vT0}, s[{sT0}:{sT0+1}]")
    a.label(f"{name}_kvne")
    a(f"s_add_u32 s{sEd}, s{sEd}, 1")
    a(f"s_add_u32 s{sSlot}, s{sSlot}, 3")
    a(f"s_cmp_lt_u32 s{sSlot}, 16")
    a(f"s_cbranch_scc1 {name}_kvnext")
    a.label(f"{name}_kvdone")
    tl_stamp(a, 3)
    srd(a, srdA, sSre, 2048*4096)
    srd(a, srdB, sSim, 2048*4096)
    srd(a, srdC, sWo, 512*1024)
    a(f"s_lshl_b32 s{sT0}, s{sQb}, 7")
    a(f"s_lshl_b32 s{sT1}, s{sF}, 17")
    a(f"s_add_u32 s{sT0}, s{sT0}, s{sT1}")
    a(f"v_lshlrev_b32 v{vT0}, 10, v{vLane}")
    a(f"buffer_load_dword v{vT3}, v{vT0}, s[{srdC}:{srdC+3}], s{sT0} offen")
    a(f"s_add_u32 s{sT0}, s{sT0}, 65536")
    a(f"buffer_load_dword v{vT3}, v{vT0}, s[{srdC}:{srdC+3}], s{sT0} offen")
    a(f"s_cmp_lg_u32 s{sF}, 0")
    a(f"s_cbranch_scc1 {name}_fnz2")
    a(f"v_lshlrev_b32 v{vFl}, {FSH}, v{vLane}")
    a(f"v_add_u32 v{vFl}, {WS_FLAG + (FL_F1 << FSH)}, v{vFl}")
    a(f"s_mov_b32 s{sCnt}, {SPIN_MAX}")
    a.label(f"{name}_g1")
    a(f"global_load_dword v{buf}, v{vFl}, s[{sWS}:{sWS+1}] sc1")
    for i in range(4):
        a(f"v_add_u32 v{buf+8}, {((FL_E - FL_F1 + 64*i) << FSH)}, v{vFl}")
        a(f"global_load_dword v{buf+1+i}, v{buf+8}, s[{sWS}:{sWS+1}] sc1")
    a("s_waitcnt vmcnt(0)")
    a(f"v_cmp_ne_u32 vcc, s{sN}, v{buf}")
    for i in range(4):
        a(f"v_cmp_ne_u32 s[{sT0}:{sT0+1}], s{sN}, v{buf+1+i}")
        a("s_nop 1")
        a(f"s_or_b64 vcc, vcc, s[{sT0}:{sT0+1}]")
    a(f"s_sub_u32 s{sCnt}, s{sCnt}, 1")
    a(f"s_cbranch_scc1 {name}_g1_ok")
    a("s_nop 2")
    a(f"s_cbranch_vccz {name}_g1_ok")
    a("s_sleep 8")
    a(f"s_branch {name}_g1")
    a.label(f"{name}_g1_ok")
    lsig(a, vT0, vT1, C_GO2)
    a(f"s_branch {name}_fgo2")
    a.label(f"{name}_fnz2")
    lwait(a, vT0, vT1, sT0, C_GO2, 1, f"{name}_fwgo2", sleep=8)
    a.label(f"{name}_fgo2")
    tl_stamp(a, 4)

    accX = buf; accW = buf + 16; fb = buf + 32
    a(f"s_mov_b32 s{sTt}, s{sHead}")
    a(f"s_mov_b32 s{sEt}, s{sQb}")
    a(f"v_and_b32 v{vT0}, 31, v{vLane}")
    a(f"s_lshl_b32 s{sT0}, s{sTt}, 5")
    a(f"v_add_u32 v{vT0}, s{sT0}, v{vT0}")
    a(f"v_mul_u32_u24 v{vY}, {Y_STRIDE}, v{vT0}")
    a(f"v_lshlrev_b32 v{vT0}, 12, v{vT0}")
    a(f"v_lshrrev_b32 v{vT1}, 5, v{vLane}")
    a(f"v_lshlrev_b32 v{vT1}, 4, v{vT1}")
    a(f"v_add_u32 v{vB_}, v{vT0}, v{vT1}")
    a(f"v_add_u32 v{vY}, v{vY}, v{vT1}")
    for i in range(16):
        a(f"v_mov_b32 v{accP+i}, 0")
        a(f"v_mov_b32 v{accQ+i}, 0")
        a(f"v_mov_b32 v{accX+i}, 0")
        a(f"v_mov_b32 v{accW+i}, 0")
    for i in range(4):
        a(f"v_mov_b32 v{vCn+i}, 0xbf803f80")
    a(f"s_lshl_b32 s{sK}, s{sF}, 4")
    a(f"s_mul_i32 s{sA}, s{sEt}, {A_KSTEPS}")
    a(f"s_add_u32 s{sA}, s{sA}, s{sK}")
    a(f"s_lshl_b32 s{sA}, s{sA}, 10")
    a(f"s_add_u32 s{sA}, s{sA}, {WS_A}")
    a(f"s_add_u32 s{sHasQ}, s{sK}, {8*A_KSTEPS}")
    a(f"s_lshl_b32 s{sHasQ}, s{sHasQ}, 10")
    a(f"s_add_u32 s{sHasQ}, s{sHasQ}, {WS_A}")
    sA8 = sHasQ
    a(f"s_mul_i32 s{sBq}, s{sEt}, {B_KSTEPS}")
    a(f"s_add_u32 s{sBq}, s{sBq}, s{sK}")
    a(f"s_lshl_b32 s{sBq}, s{sBq}, 10")
    a(f"s_add_u32 s{sBq}, s{sBq}, {WS_B}")
    a(f"s_lshl_b32 s{sK}, s{sK}, 5")
    a(f"s_cmp_eq_u32 s{sEt}, 0")
    a(f"s_cselect_b32 s{sJob}, 1, 0")
    a(f"s_cmp_eq_u32 s{sTt}, 0")
    a(f"s_cselect_b32 s{sT0}, 2, 0")
    a(f"s_or_b32 s{sJob}, s{sJob}, s{sT0}")
    a(f"s_cmp_eq_u32 s2, 8")
    a(f"s_cselect_b32 s{sT0}, 4, 0")
    a(f"s_or_b32 s{sJob}, s{sJob}, s{sT0}")
    vm = Vm(a)
    NFL = 4
    def ld_k(k, slot, withq=True):
        r = fb + slot * 20
        a(f"s_add_u32 s{sT0}, s{sA}, {k*1024}")
        a(f"buffer_load_dwordx4 {vr(r,4)}, v{vL16}, s[{srdWS}:{srdWS+3}], s{sT0} offen{SC}")
        a(f"s_add_u32 s{sT0}, s{sK}, {k*32}")
        a(f"buffer_load_dwordx4 {vr(r+4,4)}, v{vB_}, s[{srdA}:{srdA+3}], s{sT0} offen")
        a(f"s_add_u32 s{sT0}, s{sA8}, {k*1024}")
        a(f"buffer_load_dwordx4 {vr(r+16,4)}, v{vL16}, s[{srdWS}:{srdWS+3}], s{sT0} offen{SC}")
        n = 3
        if withq:
            a(f"s_add_u32 s{sT0}, s{sBq}, {k*1024}")
            a(f"buffer_load_dwordx4 {vr(r+8,4)}, v{vL16}, s[{srdWS}:{srdWS+3}], s{sT0} offen{SC}")
            a(f"s_add_u32 s{sT0}, s{sK}, {k*32}")
            a(f"buffer_load_dwordx4 {vr(r+12,4)}, v{vB_}, s[{srdB}:{srdB+3}], s{sT0} offen")
            n = 5
        vm.issue(k, n)
    lab = [0]
    def mf_k(slot, withq=True):
        r = fb + slot * 20
        lab[0] += 1
        L = f"{name}_fm{lab[0]}"
        a(f"v_mfma_f32_32x32x16_bf16 {vr(accP,16)}, {vr(r,4)}, {vr(r+4,4)}, {vr(accP,16)}")
        if withq:
            a(f"v_mfma_f32_32x32x16_bf16 {vr(accQ,16)}, {vr(r+8,4)}, {vr(r+12,4)}, {vr(accQ,16)}")
        a(f"s_cmp_eq_u32 s{sJob}, 0")
        a(f"s_cbranch_scc1 {L}c")
        a(f"s_bitcmp1_b32 s{sJob}, 0")
        a(f"s_cbranch_scc0 {L}a")
        a(f"v_mfma_f32_32x32x16_bf16 {vr(accX,16)}, {vr(r+16,4)}, {vr(r+4,4)}, {vr(accX,16)}")
        a.label(f"{L}a")
        a(f"s_bitcmp1_b32 s{sJob}, 1")
        a(f"s_cbranch_scc0 {L}b")
        a(f"v_mfma_f32_32x32x16_bf16 {vr(accW,16)}, {vr(r,4)}, {vr(vCn,4)}, {vr(accW,16)}")
        a.label(f"{L}b")
        a(f"s_bitcmp1_b32 s{sJob}, 2")
        a(f"s_cbranch_scc0 {L}c")
        a(f"v_mfma_f32_32x32x16_bf16 {vr(accW,16)}, {vr(r+16,4)}, {vr(vCn,4)}, {vr(accW,16)}")
        a.label(f"{L}c")
    if EXP.get("nof2"): a(f"s_branch {name}_fnox")
    for k in range(NFL): ld_k(k, k)
    for k in range(16):
        vm.wait(k)
        mf_k(k % NFL)
        if k + NFL < 16:
            a("s_nop 4")
            ld_k(k + NFL, k % NFL)
    a(f"s_cmp_lg_u32 s{sF}, 0")
    a(f"s_cbranch_scc1 {name}_fnox")
    a("s_nop 4")
    vm = Vm(a)
    ld_k(64, 0, withq=False)
    a("s_waitcnt vmcnt(0)")
    mf_k(0, withq=False)
    a.label(f"{name}_fnox")
    a("s_nop 15")
    a("s_nop 3")
    for i in range(16):
        a(f"v_sub_f32 v{fb+i}, v{accP+i}, v{accQ+i}")
        a(f"v_add_f32 v{accQ+i}, v{accP+i}, v{accQ+i}")
    for i in range(16):
        a(f"v_mov_b32 v{accP+i}, v{fb+i}")
    WA = 8192 + 256 + 256
    a(f"s_cmp_eq_u32 s{sF}, 0")
    a(f"s_cbranch_scc1 {name}_fred0")
    a(f"s_sub_u32 s{sT0}, s{sF}, 1")
    a(f"s_mul_i32 s{sT0}, s{sT0}, {WA}")
    a(f"s_add_u32 s{sT0}, s{sT0}, {LDS_RED}")
    a(f"v_add_u32 v{vT0}, s{sT0}, v{vL16}")
    for q in range(8):
        a(f"ds_write_b128 v{vT0}, {vr(accP+4*q,4)} offset:{q*1024}")
    a(f"v_lshrrev_b32 v{vT1}, 2, v{vL16}")
    a(f"v_add_u32 v{vT1}, s{sT0}, v{vT1}")
    a(f"ds_write_b32 v{vT1}, v{accX} offset:8192")
    a(f"v_lshrrev_b32 v{vT1}, 5, v{vLane}")
    a(f"v_lshlrev_b32 v{vT1}, 6, v{vT1}")
    a(f"v_add_u32 v{vT1}, s{sT0}, v{vT1}")
    a("s_mov_b32 exec_lo, 1")
    a("s_mov_b32 exec_hi, 1")
    for q in range(4):
        a(f"ds_write_b128 v{vT1}, {vr(accW+4*q,4)} offset:{8192 + 256 + q*16}")
    a("s_mov_b64 exec, -1")
    a("s_waitcnt lgkmcnt(0)")
    lsig(a, vT0, vT1, C_R0)
    a(f"s_branch {name}_fsig")
    a.label(f"{name}_fred0")
    lwait(a, vT0, vT1, sT0, C_R0, 3, f"{name}_fw0", sleep=2)
    a(f"v_add_u32 v{vT0}, {LDS_RED}, v{vL16}")
    a(f"v_lshrrev_b32 v{vT2}, 2, v{vL16}")
    a(f"v_add_u32 v{vT2}, {LDS_RED}, v{vT2}")
    a(f"v_lshrrev_b32 v{vT1}, 5, v{vLane}")
    a(f"v_lshlrev_b32 v{vT1}, 6, v{vT1}")
    a(f"v_add_u32 v{vT1}, {LDS_RED}, v{vT1}")
    for src in range(3):
        for q in range(8):
            a(f"ds_read_b128 {vr(fb+4*q,4)}, v{vT0} offset:{src*WA + q*1024}")
        a(f"ds_read_b32 v{fb+32}, v{vT2} offset:{src*WA + 8192}")
        for q in range(4):
            a(f"ds_read_b128 {vr(fb+36+4*q,4)}, v{vT1} offset:{src*WA + 8192 + 256 + q*16}")
        a("s_waitcnt lgkmcnt(0)")
        for i in range(32):
            a(f"v_add_f32 v{accP+i}, v{accP+i}, v{fb+i}")
        a(f"v_add_f32 v{accX}, v{accX}, v{fb+32}")
        for i in range(16):
            a(f"v_add_f32 v{accW+i}, v{accW+i}, v{fb+36+i}")
    a(f"s_lshl_b32 s{sT0}, s{sEt}, 7")
    for g in range(4):
        a(f"s_add_u32 s{sT2}, s{sT0}, {WS_D + g*32}")
        a(f"buffer_store_dwordx4 {vr(accP+4*g,4)}, v{vY}, s[{srdWS}:{srdWS+3}], s{sT2} offen{SC}")
        a(f"s_add_u32 s{sT2}, s{sT0}, {WS_E + g*32}")
        a(f"buffer_store_dwordx4 {vr(accQ+4*g,4)}, v{vY}, s[{srdWS}:{srdWS+3}], s{sT2} offen{SC}")
    a(f"s_bitcmp1_b32 s{sJob}, 0")
    a(f"s_cbranch_scc0 {name}_fo1")
    a("s_mov_b32 exec_hi, 0")
    a(f"s_mov_b32 s{sT2}, {WS_D + 1024}")
    a(f"buffer_store_dword v{accX}, v{vY}, s[{srdWS}:{srdWS+3}], s{sT2} offen{SC}")
    a(f"s_mov_b32 s{sT2}, {WS_E + 1024}")
    a(f"buffer_store_dword v{accX}, v{vY}, s[{srdWS}:{srdWS+3}], s{sT2} offen{SC}")
    a("s_mov_b64 exec, -1")
    a.label(f"{name}_fo1")
    a(f"s_bitcmp1_b32 s{sJob}, 1")
    a(f"s_cbranch_scc0 {name}_fo2")
    a(f"v_lshrrev_b32 v{vT1}, 5, v{vLane}")
    a(f"v_lshlrev_b32 v{vT1}, 4, v{vT1}")
    a("s_mov_b32 exec_lo, 1")
    a("s_mov_b32 exec_hi, 1")
    for g in range(4):
        a(f"s_add_u32 s{sT2}, s{sT0}, {WS_D + 1024*Y_STRIDE + g*32}")
        a(f"buffer_store_dwordx4 {vr(accW+4*g,4)}, v{vT1}, s[{srdWS}:{srdWS+3}], s{sT2} offen{SC}")
        a(f"s_add_u32 s{sT2}, s{sT0}, {WS_E + 1024*Y_STRIDE + g*32}")
        a(f"buffer_store_dwordx4 {vr(accW+4*g,4)}, v{vT1}, s[{srdWS}:{srdWS+3}], s{sT2} offen{SC}")
    a("s_mov_b64 exec, -1")
    a.label(f"{name}_fo2")
    a(f"s_bitcmp1_b32 s{sJob}, 2")
    a(f"s_cbranch_scc0 {name}_fo3")
    a(f"v_mov_b32 v{vT1}, 0")
    a("s_mov_b64 exec, 1")
    a(f"s_mov_b32 s{sT2}, {WS_D + 1024*Y_STRIDE + 1024}")
    a(f"buffer_store_dword v{accW}, v{vT1}, s[{srdWS}:{srdWS+3}], s{sT2} offen{SC}")
    a(f"s_mov_b32 s{sT2}, {WS_E + 1024*Y_STRIDE + 1024}")
    a(f"buffer_store_dword v{accW}, v{vT1}, s[{srdWS}:{srdWS+3}], s{sT2} offen{SC}")
    a("s_mov_b64 exec, -1")
    a.label(f"{name}_fo3")
    lsig(a, vT0, vT1, C_R1)
    a("s_waitcnt vmcnt(0)")
    a(f"s_add_u32 s{sT0}, s2, {FL_D}")
    publish(a, vT0, vT1, sT0)
    a.label(f"{name}_fsig")
    tl_stamp(a, 5)

    Rp = RegAlloc(base, 168)
    vWa = [Rp.alloc("wa0"), Rp.alloc("wa1")]
    vG2 = Rp.alloc("g"); vYa = Rp.alloc("ya"); vOffW = Rp.alloc("offw"); vFl2 = Rp.alloc("fl")
    vYv = Rp.alloc("y", 16)
    fO = Rp.alloc("fO", 64)
    NS = 3
    fW = [Rp.alloc(f"fW{i}", 8) for i in range(NS)]
    acc = [Rp.alloc("acc0", 16), Rp.alloc("acc1", 16)]
    nvmax[0] = max(nvmax[0], Rp.next)
    sTb, sEb, sTt2, sKh2, sT0row, sE0, sMirE = 56, 57, 58, 59, 60, 61, 62
    a(f"s_mov_b32 s{sTb}, s{sHead}")
    a(f"s_mov_b32 s{sEb}, s{sQb}")
    a(f"s_and_b32 s{sTt2}, s{sF}, 1")
    a(f"s_lshr_b32 s{sKh2}, s{sF}, 1")
    a(f"s_lshl_b32 s{sT0}, s{sTt2}, 5")
    a(f"s_lshl_b32 s{sT0row}, s{sTb}, 6")
    a(f"s_add_u32 s{sT0row}, s{sT0row}, s{sT0}")
    a(f"s_lshl_b32 s{sT0}, s{sKh2}, 5")
    a(f"s_lshl_b32 s{sE0}, s{sEb}, 6")
    a(f"s_add_u32 s{sE0}, s{sE0}, s{sT0}")
    srd(a, srdA, sOut, 2048*1024)
    a(f"v_lshrrev_b32 v{vT0}, 3, v{vLane}")
    a(f"v_lshlrev_b32 v{vOffW}, 10, v{vT0}")
    a(f"v_bfe_u32 v{vT1}, v{vLane}, 4, 1")
    a(f"v_bfe_u32 v{vT2}, v{vLane}, 2, 1")
    a(f"v_xor_b32 v{vT1}, v{vT1}, v{vT2}")
    a(f"v_lshlrev_b32 v{vT1}, 6, v{vT1}")
    a(f"v_add_u32 v{vOffW}, v{vOffW}, v{vT1}")
    a(f"v_and_b32 v{vT1}, 3, v{vLane}")
    a(f"v_lshlrev_b32 v{vT1}, 4, v{vT1}")
    a(f"v_add_u32 v{vOffW}, v{vOffW}, v{vT1}")
    a(f"v_bfe_u32 v{vT0}, v{vLane}, 2, 2")
    a(f"v_lshrrev_b32 v{vT1}, 5, v{vLane}")
    a(f"v_lshlrev_b32 v{vT1}, 2, v{vT1}")
    a(f"v_add_u32 v{vT0}, v{vT0}, v{vT1}")
    a(f"v_lshlrev_b32 v{vT0}, 7, v{vT0}")
    a(f"v_bfe_u32 v{vT1}, v{vLane}, 4, 1")
    a(f"v_lshlrev_b32 v{vT1}, 5, v{vT1}")
    a(f"v_add_u32 v{vT0}, v{vT0}, v{vT1}")
    a(f"v_and_b32 v{vT1}, 3, v{vLane}")
    a(f"v_lshlrev_b32 v{vT1}, 3, v{vT1}")
    a(f"v_add_u32 v{vT0}, v{vT0}, v{vT1}")
    a(f"s_lshl_b32 s{sT0}, s{sKh2}, 15")
    a(f"v_add_u32 v{vT0}, s{sT0}, v{vT0}")
    a(f"v_bfe_u32 v{vT1}, v{vLane}, 3, 1")
    for et in range(2):
        a(f"v_xor_b32 v{vT2}, {et}, v{vT1}")
        a(f"v_lshlrev_b32 v{vT2}, 6, v{vT2}")
        a(f"v_add_u32 v{vWa[et]}, v{vT0}, v{vT2}")
    a(f"v_and_b32 v{vT0}, 31, v{vLane}")
    a(f"v_add_u32 v{vT0}, s{sT0row}, v{vT0}")
    a(f"v_lshlrev_b32 v{vG2}, 2, v{vT0}")
    a(f"v_sub_u32 v{vT1}, 2048, v{vT0}")
    a(f"s_cmp_lt_u32 s{sT0row}, 1024")
    a("s_cselect_b64 vcc, -1, 0")
    a(f"s_cselect_b32 s{sT2}, 1, 0")
    a(f"v_cndmask_b32 v{vT1}, v{vT1}, v{vT0}, vcc")
    a(f"v_mul_u32_u24 v{vYa}, {Y_STRIDE}, v{vT1}")
    a(f"v_lshrrev_b32 v{vT1}, 5, v{vLane}")
    a(f"v_lshlrev_b32 v{vT1}, 4, v{vT1}")
    a(f"s_cmp_lt_u32 s{sE0}, 256")
    a(f"s_cselect_b32 s{sMirE}, 0, 1")
    a(f"s_cselect_b32 s63, 1, 0")
    a(f"s_cbranch_scc0 {name}_mir")
    a(f"v_add_u32 v{vYa}, v{vYa}, v{vT1}")
    a(f"s_lshl_b32 s{sT1}, s{sE0}, 2")
    a(f"s_branch {name}_ya")
    a.label(f"{name}_mir")
    a(f"s_sub_u32 s{sT1}, 485, s{sE0}")
    a(f"s_lshl_b32 s{sT1}, s{sT1}, 2")
    a(f"v_add_u32 v{vYa}, s{sT1}, v{vYa}")
    a(f"v_sub_u32 v{vYa}, v{vYa}, v{vT1}")
    a(f"s_mov_b32 s{sT1}, 0")
    a.label(f"{name}_ya")
    a(f"s_cmp_eq_u32 s{sT2}, s63")
    a(f"s_mov_b32 s{sT3}, {WS_E}")
    a(f"s_cselect_b32 s{sT2}, {WS_D}, s{sT3}")
    a(f"s_add_u32 s63, s{sT1}, s{sT2}")
    for e in range(2):
        for i in range(16):
            a(f"v_mov_b32 v{acc[e]+i}, 0")
    a(f"s_lshl_b32 s{sT0}, s{sKh2}, 8")
    a(f"s_lshl_b32 s{sT1}, s{sTt2}, 7")
    a(f"s_add_u32 s{sT0}, s{sT0}, s{sT1}")
    a(f"s_lshl_b32 s30, s{sT0}, 7")
    a(f"s_lshl_b32 s{sT0}, s{sT0}, 10")
    a(f"s_lshl_b32 s{sT1}, s{sEb}, 7")
    a(f"s_add_u32 s{sT2}, s{sT0}, s{sT1}")
    for m in range(16):
        a(f"s_add_u32 s{sT1}, s{sT2}, {m*8192}")
        a(f"buffer_load_dwordx4 {vr(fO+4*m,4)}, v{vOffW}, s[{srdC}:{srdC+3}], s{sT1} offen")
    a(f"s_cmp_lg_u32 s{sF}, 0")
    a(f"s_cbranch_scc1 {name}_c1")
    a(f"v_lshlrev_b32 v{vFl2}, {FSH}, v{vLane}")
    a(f"v_add_u32 v{vFl2}, {WS_FLAG + (FL_D << FSH)}, v{vFl2}")
    gpoll_multi(a, vFl2, vYv, 4, 64 << FSH, f"{name}_gd", sCnt, sleep=8)
    lsig(a, vT0, vT1, C_GO3)
    a(f"s_branch {name}_c2")
    a.label(f"{name}_c1")
    lwait(a, vT0, vT1, sT0, C_GO3, 1, f"{name}_cw1", sleep=16)
    a.label(f"{name}_c2")
    a(f"s_mov_b32 s{sT1}, {WS_G}")
    a(f"buffer_load_dword v{vG2}, v{vG2}, s[{srdWS}:{srdWS+3}], s{sT1} offen{SC}")
    for c in range(4):
        a(f"buffer_load_dwordx4 {vr(vYv+4*c,4)}, v{vYa}, s[{srdWS}:{srdWS+3}], s63 offen offset:{c*32}{SC}")
    tl_stamp(a, 6)
    a(f"v_and_b32 v{vT0}, 31, v{vLane}")
    a(f"s_lshr_b32 s{sT0}, s{sHead}, 2")
    a(f"s_lshl_b32 s{sT0}, s{sT0}, 5")
    a(f"v_add_u32 v{vT0}, s{sT0}, v{vT0}")
    a(f"v_lshlrev_b32 v{vFl2}, {FSH}, v{vT0}")
    a(f"v_add_u32 v{vFl2}, {WS_FLAG + (FL_O << FSH)}, v{vFl2}")
    a(f"v_add_u32 v{vOffW}, s30, v{vL16}")
    a(f"s_lshl_b32 s{sT0}, s{sTb}, 1")
    a(f"s_add_u32 s{sT0}, s{sT0}, s{sTt2}")
    a(f"s_lshl_b32 s{sT0}, s{sT0}, 5")
    a(f"s_lshl_b32 s{sT1}, s{sKh2}, 4")
    a(f"s_add_u32 s{sT0}, s{sT0}, s{sT1}")
    a(f"s_lshl_b32 s{sT0}, s{sT0}, 10")
    a(f"s_add_u32 s30, s{sT0}, {WS_O}")
    a("s_waitcnt vmcnt(0)")
    lwait(a, vT0, vT1, sT0, C_ADONE, 8, f"{name}_cw2", sleep=3)
    tl_stamp(a, 7)
    for m in range(16):
        a(f"ds_write_b128 v{vOffW}, {vr(fO+4*m,4)} offset:{m*1024}")
    a("s_waitcnt lgkmcnt(0)")
    a(f"s_lshl_b32 s{sT0}, s{sKh2}, 2")
    a(f"s_add_u32 s31, s{sT0}, {C_W}")
    lsig(a, vT0, vT1, "s31")
    tl_stamp(a, 1)
    if not PAR.get("ODIRECT", 0):
        a(f"s_cmp_lg_u32 s{sF}, 0")
        a(f"s_cbranch_scc1 {name}_c3")
        gpoll(a, vFl2, vT0, f"{name}_go", 55, sleep=2)
        lsig(a, vT0, vT1, C_GO3)
        a(f"s_branch {name}_c4")
        a.label(f"{name}_c3")
        lwait(a, vT0, vT1, sT0, C_GO3, 2, f"{name}_cw3", sleep=1)
        a.label(f"{name}_c4")
    tl_stamp(a, 8)
    a(f"s_mov_b32 s55, {PAR.get('ORETRY', 32)}")
    a.label(f"{name}_oload")
    for i in range(16):
        a(f"s_add_u32 s{sT1}, s30, {i*1024}")
        a(f"buffer_load_dwordx4 {vr(fO+4*i,4)}, v{vL16}, s[{srdWS}:{srdWS+3}], s{sT1} offen{SC}")
    def wreads(i):
        s_ = i % NS
        for et in range(2):
            for u in range(2):
                a(f"ds_read_b64_tr_b16 {vr(fW[s_]+4*et+2*u,2)}, v{vWa[et]} offset:{i*2048 + u*1024}")
    if PAR.get("OCHK", 0):
        a(f"v_mov_b32 v{vFl2}, 0")
        for i in range(16):
            a(f"s_waitcnt vmcnt({15-i})")
            a(f"v_max3_u32 v{vFl2}, v{vFl2}, v{fO+4*i}, v{fO+4*i+1}")
            a(f"v_max3_u32 v{vFl2}, v{vFl2}, v{fO+4*i+2}, v{fO+4*i+3}")
        a(f"v_cmp_eq_u32 vcc, -1, v{vFl2}")
        a("s_nop 4")
        a(f"s_cbranch_vccz {name}_ogood")
        a(f"s_sub_u32 s55, s55, 1")
        a(f"s_cbranch_scc0 {name}_oload")
        a.label(f"{name}_ogood")
        lwait(a, vT0, vT1, sT0, "s31", 2, f"{name}_cw4", sleep=0)
        tl_stamp(a, 2)
        wreads(0); wreads(1)
        for i in range(16):
            if i + 2 < 16:
                wreads(i + 2)
                a(f"s_waitcnt lgkmcnt(8)")
            else:
                a(f"s_waitcnt lgkmcnt({4*(15-i)})")
            for et in range(2):
                a(f"v_mfma_f32_32x32x16_bf16 {vr(acc[et],16)}, {vr(fW[i%NS]+4*et,4)}, {vr(fO+4*i,4)}, {vr(acc[et],16)}")
    else:
        lwait(a, vT0, vT1, sT0, "s31", 2, f"{name}_cw4", sleep=0)
        a(f"v_mov_b32 v{vFl2}, 0")
        tl_stamp(a, 2)
        wreads(0); wreads(1)
        for i in range(16):
            if i + 2 < 16:
                wreads(i + 2)
                a(f"s_waitcnt vmcnt({15-i}) lgkmcnt(8)")
            else:
                a(f"s_waitcnt vmcnt({15-i}) lgkmcnt({4*(15-i)})")
            for et in range(2):
                a(f"v_mfma_f32_32x32x16_bf16 {vr(acc[et],16)}, {vr(fW[i%NS]+4*et,4)}, {vr(fO+4*i,4)}, {vr(acc[et],16)}")
            a(f"v_max3_u32 v{vFl2}, v{vFl2}, v{fO+4*i}, v{fO+4*i+1}")
            a(f"v_max3_u32 v{vFl2}, v{vFl2}, v{fO+4*i+2}, v{fO+4*i+3}")
        a(f"v_cmp_eq_u32 vcc, -1, v{vFl2}")
        a("s_nop 4")
        a(f"s_cbranch_vccz {name}_ook")
        a(f"s_sub_u32 s55, s55, 1")
        a(f"s_cbranch_scc1 {name}_ook")
        a("s_nop 15")
        for e in range(2):
            for i in range(16):
                a(f"v_mov_b32 v{acc[e]+i}, 0")
        a("s_sleep 2")
        a(f"s_branch {name}_oload")
    a.label(f"{name}_ook")
    if TL["on"]:
        a("s_sub_u32 s86, 32, s55")
        a("s_add_u32 s86, s86, s90" if TL.get("rt") else "s_add_u32 s86, s86, s92")
    tl_stamp(a, 9)
    a("s_nop 15")
    a(f"s_lshl_b32 s{sT0}, s{sF}, 12")
    a(f"s_add_u32 s{sT0}, s{sT0}, 65536")
    a(f"v_add_u32 v{vT0}, s{sT0}, v{vL16}")
    a(f"s_cmp_eq_u32 s{sKh2}, 0")
    a(f"s_cbranch_scc0 {name}_y1")
    for q in range(4):
        a(f"ds_write_b128 v{vT0}, {vr(acc[1]+4*q,4)} offset:{q*1024}")
    a(f"s_branch {name}_y2")
    a.label(f"{name}_y1")
    for q in range(4):
        a(f"ds_write_b128 v{vT0}, {vr(acc[0]+4*q,4)} offset:{q*1024}")
    for i in range(16):
        a(f"v_mov_b32 v{acc[0]+i}, v{acc[1]+i}")
    a.label(f"{name}_y2")
    a("s_waitcnt lgkmcnt(0)")
    a(f"s_lshl_b32 s{sT0}, s{sTt2}, 2")
    a(f"s_add_u32 s31, s{sT0}, {C_Y}")
    lsig(a, vT1, vT2, "s31")
    lwait(a, vT1, vT2, sT0, "s31", 2, f"{name}_cw5", sleep=0)
    a(f"s_xor_b32 s{sT0}, s{sF}, 2")
    a(f"s_lshl_b32 s{sT0}, s{sT0}, 12")
    a(f"s_add_u32 s{sT0}, s{sT0}, 65536")
    a(f"v_add_u32 v{vT0}, s{sT0}, v{vL16}")
    for q in range(4):
        a(f"ds_read_b128 {vr(fO+4*q,4)}, v{vT0} offset:{q*1024}")
    a("s_waitcnt lgkmcnt(0)")
    S = acc[0]
    for i in range(16):
        a(f"v_add_f32 v{S+i}, v{S+i}, v{fO+i}")
    a(f"s_cmp_eq_u32 s{sMirE}, 0")
    a(f"s_cbranch_scc0 {name}_cm")
    for i in range(16):
        a(f"v_sub_f32 v{S+i}, v{S+i}, v{vYv+i}")
        a(f"v_fma_f32 v{S+i}, v{vG2}, v{S+i}, v{vYv+i}")
    a(f"s_branch {name}_st")
    a.label(f"{name}_cm")
    for g in range(4):
        for r in range(4):
            y = vYv + 4*(3-g) + (3-r)
            a(f"v_sub_f32 v{S+4*g+r}, v{S+4*g+r}, v{y}")
            a(f"v_fma_f32 v{S+4*g+r}, v{vG2}, v{S+4*g+r}, v{y}")
    a.label(f"{name}_st")
    P = fO + 16
    for i in range(8):
        a(f"v_cvt_pk_bf16_f32 v{P+i}, v{S+2*i}, v{S+2*i+1}")
    a(f"v_and_b32 v{vT0}, 31, v{vLane}")
    a(f"v_add_u32 v{vT0}, s{sT0row}, v{vT0}")
    a(f"v_lshlrev_b32 v{vT0}, 10, v{vT0}")
    a(f"v_lshrrev_b32 v{vT1}, 5, v{vLane}")
    a(f"v_lshlrev_b32 v{vT1}, 4, v{vT1}")
    a(f"v_add_u32 v{vT0}, v{vT0}, v{vT1}")
    a(f"s_lshl_b32 s{sT0}, s{sE0}, 1")
    for pr in range(2):
        a(f"v_permlane32_swap_b32 v{P+4*pr}, v{P+4*pr+2}")
        a(f"v_permlane32_swap_b32 v{P+4*pr+1}, v{P+4*pr+3}")
    for pr in range(2):
        a(f"buffer_store_dwordx4 {vr(P+4*pr,4)}, v{vT0}, s[{srdA}:{srdA+3}], s{sT0} offen offset:{32*pr}")
    tl_stamp(a, 10)
    dbg_exit(a, [5, 8, -1], [0, 5], 8, 7)
    if not TL.get("dbg"): tl_exit(a, 2, sWS)
    a("s_endpgm")
```

```python
from asmlib import *
from common import *
from gen_fused import *

PRIO_MODE = 1
PRIO_SW = (5, 7)
EXP = {}
PAR = {}
sHead, sQb = 52, 53

def decode_hq(a):
    a(f"s_and_b32 s{sT0}, s2, 7")
    a(f"s_lshr_b32 s{sT1}, s2, 3")
    a(f"s_lshl_b32 s{sHead}, s{sT0}, 2")
    a(f"s_and_b32 s{sT0}, s{sT1}, 3")
    a(f"s_add_u32 s{sHead}, s{sHead}, s{sT0}")
    a(f"s_lshr_b32 s{sQb}, s{sT1}, 2")


def edge_regs(r0):
    return dict(vG=r0, vA=r0+4, vB=r0+8, vR=r0+12, vX1=r0+16, vRe=r0+20, vD=r0+24)

def emit_edge_loads(a, name, V, r0, sF, sS):
    vL16 = V["vL16"]
    E = edge_regs(r0); vG, vA, vB, vR, vX1, vRe, vD = [E[k] for k in ("vG","vA","vB","vR","vX1","vRe","vD")]
    a(f"s_lshl_b32 s{sS}, s2, 2")
    a(f"s_add_u32 s{sS}, s{sS}, s{sF}")
    a(f"global_load_dwordx4 {vr(vG,4)}, v{vL16}, s[{sGate}:{sGate+1}]")
    a(f"s_lshl_b32 s{sT0}, s{sS}, 10")
    a(f"buffer_load_dwordx4 {vr(vA,4)}, v{vL16}, s[{srdA}:{srdA+3}], s{sT0} offen")
    a(f"s_sub_u32 s{sT1}, 2048, s{sS}")
    a(f"s_lshl_b32 s{sT1}, s{sT1}, 10")
    a(f"buffer_load_dwordx4 {vr(vB,4)}, v{vL16}, s[{srdA}:{srdA+3}], s{sT1} offen")
    a(f"s_mov_b32 s{sT1}, {1024*1024}")
    a(f"buffer_load_dwordx4 {vr(vX1,4)}, v{vL16}, s[{srdA}:{srdA+3}], s{sT1} offen")
    a(f"s_lshl_b32 s{sT1}, s2, 10")
    a(f"v_add_u32 v{vD}, s{sT1}, v{vL16}")
    a(f"global_load_dwordx4 {vr(vRe,4)}, v{vD}, s[{sHre}:{sHre+1}]")

def emit_edge_compute(a, name, V, r0, sF, sS, sfx):
    vLane, vL16, vT0, vT1, vT2, vT3 = V["vLane"], V["vL16"], V["vT0"], V["vT1"], V["vT2"], V["vT3"]
    E = edge_regs(r0); vG, vA, vB, vR, vX1, vRe, vD = [E[k] for k in ("vG","vA","vB","vR","vX1","vRe","vD")]
    srd(a, srdWS, sWS, WS_SIZE_USED)
    a("s_waitcnt vmcnt(0)")
    a(f"s_mov_b32 s31, 0xbf803f80")
    a(f"v_dot2_f32_bf16 v{vD}, v{vA}, v{vG}, 0")
    a(f"v_dot2_f32_bf16 v{vD+1}, v{vB}, v{vG}, 0")
    a(f"v_dot2_f32_bf16 v{vD+2}, v{vA}, s31, 0")
    a(f"v_dot2_f32_bf16 v{vD+3}, v{vRe}, v{vX1}, 0")
    a(f"v_dot2_f32_bf16 v{vD+4}, v{vX1}, v{vG}, 0")
    a(f"v_dot2_f32_bf16 v{vD+5}, v{vX1}, s31, 0")
    a("s_nop 2")
    for q in range(4):
        if q > 0:
            a(f"v_dot2c_f32_bf16 v{vD}, v{vA+q}, v{vG+q}")
            a(f"v_dot2c_f32_bf16 v{vD+1}, v{vB+q}, v{vG+q}")
            a(f"v_dot2c_f32_bf16 v{vD+2}, s31, v{vA+q}")
            a(f"v_dot2c_f32_bf16 v{vD+3}, v{vRe+q}, v{vX1+q}")
            a(f"v_dot2c_f32_bf16 v{vD+4}, v{vX1+q}, v{vG+q}")
            a(f"v_dot2c_f32_bf16 v{vD+5}, s31, v{vX1+q}")
        a(f"v_dot2c_f32_bf16 v{vD+2}, s31, v{vB+q}")
    a("s_nop 3")
    for ctrl in ["row_shr:1", "row_shr:2", "row_shr:4", "row_shr:8"]:
        for r in range(6):
            a(f"v_add_f32_dpp v{vD+r}, v{vD+r}, v{vD+r} {ctrl} row_mask:0xf bank_mask:0xf bound_ctrl:0")
    for r in range(6):
        a(f"v_add_f32_dpp v{vD+r}, v{vD+r}, v{vD+r} row_bcast:15 row_mask:0xa bank_mask:0xf")
    for r in range(6):
        a(f"v_add_f32_dpp v{vD+r}, v{vD+r}, v{vD+r} row_bcast:31 row_mask:0xc bank_mask:0xf")
    for r in (0, 1, 4):
        a(f"v_mul_f32 v{vD+r}, {f2u(-1.4426950408889634)}, v{vD+r}")
    for r in (0, 1, 4):
        a(f"v_exp_f32 v{vD+r}, v{vD+r}")
    a("s_nop 0")
    for r in (0, 1, 4):
        a(f"v_add_f32 v{vD+r}, 1.0, v{vD+r}")
    for r in (0, 1, 4):
        a(f"v_rcp_f32 v{vD+r}, v{vD+r}")
    a(f"v_cvt_pk_bf16_f32 v{vD+2}, v{vD+2}, 0")
    a(f"v_cvt_pk_bf16_f32 v{vR}, v{vD+3}, 0")
    a(f"v_cvt_pk_bf16_f32 v{vD+5}, v{vD+5}, 0")
    for i in range(1, 4): a(f"v_mov_b32 v{vR+i}, 0")
    for i in range(4): a(f"v_mov_b32 v{vA+i}, 0")
    a(f"v_mov_b32 v{vT1}, 0")
    a("s_mov_b32 exec_lo, 0")
    a("s_mov_b32 exec_hi, 0x80000000")
    a(f"s_lshl_b32 s{sT0}, s{sS}, 2")
    a(f"s_add_u32 s{sT0}, s{sT0}, {WS_G}")
    a(f"buffer_store_dword v{vD}, v{vT1}, s[{srdWS}:{srdWS+3}], s{sT0} offen{SC}")
    a(f"s_cmp_eq_u32 s{sS}, 0")
    a(f"s_cbranch_scc1 {name}_e1{sfx}")
    a(f"s_sub_u32 s{sT0}, 2048, s{sS}")
    a(f"s_lshl_b32 s{sT0}, s{sT0}, 2")
    a(f"s_add_u32 s{sT0}, s{sT0}, {WS_G}")
    a(f"buffer_store_dword v{vD+1}, v{vT1}, s[{srdWS}:{srdWS+3}], s{sT0} offen{SC}")
    a.label(f"{name}_e1{sfx}")
    a(f"s_lshr_b32 s{sT0}, s{sS}, 4")
    a(f"s_add_u32 s{sT0}, s{sT0}, {8*A_KSTEPS}")
    a(f"s_lshl_b32 s{sT0}, s{sT0}, 10")
    a(f"s_bfe_u32 s{sT1}, s{sS}, 0x10003")
    a(f"s_lshl_b32 s{sT1}, s{sT1}, 9")
    a(f"s_add_u32 s{sT0}, s{sT0}, s{sT1}")
    a(f"s_and_b32 s{sT1}, s{sS}, 7")
    a(f"s_lshl_b32 s{sT1}, s{sT1}, 1")
    a(f"s_add_u32 s{sT0}, s{sT0}, s{sT1}")
    a(f"s_add_u32 s{sT0}, s{sT0}, {WS_A}")
    a(f"buffer_store_short v{vD+2}, v{vT1}, s[{srdWS}:{srdWS+3}], s{sT0} offen{SC}")
    a(f"s_cmp_lg_u32 s{sF}, 0")
    a(f"s_cbranch_scc1 {name}_e2{sfx}")
    a(f"s_lshr_b32 s{sT0}, s2, 5")
    a(f"s_mul_i32 s{sT0}, s{sT0}, {A_KSTEPS}")
    a(f"s_add_u32 s{sT0}, s{sT0}, 64")
    a(f"s_lshl_b32 s{sT0}, s{sT0}, 10")
    a(f"s_and_b32 s{sT1}, s2, 31")
    a(f"s_lshl_b32 s{sT1}, s{sT1}, 4")
    a(f"s_add_u32 s{sT0}, s{sT0}, s{sT1}")
    a(f"s_add_u32 s{sT0}, s{sT0}, {WS_A}")
    a(f"buffer_store_dwordx4 {vr(vR,4)}, v{vT1}, s[{srdWS}:{srdWS+3}], s{sT0} offen{SC}")
    a(f"buffer_store_dwordx4 {vr(vA,4)}, v{vT1}, s[{srdWS}:{srdWS+3}], s{sT0} offen offset:512{SC}")
    a.label(f"{name}_e2{sfx}")
    a(f"s_cmp_lg_u32 s{sS}, 1")
    a(f"s_cbranch_scc1 {name}_e3{sfx}")
    a(f"s_mov_b32 s{sT0}, {WS_G + 4096}")
    a(f"buffer_store_dword v{vD+4}, v{vT1}, s[{srdWS}:{srdWS+3}], s{sT0} offen{SC}")
    a(f"v_mov_b32 v{vR}, v{vD+5}")
    a(f"s_mov_b32 s{sT0}, {WS_A + (8*A_KSTEPS + 64)*1024}")
    a(f"buffer_store_dwordx4 {vr(vR,4)}, v{vT1}, s[{srdWS}:{srdWS+3}], s{sT0} offen{SC}")
    a(f"buffer_store_dwordx4 {vr(vA,4)}, v{vT1}, s[{srdWS}:{srdWS+3}], s{sT0} offen offset:512{SC}")
    a.label(f"{name}_e3{sfx}")
    a("s_mov_b64 exec, -1")

def gen_attn_part(a, name, base, nvmax, V):
    vLane, vL16, vT0, vT1 = V["vLane"], V["vL16"], V["vT0"], V["vT1"]
    Ra = RegAlloc(base, 168)
    vAK = Ra.alloc("addrK"); vAV = Ra.alloc("addrV"); vM = Ra.alloc("m")
    vRd = Ra.alloc("rdaddr"); vRv = Ra.alloc("rdval")
    vQ = [Ra.alloc("Q0", 4), Ra.alloc("Q1", 4)]
    vK = Ra.alloc("K", 4); vV0 = Ra.alloc("V0", 4); vV1 = Ra.alloc("V1", 4)
    vP = Ra.alloc("P", 8)
    vS = [Ra.alloc("S0", 16), Ra.alloc("S1", 16)]
    vT = Ra.alloc("T", 16)
    vO = [Ra.alloc("O0", 16), Ra.alloc("O1", 16)]
    vC = [Ra.alloc("C0", 16), Ra.alloc("C1", 16)]
    nvmax[0] = max(nvmax[0], Ra.next)
    sKh, sQp, sIt, sMask, sRetry = 54, 55, 56, 58, 57
    a.label(f"{name}_attn")
    decode_hq(a)
    a(f"s_and_b32 s{sQp}, s{sW}, 3")
    a(f"s_lshr_b32 s{sKh}, s{sW}, 2")
    srd(a, srdWS, sWS, WS_SIZE_USED)
    a(f"s_mov_b32 s{sRetry}, 0")
    a(f"s_lshl_b32 s60, s{sKh}, 15")
    a(f"s_mul_i32 s59, s{sKh}, {VHALF}")
    a(f"v_lshrrev_b32 v{vT0}, 5, v{vLane}")
    a(f"v_lshlrev_b32 v{vT0}, 8, v{vT0}")
    a(f"v_and_b32 v{vAK}, 31, v{vLane}")
    a(f"v_lshlrev_b32 v{vAV}, 4, v{vAK}")
    a(f"v_add_u32 v{vAV}, v{vAV}, v{vT0}")
    a(f"v_cmp_eq_u32 vcc, 16, v{vAK}")
    a(f"v_cmp_eq_u32 s[62:63], 20, v{vAK}")
    a(f"v_mov_b32 v{vM}, 528")
    a(f"v_mov_b32 v{vT0}, 512")
    a("s_or_b64 vcc, vcc, s[62:63]")
    a("s_nop 1")
    a(f"v_cndmask_b32 v{vM}, v{vM}, v{vT0}, vcc")
    a(f"v_cmp_gt_u32 vcc, 16, v{vAK}")
    a("s_nop 1")
    a(f"v_cndmask_b32 v{vAV}, v{vM}, v{vAV}, vcc")
    a(f"v_add_u32 v{vAV}, 65536, v{vAV}")
    a(f"v_add_u32 v{vAV}, s59, v{vAV}")
    for i in range(4):
        a(f"v_mov_b32 v{vV1+i}, 0")
    for q in range(2):
        for i in range(16):
            a(f"v_mov_b32 v{vO[q]+i}, 0")
    for i in range(4, 8):
        a(f"v_mov_b32 v{vP+i}, 0")
    a(f"v_add_u32 v{vAK}, s60, v{vL16}")
    a(f"s_lshl_b32 s{sT0}, s{sHead}, 6")
    a(f"s_lshl_b32 s{sT1}, s{sQb}, 3")
    a(f"s_add_u32 s{sT0}, s{sT0}, s{sT1}")
    a(f"s_lshl_b32 s{sT1}, s{sQp}, 1")
    a(f"s_add_u32 s{sT0}, s{sT0}, s{sT1}")
    a(f"s_lshl_b32 s61, s{sT0}, 10")
    read_nonce(a, vT0, vT1)
    tl_stamp(a, 3)
    lwait(a, vT0, vT1, sT0, C_GO, 1, f"{name}_wgo", sleep=2)
    if PAR.get("QDIRECT", 0):
        a(f"s_mov_b32 s59, 8192")
        a.label(f"{name}_qload")
    a(f"buffer_load_dwordx4 {vr(vQ[0],4)}, v{vL16}, s[{srdWS}:{srdWS+3}], s61 offen{SC}")
    a(f"buffer_load_dwordx4 {vr(vQ[1],4)}, v{vL16}, s[{srdWS}:{srdWS+3}], s61 offen offset:1024{SC}")
    if PAR.get("QDIRECT", 0):
        a("s_waitcnt vmcnt(0)")
        a(f"v_max3_u32 v{vM}, v{vQ[0]}, v{vQ[0]+1}, v{vQ[0]+2}")
        a(f"v_max3_u32 v{vM}, v{vM}, v{vQ[0]+3}, v{vQ[1]}")
        a(f"v_max3_u32 v{vM}, v{vM}, v{vQ[1]+1}, v{vQ[1]+2}")
        a(f"v_max_u32 v{vM}, v{vM}, v{vQ[1]+3}")
        a(f"v_cmp_eq_u32 vcc, -1, v{vM}")
        a("s_nop 4")
        a(f"s_cbranch_vccz {name}_qok")
        a("s_sub_u32 s59, s59, 1")
        a(f"s_cbranch_scc1 {name}_qok")
        a("s_sleep 2")
        a(f"s_branch {name}_qload")
        a.label(f"{name}_qok")
    tl_stamp(a, 4)
    lwait(a, vT0, vT1, sT0, C_RDY, 1, f"{name}_wr0", sleep=1)
    a(f"s_lshl_b32 s60, s{sKh}, 2")
    a(f"s_add_u32 s60, s60, {C_RDY}")
    lwait(a, vT0, vT1, sT0, "s60", 1, f"{name}_wr1", sleep=1)
    a(f"v_add_u32 v{vRd}, 8, v{vT0}")
    a("s_waitcnt vmcnt(0)")
    tl_stamp(a, 5)

    def rowmax(S):
        a(f"v_max3_f32 v{vM}, v{S}, v{S+1}, v{S+2}")
        for i in range(3, 15, 2):
            a(f"v_max3_f32 v{vM}, v{vM}, v{S+i}, v{S+i+1}")
        a(f"v_max_f32 v{vM}, v{vM}, v{S+15}")
    def bcast_negmax(C):
        a(f"v_mov_b32 v{vT0}, v{vM}")
        a("s_nop 1")
        a(f"v_permlane32_swap_b32 v{vT0}, v{vM}")
        a("s_nop 1")
        a(f"v_max_f32 v{vM}, v{vM}, v{vT0}")
        a(f"v_sub_f32 v{C}, 0, v{vM}")
        for i in range(1, 16):
            a(f"v_mov_b32 v{C+i}, v{C}")
    a(f"ds_read_b128 {vr(vT,4)}, v{vL16}")
    a(f"ds_read_b128 {vr(vK,4)}, v{vAK}")
    a("s_waitcnt lgkmcnt(1)")
    a(f"v_mfma_f32_32x32x16_bf16 {vr(vS[0],16)}, {vr(vT,4)}, {vr(vQ[0],4)}, 0")
    a(f"v_mfma_f32_32x32x16_bf16 {vr(vS[1],16)}, {vr(vT,4)}, {vr(vQ[1],4)}, 0")
    a(f"ds_read_b128 {vr(vV0,4)}, v{vAV}")
    a("s_nop 8")
    rowmax(vS[0]); bcast_negmax(vC[0])
    a("s_waitcnt lgkmcnt(0)")
    a(f"v_mfma_f32_32x32x16_bf16 {vr(vS[0],16)}, {vr(vK,4)}, {vr(vQ[0],4)}, {vr(vC[0],16)}")
    rowmax(vS[1]); bcast_negmax(vC[1])
    a("s_nop 1")
    a(f"v_mfma_f32_32x32x16_bf16 {vr(vS[1],16)}, {vr(vK,4)}, {vr(vQ[1],4)}, {vr(vC[1],16)}")
    a(f"ds_read_b128 {vr(vK,4)}, v{vAK} offset:1024")
    tl_stamp(a, 6)

    def step(u, q):
        S = vS[q]
        e = lambda i: a(f"v_exp_f32 v{vT+i}, v{S+i}")
        c = lambda i: a(f"v_cvt_pk_bf16_f32 v{vP+i}, v{vT+2*i}, v{vT+2*i+1}")
        e(0); e(1); e(2); c(0); e(3); e(4)
        if q == 1:
            a("s_waitcnt lgkmcnt(0)")
        a(f"v_mfma_f32_32x32x16_bf16 {vr(vO[q^1],16)}, {vr(vV1,4)}, {vr(vP+4,4)}, {vr(vO[q^1],16)}")
        if q == 0:
            a(f"ds_read_b128 {vr(vV1,4)}, v{vAV} offset:{(2*u+1)*VG}")
        c(1); e(5); e(6); c(2); e(7); e(8); c(3); e(9); e(10)
        if q == 0:
            a("s_waitcnt lgkmcnt(2)")
        a(f"v_mfma_f32_32x32x16_bf16 {vr(vO[q],16)}, {vr(vV0,4)}, {vr(vP,4)}, {vr(vO[q],16)}")
        if q == 1:
            a(f"ds_read_b128 {vr(vV0,4)}, v{vAV} offset:{(2*u+2)*VG}")
        e(11); c(4); e(12); c(5); e(13); e(14); c(6); e(15)
        if q == 0:
            a("s_waitcnt lgkmcnt(1)")
        a(f"v_mfma_f32_32x32x16_bf16 {vr(S,16)}, {vr(vK,4)}, {vr(vQ[q],4)}, {vr(vC[q],16)}")
        if q == 1:
            a(f"ds_read_b128 {vr(vK,4)}, v{vAK} offset:{(u+2)*1024}")
        c(7)

    a(f"s_mov_b32 s{sIt}, 0")
    a("s_setprio 2")
    lbl = f"{name}_loop"
    if EXP.get("al64"): a.raw(".p2align 6")
    if EXP.get("al64s4"):
        a.raw(".p2align 6"); a("s_nop 0")
    a.label(lbl)
    for u in range(4):
        step(u, 0)
        if u == 0:
            a(f"ds_read_b32 v{vRv}, v{vRd}")
        step(u, 1)
        if u == 1:
            a(f"v_readfirstlane_b32 s{sT0}, v{vRv}")
            a(f"v_add_u32 v{vRd}, 8, v{vRd}")
            a("s_nop 2")
            a(f"s_cmp_lg_u32 s{sT0}, 0")
            a(f"s_cbranch_scc1 {name}_nosync")
            a(f"v_subrev_u32 v{vT0}, 8, v{vRd}")
            a(f"s_mov_b32 s{sT3}, {SPIN_MAX*16}")
            a.label(f"{name}_wrs")
            a(f"ds_read_b32 v{vT1}, v{vT0}")
            a("s_waitcnt lgkmcnt(0)")
            a(f"v_readfirstlane_b32 s{sT0}, v{vT1}")
            a(f"s_sub_u32 s{sT3}, s{sT3}, 1")
            a(f"s_cbranch_scc1 {name}_nosync")
            a("s_nop 1")
            a(f"s_cmp_lg_u32 s{sT0}, 0")
            a(f"s_cbranch_scc1 {name}_nosync")
            a("s_sleep 1")
            a(f"s_branch {name}_wrs")
            a.label(f"{name}_nosync")
    a(f"v_add_u32 v{vAK}, 4096, v{vAK}")
    a(f"v_add_u32 v{vAV}, {8*VG}, v{vAV}")
    a(f"s_add_u32 s{sIt}, s{sIt}, 1")
    a(f"s_cmp_eq_u32 s{sIt}, {PRIO_SW[0]}")
    a(f"s_cbranch_scc0 {name}_p1")
    a("s_setprio 1")
    a.label(f"{name}_p1")
    a(f"s_cmp_eq_u32 s{sIt}, {PRIO_SW[1]}")
    a(f"s_cbranch_scc0 {name}_p2")
    a("s_setprio 0")
    a.label(f"{name}_p2")
    a(f"s_cmp_lg_u32 s{sIt}, 8")
    a(f"s_cbranch_scc1 {lbl}")
    a("s_nop 1")
    a(f"v_mfma_f32_32x32x16_bf16 {vr(vO[1],16)}, {vr(vV1,4)}, {vr(vP+4,4)}, {vr(vO[1],16)}")
    tl_stamp(a, 7)
    lwait(a, vT0, vT1, sT0, C_R1, 1, f"{name}_wf")
    a("s_nop 8")
    a(f"s_mul_i32 s{sT0}, s{sW}, 2304")
    a(f"s_add_u32 s{sT0}, s{sT0}, {LDS_RED}")
    a(f"v_add_u32 v{vT0}, s{sT0}, v{vL16}")
    a(f"v_lshrrev_b32 v{vT1}, 2, v{vL16}")
    a(f"v_add_u32 v{vT1}, s{sT0}, v{vT1}")
    a(f"s_cmp_eq_u32 s{sKh}, 0")
    a(f"s_cbranch_scc0 {name}_x1")
    a(f"ds_write_b128 v{vT0}, {vr(vO[1],4)}")
    a(f"ds_write_b128 v{vT0}, {vr(vO[1]+4,4)} offset:1024")
    a(f"ds_write_b32 v{vT1}, v{vO[1]+8} offset:2048")
    a(f"s_branch {name}_x2")
    a.label(f"{name}_x1")
    a(f"ds_write_b128 v{vT0}, {vr(vO[0],4)}")
    a(f"ds_write_b128 v{vT0}, {vr(vO[0]+4,4)} offset:1024")
    a(f"ds_write_b32 v{vT1}, v{vO[0]+8} offset:2048")
    for i in range(9):
        a(f"v_mov_b32 v{vO[0]+i}, v{vO[1]+i}")
    for i in range(4):
        a(f"v_mov_b32 v{vQ[0]+i}, v{vQ[1]+i}")
    a.label(f"{name}_x2")
    a("s_waitcnt lgkmcnt(0)")
    a(f"s_lshl_b32 s{sT0}, s{sQp}, 2")
    a(f"s_add_u32 s61, s{sT0}, {C_X}")
    lsig(a, vAK, vM, "s61")
    lwait(a, vAK, vM, sT0, "s61", 2, f"{name}_wx")
    a(f"s_xor_b32 s{sT0}, s{sW}, 4")
    a(f"s_mul_i32 s{sT0}, s{sT0}, 2304")
    a(f"s_add_u32 s{sT0}, s{sT0}, {LDS_RED}")
    a(f"v_add_u32 v{vT0}, s{sT0}, v{vL16}")
    a(f"v_lshrrev_b32 v{vT1}, 2, v{vL16}")
    a(f"v_add_u32 v{vT1}, s{sT0}, v{vT1}")
    a(f"ds_read_b128 {vr(vT,4)}, v{vT0}")
    a(f"ds_read_b128 {vr(vT+4,4)}, v{vT0} offset:1024")
    a(f"ds_read_b32 v{vT+8}, v{vT1} offset:2048")
    a("s_waitcnt lgkmcnt(0)")
    O = vO[0]
    for i in range(9):
        a(f"v_add_f32 v{O+i}, v{O+i}, v{vT+i}")
    a.label(f"{name}_epi")
    a(f"s_cmp_lg_u32 s{sRetry}, 0")
    a(f"s_cbranch_scc1 {name}_fin")
    a(f"v_mov_b32 v{vT0}, 0x5d800000")
    a(f"v_cmp_nle_f32 vcc, v{O+8}, v{vT0}")
    a("s_nop 4")
    a(f"s_cbranch_vccnz {name}_fallback")
    a.label(f"{name}_fin")
    a(f"v_rcp_f32 v{vT0}, v{O+8}")
    a("s_nop 0")
    for i in range(8):
        a(f"v_mul_f32 v{O+i}, v{O+i}, v{vT0}")
    for i in range(4):
        a(f"v_cvt_pk_bf16_f32 v{vP+i}, v{O+2*i}, v{O+2*i+1}")
    a(f"s_lshl_b32 s{sT0}, s{sQb}, 3")
    a(f"s_lshl_b32 s{sT1}, s{sQp}, 1")
    a(f"s_add_u32 s{sT0}, s{sT0}, s{sT1}")
    a(f"s_add_u32 s{sT0}, s{sT0}, s{sKh}")
    a(f"s_lshl_b32 s{sT0}, s{sT0}, 5")
    a(f"s_add_u32 s{sT0}, s{sT0}, s{sHead}")
    a(f"s_lshl_b32 s{sT0}, s{sT0}, 10")
    a(f"s_add_u32 s{sT0}, s{sT0}, {WS_O}")
    a(f"buffer_store_dwordx4 {vr(vP,4)}, v{vL16}, s[{srdWS}:{srdWS+3}], s{sT0} offen{SC}")
    a(f"v_mov_b32 v{vT0}, {C_ADONE}")
    a(f"v_mov_b32 v{vT1}, 1")
    a("s_mov_b64 exec, 1")
    if PAR.get("ODIRECT", 0):
        a(f"ds_add_u32 v{vT0}, v{vT1}")
        a("s_mov_b64 exec, -1")
    else:
        a(f"ds_add_rtn_u32 v{vM}, v{vT0}, v{vT1}")
        a("s_waitcnt lgkmcnt(0)")
        a("s_mov_b64 exec, -1")
        a(f"v_readfirstlane_b32 s{sT0}, v{vM}")
        a("s_nop 3")
        a(f"s_cmp_lg_u32 s{sT0}, 7")
        a(f"s_cbranch_scc1 {name}_adone")
        a(f"s_lshl_b32 s61, s{sQb}, 5")
        a(f"s_add_u32 s61, s61, s{sHead}")
        a(f"s_add_u32 s61, s61, {FL_O}")
        publish(a, vT0, vT1, 61)
    a.label(f"{name}_adone")
    tl_stamp(a, 8)
    dbg_exit(a, [1, 4, 5, 6, 7], [PAR.get("DW", 0)], 4, 1)
    dbg_exit(a, [6, 7], [PAR.get("DW", 0)], 0, 6)
    if not TL.get("dbg"): tl_exit(a, 1, sWS)
    a("s_endpgm")
    a.label(f"{name}_fallback")
    a(f"s_mov_b32 s{sRetry}, 1")
    a(f"v_mov_b32 v{vAK}, v{vL16}")
    a(f"v_mov_b32 v{vM}, 0xff800000")
    a(f"s_mov_b32 s{sIt}, 64")
    a.label(f"{name}_maxloop")
    a(f"ds_read_b128 {vr(vK,4)}, v{vAK}")
    a("s_waitcnt lgkmcnt(0)")
    a(f"v_mfma_f32_32x32x16_bf16 {vr(vS[0],16)}, {vr(vK,4)}, {vr(vQ[0],4)}, 0")
    a(f"v_add_u32 v{vAK}, 1024, v{vAK}")
    a("s_nop 15")
    a("s_nop 3")
    for i in range(0, 16, 2):
        a(f"v_max3_f32 v{vM}, v{vM}, v{vS[0]+i}, v{vS[0]+i+1}")
    a(f"s_sub_u32 s{sIt}, s{sIt}, 1")
    a(f"s_cmp_lg_u32 s{sIt}, 0")
    a(f"s_cbranch_scc1 {name}_maxloop")
    bcast_negmax(vC[0])
    for i in range(16):
        a(f"v_mov_b32 v{O+i}, 0")
    a(f"v_mov_b32 v{vAK}, v{vL16}")
    a(f"s_mul_i32 s60, s{sKh}, {VHALF}")
    a(f"s_add_u32 s60, s60, {VHALF}")
    a(f"v_subrev_u32 v{vAV}, s60, v{vAV}")
    a(f"s_mov_b32 s{sIt}, 64")
    a.label(f"{name}_redo")
    a(f"ds_read_b128 {vr(vK,4)}, v{vAK}")
    a(f"ds_read_b128 {vr(vV0,4)}, v{vAV}")
    a(f"ds_read_b128 {vr(vV1,4)}, v{vAV} offset:{VG}")
    a("s_waitcnt lgkmcnt(0)")
    a(f"v_mfma_f32_32x32x16_bf16 {vr(vS[0],16)}, {vr(vK,4)}, {vr(vQ[0],4)}, {vr(vC[0],16)}")
    a(f"v_add_u32 v{vAK}, 1024, v{vAK}")
    a(f"v_add_u32 v{vAV}, {2*VG}, v{vAV}")
    a("s_nop 15")
    a("s_nop 3")
    for i in range(16):
        a(f"v_exp_f32 v{vT+i}, v{vS[0]+i}")
    a("s_nop 0")
    for i in range(8):
        a(f"v_cvt_pk_bf16_f32 v{vP+i}, v{vT+2*i}, v{vT+2*i+1}")
    a("s_nop 1")
    a(f"v_mfma_f32_32x32x16_bf16 {vr(O,16)}, {vr(vV0,4)}, {vr(vP,4)}, {vr(O,16)}")
    a(f"v_mfma_f32_32x32x16_bf16 {vr(O,16)}, {vr(vV1,4)}, {vr(vP+4,4)}, {vr(O,16)}")
    a(f"s_sub_u32 s{sIt}, s{sIt}, 1")
    a(f"s_cmp_lg_u32 s{sIt}, 0")
    a(f"s_cbranch_scc1 {name}_redo")
    a("s_nop 15")
    a("s_nop 3")
    a(f"s_branch {name}_epi")

def gen_f_part(a, name, base, nvmax, V):
    vLane, vL16, vT0, vT1, vT2, vT3 = V["vLane"], V["vL16"], V["vT0"], V["vT1"], V["vT2"], V["vT3"]
    sF = 54
    a.label(f"{name}_edge")
    sS = 55
    if PAR.get("QDIRECT", 0):
        a("s_cmp_eq_u32 s30, 0")
        a("s_cselect_b32 s58, 1, 0")
        a("s_cmp_lt_u32 s54, 4")
        a("s_cselect_b32 s59, 1, 0")
        a("s_and_b32 s58, s58, s59")
        a(f"s_sub_u32 s{sT0}, s{sW}, 8")
        a(f"s_lshr_b32 s{sT1}, s{sT0}, 1")
        a(f"s_lshl_b32 s{sT1}, s{sT1}, 2")
        a(f"s_and_b32 s{sT2}, s54, 3")
        a(f"s_lshl_b32 s{sT2}, s{sT2}, 3")
        a(f"s_add_u32 s{sT1}, s{sT1}, s{sT2}")
        a(f"s_lshl_b32 s{sT1}, s{sT1}, 16")
        a(f"s_and_b32 s{sT0}, s{sT0}, 1")
        a(f"s_lshl_b32 s{sT0}, s{sT0}, 1")
        a(f"s_lshr_b32 s{sT2}, s52, 5")
        a(f"s_add_u32 s{sT0}, s{sT0}, s{sT2}")
        a(f"s_lshl_b32 s{sT0}, s{sT0}, 10")
        a(f"s_add_u32 s59, s{sT0}, s{sT1}")
        a(f"s_add_u32 s59, s59, {WS_Q}")
        a(f"s_add_u32 s57, s62, {FL_O}")
    a(f"s_sub_u32 s{sF}, s{sW}, 8")
    a("s_setprio 3")
    a(f"v_lshlrev_b32 v{vT0}, 2, v{vLane}")
    a(f"v_add_u32 v{vT0}, {LDS_CNT}, v{vT0}")
    a(f"v_mov_b32 v{vT1}, 0")
    a(f"ds_write_b32 v{vT0}, v{vT1}")
    a("s_waitcnt lgkmcnt(0)")
    a(f"s_or_b32 s{sT0}, s2, s{sF}")
    a(f"s_cmp_lg_u32 s{sT0}, 0")
    a(f"s_cbranch_scc1 {name}_nn")
    a(f"s_memrealtime s[{sT0}:{sT0+1}]")
    a("s_waitcnt lgkmcnt(0)")
    a(f"s_or_b32 s{sT0}, s{sT0}, 1")
    a(f"v_mov_b32 v{vT0}, 0")
    a(f"v_mov_b32 v{vT1}, s{sT0}")
    a("s_mov_b64 exec, 1")
    a(f"global_store_dword v{vT0}, v{vT1}, s[{sDbg}:{sDbg+1}] sc1")
    a("s_mov_b64 exec, -1")
    a.label(f"{name}_nn")
    srd(a, srdWS, sWS, WS_SIZE_USED)
    def emit_poison():
        decode_hq(a)
        vPz = (base + 3) // 4 * 4 - 1
        for i in range(4):
            a(f"v_mov_b32 v{vPz+1+i}, -1")
        a(f"s_lshl_b32 s{sT0}, s{sQb}, 3")
        a(f"s_lshl_b32 s{sT1}, s{sF}, 1")
        a(f"s_add_u32 s{sT0}, s{sT0}, s{sT1}")
        a(f"s_lshl_b32 s{sT0}, s{sT0}, 5")
        a(f"s_add_u32 s{sT0}, s{sT0}, s{sHead}")
        a(f"s_lshl_b32 s{sT0}, s{sT0}, 10")
        a(f"s_add_u32 s{sT0}, s{sT0}, {WS_O}")
        a(f"buffer_store_dwordx4 {vr(vPz+1,4)}, v{vL16}, s[{srdWS}:{srdWS+3}], s{sT0} offen{SC}")
        a(f"s_add_u32 s{sT0}, s{sT0}, 32768")
        a(f"buffer_store_dwordx4 {vr(vPz+1,4)}, v{vL16}, s[{srdWS}:{srdWS+3}], s{sT0} offen{SC}")
        if PAR.get("QDIRECT", 0):
            a("s_cmp_eq_u32 s58, 0")
            a(f"s_cbranch_scc1 {name}_noqp")
            for f_ in range(2):
                for hh in range(2):
                    for t in range(2):
                        a(f"s_add_u32 s{sT0}, s59, {(f_*2+hh)*65536 + t*1024}")
                        a(f"buffer_store_dwordx4 {vr(vPz+1,4)}, v{vL16}, s[{srdWS}:{srdWS+3}], s{sT0} offen{SC}")
            a.label(f"{name}_noqp")
    ER = (base + 7) // 4 * 4 + 4
    if not PAR.get("PLATE", 1): emit_poison()
    EB0, EB1 = PAR.get("EB0", 1), PAR.get("EB1", 3)
    srd(a, srdA, sX, 2048*1024)
    nb = 0
    while nb < EB0:
        a("s_barrier"); nb += 1
    emit_edge_loads(a, name, V, ER, sF, 30)
    while nb < EB1:
        a("s_barrier"); nb += 1
    emit_edge_compute(a, name, V, ER, sF, 30, "p")
    if PAR.get("PLATE", 1): emit_poison()
    while nb < 5:
        a("s_barrier"); nb += 1
    a(f"s_cmp_lg_u32 s{sF}, 0")
    a(f"s_cbranch_scc1 {name}_nn2")
    a(f"v_mov_b32 v{vT0}, 0")
    a(f"s_mov_b32 s{sT1}, {SPIN_MAX}")
    a.label(f"{name}_npoll")
    a(f"global_load_dword v{vT1}, v{vT0}, s[{sDbg}:{sDbg+1}] sc1")
    a("s_waitcnt vmcnt(0)")
    a(f"v_readfirstlane_b32 s{sN}, v{vT1}")
    a(f"s_sub_u32 s{sT1}, s{sT1}, 1")
    a(f"s_cbranch_scc1 {name}_npoll_ok")
    a("s_nop 1")
    a(f"s_cmp_lg_u32 s{sN}, 0")
    a(f"s_cbranch_scc1 {name}_npoll_ok")
    a("s_sleep 1")
    a(f"s_branch {name}_npoll")
    a.label(f"{name}_npoll_ok")
    a(f"v_mov_b32 v{vT0}, {C_NONCE}")
    a(f"v_mov_b32 v{vT1}, s{sN}")
    a(f"ds_write_b32 v{vT0}, v{vT1}")
    a.label(f"{name}_nn2")
    a("s_waitcnt vmcnt(0) lgkmcnt(0)")
    for i in range(5, 9):
        a("s_barrier")
        if i == 5 and PAR.get("QDIRECT", 0):
            a("s_cmp_eq_u32 s58, 0")
            a(f"s_cbranch_scc1 {name}_noqf")
            a(f"s_cmp_lg_u32 s{sF}, 0")
            a(f"s_cbranch_scc1 {name}_noqf")
            publish(a, vT0, vT1, 57)
            a.label(f"{name}_noqf")
    tl_stamp(a, 0)

    Rf = RegAlloc(base, 168)
    vB_ = Rf.alloc("boff"); vY = Rf.alloc("yaddr"); vFl = Rf.alloc("flag")
    accP = Rf.alloc("accP", 16); accQ = Rf.alloc("accQ", 16)
    buf = Rf.alloc("buf", 112)
    vCn = Rf.alloc("cn", 4)
    nvmax[0] = max(nvmax[0], Rf.next)
    sKoff, sVoff = 56, 57
    sTt, sEt, sHasQ, sA, sBq, sK, sJob, sCnt = 58, 59, 60, 61, 62, 63, 30, 31
    decode_hq(a)
    KB = accP
    sPend, sQd, sSlot = 60, 61, 62
    sEd = 30
    a(f"s_mov_b32 s{sEd}, 0")
    a(f"s_lshl_b32 s{sKoff}, s{sHead}, 16")
    a(f"s_add_u32 s{sKoff}, s{sKoff}, {WS_K}")
    a(f"s_cmp_lg_u32 s{sF}, 0")
    a(f"s_cbranch_scc1 {name}_kvld")
    a(f"s_add_u32 s{sT0}, s2, {FL_E}")
    publish(a, vT0, vT1, sT0)
    tl_stamp(a, 1)
    a(f"s_lshr_b32 s{sT0}, s{sHead}, 3")
    a(f"s_lshl_b32 s{sT0}, s{sT0}, 4")
    a(f"v_and_b32 v{vT0}, 15, v{vLane}")
    a(f"v_bfe_u32 v{vT1}, v{vLane}, 4, 1")
    a(f"v_lshlrev_b32 v{vT1}, 6, v{vT1}")
    a(f"v_add_u32 v{vT0}, v{vT0}, v{vT1}")
    a(f"v_add_u32 v{vT0}, 64, v{vT0}")
    a(f"v_and_b32 v{vT1}, 1, v{vLane}")
    a(f"s_lshl_b32 s{sT1}, s{sQb}, 1")
    if PAR.get("QDIRECT", 0): a(f"s_add_u32 s{sT1}, s{sT1}, {FL_O}")
    a(f"v_add_u32 v{vT1}, s{sT1}, v{vT1}")
    a(f"v_cmp_gt_u32 vcc, 32, v{vLane}")
    a("s_nop 1")
    a(f"v_cndmask_b32 v{vT0}, v{vT1}, v{vT0}, vcc")
    a(f"v_add_u32 v{vT0}, s{sT0}, v{vT0}")
    a(f"v_lshlrev_b32 v{vFl}, {FSH}, v{vT0}")
    a(f"v_add_u32 v{vFl}, {WS_FLAG}, v{vFl}")
    a(f"s_mov_b32 s{sPend}, 0xffff")
    a(f"s_mov_b32 s{sQd}, 0")
    a(f"s_mov_b32 s{sSlot}, 0")
    a(f"s_mov_b32 s{sCnt}, {SPIN_MAX}")
    a.label(f"{name}_dpoll")
    a(f"global_load_dword v{vT0}, v{vFl}, s[{sWS}:{sWS+1}] sc1")
    a("s_waitcnt vmcnt(0)")
    a(f"v_cmp_eq_u32 vcc, s{sN}, v{vT0}")
    a(f"s_sub_u32 s{sCnt}, s{sCnt}, 1")
    a(f"s_cbranch_scc0 {name}_dnt")
    a("s_mov_b64 vcc, -1")
    a.label(f"{name}_dnt")
    a("s_nop 2")
    a(f"s_mov_b32 s56, vcc_lo")
    a(f"s_mov_b32 s57, vcc_hi")
    a(f"s_cmp_lg_u32 s{sQd}, 0")
    a(f"s_cbranch_scc1 {name}_dq")
    a(f"s_cmp_lg_u32 s57, -1")
    a(f"s_cbranch_scc1 {name}_dq")
    a(f"s_mov_b32 s{sQd}, 1")
    tl_stamp(a, 2)
    if TL["on"]: a("s_waitcnt lgkmcnt(0)")
    lsig(a, vT0, vT1, C_GO)
    a.label(f"{name}_dq")
    a(f"s_lshr_b32 s{sT0}, s56, 16")
    a(f"s_and_b32 s{sT0}, s{sT0}, s56")
    a(f"s_and_b32 s{sT0}, s{sT0}, s{sPend}")
    a(f"s_cmp_eq_u32 s{sT0}, 0")
    a(f"s_cbranch_scc1 {name}_dnone")
    a(f"s_andn2_b32 s{sPend}, s{sPend}, s{sT0}")
    a.label(f"{name}_dq1")
    a(f"s_ff1_i32_b32 s{sT1}, s{sT0}")
    a(f"s_bitset0_b32 s{sT0}, s{sT1}")
    a(f"s_add_u32 s{sT1}, s{sT1}, 1")
    a(f"s_lshl_b32 s{sT2}, s{sSlot}, 2")
    a(f"s_add_u32 s{sT2}, s{sT2}, {C_QUE}")
    a(f"v_mov_b32 v{vT0}, s{sT2}")
    a(f"v_mov_b32 v{vT1}, s{sT1}")
    a(f"ds_write_b32 v{vT0}, v{vT1}")
    a(f"s_add_u32 s{sSlot}, s{sSlot}, 1")
    a(f"s_cmp_lg_u32 s{sT0}, 0")
    a(f"s_cbranch_scc1 {name}_dq1")
    a.label(f"{name}_dnone")
    a(f"s_cmp_eq_u32 s{sQd}, 0")
    a(f"s_cbranch_scc1 {name}_dagain")
    a(f"s_cmp_eq_u32 s{sPend}, 0")
    a(f"s_cbranch_scc1 {name}_kvdone")
    a.label(f"{name}_dagain")
    a(f"s_sleep {PAR.get('DSLEEP', 4)}")
    a(f"s_branch {name}_dpoll")
    a.label(f"{name}_kvld")
    read_nonce(a, vT0, vT1)
    vVw, vCa, vCa2, vCd = KB + 40, KB + 41, KB + 42, KB + 44
    a(f"v_lshrrev_b32 v{vT0}, 5, v{vLane}")
    a(f"v_mul_u32_u24 v{vT0}, {VG}, v{vT0}")
    a(f"v_and_b32 v{vT1}, 31, v{vLane}")
    a(f"v_lshlrev_b32 v{vT1}, 4, v{vT1}")
    a(f"v_add_u32 v{vVw}, v{vT0}, v{vT1}")
    a(f"v_lshrrev_b32 v{vT0}, 1, v{vLane}")
    a(f"v_mul_u32_u24 v{vT0}, {VG}, v{vT0}")
    a(f"v_and_b32 v{vT1}, 1, v{vLane}")
    a(f"v_lshlrev_b32 v{vT2}, 4, v{vT1}")
    a(f"v_add_u32 v{vT0}, v{vT0}, v{vT2}")
    a(f"v_add_u32 v{vCa}, 512, v{vT0}")
    a(f"v_cmp_eq_u32 vcc, 0, v{vT1}")
    a(f"v_mov_b32 v{vT0}, 0x3f803f80")
    a("s_nop 0")
    for i in range(4):
        a(f"v_cndmask_b32 v{vCd+i}, 0, v{vT0}, vcc")
    a(f"s_sub_u32 s{sSlot}, s{sF}, 1")
    a.label(f"{name}_kvnext")
    a(f"s_lshl_b32 s{sT2}, s{sSlot}, 2")
    a(f"s_add_u32 s63, s{sT2}, {C_QUE}")
    lwait(a, vT0, vT1, sT0, "s63", 1, f"{name}_kvwq", sleep=1)
    a(f"s_sub_u32 s{sT0}, s{sT0}, 1")
    a(f"s_and_b32 s{sT0}, s{sT0}, 15")
    a(f"s_lshl_b32 s{sT0}, s{sT0}, 12")
    a(f"s_add_u32 s{sT0}, s{sT0}, s{sKoff}")
    for t in range(4):
        a(f"s_add_u32 s{sT1}, s{sT0}, {t*1024}")
        a(f"buffer_load_dwordx4 {vr(KB+4*t,4)}, v{vL16}, s[{srdWS}:{srdWS+3}], s{sT1} offen{SC}")
        a(f"s_add_u32 s{sT1}, s{sT1}, {WS_V - WS_K}")
        a(f"buffer_load_dwordx4 {vr(KB+16+4*t,4)}, v{vL16}, s[{srdWS}:{srdWS+3}], s{sT1} offen{SC}")
    a(f"s_and_b32 s{sT1}, s{sSlot}, 1")
    a(f"s_lshr_b32 s{sT2}, s{sSlot}, 1")
    a(f"s_mul_i32 s58, s{sT1}, {VHALF}")
    a(f"s_mul_i32 s59, s{sT2}, {8*VG}")
    a(f"s_add_u32 s58, s58, s59")
    a(f"s_add_u32 s58, s58, 65536")
    a(f"s_lshl_b32 s{sT1}, s{sT1}, 15")
    a(f"s_lshl_b32 s{sT2}, s{sT2}, 12")
    a(f"s_add_u32 s{sT1}, s{sT1}, s{sT2}")
    a(f"v_add_u32 v{vT2}, s{sT1}, v{vL16}")
    a(f"v_add_u32 v{vT3}, s58, v{vVw}")
    a(f"v_add_u32 v{vCa2}, s58, v{vCa}")
    a(f"s_lshl_b32 s{sT0}, s{sSlot}, 2")
    a(f"s_add_u32 s{sT0}, s{sT0}, {C_RDY}")
    a(f"v_mov_b32 v{vT0}, s{sT0}")
    a(f"v_mov_b32 v{vT1}, 1")
    a("s_mov_b32 exec_lo, 0xffff")
    a("s_mov_b32 exec_hi, 0")
    a(f"ds_write_b128 v{vCa2}, {vr(vCd,4)}")
    a("s_mov_b64 exec, -1")
    a("s_waitcnt vmcnt(0)")
    for t in range(4):
        a(f"ds_write_b128 v{vT2}, {vr(KB+4*t,4)} offset:{t*1024}")
        a(f"ds_write_b128 v{vT3}, {vr(KB+16+4*t,4)} offset:{t*2*VG}")
    a("s_waitcnt lgkmcnt(0)")
    a(f"ds_write_b32 v{vT0}, v{vT1}")
    a(f"s_cmp_lg_u32 s{sEd}, 1")
    a(f"s_cbranch_scc1 {name}_kvne")
    a(f"s_cmp_ge_u32 s{sF}, 3")
    a(f"s_cbranch_scc1 {name}_kvne")
    a(f"v_and_b32 v{vT0}, 31, v{vLane}")
    a(f"s_lshl_b32 s{sT0}, s{sHead}, 5")
    a(f"v_add_u32 v{vT0}, s{sT0}, v{vT0}")
    a(f"v_lshlrev_b32 v{vT0}, 12, v{vT0}")
    a(f"v_lshrrev_b32 v{vT1}, 5, v{vLane}")
    a(f"s_lshl_b32 s{sT0}, s{sQb}, 1")
    a(f"v_add_u32 v{vT1}, s{sT0}, v{vT1}")
    a(f"v_lshlrev_b32 v{vT1}, 7, v{vT1}")
    a(f"v_add_u32 v{vT0}, v{vT0}, v{vT1}")
    a(f"s_cmp_eq_u32 s{sF}, 1")
    a(f"s_cselect_b32 s{sT0}, s{sSre}, s{sSim}")
    a(f"s_cselect_b32 s{sT1}, s{sSre+1}, s{sSim+1}")
    a(f"global_load_dword v{KB+96}, v{vT0}, s[{sT0}:{sT0+1}]")
    a.label(f"{name}_kvne")
    a(f"s_add_u32 s{sEd}, s{sEd}, 1")
    a(f"s_add_u32 s{sSlot}, s{sSlot}, 3")
    a(f"s_cmp_lt_u32 s{sSlot}, 16")
    a(f"s_cbranch_scc1 {name}_kvnext")
    a.label(f"{name}_kvdone")
    tl_stamp(a, 3)
    srd(a, srdA, sSre, 2048*4096)
    srd(a, srdB, sSim, 2048*4096)
    srd(a, srdC, sWo, 512*1024)
    a(f"s_lshl_b32 s{sT0}, s{sQb}, 7")
    a(f"s_lshl_b32 s{sT1}, s{sF}, 17")
    a(f"s_add_u32 s{sT0}, s{sT0}, s{sT1}")
    a(f"v_lshlrev_b32 v{vT0}, 10, v{vLane}")
    a(f"buffer_load_dword v{vT3}, v{vT0}, s[{srdC}:{srdC+3}], s{sT0} offen")
    a(f"s_add_u32 s{sT0}, s{sT0}, 65536")
    a(f"buffer_load_dword v{vT3}, v{vT0}, s[{srdC}:{srdC+3}], s{sT0} offen")
    a(f"s_cmp_lg_u32 s{sF}, 0")
    a(f"s_cbranch_scc1 {name}_fnz2")
    a(f"v_lshlrev_b32 v{vFl}, {FSH}, v{vLane}")
    a(f"v_add_u32 v{vFl}, {WS_FLAG + (FL_F1 << FSH)}, v{vFl}")
    a(f"s_mov_b32 s{sCnt}, {SPIN_MAX}")
    a.label(f"{name}_g1")
    a(f"global_load_dword v{buf}, v{vFl}, s[{sWS}:{sWS+1}] sc1")
    for i in range(4):
        a(f"v_add_u32 v{buf+8}, {((FL_E - FL_F1 + 64*i) << FSH)}, v{vFl}")
        a(f"global_load_dword v{buf+1+i}, v{buf+8}, s[{sWS}:{sWS+1}] sc1")
    a("s_waitcnt vmcnt(0)")
    a(f"v_cmp_ne_u32 vcc, s{sN}, v{buf}")
    for i in range(4):
        a(f"v_cmp_ne_u32 s[{sT0}:{sT0+1}], s{sN}, v{buf+1+i}")
        a("s_nop 1")
        a(f"s_or_b64 vcc, vcc, s[{sT0}:{sT0+1}]")
    a(f"s_sub_u32 s{sCnt}, s{sCnt}, 1")
    a(f"s_cbranch_scc1 {name}_g1_ok")
    a("s_nop 2")
    a(f"s_cbranch_vccz {name}_g1_ok")
    a("s_sleep 8")
    a(f"s_branch {name}_g1")
    a.label(f"{name}_g1_ok")
    lsig(a, vT0, vT1, C_GO2)
    a(f"s_branch {name}_fgo2")
    a.label(f"{name}_fnz2")
    lwait(a, vT0, vT1, sT0, C_GO2, 1, f"{name}_fwgo2", sleep=8)
    a.label(f"{name}_fgo2")
    tl_stamp(a, 4)

    accX = buf; accW = buf + 16; fb = buf + 32
    a(f"s_mov_b32 s{sTt}, s{sHead}")
    a(f"s_mov_b32 s{sEt}, s{sQb}")
    a(f"v_and_b32 v{vT0}, 31, v{vLane}")
    a(f"s_lshl_b32 s{sT0}, s{sTt}, 5")
    a(f"v_add_u32 v{vT0}, s{sT0}, v{vT0}")
    a(f"v_mul_u32_u24 v{vY}, {Y_STRIDE}, v{vT0}")
    a(f"v_lshlrev_b32 v{vT0}, 12, v{vT0}")
    a(f"v_lshrrev_b32 v{vT1}, 5, v{vLane}")
    a(f"v_lshlrev_b32 v{vT1}, 4, v{vT1}")
    a(f"v_add_u32 v{vB_}, v{vT0}, v{vT1}")
    a(f"v_add_u32 v{vY}, v{vY}, v{vT1}")
    for i in range(16):
        a(f"v_mov_b32 v{accP+i}, 0")
        a(f"v_mov_b32 v{accQ+i}, 0")
        a(f"v_mov_b32 v{accX+i}, 0")
        a(f"v_mov_b32 v{accW+i}, 0")
    for i in range(4):
        a(f"v_mov_b32 v{vCn+i}, 0xbf803f80")
    a(f"s_lshl_b32 s{sK}, s{sF}, 4")
    a(f"s_mul_i32 s{sA}, s{sEt}, {A_KSTEPS}")
    a(f"s_add_u32 s{sA}, s{sA}, s{sK}")
    a(f"s_lshl_b32 s{sA}, s{sA}, 10")
    a(f"s_add_u32 s{sA}, s{sA}, {WS_A}")
    a(f"s_add_u32 s{sHasQ}, s{sK}, {8*A_KSTEPS}")
    a(f"s_lshl_b32 s{sHasQ}, s{sHasQ}, 10")
    a(f"s_add_u32 s{sHasQ}, s{sHasQ}, {WS_A}")
    sA8 = sHasQ
    a(f"s_mul_i32 s{sBq}, s{sEt}, {B_KSTEPS}")
    a(f"s_add_u32 s{sBq}, s{sBq}, s{sK}")
    a(f"s_lshl_b32 s{sBq}, s{sBq}, 10")
    a(f"s_add_u32 s{sBq}, s{sBq}, {WS_B}")
    a(f"s_lshl_b32 s{sK}, s{sK}, 5")
    a(f"s_cmp_eq_u32 s{sEt}, 0")
    a(f"s_cselect_b32 s{sJob}, 1, 0")
    a(f"s_cmp_eq_u32 s{sTt}, 0")
    a(f"s_cselect_b32 s{sT0}, 2, 0")
    a(f"s_or_b32 s{sJob}, s{sJob}, s{sT0}")
    a(f"s_cmp_eq_u32 s2, 8")
    a(f"s_cselect_b32 s{sT0}, 4, 0")
    a(f"s_or_b32 s{sJob}, s{sJob}, s{sT0}")
    vm = Vm(a)
    NFL = 4
    def ld_k(k, slot, withq=True):
        r = fb + slot * 20
        a(f"s_add_u32 s{sT0}, s{sA}, {k*1024}")
        a(f"buffer_load_dwordx4 {vr(r,4)}, v{vL16}, s[{srdWS}:{srdWS+3}], s{sT0} offen{SC}")
        a(f"s_add_u32 s{sT0}, s{sK}, {k*32}")
        a(f"buffer_load_dwordx4 {vr(r+4,4)}, v{vB_}, s[{srdA}:{srdA+3}], s{sT0} offen")
        a(f"s_add_u32 s{sT0}, s{sA8}, {k*1024}")
        a(f"buffer_load_dwordx4 {vr(r+16,4)}, v{vL16}, s[{srdWS}:{srdWS+3}], s{sT0} offen{SC}")
        n = 3
        if withq:
            a(f"s_add_u32 s{sT0}, s{sBq}, {k*1024}")
            a(f"buffer_load_dwordx4 {vr(r+8,4)}, v{vL16}, s[{srdWS}:{srdWS+3}], s{sT0} offen{SC}")
            a(f"s_add_u32 s{sT0}, s{sK}, {k*32}")
            a(f"buffer_load_dwordx4 {vr(r+12,4)}, v{vB_}, s[{srdB}:{srdB+3}], s{sT0} offen")
            n = 5
        vm.issue(k, n)
    lab = [0]
    def mf_k(slot, withq=True):
        r = fb + slot * 20
        lab[0] += 1
        L = f"{name}_fm{lab[0]}"
        a(f"v_mfma_f32_32x32x16_bf16 {vr(accP,16)}, {vr(r,4)}, {vr(r+4,4)}, {vr(accP,16)}")
        if withq:
            a(f"v_mfma_f32_32x32x16_bf16 {vr(accQ,16)}, {vr(r+8,4)}, {vr(r+12,4)}, {vr(accQ,16)}")
        a(f"s_cmp_eq_u32 s{sJob}, 0")
        a(f"s_cbranch_scc1 {L}c")
        a(f"s_bitcmp1_b32 s{sJob}, 0")
        a(f"s_cbranch_scc0 {L}a")
        a(f"v_mfma_f32_32x32x16_bf16 {vr(accX,16)}, {vr(r+16,4)}, {vr(r+4,4)}, {vr(accX,16)}")
        a.label(f"{L}a")
        a(f"s_bitcmp1_b32 s{sJob}, 1")
        a(f"s_cbranch_scc0 {L}b")
        a(f"v_mfma_f32_32x32x16_bf16 {vr(accW,16)}, {vr(r,4)}, {vr(vCn,4)}, {vr(accW,16)}")
        a.label(f"{L}b")
        a(f"s_bitcmp1_b32 s{sJob}, 2")
        a(f"s_cbranch_scc0 {L}c")
        a(f"v_mfma_f32_32x32x16_bf16 {vr(accW,16)}, {vr(r+16,4)}, {vr(vCn,4)}, {vr(accW,16)}")
        a.label(f"{L}c")
    if EXP.get("nof2"): a(f"s_branch {name}_fnox")
    for k in range(NFL): ld_k(k, k)
    for k in range(16):
        vm.wait(k)
        mf_k(k % NFL)
        if k + NFL < 16:
            a("s_nop 4")
            ld_k(k + NFL, k % NFL)
    a(f"s_cmp_lg_u32 s{sF}, 0")
    a(f"s_cbranch_scc1 {name}_fnox")
    a("s_nop 4")
    vm = Vm(a)
    ld_k(64, 0, withq=False)
    a("s_waitcnt vmcnt(0)")
    mf_k(0, withq=False)
    a.label(f"{name}_fnox")
    a("s_nop 15")
    a("s_nop 3")
    for i in range(16):
        a(f"v_sub_f32 v{fb+i}, v{accP+i}, v{accQ+i}")
        a(f"v_add_f32 v{accQ+i}, v{accP+i}, v{accQ+i}")
    for i in range(16):
        a(f"v_mov_b32 v{accP+i}, v{fb+i}")
    WA = 8192 + 256 + 256
    a(f"s_cmp_eq_u32 s{sF}, 0")
    a(f"s_cbranch_scc1 {name}_fred0")
    a(f"s_sub_u32 s{sT0}, s{sF}, 1")
    a(f"s_mul_i32 s{sT0}, s{sT0}, {WA}")
    a(f"s_add_u32 s{sT0}, s{sT0}, {LDS_RED}")
    a(f"v_add_u32 v{vT0}, s{sT0}, v{vL16}")
    for q in range(8):
        a(f"ds_write_b128 v{vT0}, {vr(accP+4*q,4)} offset:{q*1024}")
    a(f"v_lshrrev_b32 v{vT1}, 2, v{vL16}")
    a(f"v_add_u32 v{vT1}, s{sT0}, v{vT1}")
    a(f"ds_write_b32 v{vT1}, v{accX} offset:8192")
    a(f"v_lshrrev_b32 v{vT1}, 5, v{vLane}")
    a(f"v_lshlrev_b32 v{vT1}, 6, v{vT1}")
    a(f"v_add_u32 v{vT1}, s{sT0}, v{vT1}")
    a("s_mov_b32 exec_lo, 1")
    a("s_mov_b32 exec_hi, 1")
    for q in range(4):
        a(f"ds_write_b128 v{vT1}, {vr(accW+4*q,4)} offset:{8192 + 256 + q*16}")
    a("s_mov_b64 exec, -1")
    a("s_waitcnt lgkmcnt(0)")
    lsig(a, vT0, vT1, C_R0)
    a(f"s_branch {name}_fsig")
    a.label(f"{name}_fred0")
    lwait(a, vT0, vT1, sT0, C_R0, 3, f"{name}_fw0", sleep=2)
    a(f"v_add_u32 v{vT0}, {LDS_RED}, v{vL16}")
    a(f"v_lshrrev_b32 v{vT2}, 2, v{vL16}")
    a(f"v_add_u32 v{vT2}, {LDS_RED}, v{vT2}")
    a(f"v_lshrrev_b32 v{vT1}, 5, v{vLane}")
    a(f"v_lshlrev_b32 v{vT1}, 6, v{vT1}")
    a(f"v_add_u32 v{vT1}, {LDS_RED}, v{vT1}")
    for src in range(3):
        for q in range(8):
            a(f"ds_read_b128 {vr(fb+4*q,4)}, v{vT0} offset:{src*WA + q*1024}")
        a(f"ds_read_b32 v{fb+32}, v{vT2} offset:{src*WA + 8192}")
        for q in range(4):
            a(f"ds_read_b128 {vr(fb+36+4*q,4)}, v{vT1} offset:{src*WA + 8192 + 256 + q*16}")
        a("s_waitcnt lgkmcnt(0)")
        for i in range(32):
            a(f"v_add_f32 v{accP+i}, v{accP+i}, v{fb+i}")
        a(f"v_add_f32 v{accX}, v{accX}, v{fb+32}")
        for i in range(16):
            a(f"v_add_f32 v{accW+i}, v{accW+i}, v{fb+36+i}")
    a(f"s_lshl_b32 s{sT0}, s{sEt}, 7")
    for g in range(4):
        a(f"s_add_u32 s{sT2}, s{sT0}, {WS_D + g*32}")
        a(f"buffer_store_dwordx4 {vr(accP+4*g,4)}, v{vY}, s[{srdWS}:{srdWS+3}], s{sT2} offen{SC}")
        a(f"s_add_u32 s{sT2}, s{sT0}, {WS_E + g*32}")
        a(f"buffer_store_dwordx4 {vr(accQ+4*g,4)}, v{vY}, s[{srdWS}:{srdWS+3}], s{sT2} offen{SC}")
    a(f"s_bitcmp1_b32 s{sJob}, 0")
    a(f"s_cbranch_scc0 {name}_fo1")
    a("s_mov_b32 exec_hi, 0")
    a(f"s_mov_b32 s{sT2}, {WS_D + 1024}")
    a(f"buffer_store_dword v{accX}, v{vY}, s[{srdWS}:{srdWS+3}], s{sT2} offen{SC}")
    a(f"s_mov_b32 s{sT2}, {WS_E + 1024}")
    a(f"buffer_store_dword v{accX}, v{vY}, s[{srdWS}:{srdWS+3}], s{sT2} offen{SC}")
    a("s_mov_b64 exec, -1")
    a.label(f"{name}_fo1")
    a(f"s_bitcmp1_b32 s{sJob}, 1")
    a(f"s_cbranch_scc0 {name}_fo2")
    a(f"v_lshrrev_b32 v{vT1}, 5, v{vLane}")
    a(f"v_lshlrev_b32 v{vT1}, 4, v{vT1}")
    a("s_mov_b32 exec_lo, 1")
    a("s_mov_b32 exec_hi, 1")
    for g in range(4):
        a(f"s_add_u32 s{sT2}, s{sT0}, {WS_D + 1024*Y_STRIDE + g*32}")
        a(f"buffer_store_dwordx4 {vr(accW+4*g,4)}, v{vT1}, s[{srdWS}:{srdWS+3}], s{sT2} offen{SC}")
        a(f"s_add_u32 s{sT2}, s{sT0}, {WS_E + 1024*Y_STRIDE + g*32}")
        a(f"buffer_store_dwordx4 {vr(accW+4*g,4)}, v{vT1}, s[{srdWS}:{srdWS+3}], s{sT2} offen{SC}")
    a("s_mov_b64 exec, -1")
    a.label(f"{name}_fo2")
    a(f"s_bitcmp1_b32 s{sJob}, 2")
    a(f"s_cbranch_scc0 {name}_fo3")
    a(f"v_mov_b32 v{vT1}, 0")
    a("s_mov_b64 exec, 1")
    a(f"s_mov_b32 s{sT2}, {WS_D + 1024*Y_STRIDE + 1024}")
    a(f"buffer_store_dword v{accW}, v{vT1}, s[{srdWS}:{srdWS+3}], s{sT2} offen{SC}")
    a(f"s_mov_b32 s{sT2}, {WS_E + 1024*Y_STRIDE + 1024}")
    a(f"buffer_store_dword v{accW}, v{vT1}, s[{srdWS}:{srdWS+3}], s{sT2} offen{SC}")
    a("s_mov_b64 exec, -1")
    a.label(f"{name}_fo3")
    lsig(a, vT0, vT1, C_R1)
    a("s_waitcnt vmcnt(0)")
    a(f"s_add_u32 s{sT0}, s2, {FL_D}")
    publish(a, vT0, vT1, sT0)
    a.label(f"{name}_fsig")
    tl_stamp(a, 5)

    Rp = RegAlloc(base, 168)
    vWa = [Rp.alloc("wa0"), Rp.alloc("wa1")]
    vG2 = Rp.alloc("g"); vYa = Rp.alloc("ya"); vOffW = Rp.alloc("offw"); vFl2 = Rp.alloc("fl")
    vYv = Rp.alloc("y", 16)
    fO = Rp.alloc("fO", 64)
    NS = 3
    fW = [Rp.alloc(f"fW{i}", 8) for i in range(NS)]
    acc = [Rp.alloc("acc0", 16), Rp.alloc("acc1", 16)]
    nvmax[0] = max(nvmax[0], Rp.next)
    sTb, sEb, sTt2, sKh2, sT0row, sE0, sMirE = 56, 57, 58, 59, 60, 61, 62
    a(f"s_mov_b32 s{sTb}, s{sHead}")
    a(f"s_mov_b32 s{sEb}, s{sQb}")
    a(f"s_and_b32 s{sTt2}, s{sF}, 1")
    a(f"s_lshr_b32 s{sKh2}, s{sF}, 1")
    a(f"s_lshl_b32 s{sT0}, s{sTt2}, 5")
    a(f"s_lshl_b32 s{sT0row}, s{sTb}, 6")
    a(f"s_add_u32 s{sT0row}, s{sT0row}, s{sT0}")
    a(f"s_lshl_b32 s{sT0}, s{sKh2}, 5")
    a(f"s_lshl_b32 s{sE0}, s{sEb}, 6")
    a(f"s_add_u32 s{sE0}, s{sE0}, s{sT0}")
    srd(a, srdA, sOut, 2048*1024)
    a(f"v_lshrrev_b32 v{vT0}, 3, v{vLane}")
    a(f"v_lshlrev_b32 v{vOffW}, 10, v{vT0}")
    a(f"v_bfe_u32 v{vT1}, v{vLane}, 4, 1")
    a(f"v_bfe_u32 v{vT2}, v{vLane}, 2, 1")
    a(f"v_xor_b32 v{vT1}, v{vT1}, v{vT2}")
    a(f"v_lshlrev_b32 v{vT1}, 6, v{vT1}")
    a(f"v_add_u32 v{vOffW}, v{vOffW}, v{vT1}")
    a(f"v_and_b32 v{vT1}, 3, v{vLane}")
    a(f"v_lshlrev_b32 v{vT1}, 4, v{vT1}")
    a(f"v_add_u32 v{vOffW}, v{vOffW}, v{vT1}")
    a(f"v_bfe_u32 v{vT0}, v{vLane}, 2, 2")
    a(f"v_lshrrev_b32 v{vT1}, 5, v{vLane}")
    a(f"v_lshlrev_b32 v{vT1}, 2, v{vT1}")
    a(f"v_add_u32 v{vT0}, v{vT0}, v{vT1}")
    a(f"v_lshlrev_b32 v{vT0}, 7, v{vT0}")
    a(f"v_bfe_u32 v{vT1}, v{vLane}, 4, 1")
    a(f"v_lshlrev_b32 v{vT1}, 5, v{vT1}")
    a(f"v_add_u32 v{vT0}, v{vT0}, v{vT1}")
    a(f"v_and_b32 v{vT1}, 3, v{vLane}")
    a(f"v_lshlrev_b32 v{vT1}, 3, v{vT1}")
    a(f"v_add_u32 v{vT0}, v{vT0}, v{vT1}")
    a(f"s_lshl_b32 s{sT0}, s{sKh2}, 15")
    a(f"v_add_u32 v{vT0}, s{sT0}, v{vT0}")
    a(f"v_bfe_u32 v{vT1}, v{vLane}, 3, 1")
    for et in range(2):
        a(f"v_xor_b32 v{vT2}, {et}, v{vT1}")
        a(f"v_lshlrev_b32 v{vT2}, 6, v{vT2}")
        a(f"v_add_u32 v{vWa[et]}, v{vT0}, v{vT2}")
    a(f"v_and_b32 v{vT0}, 31, v{vLane}")
    a(f"v_add_u32 v{vT0}, s{sT0row}, v{vT0}")
    a(f"v_lshlrev_b32 v{vG2}, 2, v{vT0}")
    a(f"v_sub_u32 v{vT1}, 2048, v{vT0}")
    a(f"s_cmp_lt_u32 s{sT0row}, 1024")
    a("s_cselect_b64 vcc, -1, 0")
    a(f"s_cselect_b32 s{sT2}, 1, 0")
    a(f"v_cndmask_b32 v{vT1}, v{vT1}, v{vT0}, vcc")
    a(f"v_mul_u32_u24 v{vYa}, {Y_STRIDE}, v{vT1}")
    a(f"v_lshrrev_b32 v{vT1}, 5, v{vLane}")
    a(f"v_lshlrev_b32 v{vT1}, 4, v{vT1}")
    a(f"s_cmp_lt_u32 s{sE0}, 256")
    a(f"s_cselect_b32 s{sMirE}, 0, 1")
    a(f"s_cselect_b32 s63, 1, 0")
    a(f"s_cbranch_scc0 {name}_mir")
    a(f"v_add_u32 v{vYa}, v{vYa}, v{vT1}")
    a(f"s_lshl_b32 s{sT1}, s{sE0}, 2")
    a(f"s_branch {name}_ya")
    a.label(f"{name}_mir")
    a(f"s_sub_u32 s{sT1}, 485, s{sE0}")
    a(f"s_lshl_b32 s{sT1}, s{sT1}, 2")
    a(f"v_add_u32 v{vYa}, s{sT1}, v{vYa}")
    a(f"v_sub_u32 v{vYa}, v{vYa}, v{vT1}")
    a(f"s_mov_b32 s{sT1}, 0")
    a.label(f"{name}_ya")
    a(f"s_cmp_eq_u32 s{sT2}, s63")
    a(f"s_mov_b32 s{sT3}, {WS_E}")
    a(f"s_cselect_b32 s{sT2}, {WS_D}, s{sT3}")
    a(f"s_add_u32 s63, s{sT1}, s{sT2}")
    for e in range(2):
        for i in range(16):
            a(f"v_mov_b32 v{acc[e]+i}, 0")
    a(f"s_lshl_b32 s{sT0}, s{sKh2}, 8")
    a(f"s_lshl_b32 s{sT1}, s{sTt2}, 7")
    a(f"s_add_u32 s{sT0}, s{sT0}, s{sT1}")
    a(f"s_lshl_b32 s30, s{sT0}, 7")
    a(f"s_lshl_b32 s{sT0}, s{sT0}, 10")
    a(f"s_lshl_b32 s{sT1}, s{sEb}, 7")
    a(f"s_add_u32 s{sT2}, s{sT0}, s{sT1}")
    for m in range(16):
        a(f"s_add_u32 s{sT1}, s{sT2}, {m*8192}")
        a(f"buffer_load_dwordx4 {vr(fO+4*m,4)}, v{vOffW}, s[{srdC}:{srdC+3}], s{sT1} offen")
    a(f"s_cmp_lg_u32 s{sF}, 0")
    a(f"s_cbranch_scc1 {name}_c1")
    a(f"v_lshlrev_b32 v{vFl2}, {FSH}, v{vLane}")
    a(f"v_add_u32 v{vFl2}, {WS_FLAG + (FL_D << FSH)}, v{vFl2}")
    gpoll_multi(a, vFl2, vYv, 4, 64 << FSH, f"{name}_gd", sCnt, sleep=8)
    lsig(a, vT0, vT1, C_GO3)
    a(f"s_branch {name}_c2")
    a.label(f"{name}_c1")
    lwait(a, vT0, vT1, sT0, C_GO3, 1, f"{name}_cw1", sleep=16)
    a.label(f"{name}_c2")
    a(f"s_mov_b32 s{sT1}, {WS_G}")
    a(f"buffer_load_dword v{vG2}, v{vG2}, s[{srdWS}:{srdWS+3}], s{sT1} offen{SC}")
    for c in range(4):
        a(f"buffer_load_dwordx4 {vr(vYv+4*c,4)}, v{vYa}, s[{srdWS}:{srdWS+3}], s63 offen offset:{c*32}{SC}")
    tl_stamp(a, 6)
    a(f"v_and_b32 v{vT0}, 31, v{vLane}")
    a(f"s_lshr_b32 s{sT0}, s{sHead}, 2")
    a(f"s_lshl_b32 s{sT0}, s{sT0}, 5")
    a(f"v_add_u32 v{vT0}, s{sT0}, v{vT0}")
    a(f"v_lshlrev_b32 v{vFl2}, {FSH}, v{vT0}")
    a(f"v_add_u32 v{vFl2}, {WS_FLAG + (FL_O << FSH)}, v{vFl2}")
    a(f"v_add_u32 v{vOffW}, s30, v{vL16}")
    a(f"s_lshl_b32 s{sT0}, s{sTb}, 1")
    a(f"s_add_u32 s{sT0}, s{sT0}, s{sTt2}")
    a(f"s_lshl_b32 s{sT0}, s{sT0}, 5")
    a(f"s_lshl_b32 s{sT1}, s{sKh2}, 4")
    a(f"s_add_u32 s{sT0}, s{sT0}, s{sT1}")
    a(f"s_lshl_b32 s{sT0}, s{sT0}, 10")
    a(f"s_add_u32 s30, s{sT0}, {WS_O}")
    a("s_waitcnt vmcnt(0)")
    lwait(a, vT0, vT1, sT0, C_ADONE, 8, f"{name}_cw2", sleep=3)
    tl_stamp(a, 7)
    for m in range(16):
        a(f"ds_write_b128 v{vOffW}, {vr(fO+4*m,4)} offset:{m*1024}")
    a("s_waitcnt lgkmcnt(0)")
    a(f"s_lshl_b32 s{sT0}, s{sKh2}, 2")
    a(f"s_add_u32 s31, s{sT0}, {C_W}")
    lsig(a, vT0, vT1, "s31")
    tl_stamp(a, 1)
    if not PAR.get("ODIRECT", 0):
        a(f"s_cmp_lg_u32 s{sF}, 0")
        a(f"s_cbranch_scc1 {name}_c3")
        gpoll(a, vFl2, vT0, f"{name}_go", 55, sleep=2)
        lsig(a, vT0, vT1, C_GO3)
        a(f"s_branch {name}_c4")
        a.label(f"{name}_c3")
        lwait(a, vT0, vT1, sT0, C_GO3, 2, f"{name}_cw3", sleep=1)
        a.label(f"{name}_c4")
    tl_stamp(a, 8)
    a(f"s_mov_b32 s55, {PAR.get('ORETRY', 32)}")
    a.label(f"{name}_oload")
    for i in range(16):
        a(f"s_add_u32 s{sT1}, s30, {i*1024}")
        a(f"buffer_load_dwordx4 {vr(fO+4*i,4)}, v{vL16}, s[{srdWS}:{srdWS+3}], s{sT1} offen{SC}")
    def wreads(i):
        s_ = i % NS
        for et in range(2):
            for u in range(2):
                a(f"ds_read_b64_tr_b16 {vr(fW[s_]+4*et+2*u,2)}, v{vWa[et]} offset:{i*2048 + u*1024}")
    if PAR.get("OCHK", 0):
        a(f"v_mov_b32 v{vFl2}, 0")
        for i in range(16):
            a(f"s_waitcnt vmcnt({15-i})")
            a(f"v_max3_u32 v{vFl2}, v{vFl2}, v{fO+4*i}, v{fO+4*i+1}")
            a(f"v_max3_u32 v{vFl2}, v{vFl2}, v{fO+4*i+2}, v{fO+4*i+3}")
        a(f"v_cmp_eq_u32 vcc, -1, v{vFl2}")
        a("s_nop 4")
        a(f"s_cbranch_vccz {name}_ogood")
        a(f"s_sub_u32 s55, s55, 1")
        a(f"s_cbranch_scc0 {name}_oload")
        a.label(f"{name}_ogood")
        lwait(a, vT0, vT1, sT0, "s31", 2, f"{name}_cw4", sleep=0)
        tl_stamp(a, 2)
        wreads(0); wreads(1)
        for i in range(16):
            if i + 2 < 16:
                wreads(i + 2)
                a(f"s_waitcnt lgkmcnt(8)")
            else:
                a(f"s_waitcnt lgkmcnt({4*(15-i)})")
            for et in range(2):
                a(f"v_mfma_f32_32x32x16_bf16 {vr(acc[et],16)}, {vr(fW[i%NS]+4*et,4)}, {vr(fO+4*i,4)}, {vr(acc[et],16)}")
    else:
        lwait(a, vT0, vT1, sT0, "s31", 2, f"{name}_cw4", sleep=0)
        a(f"v_mov_b32 v{vFl2}, 0")
        tl_stamp(a, 2)
        wreads(0); wreads(1)
        for i in range(16):
            if i + 2 < 16:
                wreads(i + 2)
                a(f"s_waitcnt vmcnt({15-i}) lgkmcnt(8)")
            else:
                a(f"s_waitcnt vmcnt({15-i}) lgkmcnt({4*(15-i)})")
            for et in range(2):
                a(f"v_mfma_f32_32x32x16_bf16 {vr(acc[et],16)}, {vr(fW[i%NS]+4*et,4)}, {vr(fO+4*i,4)}, {vr(acc[et],16)}")
            a(f"v_max3_u32 v{vFl2}, v{vFl2}, v{fO+4*i}, v{fO+4*i+1}")
            a(f"v_max3_u32 v{vFl2}, v{vFl2}, v{fO+4*i+2}, v{fO+4*i+3}")
        a(f"v_cmp_eq_u32 vcc, -1, v{vFl2}")
        a("s_nop 4")
        a(f"s_cbranch_vccz {name}_ook")
        a(f"s_sub_u32 s55, s55, 1")
        a(f"s_cbranch_scc1 {name}_ook")
        a("s_nop 15")
        for e in range(2):
            for i in range(16):
                a(f"v_mov_b32 v{acc[e]+i}, 0")
        a("s_sleep 2")
        a(f"s_branch {name}_oload")
    a.label(f"{name}_ook")
    if TL["on"]:
        a("s_sub_u32 s86, 32, s55")
        a("s_add_u32 s86, s86, s90" if TL.get("rt") else "s_add_u32 s86, s86, s92")
    tl_stamp(a, 9)
    a("s_nop 15")
    a(f"s_lshl_b32 s{sT0}, s{sF}, 12")
    a(f"s_add_u32 s{sT0}, s{sT0}, 65536")
    a(f"v_add_u32 v{vT0}, s{sT0}, v{vL16}")
    a(f"s_cmp_eq_u32 s{sKh2}, 0")
    a(f"s_cbranch_scc0 {name}_y1")
    for q in range(4):
        a(f"ds_write_b128 v{vT0}, {vr(acc[1]+4*q,4)} offset:{q*1024}")
    a(f"s_branch {name}_y2")
    a.label(f"{name}_y1")
    for q in range(4):
        a(f"ds_write_b128 v{vT0}, {vr(acc[0]+4*q,4)} offset:{q*1024}")
    for i in range(16):
        a(f"v_mov_b32 v{acc[0]+i}, v{acc[1]+i}")
    a.label(f"{name}_y2")
    a("s_waitcnt lgkmcnt(0)")
    a(f"s_lshl_b32 s{sT0}, s{sTt2}, 2")
    a(f"s_add_u32 s31, s{sT0}, {C_Y}")
    lsig(a, vT1, vT2, "s31")
    lwait(a, vT1, vT2, sT0, "s31", 2, f"{name}_cw5", sleep=0)
    a(f"s_xor_b32 s{sT0}, s{sF}, 2")
    a(f"s_lshl_b32 s{sT0}, s{sT0}, 12")
    a(f"s_add_u32 s{sT0}, s{sT0}, 65536")
    a(f"v_add_u32 v{vT0}, s{sT0}, v{vL16}")
    for q in range(4):
        a(f"ds_read_b128 {vr(fO+4*q,4)}, v{vT0} offset:{q*1024}")
    a("s_waitcnt lgkmcnt(0)")
    S = acc[0]
    for i in range(16):
        a(f"v_add_f32 v{S+i}, v{S+i}, v{fO+i}")
    a(f"s_cmp_eq_u32 s{sMirE}, 0")
    a(f"s_cbranch_scc0 {name}_cm")
    for i in range(16):
        a(f"v_sub_f32 v{S+i}, v{S+i}, v{vYv+i}")
        a(f"v_fma_f32 v{S+i}, v{vG2}, v{S+i}, v{vYv+i}")
    a(f"s_branch {name}_st")
    a.label(f"{name}_cm")
    for g in range(4):
        for r in range(4):
            y = vYv + 4*(3-g) + (3-r)
            a(f"v_sub_f32 v{S+4*g+r}, v{S+4*g+r}, v{y}")
            a(f"v_fma_f32 v{S+4*g+r}, v{vG2}, v{S+4*g+r}, v{y}")
    a.label(f"{name}_st")
    P = fO + 16
    for i in range(8):
        a(f"v_cvt_pk_bf16_f32 v{P+i}, v{S+2*i}, v{S+2*i+1}")
    a(f"v_and_b32 v{vT0}, 31, v{vLane}")
    a(f"v_add_u32 v{vT0}, s{sT0row}, v{vT0}")
    a(f"v_lshlrev_b32 v{vT0}, 10, v{vT0}")
    a(f"v_lshrrev_b32 v{vT1}, 5, v{vLane}")
    a(f"v_lshlrev_b32 v{vT1}, 4, v{vT1}")
    a(f"v_add_u32 v{vT0}, v{vT0}, v{vT1}")
    a(f"s_lshl_b32 s{sT0}, s{sE0}, 1")
    for pr in range(2):
        a(f"v_permlane32_swap_b32 v{P+4*pr}, v{P+4*pr+2}")
        a(f"v_permlane32_swap_b32 v{P+4*pr+1}, v{P+4*pr+3}")
    for pr in range(2):
        a(f"buffer_store_dwordx4 {vr(P+4*pr,4)}, v{vT0}, s[{srdA}:{srdA+3}], s{sT0} offen offset:{32*pr}")
    tl_stamp(a, 10)
    dbg_exit(a, [3, 5, 6, 7, 8, 2, 9, -1], [PAR.get("DW", 0)], 8, 8)
    if not TL.get("dbg"): tl_exit(a, 2, sWS)
    a("s_endpgm")
```

```python
from asmlib import *
from common import *
from gen_fused import *

PRIO_MODE = 1
PRIO_SW = (5, 7)
EXP = {}
PAR = {}
sHead, sQb = 52, 53

def decode_hq(a):
    a(f"s_and_b32 s{sT0}, s2, 7")
    a(f"s_lshr_b32 s{sT1}, s2, 3")
    a(f"s_lshl_b32 s{sHead}, s{sT0}, 2")
    a(f"s_and_b32 s{sT0}, s{sT1}, 3")
    a(f"s_add_u32 s{sHead}, s{sHead}, s{sT0}")
    a(f"s_lshr_b32 s{sQb}, s{sT1}, 2")


def edge_regs(r0):
    return dict(vG=r0, vA=r0+4, vB=r0+8, vR=r0+12, vX1=r0+16, vRe=r0+20, vD=r0+24)

def emit_edge_loads(a, name, V, r0, sF, sS):
    vL16 = V["vL16"]
    E = edge_regs(r0); vG, vA, vB, vR, vX1, vRe, vD = [E[k] for k in ("vG","vA","vB","vR","vX1","vRe","vD")]
    a(f"s_lshl_b32 s{sS}, s2, 2")
    a(f"s_add_u32 s{sS}, s{sS}, s{sF}")
    a(f"global_load_dwordx4 {vr(vG,4)}, v{vL16}, s[{sGate}:{sGate+1}]")
    a(f"s_lshl_b32 s{sT0}, s{sS}, 10")
    a(f"buffer_load_dwordx4 {vr(vA,4)}, v{vL16}, s[{srdA}:{srdA+3}], s{sT0} offen")
    a(f"s_sub_u32 s{sT1}, 2048, s{sS}")
    a(f"s_lshl_b32 s{sT1}, s{sT1}, 10")
    a(f"buffer_load_dwordx4 {vr(vB,4)}, v{vL16}, s[{srdA}:{srdA+3}], s{sT1} offen")
    a(f"s_mov_b32 s{sT1}, {1024*1024}")
    a(f"buffer_load_dwordx4 {vr(vX1,4)}, v{vL16}, s[{srdA}:{srdA+3}], s{sT1} offen")
    a(f"s_lshl_b32 s{sT1}, s2, 10")
    a(f"v_add_u32 v{vD}, s{sT1}, v{vL16}")
    a(f"global_load_dwordx4 {vr(vRe,4)}, v{vD}, s[{sHre}:{sHre+1}]")

def emit_edge_compute(a, name, V, r0, sF, sS, sfx):
    vLane, vL16, vT0, vT1, vT2, vT3 = V["vLane"], V["vL16"], V["vT0"], V["vT1"], V["vT2"], V["vT3"]
    E = edge_regs(r0); vG, vA, vB, vR, vX1, vRe, vD = [E[k] for k in ("vG","vA","vB","vR","vX1","vRe","vD")]
    srd(a, srdWS, sWS, WS_SIZE_USED)
    a("s_waitcnt vmcnt(0)")
    a(f"s_mov_b32 s31, 0xbf803f80")
    a(f"v_dot2_f32_bf16 v{vD}, v{vA}, v{vG}, 0")
    a(f"v_dot2_f32_bf16 v{vD+1}, v{vB}, v{vG}, 0")
    a(f"v_dot2_f32_bf16 v{vD+2}, v{vA}, s31, 0")
    a(f"v_dot2_f32_bf16 v{vD+3}, v{vRe}, v{vX1}, 0")
    a(f"v_dot2_f32_bf16 v{vD+4}, v{vX1}, v{vG}, 0")
    a(f"v_dot2_f32_bf16 v{vD+5}, v{vX1}, s31, 0")
    a("s_nop 2")
    for q in range(4):
        if q > 0:
            a(f"v_dot2c_f32_bf16 v{vD}, v{vA+q}, v{vG+q}")
            a(f"v_dot2c_f32_bf16 v{vD+1}, v{vB+q}, v{vG+q}")
            a(f"v_dot2c_f32_bf16 v{vD+2}, s31, v{vA+q}")
            a(f"v_dot2c_f32_bf16 v{vD+3}, v{vRe+q}, v{vX1+q}")
            a(f"v_dot2c_f32_bf16 v{vD+4}, v{vX1+q}, v{vG+q}")
            a(f"v_dot2c_f32_bf16 v{vD+5}, s31, v{vX1+q}")
        a(f"v_dot2c_f32_bf16 v{vD+2}, s31, v{vB+q}")
    a("s_nop 3")
    for ctrl in ["row_shr:1", "row_shr:2", "row_shr:4", "row_shr:8"]:
        for r in range(6):
            a(f"v_add_f32_dpp v{vD+r}, v{vD+r}, v{vD+r} {ctrl} row_mask:0xf bank_mask:0xf bound_ctrl:0")
    for r in range(6):
        a(f"v_add_f32_dpp v{vD+r}, v{vD+r}, v{vD+r} row_bcast:15 row_mask:0xa bank_mask:0xf")
    for r in range(6):
        a(f"v_add_f32_dpp v{vD+r}, v{vD+r}, v{vD+r} row_bcast:31 row_mask:0xc bank_mask:0xf")
    for r in (0, 1, 4):
        a(f"v_mul_f32 v{vD+r}, {f2u(-1.4426950408889634)}, v{vD+r}")
    for r in (0, 1, 4):
        a(f"v_exp_f32 v{vD+r}, v{vD+r}")
    a("s_nop 0")
    for r in (0, 1, 4):
        a(f"v_add_f32 v{vD+r}, 1.0, v{vD+r}")
    for r in (0, 1, 4):
        a(f"v_rcp_f32 v{vD+r}, v{vD+r}")
    a(f"v_cvt_pk_bf16_f32 v{vD+2}, v{vD+2}, 0")
    a(f"v_cvt_pk_bf16_f32 v{vR}, v{vD+3}, 0")
    a(f"v_cvt_pk_bf16_f32 v{vD+5}, v{vD+5}, 0")
    for i in range(1, 4): a(f"v_mov_b32 v{vR+i}, 0")
    for i in range(4): a(f"v_mov_b32 v{vA+i}, 0")
    a(f"v_mov_b32 v{vT1}, 0")
    a("s_mov_b32 exec_lo, 0")
    a("s_mov_b32 exec_hi, 0x80000000")
    a(f"s_lshl_b32 s{sT0}, s{sS}, 2")
    a(f"s_add_u32 s{sT0}, s{sT0}, {WS_G}")
    a(f"buffer_store_dword v{vD}, v{vT1}, s[{srdWS}:{srdWS+3}], s{sT0} offen{SC}")
    a(f"s_cmp_eq_u32 s{sS}, 0")
    a(f"s_cbranch_scc1 {name}_e1{sfx}")
    a(f"s_sub_u32 s{sT0}, 2048, s{sS}")
    a(f"s_lshl_b32 s{sT0}, s{sT0}, 2")
    a(f"s_add_u32 s{sT0}, s{sT0}, {WS_G}")
    a(f"buffer_store_dword v{vD+1}, v{vT1}, s[{srdWS}:{srdWS+3}], s{sT0} offen{SC}")
    a.label(f"{name}_e1{sfx}")
    a(f"s_lshr_b32 s{sT0}, s{sS}, 4")
    a(f"s_add_u32 s{sT0}, s{sT0}, {8*A_KSTEPS}")
    a(f"s_lshl_b32 s{sT0}, s{sT0}, 10")
    a(f"s_bfe_u32 s{sT1}, s{sS}, 0x10003")
    a(f"s_lshl_b32 s{sT1}, s{sT1}, 9")
    a(f"s_add_u32 s{sT0}, s{sT0}, s{sT1}")
    a(f"s_and_b32 s{sT1}, s{sS}, 7")
    a(f"s_lshl_b32 s{sT1}, s{sT1}, 1")
    a(f"s_add_u32 s{sT0}, s{sT0}, s{sT1}")
    a(f"s_add_u32 s{sT0}, s{sT0}, {WS_A}")
    a(f"buffer_store_short v{vD+2}, v{vT1}, s[{srdWS}:{srdWS+3}], s{sT0} offen{SC}")
    a(f"s_cmp_lg_u32 s{sF}, 0")
    a(f"s_cbranch_scc1 {name}_e2{sfx}")
    a(f"s_lshr_b32 s{sT0}, s2, 5")
    a(f"s_mul_i32 s{sT0}, s{sT0}, {A_KSTEPS}")
    a(f"s_add_u32 s{sT0}, s{sT0}, 64")
    a(f"s_lshl_b32 s{sT0}, s{sT0}, 10")
    a(f"s_and_b32 s{sT1}, s2, 31")
    a(f"s_lshl_b32 s{sT1}, s{sT1}, 4")
    a(f"s_add_u32 s{sT0}, s{sT0}, s{sT1}")
    a(f"s_add_u32 s{sT0}, s{sT0}, {WS_A}")
    a(f"buffer_store_dwordx4 {vr(vR,4)}, v{vT1}, s[{srdWS}:{srdWS+3}], s{sT0} offen{SC}")
    a(f"buffer_store_dwordx4 {vr(vA,4)}, v{vT1}, s[{srdWS}:{srdWS+3}], s{sT0} offen offset:512{SC}")
    a.label(f"{name}_e2{sfx}")
    a(f"s_cmp_lg_u32 s{sS}, 1")
    a(f"s_cbranch_scc1 {name}_e3{sfx}")
    a(f"s_mov_b32 s{sT0}, {WS_G + 4096}")
    a(f"buffer_store_dword v{vD+4}, v{vT1}, s[{srdWS}:{srdWS+3}], s{sT0} offen{SC}")
    a(f"v_mov_b32 v{vR}, v{vD+5}")
    a(f"s_mov_b32 s{sT0}, {WS_A + (8*A_KSTEPS + 64)*1024}")
    a(f"buffer_store_dwordx4 {vr(vR,4)}, v{vT1}, s[{srdWS}:{srdWS+3}], s{sT0} offen{SC}")
    a(f"buffer_store_dwordx4 {vr(vA,4)}, v{vT1}, s[{srdWS}:{srdWS+3}], s{sT0} offen offset:512{SC}")
    a.label(f"{name}_e3{sfx}")
    a("s_mov_b64 exec, -1")

def gen_attn_part(a, name, base, nvmax, V):
    vLane, vL16, vT0, vT1 = V["vLane"], V["vL16"], V["vT0"], V["vT1"]
    Ra = RegAlloc(base, 168)
    vAK = Ra.alloc("addrK"); vAV = Ra.alloc("addrV"); vM = Ra.alloc("m")
    vRd = Ra.alloc("rdaddr"); vRv = Ra.alloc("rdval")
    vQ = [Ra.alloc("Q0", 4), Ra.alloc("Q1", 4)]
    vK = Ra.alloc("K", 4); vV0 = Ra.alloc("V0", 4); vV1 = Ra.alloc("V1", 4)
    vP = Ra.alloc("P", 8)
    vS = [Ra.alloc("S0", 16), Ra.alloc("S1", 16)]
    vT = Ra.alloc("T", 16)
    vO = [Ra.alloc("O0", 16), Ra.alloc("O1", 16)]
    vC = [Ra.alloc("C0", 16), Ra.alloc("C1", 16)]
    nvmax[0] = max(nvmax[0], Ra.next)
    sKh, sQp, sIt, sMask, sRetry = 54, 55, 56, 58, 57
    a.label(f"{name}_attn")
    decode_hq(a)
    a(f"s_and_b32 s{sQp}, s{sW}, 3")
    a(f"s_lshr_b32 s{sKh}, s{sW}, 2")
    srd(a, srdWS, sWS, WS_SIZE_USED)
    a(f"s_mov_b32 s{sRetry}, 0")
    a(f"s_lshl_b32 s60, s{sKh}, 15")
    a(f"s_mul_i32 s59, s{sKh}, {VHALF}")
    a(f"v_lshrrev_b32 v{vT0}, 5, v{vLane}")
    a(f"v_lshlrev_b32 v{vT0}, 8, v{vT0}")
    a(f"v_and_b32 v{vAK}, 31, v{vLane}")
    a(f"v_lshlrev_b32 v{vAV}, 4, v{vAK}")
    a(f"v_add_u32 v{vAV}, v{vAV}, v{vT0}")
    a(f"v_cmp_eq_u32 vcc, 16, v{vAK}")
    a(f"v_cmp_eq_u32 s[62:63], 20, v{vAK}")
    a(f"v_mov_b32 v{vM}, 528")
    a(f"v_mov_b32 v{vT0}, 512")
    a("s_or_b64 vcc, vcc, s[62:63]")
    a("s_nop 1")
    a(f"v_cndmask_b32 v{vM}, v{vM}, v{vT0}, vcc")
    a(f"v_cmp_gt_u32 vcc, 16, v{vAK}")
    a("s_nop 1")
    a(f"v_cndmask_b32 v{vAV}, v{vM}, v{vAV}, vcc")
    a(f"v_add_u32 v{vAV}, 65536, v{vAV}")
    a(f"v_add_u32 v{vAV}, s59, v{vAV}")
    for i in range(4):
        a(f"v_mov_b32 v{vV1+i}, 0")
    for q in range(2):
        for i in range(16):
            a(f"v_mov_b32 v{vO[q]+i}, 0")
    for i in range(4, 8):
        a(f"v_mov_b32 v{vP+i}, 0")
    a(f"v_add_u32 v{vAK}, s60, v{vL16}")
    a(f"s_lshl_b32 s{sT0}, s{sHead}, 6")
    a(f"s_lshl_b32 s{sT1}, s{sQb}, 3")
    a(f"s_add_u32 s{sT0}, s{sT0}, s{sT1}")
    a(f"s_lshl_b32 s{sT1}, s{sQp}, 1")
    a(f"s_add_u32 s{sT0}, s{sT0}, s{sT1}")
    a(f"s_lshl_b32 s61, s{sT0}, 10")
    read_nonce(a, vT0, vT1)
    tl_stamp(a, 3)
    lwait(a, vT0, vT1, sT0, C_GO, 1, f"{name}_wgo", sleep=2)
    if PAR.get("QDIRECT", 0):
        a(f"s_mov_b32 s59, 8192")
        a.label(f"{name}_qload")
    a(f"buffer_load_dwordx4 {vr(vQ[0],4)}, v{vL16}, s[{srdWS}:{srdWS+3}], s61 offen{SC}")
    a(f"buffer_load_dwordx4 {vr(vQ[1],4)}, v{vL16}, s[{srdWS}:{srdWS+3}], s61 offen offset:1024{SC}")
    if PAR.get("QDIRECT", 0):
        a("s_waitcnt vmcnt(0)")
        a(f"v_max3_u32 v{vM}, v{vQ[0]}, v{vQ[0]+1}, v{vQ[0]+2}")
        a(f"v_max3_u32 v{vM}, v{vM}, v{vQ[0]+3}, v{vQ[1]}")
        a(f"v_max3_u32 v{vM}, v{vM}, v{vQ[1]+1}, v{vQ[1]+2}")
        a(f"v_max_u32 v{vM}, v{vM}, v{vQ[1]+3}")
        a(f"v_cmp_eq_u32 vcc, -1, v{vM}")
        a("s_nop 4")
        a(f"s_cbranch_vccz {name}_qok")
        a("s_sub_u32 s59, s59, 1")
        a(f"s_cbranch_scc1 {name}_qok")
        a("s_sleep 2")
        a(f"s_branch {name}_qload")
        a.label(f"{name}_qok")
    tl_stamp(a, 4)
    lwait(a, vT0, vT1, sT0, C_RDY, 1, f"{name}_wr0", sleep=1)
    a(f"s_lshl_b32 s60, s{sKh}, 2")
    a(f"s_add_u32 s60, s60, {C_RDY}")
    lwait(a, vT0, vT1, sT0, "s60", 1, f"{name}_wr1", sleep=1)
    a(f"v_add_u32 v{vRd}, 8, v{vT0}")
    a("s_waitcnt vmcnt(0)")
    tl_stamp(a, 5)

    def rowmax(S):
        a(f"v_max3_f32 v{vM}, v{S}, v{S+1}, v{S+2}")
        for i in range(3, 15, 2):
            a(f"v_max3_f32 v{vM}, v{vM}, v{S+i}, v{S+i+1}")
        a(f"v_max_f32 v{vM}, v{vM}, v{S+15}")
    def bcast_negmax(C):
        a(f"v_mov_b32 v{vT0}, v{vM}")
        a("s_nop 1")
        a(f"v_permlane32_swap_b32 v{vT0}, v{vM}")
        a("s_nop 1")
        a(f"v_max_f32 v{vM}, v{vM}, v{vT0}")
        a(f"v_sub_f32 v{C}, 0, v{vM}")
        for i in range(1, 16):
            a(f"v_mov_b32 v{C+i}, v{C}")
    a(f"ds_read_b128 {vr(vT,4)}, v{vL16}")
    a(f"ds_read_b128 {vr(vK,4)}, v{vAK}")
    a("s_waitcnt lgkmcnt(1)")
    a(f"v_mfma_f32_32x32x16_bf16 {vr(vS[0],16)}, {vr(vT,4)}, {vr(vQ[0],4)}, 0")
    a(f"v_mfma_f32_32x32x16_bf16 {vr(vS[1],16)}, {vr(vT,4)}, {vr(vQ[1],4)}, 0")
    a(f"ds_read_b128 {vr(vV0,4)}, v{vAV}")
    a("s_nop 8")
    rowmax(vS[0]); bcast_negmax(vC[0])
    a("s_waitcnt lgkmcnt(0)")
    a(f"v_mfma_f32_32x32x16_bf16 {vr(vS[0],16)}, {vr(vK,4)}, {vr(vQ[0],4)}, {vr(vC[0],16)}")
    rowmax(vS[1]); bcast_negmax(vC[1])
    a("s_nop 1")
    a(f"v_mfma_f32_32x32x16_bf16 {vr(vS[1],16)}, {vr(vK,4)}, {vr(vQ[1],4)}, {vr(vC[1],16)}")
    a(f"ds_read_b128 {vr(vK,4)}, v{vAK} offset:1024")
    tl_stamp(a, 6)

    def step(u, q):
        S = vS[q]
        e = lambda i: a(f"v_exp_f32 v{vT+i}, v{S+i}")
        c = lambda i: a(f"v_cvt_pk_bf16_f32 v{vP+i}, v{vT+2*i}, v{vT+2*i+1}")
        e(0); e(1); e(2); c(0); e(3); e(4)
        if q == 1:
            a("s_waitcnt lgkmcnt(0)")
        a(f"v_mfma_f32_32x32x16_bf16 {vr(vO[q^1],16)}, {vr(vV1,4)}, {vr(vP+4,4)}, {vr(vO[q^1],16)}")
        if q == 0:
            a(f"ds_read_b128 {vr(vV1,4)}, v{vAV} offset:{(2*u+1)*VG}")
        c(1); e(5); e(6); c(2); e(7); e(8); c(3); e(9); e(10)
        if q == 0:
            a("s_waitcnt lgkmcnt(2)")
        a(f"v_mfma_f32_32x32x16_bf16 {vr(vO[q],16)}, {vr(vV0,4)}, {vr(vP,4)}, {vr(vO[q],16)}")
        if q == 1:
            a(f"ds_read_b128 {vr(vV0,4)}, v{vAV} offset:{(2*u+2)*VG}")
        e(11); c(4); e(12); c(5); e(13); e(14); c(6); e(15)
        if q == 0:
            a("s_waitcnt lgkmcnt(1)")
        a(f"v_mfma_f32_32x32x16_bf16 {vr(S,16)}, {vr(vK,4)}, {vr(vQ[q],4)}, {vr(vC[q],16)}")
        if q == 1:
            a(f"ds_read_b128 {vr(vK,4)}, v{vAK} offset:{(u+2)*1024}")
        c(7)

    a(f"s_mov_b32 s{sIt}, 0")
    a("s_setprio 2")
    lbl = f"{name}_loop"
    if EXP.get("al64"): a.raw(".p2align 6")
    if EXP.get("al64s4"):
        a.raw(".p2align 6"); a("s_nop 0")
    a.label(lbl)
    for u in range(4):
        step(u, 0)
        if u == 0:
            a(f"ds_read_b32 v{vRv}, v{vRd}")
        step(u, 1)
        if u == 1:
            a(f"v_readfirstlane_b32 s{sT0}, v{vRv}")
            a(f"v_add_u32 v{vRd}, 8, v{vRd}")
            a("s_nop 2")
            a(f"s_cmp_lg_u32 s{sT0}, 0")
            a(f"s_cbranch_scc1 {name}_nosync")
            a(f"v_subrev_u32 v{vT0}, 8, v{vRd}")
            a(f"s_mov_b32 s{sT3}, {SPIN_MAX*16}")
            a.label(f"{name}_wrs")
            a(f"ds_read_b32 v{vT1}, v{vT0}")
            a("s_waitcnt lgkmcnt(0)")
            a(f"v_readfirstlane_b32 s{sT0}, v{vT1}")
            a(f"s_sub_u32 s{sT3}, s{sT3}, 1")
            a(f"s_cbranch_scc1 {name}_nosync")
            a("s_nop 1")
            a(f"s_cmp_lg_u32 s{sT0}, 0")
            a(f"s_cbranch_scc1 {name}_nosync")
            a("s_sleep 1")
            a(f"s_branch {name}_wrs")
            a.label(f"{name}_nosync")
    a(f"v_add_u32 v{vAK}, 4096, v{vAK}")
    a(f"v_add_u32 v{vAV}, {8*VG}, v{vAV}")
    a(f"s_add_u32 s{sIt}, s{sIt}, 1")
    a(f"s_cmp_eq_u32 s{sIt}, {PRIO_SW[0]}")
    a(f"s_cbranch_scc0 {name}_p1")
    a("s_setprio 1")
    a.label(f"{name}_p1")
    a(f"s_cmp_eq_u32 s{sIt}, {PRIO_SW[1]}")
    a(f"s_cbranch_scc0 {name}_p2")
    a("s_setprio 0")
    a.label(f"{name}_p2")
    a(f"s_cmp_lg_u32 s{sIt}, 8")
    a(f"s_cbranch_scc1 {lbl}")
    a("s_nop 1")
    a(f"v_mfma_f32_32x32x16_bf16 {vr(vO[1],16)}, {vr(vV1,4)}, {vr(vP+4,4)}, {vr(vO[1],16)}")
    tl_stamp(a, 7)
    lwait(a, vT0, vT1, sT0, C_R1, 1, f"{name}_wf")
    a("s_nop 8")
    a(f"s_mul_i32 s{sT0}, s{sW}, 2304")
    a(f"s_add_u32 s{sT0}, s{sT0}, {LDS_RED}")
    a(f"v_add_u32 v{vT0}, s{sT0}, v{vL16}")
    a(f"v_lshrrev_b32 v{vT1}, 2, v{vL16}")
    a(f"v_add_u32 v{vT1}, s{sT0}, v{vT1}")
    a(f"s_cmp_eq_u32 s{sKh}, 0")
    a(f"s_cbranch_scc0 {name}_x1")
    a(f"ds_write_b128 v{vT0}, {vr(vO[1],4)}")
    a(f"ds_write_b128 v{vT0}, {vr(vO[1]+4,4)} offset:1024")
    a(f"ds_write_b32 v{vT1}, v{vO[1]+8} offset:2048")
    a(f"s_branch {name}_x2")
    a.label(f"{name}_x1")
    a(f"ds_write_b128 v{vT0}, {vr(vO[0],4)}")
    a(f"ds_write_b128 v{vT0}, {vr(vO[0]+4,4)} offset:1024")
    a(f"ds_write_b32 v{vT1}, v{vO[0]+8} offset:2048")
    for i in range(9):
        a(f"v_mov_b32 v{vO[0]+i}, v{vO[1]+i}")
    for i in range(4):
        a(f"v_mov_b32 v{vQ[0]+i}, v{vQ[1]+i}")
    a.label(f"{name}_x2")
    a("s_waitcnt lgkmcnt(0)")
    a(f"s_lshl_b32 s{sT0}, s{sQp}, 2")
    a(f"s_add_u32 s61, s{sT0}, {C_X}")
    lsig(a, vAK, vM, "s61")
    lwait(a, vAK, vM, sT0, "s61", 2, f"{name}_wx")
    a(f"s_xor_b32 s{sT0}, s{sW}, 4")
    a(f"s_mul_i32 s{sT0}, s{sT0}, 2304")
    a(f"s_add_u32 s{sT0}, s{sT0}, {LDS_RED}")
    a(f"v_add_u32 v{vT0}, s{sT0}, v{vL16}")
    a(f"v_lshrrev_b32 v{vT1}, 2, v{vL16}")
    a(f"v_add_u32 v{vT1}, s{sT0}, v{vT1}")
    a(f"ds_read_b128 {vr(vT,4)}, v{vT0}")
    a(f"ds_read_b128 {vr(vT+4,4)}, v{vT0} offset:1024")
    a(f"ds_read_b32 v{vT+8}, v{vT1} offset:2048")
    a("s_waitcnt lgkmcnt(0)")
    O = vO[0]
    for i in range(9):
        a(f"v_add_f32 v{O+i}, v{O+i}, v{vT+i}")
    a.label(f"{name}_epi")
    a(f"s_cmp_lg_u32 s{sRetry}, 0")
    a(f"s_cbranch_scc1 {name}_fin")
    a(f"v_mov_b32 v{vT0}, 0x5d800000")
    a(f"v_cmp_nle_f32 vcc, v{O+8}, v{vT0}")
    a("s_nop 4")
    a(f"s_cbranch_vccnz {name}_fallback")
    a.label(f"{name}_fin")
    a(f"v_rcp_f32 v{vT0}, v{O+8}")
    a("s_nop 0")
    for i in range(8):
        a(f"v_mul_f32 v{O+i}, v{O+i}, v{vT0}")
    for i in range(4):
        a(f"v_cvt_pk_bf16_f32 v{vP+i}, v{O+2*i}, v{O+2*i+1}")
    a(f"s_lshl_b32 s{sT0}, s{sQb}, 3")
    a(f"s_lshl_b32 s{sT1}, s{sQp}, 1")
    a(f"s_add_u32 s{sT0}, s{sT0}, s{sT1}")
    a(f"s_add_u32 s{sT0}, s{sT0}, s{sKh}")
    a(f"s_lshl_b32 s{sT0}, s{sT0}, 5")
    a(f"s_add_u32 s{sT0}, s{sT0}, s{sHead}")
    a(f"s_lshl_b32 s{sT0}, s{sT0}, 10")
    a(f"s_add_u32 s{sT0}, s{sT0}, {WS_O}")
    a(f"buffer_store_dwordx4 {vr(vP,4)}, v{vL16}, s[{srdWS}:{srdWS+3}], s{sT0} offen{SC}")
    a(f"v_mov_b32 v{vT0}, {C_ADONE}")
    a(f"v_mov_b32 v{vT1}, 1")
    a("s_mov_b64 exec, 1")
    if PAR.get("ODIRECT", 0):
        a(f"ds_add_u32 v{vT0}, v{vT1}")
        a("s_mov_b64 exec, -1")
    else:
        a(f"ds_add_rtn_u32 v{vM}, v{vT0}, v{vT1}")
        a("s_waitcnt lgkmcnt(0)")
        a("s_mov_b64 exec, -1")
        a(f"v_readfirstlane_b32 s{sT0}, v{vM}")
        a("s_nop 3")
        a(f"s_cmp_lg_u32 s{sT0}, 7")
        a(f"s_cbranch_scc1 {name}_adone")
        a(f"s_lshl_b32 s61, s{sQb}, 5")
        a(f"s_add_u32 s61, s61, s{sHead}")
        a(f"s_add_u32 s61, s61, {FL_O}")
        publish(a, vT0, vT1, 61)
    a.label(f"{name}_adone")
    tl_stamp(a, 8)
    dbg_exit(a, [1, 4, 5, 6, 7], [PAR.get("DW", 0)], 4, 1)
    dbg_exit(a, [6, 7], [PAR.get("DW", 0)], 0, 6)
    if not TL.get("dbg"): tl_exit(a, 1, sWS)
    a("s_endpgm")
    a.label(f"{name}_fallback")
    a(f"s_mov_b32 s{sRetry}, 1")
    a(f"v_mov_b32 v{vAK}, v{vL16}")
    a(f"v_mov_b32 v{vM}, 0xff800000")
    a(f"s_mov_b32 s{sIt}, 64")
    a.label(f"{name}_maxloop")
    a(f"ds_read_b128 {vr(vK,4)}, v{vAK}")
    a("s_waitcnt lgkmcnt(0)")
    a(f"v_mfma_f32_32x32x16_bf16 {vr(vS[0],16)}, {vr(vK,4)}, {vr(vQ[0],4)}, 0")
    a(f"v_add_u32 v{vAK}, 1024, v{vAK}")
    a("s_nop 15")
    a("s_nop 3")
    for i in range(0, 16, 2):
        a(f"v_max3_f32 v{vM}, v{vM}, v{vS[0]+i}, v{vS[0]+i+1}")
    a(f"s_sub_u32 s{sIt}, s{sIt}, 1")
    a(f"s_cmp_lg_u32 s{sIt}, 0")
    a(f"s_cbranch_scc1 {name}_maxloop")
    bcast_negmax(vC[0])
    for i in range(16):
        a(f"v_mov_b32 v{O+i}, 0")
    a(f"v_mov_b32 v{vAK}, v{vL16}")
    a(f"s_mul_i32 s60, s{sKh}, {VHALF}")
    a(f"s_add_u32 s60, s60, {VHALF}")
    a(f"v_subrev_u32 v{vAV}, s60, v{vAV}")
    a(f"s_mov_b32 s{sIt}, 64")
    a.label(f"{name}_redo")
    a(f"ds_read_b128 {vr(vK,4)}, v{vAK}")
    a(f"ds_read_b128 {vr(vV0,4)}, v{vAV}")
    a(f"ds_read_b128 {vr(vV1,4)}, v{vAV} offset:{VG}")
    a("s_waitcnt lgkmcnt(0)")
    a(f"v_mfma_f32_32x32x16_bf16 {vr(vS[0],16)}, {vr(vK,4)}, {vr(vQ[0],4)}, {vr(vC[0],16)}")
    a(f"v_add_u32 v{vAK}, 1024, v{vAK}")
    a(f"v_add_u32 v{vAV}, {2*VG}, v{vAV}")
    a("s_nop 15")
    a("s_nop 3")
    for i in range(16):
        a(f"v_exp_f32 v{vT+i}, v{vS[0]+i}")
    a("s_nop 0")
    for i in range(8):
        a(f"v_cvt_pk_bf16_f32 v{vP+i}, v{vT+2*i}, v{vT+2*i+1}")
    a("s_nop 1")
    a(f"v_mfma_f32_32x32x16_bf16 {vr(O,16)}, {vr(vV0,4)}, {vr(vP,4)}, {vr(O,16)}")
    a(f"v_mfma_f32_32x32x16_bf16 {vr(O,16)}, {vr(vV1,4)}, {vr(vP+4,4)}, {vr(O,16)}")
    a(f"s_sub_u32 s{sIt}, s{sIt}, 1")
    a(f"s_cmp_lg_u32 s{sIt}, 0")
    a(f"s_cbranch_scc1 {name}_redo")
    a("s_nop 15")
    a("s_nop 3")
    a(f"s_branch {name}_epi")

def gen_f_part(a, name, base, nvmax, V):
    vLane, vL16, vT0, vT1, vT2, vT3 = V["vLane"], V["vL16"], V["vT0"], V["vT1"], V["vT2"], V["vT3"]
    sF = 54
    a.label(f"{name}_edge")
    sS = 55
    if PAR.get("QDIRECT", 0):
        KVD = PAR.get("KVDIRECT", 0)
        a("s_mov_b32 s58, 0")
        a("s_cmp_lg_u32 s30, 0")
        a(f"s_cbranch_scc1 {name}_pz_done")
        a(f"s_cmp_ge_u32 s54, {12 if KVD else 4}")
        a(f"s_cbranch_scc1 {name}_pz_done")
        a(f"s_sub_u32 s{sT0}, s{sW}, 8")
        a(f"s_lshr_b32 s{sT1}, s{sT0}, 1")
        a(f"s_lshl_b32 s{sT1}, s{sT1}, 2")
        a(f"s_and_b32 s{sT2}, s54, 3")
        a(f"s_lshl_b32 s{sT2}, s{sT2}, 3")
        a(f"s_add_u32 s{sT1}, s{sT1}, s{sT2}")
        a(f"s_lshl_b32 s{sT1}, s{sT1}, 16")
        a(f"s_and_b32 s{sT0}, s{sT0}, 1")
        a(f"s_lshr_b32 s{sT2}, s54, 2")
        a(f"s_lshl_b32 s{sT3}, s{sT2}, 21")
        a(f"s_add_u32 s{sT1}, s{sT1}, s{sT3}")
        a(f"s_cmp_eq_u32 s{sT2}, 2")
        a(f"s_cbranch_scc1 {name}_pz_v")
        a("s_mov_b32 s58, 1")
        a(f"s_lshl_b32 s{sT0}, s{sT0}, 1")
        a(f"s_lshr_b32 s{sT2}, s52, 5")
        a(f"s_add_u32 s{sT0}, s{sT0}, s{sT2}")
        a(f"s_lshl_b32 s{sT0}, s{sT0}, 10")
        a(f"s_add_u32 s59, s{sT0}, s{sT1}")
        a(f"s_branch {name}_pz_done")
        a.label(f"{name}_pz_v")
        a("s_mov_b32 s58, 2")
        a(f"s_lshl_b32 s{sT0}, s{sT0}, 2")
        a(f"s_lshr_b32 s{sT2}, s52, 4")
        a(f"s_add_u32 s{sT0}, s{sT0}, s{sT2}")
        a(f"s_lshl_b32 s{sT0}, s{sT0}, 9")
        a(f"s_add_u32 s59, s{sT0}, s{sT1}")
        a.label(f"{name}_pz_done")
        a(f"s_add_u32 s57, s62, {FL_O}")
    a(f"s_sub_u32 s{sF}, s{sW}, 8")
    a("s_setprio 3")
    a(f"v_lshlrev_b32 v{vT0}, 2, v{vLane}")
    a(f"v_add_u32 v{vT0}, {LDS_CNT}, v{vT0}")
    a(f"v_mov_b32 v{vT1}, 0")
    a(f"ds_write_b32 v{vT0}, v{vT1}")
    a("s_waitcnt lgkmcnt(0)")
    a(f"s_or_b32 s{sT0}, s2, s{sF}")
    a(f"s_cmp_lg_u32 s{sT0}, 0")
    a(f"s_cbranch_scc1 {name}_nn")
    a(f"s_memrealtime s[{sT0}:{sT0+1}]")
    a("s_waitcnt lgkmcnt(0)")
    a(f"s_or_b32 s{sT0}, s{sT0}, 1")
    a(f"v_mov_b32 v{vT0}, 0")
    a(f"v_mov_b32 v{vT1}, s{sT0}")
    a("s_mov_b64 exec, 1")
    a(f"global_store_dword v{vT0}, v{vT1}, s[{sDbg}:{sDbg+1}] sc1")
    a("s_mov_b64 exec, -1")
    a.label(f"{name}_nn")
    srd(a, srdWS, sWS, WS_SIZE_USED)
    def emit_poison():
        decode_hq(a)
        vPz = (base + 3) // 4 * 4 - 1
        for i in range(4):
            a(f"v_mov_b32 v{vPz+1+i}, -1")
        a(f"s_lshl_b32 s{sT0}, s{sQb}, 3")
        a(f"s_lshl_b32 s{sT1}, s{sF}, 1")
        a(f"s_add_u32 s{sT0}, s{sT0}, s{sT1}")
        a(f"s_lshl_b32 s{sT0}, s{sT0}, 5")
        a(f"s_add_u32 s{sT0}, s{sT0}, s{sHead}")
        a(f"s_lshl_b32 s{sT0}, s{sT0}, 10")
        a(f"s_add_u32 s{sT0}, s{sT0}, {WS_O}")
        a(f"buffer_store_dwordx4 {vr(vPz+1,4)}, v{vL16}, s[{srdWS}:{srdWS+3}], s{sT0} offen{SC}")
        a(f"s_add_u32 s{sT0}, s{sT0}, 32768")
        a(f"buffer_store_dwordx4 {vr(vPz+1,4)}, v{vL16}, s[{srdWS}:{srdWS+3}], s{sT0} offen{SC}")
        if PAR.get("QDIRECT", 0):
            a("s_cmp_eq_u32 s58, 0")
            a(f"s_cbranch_scc1 {name}_noqp")
            a("s_cmp_eq_u32 s58, 2")
            a(f"s_cbranch_scc1 {name}_qpv")
            for f_ in range(2):
                for hh in range(2):
                    for t in range(2):
                        a(f"s_add_u32 s{sT0}, s59, {(f_*2+hh)*65536 + t*1024}")
                        a(f"buffer_store_dwordx4 {vr(vPz+1,4)}, v{vL16}, s[{srdWS}:{srdWS+3}], s{sT0} offen{SC}")
            a(f"s_branch {name}_noqp")
            a.label(f"{name}_qpv")
            a(f"v_bfe_u32 v{vT0}, v{vLane}, 4, 1")
            a(f"v_lshlrev_b32 v{vT0}, 16, v{vT0}")
            a(f"v_lshrrev_b32 v{vT1}, 5, v{vLane}")
            a(f"v_lshlrev_b32 v{vT1}, 8, v{vT1}")
            a(f"v_add_u32 v{vT0}, v{vT0}, v{vT1}")
            a(f"v_and_b32 v{vT1}, 15, v{vLane}")
            a(f"v_lshlrev_b32 v{vT1}, 4, v{vT1}")
            a(f"v_add_u32 v{vT0}, v{vT0}, v{vT1}")
            for f_ in range(2):
                for t in range(2):
                    for g in range(2):
                        a(f"s_add_u32 s{sT0}, s59, {f_*2*65536 + (t*2+g)*512}")
                        a(f"buffer_store_dwordx4 {vr(vPz+1,4)}, v{vT0}, s[{srdWS}:{srdWS+3}], s{sT0} offen{SC}")
            a.label(f"{name}_noqp")
    ER = (base + 7) // 4 * 4 + 4
    if not PAR.get("PLATE", 1): emit_poison()
    EB0, EB1 = PAR.get("EB0", 1), PAR.get("EB1", 3)
    srd(a, srdA, sX, 2048*1024)
    nb = 0
    while nb < EB0:
        a("s_barrier"); nb += 1
    emit_edge_loads(a, name, V, ER, sF, 30)
    while nb < EB1:
        a("s_barrier"); nb += 1
    emit_edge_compute(a, name, V, ER, sF, 30, "p")
    if PAR.get("PLATE", 1): emit_poison()
    while nb < 5:
        a("s_barrier"); nb += 1
    a(f"s_cmp_lg_u32 s{sF}, 0")
    a(f"s_cbranch_scc1 {name}_nn2")
    a(f"v_mov_b32 v{vT0}, 0")
    a(f"s_mov_b32 s{sT1}, {SPIN_MAX}")
    a.label(f"{name}_npoll")
    a(f"global_load_dword v{vT1}, v{vT0}, s[{sDbg}:{sDbg+1}] sc1")
    a("s_waitcnt vmcnt(0)")
    a(f"v_readfirstlane_b32 s{sN}, v{vT1}")
    a(f"s_sub_u32 s{sT1}, s{sT1}, 1")
    a(f"s_cbranch_scc1 {name}_npoll_ok")
    a("s_nop 1")
    a(f"s_cmp_lg_u32 s{sN}, 0")
    a(f"s_cbranch_scc1 {name}_npoll_ok")
    a("s_sleep 1")
    a(f"s_branch {name}_npoll")
    a.label(f"{name}_npoll_ok")
    a(f"v_mov_b32 v{vT0}, {C_NONCE}")
    a(f"v_mov_b32 v{vT1}, s{sN}")
    a(f"ds_write_b32 v{vT0}, v{vT1}")
    a.label(f"{name}_nn2")
    a("s_waitcnt vmcnt(0) lgkmcnt(0)")
    for i in range(5, 9):
        a("s_barrier")
        if i == 5 and PAR.get("QDIRECT", 0):
            a("s_cmp_eq_u32 s58, 0")
            a(f"s_cbranch_scc1 {name}_noqf")
            a(f"s_cmp_lg_u32 s{sF}, 0")
            a(f"s_cbranch_scc1 {name}_noqf")
            publish(a, vT0, vT1, 57)
            a.label(f"{name}_noqf")
    tl_stamp(a, 0)

    Rf = RegAlloc(base, 168)
    vB_ = Rf.alloc("boff"); vY = Rf.alloc("yaddr"); vFl = Rf.alloc("flag")
    accP = Rf.alloc("accP", 16); accQ = Rf.alloc("accQ", 16)
    buf = Rf.alloc("buf", 112)
    vCn = Rf.alloc("cn", 4)
    nvmax[0] = max(nvmax[0], Rf.next)
    sKoff, sVoff = 56, 57
    sTt, sEt, sHasQ, sA, sBq, sK, sJob, sCnt = 58, 59, 60, 61, 62, 63, 30, 31
    decode_hq(a)
    KB = accP
    sPend, sQd, sSlot = 60, 61, 62
    sEd = 30
    a(f"s_mov_b32 s{sEd}, 0")
    a(f"s_lshl_b32 s{sKoff}, s{sHead}, 16")
    a(f"s_add_u32 s{sKoff}, s{sKoff}, {WS_K}")
    if PAR.get("KVDIRECT", 0):
        vVw, vCa, vCa2, vCd = KB + 40, KB + 41, KB + 42, KB + 44
        a(f"s_cmp_lg_u32 s{sF}, 0")
        a(f"s_cbranch_scc1 {name}_kd1")
        a(f"s_add_u32 s{sT0}, s2, {FL_E}")
        publish(a, vT0, vT1, sT0)
        a(f"s_lshr_b32 s{sT0}, s{sHead}, 3")
        a(f"s_lshl_b32 s{sT0}, s{sT0}, 4")
        a(f"s_add_u32 s{sT0}, s{sT0}, {FL_O}")
        a(f"v_and_b32 v{vT0}, 15, v{vLane}")
        a(f"v_bfe_u32 v{vT1}, v{vLane}, 4, 1")
        a(f"v_lshlrev_b32 v{vT1}, 6, v{vT1}")
        a(f"v_add_u32 v{vT0}, v{vT0}, v{vT1}")
        a(f"v_add_u32 v{vT0}, 64, v{vT0}")
        a(f"v_and_b32 v{vT1}, 1, v{vLane}")
        a(f"s_lshl_b32 s{sT1}, s{sQb}, 1")
        a(f"v_add_u32 v{vT1}, s{sT1}, v{vT1}")
        a(f"v_cmp_gt_u32 vcc, 32, v{vLane}")
        a("s_nop 1")
        a(f"v_cndmask_b32 v{vT0}, v{vT1}, v{vT0}, vcc")
        a(f"v_add_u32 v{vT0}, s{sT0}, v{vT0}")
        a(f"v_lshlrev_b32 v{vFl}, {FSH}, v{vT0}")
        a(f"v_add_u32 v{vFl}, {WS_FLAG}, v{vFl}")
        gpoll(a, vFl, vT0, f"{name}_gp", sCnt, sleep=2)
        lsig(a, vT0, vT1, C_GO)
        a(f"s_branch {name}_kd2")
        a.label(f"{name}_kd1")
        lwait(a, vT0, vT1, sT0, C_GO, 1, f"{name}_kdw", sleep=1)
        a.label(f"{name}_kd2")
        tl_stamp(a, 1)
        a(f"v_lshrrev_b32 v{vT0}, 5, v{vLane}")
        a(f"v_mul_u32_u24 v{vT0}, {VG}, v{vT0}")
        a(f"v_and_b32 v{vT1}, 31, v{vLane}")
        a(f"v_lshlrev_b32 v{vT1}, 4, v{vT1}")
        a(f"v_add_u32 v{vVw}, v{vT0}, v{vT1}")
        a(f"v_lshrrev_b32 v{vT0}, 1, v{vLane}")
        a(f"v_mul_u32_u24 v{vT0}, {VG}, v{vT0}")
        a(f"v_and_b32 v{vT1}, 1, v{vLane}")
        a(f"v_lshlrev_b32 v{vT2}, 4, v{vT1}")
        a(f"v_add_u32 v{vT0}, v{vT0}, v{vT2}")
        a(f"v_add_u32 v{vCa}, 512, v{vT0}")
        a(f"v_cmp_eq_u32 vcc, 0, v{vT1}")
        a(f"v_mov_b32 v{vT0}, 0x3f803f80")
        a("s_nop 0")
        for i in range(4):
            a(f"v_cndmask_b32 v{vCd+i}, 0, v{vT0}, vcc")
        a(f"v_mov_b32 v{vT0}, {C_QUE}")
        a(f"v_mov_b32 v{vT1}, 1")
        a(f"ds_write_b32 v{vT0}, v{vT1}")
        a(f"ds_write_b32 v{vT0}, v{vT1} offset:4")
        a(f"s_mov_b32 s{sPend}, 15")
        a(f"s_mov_b32 s{sQd}, 0")
        a(f"s_mov_b32 s{sCnt}, {SPIN_MAX}")
        a.label(f"{name}_kdloop")
        a(f"s_lshl_b32 s{sT0}, s{sPend}, 4")
        a(f"s_or_b32 s{sT0}, s{sT0}, s{sPend}")
        a(f"s_lshr_b32 s{sT0}, s{sT0}, s{sQd}")
        a(f"s_ff1_i32_b32 s{sT1}, s{sT0}")
        a(f"s_add_u32 s{sQd}, s{sQd}, s{sT1}")
        a(f"s_and_b32 s{sQd}, s{sQd}, 3")
        a(f"s_lshl_b32 s{sT0}, s{sQd}, 2")
        a(f"s_add_u32 s{sT0}, s{sT0}, s{sF}")
        a(f"s_lshl_b32 s{sT0}, s{sT0}, 12")
        a(f"s_add_u32 s{sT0}, s{sT0}, s{sKoff}")
        for t in range(4):
            a(f"s_add_u32 s{sT1}, s{sT0}, {t*1024}")
            a(f"buffer_load_dwordx4 {vr(KB+4*t,4)}, v{vL16}, s[{srdWS}:{srdWS+3}], s{sT1} offen{SC}")
            a(f"s_add_u32 s{sT1}, s{sT1}, {WS_V - WS_K}")
            a(f"buffer_load_dwordx4 {vr(KB+16+4*t,4)}, v{vL16}, s[{srdWS}:{srdWS+3}], s{sT1} offen{SC}")
        a("s_waitcnt vmcnt(0)")
        a(f"v_max3_u32 v{vT0}, v{KB}, v{KB+1}, v{KB+2}")
        for i in range(3, 31, 2):
            a(f"v_max3_u32 v{vT0}, v{vT0}, v{KB+i}, v{KB+i+1}")
        a(f"v_max_u32 v{vT0}, v{vT0}, v{KB+31}")
        a(f"v_cmp_eq_u32 vcc, -1, v{vT0}")
        a(f"s_sub_u32 s{sCnt}, s{sCnt}, 1")
        a(f"s_cbranch_scc1 {name}_kdok")
        a("s_nop 2")
        a(f"s_cbranch_vccz {name}_kdok")
        a(f"s_add_u32 s{sQd}, s{sQd}, 1")
        a(f"s_and_b32 s{sQd}, s{sQd}, 3")
        a(f"s_sleep {PAR.get('KSLEEP', 2)}")
        a(f"s_branch {name}_kdloop")
        a.label(f"{name}_kdok")
        a(f"s_bitset0_b32 s{sPend}, s{sQd}")
        a(f"v_mov_b32 v{vT0}, {C_SLOT}")
        a(f"v_mov_b32 v{vT1}, 1")
        a("s_mov_b64 exec, 1")
        a(f"ds_add_rtn_u32 v{vT2}, v{vT0}, v{vT1}")
        a("s_waitcnt lgkmcnt(0)")
        a("s_mov_b64 exec, -1")
        a(f"v_readfirstlane_b32 s{sSlot}, v{vT2}")
        a("s_nop 3")
        a(f"s_and_b32 s{sSlot}, s{sSlot}, 15")
        a(f"s_and_b32 s{sT1}, s{sSlot}, 1")
        a(f"s_lshr_b32 s{sT2}, s{sSlot}, 1")
        a(f"s_mul_i32 s58, s{sT1}, {VHALF}")
        a(f"s_mul_i32 s59, s{sT2}, {8*VG}")
        a(f"s_add_u32 s58, s58, s59")
        a(f"s_add_u32 s58, s58, 65536")
        a(f"s_lshl_b32 s{sT1}, s{sT1}, 15")
        a(f"s_lshl_b32 s{sT2}, s{sT2}, 12")
        a(f"s_add_u32 s{sT1}, s{sT1}, s{sT2}")
        a(f"v_add_u32 v{vT2}, s{sT1}, v{vL16}")
        a(f"v_add_u32 v{vT3}, s58, v{vVw}")
        a(f"v_add_u32 v{vCa2}, s58, v{vCa}")
        a(f"s_lshl_b32 s{sT0}, s{sSlot}, 2")
        a(f"s_add_u32 s{sT0}, s{sT0}, {C_RDY}")
        a(f"v_mov_b32 v{vT0}, s{sT0}")
        a("s_mov_b32 exec_lo, 0xffff")
        a("s_mov_b32 exec_hi, 0")
        a(f"ds_write_b128 v{vCa2}, {vr(vCd,4)}")
        a("s_mov_b64 exec, -1")
        for t in range(4):
            a(f"ds_write_b128 v{vT2}, {vr(KB+4*t,4)} offset:{t*1024}")
            a(f"ds_write_b128 v{vT3}, {vr(KB+16+4*t,4)} offset:{t*2*VG}")
        a("s_waitcnt lgkmcnt(0)")
        a(f"ds_write_b32 v{vT0}, v{vT1}")
        a(f"s_cmp_lg_u32 s{sPend}, 0")
        a(f"s_cbranch_scc1 {name}_kdloop")
        a(f"s_branch {name}_kvdone")
    a(f"s_cmp_lg_u32 s{sF}, 0")
    a(f"s_cbranch_scc1 {name}_kvld")
    a(f"s_add_u32 s{sT0}, s2, {FL_E}")
    publish(a, vT0, vT1, sT0)
    tl_stamp(a, 1)
    a(f"s_lshr_b32 s{sT0}, s{sHead}, 3")
    a(f"s_lshl_b32 s{sT0}, s{sT0}, 4")
    a(f"v_and_b32 v{vT0}, 15, v{vLane}")
    a(f"v_bfe_u32 v{vT1}, v{vLane}, 4, 1")
    a(f"v_lshlrev_b32 v{vT1}, 6, v{vT1}")
    a(f"v_add_u32 v{vT0}, v{vT0}, v{vT1}")
    a(f"v_add_u32 v{vT0}, 64, v{vT0}")
    a(f"v_and_b32 v{vT1}, 1, v{vLane}")
    a(f"s_lshl_b32 s{sT1}, s{sQb}, 1")
    if PAR.get("QDIRECT", 0): a(f"s_add_u32 s{sT1}, s{sT1}, {FL_O}")
    a(f"v_add_u32 v{vT1}, s{sT1}, v{vT1}")
    a(f"v_cmp_gt_u32 vcc, 32, v{vLane}")
    a("s_nop 1")
    a(f"v_cndmask_b32 v{vT0}, v{vT1}, v{vT0}, vcc")
    a(f"v_add_u32 v{vT0}, s{sT0}, v{vT0}")
    a(f"v_lshlrev_b32 v{vFl}, {FSH}, v{vT0}")
    a(f"v_add_u32 v{vFl}, {WS_FLAG}, v{vFl}")
    a(f"s_mov_b32 s{sPend}, 0xffff")
    a(f"s_mov_b32 s{sQd}, 0")
    a(f"s_mov_b32 s{sSlot}, 0")
    a(f"s_mov_b32 s{sCnt}, {SPIN_MAX}")
    a.label(f"{name}_dpoll")
    a(f"global_load_dword v{vT0}, v{vFl}, s[{sWS}:{sWS+1}] sc1")
    a("s_waitcnt vmcnt(0)")
    a(f"v_cmp_eq_u32 vcc, s{sN}, v{vT0}")
    a(f"s_sub_u32 s{sCnt}, s{sCnt}, 1")
    a(f"s_cbranch_scc0 {name}_dnt")
    a("s_mov_b64 vcc, -1")
    a.label(f"{name}_dnt")
    a("s_nop 2")
    a(f"s_mov_b32 s56, vcc_lo")
    a(f"s_mov_b32 s57, vcc_hi")
    a(f"s_cmp_lg_u32 s{sQd}, 0")
    a(f"s_cbranch_scc1 {name}_dq")
    a(f"s_cmp_lg_u32 s57, -1")
    a(f"s_cbranch_scc1 {name}_dq")
    a(f"s_mov_b32 s{sQd}, 1")
    tl_stamp(a, 2)
    if TL["on"]: a("s_waitcnt lgkmcnt(0)")
    lsig(a, vT0, vT1, C_GO)
    a.label(f"{name}_dq")
    a(f"s_lshr_b32 s{sT0}, s56, 16")
    a(f"s_and_b32 s{sT0}, s{sT0}, s56")
    a(f"s_and_b32 s{sT0}, s{sT0}, s{sPend}")
    a(f"s_cmp_eq_u32 s{sT0}, 0")
    a(f"s_cbranch_scc1 {name}_dnone")
    a(f"s_andn2_b32 s{sPend}, s{sPend}, s{sT0}")
    a.label(f"{name}_dq1")
    a(f"s_ff1_i32_b32 s{sT1}, s{sT0}")
    a(f"s_bitset0_b32 s{sT0}, s{sT1}")
    a(f"s_add_u32 s{sT1}, s{sT1}, 1")
    a(f"s_lshl_b32 s{sT2}, s{sSlot}, 2")
    a(f"s_add_u32 s{sT2}, s{sT2}, {C_QUE}")
    a(f"v_mov_b32 v{vT0}, s{sT2}")
    a(f"v_mov_b32 v{vT1}, s{sT1}")
    a(f"ds_write_b32 v{vT0}, v{vT1}")
    a(f"s_add_u32 s{sSlot}, s{sSlot}, 1")
    a(f"s_cmp_lg_u32 s{sT0}, 0")
    a(f"s_cbranch_scc1 {name}_dq1")
    a.label(f"{name}_dnone")
    a(f"s_cmp_eq_u32 s{sQd}, 0")
    a(f"s_cbranch_scc1 {name}_dagain")
    a(f"s_cmp_eq_u32 s{sPend}, 0")
    a(f"s_cbranch_scc1 {name}_kvdone")
    a.label(f"{name}_dagain")
    a(f"s_sleep {PAR.get('DSLEEP', 4)}")
    a(f"s_branch {name}_dpoll")
    a.label(f"{name}_kvld")
    read_nonce(a, vT0, vT1)
    vVw, vCa, vCa2, vCd = KB + 40, KB + 41, KB + 42, KB + 44
    a(f"v_lshrrev_b32 v{vT0}, 5, v{vLane}")
    a(f"v_mul_u32_u24 v{vT0}, {VG}, v{vT0}")
    a(f"v_and_b32 v{vT1}, 31, v{vLane}")
    a(f"v_lshlrev_b32 v{vT1}, 4, v{vT1}")
    a(f"v_add_u32 v{vVw}, v{vT0}, v{vT1}")
    a(f"v_lshrrev_b32 v{vT0}, 1, v{vLane}")
    a(f"v_mul_u32_u24 v{vT0}, {VG}, v{vT0}")
    a(f"v_and_b32 v{vT1}, 1, v{vLane}")
    a(f"v_lshlrev_b32 v{vT2}, 4, v{vT1}")
    a(f"v_add_u32 v{vT0}, v{vT0}, v{vT2}")
    a(f"v_add_u32 v{vCa}, 512, v{vT0}")
    a(f"v_cmp_eq_u32 vcc, 0, v{vT1}")
    a(f"v_mov_b32 v{vT0}, 0x3f803f80")
    a("s_nop 0")
    for i in range(4):
        a(f"v_cndmask_b32 v{vCd+i}, 0, v{vT0}, vcc")
    a(f"s_sub_u32 s{sSlot}, s{sF}, 1")
    a.label(f"{name}_kvnext")
    a(f"s_lshl_b32 s{sT2}, s{sSlot}, 2")
    a(f"s_add_u32 s63, s{sT2}, {C_QUE}")
    lwait(a, vT0, vT1, sT0, "s63", 1, f"{name}_kvwq", sleep=1)
    a(f"s_sub_u32 s{sT0}, s{sT0}, 1")
    a(f"s_and_b32 s{sT0}, s{sT0}, 15")
    a(f"s_lshl_b32 s{sT0}, s{sT0}, 12")
    a(f"s_add_u32 s{sT0}, s{sT0}, s{sKoff}")
    for t in range(4):
        a(f"s_add_u32 s{sT1}, s{sT0}, {t*1024}")
        a(f"buffer_load_dwordx4 {vr(KB+4*t,4)}, v{vL16}, s[{srdWS}:{srdWS+3}], s{sT1} offen{SC}")
        a(f"s_add_u32 s{sT1}, s{sT1}, {WS_V - WS_K}")
        a(f"buffer_load_dwordx4 {vr(KB+16+4*t,4)}, v{vL16}, s[{srdWS}:{srdWS+3}], s{sT1} offen{SC}")
    a(f"s_and_b32 s{sT1}, s{sSlot}, 1")
    a(f"s_lshr_b32 s{sT2}, s{sSlot}, 1")
    a(f"s_mul_i32 s58, s{sT1}, {VHALF}")
    a(f"s_mul_i32 s59, s{sT2}, {8*VG}")
    a(f"s_add_u32 s58, s58, s59")
    a(f"s_add_u32 s58, s58, 65536")
    a(f"s_lshl_b32 s{sT1}, s{sT1}, 15")
    a(f"s_lshl_b32 s{sT2}, s{sT2}, 12")
    a(f"s_add_u32 s{sT1}, s{sT1}, s{sT2}")
    a(f"v_add_u32 v{vT2}, s{sT1}, v{vL16}")
    a(f"v_add_u32 v{vT3}, s58, v{vVw}")
    a(f"v_add_u32 v{vCa2}, s58, v{vCa}")
    a(f"s_lshl_b32 s{sT0}, s{sSlot}, 2")
    a(f"s_add_u32 s{sT0}, s{sT0}, {C_RDY}")
    a(f"v_mov_b32 v{vT0}, s{sT0}")
    a(f"v_mov_b32 v{vT1}, 1")
    a("s_mov_b32 exec_lo, 0xffff")
    a("s_mov_b32 exec_hi, 0")
    a(f"ds_write_b128 v{vCa2}, {vr(vCd,4)}")
    a("s_mov_b64 exec, -1")
    a("s_waitcnt vmcnt(0)")
    for t in range(4):
        a(f"ds_write_b128 v{vT2}, {vr(KB+4*t,4)} offset:{t*1024}")
        a(f"ds_write_b128 v{vT3}, {vr(KB+16+4*t,4)} offset:{t*2*VG}")
    a("s_waitcnt lgkmcnt(0)")
    a(f"ds_write_b32 v{vT0}, v{vT1}")
    a(f"s_cmp_lg_u32 s{sEd}, 1")
    a(f"s_cbranch_scc1 {name}_kvne")
    a(f"s_cmp_ge_u32 s{sF}, 3")
    a(f"s_cbranch_scc1 {name}_kvne")
    a(f"v_and_b32 v{vT0}, 31, v{vLane}")
    a(f"s_lshl_b32 s{sT0}, s{sHead}, 5")
    a(f"v_add_u32 v{vT0}, s{sT0}, v{vT0}")
    a(f"v_lshlrev_b32 v{vT0}, 12, v{vT0}")
    a(f"v_lshrrev_b32 v{vT1}, 5, v{vLane}")
    a(f"s_lshl_b32 s{sT0}, s{sQb}, 1")
    a(f"v_add_u32 v{vT1}, s{sT0}, v{vT1}")
    a(f"v_lshlrev_b32 v{vT1}, 7, v{vT1}")
    a(f"v_add_u32 v{vT0}, v{vT0}, v{vT1}")
    a(f"s_cmp_eq_u32 s{sF}, 1")
    a(f"s_cselect_b32 s{sT0}, s{sSre}, s{sSim}")
    a(f"s_cselect_b32 s{sT1}, s{sSre+1}, s{sSim+1}")
    a(f"global_load_dword v{KB+96}, v{vT0}, s[{sT0}:{sT0+1}]")
    a.label(f"{name}_kvne")
    a(f"s_add_u32 s{sEd}, s{sEd}, 1")
    a(f"s_add_u32 s{sSlot}, s{sSlot}, 3")
    a(f"s_cmp_lt_u32 s{sSlot}, 16")
    a(f"s_cbranch_scc1 {name}_kvnext")
    a.label(f"{name}_kvdone")
    tl_stamp(a, 3)
    srd(a, srdA, sSre, 2048*4096)
    srd(a, srdB, sSim, 2048*4096)
    srd(a, srdC, sWo, 512*1024)
    a(f"s_lshl_b32 s{sT0}, s{sQb}, 7")
    a(f"s_lshl_b32 s{sT1}, s{sF}, 17")
    a(f"s_add_u32 s{sT0}, s{sT0}, s{sT1}")
    a(f"v_lshlrev_b32 v{vT0}, 10, v{vLane}")
    a(f"buffer_load_dword v{vT3}, v{vT0}, s[{srdC}:{srdC+3}], s{sT0} offen")
    a(f"s_add_u32 s{sT0}, s{sT0}, 65536")
    a(f"buffer_load_dword v{vT3}, v{vT0}, s[{srdC}:{srdC+3}], s{sT0} offen")
    a(f"s_cmp_lg_u32 s{sF}, 0")
    a(f"s_cbranch_scc1 {name}_fnz2")
    a(f"v_lshlrev_b32 v{vFl}, {FSH}, v{vLane}")
    a(f"v_add_u32 v{vFl}, {WS_FLAG + (FL_F1 << FSH)}, v{vFl}")
    a(f"s_mov_b32 s{sCnt}, {SPIN_MAX}")
    a.label(f"{name}_g1")
    a(f"global_load_dword v{buf}, v{vFl}, s[{sWS}:{sWS+1}] sc1")
    for i in range(4):
        a(f"v_add_u32 v{buf+8}, {((FL_E - FL_F1 + 64*i) << FSH)}, v{vFl}")
        a(f"global_load_dword v{buf+1+i}, v{buf+8}, s[{sWS}:{sWS+1}] sc1")
    a("s_waitcnt vmcnt(0)")
    a(f"v_cmp_ne_u32 vcc, s{sN}, v{buf}")
    for i in range(4):
        a(f"v_cmp_ne_u32 s[{sT0}:{sT0+1}], s{sN}, v{buf+1+i}")
        a("s_nop 1")
        a(f"s_or_b64 vcc, vcc, s[{sT0}:{sT0+1}]")
    a(f"s_sub_u32 s{sCnt}, s{sCnt}, 1")
    a(f"s_cbranch_scc1 {name}_g1_ok")
    a("s_nop 2")
    a(f"s_cbranch_vccz {name}_g1_ok")
    a("s_sleep 8")
    a(f"s_branch {name}_g1")
    a.label(f"{name}_g1_ok")
    lsig(a, vT0, vT1, C_GO2)
    a(f"s_branch {name}_fgo2")
    a.label(f"{name}_fnz2")
    lwait(a, vT0, vT1, sT0, C_GO2, 1, f"{name}_fwgo2", sleep=8)
    a.label(f"{name}_fgo2")
    tl_stamp(a, 4)

    accX = buf; accW = buf + 16; fb = buf + 32
    a(f"s_mov_b32 s{sTt}, s{sHead}")
    a(f"s_mov_b32 s{sEt}, s{sQb}")
    a(f"v_and_b32 v{vT0}, 31, v{vLane}")
    a(f"s_lshl_b32 s{sT0}, s{sTt}, 5")
    a(f"v_add_u32 v{vT0}, s{sT0}, v{vT0}")
    a(f"v_mul_u32_u24 v{vY}, {Y_STRIDE}, v{vT0}")
    a(f"v_lshlrev_b32 v{vT0}, 12, v{vT0}")
    a(f"v_lshrrev_b32 v{vT1}, 5, v{vLane}")
    a(f"v_lshlrev_b32 v{vT1}, 4, v{vT1}")
    a(f"v_add_u32 v{vB_}, v{vT0}, v{vT1}")
    a(f"v_add_u32 v{vY}, v{vY}, v{vT1}")
    for i in range(16):
        a(f"v_mov_b32 v{accP+i}, 0")
        a(f"v_mov_b32 v{accQ+i}, 0")
        a(f"v_mov_b32 v{accX+i}, 0")
        a(f"v_mov_b32 v{accW+i}, 0")
    for i in range(4):
        a(f"v_mov_b32 v{vCn+i}, 0xbf803f80")
    a(f"s_lshl_b32 s{sK}, s{sF}, 4")
    a(f"s_mul_i32 s{sA}, s{sEt}, {A_KSTEPS}")
    a(f"s_add_u32 s{sA}, s{sA}, s{sK}")
    a(f"s_lshl_b32 s{sA}, s{sA}, 10")
    a(f"s_add_u32 s{sA}, s{sA}, {WS_A}")
    a(f"s_add_u32 s{sHasQ}, s{sK}, {8*A_KSTEPS}")
    a(f"s_lshl_b32 s{sHasQ}, s{sHasQ}, 10")
    a(f"s_add_u32 s{sHasQ}, s{sHasQ}, {WS_A}")
    sA8 = sHasQ
    a(f"s_mul_i32 s{sBq}, s{sEt}, {B_KSTEPS}")
    a(f"s_add_u32 s{sBq}, s{sBq}, s{sK}")
    a(f"s_lshl_b32 s{sBq}, s{sBq}, 10")
    a(f"s_add_u32 s{sBq}, s{sBq}, {WS_B}")
    a(f"s_lshl_b32 s{sK}, s{sK}, 5")
    a(f"s_cmp_eq_u32 s{sEt}, 0")
    a(f"s_cselect_b32 s{sJob}, 1, 0")
    a(f"s_cmp_eq_u32 s{sTt}, 0")
    a(f"s_cselect_b32 s{sT0}, 2, 0")
    a(f"s_or_b32 s{sJob}, s{sJob}, s{sT0}")
    a(f"s_cmp_eq_u32 s2, 8")
    a(f"s_cselect_b32 s{sT0}, 4, 0")
    a(f"s_or_b32 s{sJob}, s{sJob}, s{sT0}")
    vm = Vm(a)
    NFL = 4
    def ld_k(k, slot, withq=True):
        r = fb + slot * 20
        a(f"s_add_u32 s{sT0}, s{sA}, {k*1024}")
        a(f"buffer_load_dwordx4 {vr(r,4)}, v{vL16}, s[{srdWS}:{srdWS+3}], s{sT0} offen{SC}")
        a(f"s_add_u32 s{sT0}, s{sK}, {k*32}")
        a(f"buffer_load_dwordx4 {vr(r+4,4)}, v{vB_}, s[{srdA}:{srdA+3}], s{sT0} offen")
        a(f"s_add_u32 s{sT0}, s{sA8}, {k*1024}")
        a(f"buffer_load_dwordx4 {vr(r+16,4)}, v{vL16}, s[{srdWS}:{srdWS+3}], s{sT0} offen{SC}")
        n = 3
        if withq:
            a(f"s_add_u32 s{sT0}, s{sBq}, {k*1024}")
            a(f"buffer_load_dwordx4 {vr(r+8,4)}, v{vL16}, s[{srdWS}:{srdWS+3}], s{sT0} offen{SC}")
            a(f"s_add_u32 s{sT0}, s{sK}, {k*32}")
            a(f"buffer_load_dwordx4 {vr(r+12,4)}, v{vB_}, s[{srdB}:{srdB+3}], s{sT0} offen")
            n = 5
        vm.issue(k, n)
    lab = [0]
    def mf_k(slot, withq=True):
        r = fb + slot * 20
        lab[0] += 1
        L = f"{name}_fm{lab[0]}"
        a(f"v_mfma_f32_32x32x16_bf16 {vr(accP,16)}, {vr(r,4)}, {vr(r+4,4)}, {vr(accP,16)}")
        if withq:
            a(f"v_mfma_f32_32x32x16_bf16 {vr(accQ,16)}, {vr(r+8,4)}, {vr(r+12,4)}, {vr(accQ,16)}")
        a(f"s_cmp_eq_u32 s{sJob}, 0")
        a(f"s_cbranch_scc1 {L}c")
        a(f"s_bitcmp1_b32 s{sJob}, 0")
        a(f"s_cbranch_scc0 {L}a")
        a(f"v_mfma_f32_32x32x16_bf16 {vr(accX,16)}, {vr(r+16,4)}, {vr(r+4,4)}, {vr(accX,16)}")
        a.label(f"{L}a")
        a(f"s_bitcmp1_b32 s{sJob}, 1")
        a(f"s_cbranch_scc0 {L}b")
        a(f"v_mfma_f32_32x32x16_bf16 {vr(accW,16)}, {vr(r,4)}, {vr(vCn,4)}, {vr(accW,16)}")
        a.label(f"{L}b")
        a(f"s_bitcmp1_b32 s{sJob}, 2")
        a(f"s_cbranch_scc0 {L}c")
        a(f"v_mfma_f32_32x32x16_bf16 {vr(accW,16)}, {vr(r+16,4)}, {vr(vCn,4)}, {vr(accW,16)}")
        a.label(f"{L}c")
    if EXP.get("nof2"): a(f"s_branch {name}_fnox")
    if PAR.get("F2B", 0):
        a(f"s_cmp_lg_u32 s{sJob}, 0")
        a(f"s_cbranch_scc1 {name}_f2old")
        RS = [fb, fb + 16]; AF = [fb + 32, fb + 48]; BF = fb + 64
        vRo = [accX, accX + 1]; vWr_ = accX + 2; vRd_ = [accX + 4 + j for j in range(4)]
        a(f"v_lshrrev_b32 v{vT0}, 3, v{vLane}")
        a(f"s_lshl_b32 s{sT0}, s{sTt}, 5")
        a(f"v_add_u32 v{vT0}, s{sT0}, v{vT0}")
        a(f"v_lshlrev_b32 v{vT0}, 12, v{vT0}")
        a(f"v_lshrrev_b32 v{vT1}, 4, v{vLane}")
        a(f"v_and_b32 v{vT2}, 7, v{vLane}")
        for p in range(2):
            a(f"v_add_u32 v{vT3}, {4*p}, v{vT1}")
            a(f"v_xor_b32 v{vT3}, v{vT3}, v{vT2}")
            a(f"v_lshlrev_b32 v{vT3}, 4, v{vT3}")
            a(f"v_add_u32 v{vRo[p]}, v{vT0}, v{vT3}")
        a(f"s_lshl_b32 s{sT0}, s{sF}, 12")
        a(f"s_add_u32 s{sT0}, s{sT0}, {LDS_RED}")
        a(f"v_add_u32 v{vWr_}, s{sT0}, v{vL16}")
        a(f"v_and_b32 v{vT0}, 31, v{vLane}")
        a(f"v_lshrrev_b32 v{vT1}, 5, v{vLane}")
        a(f"v_lshrrev_b32 v{vT2}, 1, v{vT0}")
        a(f"v_and_b32 v{vT2}, 7, v{vT2}")
        a(f"v_xor_b32 v{vT2}, v{vT2}, v{vT1}")
        a(f"v_lshlrev_b32 v{vT2}, 4, v{vT2}")
        a(f"v_lshlrev_b32 v{vT0}, 7, v{vT0}")
        a(f"v_add_u32 v{vT0}, v{vT0}, v{vT2}")
        for j in range(4):
            a(f"v_xor_b32 v{vT3}, {j*32}, v{vT0}")
            a(f"v_add_u32 v{vRd_[j]}, s{sT0}, v{vT3}")
        vm = Vm(a)
        def rows(i):
            r, m = i >> 1, i & 1
            sr_ = srdA if m == 0 else srdB
            for j in range(4):
                a(f"s_add_u32 s{sT0}, s{sK}, {j*32768 + r*128}")
                a(f"buffer_load_dwordx4 {vr(RS[i&1]+4*j,4)}, v{vRo[j&1]}, s[{sr_}:{sr_+3}], s{sT0} offen")
            vm.issue(("R", i), 4)
        def afr(i):
            r, m = i >> 1, i & 1
            sb = sA if m == 0 else sBq
            for q in range(4):
                a(f"s_add_u32 s{sT0}, s{sb}, {(4*r+q)*1024}")
                a(f"buffer_load_dwordx4 {vr(AF[i&1]+4*q,4)}, v{vL16}, s[{srdWS}:{srdWS+3}], s{sT0} offen{SC}")
            vm.issue(("A", i), 4)
        rows(0); afr(0); rows(1); afr(1)
        for i in range(8):
            vm.wait(("R", i))
            for j in range(4):
                a(f"ds_write_b128 v{vWr_}, {vr(RS[i&1]+4*j,4)} offset:{j*1024}")
            a("s_waitcnt lgkmcnt(0)")
            for q in range(4):
                a(f"ds_read_b128 {vr(BF+4*q,4)}, v{vRd_[q]}")
            if i + 2 < 8: rows(i + 2)
            vm.wait(("A", i))
            a("s_waitcnt lgkmcnt(0)")
            acc_ = accP if (i & 1) == 0 else accQ
            for q in range(4):
                a(f"v_mfma_f32_32x32x16_bf16 {vr(acc_,16)}, {vr(AF[i&1]+4*q,4)}, {vr(BF+4*q,4)}, {vr(acc_,16)}")
            if i + 2 < 8:
                a("s_nop 4")
                afr(i + 2)
        a(f"v_mov_b32 v{accX}, 0")
        lsig(a, vT0, vT1, C_FB)
        a(f"s_branch {name}_f2x")
        a.label(f"{name}_f2old")
    vm = Vm(a)
    for k in range(NFL): ld_k(k, k)
    for k in range(16):
        vm.wait(k)
        mf_k(k % NFL)
        if k + NFL < 16:
            a("s_nop 4")
            ld_k(k + NFL, k % NFL)
    a.label(f"{name}_f2x")
    a(f"s_cmp_lg_u32 s{sF}, 0")
    a(f"s_cbranch_scc1 {name}_fnox")
    a("s_nop 4")
    vm = Vm(a)
    ld_k(64, 0, withq=False)
    a("s_waitcnt vmcnt(0)")
    mf_k(0, withq=False)
    a.label(f"{name}_fnox")
    a("s_nop 15")
    a("s_nop 3")
    for i in range(16):
        a(f"v_sub_f32 v{fb+i}, v{accP+i}, v{accQ+i}")
        a(f"v_add_f32 v{accQ+i}, v{accP+i}, v{accQ+i}")
    for i in range(16):
        a(f"v_mov_b32 v{accP+i}, v{fb+i}")
    WA = 8192 + 256 + 256
    a(f"s_cmp_eq_u32 s{sF}, 0")
    a(f"s_cbranch_scc1 {name}_fred0")
    if PAR.get("F2B", 0):
        a(f"s_cmp_lg_u32 s{sJob}, 0")
        a(f"s_cbranch_scc1 {name}_fbw")
        lwait(a, vT0, vT1, sT0, C_FB, 4, f"{name}_fbw_l", sleep=2)
        a.label(f"{name}_fbw")
    a(f"s_sub_u32 s{sT0}, s{sF}, 1")
    a(f"s_mul_i32 s{sT0}, s{sT0}, {WA}")
    a(f"s_add_u32 s{sT0}, s{sT0}, {LDS_RED}")
    a(f"v_add_u32 v{vT0}, s{sT0}, v{vL16}")
    for q in range(8):
        a(f"ds_write_b128 v{vT0}, {vr(accP+4*q,4)} offset:{q*1024}")
    a(f"v_lshrrev_b32 v{vT1}, 2, v{vL16}")
    a(f"v_add_u32 v{vT1}, s{sT0}, v{vT1}")
    a(f"ds_write_b32 v{vT1}, v{accX} offset:8192")
    a(f"v_lshrrev_b32 v{vT1}, 5, v{vLane}")
    a(f"v_lshlrev_b32 v{vT1}, 6, v{vT1}")
    a(f"v_add_u32 v{vT1}, s{sT0}, v{vT1}")
    a("s_mov_b32 exec_lo, 1")
    a("s_mov_b32 exec_hi, 1")
    for q in range(4):
        a(f"ds_write_b128 v{vT1}, {vr(accW+4*q,4)} offset:{8192 + 256 + q*16}")
    a("s_mov_b64 exec, -1")
    a("s_waitcnt lgkmcnt(0)")
    lsig(a, vT0, vT1, C_R0)
    a(f"s_branch {name}_fsig")
    a.label(f"{name}_fred0")
    lwait(a, vT0, vT1, sT0, C_R0, 3, f"{name}_fw0", sleep=2)
    a(f"v_add_u32 v{vT0}, {LDS_RED}, v{vL16}")
    a(f"v_lshrrev_b32 v{vT2}, 2, v{vL16}")
    a(f"v_add_u32 v{vT2}, {LDS_RED}, v{vT2}")
    a(f"v_lshrrev_b32 v{vT1}, 5, v{vLane}")
    a(f"v_lshlrev_b32 v{vT1}, 6, v{vT1}")
    a(f"v_add_u32 v{vT1}, {LDS_RED}, v{vT1}")
    for src in range(3):
        for q in range(8):
            a(f"ds_read_b128 {vr(fb+4*q,4)}, v{vT0} offset:{src*WA + q*1024}")
        a(f"ds_read_b32 v{fb+32}, v{vT2} offset:{src*WA + 8192}")
        for q in range(4):
            a(f"ds_read_b128 {vr(fb+36+4*q,4)}, v{vT1} offset:{src*WA + 8192 + 256 + q*16}")
        a("s_waitcnt lgkmcnt(0)")
        for i in range(32):
            a(f"v_add_f32 v{accP+i}, v{accP+i}, v{fb+i}")
        a(f"v_add_f32 v{accX}, v{accX}, v{fb+32}")
        for i in range(16):
            a(f"v_add_f32 v{accW+i}, v{accW+i}, v{fb+36+i}")
    a(f"s_lshl_b32 s{sT0}, s{sEt}, 7")
    for g in range(4):
        a(f"s_add_u32 s{sT2}, s{sT0}, {WS_D + g*32}")
        a(f"buffer_store_dwordx4 {vr(accP+4*g,4)}, v{vY}, s[{srdWS}:{srdWS+3}], s{sT2} offen{SC}")
        a(f"s_add_u32 s{sT2}, s{sT0}, {WS_E + g*32}")
        a(f"buffer_store_dwordx4 {vr(accQ+4*g,4)}, v{vY}, s[{srdWS}:{srdWS+3}], s{sT2} offen{SC}")
    a(f"s_bitcmp1_b32 s{sJob}, 0")
    a(f"s_cbranch_scc0 {name}_fo1")
    a("s_mov_b32 exec_hi, 0")
    a(f"s_mov_b32 s{sT2}, {WS_D + 1024}")
    a(f"buffer_store_dword v{accX}, v{vY}, s[{srdWS}:{srdWS+3}], s{sT2} offen{SC}")
    a(f"s_mov_b32 s{sT2}, {WS_E + 1024}")
    a(f"buffer_store_dword v{accX}, v{vY}, s[{srdWS}:{srdWS+3}], s{sT2} offen{SC}")
    a("s_mov_b64 exec, -1")
    a.label(f"{name}_fo1")
    a(f"s_bitcmp1_b32 s{sJob}, 1")
    a(f"s_cbranch_scc0 {name}_fo2")
    a(f"v_lshrrev_b32 v{vT1}, 5, v{vLane}")
    a(f"v_lshlrev_b32 v{vT1}, 4, v{vT1}")
    a("s_mov_b32 exec_lo, 1")
    a("s_mov_b32 exec_hi, 1")
    for g in range(4):
        a(f"s_add_u32 s{sT2}, s{sT0}, {WS_D + 1024*Y_STRIDE + g*32}")
        a(f"buffer_store_dwordx4 {vr(accW+4*g,4)}, v{vT1}, s[{srdWS}:{srdWS+3}], s{sT2} offen{SC}")
        a(f"s_add_u32 s{sT2}, s{sT0}, {WS_E + 1024*Y_STRIDE + g*32}")
        a(f"buffer_store_dwordx4 {vr(accW+4*g,4)}, v{vT1}, s[{srdWS}:{srdWS+3}], s{sT2} offen{SC}")
    a("s_mov_b64 exec, -1")
    a.label(f"{name}_fo2")
    a(f"s_bitcmp1_b32 s{sJob}, 2")
    a(f"s_cbranch_scc0 {name}_fo3")
    a(f"v_mov_b32 v{vT1}, 0")
    a("s_mov_b64 exec, 1")
    a(f"s_mov_b32 s{sT2}, {WS_D + 1024*Y_STRIDE + 1024}")
    a(f"buffer_store_dword v{accW}, v{vT1}, s[{srdWS}:{srdWS+3}], s{sT2} offen{SC}")
    a(f"s_mov_b32 s{sT2}, {WS_E + 1024*Y_STRIDE + 1024}")
    a(f"buffer_store_dword v{accW}, v{vT1}, s[{srdWS}:{srdWS+3}], s{sT2} offen{SC}")
    a("s_mov_b64 exec, -1")
    a.label(f"{name}_fo3")
    lsig(a, vT0, vT1, C_R1)
    a("s_waitcnt vmcnt(0)")
    a(f"s_add_u32 s{sT0}, s2, {FL_D}")
    publish(a, vT0, vT1, sT0)
    a.label(f"{name}_fsig")
    tl_stamp(a, 5)

    Rp = RegAlloc(base, 168)
    vWa = [Rp.alloc("wa0"), Rp.alloc("wa1")]
    vG2 = Rp.alloc("g"); vYa = Rp.alloc("ya"); vOffW = Rp.alloc("offw"); vFl2 = Rp.alloc("fl")
    vYv = Rp.alloc("y", 16)
    fO = Rp.alloc("fO", 64)
    NS = 3
    fW = [Rp.alloc(f"fW{i}", 8) for i in range(NS)]
    acc = [Rp.alloc("acc0", 16), Rp.alloc("acc1", 16)]
    nvmax[0] = max(nvmax[0], Rp.next)
    sTb, sEb, sTt2, sKh2, sT0row, sE0, sMirE = 56, 57, 58, 59, 60, 61, 62
    a(f"s_mov_b32 s{sTb}, s{sHead}")
    a(f"s_mov_b32 s{sEb}, s{sQb}")
    a(f"s_and_b32 s{sTt2}, s{sF}, 1")
    a(f"s_lshr_b32 s{sKh2}, s{sF}, 1")
    a(f"s_lshl_b32 s{sT0}, s{sTt2}, 5")
    a(f"s_lshl_b32 s{sT0row}, s{sTb}, 6")
    a(f"s_add_u32 s{sT0row}, s{sT0row}, s{sT0}")
    a(f"s_lshl_b32 s{sT0}, s{sKh2}, 5")
    a(f"s_lshl_b32 s{sE0}, s{sEb}, 6")
    a(f"s_add_u32 s{sE0}, s{sE0}, s{sT0}")
    srd(a, srdA, sOut, 2048*1024)
    a(f"v_lshrrev_b32 v{vT0}, 3, v{vLane}")
    a(f"v_lshlrev_b32 v{vOffW}, 10, v{vT0}")
    a(f"v_bfe_u32 v{vT1}, v{vLane}, 4, 1")
    a(f"v_bfe_u32 v{vT2}, v{vLane}, 2, 1")
    a(f"v_xor_b32 v{vT1}, v{vT1}, v{vT2}")
    a(f"v_lshlrev_b32 v{vT1}, 6, v{vT1}")
    a(f"v_add_u32 v{vOffW}, v{vOffW}, v{vT1}")
    a(f"v_and_b32 v{vT1}, 3, v{vLane}")
    a(f"v_lshlrev_b32 v{vT1}, 4, v{vT1}")
    a(f"v_add_u32 v{vOffW}, v{vOffW}, v{vT1}")
    a(f"v_bfe_u32 v{vT0}, v{vLane}, 2, 2")
    a(f"v_lshrrev_b32 v{vT1}, 5, v{vLane}")
    a(f"v_lshlrev_b32 v{vT1}, 2, v{vT1}")
    a(f"v_add_u32 v{vT0}, v{vT0}, v{vT1}")
    a(f"v_lshlrev_b32 v{vT0}, 7, v{vT0}")
    a(f"v_bfe_u32 v{vT1}, v{vLane}, 4, 1")
    a(f"v_lshlrev_b32 v{vT1}, 5, v{vT1}")
    a(f"v_add_u32 v{vT0}, v{vT0}, v{vT1}")
    a(f"v_and_b32 v{vT1}, 3, v{vLane}")
    a(f"v_lshlrev_b32 v{vT1}, 3, v{vT1}")
    a(f"v_add_u32 v{vT0}, v{vT0}, v{vT1}")
    a(f"s_lshl_b32 s{sT0}, s{sKh2}, 15")
    a(f"v_add_u32 v{vT0}, s{sT0}, v{vT0}")
    a(f"v_bfe_u32 v{vT1}, v{vLane}, 3, 1")
    for et in range(2):
        a(f"v_xor_b32 v{vT2}, {et}, v{vT1}")
        a(f"v_lshlrev_b32 v{vT2}, 6, v{vT2}")
        a(f"v_add_u32 v{vWa[et]}, v{vT0}, v{vT2}")
    a(f"v_and_b32 v{vT0}, 31, v{vLane}")
    a(f"v_add_u32 v{vT0}, s{sT0row}, v{vT0}")
    a(f"v_lshlrev_b32 v{vG2}, 2, v{vT0}")
    a(f"v_sub_u32 v{vT1}, 2048, v{vT0}")
    a(f"s_cmp_lt_u32 s{sT0row}, 1024")
    a("s_cselect_b64 vcc, -1, 0")
    a(f"s_cselect_b32 s{sT2}, 1, 0")
    a(f"v_cndmask_b32 v{vT1}, v{vT1}, v{vT0}, vcc")
    a(f"v_mul_u32_u24 v{vYa}, {Y_STRIDE}, v{vT1}")
    a(f"v_lshrrev_b32 v{vT1}, 5, v{vLane}")
    a(f"v_lshlrev_b32 v{vT1}, 4, v{vT1}")
    a(f"s_cmp_lt_u32 s{sE0}, 256")
    a(f"s_cselect_b32 s{sMirE}, 0, 1")
    a(f"s_cselect_b32 s63, 1, 0")
    a(f"s_cbranch_scc0 {name}_mir")
    a(f"v_add_u32 v{vYa}, v{vYa}, v{vT1}")
    a(f"s_lshl_b32 s{sT1}, s{sE0}, 2")
    a(f"s_branch {name}_ya")
    a.label(f"{name}_mir")
    a(f"s_sub_u32 s{sT1}, 485, s{sE0}")
    a(f"s_lshl_b32 s{sT1}, s{sT1}, 2")
    a(f"v_add_u32 v{vYa}, s{sT1}, v{vYa}")
    a(f"v_sub_u32 v{vYa}, v{vYa}, v{vT1}")
    a(f"s_mov_b32 s{sT1}, 0")
    a.label(f"{name}_ya")
    a(f"s_cmp_eq_u32 s{sT2}, s63")
    a(f"s_mov_b32 s{sT3}, {WS_E}")
    a(f"s_cselect_b32 s{sT2}, {WS_D}, s{sT3}")
    a(f"s_add_u32 s63, s{sT1}, s{sT2}")
    for e in range(2):
        for i in range(16):
            a(f"v_mov_b32 v{acc[e]+i}, 0")
    a(f"s_lshl_b32 s{sT0}, s{sKh2}, 8")
    a(f"s_lshl_b32 s{sT1}, s{sTt2}, 7")
    a(f"s_add_u32 s{sT0}, s{sT0}, s{sT1}")
    a(f"s_lshl_b32 s30, s{sT0}, 7")
    a(f"s_lshl_b32 s{sT0}, s{sT0}, 10")
    a(f"s_lshl_b32 s{sT1}, s{sEb}, 7")
    a(f"s_add_u32 s{sT2}, s{sT0}, s{sT1}")
    for m in range(16):
        a(f"s_add_u32 s{sT1}, s{sT2}, {m*8192}")
        a(f"buffer_load_dwordx4 {vr(fO+4*m,4)}, v{vOffW}, s[{srdC}:{srdC+3}], s{sT1} offen")
    a(f"s_cmp_lg_u32 s{sF}, 0")
    a(f"s_cbranch_scc1 {name}_c1")
    a(f"v_lshlrev_b32 v{vFl2}, {FSH}, v{vLane}")
    a(f"v_add_u32 v{vFl2}, {WS_FLAG + (FL_D << FSH)}, v{vFl2}")
    gpoll_multi(a, vFl2, vYv, 4, 64 << FSH, f"{name}_gd", sCnt, sleep=8)
    lsig(a, vT0, vT1, C_GO3)
    a(f"s_branch {name}_c2")
    a.label(f"{name}_c1")
    lwait(a, vT0, vT1, sT0, C_GO3, 1, f"{name}_cw1", sleep=16)
    a.label(f"{name}_c2")
    a(f"s_mov_b32 s{sT1}, {WS_G}")
    a(f"buffer_load_dword v{vG2}, v{vG2}, s[{srdWS}:{srdWS+3}], s{sT1} offen{SC}")
    for c in range(4):
        a(f"buffer_load_dwordx4 {vr(vYv+4*c,4)}, v{vYa}, s[{srdWS}:{srdWS+3}], s63 offen offset:{c*32}{SC}")
    tl_stamp(a, 6)
    a(f"v_and_b32 v{vT0}, 31, v{vLane}")
    a(f"s_lshr_b32 s{sT0}, s{sHead}, 2")
    a(f"s_lshl_b32 s{sT0}, s{sT0}, 5")
    a(f"v_add_u32 v{vT0}, s{sT0}, v{vT0}")
    a(f"v_lshlrev_b32 v{vFl2}, {FSH}, v{vT0}")
    a(f"v_add_u32 v{vFl2}, {WS_FLAG + (FL_O << FSH)}, v{vFl2}")
    a(f"v_add_u32 v{vOffW}, s30, v{vL16}")
    a(f"s_lshl_b32 s{sT0}, s{sTb}, 1")
    a(f"s_add_u32 s{sT0}, s{sT0}, s{sTt2}")
    a(f"s_lshl_b32 s{sT0}, s{sT0}, 5")
    a(f"s_lshl_b32 s{sT1}, s{sKh2}, 4")
    a(f"s_add_u32 s{sT0}, s{sT0}, s{sT1}")
    a(f"s_lshl_b32 s{sT0}, s{sT0}, 10")
    a(f"s_add_u32 s30, s{sT0}, {WS_O}")
    a("s_waitcnt vmcnt(0)")
    lwait(a, vT0, vT1, sT0, C_ADONE, 8, f"{name}_cw2", sleep=3)
    tl_stamp(a, 7)
    for m in range(16):
        a(f"ds_write_b128 v{vOffW}, {vr(fO+4*m,4)} offset:{m*1024}")
    a("s_waitcnt lgkmcnt(0)")
    a(f"s_lshl_b32 s{sT0}, s{sKh2}, 2")
    a(f"s_add_u32 s31, s{sT0}, {C_W}")
    lsig(a, vT0, vT1, "s31")
    tl_stamp(a, 1)
    if not PAR.get("ODIRECT", 0):
        a(f"s_cmp_lg_u32 s{sF}, 0")
        a(f"s_cbranch_scc1 {name}_c3")
        gpoll(a, vFl2, vT0, f"{name}_go", 55, sleep=2)
        lsig(a, vT0, vT1, C_GO3)
        a(f"s_branch {name}_c4")
        a.label(f"{name}_c3")
        lwait(a, vT0, vT1, sT0, C_GO3, 2, f"{name}_cw3", sleep=1)
        a.label(f"{name}_c4")
    tl_stamp(a, 8)
    a(f"s_mov_b32 s55, {PAR.get('ORETRY', 32)}")
    a.label(f"{name}_oload")
    for i in range(16):
        a(f"s_add_u32 s{sT1}, s30, {i*1024}")
        a(f"buffer_load_dwordx4 {vr(fO+4*i,4)}, v{vL16}, s[{srdWS}:{srdWS+3}], s{sT1} offen{SC}")
    def wreads(i):
        s_ = i % NS
        for et in range(2):
            for u in range(2):
                a(f"ds_read_b64_tr_b16 {vr(fW[s_]+4*et+2*u,2)}, v{vWa[et]} offset:{i*2048 + u*1024}")
    if PAR.get("OCHK", 0):
        a(f"v_mov_b32 v{vFl2}, 0")
        for i in range(16):
            a(f"s_waitcnt vmcnt({15-i})")
            a(f"v_max3_u32 v{vFl2}, v{vFl2}, v{fO+4*i}, v{fO+4*i+1}")
            a(f"v_max3_u32 v{vFl2}, v{vFl2}, v{fO+4*i+2}, v{fO+4*i+3}")
        a(f"v_cmp_eq_u32 vcc, -1, v{vFl2}")
        a("s_nop 4")
        a(f"s_cbranch_vccz {name}_ogood")
        a(f"s_sub_u32 s55, s55, 1")
        a(f"s_cbranch_scc0 {name}_oload")
        a.label(f"{name}_ogood")
        lwait(a, vT0, vT1, sT0, "s31", 2, f"{name}_cw4", sleep=0)
        tl_stamp(a, 2)
        wreads(0); wreads(1)
        for i in range(16):
            if i + 2 < 16:
                wreads(i + 2)
                a(f"s_waitcnt lgkmcnt(8)")
            else:
                a(f"s_waitcnt lgkmcnt({4*(15-i)})")
            for et in range(2):
                a(f"v_mfma_f32_32x32x16_bf16 {vr(acc[et],16)}, {vr(fW[i%NS]+4*et,4)}, {vr(fO+4*i,4)}, {vr(acc[et],16)}")
    else:
        lwait(a, vT0, vT1, sT0, "s31", 2, f"{name}_cw4", sleep=0)
        a(f"v_mov_b32 v{vFl2}, 0")
        tl_stamp(a, 2)
        wreads(0); wreads(1)
        for i in range(16):
            if i + 2 < 16:
                wreads(i + 2)
                a(f"s_waitcnt vmcnt({15-i}) lgkmcnt(8)")
            else:
                a(f"s_waitcnt vmcnt({15-i}) lgkmcnt({4*(15-i)})")
            for et in range(2):
                a(f"v_mfma_f32_32x32x16_bf16 {vr(acc[et],16)}, {vr(fW[i%NS]+4*et,4)}, {vr(fO+4*i,4)}, {vr(acc[et],16)}")
            a(f"v_max3_u32 v{vFl2}, v{vFl2}, v{fO+4*i}, v{fO+4*i+1}")
            a(f"v_max3_u32 v{vFl2}, v{vFl2}, v{fO+4*i+2}, v{fO+4*i+3}")
        a(f"v_cmp_eq_u32 vcc, -1, v{vFl2}")
        a("s_nop 4")
        a(f"s_cbranch_vccz {name}_ook")
        a(f"s_sub_u32 s55, s55, 1")
        a(f"s_cbranch_scc1 {name}_ook")
        a("s_nop 15")
        for e in range(2):
            for i in range(16):
                a(f"v_mov_b32 v{acc[e]+i}, 0")
        a("s_sleep 2")
        a(f"s_branch {name}_oload")
    a.label(f"{name}_ook")
    if TL["on"]:
        a("s_sub_u32 s86, 32, s55")
        a("s_add_u32 s86, s86, s90" if TL.get("rt") else "s_add_u32 s86, s86, s92")
    tl_stamp(a, 9)
    a("s_nop 15")
    a(f"s_lshl_b32 s{sT0}, s{sF}, 12")
    a(f"s_add_u32 s{sT0}, s{sT0}, 65536")
    a(f"v_add_u32 v{vT0}, s{sT0}, v{vL16}")
    a(f"s_cmp_eq_u32 s{sKh2}, 0")
    a(f"s_cbranch_scc0 {name}_y1")
    for q in range(4):
        a(f"ds_write_b128 v{vT0}, {vr(acc[1]+4*q,4)} offset:{q*1024}")
    a(f"s_branch {name}_y2")
    a.label(f"{name}_y1")
    for q in range(4):
        a(f"ds_write_b128 v{vT0}, {vr(acc[0]+4*q,4)} offset:{q*1024}")
    for i in range(16):
        a(f"v_mov_b32 v{acc[0]+i}, v{acc[1]+i}")
    a.label(f"{name}_y2")
    a("s_waitcnt lgkmcnt(0)")
    a(f"s_lshl_b32 s{sT0}, s{sTt2}, 2")
    a(f"s_add_u32 s31, s{sT0}, {C_Y}")
    lsig(a, vT1, vT2, "s31")
    lwait(a, vT1, vT2, sT0, "s31", 2, f"{name}_cw5", sleep=0)
    a(f"s_xor_b32 s{sT0}, s{sF}, 2")
    a(f"s_lshl_b32 s{sT0}, s{sT0}, 12")
    a(f"s_add_u32 s{sT0}, s{sT0}, 65536")
    a(f"v_add_u32 v{vT0}, s{sT0}, v{vL16}")
    for q in range(4):
        a(f"ds_read_b128 {vr(fO+4*q,4)}, v{vT0} offset:{q*1024}")
    a("s_waitcnt lgkmcnt(0)")
    S = acc[0]
    for i in range(16):
        a(f"v_add_f32 v{S+i}, v{S+i}, v{fO+i}")
    a(f"s_cmp_eq_u32 s{sMirE}, 0")
    a(f"s_cbranch_scc0 {name}_cm")
    for i in range(16):
        a(f"v_sub_f32 v{S+i}, v{S+i}, v{vYv+i}")
        a(f"v_fma_f32 v{S+i}, v{vG2}, v{S+i}, v{vYv+i}")
    a(f"s_branch {name}_st")
    a.label(f"{name}_cm")
    for g in range(4):
        for r in range(4):
            y = vYv + 4*(3-g) + (3-r)
            a(f"v_sub_f32 v{S+4*g+r}, v{S+4*g+r}, v{y}")
            a(f"v_fma_f32 v{S+4*g+r}, v{vG2}, v{S+4*g+r}, v{y}")
    a.label(f"{name}_st")
    P = fO + 16
    for i in range(8):
        a(f"v_cvt_pk_bf16_f32 v{P+i}, v{S+2*i}, v{S+2*i+1}")
    a(f"v_and_b32 v{vT0}, 31, v{vLane}")
    a(f"v_add_u32 v{vT0}, s{sT0row}, v{vT0}")
    a(f"v_lshlrev_b32 v{vT0}, 10, v{vT0}")
    a(f"v_lshrrev_b32 v{vT1}, 5, v{vLane}")
    a(f"v_lshlrev_b32 v{vT1}, 4, v{vT1}")
    a(f"v_add_u32 v{vT0}, v{vT0}, v{vT1}")
    a(f"s_lshl_b32 s{sT0}, s{sE0}, 1")
    for pr in range(2):
        a(f"v_permlane32_swap_b32 v{P+4*pr}, v{P+4*pr+2}")
        a(f"v_permlane32_swap_b32 v{P+4*pr+1}, v{P+4*pr+3}")
    for pr in range(2):
        a(f"buffer_store_dwordx4 {vr(P+4*pr,4)}, v{vT0}, s[{srdA}:{srdA+3}], s{sT0} offen offset:{32*pr}")
    tl_stamp(a, 10)
    dbg_exit(a, [3, 5, 6, 7, 8, 2, 9, -1], [PAR.get("DW", 0)], 8, 8)
    if not TL.get("dbg"): tl_exit(a, 2, sWS)
    a("s_endpgm")
```

```python
from asmlib import *
from common import *
from gen_fused import *

PRIO_MODE = 1
PRIO_SW = (5, 7)
EXP = {}
PAR = {}
sHead, sQb = 52, 53

def decode_hq(a):
    a(f"s_and_b32 s{sT0}, s2, 7")
    a(f"s_lshr_b32 s{sT1}, s2, 3")
    a(f"s_lshl_b32 s{sHead}, s{sT0}, 2")
    a(f"s_and_b32 s{sT0}, s{sT1}, 3")
    a(f"s_add_u32 s{sHead}, s{sHead}, s{sT0}")
    a(f"s_lshr_b32 s{sQb}, s{sT1}, 2")


def edge_regs(r0):
    return dict(vG=r0, vA=r0+4, vB=r0+8, vR=r0+12, vX1=r0+16, vRe=r0+20, vD=r0+24)

def emit_edge_loads(a, name, V, r0, sF, sS):
    vL16 = V["vL16"]
    E = edge_regs(r0); vG, vA, vB, vR, vX1, vRe, vD = [E[k] for k in ("vG","vA","vB","vR","vX1","vRe","vD")]
    a(f"s_lshl_b32 s{sS}, s2, 2")
    a(f"s_add_u32 s{sS}, s{sS}, s{sF}")
    a(f"global_load_dwordx4 {vr(vG,4)}, v{vL16}, s[{sGate}:{sGate+1}]")
    a(f"s_lshl_b32 s{sT0}, s{sS}, 10")
    a(f"buffer_load_dwordx4 {vr(vA,4)}, v{vL16}, s[{srdA}:{srdA+3}], s{sT0} offen")
    a(f"s_sub_u32 s{sT1}, 2048, s{sS}")
    a(f"s_lshl_b32 s{sT1}, s{sT1}, 10")
    a(f"buffer_load_dwordx4 {vr(vB,4)}, v{vL16}, s[{srdA}:{srdA+3}], s{sT1} offen")
    a(f"s_mov_b32 s{sT1}, {1024*1024}")
    a(f"buffer_load_dwordx4 {vr(vX1,4)}, v{vL16}, s[{srdA}:{srdA+3}], s{sT1} offen")
    a(f"s_lshl_b32 s{sT1}, s2, 10")
    a(f"v_add_u32 v{vD}, s{sT1}, v{vL16}")
    a(f"global_load_dwordx4 {vr(vRe,4)}, v{vD}, s[{sHre}:{sHre+1}]")

def emit_edge_compute(a, name, V, r0, sF, sS, sfx):
    vLane, vL16, vT0, vT1, vT2, vT3 = V["vLane"], V["vL16"], V["vT0"], V["vT1"], V["vT2"], V["vT3"]
    E = edge_regs(r0); vG, vA, vB, vR, vX1, vRe, vD = [E[k] for k in ("vG","vA","vB","vR","vX1","vRe","vD")]
    srd(a, srdWS, sWS, WS_SIZE_USED)
    a("s_waitcnt vmcnt(0)")
    a(f"s_mov_b32 s31, 0xbf803f80")
    a(f"v_dot2_f32_bf16 v{vD}, v{vA}, v{vG}, 0")
    a(f"v_dot2_f32_bf16 v{vD+1}, v{vB}, v{vG}, 0")
    a(f"v_dot2_f32_bf16 v{vD+2}, v{vA}, s31, 0")
    a(f"v_dot2_f32_bf16 v{vD+3}, v{vRe}, v{vX1}, 0")
    a(f"v_dot2_f32_bf16 v{vD+4}, v{vX1}, v{vG}, 0")
    a(f"v_dot2_f32_bf16 v{vD+5}, v{vX1}, s31, 0")
    a("s_nop 2")
    for q in range(4):
        if q > 0:
            a(f"v_dot2c_f32_bf16 v{vD}, v{vA+q}, v{vG+q}")
            a(f"v_dot2c_f32_bf16 v{vD+1}, v{vB+q}, v{vG+q}")
            a(f"v_dot2c_f32_bf16 v{vD+2}, s31, v{vA+q}")
            a(f"v_dot2c_f32_bf16 v{vD+3}, v{vRe+q}, v{vX1+q}")
            a(f"v_dot2c_f32_bf16 v{vD+4}, v{vX1+q}, v{vG+q}")
            a(f"v_dot2c_f32_bf16 v{vD+5}, s31, v{vX1+q}")
        a(f"v_dot2c_f32_bf16 v{vD+2}, s31, v{vB+q}")
    a("s_nop 3")
    for ctrl in ["row_shr:1", "row_shr:2", "row_shr:4", "row_shr:8"]:
        for r in range(6):
            a(f"v_add_f32_dpp v{vD+r}, v{vD+r}, v{vD+r} {ctrl} row_mask:0xf bank_mask:0xf bound_ctrl:0")
    for r in range(6):
        a(f"v_add_f32_dpp v{vD+r}, v{vD+r}, v{vD+r} row_bcast:15 row_mask:0xa bank_mask:0xf")
    for r in range(6):
        a(f"v_add_f32_dpp v{vD+r}, v{vD+r}, v{vD+r} row_bcast:31 row_mask:0xc bank_mask:0xf")
    for r in (0, 1, 4):
        a(f"v_mul_f32 v{vD+r}, {f2u(-1.4426950408889634)}, v{vD+r}")
    for r in (0, 1, 4):
        a(f"v_exp_f32 v{vD+r}, v{vD+r}")
    a("s_nop 0")
    for r in (0, 1, 4):
        a(f"v_add_f32 v{vD+r}, 1.0, v{vD+r}")
    for r in (0, 1, 4):
        a(f"v_rcp_f32 v{vD+r}, v{vD+r}")
    a(f"v_cvt_pk_bf16_f32 v{vD+2}, v{vD+2}, 0")
    a(f"v_cvt_pk_bf16_f32 v{vR}, v{vD+3}, 0")
    a(f"v_cvt_pk_bf16_f32 v{vD+5}, v{vD+5}, 0")
    for i in range(1, 4): a(f"v_mov_b32 v{vR+i}, 0")
    for i in range(4): a(f"v_mov_b32 v{vA+i}, 0")
    a(f"v_mov_b32 v{vT1}, 0")
    a("s_mov_b32 exec_lo, 0")
    a("s_mov_b32 exec_hi, 0x80000000")
    a(f"s_lshl_b32 s{sT0}, s{sS}, 2")
    a(f"s_add_u32 s{sT0}, s{sT0}, {WS_G}")
    a(f"buffer_store_dword v{vD}, v{vT1}, s[{srdWS}:{srdWS+3}], s{sT0} offen{SC}")
    a(f"s_cmp_eq_u32 s{sS}, 0")
    a(f"s_cbranch_scc1 {name}_e1{sfx}")
    a(f"s_sub_u32 s{sT0}, 2048, s{sS}")
    a(f"s_lshl_b32 s{sT0}, s{sT0}, 2")
    a(f"s_add_u32 s{sT0}, s{sT0}, {WS_G}")
    a(f"buffer_store_dword v{vD+1}, v{vT1}, s[{srdWS}:{srdWS+3}], s{sT0} offen{SC}")
    a.label(f"{name}_e1{sfx}")
    a(f"s_lshr_b32 s{sT0}, s{sS}, 4")
    a(f"s_add_u32 s{sT0}, s{sT0}, {8*A_KSTEPS}")
    a(f"s_lshl_b32 s{sT0}, s{sT0}, 10")
    a(f"s_bfe_u32 s{sT1}, s{sS}, 0x10003")
    a(f"s_lshl_b32 s{sT1}, s{sT1}, 9")
    a(f"s_add_u32 s{sT0}, s{sT0}, s{sT1}")
    a(f"s_and_b32 s{sT1}, s{sS}, 7")
    a(f"s_lshl_b32 s{sT1}, s{sT1}, 1")
    a(f"s_add_u32 s{sT0}, s{sT0}, s{sT1}")
    a(f"s_add_u32 s{sT0}, s{sT0}, {WS_A}")
    a(f"buffer_store_short v{vD+2}, v{vT1}, s[{srdWS}:{srdWS+3}], s{sT0} offen{SC}")
    a(f"s_cmp_lg_u32 s{sF}, 0")
    a(f"s_cbranch_scc1 {name}_e2{sfx}")
    a(f"s_lshr_b32 s{sT0}, s2, 5")
    a(f"s_mul_i32 s{sT0}, s{sT0}, {A_KSTEPS}")
    a(f"s_add_u32 s{sT0}, s{sT0}, 64")
    a(f"s_lshl_b32 s{sT0}, s{sT0}, 10")
    a(f"s_and_b32 s{sT1}, s2, 31")
    a(f"s_lshl_b32 s{sT1}, s{sT1}, 4")
    a(f"s_add_u32 s{sT0}, s{sT0}, s{sT1}")
    a(f"s_add_u32 s{sT0}, s{sT0}, {WS_A}")
    a(f"buffer_store_dwordx4 {vr(vR,4)}, v{vT1}, s[{srdWS}:{srdWS+3}], s{sT0} offen{SC}")
    a(f"buffer_store_dwordx4 {vr(vA,4)}, v{vT1}, s[{srdWS}:{srdWS+3}], s{sT0} offen offset:512{SC}")
    a.label(f"{name}_e2{sfx}")
    a(f"s_cmp_lg_u32 s{sS}, 1")
    a(f"s_cbranch_scc1 {name}_e3{sfx}")
    a(f"s_mov_b32 s{sT0}, {WS_G + 4096}")
    a(f"buffer_store_dword v{vD+4}, v{vT1}, s[{srdWS}:{srdWS+3}], s{sT0} offen{SC}")
    a(f"v_mov_b32 v{vR}, v{vD+5}")
    a(f"s_mov_b32 s{sT0}, {WS_A + (8*A_KSTEPS + 64)*1024}")
    a(f"buffer_store_dwordx4 {vr(vR,4)}, v{vT1}, s[{srdWS}:{srdWS+3}], s{sT0} offen{SC}")
    a(f"buffer_store_dwordx4 {vr(vA,4)}, v{vT1}, s[{srdWS}:{srdWS+3}], s{sT0} offen offset:512{SC}")
    a.label(f"{name}_e3{sfx}")
    a("s_mov_b64 exec, -1")

def gen_attn_part(a, name, base, nvmax, V):
    vLane, vL16, vT0, vT1 = V["vLane"], V["vL16"], V["vT0"], V["vT1"]
    Ra = RegAlloc(base, 168)
    vAK = Ra.alloc("addrK"); vAV = Ra.alloc("addrV"); vM = Ra.alloc("m")
    vRd = Ra.alloc("rdaddr"); vRv = Ra.alloc("rdval")
    vQ = [Ra.alloc("Q0", 4), Ra.alloc("Q1", 4)]
    vK = Ra.alloc("K", 4); vV0 = Ra.alloc("V0", 4); vV1 = Ra.alloc("V1", 4)
    vP = Ra.alloc("P", 8)
    vS = [Ra.alloc("S0", 16), Ra.alloc("S1", 16)]
    vT = Ra.alloc("T", 16)
    vO = [Ra.alloc("O0", 16), Ra.alloc("O1", 16)]
    vC = [Ra.alloc("C0", 16), Ra.alloc("C1", 16)]
    nvmax[0] = max(nvmax[0], Ra.next)
    sKh, sQp, sIt, sMask, sRetry = 54, 55, 56, 58, 57
    a.label(f"{name}_attn")
    decode_hq(a)
    a(f"s_and_b32 s{sQp}, s{sW}, 3")
    a(f"s_lshr_b32 s{sKh}, s{sW}, 2")
    srd(a, srdWS, sWS, WS_SIZE_USED)
    a(f"s_mov_b32 s{sRetry}, 0")
    a(f"s_lshl_b32 s60, s{sKh}, 15")
    a(f"s_mul_i32 s59, s{sKh}, {VHALF}")
    a(f"v_lshrrev_b32 v{vT0}, 5, v{vLane}")
    a(f"v_lshlrev_b32 v{vT0}, 8, v{vT0}")
    a(f"v_and_b32 v{vAK}, 31, v{vLane}")
    a(f"v_lshlrev_b32 v{vAV}, 4, v{vAK}")
    a(f"v_add_u32 v{vAV}, v{vAV}, v{vT0}")
    a(f"v_cmp_eq_u32 vcc, 16, v{vAK}")
    a(f"v_cmp_eq_u32 s[62:63], 20, v{vAK}")
    a(f"v_mov_b32 v{vM}, 528")
    a(f"v_mov_b32 v{vT0}, 512")
    a("s_or_b64 vcc, vcc, s[62:63]")
    a("s_nop 1")
    a(f"v_cndmask_b32 v{vM}, v{vM}, v{vT0}, vcc")
    a(f"v_cmp_gt_u32 vcc, 16, v{vAK}")
    a("s_nop 1")
    a(f"v_cndmask_b32 v{vAV}, v{vM}, v{vAV}, vcc")
    a(f"v_add_u32 v{vAV}, 65536, v{vAV}")
    a(f"v_add_u32 v{vAV}, s59, v{vAV}")
    for i in range(4):
        a(f"v_mov_b32 v{vV1+i}, 0")
    for q in range(2):
        for i in range(16):
            a(f"v_mov_b32 v{vO[q]+i}, 0")
    for i in range(4, 8):
        a(f"v_mov_b32 v{vP+i}, 0")
    a(f"v_add_u32 v{vAK}, s60, v{vL16}")
    a(f"s_lshl_b32 s{sT0}, s{sHead}, 6")
    a(f"s_lshl_b32 s{sT1}, s{sQb}, 3")
    a(f"s_add_u32 s{sT0}, s{sT0}, s{sT1}")
    a(f"s_lshl_b32 s{sT1}, s{sQp}, 1")
    a(f"s_add_u32 s{sT0}, s{sT0}, s{sT1}")
    a(f"s_lshl_b32 s61, s{sT0}, 10")
    read_nonce(a, vT0, vT1)
    tl_stamp(a, 3)
    lwait(a, vT0, vT1, sT0, C_GO, 1, f"{name}_wgo", sleep=2)
    if PAR.get("QDIRECT", 0):
        a(f"s_mov_b32 s59, 8192")
        a.label(f"{name}_qload")
    a(f"buffer_load_dwordx4 {vr(vQ[0],4)}, v{vL16}, s[{srdWS}:{srdWS+3}], s61 offen{SC}")
    a(f"buffer_load_dwordx4 {vr(vQ[1],4)}, v{vL16}, s[{srdWS}:{srdWS+3}], s61 offen offset:1024{SC}")
    if PAR.get("QDIRECT", 0):
        a("s_waitcnt vmcnt(0)")
        a(f"v_max3_u32 v{vM}, v{vQ[0]}, v{vQ[0]+1}, v{vQ[0]+2}")
        a(f"v_max3_u32 v{vM}, v{vM}, v{vQ[0]+3}, v{vQ[1]}")
        a(f"v_max3_u32 v{vM}, v{vM}, v{vQ[1]+1}, v{vQ[1]+2}")
        a(f"v_max_u32 v{vM}, v{vM}, v{vQ[1]+3}")
        a(f"v_cmp_eq_u32 vcc, -1, v{vM}")
        a("s_nop 4")
        a(f"s_cbranch_vccz {name}_qok")
        a("s_sub_u32 s59, s59, 1")
        a(f"s_cbranch_scc1 {name}_qok")
        a("s_sleep 2")
        a(f"s_branch {name}_qload")
        a.label(f"{name}_qok")
    tl_stamp(a, 4)
    lwait(a, vT0, vT1, sT0, C_RDY, 1, f"{name}_wr0", sleep=1)
    a(f"s_lshl_b32 s60, s{sKh}, 2")
    a(f"s_add_u32 s60, s60, {C_RDY}")
    lwait(a, vT0, vT1, sT0, "s60", 1, f"{name}_wr1", sleep=1)
    a(f"v_add_u32 v{vRd}, 8, v{vT0}")
    a("s_waitcnt vmcnt(0)")
    tl_stamp(a, 5)

    def rowmax(S):
        a(f"v_max3_f32 v{vM}, v{S}, v{S+1}, v{S+2}")
        for i in range(3, 15, 2):
            a(f"v_max3_f32 v{vM}, v{vM}, v{S+i}, v{S+i+1}")
        a(f"v_max_f32 v{vM}, v{vM}, v{S+15}")
    def bcast_negmax(C):
        a(f"v_mov_b32 v{vT0}, v{vM}")
        a("s_nop 1")
        a(f"v_permlane32_swap_b32 v{vT0}, v{vM}")
        a("s_nop 1")
        a(f"v_max_f32 v{vM}, v{vM}, v{vT0}")
        a(f"v_sub_f32 v{C}, 0, v{vM}")
        for i in range(1, 16):
            a(f"v_mov_b32 v{C+i}, v{C}")
    a(f"ds_read_b128 {vr(vT,4)}, v{vL16}")
    a(f"ds_read_b128 {vr(vK,4)}, v{vAK}")
    a("s_waitcnt lgkmcnt(1)")
    a(f"v_mfma_f32_32x32x16_bf16 {vr(vS[0],16)}, {vr(vT,4)}, {vr(vQ[0],4)}, 0")
    a(f"v_mfma_f32_32x32x16_bf16 {vr(vS[1],16)}, {vr(vT,4)}, {vr(vQ[1],4)}, 0")
    a(f"ds_read_b128 {vr(vV0,4)}, v{vAV}")
    a("s_nop 8")
    rowmax(vS[0]); bcast_negmax(vC[0])
    a("s_waitcnt lgkmcnt(0)")
    a(f"v_mfma_f32_32x32x16_bf16 {vr(vS[0],16)}, {vr(vK,4)}, {vr(vQ[0],4)}, {vr(vC[0],16)}")
    rowmax(vS[1]); bcast_negmax(vC[1])
    a("s_nop 1")
    a(f"v_mfma_f32_32x32x16_bf16 {vr(vS[1],16)}, {vr(vK,4)}, {vr(vQ[1],4)}, {vr(vC[1],16)}")
    a(f"ds_read_b128 {vr(vK,4)}, v{vAK} offset:1024")
    tl_stamp(a, 6)

    def step(u, q):
        S = vS[q]
        e = lambda i: a(f"v_exp_f32 v{vT+i}, v{S+i}")
        c = lambda i: a(f"v_cvt_pk_bf16_f32 v{vP+i}, v{vT+2*i}, v{vT+2*i+1}")
        e(0); e(1); e(2); c(0); e(3); e(4)
        if q == 1:
            a("s_waitcnt lgkmcnt(0)")
        a(f"v_mfma_f32_32x32x16_bf16 {vr(vO[q^1],16)}, {vr(vV1,4)}, {vr(vP+4,4)}, {vr(vO[q^1],16)}")
        if q == 0:
            a(f"ds_read_b128 {vr(vV1,4)}, v{vAV} offset:{(2*u+1)*VG}")
        c(1); e(5); e(6); c(2); e(7); e(8); c(3); e(9); e(10)
        if q == 0:
            a("s_waitcnt lgkmcnt(2)")
        a(f"v_mfma_f32_32x32x16_bf16 {vr(vO[q],16)}, {vr(vV0,4)}, {vr(vP,4)}, {vr(vO[q],16)}")
        if q == 1:
            a(f"ds_read_b128 {vr(vV0,4)}, v{vAV} offset:{(2*u+2)*VG}")
        e(11); c(4); e(12); c(5); e(13); e(14); c(6); e(15)
        if q == 0:
            a("s_waitcnt lgkmcnt(1)")
        a(f"v_mfma_f32_32x32x16_bf16 {vr(S,16)}, {vr(vK,4)}, {vr(vQ[q],4)}, {vr(vC[q],16)}")
        if q == 1:
            a(f"ds_read_b128 {vr(vK,4)}, v{vAK} offset:{(u+2)*1024}")
        c(7)

    a(f"s_mov_b32 s{sIt}, 0")
    a("s_setprio 2")
    lbl = f"{name}_loop"
    if EXP.get("al64"): a.raw(".p2align 6")
    if EXP.get("al64s4"):
        a.raw(".p2align 6"); a("s_nop 0")
    a.label(lbl)
    for u in range(4):
        step(u, 0)
        if u == 0:
            a(f"ds_read_b32 v{vRv}, v{vRd}")
        step(u, 1)
        if u == 1:
            a(f"v_readfirstlane_b32 s{sT0}, v{vRv}")
            a(f"v_add_u32 v{vRd}, 8, v{vRd}")
            a("s_nop 2")
            a(f"s_cmp_lg_u32 s{sT0}, 0")
            a(f"s_cbranch_scc1 {name}_nosync")
            a(f"v_subrev_u32 v{vT0}, 8, v{vRd}")
            a(f"s_mov_b32 s{sT3}, {SPIN_MAX*16}")
            a.label(f"{name}_wrs")
            a(f"ds_read_b32 v{vT1}, v{vT0}")
            a("s_waitcnt lgkmcnt(0)")
            a(f"v_readfirstlane_b32 s{sT0}, v{vT1}")
            a(f"s_sub_u32 s{sT3}, s{sT3}, 1")
            a(f"s_cbranch_scc1 {name}_nosync")
            a("s_nop 1")
            a(f"s_cmp_lg_u32 s{sT0}, 0")
            a(f"s_cbranch_scc1 {name}_nosync")
            a("s_sleep 1")
            a(f"s_branch {name}_wrs")
            a.label(f"{name}_nosync")
    a(f"v_add_u32 v{vAK}, 4096, v{vAK}")
    a(f"v_add_u32 v{vAV}, {8*VG}, v{vAV}")
    a(f"s_add_u32 s{sIt}, s{sIt}, 1")
    a(f"s_cmp_eq_u32 s{sIt}, {PRIO_SW[0]}")
    a(f"s_cbranch_scc0 {name}_p1")
    a("s_setprio 1")
    a.label(f"{name}_p1")
    a(f"s_cmp_eq_u32 s{sIt}, {PRIO_SW[1]}")
    a(f"s_cbranch_scc0 {name}_p2")
    a("s_setprio 0")
    if PAR.get("NEAR", 0):
        lsig(a, vT0, vT1, C_NEAR)
    a.label(f"{name}_p2")
    a(f"s_cmp_lg_u32 s{sIt}, 8")
    a(f"s_cbranch_scc1 {lbl}")
    a("s_nop 1")
    a(f"v_mfma_f32_32x32x16_bf16 {vr(vO[1],16)}, {vr(vV1,4)}, {vr(vP+4,4)}, {vr(vO[1],16)}")
    tl_stamp(a, 7)
    lwait(a, vT0, vT1, sT0, C_R1, 1, f"{name}_wf")
    a("s_nop 8")
    a(f"s_mul_i32 s{sT0}, s{sW}, 2304")
    a(f"s_add_u32 s{sT0}, s{sT0}, {LDS_RED}")
    a(f"v_add_u32 v{vT0}, s{sT0}, v{vL16}")
    a(f"v_lshrrev_b32 v{vT1}, 2, v{vL16}")
    a(f"v_add_u32 v{vT1}, s{sT0}, v{vT1}")
    a(f"s_cmp_eq_u32 s{sKh}, 0")
    a(f"s_cbranch_scc0 {name}_x1")
    a(f"ds_write_b128 v{vT0}, {vr(vO[1],4)}")
    a(f"ds_write_b128 v{vT0}, {vr(vO[1]+4,4)} offset:1024")
    a(f"ds_write_b32 v{vT1}, v{vO[1]+8} offset:2048")
    a(f"s_branch {name}_x2")
    a.label(f"{name}_x1")
    a(f"ds_write_b128 v{vT0}, {vr(vO[0],4)}")
    a(f"ds_write_b128 v{vT0}, {vr(vO[0]+4,4)} offset:1024")
    a(f"ds_write_b32 v{vT1}, v{vO[0]+8} offset:2048")
    for i in range(9):
        a(f"v_mov_b32 v{vO[0]+i}, v{vO[1]+i}")
    for i in range(4):
        a(f"v_mov_b32 v{vQ[0]+i}, v{vQ[1]+i}")
    a.label(f"{name}_x2")
    a("s_waitcnt lgkmcnt(0)")
    a(f"s_lshl_b32 s{sT0}, s{sQp}, 2")
    a(f"s_add_u32 s61, s{sT0}, {C_X}")
    lsig(a, vAK, vM, "s61")
    lwait(a, vAK, vM, sT0, "s61", 2, f"{name}_wx")
    a(f"s_xor_b32 s{sT0}, s{sW}, 4")
    a(f"s_mul_i32 s{sT0}, s{sT0}, 2304")
    a(f"s_add_u32 s{sT0}, s{sT0}, {LDS_RED}")
    a(f"v_add_u32 v{vT0}, s{sT0}, v{vL16}")
    a(f"v_lshrrev_b32 v{vT1}, 2, v{vL16}")
    a(f"v_add_u32 v{vT1}, s{sT0}, v{vT1}")
    a(f"ds_read_b128 {vr(vT,4)}, v{vT0}")
    a(f"ds_read_b128 {vr(vT+4,4)}, v{vT0} offset:1024")
    a(f"ds_read_b32 v{vT+8}, v{vT1} offset:2048")
    a("s_waitcnt lgkmcnt(0)")
    O = vO[0]
    for i in range(9):
        a(f"v_add_f32 v{O+i}, v{O+i}, v{vT+i}")
    a.label(f"{name}_epi")
    a(f"s_cmp_lg_u32 s{sRetry}, 0")
    a(f"s_cbranch_scc1 {name}_fin")
    a(f"v_mov_b32 v{vT0}, 0x5d800000")
    a(f"v_cmp_nle_f32 vcc, v{O+8}, v{vT0}")
    a("s_nop 4")
    a(f"s_cbranch_vccnz {name}_fallback")
    a.label(f"{name}_fin")
    a(f"v_rcp_f32 v{vT0}, v{O+8}")
    a("s_nop 0")
    for i in range(8):
        a(f"v_mul_f32 v{O+i}, v{O+i}, v{vT0}")
    for i in range(4):
        a(f"v_cvt_pk_bf16_f32 v{vP+i}, v{O+2*i}, v{O+2*i+1}")
    a(f"s_lshl_b32 s{sT0}, s{sQb}, 3")
    a(f"s_lshl_b32 s{sT1}, s{sQp}, 1")
    a(f"s_add_u32 s{sT0}, s{sT0}, s{sT1}")
    a(f"s_add_u32 s{sT0}, s{sT0}, s{sKh}")
    a(f"s_lshl_b32 s{sT0}, s{sT0}, 5")
    a(f"s_add_u32 s{sT0}, s{sT0}, s{sHead}")
    a(f"s_lshl_b32 s{sT0}, s{sT0}, 10")
    a(f"s_add_u32 s{sT0}, s{sT0}, {WS_O}")
    a(f"buffer_store_dwordx4 {vr(vP,4)}, v{vL16}, s[{srdWS}:{srdWS+3}], s{sT0} offen{SC}")
    a(f"v_mov_b32 v{vT0}, {C_ADONE}")
    a(f"v_mov_b32 v{vT1}, 1")
    a("s_mov_b64 exec, 1")
    if PAR.get("ODIRECT", 0):
        a(f"ds_add_u32 v{vT0}, v{vT1}")
        a("s_mov_b64 exec, -1")
    else:
        a(f"ds_add_rtn_u32 v{vM}, v{vT0}, v{vT1}")
        a("s_waitcnt lgkmcnt(0)")
        a("s_mov_b64 exec, -1")
        a(f"v_readfirstlane_b32 s{sT0}, v{vM}")
        a("s_nop 3")
        a(f"s_cmp_lg_u32 s{sT0}, 7")
        a(f"s_cbranch_scc1 {name}_adone")
        a(f"s_lshl_b32 s61, s{sQb}, 5")
        a(f"s_add_u32 s61, s61, s{sHead}")
        a(f"s_add_u32 s61, s61, {FL_O}")
        publish(a, vT0, vT1, 61)
    a.label(f"{name}_adone")
    tl_stamp(a, 8)
    dbg_exit(a, [1, 4, 5, 6, 7], [PAR.get("DW", 0)], 4, 1)
    dbg_exit(a, [6, 7], [PAR.get("DW", 0)], 0, 6)
    if not TL.get("dbg"): tl_exit(a, 1, sWS)
    a("s_endpgm")
    a.label(f"{name}_fallback")
    a(f"s_mov_b32 s{sRetry}, 1")
    a(f"v_mov_b32 v{vAK}, v{vL16}")
    a(f"v_mov_b32 v{vM}, 0xff800000")
    a(f"s_mov_b32 s{sIt}, 64")
    a.label(f"{name}_maxloop")
    a(f"ds_read_b128 {vr(vK,4)}, v{vAK}")
    a("s_waitcnt lgkmcnt(0)")
    a(f"v_mfma_f32_32x32x16_bf16 {vr(vS[0],16)}, {vr(vK,4)}, {vr(vQ[0],4)}, 0")
    a(f"v_add_u32 v{vAK}, 1024, v{vAK}")
    a("s_nop 15")
    a("s_nop 3")
    for i in range(0, 16, 2):
        a(f"v_max3_f32 v{vM}, v{vM}, v{vS[0]+i}, v{vS[0]+i+1}")
    a(f"s_sub_u32 s{sIt}, s{sIt}, 1")
    a(f"s_cmp_lg_u32 s{sIt}, 0")
    a(f"s_cbranch_scc1 {name}_maxloop")
    bcast_negmax(vC[0])
    for i in range(16):
        a(f"v_mov_b32 v{O+i}, 0")
    a(f"v_mov_b32 v{vAK}, v{vL16}")
    a(f"s_mul_i32 s60, s{sKh}, {VHALF}")
    a(f"s_add_u32 s60, s60, {VHALF}")
    a(f"v_subrev_u32 v{vAV}, s60, v{vAV}")
    a(f"s_mov_b32 s{sIt}, 64")
    a.label(f"{name}_redo")
    a(f"ds_read_b128 {vr(vK,4)}, v{vAK}")
    a(f"ds_read_b128 {vr(vV0,4)}, v{vAV}")
    a(f"ds_read_b128 {vr(vV1,4)}, v{vAV} offset:{VG}")
    a("s_waitcnt lgkmcnt(0)")
    a(f"v_mfma_f32_32x32x16_bf16 {vr(vS[0],16)}, {vr(vK,4)}, {vr(vQ[0],4)}, {vr(vC[0],16)}")
    a(f"v_add_u32 v{vAK}, 1024, v{vAK}")
    a(f"v_add_u32 v{vAV}, {2*VG}, v{vAV}")
    a("s_nop 15")
    a("s_nop 3")
    for i in range(16):
        a(f"v_exp_f32 v{vT+i}, v{vS[0]+i}")
    a("s_nop 0")
    for i in range(8):
        a(f"v_cvt_pk_bf16_f32 v{vP+i}, v{vT+2*i}, v{vT+2*i+1}")
    a("s_nop 1")
    a(f"v_mfma_f32_32x32x16_bf16 {vr(O,16)}, {vr(vV0,4)}, {vr(vP,4)}, {vr(O,16)}")
    a(f"v_mfma_f32_32x32x16_bf16 {vr(O,16)}, {vr(vV1,4)}, {vr(vP+4,4)}, {vr(O,16)}")
    a(f"s_sub_u32 s{sIt}, s{sIt}, 1")
    a(f"s_cmp_lg_u32 s{sIt}, 0")
    a(f"s_cbranch_scc1 {name}_redo")
    a("s_nop 15")
    a("s_nop 3")
    a(f"s_branch {name}_epi")

def gen_f_part(a, name, base, nvmax, V):
    vLane, vL16, vT0, vT1, vT2, vT3 = V["vLane"], V["vL16"], V["vT0"], V["vT1"], V["vT2"], V["vT3"]
    sF = 54
    a.label(f"{name}_edge")
    sS = 55
    if PAR.get("QDIRECT", 0):
        KVD = PAR.get("KVDIRECT", 0)
        a("s_mov_b32 s58, 0")
        a("s_cmp_lg_u32 s30, 0")
        a(f"s_cbranch_scc1 {name}_pz_done")
        a(f"s_cmp_ge_u32 s54, {12 if KVD else 4}")
        a(f"s_cbranch_scc1 {name}_pz_done")
        a(f"s_sub_u32 s{sT0}, s{sW}, 8")
        a(f"s_lshr_b32 s{sT1}, s{sT0}, 1")
        a(f"s_lshl_b32 s{sT1}, s{sT1}, 2")
        a(f"s_and_b32 s{sT2}, s54, 3")
        a(f"s_lshl_b32 s{sT2}, s{sT2}, 3")
        a(f"s_add_u32 s{sT1}, s{sT1}, s{sT2}")
        a(f"s_lshl_b32 s{sT1}, s{sT1}, 16")
        a(f"s_and_b32 s{sT0}, s{sT0}, 1")
        a(f"s_lshr_b32 s{sT2}, s54, 2")
        a(f"s_lshl_b32 s{sT3}, s{sT2}, 21")
        a(f"s_add_u32 s{sT1}, s{sT1}, s{sT3}")
        a(f"s_cmp_eq_u32 s{sT2}, 2")
        a(f"s_cbranch_scc1 {name}_pz_v")
        a("s_mov_b32 s58, 1")
        a(f"s_lshl_b32 s{sT0}, s{sT0}, 1")
        a(f"s_lshr_b32 s{sT2}, s52, 5")
        a(f"s_add_u32 s{sT0}, s{sT0}, s{sT2}")
        a(f"s_lshl_b32 s{sT0}, s{sT0}, 10")
        a(f"s_add_u32 s59, s{sT0}, s{sT1}")
        a(f"s_branch {name}_pz_done")
        a.label(f"{name}_pz_v")
        a("s_mov_b32 s58, 2")
        a(f"s_lshl_b32 s{sT0}, s{sT0}, 2")
        a(f"s_lshr_b32 s{sT2}, s52, 4")
        a(f"s_add_u32 s{sT0}, s{sT0}, s{sT2}")
        a(f"s_lshl_b32 s{sT0}, s{sT0}, 9")
        a(f"s_add_u32 s59, s{sT0}, s{sT1}")
        a.label(f"{name}_pz_done")
        a(f"s_add_u32 s57, s62, {FL_O}")
    a(f"s_sub_u32 s{sF}, s{sW}, 8")
    a("s_setprio 3")
    a(f"v_lshlrev_b32 v{vT0}, 2, v{vLane}")
    a(f"v_add_u32 v{vT0}, {LDS_CNT}, v{vT0}")
    a(f"v_mov_b32 v{vT1}, 0")
    a(f"ds_write_b32 v{vT0}, v{vT1}")
    a("s_waitcnt lgkmcnt(0)")
    a(f"s_or_b32 s{sT0}, s2, s{sF}")
    a(f"s_cmp_lg_u32 s{sT0}, 0")
    a(f"s_cbranch_scc1 {name}_nn")
    a(f"s_memrealtime s[{sT0}:{sT0+1}]")
    a("s_waitcnt lgkmcnt(0)")
    a(f"s_or_b32 s{sT0}, s{sT0}, 1")
    a(f"v_mov_b32 v{vT0}, 0")
    a(f"v_mov_b32 v{vT1}, s{sT0}")
    a("s_mov_b64 exec, 1")
    a(f"global_store_dword v{vT0}, v{vT1}, s[{sDbg}:{sDbg+1}] sc1")
    a("s_mov_b64 exec, -1")
    a.label(f"{name}_nn")
    srd(a, srdWS, sWS, WS_SIZE_USED)
    def emit_poison():
        decode_hq(a)
        vPz = (base + 3) // 4 * 4 - 1
        for i in range(4):
            a(f"v_mov_b32 v{vPz+1+i}, -1")
        a(f"s_lshl_b32 s{sT0}, s{sQb}, 3")
        a(f"s_lshl_b32 s{sT1}, s{sF}, 1")
        a(f"s_add_u32 s{sT0}, s{sT0}, s{sT1}")
        a(f"s_lshl_b32 s{sT0}, s{sT0}, 5")
        a(f"s_add_u32 s{sT0}, s{sT0}, s{sHead}")
        a(f"s_lshl_b32 s{sT0}, s{sT0}, 10")
        a(f"s_add_u32 s{sT0}, s{sT0}, {WS_O}")
        a(f"buffer_store_dwordx4 {vr(vPz+1,4)}, v{vL16}, s[{srdWS}:{srdWS+3}], s{sT0} offen{SC}")
        a(f"s_add_u32 s{sT0}, s{sT0}, 32768")
        a(f"buffer_store_dwordx4 {vr(vPz+1,4)}, v{vL16}, s[{srdWS}:{srdWS+3}], s{sT0} offen{SC}")
        if PAR.get("QDIRECT", 0):
            a("s_cmp_eq_u32 s58, 0")
            a(f"s_cbranch_scc1 {name}_noqp")
            a("s_cmp_eq_u32 s58, 2")
            a(f"s_cbranch_scc1 {name}_qpv")
            for f_ in range(2):
                for hh in range(2):
                    for t in range(2):
                        a(f"s_add_u32 s{sT0}, s59, {(f_*2+hh)*65536 + t*1024}")
                        a(f"buffer_store_dwordx4 {vr(vPz+1,4)}, v{vL16}, s[{srdWS}:{srdWS+3}], s{sT0} offen{SC}")
            a(f"s_branch {name}_noqp")
            a.label(f"{name}_qpv")
            a(f"v_bfe_u32 v{vT0}, v{vLane}, 4, 1")
            a(f"v_lshlrev_b32 v{vT0}, 16, v{vT0}")
            a(f"v_lshrrev_b32 v{vT1}, 5, v{vLane}")
            a(f"v_lshlrev_b32 v{vT1}, 8, v{vT1}")
            a(f"v_add_u32 v{vT0}, v{vT0}, v{vT1}")
            a(f"v_and_b32 v{vT1}, 15, v{vLane}")
            a(f"v_lshlrev_b32 v{vT1}, 4, v{vT1}")
            a(f"v_add_u32 v{vT0}, v{vT0}, v{vT1}")
            for f_ in range(2):
                for t in range(2):
                    for g in range(2):
                        a(f"s_add_u32 s{sT0}, s59, {f_*2*65536 + (t*2+g)*512}")
                        a(f"buffer_store_dwordx4 {vr(vPz+1,4)}, v{vT0}, s[{srdWS}:{srdWS+3}], s{sT0} offen{SC}")
            a.label(f"{name}_noqp")
    ER = (base + 7) // 4 * 4 + 4
    if not PAR.get("PLATE", 1): emit_poison()
    EB0, EB1 = PAR.get("EB0", 1), PAR.get("EB1", 3)
    srd(a, srdA, sX, 2048*1024)
    nb = 0
    while nb < EB0:
        a("s_barrier"); nb += 1
    emit_edge_loads(a, name, V, ER, sF, 30)
    while nb < EB1:
        a("s_barrier"); nb += 1
    emit_edge_compute(a, name, V, ER, sF, 30, "p")
    if PAR.get("PLATE", 1): emit_poison()
    while nb < 5:
        a("s_barrier"); nb += 1
    a(f"s_cmp_lg_u32 s{sF}, 0")
    a(f"s_cbranch_scc1 {name}_nn2")
    a(f"v_mov_b32 v{vT0}, 0")
    a(f"s_mov_b32 s{sT1}, {SPIN_MAX}")
    a.label(f"{name}_npoll")
    a(f"global_load_dword v{vT1}, v{vT0}, s[{sDbg}:{sDbg+1}] sc1")
    a("s_waitcnt vmcnt(0)")
    a(f"v_readfirstlane_b32 s{sN}, v{vT1}")
    a(f"s_sub_u32 s{sT1}, s{sT1}, 1")
    a(f"s_cbranch_scc1 {name}_npoll_ok")
    a("s_nop 1")
    a(f"s_cmp_lg_u32 s{sN}, 0")
    a(f"s_cbranch_scc1 {name}_npoll_ok")
    a("s_sleep 1")
    a(f"s_branch {name}_npoll")
    a.label(f"{name}_npoll_ok")
    a(f"v_mov_b32 v{vT0}, {C_NONCE}")
    a(f"v_mov_b32 v{vT1}, s{sN}")
    a(f"ds_write_b32 v{vT0}, v{vT1}")
    a.label(f"{name}_nn2")
    a("s_waitcnt vmcnt(0) lgkmcnt(0)")
    for i in range(5, 9):
        a("s_barrier")
        if i == 5 and PAR.get("QDIRECT", 0):
            a("s_cmp_eq_u32 s58, 0")
            a(f"s_cbranch_scc1 {name}_noqf")
            a(f"s_cmp_lg_u32 s{sF}, 0")
            a(f"s_cbranch_scc1 {name}_noqf")
            publish(a, vT0, vT1, 57)
            a.label(f"{name}_noqf")
    tl_stamp(a, 0)

    Rf = RegAlloc(base, 168)
    vB_ = Rf.alloc("boff"); vY = Rf.alloc("yaddr"); vFl = Rf.alloc("flag")
    accP = Rf.alloc("accP", 16); accQ = Rf.alloc("accQ", 16)
    buf = Rf.alloc("buf", 112)
    vCn = Rf.alloc("cn", 4)
    nvmax[0] = max(nvmax[0], Rf.next)
    sKoff, sVoff = 56, 57
    sTt, sEt, sHasQ, sA, sBq, sK, sJob, sCnt = 58, 59, 60, 61, 62, 63, 30, 31
    decode_hq(a)
    KB = accP
    sPend, sQd, sSlot = 60, 61, 62
    sEd = 30
    a(f"s_mov_b32 s{sEd}, 0")
    a(f"s_lshl_b32 s{sKoff}, s{sHead}, 16")
    a(f"s_add_u32 s{sKoff}, s{sKoff}, {WS_K}")
    if PAR.get("KVDIRECT", 0):
        vVw, vCa, vCa2, vCd = KB + 40, KB + 41, KB + 42, KB + 44
        a(f"s_cmp_lg_u32 s{sF}, 0")
        a(f"s_cbranch_scc1 {name}_kd1")
        a(f"s_add_u32 s{sT0}, s2, {FL_E}")
        publish(a, vT0, vT1, sT0)
        a(f"s_lshr_b32 s{sT0}, s{sHead}, 3")
        a(f"s_lshl_b32 s{sT0}, s{sT0}, 4")
        a(f"s_add_u32 s{sT0}, s{sT0}, {FL_O}")
        a(f"v_and_b32 v{vT0}, 15, v{vLane}")
        a(f"v_bfe_u32 v{vT1}, v{vLane}, 4, 1")
        a(f"v_lshlrev_b32 v{vT1}, 6, v{vT1}")
        a(f"v_add_u32 v{vT0}, v{vT0}, v{vT1}")
        a(f"v_add_u32 v{vT0}, 64, v{vT0}")
        a(f"v_and_b32 v{vT1}, 1, v{vLane}")
        a(f"s_lshl_b32 s{sT1}, s{sQb}, 1")
        a(f"v_add_u32 v{vT1}, s{sT1}, v{vT1}")
        a(f"v_cmp_gt_u32 vcc, 32, v{vLane}")
        a("s_nop 1")
        a(f"v_cndmask_b32 v{vT0}, v{vT1}, v{vT0}, vcc")
        a(f"v_add_u32 v{vT0}, s{sT0}, v{vT0}")
        a(f"v_lshlrev_b32 v{vFl}, {FSH}, v{vT0}")
        a(f"v_add_u32 v{vFl}, {WS_FLAG}, v{vFl}")
        gpoll(a, vFl, vT0, f"{name}_gp", sCnt, sleep=2)
        lsig(a, vT0, vT1, C_GO)
        a(f"s_branch {name}_kd2")
        a.label(f"{name}_kd1")
        lwait(a, vT0, vT1, sT0, C_GO, 1, f"{name}_kdw", sleep=1)
        a.label(f"{name}_kd2")
        tl_stamp(a, 1)
        a(f"v_lshrrev_b32 v{vT0}, 5, v{vLane}")
        a(f"v_mul_u32_u24 v{vT0}, {VG}, v{vT0}")
        a(f"v_and_b32 v{vT1}, 31, v{vLane}")
        a(f"v_lshlrev_b32 v{vT1}, 4, v{vT1}")
        a(f"v_add_u32 v{vVw}, v{vT0}, v{vT1}")
        a(f"v_lshrrev_b32 v{vT0}, 1, v{vLane}")
        a(f"v_mul_u32_u24 v{vT0}, {VG}, v{vT0}")
        a(f"v_and_b32 v{vT1}, 1, v{vLane}")
        a(f"v_lshlrev_b32 v{vT2}, 4, v{vT1}")
        a(f"v_add_u32 v{vT0}, v{vT0}, v{vT2}")
        a(f"v_add_u32 v{vCa}, 512, v{vT0}")
        a(f"v_cmp_eq_u32 vcc, 0, v{vT1}")
        a(f"v_mov_b32 v{vT0}, 0x3f803f80")
        a("s_nop 0")
        for i in range(4):
            a(f"v_cndmask_b32 v{vCd+i}, 0, v{vT0}, vcc")
        a(f"v_mov_b32 v{vT0}, {C_QUE}")
        a(f"v_mov_b32 v{vT1}, 1")
        a(f"ds_write_b32 v{vT0}, v{vT1}")
        a(f"ds_write_b32 v{vT0}, v{vT1} offset:4")
        a(f"s_mov_b32 s{sPend}, 15")
        a(f"s_mov_b32 s{sQd}, 0")
        a(f"s_mov_b32 s{sCnt}, {SPIN_MAX}")
        a.label(f"{name}_kdloop")
        a(f"s_lshl_b32 s{sT0}, s{sPend}, 4")
        a(f"s_or_b32 s{sT0}, s{sT0}, s{sPend}")
        a(f"s_lshr_b32 s{sT0}, s{sT0}, s{sQd}")
        a(f"s_ff1_i32_b32 s{sT1}, s{sT0}")
        a(f"s_add_u32 s{sQd}, s{sQd}, s{sT1}")
        a(f"s_and_b32 s{sQd}, s{sQd}, 3")
        a(f"s_lshl_b32 s{sT0}, s{sQd}, 2")
        a(f"s_add_u32 s{sT0}, s{sT0}, s{sF}")
        a(f"s_lshl_b32 s{sT0}, s{sT0}, 12")
        a(f"s_add_u32 s{sT0}, s{sT0}, s{sKoff}")
        for t in range(4):
            a(f"s_add_u32 s{sT1}, s{sT0}, {t*1024}")
            a(f"buffer_load_dwordx4 {vr(KB+4*t,4)}, v{vL16}, s[{srdWS}:{srdWS+3}], s{sT1} offen{SC}")
            a(f"s_add_u32 s{sT1}, s{sT1}, {WS_V - WS_K}")
            a(f"buffer_load_dwordx4 {vr(KB+16+4*t,4)}, v{vL16}, s[{srdWS}:{srdWS+3}], s{sT1} offen{SC}")
        a("s_waitcnt vmcnt(0)")
        a(f"v_max3_u32 v{vT0}, v{KB}, v{KB+1}, v{KB+2}")
        for i in range(3, 31, 2):
            a(f"v_max3_u32 v{vT0}, v{vT0}, v{KB+i}, v{KB+i+1}")
        a(f"v_max_u32 v{vT0}, v{vT0}, v{KB+31}")
        a(f"v_cmp_eq_u32 vcc, -1, v{vT0}")
        a(f"s_sub_u32 s{sCnt}, s{sCnt}, 1")
        a(f"s_cbranch_scc1 {name}_kdok")
        a("s_nop 2")
        a(f"s_cbranch_vccz {name}_kdok")
        a(f"s_add_u32 s{sQd}, s{sQd}, 1")
        a(f"s_and_b32 s{sQd}, s{sQd}, 3")
        a(f"s_sleep {PAR.get('KSLEEP', 2)}")
        a(f"s_branch {name}_kdloop")
        a.label(f"{name}_kdok")
        a(f"s_bitset0_b32 s{sPend}, s{sQd}")
        a(f"v_mov_b32 v{vT0}, {C_SLOT}")
        a(f"v_mov_b32 v{vT1}, 1")
        a("s_mov_b64 exec, 1")
        a(f"ds_add_rtn_u32 v{vT2}, v{vT0}, v{vT1}")
        a("s_waitcnt lgkmcnt(0)")
        a("s_mov_b64 exec, -1")
        a(f"v_readfirstlane_b32 s{sSlot}, v{vT2}")
        a("s_nop 3")
        a(f"s_and_b32 s{sSlot}, s{sSlot}, 15")
        a(f"s_and_b32 s{sT1}, s{sSlot}, 1")
        a(f"s_lshr_b32 s{sT2}, s{sSlot}, 1")
        a(f"s_mul_i32 s58, s{sT1}, {VHALF}")
        a(f"s_mul_i32 s59, s{sT2}, {8*VG}")
        a(f"s_add_u32 s58, s58, s59")
        a(f"s_add_u32 s58, s58, 65536")
        a(f"s_lshl_b32 s{sT1}, s{sT1}, 15")
        a(f"s_lshl_b32 s{sT2}, s{sT2}, 12")
        a(f"s_add_u32 s{sT1}, s{sT1}, s{sT2}")
        a(f"v_add_u32 v{vT2}, s{sT1}, v{vL16}")
        a(f"v_add_u32 v{vT3}, s58, v{vVw}")
        a(f"v_add_u32 v{vCa2}, s58, v{vCa}")
        a(f"s_lshl_b32 s{sT0}, s{sSlot}, 2")
        a(f"s_add_u32 s{sT0}, s{sT0}, {C_RDY}")
        a(f"v_mov_b32 v{vT0}, s{sT0}")
        a("s_mov_b32 exec_lo, 0xffff")
        a("s_mov_b32 exec_hi, 0")
        a(f"ds_write_b128 v{vCa2}, {vr(vCd,4)}")
        a("s_mov_b64 exec, -1")
        for t in range(4):
            a(f"ds_write_b128 v{vT2}, {vr(KB+4*t,4)} offset:{t*1024}")
            a(f"ds_write_b128 v{vT3}, {vr(KB+16+4*t,4)} offset:{t*2*VG}")
        a("s_waitcnt lgkmcnt(0)")
        a(f"ds_write_b32 v{vT0}, v{vT1}")
        a(f"s_cmp_lg_u32 s{sPend}, 0")
        a(f"s_cbranch_scc1 {name}_kdloop")
        a(f"s_branch {name}_kvdone")
    a(f"s_cmp_lg_u32 s{sF}, 0")
    a(f"s_cbranch_scc1 {name}_kvld")
    a(f"s_add_u32 s{sT0}, s2, {FL_E}")
    publish(a, vT0, vT1, sT0)
    tl_stamp(a, 1)
    a(f"s_lshr_b32 s{sT0}, s{sHead}, 3")
    a(f"s_lshl_b32 s{sT0}, s{sT0}, 4")
    a(f"v_and_b32 v{vT0}, 15, v{vLane}")
    a(f"v_bfe_u32 v{vT1}, v{vLane}, 4, 1")
    a(f"v_lshlrev_b32 v{vT1}, 6, v{vT1}")
    a(f"v_add_u32 v{vT0}, v{vT0}, v{vT1}")
    a(f"v_add_u32 v{vT0}, 64, v{vT0}")
    a(f"v_and_b32 v{vT1}, 1, v{vLane}")
    a(f"s_lshl_b32 s{sT1}, s{sQb}, 1")
    if PAR.get("QDIRECT", 0): a(f"s_add_u32 s{sT1}, s{sT1}, {FL_O}")
    a(f"v_add_u32 v{vT1}, s{sT1}, v{vT1}")
    a(f"v_cmp_gt_u32 vcc, 32, v{vLane}")
    a("s_nop 1")
    a(f"v_cndmask_b32 v{vT0}, v{vT1}, v{vT0}, vcc")
    a(f"v_add_u32 v{vT0}, s{sT0}, v{vT0}")
    a(f"v_lshlrev_b32 v{vFl}, {FSH}, v{vT0}")
    a(f"v_add_u32 v{vFl}, {WS_FLAG}, v{vFl}")
    a(f"s_mov_b32 s{sPend}, 0xffff")
    a(f"s_mov_b32 s{sQd}, 0")
    a(f"s_mov_b32 s{sSlot}, 0")
    a(f"s_mov_b32 s{sCnt}, {SPIN_MAX}")
    a.label(f"{name}_dpoll")
    a(f"global_load_dword v{vT0}, v{vFl}, s[{sWS}:{sWS+1}] sc1")
    a("s_waitcnt vmcnt(0)")
    a(f"v_cmp_eq_u32 vcc, s{sN}, v{vT0}")
    a(f"s_sub_u32 s{sCnt}, s{sCnt}, 1")
    a(f"s_cbranch_scc0 {name}_dnt")
    a("s_mov_b64 vcc, -1")
    a.label(f"{name}_dnt")
    a("s_nop 2")
    a(f"s_mov_b32 s56, vcc_lo")
    a(f"s_mov_b32 s57, vcc_hi")
    a(f"s_cmp_lg_u32 s{sQd}, 0")
    a(f"s_cbranch_scc1 {name}_dq")
    a(f"s_cmp_lg_u32 s57, -1")
    a(f"s_cbranch_scc1 {name}_dq")
    a(f"s_mov_b32 s{sQd}, 1")
    tl_stamp(a, 2)
    if TL["on"]: a("s_waitcnt lgkmcnt(0)")
    lsig(a, vT0, vT1, C_GO)
    a.label(f"{name}_dq")
    a(f"s_lshr_b32 s{sT0}, s56, 16")
    a(f"s_and_b32 s{sT0}, s{sT0}, s56")
    a(f"s_and_b32 s{sT0}, s{sT0}, s{sPend}")
    a(f"s_cmp_eq_u32 s{sT0}, 0")
    a(f"s_cbranch_scc1 {name}_dnone")
    a(f"s_andn2_b32 s{sPend}, s{sPend}, s{sT0}")
    a.label(f"{name}_dq1")
    a(f"s_ff1_i32_b32 s{sT1}, s{sT0}")
    a(f"s_bitset0_b32 s{sT0}, s{sT1}")
    a(f"s_add_u32 s{sT1}, s{sT1}, 1")
    a(f"s_lshl_b32 s{sT2}, s{sSlot}, 2")
    a(f"s_add_u32 s{sT2}, s{sT2}, {C_QUE}")
    a(f"v_mov_b32 v{vT0}, s{sT2}")
    a(f"v_mov_b32 v{vT1}, s{sT1}")
    a(f"ds_write_b32 v{vT0}, v{vT1}")
    a(f"s_add_u32 s{sSlot}, s{sSlot}, 1")
    a(f"s_cmp_lg_u32 s{sT0}, 0")
    a(f"s_cbranch_scc1 {name}_dq1")
    a.label(f"{name}_dnone")
    a(f"s_cmp_eq_u32 s{sQd}, 0")
    a(f"s_cbranch_scc1 {name}_dagain")
    a(f"s_cmp_eq_u32 s{sPend}, 0")
    a(f"s_cbranch_scc1 {name}_kvdone")
    a.label(f"{name}_dagain")
    a(f"s_sleep {PAR.get('DSLEEP', 4)}")
    a(f"s_branch {name}_dpoll")
    a.label(f"{name}_kvld")
    read_nonce(a, vT0, vT1)
    vVw, vCa, vCa2, vCd = KB + 40, KB + 41, KB + 42, KB + 44
    a(f"v_lshrrev_b32 v{vT0}, 5, v{vLane}")
    a(f"v_mul_u32_u24 v{vT0}, {VG}, v{vT0}")
    a(f"v_and_b32 v{vT1}, 31, v{vLane}")
    a(f"v_lshlrev_b32 v{vT1}, 4, v{vT1}")
    a(f"v_add_u32 v{vVw}, v{vT0}, v{vT1}")
    a(f"v_lshrrev_b32 v{vT0}, 1, v{vLane}")
    a(f"v_mul_u32_u24 v{vT0}, {VG}, v{vT0}")
    a(f"v_and_b32 v{vT1}, 1, v{vLane}")
    a(f"v_lshlrev_b32 v{vT2}, 4, v{vT1}")
    a(f"v_add_u32 v{vT0}, v{vT0}, v{vT2}")
    a(f"v_add_u32 v{vCa}, 512, v{vT0}")
    a(f"v_cmp_eq_u32 vcc, 0, v{vT1}")
    a(f"v_mov_b32 v{vT0}, 0x3f803f80")
    a("s_nop 0")
    for i in range(4):
        a(f"v_cndmask_b32 v{vCd+i}, 0, v{vT0}, vcc")
    a(f"s_sub_u32 s{sSlot}, s{sF}, 1")
    a.label(f"{name}_kvnext")
    a(f"s_lshl_b32 s{sT2}, s{sSlot}, 2")
    a(f"s_add_u32 s63, s{sT2}, {C_QUE}")
    lwait(a, vT0, vT1, sT0, "s63", 1, f"{name}_kvwq", sleep=PAR.get("QSLEEP", 1))
    a(f"s_sub_u32 s{sT0}, s{sT0}, 1")
    a(f"s_and_b32 s{sT0}, s{sT0}, 15")
    a(f"s_lshl_b32 s{sT0}, s{sT0}, 12")
    a(f"s_add_u32 s{sT0}, s{sT0}, s{sKoff}")
    for t in range(4):
        a(f"s_add_u32 s{sT1}, s{sT0}, {t*1024}")
        a(f"buffer_load_dwordx4 {vr(KB+4*t,4)}, v{vL16}, s[{srdWS}:{srdWS+3}], s{sT1} offen{SC}")
        a(f"s_add_u32 s{sT1}, s{sT1}, {WS_V - WS_K}")
        a(f"buffer_load_dwordx4 {vr(KB+16+4*t,4)}, v{vL16}, s[{srdWS}:{srdWS+3}], s{sT1} offen{SC}")
    a(f"s_and_b32 s{sT1}, s{sSlot}, 1")
    a(f"s_lshr_b32 s{sT2}, s{sSlot}, 1")
    a(f"s_mul_i32 s58, s{sT1}, {VHALF}")
    a(f"s_mul_i32 s59, s{sT2}, {8*VG}")
    a(f"s_add_u32 s58, s58, s59")
    a(f"s_add_u32 s58, s58, 65536")
    a(f"s_lshl_b32 s{sT1}, s{sT1}, 15")
    a(f"s_lshl_b32 s{sT2}, s{sT2}, 12")
    a(f"s_add_u32 s{sT1}, s{sT1}, s{sT2}")
    a(f"v_add_u32 v{vT2}, s{sT1}, v{vL16}")
    a(f"v_add_u32 v{vT3}, s58, v{vVw}")
    a(f"v_add_u32 v{vCa2}, s58, v{vCa}")
    a(f"s_lshl_b32 s{sT0}, s{sSlot}, 2")
    a(f"s_add_u32 s{sT0}, s{sT0}, {C_RDY}")
    a(f"v_mov_b32 v{vT0}, s{sT0}")
    a(f"v_mov_b32 v{vT1}, 1")
    a("s_mov_b32 exec_lo, 0xffff")
    a("s_mov_b32 exec_hi, 0")
    a(f"ds_write_b128 v{vCa2}, {vr(vCd,4)}")
    a("s_mov_b64 exec, -1")
    a("s_waitcnt vmcnt(0)")
    for t in range(4):
        a(f"ds_write_b128 v{vT2}, {vr(KB+4*t,4)} offset:{t*1024}")
        a(f"ds_write_b128 v{vT3}, {vr(KB+16+4*t,4)} offset:{t*2*VG}")
    a("s_waitcnt lgkmcnt(0)")
    a(f"ds_write_b32 v{vT0}, v{vT1}")
    a(f"s_cmp_lg_u32 s{sEd}, 1")
    a(f"s_cbranch_scc1 {name}_kvne")
    a(f"s_cmp_ge_u32 s{sF}, 3")
    a(f"s_cbranch_scc1 {name}_kvne")
    a(f"v_and_b32 v{vT0}, 31, v{vLane}")
    a(f"s_lshl_b32 s{sT0}, s{sHead}, 5")
    a(f"v_add_u32 v{vT0}, s{sT0}, v{vT0}")
    a(f"v_lshlrev_b32 v{vT0}, 12, v{vT0}")
    a(f"v_lshrrev_b32 v{vT1}, 5, v{vLane}")
    a(f"s_lshl_b32 s{sT0}, s{sQb}, 1")
    a(f"v_add_u32 v{vT1}, s{sT0}, v{vT1}")
    a(f"v_lshlrev_b32 v{vT1}, 7, v{vT1}")
    a(f"v_add_u32 v{vT0}, v{vT0}, v{vT1}")
    a(f"s_cmp_eq_u32 s{sF}, 1")
    a(f"s_cselect_b32 s{sT0}, s{sSre}, s{sSim}")
    a(f"s_cselect_b32 s{sT1}, s{sSre+1}, s{sSim+1}")
    a(f"global_load_dword v{KB+96}, v{vT0}, s[{sT0}:{sT0+1}]")
    a.label(f"{name}_kvne")
    a(f"s_add_u32 s{sEd}, s{sEd}, 1")
    a(f"s_add_u32 s{sSlot}, s{sSlot}, 3")
    a(f"s_cmp_lt_u32 s{sSlot}, 16")
    a(f"s_cbranch_scc1 {name}_kvnext")
    a.label(f"{name}_kvdone")
    tl_stamp(a, 3)
    a(f"s_setprio {PAR.get('FPRIO', 3)}")
    srd(a, srdA, sSre, 2048*4096)
    srd(a, srdB, sSim, 2048*4096)
    srd(a, srdC, sWo, 512*1024)
    a(f"s_lshl_b32 s{sT0}, s{sQb}, 7")
    a(f"s_lshl_b32 s{sT1}, s{sF}, 17")
    a(f"s_add_u32 s{sT0}, s{sT0}, s{sT1}")
    a(f"v_lshlrev_b32 v{vT0}, 10, v{vLane}")
    a(f"buffer_load_dword v{vT3}, v{vT0}, s[{srdC}:{srdC+3}], s{sT0} offen")
    a(f"s_add_u32 s{sT0}, s{sT0}, 65536")
    a(f"buffer_load_dword v{vT3}, v{vT0}, s[{srdC}:{srdC+3}], s{sT0} offen")
    a(f"s_cmp_lg_u32 s{sF}, 0")
    a(f"s_cbranch_scc1 {name}_fnz2")
    a(f"v_lshlrev_b32 v{vFl}, {FSH}, v{vLane}")
    a(f"v_add_u32 v{vFl}, {WS_FLAG + (FL_F1 << FSH)}, v{vFl}")
    a(f"s_mov_b32 s{sCnt}, {SPIN_MAX}")
    a.label(f"{name}_g1")
    a(f"global_load_dword v{buf}, v{vFl}, s[{sWS}:{sWS+1}] sc1")
    for i in range(4):
        a(f"v_add_u32 v{buf+8}, {((FL_E - FL_F1 + 64*i) << FSH)}, v{vFl}")
        a(f"global_load_dword v{buf+1+i}, v{buf+8}, s[{sWS}:{sWS+1}] sc1")
    a("s_waitcnt vmcnt(0)")
    a(f"v_cmp_ne_u32 vcc, s{sN}, v{buf}")
    for i in range(4):
        a(f"v_cmp_ne_u32 s[{sT0}:{sT0+1}], s{sN}, v{buf+1+i}")
        a("s_nop 1")
        a(f"s_or_b64 vcc, vcc, s[{sT0}:{sT0+1}]")
    a(f"s_sub_u32 s{sCnt}, s{sCnt}, 1")
    a(f"s_cbranch_scc1 {name}_g1_ok")
    a("s_nop 2")
    a(f"s_cbranch_vccz {name}_g1_ok")
    a("s_sleep 8")
    a(f"s_branch {name}_g1")
    a.label(f"{name}_g1_ok")
    lsig(a, vT0, vT1, C_GO2)
    a(f"s_branch {name}_fgo2")
    a.label(f"{name}_fnz2")
    lwait(a, vT0, vT1, sT0, C_GO2, 1, f"{name}_fwgo2", sleep=PAR.get("LSLEEP", 8))
    a.label(f"{name}_fgo2")
    tl_stamp(a, 4)

    accX = buf; accW = buf + 16; fb = buf + 32
    a(f"s_mov_b32 s{sTt}, s{sHead}")
    a(f"s_mov_b32 s{sEt}, s{sQb}")
    a(f"v_and_b32 v{vT0}, 31, v{vLane}")
    a(f"s_lshl_b32 s{sT0}, s{sTt}, 5")
    a(f"v_add_u32 v{vT0}, s{sT0}, v{vT0}")
    a(f"v_mul_u32_u24 v{vY}, {Y_STRIDE}, v{vT0}")
    a(f"v_lshlrev_b32 v{vT0}, 12, v{vT0}")
    a(f"v_lshrrev_b32 v{vT1}, 5, v{vLane}")
    a(f"v_lshlrev_b32 v{vT1}, 4, v{vT1}")
    a(f"v_add_u32 v{vB_}, v{vT0}, v{vT1}")
    a(f"v_add_u32 v{vY}, v{vY}, v{vT1}")
    for i in range(16):
        a(f"v_mov_b32 v{accP+i}, 0")
        a(f"v_mov_b32 v{accQ+i}, 0")
        a(f"v_mov_b32 v{accX+i}, 0")
        a(f"v_mov_b32 v{accW+i}, 0")
    for i in range(4):
        a(f"v_mov_b32 v{vCn+i}, 0xbf803f80")
    a(f"s_lshl_b32 s{sK}, s{sF}, 4")
    a(f"s_mul_i32 s{sA}, s{sEt}, {A_KSTEPS}")
    a(f"s_add_u32 s{sA}, s{sA}, s{sK}")
    a(f"s_lshl_b32 s{sA}, s{sA}, 10")
    a(f"s_add_u32 s{sA}, s{sA}, {WS_A}")
    a(f"s_add_u32 s{sHasQ}, s{sK}, {8*A_KSTEPS}")
    a(f"s_lshl_b32 s{sHasQ}, s{sHasQ}, 10")
    a(f"s_add_u32 s{sHasQ}, s{sHasQ}, {WS_A}")
    sA8 = sHasQ
    a(f"s_mul_i32 s{sBq}, s{sEt}, {B_KSTEPS}")
    a(f"s_add_u32 s{sBq}, s{sBq}, s{sK}")
    a(f"s_lshl_b32 s{sBq}, s{sBq}, 10")
    a(f"s_add_u32 s{sBq}, s{sBq}, {WS_B}")
    a(f"s_lshl_b32 s{sK}, s{sK}, 5")
    a(f"s_cmp_eq_u32 s{sEt}, 0")
    a(f"s_cselect_b32 s{sJob}, 1, 0")
    a(f"s_cmp_eq_u32 s{sTt}, 0")
    a(f"s_cselect_b32 s{sT0}, 2, 0")
    a(f"s_or_b32 s{sJob}, s{sJob}, s{sT0}")
    a(f"s_cmp_eq_u32 s2, 8")
    a(f"s_cselect_b32 s{sT0}, 4, 0")
    a(f"s_or_b32 s{sJob}, s{sJob}, s{sT0}")
    vm = Vm(a)
    NFL = 4
    def ld_k(k, slot, withq=True):
        r = fb + slot * 20
        a(f"s_add_u32 s{sT0}, s{sA}, {k*1024}")
        a(f"buffer_load_dwordx4 {vr(r,4)}, v{vL16}, s[{srdWS}:{srdWS+3}], s{sT0} offen{SC}")
        a(f"s_add_u32 s{sT0}, s{sK}, {k*32}")
        a(f"buffer_load_dwordx4 {vr(r+4,4)}, v{vB_}, s[{srdA}:{srdA+3}], s{sT0} offen")
        a(f"s_add_u32 s{sT0}, s{sA8}, {k*1024}")
        a(f"buffer_load_dwordx4 {vr(r+16,4)}, v{vL16}, s[{srdWS}:{srdWS+3}], s{sT0} offen{SC}")
        n = 3
        if withq:
            a(f"s_add_u32 s{sT0}, s{sBq}, {k*1024}")
            a(f"buffer_load_dwordx4 {vr(r+8,4)}, v{vL16}, s[{srdWS}:{srdWS+3}], s{sT0} offen{SC}")
            a(f"s_add_u32 s{sT0}, s{sK}, {k*32}")
            a(f"buffer_load_dwordx4 {vr(r+12,4)}, v{vB_}, s[{srdB}:{srdB+3}], s{sT0} offen")
            n = 5
        vm.issue(k, n)
    lab = [0]
    def mf_k(slot, withq=True):
        r = fb + slot * 20
        lab[0] += 1
        L = f"{name}_fm{lab[0]}"
        a(f"v_mfma_f32_32x32x16_bf16 {vr(accP,16)}, {vr(r,4)}, {vr(r+4,4)}, {vr(accP,16)}")
        if withq:
            a(f"v_mfma_f32_32x32x16_bf16 {vr(accQ,16)}, {vr(r+8,4)}, {vr(r+12,4)}, {vr(accQ,16)}")
        a(f"s_cmp_eq_u32 s{sJob}, 0")
        a(f"s_cbranch_scc1 {L}c")
        a(f"s_bitcmp1_b32 s{sJob}, 0")
        a(f"s_cbranch_scc0 {L}a")
        a(f"v_mfma_f32_32x32x16_bf16 {vr(accX,16)}, {vr(r+16,4)}, {vr(r+4,4)}, {vr(accX,16)}")
        a.label(f"{L}a")
        a(f"s_bitcmp1_b32 s{sJob}, 1")
        a(f"s_cbranch_scc0 {L}b")
        a(f"v_mfma_f32_32x32x16_bf16 {vr(accW,16)}, {vr(r,4)}, {vr(vCn,4)}, {vr(accW,16)}")
        a.label(f"{L}b")
        a(f"s_bitcmp1_b32 s{sJob}, 2")
        a(f"s_cbranch_scc0 {L}c")
        a(f"v_mfma_f32_32x32x16_bf16 {vr(accW,16)}, {vr(r+16,4)}, {vr(vCn,4)}, {vr(accW,16)}")
        a.label(f"{L}c")
    if EXP.get("nof2"): a(f"s_branch {name}_fnox")
    if PAR.get("F2B", 0):
        a(f"s_cmp_lg_u32 s{sJob}, 0")
        a(f"s_cbranch_scc1 {name}_f2old")
        RS = [fb, fb + 16]; AF = [fb + 32, fb + 48]; BF = fb + 64
        vRo = [accX, accX + 1]; vWr_ = accX + 2; vRd_ = [accX + 4 + j for j in range(4)]
        a(f"v_lshrrev_b32 v{vT0}, 3, v{vLane}")
        a(f"s_lshl_b32 s{sT0}, s{sTt}, 5")
        a(f"v_add_u32 v{vT0}, s{sT0}, v{vT0}")
        a(f"v_lshlrev_b32 v{vT0}, 12, v{vT0}")
        a(f"v_lshrrev_b32 v{vT1}, 4, v{vLane}")
        a(f"v_and_b32 v{vT2}, 7, v{vLane}")
        for p in range(2):
            a(f"v_add_u32 v{vT3}, {4*p}, v{vT1}")
            a(f"v_xor_b32 v{vT3}, v{vT3}, v{vT2}")
            a(f"v_lshlrev_b32 v{vT3}, 4, v{vT3}")
            a(f"v_add_u32 v{vRo[p]}, v{vT0}, v{vT3}")
        a(f"s_lshl_b32 s{sT0}, s{sF}, 12")
        a(f"s_add_u32 s{sT0}, s{sT0}, {LDS_RED}")
        a(f"v_add_u32 v{vWr_}, s{sT0}, v{vL16}")
        a(f"v_and_b32 v{vT0}, 31, v{vLane}")
        a(f"v_lshrrev_b32 v{vT1}, 5, v{vLane}")
        a(f"v_lshrrev_b32 v{vT2}, 1, v{vT0}")
        a(f"v_and_b32 v{vT2}, 7, v{vT2}")
        a(f"v_xor_b32 v{vT2}, v{vT2}, v{vT1}")
        a(f"v_lshlrev_b32 v{vT2}, 4, v{vT2}")
        a(f"v_lshlrev_b32 v{vT0}, 7, v{vT0}")
        a(f"v_add_u32 v{vT0}, v{vT0}, v{vT2}")
        for j in range(4):
            a(f"v_xor_b32 v{vT3}, {j*32}, v{vT0}")
            a(f"v_add_u32 v{vRd_[j]}, s{sT0}, v{vT3}")
        vm = Vm(a)
        def rows(i):
            r, m = i >> 1, i & 1
            sr_ = srdA if m == 0 else srdB
            for j in range(4):
                a(f"s_add_u32 s{sT0}, s{sK}, {j*32768 + r*128}")
                a(f"buffer_load_dwordx4 {vr(RS[i&1]+4*j,4)}, v{vRo[j&1]}, s[{sr_}:{sr_+3}], s{sT0} offen")
            vm.issue(("R", i), 4)
        def afr(i):
            r, m = i >> 1, i & 1
            sb = sA if m == 0 else sBq
            for q in range(4):
                a(f"s_add_u32 s{sT0}, s{sb}, {(4*r+q)*1024}")
                a(f"buffer_load_dwordx4 {vr(AF[i&1]+4*q,4)}, v{vL16}, s[{srdWS}:{srdWS+3}], s{sT0} offen{SC}")
            vm.issue(("A", i), 4)
        rows(0); afr(0); rows(1); afr(1)
        for i in range(8):
            vm.wait(("R", i))
            for j in range(4):
                a(f"ds_write_b128 v{vWr_}, {vr(RS[i&1]+4*j,4)} offset:{j*1024}")
            a("s_waitcnt lgkmcnt(0)")
            for q in range(4):
                a(f"ds_read_b128 {vr(BF+4*q,4)}, v{vRd_[q]}")
            if i + 2 < 8: rows(i + 2)
            vm.wait(("A", i))
            a("s_waitcnt lgkmcnt(0)")
            acc_ = accP if (i & 1) == 0 else accQ
            for q in range(4):
                a(f"v_mfma_f32_32x32x16_bf16 {vr(acc_,16)}, {vr(AF[i&1]+4*q,4)}, {vr(BF+4*q,4)}, {vr(acc_,16)}")
            if i + 2 < 8:
                a("s_nop 4")
                afr(i + 2)
        a(f"v_mov_b32 v{accX}, 0")
        lsig(a, vT0, vT1, C_FB)
        a(f"s_branch {name}_f2x")
        a.label(f"{name}_f2old")
    vm = Vm(a)
    for k in range(NFL): ld_k(k, k)
    for k in range(16):
        vm.wait(k)
        mf_k(k % NFL)
        if k + NFL < 16:
            a("s_nop 4")
            ld_k(k + NFL, k % NFL)
    a.label(f"{name}_f2x")
    a(f"s_cmp_lg_u32 s{sF}, 0")
    a(f"s_cbranch_scc1 {name}_fnox")
    a("s_nop 4")
    vm = Vm(a)
    ld_k(64, 0, withq=False)
    a("s_waitcnt vmcnt(0)")
    mf_k(0, withq=False)
    a.label(f"{name}_fnox")
    a("s_nop 15")
    a("s_nop 3")
    for i in range(16):
        a(f"v_sub_f32 v{fb+i}, v{accP+i}, v{accQ+i}")
        a(f"v_add_f32 v{accQ+i}, v{accP+i}, v{accQ+i}")
    for i in range(16):
        a(f"v_mov_b32 v{accP+i}, v{fb+i}")
    WA = 8192 + 256 + 256
    a(f"s_cmp_eq_u32 s{sF}, 0")
    a(f"s_cbranch_scc1 {name}_fred0")
    if PAR.get("F2B", 0):
        a(f"s_cmp_lg_u32 s{sJob}, 0")
        a(f"s_cbranch_scc1 {name}_fbw")
        lwait(a, vT0, vT1, sT0, C_FB, 4, f"{name}_fbw_l", sleep=2)
        a.label(f"{name}_fbw")
    a(f"s_sub_u32 s{sT0}, s{sF}, 1")
    a(f"s_mul_i32 s{sT0}, s{sT0}, {WA}")
    a(f"s_add_u32 s{sT0}, s{sT0}, {LDS_RED}")
    a(f"v_add_u32 v{vT0}, s{sT0}, v{vL16}")
    for q in range(8):
        a(f"ds_write_b128 v{vT0}, {vr(accP+4*q,4)} offset:{q*1024}")
    a(f"v_lshrrev_b32 v{vT1}, 2, v{vL16}")
    a(f"v_add_u32 v{vT1}, s{sT0}, v{vT1}")
    a(f"ds_write_b32 v{vT1}, v{accX} offset:8192")
    a(f"v_lshrrev_b32 v{vT1}, 5, v{vLane}")
    a(f"v_lshlrev_b32 v{vT1}, 6, v{vT1}")
    a(f"v_add_u32 v{vT1}, s{sT0}, v{vT1}")
    a("s_mov_b32 exec_lo, 1")
    a("s_mov_b32 exec_hi, 1")
    for q in range(4):
        a(f"ds_write_b128 v{vT1}, {vr(accW+4*q,4)} offset:{8192 + 256 + q*16}")
    a("s_mov_b64 exec, -1")
    a("s_waitcnt lgkmcnt(0)")
    lsig(a, vT0, vT1, C_R0)
    a(f"s_branch {name}_fsig")
    a.label(f"{name}_fred0")
    lwait(a, vT0, vT1, sT0, C_R0, 3, f"{name}_fw0", sleep=PAR.get("LSLEEP", 2))
    a(f"v_add_u32 v{vT0}, {LDS_RED}, v{vL16}")
    a(f"v_lshrrev_b32 v{vT2}, 2, v{vL16}")
    a(f"v_add_u32 v{vT2}, {LDS_RED}, v{vT2}")
    a(f"v_lshrrev_b32 v{vT1}, 5, v{vLane}")
    a(f"v_lshlrev_b32 v{vT1}, 6, v{vT1}")
    a(f"v_add_u32 v{vT1}, {LDS_RED}, v{vT1}")
    for src in range(3):
        for q in range(8):
            a(f"ds_read_b128 {vr(fb+4*q,4)}, v{vT0} offset:{src*WA + q*1024}")
        a(f"ds_read_b32 v{fb+32}, v{vT2} offset:{src*WA + 8192}")
        for q in range(4):
            a(f"ds_read_b128 {vr(fb+36+4*q,4)}, v{vT1} offset:{src*WA + 8192 + 256 + q*16}")
        a("s_waitcnt lgkmcnt(0)")
        for i in range(32):
            a(f"v_add_f32 v{accP+i}, v{accP+i}, v{fb+i}")
        a(f"v_add_f32 v{accX}, v{accX}, v{fb+32}")
        for i in range(16):
            a(f"v_add_f32 v{accW+i}, v{accW+i}, v{fb+36+i}")
    a(f"s_lshl_b32 s{sT0}, s{sEt}, 7")
    for g in range(4):
        a(f"s_add_u32 s{sT2}, s{sT0}, {WS_D + g*32}")
        a(f"buffer_store_dwordx4 {vr(accP+4*g,4)}, v{vY}, s[{srdWS}:{srdWS+3}], s{sT2} offen{SC}")
        a(f"s_add_u32 s{sT2}, s{sT0}, {WS_E + g*32}")
        a(f"buffer_store_dwordx4 {vr(accQ+4*g,4)}, v{vY}, s[{srdWS}:{srdWS+3}], s{sT2} offen{SC}")
    a(f"s_bitcmp1_b32 s{sJob}, 0")
    a(f"s_cbranch_scc0 {name}_fo1")
    a("s_mov_b32 exec_hi, 0")
    a(f"s_mov_b32 s{sT2}, {WS_D + 1024}")
    a(f"buffer_store_dword v{accX}, v{vY}, s[{srdWS}:{srdWS+3}], s{sT2} offen{SC}")
    a(f"s_mov_b32 s{sT2}, {WS_E + 1024}")
    a(f"buffer_store_dword v{accX}, v{vY}, s[{srdWS}:{srdWS+3}], s{sT2} offen{SC}")
    a("s_mov_b64 exec, -1")
    a.label(f"{name}_fo1")
    a(f"s_bitcmp1_b32 s{sJob}, 1")
    a(f"s_cbranch_scc0 {name}_fo2")
    a(f"v_lshrrev_b32 v{vT1}, 5, v{vLane}")
    a(f"v_lshlrev_b32 v{vT1}, 4, v{vT1}")
    a("s_mov_b32 exec_lo, 1")
    a("s_mov_b32 exec_hi, 1")
    for g in range(4):
        a(f"s_add_u32 s{sT2}, s{sT0}, {WS_D + 1024*Y_STRIDE + g*32}")
        a(f"buffer_store_dwordx4 {vr(accW+4*g,4)}, v{vT1}, s[{srdWS}:{srdWS+3}], s{sT2} offen{SC}")
        a(f"s_add_u32 s{sT2}, s{sT0}, {WS_E + 1024*Y_STRIDE + g*32}")
        a(f"buffer_store_dwordx4 {vr(accW+4*g,4)}, v{vT1}, s[{srdWS}:{srdWS+3}], s{sT2} offen{SC}")
    a("s_mov_b64 exec, -1")
    a.label(f"{name}_fo2")
    a(f"s_bitcmp1_b32 s{sJob}, 2")
    a(f"s_cbranch_scc0 {name}_fo3")
    a(f"v_mov_b32 v{vT1}, 0")
    a("s_mov_b64 exec, 1")
    a(f"s_mov_b32 s{sT2}, {WS_D + 1024*Y_STRIDE + 1024}")
    a(f"buffer_store_dword v{accW}, v{vT1}, s[{srdWS}:{srdWS+3}], s{sT2} offen{SC}")
    a(f"s_mov_b32 s{sT2}, {WS_E + 1024*Y_STRIDE + 1024}")
    a(f"buffer_store_dword v{accW}, v{vT1}, s[{srdWS}:{srdWS+3}], s{sT2} offen{SC}")
    a("s_mov_b64 exec, -1")
    a.label(f"{name}_fo3")
    lsig(a, vT0, vT1, C_R1)
    a("s_waitcnt vmcnt(0)")
    a(f"s_add_u32 s{sT0}, s2, {FL_D}")
    publish(a, vT0, vT1, sT0)
    a.label(f"{name}_fsig")
    tl_stamp(a, 5)

    Rp = RegAlloc(base, 168)
    vWa = [Rp.alloc("wa0"), Rp.alloc("wa1")]
    vG2 = Rp.alloc("g"); vYa = Rp.alloc("ya"); vOffW = Rp.alloc("offw"); vFl2 = Rp.alloc("fl")
    vYv = Rp.alloc("y", 16)
    fO = Rp.alloc("fO", 64)
    NS = 3
    fW = [Rp.alloc(f"fW{i}", 8) for i in range(NS)]
    acc = [Rp.alloc("acc0", 16), Rp.alloc("acc1", 16)]
    nvmax[0] = max(nvmax[0], Rp.next)
    sTb, sEb, sTt2, sKh2, sT0row, sE0, sMirE = 56, 57, 58, 59, 60, 61, 62
    a(f"s_setprio {PAR.get('CPRIO', 3)}")
    a(f"s_mov_b32 s{sTb}, s{sHead}")
    a(f"s_mov_b32 s{sEb}, s{sQb}")
    a(f"s_and_b32 s{sTt2}, s{sF}, 1")
    a(f"s_lshr_b32 s{sKh2}, s{sF}, 1")
    a(f"s_lshl_b32 s{sT0}, s{sTt2}, 5")
    a(f"s_lshl_b32 s{sT0row}, s{sTb}, 6")
    a(f"s_add_u32 s{sT0row}, s{sT0row}, s{sT0}")
    a(f"s_lshl_b32 s{sT0}, s{sKh2}, 5")
    a(f"s_lshl_b32 s{sE0}, s{sEb}, 6")
    a(f"s_add_u32 s{sE0}, s{sE0}, s{sT0}")
    srd(a, srdA, sOut, 2048*1024)
    a(f"v_lshrrev_b32 v{vT0}, 3, v{vLane}")
    a(f"v_lshlrev_b32 v{vOffW}, 10, v{vT0}")
    a(f"v_bfe_u32 v{vT1}, v{vLane}, 4, 1")
    a(f"v_bfe_u32 v{vT2}, v{vLane}, 2, 1")
    a(f"v_xor_b32 v{vT1}, v{vT1}, v{vT2}")
    a(f"v_lshlrev_b32 v{vT1}, 6, v{vT1}")
    a(f"v_add_u32 v{vOffW}, v{vOffW}, v{vT1}")
    a(f"v_and_b32 v{vT1}, 3, v{vLane}")
    a(f"v_lshlrev_b32 v{vT1}, 4, v{vT1}")
    a(f"v_add_u32 v{vOffW}, v{vOffW}, v{vT1}")
    a(f"v_bfe_u32 v{vT0}, v{vLane}, 2, 2")
    a(f"v_lshrrev_b32 v{vT1}, 5, v{vLane}")
    a(f"v_lshlrev_b32 v{vT1}, 2, v{vT1}")
    a(f"v_add_u32 v{vT0}, v{vT0}, v{vT1}")
    a(f"v_lshlrev_b32 v{vT0}, 7, v{vT0}")
    a(f"v_bfe_u32 v{vT1}, v{vLane}, 4, 1")
    a(f"v_lshlrev_b32 v{vT1}, 5, v{vT1}")
    a(f"v_add_u32 v{vT0}, v{vT0}, v{vT1}")
    a(f"v_and_b32 v{vT1}, 3, v{vLane}")
    a(f"v_lshlrev_b32 v{vT1}, 3, v{vT1}")
    a(f"v_add_u32 v{vT0}, v{vT0}, v{vT1}")
    a(f"s_lshl_b32 s{sT0}, s{sKh2}, 15")
    a(f"v_add_u32 v{vT0}, s{sT0}, v{vT0}")
    a(f"v_bfe_u32 v{vT1}, v{vLane}, 3, 1")
    for et in range(2):
        a(f"v_xor_b32 v{vT2}, {et}, v{vT1}")
        a(f"v_lshlrev_b32 v{vT2}, 6, v{vT2}")
        a(f"v_add_u32 v{vWa[et]}, v{vT0}, v{vT2}")
    a(f"v_and_b32 v{vT0}, 31, v{vLane}")
    a(f"v_add_u32 v{vT0}, s{sT0row}, v{vT0}")
    a(f"v_lshlrev_b32 v{vG2}, 2, v{vT0}")
    a(f"v_sub_u32 v{vT1}, 2048, v{vT0}")
    a(f"s_cmp_lt_u32 s{sT0row}, 1024")
    a("s_cselect_b64 vcc, -1, 0")
    a(f"s_cselect_b32 s{sT2}, 1, 0")
    a(f"v_cndmask_b32 v{vT1}, v{vT1}, v{vT0}, vcc")
    a(f"v_mul_u32_u24 v{vYa}, {Y_STRIDE}, v{vT1}")
    a(f"v_lshrrev_b32 v{vT1}, 5, v{vLane}")
    a(f"v_lshlrev_b32 v{vT1}, 4, v{vT1}")
    a(f"s_cmp_lt_u32 s{sE0}, 256")
    a(f"s_cselect_b32 s{sMirE}, 0, 1")
    a(f"s_cselect_b32 s63, 1, 0")
    a(f"s_cbranch_scc0 {name}_mir")
    a(f"v_add_u32 v{vYa}, v{vYa}, v{vT1}")
    a(f"s_lshl_b32 s{sT1}, s{sE0}, 2")
    a(f"s_branch {name}_ya")
    a.label(f"{name}_mir")
    a(f"s_sub_u32 s{sT1}, 485, s{sE0}")
    a(f"s_lshl_b32 s{sT1}, s{sT1}, 2")
    a(f"v_add_u32 v{vYa}, s{sT1}, v{vYa}")
    a(f"v_sub_u32 v{vYa}, v{vYa}, v{vT1}")
    a(f"s_mov_b32 s{sT1}, 0")
    a.label(f"{name}_ya")
    a(f"s_cmp_eq_u32 s{sT2}, s63")
    a(f"s_mov_b32 s{sT3}, {WS_E}")
    a(f"s_cselect_b32 s{sT2}, {WS_D}, s{sT3}")
    a(f"s_add_u32 s63, s{sT1}, s{sT2}")
    for e in range(2):
        for i in range(16):
            a(f"v_mov_b32 v{acc[e]+i}, 0")
    a(f"s_lshl_b32 s{sT0}, s{sKh2}, 8")
    a(f"s_lshl_b32 s{sT1}, s{sTt2}, 7")
    a(f"s_add_u32 s{sT0}, s{sT0}, s{sT1}")
    a(f"s_lshl_b32 s30, s{sT0}, 7")
    a(f"s_lshl_b32 s{sT0}, s{sT0}, 10")
    a(f"s_lshl_b32 s{sT1}, s{sEb}, 7")
    a(f"s_add_u32 s{sT2}, s{sT0}, s{sT1}")
    for m in range(16):
        a(f"s_add_u32 s{sT1}, s{sT2}, {m*8192}")
        a(f"buffer_load_dwordx4 {vr(fO+4*m,4)}, v{vOffW}, s[{srdC}:{srdC+3}], s{sT1} offen")
    a(f"s_cmp_lg_u32 s{sF}, 0")
    a(f"s_cbranch_scc1 {name}_c1")
    a(f"v_lshlrev_b32 v{vFl2}, {FSH}, v{vLane}")
    a(f"v_add_u32 v{vFl2}, {WS_FLAG + (FL_D << FSH)}, v{vFl2}")
    gpoll_multi(a, vFl2, vYv, 4, 64 << FSH, f"{name}_gd", sCnt, sleep=8)
    lsig(a, vT0, vT1, C_GO3)
    a(f"s_branch {name}_c2")
    a.label(f"{name}_c1")
    lwait(a, vT0, vT1, sT0, C_GO3, 1, f"{name}_cw1", sleep=PAR.get("LSLEEP", 16))
    a.label(f"{name}_c2")
    a(f"s_mov_b32 s{sT1}, {WS_G}")
    a(f"buffer_load_dword v{vG2}, v{vG2}, s[{srdWS}:{srdWS+3}], s{sT1} offen{SC}")
    for c in range(4):
        a(f"buffer_load_dwordx4 {vr(vYv+4*c,4)}, v{vYa}, s[{srdWS}:{srdWS+3}], s63 offen offset:{c*32}{SC}")
    tl_stamp(a, 6)
    a(f"v_and_b32 v{vT0}, 31, v{vLane}")
    a(f"s_lshr_b32 s{sT0}, s{sHead}, 2")
    a(f"s_lshl_b32 s{sT0}, s{sT0}, 5")
    a(f"v_add_u32 v{vT0}, s{sT0}, v{vT0}")
    a(f"v_lshlrev_b32 v{vFl2}, {FSH}, v{vT0}")
    a(f"v_add_u32 v{vFl2}, {WS_FLAG + (FL_O << FSH)}, v{vFl2}")
    a(f"v_add_u32 v{vOffW}, s30, v{vL16}")
    a(f"s_lshl_b32 s{sT0}, s{sTb}, 1")
    a(f"s_add_u32 s{sT0}, s{sT0}, s{sTt2}")
    a(f"s_lshl_b32 s{sT0}, s{sT0}, 5")
    a(f"s_lshl_b32 s{sT1}, s{sKh2}, 4")
    a(f"s_add_u32 s{sT0}, s{sT0}, s{sT1}")
    a(f"s_lshl_b32 s{sT0}, s{sT0}, 10")
    a(f"s_add_u32 s30, s{sT0}, {WS_O}")
    a("s_waitcnt vmcnt(0)")
    if PAR.get("NEAR", 0):
        a("s_setprio 0")
        lwait(a, vT0, vT1, sT0, C_NEAR, 8, f"{name}_cwn", sleep=PAR.get("NSLEEP", 24))
        a("s_setprio 3")
    lwait(a, vT0, vT1, sT0, C_ADONE, 8, f"{name}_cw2", sleep=PAR.get("ASLEEP", 3))
    tl_stamp(a, 7)
    for m in range(16):
        a(f"ds_write_b128 v{vOffW}, {vr(fO+4*m,4)} offset:{m*1024}")
    a("s_waitcnt lgkmcnt(0)")
    a(f"s_lshl_b32 s{sT0}, s{sKh2}, 2")
    a(f"s_add_u32 s31, s{sT0}, {C_W}")
    lsig(a, vT0, vT1, "s31")
    tl_stamp(a, 1)
    if not PAR.get("ODIRECT", 0):
        a(f"s_cmp_lg_u32 s{sF}, 0")
        a(f"s_cbranch_scc1 {name}_c3")
        gpoll(a, vFl2, vT0, f"{name}_go", 55, sleep=2)
        lsig(a, vT0, vT1, C_GO3)
        a(f"s_branch {name}_c4")
        a.label(f"{name}_c3")
        lwait(a, vT0, vT1, sT0, C_GO3, 2, f"{name}_cw3", sleep=1)
        a.label(f"{name}_c4")
    tl_stamp(a, 8)
    a(f"s_mov_b32 s55, {PAR.get('ORETRY', 32)}")
    a.label(f"{name}_oload")
    for i in range(16):
        a(f"s_add_u32 s{sT1}, s30, {i*1024}")
        a(f"buffer_load_dwordx4 {vr(fO+4*i,4)}, v{vL16}, s[{srdWS}:{srdWS+3}], s{sT1} offen{SC}")
    def wreads(i):
        s_ = i % NS
        for et in range(2):
            for u in range(2):
                a(f"ds_read_b64_tr_b16 {vr(fW[s_]+4*et+2*u,2)}, v{vWa[et]} offset:{i*2048 + u*1024}")
    if PAR.get("OCHK", 0):
        a(f"v_mov_b32 v{vFl2}, 0")
        for i in range(16):
            a(f"s_waitcnt vmcnt({15-i})")
            a(f"v_max3_u32 v{vFl2}, v{vFl2}, v{fO+4*i}, v{fO+4*i+1}")
            a(f"v_max3_u32 v{vFl2}, v{vFl2}, v{fO+4*i+2}, v{fO+4*i+3}")
        a(f"v_cmp_eq_u32 vcc, -1, v{vFl2}")
        a("s_nop 4")
        a(f"s_cbranch_vccz {name}_ogood")
        a(f"s_sub_u32 s55, s55, 1")
        a(f"s_cbranch_scc0 {name}_oload")
        a.label(f"{name}_ogood")
        lwait(a, vT0, vT1, sT0, "s31", 2, f"{name}_cw4", sleep=0)
        tl_stamp(a, 2)
        wreads(0); wreads(1)
        for i in range(16):
            if i + 2 < 16:
                wreads(i + 2)
                a(f"s_waitcnt lgkmcnt(8)")
            else:
                a(f"s_waitcnt lgkmcnt({4*(15-i)})")
            for et in range(2):
                a(f"v_mfma_f32_32x32x16_bf16 {vr(acc[et],16)}, {vr(fW[i%NS]+4*et,4)}, {vr(fO+4*i,4)}, {vr(acc[et],16)}")
    else:
        lwait(a, vT0, vT1, sT0, "s31", 2, f"{name}_cw4", sleep=0)
        a(f"v_mov_b32 v{vFl2}, 0")
        tl_stamp(a, 2)
        wreads(0); wreads(1)
        for i in range(16):
            if i + 2 < 16:
                wreads(i + 2)
                a(f"s_waitcnt vmcnt({15-i}) lgkmcnt(8)")
            else:
                a(f"s_waitcnt vmcnt({15-i}) lgkmcnt({4*(15-i)})")
            for et in range(2):
                a(f"v_mfma_f32_32x32x16_bf16 {vr(acc[et],16)}, {vr(fW[i%NS]+4*et,4)}, {vr(fO+4*i,4)}, {vr(acc[et],16)}")
            a(f"v_max3_u32 v{vFl2}, v{vFl2}, v{fO+4*i}, v{fO+4*i+1}")
            a(f"v_max3_u32 v{vFl2}, v{vFl2}, v{fO+4*i+2}, v{fO+4*i+3}")
        a(f"v_cmp_eq_u32 vcc, -1, v{vFl2}")
        a("s_nop 4")
        a(f"s_cbranch_vccz {name}_ook")
        a(f"s_sub_u32 s55, s55, 1")
        a(f"s_cbranch_scc1 {name}_ook")
        a("s_nop 15")
        for e in range(2):
            for i in range(16):
                a(f"v_mov_b32 v{acc[e]+i}, 0")
        a("s_sleep 2")
        a(f"s_branch {name}_oload")
    a.label(f"{name}_ook")
    if TL["on"]:
        a("s_sub_u32 s86, 32, s55")
        a("s_add_u32 s86, s86, s90" if TL.get("rt") else "s_add_u32 s86, s86, s92")
    tl_stamp(a, 9)
    a("s_nop 15")
    a(f"s_lshl_b32 s{sT0}, s{sF}, 12")
    a(f"s_add_u32 s{sT0}, s{sT0}, 65536")
    a(f"v_add_u32 v{vT0}, s{sT0}, v{vL16}")
    a(f"s_cmp_eq_u32 s{sKh2}, 0")
    a(f"s_cbranch_scc0 {name}_y1")
    for q in range(4):
        a(f"ds_write_b128 v{vT0}, {vr(acc[1]+4*q,4)} offset:{q*1024}")
    a(f"s_branch {name}_y2")
    a.label(f"{name}_y1")
    for q in range(4):
        a(f"ds_write_b128 v{vT0}, {vr(acc[0]+4*q,4)} offset:{q*1024}")
    for i in range(16):
        a(f"v_mov_b32 v{acc[0]+i}, v{acc[1]+i}")
    a.label(f"{name}_y2")
    a("s_waitcnt lgkmcnt(0)")
    a(f"s_lshl_b32 s{sT0}, s{sTt2}, 2")
    a(f"s_add_u32 s31, s{sT0}, {C_Y}")
    lsig(a, vT1, vT2, "s31")
    lwait(a, vT1, vT2, sT0, "s31", 2, f"{name}_cw5", sleep=0)
    a(f"s_xor_b32 s{sT0}, s{sF}, 2")
    a(f"s_lshl_b32 s{sT0}, s{sT0}, 12")
    a(f"s_add_u32 s{sT0}, s{sT0}, 65536")
    a(f"v_add_u32 v{vT0}, s{sT0}, v{vL16}")
    for q in range(4):
        a(f"ds_read_b128 {vr(fO+4*q,4)}, v{vT0} offset:{q*1024}")
    a("s_waitcnt lgkmcnt(0)")
    S = acc[0]
    for i in range(16):
        a(f"v_add_f32 v{S+i}, v{S+i}, v{fO+i}")
    a(f"s_cmp_eq_u32 s{sMirE}, 0")
    a(f"s_cbranch_scc0 {name}_cm")
    for i in range(16):
        a(f"v_sub_f32 v{S+i}, v{S+i}, v{vYv+i}")
        a(f"v_fma_f32 v{S+i}, v{vG2}, v{S+i}, v{vYv+i}")
    a(f"s_branch {name}_st")
    a.label(f"{name}_cm")
    for g in range(4):
        for r in range(4):
            y = vYv + 4*(3-g) + (3-r)
            a(f"v_sub_f32 v{S+4*g+r}, v{S+4*g+r}, v{y}")
            a(f"v_fma_f32 v{S+4*g+r}, v{vG2}, v{S+4*g+r}, v{y}")
    a.label(f"{name}_st")
    P = fO + 16
    for i in range(8):
        a(f"v_cvt_pk_bf16_f32 v{P+i}, v{S+2*i}, v{S+2*i+1}")
    a(f"v_and_b32 v{vT0}, 31, v{vLane}")
    a(f"v_add_u32 v{vT0}, s{sT0row}, v{vT0}")
    a(f"v_lshlrev_b32 v{vT0}, 10, v{vT0}")
    a(f"v_lshrrev_b32 v{vT1}, 5, v{vLane}")
    a(f"v_lshlrev_b32 v{vT1}, 4, v{vT1}")
    a(f"v_add_u32 v{vT0}, v{vT0}, v{vT1}")
    a(f"s_lshl_b32 s{sT0}, s{sE0}, 1")
    for pr in range(2):
        a(f"v_permlane32_swap_b32 v{P+4*pr}, v{P+4*pr+2}")
        a(f"v_permlane32_swap_b32 v{P+4*pr+1}, v{P+4*pr+3}")
    for pr in range(2):
        a(f"buffer_store_dwordx4 {vr(P+4*pr,4)}, v{vT0}, s[{srdA}:{srdA+3}], s{sT0} offen offset:{32*pr}")
    tl_stamp(a, 10)
    dbg_exit(a, [3, 5, 6, 7, 8, 2, 9, -1], [PAR.get("DW", 0)], 8, 8)
    if not TL.get("dbg"): tl_exit(a, 2, sWS)
    a("s_endpgm")
```

```python
from asmlib import *
from common import *
from gen_fused import *

PRIO_MODE = 1
PRIO_SW = (5, 7)
EXP = {}
PAR = {}
sHead, sQb = 52, 53

def decode_hq(a):
    a(f"s_and_b32 s{sT0}, s2, 7")
    a(f"s_lshr_b32 s{sT1}, s2, 3")
    a(f"s_lshl_b32 s{sHead}, s{sT0}, 2")
    a(f"s_and_b32 s{sT0}, s{sT1}, 3")
    a(f"s_add_u32 s{sHead}, s{sHead}, s{sT0}")
    a(f"s_lshr_b32 s{sQb}, s{sT1}, 2")


def edge_regs(r0):
    return dict(vG=r0, vA=r0+4, vB=r0+8, vR=r0+12, vX1=r0+16, vRe=r0+20, vD=r0+24)

def emit_edge_loads(a, name, V, r0, sF, sS):
    vL16 = V["vL16"]
    E = edge_regs(r0); vG, vA, vB, vR, vX1, vRe, vD = [E[k] for k in ("vG","vA","vB","vR","vX1","vRe","vD")]
    a(f"s_lshl_b32 s{sS}, s2, 2")
    a(f"s_add_u32 s{sS}, s{sS}, s{sF}")
    a(f"global_load_dwordx4 {vr(vG,4)}, v{vL16}, s[{sGate}:{sGate+1}]")
    a(f"s_lshl_b32 s{sT0}, s{sS}, 10")
    a(f"buffer_load_dwordx4 {vr(vA,4)}, v{vL16}, s[{srdA}:{srdA+3}], s{sT0} offen")
    a(f"s_sub_u32 s{sT1}, 2048, s{sS}")
    a(f"s_lshl_b32 s{sT1}, s{sT1}, 10")
    a(f"buffer_load_dwordx4 {vr(vB,4)}, v{vL16}, s[{srdA}:{srdA+3}], s{sT1} offen")
    a(f"s_mov_b32 s{sT1}, {1024*1024}")
    a(f"buffer_load_dwordx4 {vr(vX1,4)}, v{vL16}, s[{srdA}:{srdA+3}], s{sT1} offen")
    a(f"s_lshl_b32 s{sT1}, s2, 10")
    a(f"v_add_u32 v{vD}, s{sT1}, v{vL16}")
    a(f"global_load_dwordx4 {vr(vRe,4)}, v{vD}, s[{sHre}:{sHre+1}]")

def emit_edge_compute(a, name, V, r0, sF, sS, sfx):
    vLane, vL16, vT0, vT1, vT2, vT3 = V["vLane"], V["vL16"], V["vT0"], V["vT1"], V["vT2"], V["vT3"]
    E = edge_regs(r0); vG, vA, vB, vR, vX1, vRe, vD = [E[k] for k in ("vG","vA","vB","vR","vX1","vRe","vD")]
    srd(a, srdWS, sWS, WS_SIZE_USED)
    a("s_waitcnt vmcnt(0)")
    a(f"s_mov_b32 s31, 0xbf803f80")
    a(f"v_dot2_f32_bf16 v{vD}, v{vA}, v{vG}, 0")
    a(f"v_dot2_f32_bf16 v{vD+1}, v{vB}, v{vG}, 0")
    a(f"v_dot2_f32_bf16 v{vD+2}, v{vA}, s31, 0")
    a(f"v_dot2_f32_bf16 v{vD+3}, v{vRe}, v{vX1}, 0")
    a(f"v_dot2_f32_bf16 v{vD+4}, v{vX1}, v{vG}, 0")
    a(f"v_dot2_f32_bf16 v{vD+5}, v{vX1}, s31, 0")
    a("s_nop 2")
    for q in range(4):
        if q > 0:
            a(f"v_dot2c_f32_bf16 v{vD}, v{vA+q}, v{vG+q}")
            a(f"v_dot2c_f32_bf16 v{vD+1}, v{vB+q}, v{vG+q}")
            a(f"v_dot2c_f32_bf16 v{vD+2}, s31, v{vA+q}")
            a(f"v_dot2c_f32_bf16 v{vD+3}, v{vRe+q}, v{vX1+q}")
            a(f"v_dot2c_f32_bf16 v{vD+4}, v{vX1+q}, v{vG+q}")
            a(f"v_dot2c_f32_bf16 v{vD+5}, s31, v{vX1+q}")
        a(f"v_dot2c_f32_bf16 v{vD+2}, s31, v{vB+q}")
    a("s_nop 3")
    for ctrl in ["row_shr:1", "row_shr:2", "row_shr:4", "row_shr:8"]:
        for r in range(6):
            a(f"v_add_f32_dpp v{vD+r}, v{vD+r}, v{vD+r} {ctrl} row_mask:0xf bank_mask:0xf bound_ctrl:0")
    for r in range(6):
        a(f"v_add_f32_dpp v{vD+r}, v{vD+r}, v{vD+r} row_bcast:15 row_mask:0xa bank_mask:0xf")
    for r in range(6):
        a(f"v_add_f32_dpp v{vD+r}, v{vD+r}, v{vD+r} row_bcast:31 row_mask:0xc bank_mask:0xf")
    for r in (0, 1, 4):
        a(f"v_mul_f32 v{vD+r}, {f2u(-1.4426950408889634)}, v{vD+r}")
    for r in (0, 1, 4):
        a(f"v_exp_f32 v{vD+r}, v{vD+r}")
    a("s_nop 0")
    for r in (0, 1, 4):
        a(f"v_add_f32 v{vD+r}, 1.0, v{vD+r}")
    for r in (0, 1, 4):
        a(f"v_rcp_f32 v{vD+r}, v{vD+r}")
    a(f"v_cvt_pk_bf16_f32 v{vD+2}, v{vD+2}, 0")
    a(f"v_cvt_pk_bf16_f32 v{vR}, v{vD+3}, 0")
    a(f"v_cvt_pk_bf16_f32 v{vD+5}, v{vD+5}, 0")
    for i in range(1, 4): a(f"v_mov_b32 v{vR+i}, 0")
    for i in range(4): a(f"v_mov_b32 v{vA+i}, 0")
    a(f"v_mov_b32 v{vT1}, 0")
    a("s_mov_b32 exec_lo, 0")
    a("s_mov_b32 exec_hi, 0x80000000")
    a(f"s_lshl_b32 s{sT0}, s{sS}, 2")
    a(f"s_add_u32 s{sT0}, s{sT0}, {WS_G}")
    a(f"buffer_store_dword v{vD}, v{vT1}, s[{srdWS}:{srdWS+3}], s{sT0} offen{SC}")
    a(f"s_cmp_eq_u32 s{sS}, 0")
    a(f"s_cbranch_scc1 {name}_e1{sfx}")
    a(f"s_sub_u32 s{sT0}, 2048, s{sS}")
    a(f"s_lshl_b32 s{sT0}, s{sT0}, 2")
    a(f"s_add_u32 s{sT0}, s{sT0}, {WS_G}")
    a(f"buffer_store_dword v{vD+1}, v{vT1}, s[{srdWS}:{srdWS+3}], s{sT0} offen{SC}")
    a.label(f"{name}_e1{sfx}")
    a(f"s_lshr_b32 s{sT0}, s{sS}, 4")
    a(f"s_add_u32 s{sT0}, s{sT0}, {8*A_KSTEPS}")
    a(f"s_lshl_b32 s{sT0}, s{sT0}, 10")
    a(f"s_bfe_u32 s{sT1}, s{sS}, 0x10003")
    a(f"s_lshl_b32 s{sT1}, s{sT1}, 9")
    a(f"s_add_u32 s{sT0}, s{sT0}, s{sT1}")
    a(f"s_and_b32 s{sT1}, s{sS}, 7")
    a(f"s_lshl_b32 s{sT1}, s{sT1}, 1")
    a(f"s_add_u32 s{sT0}, s{sT0}, s{sT1}")
    a(f"s_add_u32 s{sT0}, s{sT0}, {WS_A}")
    a(f"buffer_store_short v{vD+2}, v{vT1}, s[{srdWS}:{srdWS+3}], s{sT0} offen{SC}")
    a(f"s_cmp_lg_u32 s{sF}, 0")
    a(f"s_cbranch_scc1 {name}_e2{sfx}")
    a(f"s_lshr_b32 s{sT0}, s2, 5")
    a(f"s_mul_i32 s{sT0}, s{sT0}, {A_KSTEPS}")
    a(f"s_add_u32 s{sT0}, s{sT0}, 64")
    a(f"s_lshl_b32 s{sT0}, s{sT0}, 10")
    a(f"s_and_b32 s{sT1}, s2, 31")
    a(f"s_lshl_b32 s{sT1}, s{sT1}, 4")
    a(f"s_add_u32 s{sT0}, s{sT0}, s{sT1}")
    a(f"s_add_u32 s{sT0}, s{sT0}, {WS_A}")
    a(f"buffer_store_dwordx4 {vr(vR,4)}, v{vT1}, s[{srdWS}:{srdWS+3}], s{sT0} offen{SC}")
    a(f"buffer_store_dwordx4 {vr(vA,4)}, v{vT1}, s[{srdWS}:{srdWS+3}], s{sT0} offen offset:512{SC}")
    a.label(f"{name}_e2{sfx}")
    a(f"s_cmp_lg_u32 s{sS}, 1")
    a(f"s_cbranch_scc1 {name}_e3{sfx}")
    a(f"s_mov_b32 s{sT0}, {WS_G + 4096}")
    a(f"buffer_store_dword v{vD+4}, v{vT1}, s[{srdWS}:{srdWS+3}], s{sT0} offen{SC}")
    a(f"v_mov_b32 v{vR}, v{vD+5}")
    a(f"s_mov_b32 s{sT0}, {WS_A + (8*A_KSTEPS + 64)*1024}")
    a(f"buffer_store_dwordx4 {vr(vR,4)}, v{vT1}, s[{srdWS}:{srdWS+3}], s{sT0} offen{SC}")
    a(f"buffer_store_dwordx4 {vr(vA,4)}, v{vT1}, s[{srdWS}:{srdWS+3}], s{sT0} offen offset:512{SC}")
    a.label(f"{name}_e3{sfx}")
    a("s_mov_b64 exec, -1")


PC = 160
def emit_phaseC_salu(a, sF):
    sTb, sEb, sTt2, sKh2, sT0row, sE0, sMirE = 56, 57, 58, 59, 60, 61, 62
    a(f"s_mov_b32 s{sTb}, s{sHead}")
    a(f"s_mov_b32 s{sEb}, s{sQb}")
    a(f"s_and_b32 s{sTt2}, s{sF}, 1")
    a(f"s_lshr_b32 s{sKh2}, s{sF}, 1")
    a(f"s_lshl_b32 s{sT0}, s{sTt2}, 5")
    a(f"s_lshl_b32 s{sT0row}, s{sTb}, 6")
    a(f"s_add_u32 s{sT0row}, s{sT0row}, s{sT0}")
    a(f"s_lshl_b32 s{sT0}, s{sKh2}, 5")
    a(f"s_lshl_b32 s{sE0}, s{sEb}, 6")
    a(f"s_add_u32 s{sE0}, s{sE0}, s{sT0}")

def emit_phaseC_addr(a, name, V, sF, vWa, vG2, vYa, vOffW, sfx):
    vLane, vL16, vT0, vT1, vT2, vT3 = V["vLane"], V["vL16"], V["vT0"], V["vT1"], V["vT2"], V["vT3"]
    sTb, sEb, sTt2, sKh2, sT0row, sE0, sMirE = 56, 57, 58, 59, 60, 61, 62
    a(f"v_lshrrev_b32 v{vT0}, 3, v{vLane}")
    a(f"v_lshlrev_b32 v{vOffW}, 10, v{vT0}")
    a(f"v_bfe_u32 v{vT1}, v{vLane}, 4, 1")
    a(f"v_bfe_u32 v{vT2}, v{vLane}, 2, 1")
    a(f"v_xor_b32 v{vT1}, v{vT1}, v{vT2}")
    a(f"v_lshlrev_b32 v{vT1}, 6, v{vT1}")
    a(f"v_add_u32 v{vOffW}, v{vOffW}, v{vT1}")
    a(f"v_and_b32 v{vT1}, 3, v{vLane}")
    a(f"v_lshlrev_b32 v{vT1}, 4, v{vT1}")
    a(f"v_add_u32 v{vOffW}, v{vOffW}, v{vT1}")
    a(f"v_bfe_u32 v{vT0}, v{vLane}, 2, 2")
    a(f"v_lshrrev_b32 v{vT1}, 5, v{vLane}")
    a(f"v_lshlrev_b32 v{vT1}, 2, v{vT1}")
    a(f"v_add_u32 v{vT0}, v{vT0}, v{vT1}")
    a(f"v_lshlrev_b32 v{vT0}, 7, v{vT0}")
    a(f"v_bfe_u32 v{vT1}, v{vLane}, 4, 1")
    a(f"v_lshlrev_b32 v{vT1}, 5, v{vT1}")
    a(f"v_add_u32 v{vT0}, v{vT0}, v{vT1}")
    a(f"v_and_b32 v{vT1}, 3, v{vLane}")
    a(f"v_lshlrev_b32 v{vT1}, 3, v{vT1}")
    a(f"v_add_u32 v{vT0}, v{vT0}, v{vT1}")
    a(f"s_lshl_b32 s{sT0}, s{sKh2}, 15")
    a(f"v_add_u32 v{vT0}, s{sT0}, v{vT0}")
    a(f"v_bfe_u32 v{vT1}, v{vLane}, 3, 1")
    for et in range(2):
        a(f"v_xor_b32 v{vT2}, {et}, v{vT1}")
        a(f"v_lshlrev_b32 v{vT2}, 6, v{vT2}")
        a(f"v_add_u32 v{vWa[et]}, v{vT0}, v{vT2}")
    a(f"v_and_b32 v{vT0}, 31, v{vLane}")
    a(f"v_add_u32 v{vT0}, s{sT0row}, v{vT0}")
    a(f"v_lshlrev_b32 v{vG2}, 2, v{vT0}")
    a(f"v_sub_u32 v{vT1}, 2048, v{vT0}")
    a(f"s_cmp_lt_u32 s{sT0row}, 1024")
    a("s_cselect_b64 vcc, -1, 0")
    a(f"s_cselect_b32 s{sT2}, 1, 0")
    a(f"v_cndmask_b32 v{vT1}, v{vT1}, v{vT0}, vcc")
    a(f"v_mul_u32_u24 v{vYa}, {Y_STRIDE}, v{vT1}")
    a(f"v_lshrrev_b32 v{vT1}, 5, v{vLane}")
    a(f"v_lshlrev_b32 v{vT1}, 4, v{vT1}")
    a(f"s_cmp_lt_u32 s{sE0}, 256")
    a(f"s_cselect_b32 s{sMirE}, 0, 1")
    a(f"s_cselect_b32 s63, 1, 0")
    a(f"s_cbranch_scc0 {name}_mir{sfx}")
    a(f"v_add_u32 v{vYa}, v{vYa}, v{vT1}")
    a(f"s_lshl_b32 s{sT1}, s{sE0}, 2")
    a(f"s_branch {name}_ya{sfx}")
    a.label(f"{name}_mir{sfx}")
    a(f"s_sub_u32 s{sT1}, 485, s{sE0}")
    a(f"s_lshl_b32 s{sT1}, s{sT1}, 2")
    a(f"v_add_u32 v{vYa}, s{sT1}, v{vYa}")
    a(f"v_sub_u32 v{vYa}, v{vYa}, v{vT1}")
    a(f"s_mov_b32 s{sT1}, 0")
    a.label(f"{name}_ya{sfx}")
    a(f"s_cmp_eq_u32 s{sT2}, s63")
    a(f"s_mov_b32 s{sT3}, {WS_E}")
    a(f"s_cselect_b32 s{sT2}, {WS_D}, s{sT3}")
    a(f"s_add_u32 s63, s{sT1}, s{sT2}")


def gen_attn_part(a, name, base, nvmax, V):
    vLane, vL16, vT0, vT1 = V["vLane"], V["vL16"], V["vT0"], V["vT1"]
    Ra = RegAlloc(base, 168)
    vAK = Ra.alloc("addrK"); vAV = Ra.alloc("addrV"); vM = Ra.alloc("m")
    vRd = Ra.alloc("rdaddr"); vRv = Ra.alloc("rdval")
    vQ = [Ra.alloc("Q0", 4), Ra.alloc("Q1", 4)]
    vK = Ra.alloc("K", 4); vV0 = Ra.alloc("V0", 4); vV1 = Ra.alloc("V1", 4)
    vP = Ra.alloc("P", 8)
    vS = [Ra.alloc("S0", 16), Ra.alloc("S1", 16)]
    vT = Ra.alloc("T", 16)
    vO = [Ra.alloc("O0", 16), Ra.alloc("O1", 16)]
    vC = [Ra.alloc("C0", 16), Ra.alloc("C1", 16)]
    nvmax[0] = max(nvmax[0], Ra.next)
    sKh, sQp, sIt, sMask, sRetry = 54, 55, 56, 58, 57
    a.label(f"{name}_attn")
    decode_hq(a)
    a(f"s_and_b32 s{sQp}, s{sW}, 3")
    a(f"s_lshr_b32 s{sKh}, s{sW}, 2")
    srd(a, srdWS, sWS, WS_SIZE_USED)
    a(f"s_mov_b32 s{sRetry}, 0")
    a(f"s_lshl_b32 s60, s{sKh}, 15")
    a(f"s_mul_i32 s59, s{sKh}, {VHALF}")
    a(f"v_lshrrev_b32 v{vT0}, 5, v{vLane}")
    a(f"v_lshlrev_b32 v{vT0}, 8, v{vT0}")
    a(f"v_and_b32 v{vAK}, 31, v{vLane}")
    a(f"v_lshlrev_b32 v{vAV}, 4, v{vAK}")
    a(f"v_add_u32 v{vAV}, v{vAV}, v{vT0}")
    a(f"v_cmp_eq_u32 vcc, 16, v{vAK}")
    a(f"v_cmp_eq_u32 s[62:63], 20, v{vAK}")
    a(f"v_mov_b32 v{vM}, 528")
    a(f"v_mov_b32 v{vT0}, 512")
    a("s_or_b64 vcc, vcc, s[62:63]")
    a("s_nop 1")
    a(f"v_cndmask_b32 v{vM}, v{vM}, v{vT0}, vcc")
    a(f"v_cmp_gt_u32 vcc, 16, v{vAK}")
    a("s_nop 1")
    a(f"v_cndmask_b32 v{vAV}, v{vM}, v{vAV}, vcc")
    a(f"v_add_u32 v{vAV}, 65536, v{vAV}")
    a(f"v_add_u32 v{vAV}, s59, v{vAV}")
    for i in range(4):
        a(f"v_mov_b32 v{vV1+i}, 0")
    for q in range(2):
        for i in range(16):
            a(f"v_mov_b32 v{vO[q]+i}, 0")
    for i in range(4, 8):
        a(f"v_mov_b32 v{vP+i}, 0")
    a(f"v_add_u32 v{vAK}, s60, v{vL16}")
    a(f"s_lshl_b32 s{sT0}, s{sHead}, 6")
    a(f"s_lshl_b32 s{sT1}, s{sQb}, 3")
    a(f"s_add_u32 s{sT0}, s{sT0}, s{sT1}")
    a(f"s_lshl_b32 s{sT1}, s{sQp}, 1")
    a(f"s_add_u32 s{sT0}, s{sT0}, s{sT1}")
    a(f"s_lshl_b32 s61, s{sT0}, 10")
    read_nonce(a, vT0, vT1)
    tl_stamp(a, 3)
    lwait(a, vT0, vT1, sT0, C_GO, 1, f"{name}_wgo", sleep=2)
    if PAR.get("QDIRECT", 0):
        a(f"s_mov_b32 s59, 8192")
        a.label(f"{name}_qload")
    a(f"buffer_load_dwordx4 {vr(vQ[0],4)}, v{vL16}, s[{srdWS}:{srdWS+3}], s61 offen{SC}")
    a(f"buffer_load_dwordx4 {vr(vQ[1],4)}, v{vL16}, s[{srdWS}:{srdWS+3}], s61 offen offset:1024{SC}")
    if PAR.get("QDIRECT", 0):
        a("s_waitcnt vmcnt(0)")
        a(f"v_max3_u32 v{vM}, v{vQ[0]}, v{vQ[0]+1}, v{vQ[0]+2}")
        a(f"v_max3_u32 v{vM}, v{vM}, v{vQ[0]+3}, v{vQ[1]}")
        a(f"v_max3_u32 v{vM}, v{vM}, v{vQ[1]+1}, v{vQ[1]+2}")
        a(f"v_max_u32 v{vM}, v{vM}, v{vQ[1]+3}")
        a(f"v_cmp_eq_u32 vcc, -1, v{vM}")
        a("s_nop 4")
        a(f"s_cbranch_vccz {name}_qok")
        a("s_sub_u32 s59, s59, 1")
        a(f"s_cbranch_scc1 {name}_qok")
        a("s_sleep 2")
        a(f"s_branch {name}_qload")
        a.label(f"{name}_qok")
    tl_stamp(a, 4)
    lwait(a, vT0, vT1, sT0, C_RDY, 1, f"{name}_wr0", sleep=1)
    a(f"s_lshl_b32 s60, s{sKh}, 2")
    a(f"s_add_u32 s60, s60, {C_RDY}")
    lwait(a, vT0, vT1, sT0, "s60", 1, f"{name}_wr1", sleep=1)
    a(f"v_add_u32 v{vRd}, 8, v{vT0}")
    a("s_waitcnt vmcnt(0)")
    tl_stamp(a, 5)

    def rowmax(S):
        a(f"v_max3_f32 v{vM}, v{S}, v{S+1}, v{S+2}")
        for i in range(3, 15, 2):
            a(f"v_max3_f32 v{vM}, v{vM}, v{S+i}, v{S+i+1}")
        a(f"v_max_f32 v{vM}, v{vM}, v{S+15}")
    def bcast_negmax(C):
        a(f"v_mov_b32 v{vT0}, v{vM}")
        a("s_nop 1")
        a(f"v_permlane32_swap_b32 v{vT0}, v{vM}")
        a("s_nop 1")
        a(f"v_max_f32 v{vM}, v{vM}, v{vT0}")
        a(f"v_sub_f32 v{C}, 0, v{vM}")
        for i in range(1, 16):
            a(f"v_mov_b32 v{C+i}, v{C}")
    a(f"ds_read_b128 {vr(vT,4)}, v{vL16}")
    a(f"ds_read_b128 {vr(vK,4)}, v{vAK}")
    a("s_waitcnt lgkmcnt(1)")
    a(f"v_mfma_f32_32x32x16_bf16 {vr(vS[0],16)}, {vr(vT,4)}, {vr(vQ[0],4)}, 0")
    a(f"v_mfma_f32_32x32x16_bf16 {vr(vS[1],16)}, {vr(vT,4)}, {vr(vQ[1],4)}, 0")
    a(f"ds_read_b128 {vr(vV0,4)}, v{vAV}")
    a("s_nop 8")
    rowmax(vS[0]); bcast_negmax(vC[0])
    a("s_waitcnt lgkmcnt(0)")
    a(f"v_mfma_f32_32x32x16_bf16 {vr(vS[0],16)}, {vr(vK,4)}, {vr(vQ[0],4)}, {vr(vC[0],16)}")
    rowmax(vS[1]); bcast_negmax(vC[1])
    a("s_nop 1")
    a(f"v_mfma_f32_32x32x16_bf16 {vr(vS[1],16)}, {vr(vK,4)}, {vr(vQ[1],4)}, {vr(vC[1],16)}")
    a(f"ds_read_b128 {vr(vK,4)}, v{vAK} offset:1024")
    tl_stamp(a, 6)

    def step(u, q):
        S = vS[q]
        e = lambda i: a(f"v_exp_f32 v{vT+i}, v{S+i}")
        c = lambda i: a(f"v_cvt_pk_bf16_f32 v{vP+i}, v{vT+2*i}, v{vT+2*i+1}")
        e(0); e(1); e(2); c(0); e(3); e(4)
        if q == 1:
            a("s_waitcnt lgkmcnt(0)")
        a(f"v_mfma_f32_32x32x16_bf16 {vr(vO[q^1],16)}, {vr(vV1,4)}, {vr(vP+4,4)}, {vr(vO[q^1],16)}")
        if q == 0:
            a(f"ds_read_b128 {vr(vV1,4)}, v{vAV} offset:{(2*u+1)*VG}")
        c(1); e(5); e(6); c(2); e(7); e(8); c(3); e(9); e(10)
        if q == 0:
            a("s_waitcnt lgkmcnt(2)")
        a(f"v_mfma_f32_32x32x16_bf16 {vr(vO[q],16)}, {vr(vV0,4)}, {vr(vP,4)}, {vr(vO[q],16)}")
        if q == 1:
            a(f"ds_read_b128 {vr(vV0,4)}, v{vAV} offset:{(2*u+2)*VG}")
        e(11); c(4); e(12); c(5); e(13); e(14); c(6); e(15)
        if q == 0:
            a("s_waitcnt lgkmcnt(1)")
        a(f"v_mfma_f32_32x32x16_bf16 {vr(S,16)}, {vr(vK,4)}, {vr(vQ[q],4)}, {vr(vC[q],16)}")
        if q == 1:
            a(f"ds_read_b128 {vr(vK,4)}, v{vAK} offset:{(u+2)*1024}")
        c(7)

    a(f"s_mov_b32 s{sIt}, 0")
    a("s_setprio 2")
    lbl = f"{name}_loop"
    if EXP.get("al64"): a.raw(".p2align 6")
    if EXP.get("al64s4"):
        a.raw(".p2align 6"); a("s_nop 0")
    a.label(lbl)
    for u in range(4):
        step(u, 0)
        if u == 0:
            a(f"ds_read_b32 v{vRv}, v{vRd}")
        step(u, 1)
        if u == 1:
            a(f"v_readfirstlane_b32 s{sT0}, v{vRv}")
            a(f"v_add_u32 v{vRd}, 8, v{vRd}")
            a("s_nop 2")
            a(f"s_cmp_lg_u32 s{sT0}, 0")
            a(f"s_cbranch_scc1 {name}_nosync")
            a(f"v_subrev_u32 v{vT0}, 8, v{vRd}")
            a(f"s_mov_b32 s{sT3}, {SPIN_MAX*16}")
            a.label(f"{name}_wrs")
            a(f"ds_read_b32 v{vT1}, v{vT0}")
            a("s_waitcnt lgkmcnt(0)")
            a(f"v_readfirstlane_b32 s{sT0}, v{vT1}")
            a(f"s_sub_u32 s{sT3}, s{sT3}, 1")
            a(f"s_cbranch_scc1 {name}_nosync")
            a("s_nop 1")
            a(f"s_cmp_lg_u32 s{sT0}, 0")
            a(f"s_cbranch_scc1 {name}_nosync")
            a("s_sleep 1")
            a(f"s_branch {name}_wrs")
            a.label(f"{name}_nosync")
    a(f"v_add_u32 v{vAK}, 4096, v{vAK}")
    a(f"v_add_u32 v{vAV}, {8*VG}, v{vAV}")
    a(f"s_add_u32 s{sIt}, s{sIt}, 1")
    a(f"s_cmp_eq_u32 s{sIt}, {PRIO_SW[0]}")
    a(f"s_cbranch_scc0 {name}_p1")
    a("s_setprio 1")
    a.label(f"{name}_p1")
    a(f"s_cmp_eq_u32 s{sIt}, {PRIO_SW[1]}")
    a(f"s_cbranch_scc0 {name}_p2")
    a("s_setprio 0")
    if PAR.get("NEAR", 0):
        lsig(a, vT0, vT1, C_NEAR)
    a.label(f"{name}_p2")
    a(f"s_cmp_lg_u32 s{sIt}, 8")
    a(f"s_cbranch_scc1 {lbl}")
    a("s_nop 1")
    a(f"v_mfma_f32_32x32x16_bf16 {vr(vO[1],16)}, {vr(vV1,4)}, {vr(vP+4,4)}, {vr(vO[1],16)}")
    tl_stamp(a, 7)
    lwait(a, vT0, vT1, sT0, C_R1, 4 if PAR.get("LEAN", 0) else 1, f"{name}_wf")
    a("s_nop 8")
    a(f"s_mul_i32 s{sT0}, s{sW}, 2304")
    a(f"s_add_u32 s{sT0}, s{sT0}, {LDS_RED}")
    a(f"v_add_u32 v{vT0}, s{sT0}, v{vL16}")
    a(f"v_lshrrev_b32 v{vT1}, 2, v{vL16}")
    a(f"v_add_u32 v{vT1}, s{sT0}, v{vT1}")
    a(f"s_cmp_eq_u32 s{sKh}, 0")
    a(f"s_cbranch_scc0 {name}_x1")
    a(f"ds_write_b128 v{vT0}, {vr(vO[1],4)}")
    a(f"ds_write_b128 v{vT0}, {vr(vO[1]+4,4)} offset:1024")
    a(f"ds_write_b32 v{vT1}, v{vO[1]+8} offset:2048")
    a(f"s_branch {name}_x2")
    a.label(f"{name}_x1")
    a(f"ds_write_b128 v{vT0}, {vr(vO[0],4)}")
    a(f"ds_write_b128 v{vT0}, {vr(vO[0]+4,4)} offset:1024")
    a(f"ds_write_b32 v{vT1}, v{vO[0]+8} offset:2048")
    for i in range(9):
        a(f"v_mov_b32 v{vO[0]+i}, v{vO[1]+i}")
    for i in range(4):
        a(f"v_mov_b32 v{vQ[0]+i}, v{vQ[1]+i}")
    a.label(f"{name}_x2")
    a("s_waitcnt lgkmcnt(0)")
    a(f"s_lshl_b32 s{sT0}, s{sQp}, 2")
    a(f"s_add_u32 s61, s{sT0}, {C_X}")
    lsig(a, vAK, vM, "s61")
    lwait(a, vAK, vM, sT0, "s61", 2, f"{name}_wx")
    a(f"s_xor_b32 s{sT0}, s{sW}, 4")
    a(f"s_mul_i32 s{sT0}, s{sT0}, 2304")
    a(f"s_add_u32 s{sT0}, s{sT0}, {LDS_RED}")
    a(f"v_add_u32 v{vT0}, s{sT0}, v{vL16}")
    a(f"v_lshrrev_b32 v{vT1}, 2, v{vL16}")
    a(f"v_add_u32 v{vT1}, s{sT0}, v{vT1}")
    a(f"ds_read_b128 {vr(vT,4)}, v{vT0}")
    a(f"ds_read_b128 {vr(vT+4,4)}, v{vT0} offset:1024")
    a(f"ds_read_b32 v{vT+8}, v{vT1} offset:2048")
    a("s_waitcnt lgkmcnt(0)")
    O = vO[0]
    for i in range(9):
        a(f"v_add_f32 v{O+i}, v{O+i}, v{vT+i}")
    a.label(f"{name}_epi")
    a(f"s_cmp_lg_u32 s{sRetry}, 0")
    a(f"s_cbranch_scc1 {name}_fin")
    a(f"v_mov_b32 v{vT0}, 0x5d800000")
    a(f"v_cmp_nle_f32 vcc, v{O+8}, v{vT0}")
    a("s_nop 4")
    a(f"s_cbranch_vccnz {name}_fallback")
    a.label(f"{name}_fin")
    a(f"v_rcp_f32 v{vT0}, v{O+8}")
    a("s_nop 0")
    for i in range(8):
        a(f"v_mul_f32 v{O+i}, v{O+i}, v{vT0}")
    for i in range(4):
        a(f"v_cvt_pk_bf16_f32 v{vP+i}, v{O+2*i}, v{O+2*i+1}")
    a(f"s_lshl_b32 s{sT0}, s{sQb}, 3")
    a(f"s_lshl_b32 s{sT1}, s{sQp}, 1")
    a(f"s_add_u32 s{sT0}, s{sT0}, s{sT1}")
    a(f"s_add_u32 s{sT0}, s{sT0}, s{sKh}")
    a(f"s_lshl_b32 s{sT0}, s{sT0}, 5")
    a(f"s_add_u32 s{sT0}, s{sT0}, s{sHead}")
    a(f"s_lshl_b32 s{sT0}, s{sT0}, 10")
    a(f"s_add_u32 s{sT0}, s{sT0}, {WS_O}")
    a(f"buffer_store_dwordx4 {vr(vP,4)}, v{vL16}, s[{srdWS}:{srdWS+3}], s{sT0} offen{SC}")
    a(f"v_mov_b32 v{vT0}, {C_ADONE}")
    a(f"v_mov_b32 v{vT1}, 1")
    a("s_mov_b64 exec, 1")
    if PAR.get("ODIRECT", 0):
        a(f"ds_add_u32 v{vT0}, v{vT1}")
        a("s_mov_b64 exec, -1")
    else:
        a(f"ds_add_rtn_u32 v{vM}, v{vT0}, v{vT1}")
        a("s_waitcnt lgkmcnt(0)")
        a("s_mov_b64 exec, -1")
        a(f"v_readfirstlane_b32 s{sT0}, v{vM}")
        a("s_nop 3")
        a(f"s_cmp_lg_u32 s{sT0}, 7")
        a(f"s_cbranch_scc1 {name}_adone")
        a(f"s_lshl_b32 s61, s{sQb}, 5")
        a(f"s_add_u32 s61, s61, s{sHead}")
        a(f"s_add_u32 s61, s61, {FL_O}")
        publish(a, vT0, vT1, 61)
    a.label(f"{name}_adone")
    tl_stamp(a, 8)
    dbg_exit(a, [1, 4, 5, 6, 7], [PAR.get("DW", 0)], 4, 1)
    dbg_exit(a, [6, 7], [PAR.get("DW", 0)], 0, 6)
    if not TL.get("dbg"): tl_exit(a, 1, sWS)
    a("s_endpgm")
    a.label(f"{name}_fallback")
    a(f"s_mov_b32 s{sRetry}, 1")
    a(f"v_mov_b32 v{vAK}, v{vL16}")
    a(f"v_mov_b32 v{vM}, 0xff800000")
    a(f"s_mov_b32 s{sIt}, 64")
    a.label(f"{name}_maxloop")
    a(f"ds_read_b128 {vr(vK,4)}, v{vAK}")
    a("s_waitcnt lgkmcnt(0)")
    a(f"v_mfma_f32_32x32x16_bf16 {vr(vS[0],16)}, {vr(vK,4)}, {vr(vQ[0],4)}, 0")
    a(f"v_add_u32 v{vAK}, 1024, v{vAK}")
    a("s_nop 15")
    a("s_nop 3")
    for i in range(0, 16, 2):
        a(f"v_max3_f32 v{vM}, v{vM}, v{vS[0]+i}, v{vS[0]+i+1}")
    a(f"s_sub_u32 s{sIt}, s{sIt}, 1")
    a(f"s_cmp_lg_u32 s{sIt}, 0")
    a(f"s_cbranch_scc1 {name}_maxloop")
    bcast_negmax(vC[0])
    for i in range(16):
        a(f"v_mov_b32 v{O+i}, 0")
    a(f"v_mov_b32 v{vAK}, v{vL16}")
    a(f"s_mul_i32 s60, s{sKh}, {VHALF}")
    a(f"s_add_u32 s60, s60, {VHALF}")
    a(f"v_subrev_u32 v{vAV}, s60, v{vAV}")
    a(f"s_mov_b32 s{sIt}, 64")
    a.label(f"{name}_redo")
    a(f"ds_read_b128 {vr(vK,4)}, v{vAK}")
    a(f"ds_read_b128 {vr(vV0,4)}, v{vAV}")
    a(f"ds_read_b128 {vr(vV1,4)}, v{vAV} offset:{VG}")
    a("s_waitcnt lgkmcnt(0)")
    a(f"v_mfma_f32_32x32x16_bf16 {vr(vS[0],16)}, {vr(vK,4)}, {vr(vQ[0],4)}, {vr(vC[0],16)}")
    a(f"v_add_u32 v{vAK}, 1024, v{vAK}")
    a(f"v_add_u32 v{vAV}, {2*VG}, v{vAV}")
    a("s_nop 15")
    a("s_nop 3")
    for i in range(16):
        a(f"v_exp_f32 v{vT+i}, v{vS[0]+i}")
    a("s_nop 0")
    for i in range(8):
        a(f"v_cvt_pk_bf16_f32 v{vP+i}, v{vT+2*i}, v{vT+2*i+1}")
    a("s_nop 1")
    a(f"v_mfma_f32_32x32x16_bf16 {vr(O,16)}, {vr(vV0,4)}, {vr(vP,4)}, {vr(O,16)}")
    a(f"v_mfma_f32_32x32x16_bf16 {vr(O,16)}, {vr(vV1,4)}, {vr(vP+4,4)}, {vr(O,16)}")
    a(f"s_sub_u32 s{sIt}, s{sIt}, 1")
    a(f"s_cmp_lg_u32 s{sIt}, 0")
    a(f"s_cbranch_scc1 {name}_redo")
    a("s_nop 15")
    a("s_nop 3")
    a(f"s_branch {name}_epi")

def gen_f_part(a, name, base, nvmax, V):
    vLane, vL16, vT0, vT1, vT2, vT3 = V["vLane"], V["vL16"], V["vT0"], V["vT1"], V["vT2"], V["vT3"]
    sF = 54
    a.label(f"{name}_edge")
    sS = 55
    if PAR.get("QDIRECT", 0):
        KVD = PAR.get("KVDIRECT", 0)
        a("s_mov_b32 s58, 0")
        a("s_cmp_lg_u32 s30, 0")
        a(f"s_cbranch_scc1 {name}_pz_done")
        a(f"s_cmp_ge_u32 s54, {12 if KVD else 4}")
        a(f"s_cbranch_scc1 {name}_pz_done")
        a(f"s_sub_u32 s{sT0}, s{sW}, 8")
        a(f"s_lshr_b32 s{sT1}, s{sT0}, 1")
        a(f"s_lshl_b32 s{sT1}, s{sT1}, 2")
        a(f"s_and_b32 s{sT2}, s54, 3")
        a(f"s_lshl_b32 s{sT2}, s{sT2}, 3")
        a(f"s_add_u32 s{sT1}, s{sT1}, s{sT2}")
        a(f"s_lshl_b32 s{sT1}, s{sT1}, 16")
        a(f"s_and_b32 s{sT0}, s{sT0}, 1")
        a(f"s_lshr_b32 s{sT2}, s54, 2")
        a(f"s_lshl_b32 s{sT3}, s{sT2}, 21")
        a(f"s_add_u32 s{sT1}, s{sT1}, s{sT3}")
        a(f"s_cmp_eq_u32 s{sT2}, 2")
        a(f"s_cbranch_scc1 {name}_pz_v")
        a("s_mov_b32 s58, 1")
        a(f"s_lshl_b32 s{sT0}, s{sT0}, 1")
        a(f"s_lshr_b32 s{sT2}, s52, 5")
        a(f"s_add_u32 s{sT0}, s{sT0}, s{sT2}")
        a(f"s_lshl_b32 s{sT0}, s{sT0}, 10")
        a(f"s_add_u32 s59, s{sT0}, s{sT1}")
        a(f"s_branch {name}_pz_done")
        a.label(f"{name}_pz_v")
        a("s_mov_b32 s58, 2")
        a(f"s_lshl_b32 s{sT0}, s{sT0}, 2")
        a(f"s_lshr_b32 s{sT2}, s52, 4")
        a(f"s_add_u32 s{sT0}, s{sT0}, s{sT2}")
        a(f"s_lshl_b32 s{sT0}, s{sT0}, 9")
        a(f"s_add_u32 s59, s{sT0}, s{sT1}")
        a.label(f"{name}_pz_done")
        a(f"s_add_u32 s57, s62, {FL_O}")
    a(f"s_sub_u32 s{sF}, s{sW}, 8")
    a("s_setprio 3")
    a(f"v_lshlrev_b32 v{vT0}, 2, v{vLane}")
    a(f"v_add_u32 v{vT0}, {LDS_CNT}, v{vT0}")
    a(f"v_mov_b32 v{vT1}, 0")
    a(f"ds_write_b32 v{vT0}, v{vT1}")
    a("s_waitcnt lgkmcnt(0)")
    a(f"s_or_b32 s{sT0}, s2, s{sF}")
    a(f"s_cmp_lg_u32 s{sT0}, 0")
    a(f"s_cbranch_scc1 {name}_nn")
    a(f"s_memrealtime s[{sT0}:{sT0+1}]")
    a("s_waitcnt lgkmcnt(0)")
    a(f"s_or_b32 s{sT0}, s{sT0}, 1")
    a(f"v_mov_b32 v{vT0}, 0")
    a(f"v_mov_b32 v{vT1}, s{sT0}")
    a("s_mov_b64 exec, 1")
    a(f"global_store_dword v{vT0}, v{vT1}, s[{sDbg}:{sDbg+1}] sc1")
    a("s_mov_b64 exec, -1")
    a.label(f"{name}_nn")
    srd(a, srdWS, sWS, WS_SIZE_USED)
    def emit_poison():
        decode_hq(a)
        vPz = (base + 3) // 4 * 4 - 1
        for i in range(4):
            a(f"v_mov_b32 v{vPz+1+i}, -1")
        a(f"s_lshl_b32 s{sT0}, s{sQb}, 3")
        a(f"s_lshl_b32 s{sT1}, s{sF}, 1")
        a(f"s_add_u32 s{sT0}, s{sT0}, s{sT1}")
        a(f"s_lshl_b32 s{sT0}, s{sT0}, 5")
        a(f"s_add_u32 s{sT0}, s{sT0}, s{sHead}")
        a(f"s_lshl_b32 s{sT0}, s{sT0}, 10")
        a(f"s_add_u32 s{sT0}, s{sT0}, {WS_O}")
        a(f"buffer_store_dwordx4 {vr(vPz+1,4)}, v{vL16}, s[{srdWS}:{srdWS+3}], s{sT0} offen{SC}")
        a(f"s_add_u32 s{sT0}, s{sT0}, 32768")
        a(f"buffer_store_dwordx4 {vr(vPz+1,4)}, v{vL16}, s[{srdWS}:{srdWS+3}], s{sT0} offen{SC}")
        if PAR.get("QDIRECT", 0):
            a("s_cmp_eq_u32 s58, 0")
            a(f"s_cbranch_scc1 {name}_noqp")
            a("s_cmp_eq_u32 s58, 2")
            a(f"s_cbranch_scc1 {name}_qpv")
            for f_ in range(2):
                for hh in range(2):
                    for t in range(2):
                        a(f"s_add_u32 s{sT0}, s59, {(f_*2+hh)*65536 + t*1024}")
                        a(f"buffer_store_dwordx4 {vr(vPz+1,4)}, v{vL16}, s[{srdWS}:{srdWS+3}], s{sT0} offen{SC}")
            a(f"s_branch {name}_noqp")
            a.label(f"{name}_qpv")
            a(f"v_bfe_u32 v{vT0}, v{vLane}, 4, 1")
            a(f"v_lshlrev_b32 v{vT0}, 16, v{vT0}")
            a(f"v_lshrrev_b32 v{vT1}, 5, v{vLane}")
            a(f"v_lshlrev_b32 v{vT1}, 8, v{vT1}")
            a(f"v_add_u32 v{vT0}, v{vT0}, v{vT1}")
            a(f"v_and_b32 v{vT1}, 15, v{vLane}")
            a(f"v_lshlrev_b32 v{vT1}, 4, v{vT1}")
            a(f"v_add_u32 v{vT0}, v{vT0}, v{vT1}")
            for f_ in range(2):
                for t in range(2):
                    for g in range(2):
                        a(f"s_add_u32 s{sT0}, s59, {f_*2*65536 + (t*2+g)*512}")
                        a(f"buffer_store_dwordx4 {vr(vPz+1,4)}, v{vT0}, s[{srdWS}:{srdWS+3}], s{sT0} offen{SC}")
            a.label(f"{name}_noqp")
    ER = (base + 7) // 4 * 4 + 4
    if not PAR.get("PLATE", 1): emit_poison()
    EB0, EB1 = PAR.get("EB0", 1), PAR.get("EB1", 3)
    srd(a, srdA, sX, 2048*1024)
    nb = 0
    while nb < EB0:
        a("s_barrier"); nb += 1
    emit_edge_loads(a, name, V, ER, sF, 30)
    while nb < EB1:
        a("s_barrier"); nb += 1
    emit_edge_compute(a, name, V, ER, sF, 30, "p")
    if PAR.get("PLATE", 1): emit_poison()
    if PAR.get("LEAN", 0):
        a("s_mov_b32 s40, s57"); a("s_mov_b32 s41, s58"); a("s_mov_b32 s42, s59")
        emit_phaseC_salu(a, sF)
        emit_phaseC_addr(a, name, V, sF, [PC, PC + 1], PC + 2, PC + 3, PC + 4, "p")
        a("s_mov_b32 s10, s63"); a("s_mov_b32 s11, s62")
        a("s_mov_b32 s57, s40"); a("s_mov_b32 s58, s41"); a("s_mov_b32 s59, s42")
    while nb < 5:
        a("s_barrier"); nb += 1
    a(f"s_cmp_lg_u32 s{sF}, 0")
    a(f"s_cbranch_scc1 {name}_nn2")
    a(f"v_mov_b32 v{vT0}, 0")
    a(f"s_mov_b32 s{sT1}, {SPIN_MAX}")
    a.label(f"{name}_npoll")
    a(f"global_load_dword v{vT1}, v{vT0}, s[{sDbg}:{sDbg+1}] sc1")
    a("s_waitcnt vmcnt(0)")
    a(f"v_readfirstlane_b32 s{sN}, v{vT1}")
    a(f"s_sub_u32 s{sT1}, s{sT1}, 1")
    a(f"s_cbranch_scc1 {name}_npoll_ok")
    a("s_nop 1")
    a(f"s_cmp_lg_u32 s{sN}, 0")
    a(f"s_cbranch_scc1 {name}_npoll_ok")
    a("s_sleep 1")
    a(f"s_branch {name}_npoll")
    a.label(f"{name}_npoll_ok")
    a(f"v_mov_b32 v{vT0}, {C_NONCE}")
    a(f"v_mov_b32 v{vT1}, s{sN}")
    a(f"ds_write_b32 v{vT0}, v{vT1}")
    a.label(f"{name}_nn2")
    a("s_waitcnt vmcnt(0) lgkmcnt(0)")
    for i in range(5, 9):
        a("s_barrier")
        if i == 5 and PAR.get("QDIRECT", 0):
            a("s_cmp_eq_u32 s58, 0")
            a(f"s_cbranch_scc1 {name}_noqf")
            a(f"s_cmp_lg_u32 s{sF}, 0")
            a(f"s_cbranch_scc1 {name}_noqf")
            publish(a, vT0, vT1, 57)
            a.label(f"{name}_noqf")
    tl_stamp(a, 0)

    Rf = RegAlloc(base, 168)
    vB_ = Rf.alloc("boff"); vY = Rf.alloc("yaddr"); vFl = Rf.alloc("flag")
    accP = Rf.alloc("accP", 16); accQ = Rf.alloc("accQ", 16)
    buf = Rf.alloc("buf", 112)
    vCn = Rf.alloc("cn", 4)
    nvmax[0] = max(nvmax[0], Rf.next)
    sKoff, sVoff = 56, 57
    sTt, sEt, sHasQ, sA, sBq, sK, sJob, sCnt = 58, 59, 60, 61, 62, 63, 30, 31
    decode_hq(a)
    KB = accP
    sPend, sQd, sSlot = 60, 61, 62
    sEd = 30
    a(f"s_mov_b32 s{sEd}, 0")
    a(f"s_lshl_b32 s{sKoff}, s{sHead}, 16")
    a(f"s_add_u32 s{sKoff}, s{sKoff}, {WS_K}")
    if PAR.get("KVDIRECT", 0):
        vVw, vCa, vCa2, vCd = KB + 40, KB + 41, KB + 42, KB + 44
        a(f"s_cmp_lg_u32 s{sF}, 0")
        a(f"s_cbranch_scc1 {name}_kd1")
        a(f"s_add_u32 s{sT0}, s2, {FL_E}")
        publish(a, vT0, vT1, sT0)
        a(f"s_lshr_b32 s{sT0}, s{sHead}, 3")
        a(f"s_lshl_b32 s{sT0}, s{sT0}, 4")
        a(f"s_add_u32 s{sT0}, s{sT0}, {FL_O}")
        a(f"v_and_b32 v{vT0}, 15, v{vLane}")
        a(f"v_bfe_u32 v{vT1}, v{vLane}, 4, 1")
        a(f"v_lshlrev_b32 v{vT1}, 6, v{vT1}")
        a(f"v_add_u32 v{vT0}, v{vT0}, v{vT1}")
        a(f"v_add_u32 v{vT0}, 64, v{vT0}")
        a(f"v_and_b32 v{vT1}, 1, v{vLane}")
        a(f"s_lshl_b32 s{sT1}, s{sQb}, 1")
        a(f"v_add_u32 v{vT1}, s{sT1}, v{vT1}")
        a(f"v_cmp_gt_u32 vcc, 32, v{vLane}")
        a("s_nop 1")
        a(f"v_cndmask_b32 v{vT0}, v{vT1}, v{vT0}, vcc")
        a(f"v_add_u32 v{vT0}, s{sT0}, v{vT0}")
        a(f"v_lshlrev_b32 v{vFl}, {FSH}, v{vT0}")
        a(f"v_add_u32 v{vFl}, {WS_FLAG}, v{vFl}")
        gpoll(a, vFl, vT0, f"{name}_gp", sCnt, sleep=2)
        lsig(a, vT0, vT1, C_GO)
        a(f"s_branch {name}_kd2")
        a.label(f"{name}_kd1")
        lwait(a, vT0, vT1, sT0, C_GO, 1, f"{name}_kdw", sleep=1)
        a.label(f"{name}_kd2")
        tl_stamp(a, 1)
        a(f"v_lshrrev_b32 v{vT0}, 5, v{vLane}")
        a(f"v_mul_u32_u24 v{vT0}, {VG}, v{vT0}")
        a(f"v_and_b32 v{vT1}, 31, v{vLane}")
        a(f"v_lshlrev_b32 v{vT1}, 4, v{vT1}")
        a(f"v_add_u32 v{vVw}, v{vT0}, v{vT1}")
        a(f"v_lshrrev_b32 v{vT0}, 1, v{vLane}")
        a(f"v_mul_u32_u24 v{vT0}, {VG}, v{vT0}")
        a(f"v_and_b32 v{vT1}, 1, v{vLane}")
        a(f"v_lshlrev_b32 v{vT2}, 4, v{vT1}")
        a(f"v_add_u32 v{vT0}, v{vT0}, v{vT2}")
        a(f"v_add_u32 v{vCa}, 512, v{vT0}")
        a(f"v_cmp_eq_u32 vcc, 0, v{vT1}")
        a(f"v_mov_b32 v{vT0}, 0x3f803f80")
        a("s_nop 0")
        for i in range(4):
            a(f"v_cndmask_b32 v{vCd+i}, 0, v{vT0}, vcc")
        a(f"v_mov_b32 v{vT0}, {C_QUE}")
        a(f"v_mov_b32 v{vT1}, 1")
        a(f"ds_write_b32 v{vT0}, v{vT1}")
        a(f"ds_write_b32 v{vT0}, v{vT1} offset:4")
        a(f"s_mov_b32 s{sPend}, 15")
        a(f"s_mov_b32 s{sQd}, 0")
        a(f"s_mov_b32 s{sCnt}, {SPIN_MAX}")
        a.label(f"{name}_kdloop")
        a(f"s_lshl_b32 s{sT0}, s{sPend}, 4")
        a(f"s_or_b32 s{sT0}, s{sT0}, s{sPend}")
        a(f"s_lshr_b32 s{sT0}, s{sT0}, s{sQd}")
        a(f"s_ff1_i32_b32 s{sT1}, s{sT0}")
        a(f"s_add_u32 s{sQd}, s{sQd}, s{sT1}")
        a(f"s_and_b32 s{sQd}, s{sQd}, 3")
        a(f"s_lshl_b32 s{sT0}, s{sQd}, 2")
        a(f"s_add_u32 s{sT0}, s{sT0}, s{sF}")
        a(f"s_lshl_b32 s{sT0}, s{sT0}, 12")
        a(f"s_add_u32 s{sT0}, s{sT0}, s{sKoff}")
        for t in range(4):
            a(f"s_add_u32 s{sT1}, s{sT0}, {t*1024}")
            a(f"buffer_load_dwordx4 {vr(KB+4*t,4)}, v{vL16}, s[{srdWS}:{srdWS+3}], s{sT1} offen{SC}")
            a(f"s_add_u32 s{sT1}, s{sT1}, {WS_V - WS_K}")
            a(f"buffer_load_dwordx4 {vr(KB+16+4*t,4)}, v{vL16}, s[{srdWS}:{srdWS+3}], s{sT1} offen{SC}")
        a("s_waitcnt vmcnt(0)")
        a(f"v_max3_u32 v{vT0}, v{KB}, v{KB+1}, v{KB+2}")
        for i in range(3, 31, 2):
            a(f"v_max3_u32 v{vT0}, v{vT0}, v{KB+i}, v{KB+i+1}")
        a(f"v_max_u32 v{vT0}, v{vT0}, v{KB+31}")
        a(f"v_cmp_eq_u32 vcc, -1, v{vT0}")
        a(f"s_sub_u32 s{sCnt}, s{sCnt}, 1")
        a(f"s_cbranch_scc1 {name}_kdok")
        a("s_nop 2")
        a(f"s_cbranch_vccz {name}_kdok")
        a(f"s_add_u32 s{sQd}, s{sQd}, 1")
        a(f"s_and_b32 s{sQd}, s{sQd}, 3")
        a(f"s_sleep {PAR.get('KSLEEP', 2)}")
        a(f"s_branch {name}_kdloop")
        a.label(f"{name}_kdok")
        a(f"s_bitset0_b32 s{sPend}, s{sQd}")
        a(f"v_mov_b32 v{vT0}, {C_SLOT}")
        a(f"v_mov_b32 v{vT1}, 1")
        a("s_mov_b64 exec, 1")
        a(f"ds_add_rtn_u32 v{vT2}, v{vT0}, v{vT1}")
        a("s_waitcnt lgkmcnt(0)")
        a("s_mov_b64 exec, -1")
        a(f"v_readfirstlane_b32 s{sSlot}, v{vT2}")
        a("s_nop 3")
        a(f"s_and_b32 s{sSlot}, s{sSlot}, 15")
        a(f"s_and_b32 s{sT1}, s{sSlot}, 1")
        a(f"s_lshr_b32 s{sT2}, s{sSlot}, 1")
        a(f"s_mul_i32 s58, s{sT1}, {VHALF}")
        a(f"s_mul_i32 s59, s{sT2}, {8*VG}")
        a(f"s_add_u32 s58, s58, s59")
        a(f"s_add_u32 s58, s58, 65536")
        a(f"s_lshl_b32 s{sT1}, s{sT1}, 15")
        a(f"s_lshl_b32 s{sT2}, s{sT2}, 12")
        a(f"s_add_u32 s{sT1}, s{sT1}, s{sT2}")
        a(f"v_add_u32 v{vT2}, s{sT1}, v{vL16}")
        a(f"v_add_u32 v{vT3}, s58, v{vVw}")
        a(f"v_add_u32 v{vCa2}, s58, v{vCa}")
        a(f"s_lshl_b32 s{sT0}, s{sSlot}, 2")
        a(f"s_add_u32 s{sT0}, s{sT0}, {C_RDY}")
        a(f"v_mov_b32 v{vT0}, s{sT0}")
        a("s_mov_b32 exec_lo, 0xffff")
        a("s_mov_b32 exec_hi, 0")
        a(f"ds_write_b128 v{vCa2}, {vr(vCd,4)}")
        a("s_mov_b64 exec, -1")
        for t in range(4):
            a(f"ds_write_b128 v{vT2}, {vr(KB+4*t,4)} offset:{t*1024}")
            a(f"ds_write_b128 v{vT3}, {vr(KB+16+4*t,4)} offset:{t*2*VG}")
        a("s_waitcnt lgkmcnt(0)")
        a(f"ds_write_b32 v{vT0}, v{vT1}")
        a(f"s_cmp_lg_u32 s{sPend}, 0")
        a(f"s_cbranch_scc1 {name}_kdloop")
        a(f"s_branch {name}_kvdone")
    a(f"s_cmp_lg_u32 s{sF}, 0")
    a(f"s_cbranch_scc1 {name}_kvld")
    a(f"s_add_u32 s{sT0}, s2, {FL_E}")
    publish(a, vT0, vT1, sT0)
    tl_stamp(a, 1)
    a(f"s_lshr_b32 s{sT0}, s{sHead}, 3")
    a(f"s_lshl_b32 s{sT0}, s{sT0}, 4")
    a(f"v_and_b32 v{vT0}, 15, v{vLane}")
    a(f"v_bfe_u32 v{vT1}, v{vLane}, 4, 1")
    a(f"v_lshlrev_b32 v{vT1}, 6, v{vT1}")
    a(f"v_add_u32 v{vT0}, v{vT0}, v{vT1}")
    a(f"v_add_u32 v{vT0}, 64, v{vT0}")
    a(f"v_and_b32 v{vT1}, 1, v{vLane}")
    a(f"s_lshl_b32 s{sT1}, s{sQb}, 1")
    if PAR.get("QDIRECT", 0): a(f"s_add_u32 s{sT1}, s{sT1}, {FL_O}")
    a(f"v_add_u32 v{vT1}, s{sT1}, v{vT1}")
    a(f"v_cmp_gt_u32 vcc, 32, v{vLane}")
    a("s_nop 1")
    a(f"v_cndmask_b32 v{vT0}, v{vT1}, v{vT0}, vcc")
    a(f"v_add_u32 v{vT0}, s{sT0}, v{vT0}")
    a(f"v_lshlrev_b32 v{vFl}, {FSH}, v{vT0}")
    a(f"v_add_u32 v{vFl}, {WS_FLAG}, v{vFl}")
    a(f"s_mov_b32 s{sPend}, 0xffff")
    a(f"s_mov_b32 s{sQd}, 0")
    a(f"s_mov_b32 s{sSlot}, 0")
    a(f"s_mov_b32 s{sCnt}, {SPIN_MAX}")
    a.label(f"{name}_dpoll")
    a(f"global_load_dword v{vT0}, v{vFl}, s[{sWS}:{sWS+1}] sc1")
    a("s_waitcnt vmcnt(0)")
    a(f"v_cmp_eq_u32 vcc, s{sN}, v{vT0}")
    a(f"s_sub_u32 s{sCnt}, s{sCnt}, 1")
    a(f"s_cbranch_scc0 {name}_dnt")
    a("s_mov_b64 vcc, -1")
    a.label(f"{name}_dnt")
    a("s_nop 2")
    a(f"s_mov_b32 s56, vcc_lo")
    a(f"s_mov_b32 s57, vcc_hi")
    a(f"s_cmp_lg_u32 s{sQd}, 0")
    a(f"s_cbranch_scc1 {name}_dq")
    a(f"s_cmp_lg_u32 s57, -1")
    a(f"s_cbranch_scc1 {name}_dq")
    a(f"s_mov_b32 s{sQd}, 1")
    tl_stamp(a, 2)
    if TL["on"]: a("s_waitcnt lgkmcnt(0)")
    lsig(a, vT0, vT1, C_GO)
    a.label(f"{name}_dq")
    a(f"s_lshr_b32 s{sT0}, s56, 16")
    a(f"s_and_b32 s{sT0}, s{sT0}, s56")
    a(f"s_and_b32 s{sT0}, s{sT0}, s{sPend}")
    a(f"s_cmp_eq_u32 s{sT0}, 0")
    a(f"s_cbranch_scc1 {name}_dnone")
    a(f"s_andn2_b32 s{sPend}, s{sPend}, s{sT0}")
    a.label(f"{name}_dq1")
    a(f"s_ff1_i32_b32 s{sT1}, s{sT0}")
    a(f"s_bitset0_b32 s{sT0}, s{sT1}")
    a(f"s_add_u32 s{sT1}, s{sT1}, 1")
    a(f"s_lshl_b32 s{sT2}, s{sSlot}, 2")
    a(f"s_add_u32 s{sT2}, s{sT2}, {C_QUE}")
    a(f"v_mov_b32 v{vT0}, s{sT2}")
    a(f"v_mov_b32 v{vT1}, s{sT1}")
    a(f"ds_write_b32 v{vT0}, v{vT1}")
    a(f"s_add_u32 s{sSlot}, s{sSlot}, 1")
    a(f"s_cmp_lg_u32 s{sT0}, 0")
    a(f"s_cbranch_scc1 {name}_dq1")
    a.label(f"{name}_dnone")
    a(f"s_cmp_eq_u32 s{sQd}, 0")
    a(f"s_cbranch_scc1 {name}_dagain")
    a(f"s_cmp_eq_u32 s{sPend}, 0")
    a(f"s_cbranch_scc1 {name}_kvdone")
    a.label(f"{name}_dagain")
    a(f"s_sleep {PAR.get('DSLEEP', 4)}")
    a(f"s_branch {name}_dpoll")
    a.label(f"{name}_kvld")
    read_nonce(a, vT0, vT1)
    vVw, vCa, vCa2, vCd = KB + 40, KB + 41, KB + 42, KB + 44
    a(f"v_lshrrev_b32 v{vT0}, 5, v{vLane}")
    a(f"v_mul_u32_u24 v{vT0}, {VG}, v{vT0}")
    a(f"v_and_b32 v{vT1}, 31, v{vLane}")
    a(f"v_lshlrev_b32 v{vT1}, 4, v{vT1}")
    a(f"v_add_u32 v{vVw}, v{vT0}, v{vT1}")
    a(f"v_lshrrev_b32 v{vT0}, 1, v{vLane}")
    a(f"v_mul_u32_u24 v{vT0}, {VG}, v{vT0}")
    a(f"v_and_b32 v{vT1}, 1, v{vLane}")
    a(f"v_lshlrev_b32 v{vT2}, 4, v{vT1}")
    a(f"v_add_u32 v{vT0}, v{vT0}, v{vT2}")
    a(f"v_add_u32 v{vCa}, 512, v{vT0}")
    a(f"v_cmp_eq_u32 vcc, 0, v{vT1}")
    a(f"v_mov_b32 v{vT0}, 0x3f803f80")
    a("s_nop 0")
    for i in range(4):
        a(f"v_cndmask_b32 v{vCd+i}, 0, v{vT0}, vcc")
    a(f"s_sub_u32 s{sSlot}, s{sF}, 1")
    a.label(f"{name}_kvnext")
    a(f"s_lshl_b32 s{sT2}, s{sSlot}, 2")
    a(f"s_add_u32 s63, s{sT2}, {C_QUE}")
    lwait(a, vT0, vT1, sT0, "s63", 1, f"{name}_kvwq", sleep=PAR.get("QSLEEP", 1))
    a(f"s_sub_u32 s{sT0}, s{sT0}, 1")
    a(f"s_and_b32 s{sT0}, s{sT0}, 15")
    a(f"s_lshl_b32 s{sT0}, s{sT0}, 12")
    a(f"s_add_u32 s{sT0}, s{sT0}, s{sKoff}")
    for t in range(4):
        a(f"s_add_u32 s{sT1}, s{sT0}, {t*1024}")
        a(f"buffer_load_dwordx4 {vr(KB+4*t,4)}, v{vL16}, s[{srdWS}:{srdWS+3}], s{sT1} offen{SC}")
        a(f"s_add_u32 s{sT1}, s{sT1}, {WS_V - WS_K}")
        a(f"buffer_load_dwordx4 {vr(KB+16+4*t,4)}, v{vL16}, s[{srdWS}:{srdWS+3}], s{sT1} offen{SC}")
    a(f"s_and_b32 s{sT1}, s{sSlot}, 1")
    a(f"s_lshr_b32 s{sT2}, s{sSlot}, 1")
    a(f"s_mul_i32 s58, s{sT1}, {VHALF}")
    a(f"s_mul_i32 s59, s{sT2}, {8*VG}")
    a(f"s_add_u32 s58, s58, s59")
    a(f"s_add_u32 s58, s58, 65536")
    a(f"s_lshl_b32 s{sT1}, s{sT1}, 15")
    a(f"s_lshl_b32 s{sT2}, s{sT2}, 12")
    a(f"s_add_u32 s{sT1}, s{sT1}, s{sT2}")
    a(f"v_add_u32 v{vT2}, s{sT1}, v{vL16}")
    a(f"v_add_u32 v{vT3}, s58, v{vVw}")
    a(f"v_add_u32 v{vCa2}, s58, v{vCa}")
    a(f"s_lshl_b32 s{sT0}, s{sSlot}, 2")
    a(f"s_add_u32 s{sT0}, s{sT0}, {C_RDY}")
    a(f"v_mov_b32 v{vT0}, s{sT0}")
    a(f"v_mov_b32 v{vT1}, 1")
    a("s_mov_b32 exec_lo, 0xffff")
    a("s_mov_b32 exec_hi, 0")
    a(f"ds_write_b128 v{vCa2}, {vr(vCd,4)}")
    a("s_mov_b64 exec, -1")
    a("s_waitcnt vmcnt(0)")
    for t in range(4):
        a(f"ds_write_b128 v{vT2}, {vr(KB+4*t,4)} offset:{t*1024}")
        a(f"ds_write_b128 v{vT3}, {vr(KB+16+4*t,4)} offset:{t*2*VG}")
    a("s_waitcnt lgkmcnt(0)")
    a(f"ds_write_b32 v{vT0}, v{vT1}")
    a(f"s_cmp_lg_u32 s{sEd}, 1")
    a(f"s_cbranch_scc1 {name}_kvne")
    a(f"s_cmp_ge_u32 s{sF}, 3")
    a(f"s_cbranch_scc1 {name}_kvne")
    a(f"v_and_b32 v{vT0}, 31, v{vLane}")
    a(f"s_lshl_b32 s{sT0}, s{sHead}, 5")
    a(f"v_add_u32 v{vT0}, s{sT0}, v{vT0}")
    a(f"v_lshlrev_b32 v{vT0}, 12, v{vT0}")
    a(f"v_lshrrev_b32 v{vT1}, 5, v{vLane}")
    a(f"s_lshl_b32 s{sT0}, s{sQb}, 1")
    a(f"v_add_u32 v{vT1}, s{sT0}, v{vT1}")
    a(f"v_lshlrev_b32 v{vT1}, 7, v{vT1}")
    a(f"v_add_u32 v{vT0}, v{vT0}, v{vT1}")
    a(f"s_cmp_eq_u32 s{sF}, 1")
    a(f"s_cselect_b32 s{sT0}, s{sSre}, s{sSim}")
    a(f"s_cselect_b32 s{sT1}, s{sSre+1}, s{sSim+1}")
    a(f"global_load_dword v{KB+96}, v{vT0}, s[{sT0}:{sT0+1}]")
    a.label(f"{name}_kvne")
    a(f"s_add_u32 s{sEd}, s{sEd}, 1")
    a(f"s_add_u32 s{sSlot}, s{sSlot}, 3")
    a(f"s_cmp_lt_u32 s{sSlot}, 16")
    a(f"s_cbranch_scc1 {name}_kvnext")
    a.label(f"{name}_kvdone")
    tl_stamp(a, 3)
    a(f"s_setprio {PAR.get('FPRIO', 3)}")
    srd(a, srdA, sSre, 2048*4096)
    srd(a, srdB, sSim, 2048*4096)
    srd(a, srdC, sWo, 512*1024)
    a(f"s_lshl_b32 s{sT0}, s{sQb}, 7")
    a(f"s_lshl_b32 s{sT1}, s{sF}, 17")
    a(f"s_add_u32 s{sT0}, s{sT0}, s{sT1}")
    a(f"v_lshlrev_b32 v{vT0}, 10, v{vLane}")
    a(f"buffer_load_dword v{vT3}, v{vT0}, s[{srdC}:{srdC+3}], s{sT0} offen")
    a(f"s_add_u32 s{sT0}, s{sT0}, 65536")
    a(f"buffer_load_dword v{vT3}, v{vT0}, s[{srdC}:{srdC+3}], s{sT0} offen")
    a(f"s_cmp_lg_u32 s{sF}, 0")
    a(f"s_cbranch_scc1 {name}_fnz2")
    a(f"v_lshlrev_b32 v{vFl}, {FSH}, v{vLane}")
    a(f"v_add_u32 v{vFl}, {WS_FLAG + (FL_F1 << FSH)}, v{vFl}")
    a(f"s_mov_b32 s{sCnt}, {SPIN_MAX}")
    a.label(f"{name}_g1")
    a(f"global_load_dword v{buf}, v{vFl}, s[{sWS}:{sWS+1}] sc1")
    for i in range(4):
        a(f"v_add_u32 v{buf+8}, {((FL_E - FL_F1 + 64*i) << FSH)}, v{vFl}")
        a(f"global_load_dword v{buf+1+i}, v{buf+8}, s[{sWS}:{sWS+1}] sc1")
    a("s_waitcnt vmcnt(0)")
    a(f"v_cmp_ne_u32 vcc, s{sN}, v{buf}")
    for i in range(4):
        a(f"v_cmp_ne_u32 s[{sT0}:{sT0+1}], s{sN}, v{buf+1+i}")
        a("s_nop 1")
        a(f"s_or_b64 vcc, vcc, s[{sT0}:{sT0+1}]")
    a(f"s_sub_u32 s{sCnt}, s{sCnt}, 1")
    a(f"s_cbranch_scc1 {name}_g1_ok")
    a("s_nop 2")
    a(f"s_cbranch_vccz {name}_g1_ok")
    a("s_sleep 8")
    a(f"s_branch {name}_g1")
    a.label(f"{name}_g1_ok")
    lsig(a, vT0, vT1, C_GO2)
    a(f"s_branch {name}_fgo2")
    a.label(f"{name}_fnz2")
    lwait(a, vT0, vT1, sT0, C_GO2, 1, f"{name}_fwgo2", sleep=PAR.get("LSLEEP", 8))
    a.label(f"{name}_fgo2")
    tl_stamp(a, 4)

    accX = buf; accW = buf + 16; fb = buf + 32
    a(f"s_mov_b32 s{sTt}, s{sHead}")
    a(f"s_mov_b32 s{sEt}, s{sQb}")
    a(f"v_and_b32 v{vT0}, 31, v{vLane}")
    a(f"s_lshl_b32 s{sT0}, s{sTt}, 5")
    a(f"v_add_u32 v{vT0}, s{sT0}, v{vT0}")
    a(f"v_mul_u32_u24 v{vY}, {Y_STRIDE}, v{vT0}")
    a(f"v_lshlrev_b32 v{vT0}, 12, v{vT0}")
    a(f"v_lshrrev_b32 v{vT1}, 5, v{vLane}")
    a(f"v_lshlrev_b32 v{vT1}, 4, v{vT1}")
    a(f"v_add_u32 v{vB_}, v{vT0}, v{vT1}")
    a(f"v_add_u32 v{vY}, v{vY}, v{vT1}")
    if not PAR.get("LEAN", 0):
        for i in range(16):
            a(f"v_mov_b32 v{accP+i}, 0")
            a(f"v_mov_b32 v{accQ+i}, 0")
            a(f"v_mov_b32 v{accX+i}, 0")
            a(f"v_mov_b32 v{accW+i}, 0")
        for i in range(4):
            a(f"v_mov_b32 v{vCn+i}, 0xbf803f80")
    a(f"s_lshl_b32 s{sK}, s{sF}, 4")
    a(f"s_mul_i32 s{sA}, s{sEt}, {A_KSTEPS}")
    a(f"s_add_u32 s{sA}, s{sA}, s{sK}")
    a(f"s_lshl_b32 s{sA}, s{sA}, 10")
    a(f"s_add_u32 s{sA}, s{sA}, {WS_A}")
    a(f"s_add_u32 s{sHasQ}, s{sK}, {8*A_KSTEPS}")
    a(f"s_lshl_b32 s{sHasQ}, s{sHasQ}, 10")
    a(f"s_add_u32 s{sHasQ}, s{sHasQ}, {WS_A}")
    sA8 = sHasQ
    a(f"s_mul_i32 s{sBq}, s{sEt}, {B_KSTEPS}")
    a(f"s_add_u32 s{sBq}, s{sBq}, s{sK}")
    a(f"s_lshl_b32 s{sBq}, s{sBq}, 10")
    a(f"s_add_u32 s{sBq}, s{sBq}, {WS_B}")
    a(f"s_lshl_b32 s{sK}, s{sK}, 5")
    a(f"s_cmp_eq_u32 s{sEt}, 0")
    a(f"s_cselect_b32 s{sJob}, 1, 0")
    a(f"s_cmp_eq_u32 s{sTt}, 0")
    a(f"s_cselect_b32 s{sT0}, 2, 0")
    a(f"s_or_b32 s{sJob}, s{sJob}, s{sT0}")
    a(f"s_cmp_eq_u32 s2, 8")
    a(f"s_cselect_b32 s{sT0}, 4, 0")
    a(f"s_or_b32 s{sJob}, s{sJob}, s{sT0}")
    if PAR.get("LEAN", 0):
        a(f"s_cmp_eq_u32 s{sJob}, 0")
        a(f"s_cbranch_scc1 {name}_noxw")
        for i in range(16):
            a(f"v_mov_b32 v{accX+i}, 0")
            a(f"v_mov_b32 v{accW+i}, 0")
        for i in range(4):
            a(f"v_mov_b32 v{vCn+i}, 0xbf803f80")
        a.label(f"{name}_noxw")
    vm = Vm(a)
    NFL = 4
    def ld_k(k, slot, withq=True):
        r = fb + slot * 20
        a(f"s_add_u32 s{sT0}, s{sA}, {k*1024}")
        a(f"buffer_load_dwordx4 {vr(r,4)}, v{vL16}, s[{srdWS}:{srdWS+3}], s{sT0} offen{SC}")
        a(f"s_add_u32 s{sT0}, s{sK}, {k*32}")
        a(f"buffer_load_dwordx4 {vr(r+4,4)}, v{vB_}, s[{srdA}:{srdA+3}], s{sT0} offen")
        a(f"s_add_u32 s{sT0}, s{sA8}, {k*1024}")
        a(f"buffer_load_dwordx4 {vr(r+16,4)}, v{vL16}, s[{srdWS}:{srdWS+3}], s{sT0} offen{SC}")
        n = 3
        if withq:
            a(f"s_add_u32 s{sT0}, s{sBq}, {k*1024}")
            a(f"buffer_load_dwordx4 {vr(r+8,4)}, v{vL16}, s[{srdWS}:{srdWS+3}], s{sT0} offen{SC}")
            a(f"s_add_u32 s{sT0}, s{sK}, {k*32}")
            a(f"buffer_load_dwordx4 {vr(r+12,4)}, v{vB_}, s[{srdB}:{srdB+3}], s{sT0} offen")
            n = 5
        vm.issue(k, n)
    lab = [0]
    def mf_k(slot, withq=True, first=False):
        r = fb + slot * 20
        lab[0] += 1
        L = f"{name}_fm{lab[0]}"
        z = first and PAR.get("LEAN", 0)
        a(f"v_mfma_f32_32x32x16_bf16 {vr(accP,16)}, {vr(r,4)}, {vr(r+4,4)}, {'0' if z else vr(accP,16)}")
        if withq:
            a(f"v_mfma_f32_32x32x16_bf16 {vr(accQ,16)}, {vr(r+8,4)}, {vr(r+12,4)}, {'0' if z else vr(accQ,16)}")
        a(f"s_cmp_eq_u32 s{sJob}, 0")
        a(f"s_cbranch_scc1 {L}c")
        a(f"s_bitcmp1_b32 s{sJob}, 0")
        a(f"s_cbranch_scc0 {L}a")
        a(f"v_mfma_f32_32x32x16_bf16 {vr(accX,16)}, {vr(r+16,4)}, {vr(r+4,4)}, {vr(accX,16)}")
        a.label(f"{L}a")
        a(f"s_bitcmp1_b32 s{sJob}, 1")
        a(f"s_cbranch_scc0 {L}b")
        a(f"v_mfma_f32_32x32x16_bf16 {vr(accW,16)}, {vr(r,4)}, {vr(vCn,4)}, {vr(accW,16)}")
        a.label(f"{L}b")
        a(f"s_bitcmp1_b32 s{sJob}, 2")
        a(f"s_cbranch_scc0 {L}c")
        a(f"v_mfma_f32_32x32x16_bf16 {vr(accW,16)}, {vr(r+16,4)}, {vr(vCn,4)}, {vr(accW,16)}")
        a.label(f"{L}c")
    if EXP.get("nof2"): a(f"s_branch {name}_fnox")
    if PAR.get("F2B", 0):
        a(f"s_cmp_lg_u32 s{sJob}, 0")
        a(f"s_cbranch_scc1 {name}_f2old")
        RS = [fb, fb + 16]; AF = [fb + 32, fb + 48]; BF = fb + 64
        vRo = [accX, accX + 1]; vWr_ = accX + 2; vRd_ = [accX + 4 + j for j in range(4)]
        a(f"v_lshrrev_b32 v{vT0}, 3, v{vLane}")
        a(f"s_lshl_b32 s{sT0}, s{sTt}, 5")
        a(f"v_add_u32 v{vT0}, s{sT0}, v{vT0}")
        a(f"v_lshlrev_b32 v{vT0}, 12, v{vT0}")
        a(f"v_lshrrev_b32 v{vT1}, 4, v{vLane}")
        a(f"v_and_b32 v{vT2}, 7, v{vLane}")
        for p in range(2):
            a(f"v_add_u32 v{vT3}, {4*p}, v{vT1}")
            a(f"v_xor_b32 v{vT3}, v{vT3}, v{vT2}")
            a(f"v_lshlrev_b32 v{vT3}, 4, v{vT3}")
            a(f"v_add_u32 v{vRo[p]}, v{vT0}, v{vT3}")
        a(f"s_lshl_b32 s{sT0}, s{sF}, 12")
        a(f"s_add_u32 s{sT0}, s{sT0}, {LDS_RED}")
        a(f"v_add_u32 v{vWr_}, s{sT0}, v{vL16}")
        a(f"v_and_b32 v{vT0}, 31, v{vLane}")
        a(f"v_lshrrev_b32 v{vT1}, 5, v{vLane}")
        a(f"v_lshrrev_b32 v{vT2}, 1, v{vT0}")
        a(f"v_and_b32 v{vT2}, 7, v{vT2}")
        a(f"v_xor_b32 v{vT2}, v{vT2}, v{vT1}")
        a(f"v_lshlrev_b32 v{vT2}, 4, v{vT2}")
        a(f"v_lshlrev_b32 v{vT0}, 7, v{vT0}")
        a(f"v_add_u32 v{vT0}, v{vT0}, v{vT2}")
        for j in range(4):
            a(f"v_xor_b32 v{vT3}, {j*32}, v{vT0}")
            a(f"v_add_u32 v{vRd_[j]}, s{sT0}, v{vT3}")
        vm = Vm(a)
        def rows(i):
            r, m = i >> 1, i & 1
            sr_ = srdA if m == 0 else srdB
            for j in range(4):
                a(f"s_add_u32 s{sT0}, s{sK}, {j*32768 + r*128}")
                a(f"buffer_load_dwordx4 {vr(RS[i&1]+4*j,4)}, v{vRo[j&1]}, s[{sr_}:{sr_+3}], s{sT0} offen")
            vm.issue(("R", i), 4)
        def afr(i):
            r, m = i >> 1, i & 1
            sb = sA if m == 0 else sBq
            for q in range(4):
                a(f"s_add_u32 s{sT0}, s{sb}, {(4*r+q)*1024}")
                a(f"buffer_load_dwordx4 {vr(AF[i&1]+4*q,4)}, v{vL16}, s[{srdWS}:{srdWS+3}], s{sT0} offen{SC}")
            vm.issue(("A", i), 4)
        rows(0); afr(0); rows(1); afr(1)
        for i in range(8):
            vm.wait(("R", i))
            for j in range(4):
                a(f"ds_write_b128 v{vWr_}, {vr(RS[i&1]+4*j,4)} offset:{j*1024}")
            a("s_waitcnt lgkmcnt(0)")
            for q in range(4):
                a(f"ds_read_b128 {vr(BF+4*q,4)}, v{vRd_[q]}")
            if i + 2 < 8: rows(i + 2)
            vm.wait(("A", i))
            a("s_waitcnt lgkmcnt(0)")
            acc_ = accP if (i & 1) == 0 else accQ
            for q in range(4):
                a(f"v_mfma_f32_32x32x16_bf16 {vr(acc_,16)}, {vr(AF[i&1]+4*q,4)}, {vr(BF+4*q,4)}, {vr(acc_,16)}")
            if i + 2 < 8:
                a("s_nop 4")
                afr(i + 2)
        a(f"v_mov_b32 v{accX}, 0")
        lsig(a, vT0, vT1, C_FB)
        a(f"s_branch {name}_f2x")
        a.label(f"{name}_f2old")
    vm = Vm(a)
    for k in range(NFL): ld_k(k, k)
    for k in range(16):
        vm.wait(k)
        mf_k(k % NFL, first=(k == 0))
        if k + NFL < 16:
            a("s_nop 4")
            ld_k(k + NFL, k % NFL)
    a.label(f"{name}_f2x")
    a(f"s_cmp_lg_u32 s{sF}, 0")
    a(f"s_cbranch_scc1 {name}_fnox")
    a("s_nop 4")
    vm = Vm(a)
    ld_k(64, 0, withq=False)
    a("s_waitcnt vmcnt(0)")
    mf_k(0, withq=False)
    a.label(f"{name}_fnox")
    a("s_nop 15")
    a("s_nop 3")
    if PAR.get("LEAN", 0):
        XA = LDS_RED + 24576
        for g in range(4):
            a(f"s_cmp_eq_u32 s{sF}, {g}")
            a(f"s_cbranch_scc1 {name}_rw{g}")
            a(f"s_cmp_lt_u32 s{sF}, {g}")
            a(f"s_cselect_b32 s{sT0}, 0, 1")
            a(f"s_sub_u32 s{sT0}, s{sF}, s{sT0}")
            a(f"s_add_u32 s{sT0}, s{sT0}, {g*3}")
            a(f"s_lshl_b32 s{sT0}, s{sT0}, 11")
            a(f"s_add_u32 s{sT0}, s{sT0}, {LDS_RED}")
            a(f"v_add_u32 v{vT0}, s{sT0}, v{vL16}")
            a(f"ds_write_b128 v{vT0}, {vr(accP+4*g,4)}")
            a(f"ds_write_b128 v{vT0}, {vr(accQ+4*g,4)} offset:1024")
            a.label(f"{name}_rw{g}")
        a(f"s_cmp_eq_u32 s{sJob}, 0")
        a(f"s_cbranch_scc1 {name}_rwx")
        a(f"s_cmp_eq_u32 s{sF}, 0")
        a(f"s_cbranch_scc1 {name}_rwx")
        a(f"s_sub_u32 s{sT0}, s{sF}, 1")
        a(f"s_lshl_b32 s{sT0}, s{sT0}, 9")
        a(f"s_add_u32 s{sT0}, s{sT0}, {XA}")
        a(f"v_lshrrev_b32 v{vT1}, 2, v{vL16}")
        a(f"v_add_u32 v{vT1}, s{sT0}, v{vT1}")
        a(f"ds_write_b32 v{vT1}, v{accX}")
        a(f"v_lshrrev_b32 v{vT1}, 5, v{vLane}")
        a(f"v_lshlrev_b32 v{vT1}, 6, v{vT1}")
        a(f"v_add_u32 v{vT1}, s{sT0}, v{vT1}")
        a("s_mov_b32 exec_lo, 1")
        a("s_mov_b32 exec_hi, 1")
        for q in range(4):
            a(f"ds_write_b128 v{vT1}, {vr(accW+4*q,4)} offset:{256 + q*16}")
        a("s_mov_b64 exec, -1")
        a.label(f"{name}_rwx")
        a("s_waitcnt lgkmcnt(0)")
        lsig(a, vT0, vT1, C_R0)
        lwait(a, vT0, vT1, sT0, C_R0, 4, f"{name}_fw0", sleep=4)
        a(f"s_mul_i32 s{sT0}, s{sF}, {3*2048}")
        a(f"s_add_u32 s{sT0}, s{sT0}, {LDS_RED}")
        a(f"v_add_u32 v{vT0}, s{sT0}, v{vL16}")
        for src in range(3):
            a(f"ds_read_b128 {vr(fb+8*src,4)}, v{vT0} offset:{src*2048}")
            a(f"ds_read_b128 {vr(fb+8*src+4,4)}, v{vT0} offset:{src*2048+1024}")
        a(f"s_lshl_b32 s{sT2}, s{sEt}, 7")
        a(f"s_lshl_b32 s{sT1}, s{sF}, 5")
        a(f"s_add_u32 s{sT2}, s{sT2}, s{sT1}")
        a("s_waitcnt lgkmcnt(0)")
        for g in range(4):
            a(f"s_cmp_lg_u32 s{sF}, {g}")
            a(f"s_cbranch_scc1 {name}_rr{g}")
            for i in range(4):
                a(f"v_add_f32 v{fb+i}, v{fb+i}, v{accP+4*g+i}")
                a(f"v_add_f32 v{fb+4+i}, v{fb+4+i}, v{accQ+4*g+i}")
            a.label(f"{name}_rr{g}")
        for src in range(1, 3):
            for i in range(8):
                a(f"v_add_f32 v{fb+i}, v{fb+i}, v{fb+8*src+i}")
        for i in range(4):
            a(f"v_sub_f32 v{fb+8+i}, v{fb+i}, v{fb+4+i}")
            a(f"v_add_f32 v{fb+12+i}, v{fb+i}, v{fb+4+i}")
        a(f"s_add_u32 s{sT1}, s{sT2}, {WS_D}")
        a(f"buffer_store_dwordx4 {vr(fb+8,4)}, v{vY}, s[{srdWS}:{srdWS+3}], s{sT1} offen{SC}")
        a(f"s_add_u32 s{sT1}, s{sT2}, {WS_E}")
        a(f"buffer_store_dwordx4 {vr(fb+12,4)}, v{vY}, s[{srdWS}:{srdWS+3}], s{sT1} offen{SC}")
        a(f"s_cmp_eq_u32 s{sJob}, 0")
        a(f"s_cbranch_scc1 {name}_fo3")
        a(f"s_cmp_lg_u32 s{sF}, 0")
        a(f"s_cbranch_scc1 {name}_fo3")
        a(f"v_lshrrev_b32 v{vT2}, 2, v{vL16}")
        a(f"v_add_u32 v{vT2}, {XA}, v{vT2}")
        a(f"v_lshrrev_b32 v{vT1}, 5, v{vLane}")
        a(f"v_lshlrev_b32 v{vT1}, 6, v{vT1}")
        a(f"v_add_u32 v{vT1}, {XA}, v{vT1}")
        for src in range(3):
            a(f"ds_read_b32 v{fb+32}, v{vT2} offset:{src*512}")
            for q in range(4):
                a(f"ds_read_b128 {vr(fb+36+4*q,4)}, v{vT1} offset:{src*512 + 256 + q*16}")
            a("s_waitcnt lgkmcnt(0)")
            a(f"v_add_f32 v{accX}, v{accX}, v{fb+32}")
            for i in range(16):
                a(f"v_add_f32 v{accW+i}, v{accW+i}, v{fb+36+i}")
        a(f"s_lshl_b32 s{sT0}, s{sEt}, 7")
        a(f"s_bitcmp1_b32 s{sJob}, 0")
        a(f"s_cbranch_scc0 {name}_fo1")
        a("s_mov_b32 exec_hi, 0")
        a(f"s_mov_b32 s{sT2}, {WS_D + 1024}")
        a(f"buffer_store_dword v{accX}, v{vY}, s[{srdWS}:{srdWS+3}], s{sT2} offen{SC}")
        a(f"s_mov_b32 s{sT2}, {WS_E + 1024}")
        a(f"buffer_store_dword v{accX}, v{vY}, s[{srdWS}:{srdWS+3}], s{sT2} offen{SC}")
        a("s_mov_b64 exec, -1")
        a.label(f"{name}_fo1")
        a(f"s_bitcmp1_b32 s{sJob}, 1")
        a(f"s_cbranch_scc0 {name}_fo2")
        a(f"v_lshrrev_b32 v{vT1}, 5, v{vLane}")
        a(f"v_lshlrev_b32 v{vT1}, 4, v{vT1}")
        a("s_mov_b32 exec_lo, 1")
        a("s_mov_b32 exec_hi, 1")
        for g in range(4):
            a(f"s_add_u32 s{sT2}, s{sT0}, {WS_D + 1024*Y_STRIDE + g*32}")
            a(f"buffer_store_dwordx4 {vr(accW+4*g,4)}, v{vT1}, s[{srdWS}:{srdWS+3}], s{sT2} offen{SC}")
            a(f"s_add_u32 s{sT2}, s{sT0}, {WS_E + 1024*Y_STRIDE + g*32}")
            a(f"buffer_store_dwordx4 {vr(accW+4*g,4)}, v{vT1}, s[{srdWS}:{srdWS+3}], s{sT2} offen{SC}")
        a("s_mov_b64 exec, -1")
        a.label(f"{name}_fo2")
        a(f"s_bitcmp1_b32 s{sJob}, 2")
        a(f"s_cbranch_scc0 {name}_fo3")
        a(f"v_mov_b32 v{vT1}, 0")
        a("s_mov_b64 exec, 1")
        a(f"s_mov_b32 s{sT2}, {WS_D + 1024*Y_STRIDE + 1024}")
        a(f"buffer_store_dword v{accW}, v{vT1}, s[{srdWS}:{srdWS+3}], s{sT2} offen{SC}")
        a(f"s_mov_b32 s{sT2}, {WS_E + 1024*Y_STRIDE + 1024}")
        a(f"buffer_store_dword v{accW}, v{vT1}, s[{srdWS}:{srdWS+3}], s{sT2} offen{SC}")
        a("s_mov_b64 exec, -1")
        a.label(f"{name}_fo3")
        lsig(a, vT0, vT1, C_R1)
        a("s_waitcnt vmcnt(0)")
        a(f"v_mov_b32 v{vT0}, {C_FD}")
        a(f"v_mov_b32 v{vT1}, 1")
        a("s_mov_b64 exec, 1")
        a(f"ds_add_rtn_u32 v{vT2}, v{vT0}, v{vT1}")
        a("s_waitcnt lgkmcnt(0)")
        a("s_mov_b64 exec, -1")
        a(f"v_readfirstlane_b32 s{sT0}, v{vT2}")
        a("s_nop 3")
        a(f"s_cmp_lg_u32 s{sT0}, 3")
        a(f"s_cbranch_scc1 {name}_fsig")
        a(f"s_add_u32 s{sT0}, s2, {FL_D}")
        publish(a, vT0, vT1, sT0)
    else:
        for i in range(16):
            a(f"v_sub_f32 v{fb+i}, v{accP+i}, v{accQ+i}")
            a(f"v_add_f32 v{accQ+i}, v{accP+i}, v{accQ+i}")
        for i in range(16):
            a(f"v_mov_b32 v{accP+i}, v{fb+i}")
        WA = 8192 + 256 + 256
        a(f"s_cmp_eq_u32 s{sF}, 0")
        a(f"s_cbranch_scc1 {name}_fred0")
        if PAR.get("F2B", 0):
            a(f"s_cmp_lg_u32 s{sJob}, 0")
            a(f"s_cbranch_scc1 {name}_fbw")
            lwait(a, vT0, vT1, sT0, C_FB, 4, f"{name}_fbw_l", sleep=2)
            a.label(f"{name}_fbw")
        a(f"s_sub_u32 s{sT0}, s{sF}, 1")
        a(f"s_mul_i32 s{sT0}, s{sT0}, {WA}")
        a(f"s_add_u32 s{sT0}, s{sT0}, {LDS_RED}")
        a(f"v_add_u32 v{vT0}, s{sT0}, v{vL16}")
        for q in range(8):
            a(f"ds_write_b128 v{vT0}, {vr(accP+4*q,4)} offset:{q*1024}")
        a(f"v_lshrrev_b32 v{vT1}, 2, v{vL16}")
        a(f"v_add_u32 v{vT1}, s{sT0}, v{vT1}")
        a(f"ds_write_b32 v{vT1}, v{accX} offset:8192")
        a(f"v_lshrrev_b32 v{vT1}, 5, v{vLane}")
        a(f"v_lshlrev_b32 v{vT1}, 6, v{vT1}")
        a(f"v_add_u32 v{vT1}, s{sT0}, v{vT1}")
        a("s_mov_b32 exec_lo, 1")
        a("s_mov_b32 exec_hi, 1")
        for q in range(4):
            a(f"ds_write_b128 v{vT1}, {vr(accW+4*q,4)} offset:{8192 + 256 + q*16}")
        a("s_mov_b64 exec, -1")
        a("s_waitcnt lgkmcnt(0)")
        lsig(a, vT0, vT1, C_R0)
        a(f"s_branch {name}_fsig")
        a.label(f"{name}_fred0")
        lwait(a, vT0, vT1, sT0, C_R0, 3, f"{name}_fw0", sleep=PAR.get("LSLEEP", 2))
        a(f"v_add_u32 v{vT0}, {LDS_RED}, v{vL16}")
        a(f"v_lshrrev_b32 v{vT2}, 2, v{vL16}")
        a(f"v_add_u32 v{vT2}, {LDS_RED}, v{vT2}")
        a(f"v_lshrrev_b32 v{vT1}, 5, v{vLane}")
        a(f"v_lshlrev_b32 v{vT1}, 6, v{vT1}")
        a(f"v_add_u32 v{vT1}, {LDS_RED}, v{vT1}")
        for src in range(3):
            for q in range(8):
                a(f"ds_read_b128 {vr(fb+4*q,4)}, v{vT0} offset:{src*WA + q*1024}")
            a(f"ds_read_b32 v{fb+32}, v{vT2} offset:{src*WA + 8192}")
            for q in range(4):
                a(f"ds_read_b128 {vr(fb+36+4*q,4)}, v{vT1} offset:{src*WA + 8192 + 256 + q*16}")
            a("s_waitcnt lgkmcnt(0)")
            for i in range(32):
                a(f"v_add_f32 v{accP+i}, v{accP+i}, v{fb+i}")
            a(f"v_add_f32 v{accX}, v{accX}, v{fb+32}")
            for i in range(16):
                a(f"v_add_f32 v{accW+i}, v{accW+i}, v{fb+36+i}")
        a(f"s_lshl_b32 s{sT0}, s{sEt}, 7")
        for g in range(4):
            a(f"s_add_u32 s{sT2}, s{sT0}, {WS_D + g*32}")
            a(f"buffer_store_dwordx4 {vr(accP+4*g,4)}, v{vY}, s[{srdWS}:{srdWS+3}], s{sT2} offen{SC}")
            a(f"s_add_u32 s{sT2}, s{sT0}, {WS_E + g*32}")
            a(f"buffer_store_dwordx4 {vr(accQ+4*g,4)}, v{vY}, s[{srdWS}:{srdWS+3}], s{sT2} offen{SC}")
        a(f"s_bitcmp1_b32 s{sJob}, 0")
        a(f"s_cbranch_scc0 {name}_fo1")
        a("s_mov_b32 exec_hi, 0")
        a(f"s_mov_b32 s{sT2}, {WS_D + 1024}")
        a(f"buffer_store_dword v{accX}, v{vY}, s[{srdWS}:{srdWS+3}], s{sT2} offen{SC}")
        a(f"s_mov_b32 s{sT2}, {WS_E + 1024}")
        a(f"buffer_store_dword v{accX}, v{vY}, s[{srdWS}:{srdWS+3}], s{sT2} offen{SC}")
        a("s_mov_b64 exec, -1")
        a.label(f"{name}_fo1")
        a(f"s_bitcmp1_b32 s{sJob}, 1")
        a(f"s_cbranch_scc0 {name}_fo2")
        a(f"v_lshrrev_b32 v{vT1}, 5, v{vLane}")
        a(f"v_lshlrev_b32 v{vT1}, 4, v{vT1}")
        a("s_mov_b32 exec_lo, 1")
        a("s_mov_b32 exec_hi, 1")
        for g in range(4):
            a(f"s_add_u32 s{sT2}, s{sT0}, {WS_D + 1024*Y_STRIDE + g*32}")
            a(f"buffer_store_dwordx4 {vr(accW+4*g,4)}, v{vT1}, s[{srdWS}:{srdWS+3}], s{sT2} offen{SC}")
            a(f"s_add_u32 s{sT2}, s{sT0}, {WS_E + 1024*Y_STRIDE + g*32}")
            a(f"buffer_store_dwordx4 {vr(accW+4*g,4)}, v{vT1}, s[{srdWS}:{srdWS+3}], s{sT2} offen{SC}")
        a("s_mov_b64 exec, -1")
        a.label(f"{name}_fo2")
        a(f"s_bitcmp1_b32 s{sJob}, 2")
        a(f"s_cbranch_scc0 {name}_fo3")
        a(f"v_mov_b32 v{vT1}, 0")
        a("s_mov_b64 exec, 1")
        a(f"s_mov_b32 s{sT2}, {WS_D + 1024*Y_STRIDE + 1024}")
        a(f"buffer_store_dword v{accW}, v{vT1}, s[{srdWS}:{srdWS+3}], s{sT2} offen{SC}")
        a(f"s_mov_b32 s{sT2}, {WS_E + 1024*Y_STRIDE + 1024}")
        a(f"buffer_store_dword v{accW}, v{vT1}, s[{srdWS}:{srdWS+3}], s{sT2} offen{SC}")
        a("s_mov_b64 exec, -1")
        a.label(f"{name}_fo3")
        lsig(a, vT0, vT1, C_R1)
        a("s_waitcnt vmcnt(0)")
        a(f"s_add_u32 s{sT0}, s2, {FL_D}")
        publish(a, vT0, vT1, sT0)
    a.label(f"{name}_fsig")
    tl_stamp(a, 5)

    Rp = RegAlloc(base, 168)
    vWa = [Rp.alloc("wa0"), Rp.alloc("wa1")]
    vG2 = Rp.alloc("g"); vYa = Rp.alloc("ya"); vOffW = Rp.alloc("offw"); vFl2 = Rp.alloc("fl")
    vGo = vG2
    if PAR.get("LEAN", 0):
        vWa = [PC, PC + 1]; vGo = PC + 2; vYa = PC + 3; vOffW = PC + 4
        nvmax[0] = max(nvmax[0], PC + 5)
    vYv = Rp.alloc("y", 16)
    fO = Rp.alloc("fO", 64)
    NS = 3
    fW = [Rp.alloc(f"fW{i}", 8) for i in range(NS)]
    acc = [Rp.alloc("acc0", 16), Rp.alloc("acc1", 16)]
    nvmax[0] = max(nvmax[0], Rp.next)
    sTb, sEb, sTt2, sKh2, sT0row, sE0, sMirE = 56, 57, 58, 59, 60, 61, 62
    a(f"s_setprio {PAR.get('CPRIO', 3)}")
    emit_phaseC_salu(a, sF)
    srd(a, srdA, sOut, 2048*1024)
    if not PAR.get("LEAN", 0):
        emit_phaseC_addr(a, name, V, sF, vWa, vG2, vYa, vOffW, "")
    else:
        a(f"s_mov_b32 s63, s10")
        a(f"s_mov_b32 s{sMirE}, s11")
    if not PAR.get("LEAN", 0):
        for e in range(2):
            for i in range(16):
                a(f"v_mov_b32 v{acc[e]+i}, 0")
    a(f"s_lshl_b32 s{sT0}, s{sKh2}, 8")
    a(f"s_lshl_b32 s{sT1}, s{sTt2}, 7")
    a(f"s_add_u32 s{sT0}, s{sT0}, s{sT1}")
    a(f"s_lshl_b32 s30, s{sT0}, 7")
    a(f"s_lshl_b32 s{sT0}, s{sT0}, 10")
    a(f"s_lshl_b32 s{sT1}, s{sEb}, 7")
    a(f"s_add_u32 s{sT2}, s{sT0}, s{sT1}")
    for m in range(16):
        a(f"s_add_u32 s{sT1}, s{sT2}, {m*8192}")
        a(f"buffer_load_dwordx4 {vr(fO+4*m,4)}, v{vOffW}, s[{srdC}:{srdC+3}], s{sT1} offen")
    a(f"s_cmp_lg_u32 s{sF}, 0")
    a(f"s_cbranch_scc1 {name}_c1")
    a(f"v_lshlrev_b32 v{vFl2}, {FSH}, v{vLane}")
    a(f"v_add_u32 v{vFl2}, {WS_FLAG + (FL_D << FSH)}, v{vFl2}")
    gpoll_multi(a, vFl2, vYv, 4, 64 << FSH, f"{name}_gd", sCnt, sleep=8)
    lsig(a, vT0, vT1, C_GO3)
    a(f"s_branch {name}_c2")
    a.label(f"{name}_c1")
    lwait(a, vT0, vT1, sT0, C_GO3, 1, f"{name}_cw1", sleep=PAR.get("LSLEEP", 16))
    a.label(f"{name}_c2")
    a(f"s_mov_b32 s{sT1}, {WS_G}")
    a(f"buffer_load_dword v{vG2}, v{vGo}, s[{srdWS}:{srdWS+3}], s{sT1} offen{SC}")
    for c in range(4):
        a(f"buffer_load_dwordx4 {vr(vYv+4*c,4)}, v{vYa}, s[{srdWS}:{srdWS+3}], s63 offen offset:{c*32}{SC}")
    tl_stamp(a, 6)
    if not PAR.get("ODIRECT", 0):
        a(f"v_and_b32 v{vT0}, 31, v{vLane}")
        a(f"s_lshr_b32 s{sT0}, s{sHead}, 2")
        a(f"s_lshl_b32 s{sT0}, s{sT0}, 5")
        a(f"v_add_u32 v{vT0}, s{sT0}, v{vT0}")
        a(f"v_lshlrev_b32 v{vFl2}, {FSH}, v{vT0}")
        a(f"v_add_u32 v{vFl2}, {WS_FLAG + (FL_O << FSH)}, v{vFl2}")
    a(f"v_add_u32 v{vOffW}, s30, v{vL16}")
    a(f"s_lshl_b32 s{sT0}, s{sTb}, 1")
    a(f"s_add_u32 s{sT0}, s{sT0}, s{sTt2}")
    a(f"s_lshl_b32 s{sT0}, s{sT0}, 5")
    a(f"s_lshl_b32 s{sT1}, s{sKh2}, 4")
    a(f"s_add_u32 s{sT0}, s{sT0}, s{sT1}")
    a(f"s_lshl_b32 s{sT0}, s{sT0}, 10")
    a(f"s_add_u32 s30, s{sT0}, {WS_O}")
    a("s_waitcnt vmcnt(0)")
    if PAR.get("NEAR", 0):
        a("s_setprio 0")
        lwait(a, vT0, vT1, sT0, C_NEAR, 8, f"{name}_cwn", sleep=PAR.get("NSLEEP", 24))
        a("s_setprio 3")
    lwait(a, vT0, vT1, sT0, C_ADONE, 8, f"{name}_cw2", sleep=PAR.get("ASLEEP", 3))
    tl_stamp(a, 7)
    for m in range(16):
        a(f"ds_write_b128 v{vOffW}, {vr(fO+4*m,4)} offset:{m*1024}")
    a("s_waitcnt lgkmcnt(0)")
    a(f"s_lshl_b32 s{sT0}, s{sKh2}, 2")
    a(f"s_add_u32 s31, s{sT0}, {C_W}")
    lsig(a, vT0, vT1, "s31")
    tl_stamp(a, 1)
    if not PAR.get("ODIRECT", 0):
        a(f"s_cmp_lg_u32 s{sF}, 0")
        a(f"s_cbranch_scc1 {name}_c3")
        gpoll(a, vFl2, vT0, f"{name}_go", 55, sleep=2)
        lsig(a, vT0, vT1, C_GO3)
        a(f"s_branch {name}_c4")
        a.label(f"{name}_c3")
        lwait(a, vT0, vT1, sT0, C_GO3, 2, f"{name}_cw3", sleep=1)
        a.label(f"{name}_c4")
    tl_stamp(a, 8)
    a(f"s_mov_b32 s55, {PAR.get('ORETRY', 32)}")
    a.label(f"{name}_oload")
    for i in range(16):
        a(f"s_add_u32 s{sT1}, s30, {i*1024}")
        a(f"buffer_load_dwordx4 {vr(fO+4*i,4)}, v{vL16}, s[{srdWS}:{srdWS+3}], s{sT1} offen{SC}")
    def wreads(i):
        s_ = i % NS
        for et in range(2):
            for u in range(2):
                a(f"ds_read_b64_tr_b16 {vr(fW[s_]+4*et+2*u,2)}, v{vWa[et]} offset:{i*2048 + u*1024}")
    if PAR.get("OCHK", 0):
        a(f"v_mov_b32 v{vFl2}, 0")
        for i in range(16):
            a(f"s_waitcnt vmcnt({15-i})")
            a(f"v_max3_u32 v{vFl2}, v{vFl2}, v{fO+4*i}, v{fO+4*i+1}")
            a(f"v_max3_u32 v{vFl2}, v{vFl2}, v{fO+4*i+2}, v{fO+4*i+3}")
        a(f"v_cmp_eq_u32 vcc, -1, v{vFl2}")
        a("s_nop 4")
        a(f"s_cbranch_vccz {name}_ogood")
        a(f"s_sub_u32 s55, s55, 1")
        a(f"s_cbranch_scc0 {name}_oload")
        a.label(f"{name}_ogood")
        lwait(a, vT0, vT1, sT0, "s31", 2, f"{name}_cw4", sleep=0)
        tl_stamp(a, 2)
        wreads(0); wreads(1)
        for i in range(16):
            if i + 2 < 16:
                wreads(i + 2)
                a(f"s_waitcnt lgkmcnt(8)")
            else:
                a(f"s_waitcnt lgkmcnt({4*(15-i)})")
            for et in range(2):
                cin = "0" if (i == 0 and PAR.get("LEAN", 0)) else vr(acc[et],16)
                a(f"v_mfma_f32_32x32x16_bf16 {vr(acc[et],16)}, {vr(fW[i%NS]+4*et,4)}, {vr(fO+4*i,4)}, {cin}")
    else:
        lwait(a, vT0, vT1, sT0, "s31", 2, f"{name}_cw4", sleep=0)
        a(f"v_mov_b32 v{vFl2}, 0")
        tl_stamp(a, 2)
        wreads(0); wreads(1)
        for i in range(16):
            if i + 2 < 16:
                wreads(i + 2)
                a(f"s_waitcnt vmcnt({15-i}) lgkmcnt(8)")
            else:
                a(f"s_waitcnt vmcnt({15-i}) lgkmcnt({4*(15-i)})")
            for et in range(2):
                a(f"v_mfma_f32_32x32x16_bf16 {vr(acc[et],16)}, {vr(fW[i%NS]+4*et,4)}, {vr(fO+4*i,4)}, {vr(acc[et],16)}")
            a(f"v_max3_u32 v{vFl2}, v{vFl2}, v{fO+4*i}, v{fO+4*i+1}")
            a(f"v_max3_u32 v{vFl2}, v{vFl2}, v{fO+4*i+2}, v{fO+4*i+3}")
        a(f"v_cmp_eq_u32 vcc, -1, v{vFl2}")
        a("s_nop 4")
        a(f"s_cbranch_vccz {name}_ook")
        a(f"s_sub_u32 s55, s55, 1")
        a(f"s_cbranch_scc1 {name}_ook")
        a("s_nop 15")
        for e in range(2):
            for i in range(16):
                a(f"v_mov_b32 v{acc[e]+i}, 0")
        a("s_sleep 2")
        a(f"s_branch {name}_oload")
    a.label(f"{name}_ook")
    if TL["on"]:
        a("s_sub_u32 s86, 32, s55")
        a("s_add_u32 s86, s86, s90" if TL.get("rt") else "s_add_u32 s86, s86, s92")
    tl_stamp(a, 9)
    a("s_nop 15")
    a(f"s_lshl_b32 s{sT0}, s{sF}, 12")
    a(f"s_add_u32 s{sT0}, s{sT0}, 65536")
    a(f"v_add_u32 v{vT0}, s{sT0}, v{vL16}")
    a(f"s_cmp_eq_u32 s{sKh2}, 0")
    a(f"s_cbranch_scc0 {name}_y1")
    for q in range(4):
        a(f"ds_write_b128 v{vT0}, {vr(acc[1]+4*q,4)} offset:{q*1024}")
    a(f"s_branch {name}_y2")
    a.label(f"{name}_y1")
    for q in range(4):
        a(f"ds_write_b128 v{vT0}, {vr(acc[0]+4*q,4)} offset:{q*1024}")
    for i in range(16):
        a(f"v_mov_b32 v{acc[0]+i}, v{acc[1]+i}")
    a.label(f"{name}_y2")
    a("s_waitcnt lgkmcnt(0)")
    a(f"s_lshl_b32 s{sT0}, s{sTt2}, 2")
    a(f"s_add_u32 s31, s{sT0}, {C_Y}")
    lsig(a, vT1, vT2, "s31")
    lwait(a, vT1, vT2, sT0, "s31", 2, f"{name}_cw5", sleep=0)
    a(f"s_xor_b32 s{sT0}, s{sF}, 2")
    a(f"s_lshl_b32 s{sT0}, s{sT0}, 12")
    a(f"s_add_u32 s{sT0}, s{sT0}, 65536")
    a(f"v_add_u32 v{vT0}, s{sT0}, v{vL16}")
    for q in range(4):
        a(f"ds_read_b128 {vr(fO+4*q,4)}, v{vT0} offset:{q*1024}")
    a("s_waitcnt lgkmcnt(0)")
    S = acc[0]
    for i in range(16):
        a(f"v_add_f32 v{S+i}, v{S+i}, v{fO+i}")
    a(f"s_cmp_eq_u32 s{sMirE}, 0")
    a(f"s_cbranch_scc0 {name}_cm")
    for i in range(16):
        a(f"v_sub_f32 v{S+i}, v{S+i}, v{vYv+i}")
        a(f"v_fma_f32 v{S+i}, v{vG2}, v{S+i}, v{vYv+i}")
    a(f"s_branch {name}_st")
    a.label(f"{name}_cm")
    for g in range(4):
        for r in range(4):
            y = vYv + 4*(3-g) + (3-r)
            a(f"v_sub_f32 v{S+4*g+r}, v{S+4*g+r}, v{y}")
            a(f"v_fma_f32 v{S+4*g+r}, v{vG2}, v{S+4*g+r}, v{y}")
    a.label(f"{name}_st")
    P = fO + 16
    for i in range(8):
        a(f"v_cvt_pk_bf16_f32 v{P+i}, v{S+2*i}, v{S+2*i+1}")
    a(f"v_and_b32 v{vT0}, 31, v{vLane}")
    a(f"v_add_u32 v{vT0}, s{sT0row}, v{vT0}")
    a(f"v_lshlrev_b32 v{vT0}, 10, v{vT0}")
    a(f"v_lshrrev_b32 v{vT1}, 5, v{vLane}")
    a(f"v_lshlrev_b32 v{vT1}, 4, v{vT1}")
    a(f"v_add_u32 v{vT0}, v{vT0}, v{vT1}")
    a(f"s_lshl_b32 s{sT0}, s{sE0}, 1")
    for pr in range(2):
        a(f"v_permlane32_swap_b32 v{P+4*pr}, v{P+4*pr+2}")
        a(f"v_permlane32_swap_b32 v{P+4*pr+1}, v{P+4*pr+3}")
    for pr in range(2):
        a(f"buffer_store_dwordx4 {vr(P+4*pr,4)}, v{vT0}, s[{srdA}:{srdA+3}], s{sT0} offen offset:{32*pr}{PAR.get('OUTSC', '')}")
    tl_stamp(a, 10)
    dbg_exit(a, [3, 5, 6, 7, 8, 2, 9, -1], [PAR.get("DW", 0)], 8, 8)
    if not TL.get("dbg"): tl_exit(a, 2, sWS)
    a("s_endpgm")
```
